```python
import torch

def _softmax(x, axis=-1):
    return torch.softmax(x, dim=axis)
def _gelu(x):
    return torch.nn.functional.gelu(x, approximate="tanh")
def _silu(x):
    return torch.nn.functional.silu(x)
def _sigmoid(x):
    return torch.sigmoid(x)
def _layernorm(x, axis=-1, eps=1e-5):
    m = x.mean(dim=axis, keepdim=True)
    v = x.var(dim=axis, keepdim=True, unbiased=False)
    return (x - m) / torch.sqrt(v + eps)
def _scatter_add(tgt, idx, src, axis=0):
    return tgt.clone().index_add_(axis, idx, src)
def _segment_sum(src, seg, n):
    out = torch.zeros((n,) + src.shape[1:], dtype=src.dtype)
    return out.index_add_(0, seg, src)
def _pad(x, pw):
    flat = tuple(v for pair in reversed(pw) for v in pair)
    return torch.nn.functional.pad(x, flat)

kernel_name = 'concat_heads__ssm_conv_h3__sliding_block__prompt'

def setup_inputs():

    _w = (lambda a: (lambda t: t.to(torch.bfloat16) if t.is_floating_point() else t)(torch.as_tensor(a)))
    def _A_setup():
        B, S, D = 1, 2048, 1024
        ks = 4
        return {
            "q": _w((lambda *s: torch.randn(*s, dtype=torch.bfloat16) * 0.05)(B, S, D)),
            "k": _w((lambda *s: torch.randn(*s, dtype=torch.bfloat16) * 1.6)(B, S, D)),
            "v": _w((lambda *s: torch.randn(*s, dtype=torch.bfloat16) * 0.8)(B, S, D)),
            "shift_k": _w((lambda *s: torch.randn(*s, dtype=torch.bfloat16) * 1.6)(D, ks) * 0.5),
            "ssm_k": _w((lambda *s: torch.randn(*s, dtype=torch.bfloat16) * 1.6)(D, S) * (1.0 / S ** 0.5)),
            "ssm_D": _w((lambda *s: torch.randn(*s, dtype=torch.bfloat16) * 0.8)(D)),
        }
    _A_in = _A_setup()

    def _B_setup():
        B, S, D = 1, 2048, 1024
        return {
            "x": _w((lambda *s: torch.randn(*s, dtype=torch.bfloat16) * 0.2)(B, S, D)),
            "wqkv": _w((lambda *s: torch.randn(*s, dtype=torch.bfloat16) * 0.2)(D, 3 * D)),
            "wo": _w((lambda *s: torch.randn(*s, dtype=torch.bfloat16) * 0.05)(D, D)),
        }
    _B_in = _B_setup()

    return {
        "A_q": _A_in["q"],
        "A_k": _A_in["k"],
        "A_v": _A_in["v"],
        "A_shift_k": _A_in["shift_k"],
        "A_ssm_k": _A_in["ssm_k"],
        "A_ssm_D": _A_in["ssm_D"],
        "B_x": _B_in["x"],
        "B_wqkv": _B_in["wqkv"],
        "B_wo": _B_in["wo"],
    }

def reference(A_q, A_k, A_v, A_shift_k, A_ssm_k, A_ssm_D, B_x, B_wqkv, B_wo):
    def _A_ref(q, k, v, shift_k, ssm_k, ssm_D):
        B, S, D = q.shape
        ks = shift_k.shape[-1]
        k_pad = _pad(k, ((0, 0), (ks - 1, 0), (0, 0)))
        k_shift = torch.zeros_like(k)
        for t in range(ks):
            k_shift = k_shift + k_pad[:, t:t + S, :] * shift_k[:, ks - 1 - t][None, None, :]
        kv = k_shift * v
        L = 2 * S
        kv_pad = _pad(kv, ((0, 0), (0, S), (0, 0)))
        kf_pad = _pad(ssm_k, ((0, 0), (0, S)))
        kv_f = (lambda x, axes=(-2,-1): torch.fft.rfft2(x.float(), dim=axes))(kv_pad[:, None, :, :], axes=(1, 2))
        kf_f = (lambda x, axes=(-2,-1): torch.fft.rfft2(x.float(), dim=axes))(kf_pad[:, None, :], axes=(1, 2))
        kf_f = (lambda x, *d: x.permute(*d))(kf_f, 1, 2, 0)
        y_f = kv_f * kf_f[None, :, :, :]
        y = (lambda x, s, axes=(-2,-1): torch.fft.irfft2(x, s=s, dim=axes).to(torch.bfloat16))(y_f, (1, L), axes=(1, 2))[:, 0, :S, :]
        y = y + kv * ssm_D[None, None, :]
        return q * y

    def _B_ref(x, wqkv, wo):
        B, S, D = x.shape
        H = 32; Dh = D // H; W = 256
        qkv = (lambda x, *d: x.permute(*d))((x @ wqkv).reshape(B, S, 3, H, Dh), 2, 0, 3, 1, 4)
        q, k, v = qkv[0], qkv[1], qkv[2]
        scores = torch.einsum("bhqd,bhkd->bhqk", q, k) * (Dh ** -0.5)
        idx = torch.arange(S)
        mask = (idx[:, None] - idx[None, :] >= 0) & (idx[:, None] - idx[None, :] < W)
        scores = torch.where(mask[None, None], scores, -1e9)
        p = _softmax(scores, axis=-1)
        o = torch.einsum("bhqk,bhkd->bhqd", p, v)
        return (lambda x, *d: x.permute(*d))(o, 0, 2, 1, 3).reshape(B, S, D) @ wo

    a = _A_ref(A_q, A_k, A_v, A_shift_k, A_ssm_k, A_ssm_D)
    b = _B_ref(B_x, B_wqkv, B_wo)
    return torch.concatenate([a, b], axis=-1)
```

```python
from gen import *
import struct

def f32hex(x):
    return "0x%08x" % struct.unpack("<I", struct.pack("<f", x))[0]

SCALE_LOG2E = (32 ** -0.5) * 1.4426950408889634

CW = 21248
CPY = 4160
URO = 16640


def gen_k2(a, ts):
    name = "k2_kernel"
    kernel_begin(a, name)
    a("s_cmp_ge_u32 s2, 256")
    a("s_cbranch_scc1 L_k2_end")
    a(f"s_load_dwordx2 s[4:5], s[0:1], {KA['ws']}")
    a(f"s_load_dwordx2 s[6:7], s[0:1], {KA['ssmk']}")
    a(f"s_load_dwordx2 s[36:37], s[0:1], {KA['ssmd']}")
    a("v_lshrrev_b32 v1, 6, v0")
    a("v_and_b32 v0, 63, v0")
    a("s_lshl_b32 s3, s2, 3")
    a("v_readfirstlane_b32 s32, v1")
    a("s_waitcnt lgkmcnt(0)")
    a("s_load_dwordx2 s[38:39], s[36:37], s3")
    srd(a, 8, 4, WS_SIZE)
    srd(a, 12, 6, 4 * MB)
    ts.setup(a, 1, 4, 32)
    ts.stamp(a, 0)
    a("v_lshlrev_b32 v2, 4, v0")
    a("s_cmp_ge_u32 s32, 4")
    a("s_cbranch_scc1 L_k2_attn")

    ACC = 8
    FB = [40, 104]
    LD = 40
    ET = 104
    a("s_lshl_b32 s33, s2, 2")
    a("s_add_u32 s33, s33, s32")
    a("s_lshl_b32 s34, s33, 12")
    a(f"s_mul_i32 s35, s32, {CW}")
    a("s_add_u32 s35, s35, 0x10000")
    for k in range(4):
        for sh in range(3):
            a(f"buffer_load_dwordx4 {vr(LD + 12 * k + 4 * sh, 4)}, v2, s[12:15], s34 offen offset:{1024 * k + 4 * sh}")
    a(f"s_add_u32 m0, s35, {URO}")
    a(f"s_add_u32 s40, s34, 0x{WS_UR:x}")
    for k in range(4):
        a(f"buffer_load_dwordx4 v2, s[8:11], s40 offen offset:{1024 * k} lds")
    a("v_mov_b32 v4, 0")
    a("v_mov_b32 v5, 0")
    a("v_mov_b32 v6, 0")
    a("v_mov_b32 v7, 0")
    a("v_lshlrev_b32 v3, 3, v0")
    a("v_add_u32 v3, s35, v3")
    a(f"ds_write_b64 v3, v[4:5] offset:{URO + 4096}")
    a("v_and_b32 v3, 3, v0")
    a(f"v_mul_u32_u24 v3, {CPY}, v3")
    a("v_bfe_u32 v168, v0, 2, 1")
    a("v_lshl_add_u32 v3, v168, 4, v3")
    a("v_add_u32 v3, s35, v3")
    a("ds_write_b128 v3, v[4:7]")
    a("v_and_b32 v168, 15, v0")
    a("v_lshrrev_b32 v169, 4, v0")
    a("v_add_u32 v170, 1, v168")
    a("v_and_b32 v171, 3, v170")
    a("v_sub_u32 v170, v170, v171")
    a("v_lshl_add_u32 v170, v169, 3, v170")
    a("v_lshlrev_b32 v170, 1, v170")
    a(f"v_mul_u32_u24 v171, {CPY}, v171")
    a("v_add3_u32 v172, v170, v171, s35")
    a("v_lshlrev_b32 v170, 5, v168")
    a("v_lshlrev_b32 v171, 4, v169")
    a("v_sub_u32 v173, v171, v170")
    a(f"v_add_u32 v173, {URO + 480}, v173")
    a("v_add_u32 v173, s35, v173")
    a("v_lshlrev_b32 v171, 3, v169")
    a("v_add_u32 v175, v170, v171")
    a(f"v_sub_u32 v174, {URO + 504}, v175")
    a("v_add_u32 v174, s35, v174")
    a("v_add_u32 v3, s35, v2")
    a("v_mov_b32 v176, s35")
    a("s_barrier")
    a("s_waitcnt vmcnt(0) lgkmcnt(0)")
    for k in range(4):
        L0, L4, L8 = LD + 12 * k, LD + 12 * k + 4, LD + 12 * k + 8
        e1, e3 = ET + 8 * k, ET + 8 * k + 4
        for i in range(4):
            a(f"v_alignbit_b32 v{e1 + i}, v{L4 + i}, v{L0 + i}, 16")
        for i in range(4):
            a(f"v_alignbit_b32 v{e3 + i}, v{L8 + i}, v{L4 + i}, 16")
        a(f"ds_write_b128 v3, {vr(L0, 4)} offset:{32 + 1024 * k}")
        a(f"ds_write_b128 v3, {vr(e1, 4)} offset:{32 + 1024 * k + CPY}")
        a(f"ds_write_b128 v3, {vr(L4, 4)} offset:{32 + 1024 * k + 2 * CPY}")
        a(f"ds_write_b128 v3, {vr(e3, 4)} offset:{32 + 1024 * k + 3 * CPY}")
    a(f"v_lshlrev_b32 v4, 16, v{LD}")
    a("s_mov_b64 exec, 1")
    a(f"ds_write_b32 v176, v4 offset:{CPY + 28}")
    a(f"ds_write_b32 v176, v{LD} offset:{2 * CPY + 28}")
    a(f"ds_write_b32 v176, v4 offset:{3 * CPY + 24}")
    a(f"ds_write_b32 v176, v{ET} offset:{3 * CPY + 28}")
    a("s_mov_b64 exec, -1")
    a("s_waitcnt lgkmcnt(0)")
    ts.stamp(a, 1)

    def creads(j, buf):
        f = FB[buf]
        out = []
        for q in range(8):
            o = 64 * j + 512 * q
            out.append(f"ds_read_b64 {vr(f + 4 * q, 2)}, v172 offset:{o}")
            out.append(f"ds_read_b64 {vr(f + 4 * q + 2, 2)}, v172 offset:{o + 8}")
            out.append(f"ds_read_b128 {vr(f + 32 + 4 * q, 4)}, v173 offset:{512 * (7 - q) + 64 * j}")
        return out

    def cmfmas(j, buf):
        f = FB[buf]
        out = []
        order = [(q, nt - q) for nt in range(8) for q in range(nt + 1)]
        order.sort(key=lambda x: (max(x[0], x[1]), x[0] + x[1]))
        seen = set()
        for (q, dl) in order:
            nt = q + dl
            d = vr(ACC + 4 * nt, 4)
            c = "0" if (j == 0 and nt not in seen) else d
            seen.add(nt)
            out.append(f"v_mfma_f32_16x16x32_bf16 {d}, {vr(f + 4 * q, 4)}, {vr(f + 32 + 4 * dl, 4)}, {c}")
        return out

    r0 = creads(0, 0)
    for i, r in enumerate(r0):
        a(r)
        if i % 12 == 11:
            a("s_waitcnt lgkmcnt(4)")
    for j in range(8):
        m = cmfmas(j, j & 1)
        r = creads(j + 1, (j + 1) & 1) if j < 7 else []
        a("s_waitcnt lgkmcnt(0)")
        ri = 0
        for i, mm in enumerate(m):
            a(mm)
            if ri < len(r) and i < 30:
                a(r[ri]); ri += 1
        assert ri == len(r)
    ts.stamp(a, 2)
    for nt in range(8):
        a(f"ds_read_b64 {vr(FB[0] + 2 * nt, 2)}, v174 offset:{512 * (7 - nt)}")
    a("s_lshl_b32 s41, s32, 4")
    a("s_lshr_b64 s[38:39], s[38:39], s41")
    a("s_lshl_b32 s38, s38, 16")
    a(f"s_add_u32 s40, s34, 0x{WS_Y2:x}")
    a("s_nop 7")
    a("s_waitcnt lgkmcnt(0)")
    for nt in range(8):
        k0, k1 = FB[0] + 2 * nt, FB[0] + 2 * nt + 1
        t = FB[1] + 4 * nt
        ac = ACC + 4 * nt
        a(f"v_and_b32 v{t}, 0xffff0000, v{k1}")
        a(f"v_lshlrev_b32 v{t + 1}, 16, v{k1}")
        a(f"v_and_b32 v{t + 2}, 0xffff0000, v{k0}")
        a(f"v_lshlrev_b32 v{t + 3}, 16, v{k0}")
        for i in range(4):
            a(f"v_fmac_f32 v{ac + i}, s38, v{t + i}")
        a(f"v_cvt_pk_bf16_f32 v{ac}, v{ac}, v{ac + 1}")
        a(f"v_cvt_pk_bf16_f32 v{ac + 1}, v{ac + 2}, v{ac + 3}")
        a(f"buffer_store_dwordx2 {vr(ac, 2)}, v175, s[8:11], s40 offen offset:{512 * nt}")
    if ts.on:
        a("s_waitcnt vmcnt(0)")
    ts.stamp(a, 3)
    a("s_endpgm")

    a.label("L_k2_attn")
    SB = 8
    KV = [152, 160]
    QC, QN = 168, 176
    OA = 184
    VM, VM2, VT, VL, VL2, VNEG, VKB = 200, 201, 202, 203, 204, 205, 206
    MK = 48
    a("s_sub_u32 s33, s32, 4")
    a("s_and_b32 s34, s2, 7")
    a("s_lshl_b32 s34, s34, 2")
    a("s_bfe_u32 s35, s2, 0x20003")
    a("s_add_u32 s34, s34, s35")
    a("s_lshr_b32 s35, s2, 5")
    a("s_lshl_b32 s40, s34, 6")
    a("s_lshl_b32 s41, s35, 3")
    a("s_add_u32 s40, s40, s41")
    a("s_lshl_b32 s41, s33, 1")
    a("s_add_u32 s42, s40, s41")
    a("s_lshl_b32 s42, s42, 11")
    a("s_lshl_b32 s40, s40, 11")
    a("s_lshl_b32 s41, s33, 13")
    a("s_add_u32 s40, s40, s41")
    a(f"s_add_u32 s43, s40, 0x{WS_KF - 16384:x}")
    a(f"s_add_u32 s44, s40, 0x{WS_VF - 16384:x}")
    a("s_lshr_b32 s45, s33, 1")
    a("s_or_b32 s45, s45, s35")
    a("s_cmp_eq_u32 s45, 0")
    a("s_cselect_b32 s45, 0x80000000, 0")
    a("v_add_u32 v3, s45, v2")
    for qi in range(2):
        for step in range(2):
            a(f"buffer_load_dwordx4 {vr((QC, QN)[qi] + 4 * step, 4)}, v2, s[8:11], s42 offen offset:{qi * 2048 + step * 1024}")
    for half in range(2):
        a(f"s_add_u32 m0, s41, {half * 4096}")
        a("s_nop 0")
        for i in range(4):
            a(f"buffer_load_dwordx4 v3, s[8:11], s43 offen offset:{1024 * i} lds")
        a(f"s_add_u32 m0, s41, {32768 + half * 4096}")
        a("s_nop 0")
        for i in range(4):
            a(f"buffer_load_dwordx4 v3, s[8:11], s44 offen offset:{1024 * i} lds")
        if half == 0:
            a("s_add_u32 s43, s43, 4096")
            a("s_add_u32 s44, s44, 4096")
    a("v_and_b32 v4, 31, v0")
    a("v_lshrrev_b32 v5, 5, v0")
    a("v_lshlrev_b32 v5, 2, v5")
    a("v_sub_u32 v4, v4, v5")
    for r in range(16):
        a(f"v_cmp_le_i32 s[{MK + 2 * r}:{MK + 2 * r + 1}], {8 * (r >> 2) + (r & 3)}, v4")
    a(f"v_mov_b32 v{VNEG}, 0xf149f2ca")
    a("s_lshl_b32 s45, s33, 12")
    a(f"v_add_u32 v{VKB}, s45, v2")
    a("s_lshl_b32 s45, s33, 1")
    a("s_sub_u32 s45, 8, s45")
    a("s_cmp_eq_u32 s35, 0")
    a("s_cselect_b32 s45, s45, 0")
    a("s_cselect_b32 s47, 1, 0")
    a("s_lshl_b32 s46, s35, 3")
    a("s_lshl_b32 s80, s33, 1")
    a("s_add_u32 s46, s46, s80")
    a("s_lshl_b32 s46, s46, 5")
    a("s_add_u32 s46, s46, s34")
    a("s_lshl_b32 s46, s46, 11")
    a(f"s_add_u32 s46, s46, 0x{WS_OF:x}")
    a(f"s_mov_b32 s81, {f32hex(SCALE_LOG2E)}")
    a("s_mov_b32 s82, 0x3f803f80")
    a("s_mov_b32 s83, 0")
    a("s_waitcnt vmcnt(0) lgkmcnt(0)")
    a("s_barrier")
    ts.stamp(a, 1)
    a.label("L_k2_qloop")

    def kvread(rel, buf, isv):
        o = rel * 2048 + (32768 if isv else 0)
        return [f"ds_read_b128 {vr(KV[buf], 4)}, v{VKB} offset:{o}",
                f"ds_read_b128 {vr(KV[buf] + 4, 4)}, v{VKB} offset:{o + 1024}"]

    def maxops(rel):
        s = SB + 16 * rel
        out = []
        if rel == 0:
            for r in range(16):
                out.append(f"v_cndmask_b32 v{s + r}, v{s + r}, v{VNEG}, s[{MK + 2 * r}:{MK + 2 * r + 1}]")
        if rel == 8:
            for r in range(16):
                out.append(f"v_cndmask_b32 v{s + r}, v{VNEG}, v{s + r}, s[{MK + 2 * r}:{MK + 2 * r + 1}]")
        for i in range(8):
            acc = (VM, VM2)[i & 1]
            if rel == 0 and i < 2:
                out.append(f"v_max_f32 v{acc}, v{s + 2 * i}, v{s + 2 * i + 1}")
            else:
                out.append(f"v_max3_f32 v{acc}, v{s + 2 * i}, v{s + 2 * i + 1}, v{acc}")
        return out

    fills = []
    for x in kvread(0, 0, False):
        a(x)
    for rel in range(9):
        buf = rel & 1
        if rel < 8:
            for x in kvread(rel + 1, buf ^ 1, False):
                a(x)
            a("s_waitcnt lgkmcnt(2)")
        else:
            for x in kvread(0, buf ^ 1, True):
                a(x)
            a("s_waitcnt lgkmcnt(2)")
        s = vr(SB + 16 * rel, 16)
        lf, lb = a.newlabel("fill"), a.newlabel("back")
        if rel < 8:
            a(f"s_cmp_gt_u32 s45, {rel}")
            a(f"s_cbranch_scc1 {lf}")
        a(f"v_mfma_f32_32x32x16_bf16 {s}, {vr(KV[buf], 4)}, {vr(QC, 4)}, 0")
        a(f"v_mfma_f32_32x32x16_bf16 {s}, {vr(KV[buf] + 4, 4)}, {vr(QC + 4, 4)}, {s}")
        if rel < 8:
            a.label(lb)
            fills.append((lf, lb, rel))
        if rel >= 2:
            for x in maxops(rel - 2):
                a(x)
    for x in maxops(7):
        a(x)
    a("s_nop 3")
    for x in maxops(8):
        a(x)
    a(f"v_max_f32 v{VM}, v{VM}, v{VM2}")
    a("s_nop 0")
    a(f"v_mov_b32 v{VT}, v{VM}")
    a("s_nop 1")
    a(f"v_permlane32_swap_b32 v{VM}, v{VT}")
    a("s_nop 1")
    a(f"v_max_f32 v{VM}, v{VM}, v{VT}")
    a(f"v_mul_f32 v{VM}, s81, v{VM}")
    a(f"v_mov_b32 v{VL}, 0")
    a(f"v_mov_b32 v{VL2}, 0")
    for rel in range(9):
        buf = (rel + 1) & 1
        s = SB + 16 * rel
        if rel < 8:
            for x in kvread(rel + 1, buf ^ 1, True):
                a(x)
        for r in range(16):
            a(f"v_fma_f32 v{s + r}, v{s + r}, s81, -v{VM}")
        for r in range(16):
            a(f"v_exp_f32 v{s + r}, v{s + r}")
        for j in range(8):
            a(f"v_cvt_pk_bf16_f32 v{s + j}, v{s + 2 * j}, v{s + 2 * j + 1}")
        for j in range(8):
            acc = (VL, VL2)[j & 1]
            a(f"v_dot2_f32_bf16 v{acc}, v{s + j}, s82, v{acc}")
        a(f"s_waitcnt lgkmcnt({2 if rel < 8 else 0})")
        o = vr(OA, 16)
        a(f"v_mfma_f32_32x32x16_bf16 {o}, {vr(KV[buf], 4)}, {vr(s, 4)}, {'0' if rel == 0 else o}")
        a(f"v_mfma_f32_32x32x16_bf16 {o}, {vr(KV[buf] + 4, 4)}, {vr(s + 4, 4)}, {o}")
    a("s_nop 2")
    a(f"v_add_f32 v{VL}, v{VL}, v{VL2}")
    a("s_nop 0")
    a(f"v_mov_b32 v{VT}, v{VL}")
    a("s_nop 1")
    a(f"v_permlane32_swap_b32 v{VL}, v{VT}")
    a("s_nop 1")
    a(f"v_add_f32 v{VL}, v{VL}, v{VT}")
    a(f"v_rcp_f32 v{VL}, v{VL}")
    a("s_nop 7")
    for r in range(16):
        a(f"v_mul_f32 v{OA + r}, v{OA + r}, v{VL}")
    for j in range(8):
        a(f"v_cvt_pk_bf16_f32 v{OA + j}, v{OA + 2 * j}, v{OA + 2 * j + 1}")
    a(f"buffer_store_dwordx4 {vr(OA, 4)}, v2, s[8:11], s46 offen")
    a(f"buffer_store_dwordx4 {vr(OA + 4, 4)}, v2, s[8:11], s46 offen offset:1024")
    a("s_cmp_eq_u32 s83, 1")
    a("s_cbranch_scc1 L_k2_adone")
    a("s_mov_b32 s83, 1")
    for i in range(8):
        a(f"v_mov_b32 v{QC + i}, v{QN + i}")
    a(f"v_add_u32 v{VKB}, 2048, v{VKB}")
    a("s_add_u32 s46, s46, 0x10000")
    a("s_sub_u32 s45, s45, s47")
    a("s_branch L_k2_qloop")
    for (lf, lb, rel) in fills:
        a.label(lf)
        for r in range(16):
            a(f"v_mov_b32 v{SB + 16 * rel + r}, v{VNEG}")
        a(f"s_branch {lb}")
    a.label("L_k2_adone")
    if ts.on:
        a("s_waitcnt vmcnt(0)")
    ts.stamp(a, 3)
    a.label("L_k2_end")
    a("s_endpgm")
    return name, (256 if ts.on else 208), 102


def gen_k3(a, ts):
    name = "k3_kernel"
    kernel_begin(a, name)
    a("s_cmp_ge_u32 s2, 256")
    a("s_cbranch_scc1 L_k3_end")
    a(f"s_load_dwordx2 s[4:5], s[0:1], {KA['ws']}")
    a(f"s_load_dwordx2 s[6:7], s[0:1], {KA['wo']}")
    a(f"s_load_dwordx2 s[36:37], s[0:1], {KA['out']}")
    a(f"s_load_dwordx2 s[38:39], s[0:1], {KA['q']}")
    a("v_lshrrev_b32 v1, 6, v0")
    a("v_and_b32 v0, 63, v0")
    a("s_and_b32 s3, s2, 7")
    a("v_readfirstlane_b32 s32, v1")
    a("s_lshr_b32 s35, s2, 3")
    a("s_and_b32 s33, s3, 3")
    a("s_lshl_b32 s33, s33, 2")
    a("s_and_b32 s44, s35, 3")
    a("s_add_u32 s33, s33, s44")
    a("s_lshr_b32 s34, s3, 2")
    a("s_lshl_b32 s34, s34, 3")
    a("s_lshr_b32 s44, s35, 2")
    a("s_add_u32 s34, s34, s44")
    a("s_waitcnt lgkmcnt(0)")
    srd(a, 8, 4, WS_SIZE)
    srd(a, 12, 6, 2 * MB)
    srd(a, 16, 36, 8 * MB)
    srd(a, 20, 38, 4 * MB)
    ts.setup(a, 2, 4, 32)
    ts.stamp(a, 0)
    a("s_cmp_ge_u32 s32, 4")
    a("s_cbranch_scc1 L_k3_helper")

    AF = 64
    BF = [16, 24]
    ACC = 32
    PF = 16
    a("v_lshlrev_b32 v2, 4, v0")
    a("s_lshl_b32 s44, s33, 2")
    a("s_add_u32 s44, s44, s32")
    a("s_lshl_b32 s45, s44, 16")
    a(f"s_add_u32 s45, s45, 0x{WS_OF:x}")

    def aload(ks):
        out = []
        if ks % 4 == 0 and ks > 0:
            out.append("s_add_u32 s45, s45, 4096")
        out.append(f"buffer_load_dwordx4 {vr(AF + 4 * (ks % PF), 4)}, v2, s[8:11], s45 offen offset:{(ks & 3) * 1024}")
        return out

    for ks in range(PF):
        for x in aload(ks):
            a(x)
    a("v_and_b32 v8, 15, v0")
    a("v_lshrrev_b32 v9, 4, v0")
    a("v_lshrrev_b32 v10, 5, v0")
    a("v_lshrrev_b32 v11, 2, v8")
    a("v_lshl_add_u32 v11, v10, 2, v11")
    a("v_lshlrev_b32 v11, 7, v11")
    a("v_and_b32 v12, 1, v9")
    a("v_lshl_add_u32 v11, v12, 5, v11")
    a("v_and_b32 v12, 3, v8")
    a("v_lshl_add_u32 v11, v12, 3, v11")
    a("v_lshrrev_b32 v12, 3, v8")
    a("v_lshl_add_u32 v4, v12, 6, v11")
    a("v_xor_b32 v12, 1, v12")
    a("v_lshl_add_u32 v5, v12, 6, v11")
    a("v_add_u32 v6, 0x10000, v4")
    a("v_add_u32 v7, 0x10000, v5")

    def breads(ks, buf):
        f = BF[buf]
        hi = ks >= 32
        o = (ks - 32 * hi) * 16 * 128
        out = []
        for ct in range(2):
            va = 4 + ct + 2 * hi
            out.append(f"ds_read_b64_tr_b16 {vr(f + 4 * ct, 2)}, v{va} offset:{o}")
            out.append(f"ds_read_b64_tr_b16 {vr(f + 4 * ct + 2, 2)}, v{va} offset:{o + 1024}")
        return out

    a("s_barrier")
    for x in breads(0, 0):
        a(x)
    for ks in range(64):
        buf = ks & 1
        f = BF[buf]
        nload = min(63, ks + PF - 1) - ks
        a(f"s_waitcnt vmcnt({nload}) lgkmcnt(0)")
        af = vr(AF + 4 * (ks % PF), 4)
        nxt = breads(ks + 1, buf ^ 1) if ks < 63 else []
        d0, d1 = vr(ACC, 16), vr(ACC + 16, 16)
        a(f"v_mfma_f32_32x32x16_bf16 {d0}, {vr(f, 4)}, {af}, {'0' if ks == 0 else d0}")
        if ks % 8 == 7 and ks < 63:
            a("s_barrier")
        for x in nxt:
            a(x)
        a(f"v_mfma_f32_32x32x16_bf16 {d1}, {vr(f + 4, 4)}, {af}, {'0' if ks == 0 else d1}")
        if ks + PF < 64:
            for x in aload(ks + PF):
                a(x)
    ts.stamp(a, 1)
    a("v_and_b32 v8, 31, v0")
    a("s_lshl_b32 s46, s44, 5")
    a("v_add_u32 v8, s46, v8")
    a("v_lshlrev_b32 v8, 12, v8")
    a("v_lshl_add_u32 v8, v10, 4, v8")
    a("s_lshl_b32 s46, s34, 7")
    a("s_add_u32 s46, s46, 2048")
    a("s_nop 7")
    for ct in range(2):
        b = ACC + 16 * ct
        for j in range(8):
            a(f"v_cvt_pk_bf16_f32 v{b + j}, v{b + 2 * j}, v{b + 2 * j + 1}")
        a("s_nop 1")
        for jj in range(2):
            a(f"v_permlane32_swap_b32 v{b + 4 * jj}, v{b + 4 * jj + 2}")
            a(f"v_permlane32_swap_b32 v{b + 4 * jj + 1}, v{b + 4 * jj + 3}")
        for jj in range(2):
            a(f"buffer_store_dwordx4 {vr(b + 4 * jj, 4)}, v8, s[16:19], s46 offen offset:{ct * 64 + jj * 32}")
    if ts.on:
        a("s_waitcnt vmcnt(0)")
    ts.stamp(a, 2)
    a("s_endpgm")

    a.label("L_k3_helper")
    a("s_sub_u32 s44, s32, 4")
    a("v_lshrrev_b32 v12, 3, v0")
    a("v_and_b32 v13, 7, v0")
    a("v_bfe_u32 v14, v0, 4, 1")
    a("v_lshlrev_b32 v14, 2, v14")
    a("v_xor_b32 v14, v14, v13")
    a("v_lshlrev_b32 v2, 11, v12")
    a("v_lshl_add_u32 v2, v14, 4, v2")
    a("s_lshl_b32 s45, s34, 7")
    a("v_add_u32 v2, s45, v2")
    a("s_lshl_b32 s45, s44, 12")
    a("s_lshl_b32 s46, s44, 16")
    for p in range(8):
        a(f"s_add_u32 m0, s45, {p * 16384}")
        for i in range(4):
            a(f"s_add_u32 s47, s46, {p * 16 * 16384 + i * (16384 - 1024)}")
            a(f"buffer_load_dwordx4 v2, s[12:15], s47 offen offset:{1024 * i} lds")
    YY, QQ, OO = 16, 32, 48
    a("s_and_b32 s48, s44, 1")
    a("s_lshl_b32 s49, s33, 1")
    a("s_add_u32 s48, s48, s49")
    a("s_lshl_b32 s48, s48, 6")
    a("s_lshr_b32 s49, s44, 1")
    a("s_lshl_b32 s50, s34, 1")
    a("s_add_u32 s49, s49, s50")
    a("s_lshl_b32 s49, s49, 5")
    a("v_lshlrev_b32 v4, 3, v12")
    a("v_add_u32 v4, s48, v4")
    a("v_lshlrev_b32 v5, 2, v13")
    a("v_add_u32 v5, s49, v5")
    a("v_lshlrev_b32 v6, 12, v5")
    a("v_lshl_add_u32 v6, v4, 1, v6")
    a("v_lshlrev_b32 v7, 11, v4")
    a("v_lshl_add_u32 v7, v5, 1, v7")
    a("v_lshlrev_b32 v8, 12, v4")
    a("v_lshl_add_u32 v8, v5, 1, v8")
    for i in range(8):
        a(f"s_mov_b32 s{52 + i}, {4096 * i}")
    a(f"s_mov_b32 s51, 0x{WS_Y2:x}")
    for dd in range(4):
        a(f"buffer_load_dwordx4 {vr(YY + 4 * dd, 4)}, v6, s[8:11], s51 offen")
        if dd < 3:
            a("s_add_u32 s51, s51, 4096")
    for i in range(8):
        a(f"buffer_load_dwordx2 {vr(QQ + 2 * i, 2)}, v7, s[20:23], s{52 + (i >> 1)} offen offset:{(i & 1) * 2048}")
    for p in range(8):
        a(f"s_waitcnt vmcnt({28 - 4 * p + 12})")
        a("s_barrier")
    ts.stamp(a, 1)
    a("s_waitcnt vmcnt(0)")
    for i in range(8):
        for dd in range(4):
            ys = YY + 4 * dd + (i >> 1)
            qs = QQ + 2 * i + (dd >> 1)
            if i & 1:
                a(f"v_and_b32 v9, 0xffff0000, v{ys}")
            else:
                a(f"v_lshlrev_b32 v9, 16, v{ys}")
            if dd & 1:
                a(f"v_and_b32 v10, 0xffff0000, v{qs}")
            else:
                a(f"v_lshlrev_b32 v10, 16, v{qs}")
            a(f"v_mul_f32 v{OO + 4 * i + dd}, v9, v10")
        o = OO + 4 * i
        a(f"v_cvt_pk_bf16_f32 v{o}, v{o}, v{o + 1}")
        a(f"v_cvt_pk_bf16_f32 v{o + 1}, v{o + 2}, v{o + 3}")
        a(f"buffer_store_dwordx2 {vr(o, 2)}, v8, s[16:19], s{52 + i} offen")
    if ts.on:
        a("s_waitcnt vmcnt(0)")
    ts.stamp(a, 2)
    a.label("L_k3_end")
    a("s_endpgm")
    return name, (256 if ts.on else 128), 102
```

```python
import sys

NAME = "concat_heads__ssm_conv_h3__sliding_block__prompt"
MB = 1 << 20
WS_QF, WS_KF, WS_VF, WS_UR, WS_OF, WS_Y2 = 0, 4 * MB, 8 * MB, 12 * MB, 16 * MB, 20 * MB
WS_SIZE = 24 * MB
WS_TS = 32 * MB

KA = dict(q=0, k=8, v=16, shift=24, ssmk=32, ssmd=40, x=48, wqkv=56, wo=64, out=72, dbg=80, ws=88)


class Asm:
    def __init__(self):
        self.L = []
        self.uid = 0

    def __call__(self, s):
        self.L.append("    " + s)

    def label(self, s):
        self.L.append(s + ":")

    def raw(self, s):
        self.L.append(s)

    def newlabel(self, base):
        self.uid += 1
        return f"L_{base}_{self.uid}"

    def text(self):
        return "\n".join(self.L) + "\n"


def vr(b, n=1):
    return f"v{b}" if n == 1 else f"v[{b}:{b + n - 1}]"


def sr(b, n=1):
    return f"s{b}" if n == 1 else f"s[{b}:{b + n - 1}]"


def srd(a, d, base, size, off=0):
    if off:
        a(f"s_add_u32 s{d}, s{base}, 0x{off:x}")
        a(f"s_addc_u32 s{d + 1}, s{base + 1}, 0")
    else:
        a(f"s_mov_b32 s{d}, s{base}")
        a(f"s_mov_b32 s{d + 1}, s{base + 1}")
    a(f"s_mov_b32 s{d + 2}, 0x{size:x}")
    a(f"s_mov_b32 s{d + 3}, 0x20000")


def kernel_begin(a, name):
    a.raw(f".globl {name}")
    a.raw(".p2align 8")
    a.raw(f".type {name},@function")
    a.label(name)


def kernel_desc(a, name, vgpr, sgpr, accum=None):
    accum = accum or ((vgpr + 3) // 4) * 4
    a.raw(".p2align 6")
    a.raw(f".amdhsa_kernel {name}")
    a.raw(f"  .amdhsa_next_free_vgpr {vgpr}")
    a.raw(f"  .amdhsa_next_free_sgpr {sgpr}")
    a.raw(f"  .amdhsa_accum_offset {accum}")
    a.raw("  .amdhsa_group_segment_fixed_size 0")
    a.raw("  .amdhsa_kernarg_size 96")
    a.raw("  .amdhsa_user_sgpr_count 2")
    a.raw("  .amdhsa_user_sgpr_kernarg_segment_ptr 1")
    a.raw("  .amdhsa_system_sgpr_workgroup_id_x 1")
    a.raw(".end_amdhsa_kernel")


class TS:
    def __init__(self, on):
        self.on = on

    def setup(self, a, kid, ws_pair, wave_s):
        if not self.on:
            return
        srd(a, 92, ws_pair, 1 * MB, WS_TS)
        a(f"s_lshl_b32 s96, s2, 3")
        a(f"s_add_u32 s96, s96, s{wave_s}")
        a(f"s_add_u32 s96, s96, {kid * 2048}")
        a(f"s_lshl_b32 s96, s96, 6")

    def stamp(self, a, slot):
        if not self.on:
            return
        a("s_memrealtime s[90:91]")
        a("s_waitcnt lgkmcnt(0)")
        a("v_mov_b32 v254, s90")
        a("v_mov_b32 v255, s91")
        a("v_mov_b32 v253, 0")
        a(f"buffer_store_dwordx2 v[254:255], v253, s[92:95], s96 offen offset:{slot * 8}")


def gen_k1(a, ts):
    name = "k1_kernel"
    kernel_begin(a, name)
    a("s_cmp_ge_u32 s2, 256")
    a("s_cbranch_scc1 L_k1_end")
    a(f"s_load_dwordx2 s[4:5], s[0:1], {KA['x']}")
    a(f"s_load_dwordx2 s[6:7], s[0:1], {KA['wqkv']}")
    a(f"s_load_dwordx2 s[36:37], s[0:1], {KA['ws']}")
    a(f"s_load_dwordx2 s[38:39], s[0:1], {KA['k']}")
    a(f"s_load_dwordx2 s[40:41], s[0:1], {KA['v']}")
    a(f"s_load_dwordx2 s[42:43], s[0:1], {KA['shift']}")
    a("v_lshrrev_b32 v1, 6, v0")
    a("v_and_b32 v0, 63, v0")
    a("s_and_b32 s3, s2, 7")
    a("v_readfirstlane_b32 s32, v1")
    a("s_lshr_b32 s35, s2, 3")
    a("s_and_b32 s33, s3, 1")
    a("s_lshl_b32 s33, s33, 3")
    a("s_and_b32 s44, s35, 7")
    a("s_add_u32 s33, s33, s44")
    a("s_lshr_b32 s34, s3, 1")
    a("s_lshl_b32 s34, s34, 2")
    a("s_lshr_b32 s44, s35, 3")
    a("s_add_u32 s34, s34, s44")
    a("s_waitcnt lgkmcnt(0)")
    srd(a, 8, 4, 4 * MB)
    srd(a, 12, 6, 6 * MB)
    srd(a, 16, 36, WS_SIZE)
    srd(a, 20, 38, 4 * MB)
    srd(a, 24, 40, 4 * MB)
    srd(a, 28, 42, 8192)
    ts.setup(a, 0, 36, 32)
    ts.stamp(a, 0)
    a("s_cmp_ge_u32 s32, 4")
    a("s_cbranch_scc1 L_k1_loader")

    ACC = 64
    FR = [16, 40]
    XA = 2
    WB = 6
    a("s_and_b32 s44, s32, 1")
    a("s_lshr_b32 s45, s32, 1")
    a("v_and_b32 v8, 31, v0")
    a("v_lshrrev_b32 v9, 5, v0")
    a("v_lshrrev_b32 v10, 1, v8")
    a("v_and_b32 v10, 7, v10")
    a("v_lshlrev_b32 v11, 7, v8")
    a("s_lshl_b32 s46, s44, 13")
    a("v_add_u32 v11, s46, v11")
    for ks in range(4):
        a(f"v_add_u32 v12, {2 * ks}, v9")
        a("v_xor_b32 v12, v12, v10")
        a(f"v_lshl_add_u32 v{XA + ks}, v12, 4, v11")
    a("v_and_b32 v10, 15, v0")
    a("v_lshrrev_b32 v11, 4, v0")
    a("v_lshrrev_b32 v12, 2, v10")
    a("v_lshl_add_u32 v12, v9, 3, v12")
    a("v_mul_u32_u24 v12, 384, v12")
    a("v_lshrrev_b32 v13, 3, v10")
    a("v_xor_b32 v13, s45, v13")
    a("v_lshl_add_u32 v12, v13, 6, v12")
    a("v_and_b32 v13, 1, v11")
    a("v_lshl_add_u32 v12, v13, 5, v12")
    a("v_and_b32 v13, 3, v10")
    a("v_lshl_add_u32 v12, v13, 3, v12")
    a(f"v_add_u32 v{WB}, 0x10000, v12")
    a(f"v_add_u32 v{WB + 1}, 0x1c000, v12")

    def reads(t, ks, buf):
        st = t & 3
        f = FR[buf]
        out = []
        xa = XA + ks
        wb = WB + (st >> 1)
        wo = (st & 1) * 24576 + 16 * ks * 384
        out.append(f"ds_read_b128 {vr(f, 4)}, v{xa} offset:{st * 16384}")
        out.append(f"ds_read_b64_tr_b16 {vr(f + 8, 2)}, v{wb} offset:{wo}")
        out.append(f"ds_read_b64_tr_b16 {vr(f + 10, 2)}, v{wb} offset:{wo + 4 * 384}")
        out.append(f"ds_read_b128 {vr(f + 4, 4)}, v{xa} offset:{st * 16384 + 4096}")
        out.append(f"ds_read_b64_tr_b16 {vr(f + 12, 2)}, v{wb} offset:{wo + 128}")
        out.append(f"ds_read_b64_tr_b16 {vr(f + 14, 2)}, v{wb} offset:{wo + 128 + 4 * 384}")
        out.append(f"ds_read_b64_tr_b16 {vr(f + 16, 2)}, v{wb} offset:{wo + 256}")
        out.append(f"ds_read_b64_tr_b16 {vr(f + 18, 2)}, v{wb} offset:{wo + 256 + 4 * 384}")
        return out

    def mfmas(buf, first):
        f = FR[buf]
        X = [vr(f, 4), vr(f + 4, 4)]
        W = [vr(f + 8, 4), vr(f + 12, 4), vr(f + 16, 4)]
        out = []
        for part in range(3):
            for rt in range(2):
                d = vr(ACC + 16 * (2 * part + rt), 16)
                c = "0" if first else d
                if part < 2:
                    out.append(f"v_mfma_f32_32x32x16_bf16 {d}, {W[part]}, {X[rt]}, {c}")
                else:
                    out.append(f"v_mfma_f32_32x32x16_bf16 {d}, {X[rt]}, {W[part]}, {c}")
        return out

    a("s_barrier")
    for r in reads(0, 0, 0):
        a(r)
    for t in range(16):
        for ks in range(4):
            n = t * 4 + ks
            buf = n & 1
            m = mfmas(buf, n == 0)
            a("s_waitcnt lgkmcnt(0)")
            if ks < 3:
                r = reads(t, ks + 1, buf ^ 1)
                for i in range(6):
                    a(m[i])
                    if i < 4:
                        a(r[2 * i]); a(r[2 * i + 1])
            elif t < 15:
                r = reads(t + 1, 0, buf ^ 1)
                a(m[0]); a(m[1])
                a("s_barrier")
                for i in range(2, 6):
                    a(r[2 * (i - 2)]); a(r[2 * (i - 2) + 1])
                    a(m[i])
            else:
                for i in range(6):
                    a(m[i])
    ts.stamp(a, 1)
    a("s_lshl_b32 s46, s34, 1")
    a("s_add_u32 s46, s46, s45")
    a("s_lshl_b32 s46, s46, 6")
    a("s_lshl_b32 s47, s33, 2")
    a("s_add_u32 s46, s46, s47")
    a("s_lshl_b32 s47, s44, 1")
    a("s_add_u32 s46, s46, s47")
    a("s_lshl_b32 s46, s46, 11")
    a(f"s_add_u32 s47, s46, 0x{WS_KF:x}")
    a(f"s_add_u32 s48, s46, 0x{WS_VF:x}")
    a("v_lshlrev_b32 v8, 4, v0")
    a("s_nop 7")
    for part in range(3):
        for rt in range(2):
            b = ACC + 16 * (2 * part + rt)
            for j in range(8):
                a(f"v_cvt_pk_bf16_f32 v{b + j}, v{b + 2 * j}, v{b + 2 * j + 1}")
            for step in range(2):
                a(f"buffer_store_dwordx4 {vr(b + 4 * step, 4)}, v8, s[16:19], s{46 + part} offen offset:{rt * 2048 + step * 1024}")
    if ts.on:
        a("s_waitcnt vmcnt(0)")
    ts.stamp(a, 2)
    a("s_endpgm")

    a.label("L_k1_loader")
    a("s_sub_u32 s44, s32, 4")
    XO = 2
    WO = 6
    a("v_lshrrev_b32 v12, 3, v0")
    a("v_and_b32 v13, 7, v0")
    a("s_lshl_b32 s45, s33, 7")
    a("s_lshl_b32 s46, s44, 5")
    a("s_add_u32 s45, s45, s46")
    for i in range(4):
        a("v_lshrrev_b32 v14, 4, v0")
        a(f"v_add_u32 v14, {4 * i}, v14")
        a("v_and_b32 v14, 7, v14")
        a("v_xor_b32 v14, v14, v13")
        a(f"v_add_u32 v15, {8 * i}, v12")
        a("v_add_u32 v15, s45, v15")
        a("v_lshlrev_b32 v15, 11, v15")
        a("v_lshl_add_u32 v15, v14, 4, v15")
        if i:
            a(f"v_subrev_u32 v15, {1024 * i}, v15")
        a(f"v_mov_b32 v{XO + i}, v15")
    a("s_mul_i32 s45, s44, 384")
    a("s_lshl_b32 s46, s34, 7")
    for i in range(6):
        a(f"v_add_u32 v14, {64 * i}, v0")
        a("v_add_u32 v14, s45, v14")
        a("v_mul_u32_u24 v15, 2731, v14")
        a("v_lshrrev_b32 v15, 16, v15")
        a("v_mul_u32_u24 v16, 24, v15")
        a("v_sub_u32 v16, v14, v16")
        a("v_lshrrev_b32 v17, 2, v16")
        a("v_and_b32 v16, 3, v16")
        a("v_bfe_u32 v18, v15, 1, 1")
        a("v_xor_b32 v17, v17, v18")
        a("v_lshrrev_b32 v18, 1, v17")
        a("v_and_b32 v17, 1, v17")
        a("v_mul_u32_u24 v15, 6144, v15")
        a("v_lshl_add_u32 v15, v18, 11, v15")
        a("v_lshl_add_u32 v15, v17, 6, v15")
        a("v_lshl_add_u32 v15, v16, 4, v15")
        a("v_add_u32 v15, s46, v15")
        il = i if i < 4 else i - 4
        if il:
            a(f"v_subrev_u32 v15, {1024 * il}, v15")
        a(f"v_mov_b32 v{WO + i}, v15")
    a("s_lshl_b32 s45, s44, 12")
    a("s_mul_i32 s46, s44, 6144")
    a("s_add_u32 s46, s46, 0x10000")

    def issue(t):
        st = t & 3
        a(f"s_add_u32 m0, s45, {st * 16384}")
        a(f"s_mov_b32 s47, {t * 128}")
        for i in range(4):
            a(f"buffer_load_dwordx4 v{XO + i}, s[8:11], s47 offen offset:{1024 * i} lds")
        a(f"s_add_u32 m0, s46, {st * 24576}")
        a(f"s_mov_b32 s47, {t * 393216}")
        for i in range(4):
            a(f"buffer_load_dwordx4 v{WO + i}, s[12:15], s47 offen offset:{1024 * i} lds")
        a(f"s_add_u32 m0, s46, {st * 24576 + 4096}")
        a("s_nop 0")
        for i in range(4, 6):
            a(f"buffer_load_dwordx4 v{WO + i}, s[12:15], s47 offen offset:{1024 * (i - 4)} lds")

    KK, VV, WR = 32, 56, 72
    KF_, WF_, RS_ = 80, 124, 140
    a("s_and_b32 s48, s44, 1")
    a("s_lshl_b32 s49, s33, 1")
    a("s_add_u32 s48, s48, s49")
    a("s_lshl_b32 s48, s48, 6")
    a("s_lshr_b32 s49, s44, 1")
    a("s_lshl_b32 s50, s34, 1")
    a("s_add_u32 s49, s49, s50")
    a("s_lshl_b32 s49, s49, 5")
    a("v_lshlrev_b32 v20, 3, v12")
    a("v_add_u32 v20, s48, v20")
    a("v_lshlrev_b32 v21, 2, v13")
    a("v_add_u32 v21, s49, v21")
    a("v_lshlrev_b32 v22, 11, v20")
    a("v_lshl_add_u32 v22, v21, 1, v22")
    a("v_subrev_u32 v23, 6144, v22")
    a("v_mov_b32 v24, 0x80000000")
    a("v_cmp_gt_u32 vcc, 3, v20")
    a("s_mov_b32 s51, 4096")
    a("s_mov_b32 s52, 8192")
    a("v_cndmask_b32 v23, v23, v24, vcc")
    a("s_mov_b32 s53, 12288")
    a("v_lshlrev_b32 v24, 3, v21")
    a("v_lshlrev_b32 v25, 12, v21")
    a("v_sub_u32 v26, 2040, v20")
    a("v_lshl_add_u32 v25, v26, 1, v25")
    soffs = ["0", "s51", "s52", "s53"]

    def p1_loads():
        a(f"buffer_load_dwordx4 {vr(WR, 4)}, v24, s[28:31], 0 offen")
        a(f"buffer_load_dwordx4 {vr(WR + 4, 4)}, v24, s[28:31], 0 offen offset:16")
        for i in range(3):
            a(f"buffer_load_dwordx2 {vr(KK + 2 * i, 2)}, v23, s[20:23], {soffs[i >> 1]} offen offset:{(i & 1) * 2048}")
        for i in range(8):
            a(f"buffer_load_dwordx2 {vr(KK + 6 + 2 * i, 2)}, v22, s[20:23], {soffs[i >> 1]} offen offset:{(i & 1) * 2048}")
        for i in range(8):
            a(f"buffer_load_dwordx2 {vr(VV + 2 * i, 2)}, v22, s[24:27], {soffs[i >> 1]} offen offset:{(i & 1) * 2048}")
        return 21

    for t in range(4):
        issue(t)
    a("s_waitcnt vmcnt(30)")
    a("s_barrier")
    extra = 0
    for b in range(1, 16):
        later = min(15, b + 2) - b
        a(f"s_waitcnt vmcnt({10 * later + extra})")
        a("s_barrier")
        if b + 3 <= 15:
            issue(b + 3)
        if b == 12:
            extra = p1_loads()
    ts.stamp(a, 1)
    a("s_waitcnt vmcnt(0)")
    for i in range(11):
        for h2 in range(2):
            src = KK + 2 * i + h2
            a(f"v_lshlrev_b32 v{KF_ + 4 * i + 2 * h2}, 16, v{src}")
            a(f"v_and_b32 v{KF_ + 4 * i + 2 * h2 + 1}, 0xffff0000, v{src}")
    for dd in range(4):
        for h2 in range(2):
            src = WR + 2 * dd + h2
            a(f"v_lshlrev_b32 v{WF_ + 4 * dd + 2 * h2}, 16, v{src}")
            a(f"v_and_b32 v{WF_ + 4 * dd + 2 * h2 + 1}, 0xffff0000, v{src}")
    for s in range(8):
        for dd in range(4):
            r = RS_ + 4 * s + dd
            a(f"v_mul_f32 v{r}, v{KF_ + 4 * (s + 3) + dd}, v{WF_ + 4 * dd}")
            for j in range(1, 4):
                a(f"v_fmac_f32 v{r}, v{KF_ + 4 * (s + 3 - j) + dd}, v{WF_ + 4 * dd + j}")
            src = VV + 2 * s + (dd >> 1)
            if dd & 1:
                a(f"v_and_b32 v28, 0xffff0000, v{src}")
            else:
                a(f"v_lshlrev_b32 v28, 16, v{src}")
            a(f"v_mul_f32 v{r}, v{r}, v28")
    a(f"s_mov_b32 s54, 0x{WS_UR:x}")
    for dd in range(4):
        o = KK + 4 * dd
        for j in range(4):
            a(f"v_cvt_pk_bf16_f32 v{o + j}, v{RS_ + 4 * (7 - 2 * j) + dd}, v{RS_ + 4 * (6 - 2 * j) + dd}")
        a(f"buffer_store_dwordx4 {vr(o, 4)}, v25, s[16:19], s54 offen")
        if dd < 3:
            a("s_add_u32 s54, s54, 4096")
    if ts.on:
        a("s_waitcnt vmcnt(0)")
    ts.stamp(a, 2)
    a.label("L_k1_end")
    a("s_endpgm")
    return name, (256 if ts.on else 176), 102


def build(instrument=False, kernels=("k1", "k2", "k3")):
    ts = TS(instrument)
    a = Asm()
    launches = {
        "k1": "; @launch kernel=k1_kernel grid=(256,1,1) block=(512,1,1) lds=163840",
        "k2": "; @launch kernel=k2_kernel grid=(256,1,1) block=(512,1,1) lds=150528",
        "k3": "; @launch kernel=k3_kernel grid=(256,1,1) block=(512,1,1) lds=131072",
    }
    for k in kernels:
        a.raw(launches[k])
    a.raw('.amdgcn_target "amdgcn-amd-amdhsa--gfx950"')
    a.raw(".text")
    descs = []
    gens = {"k1": gen_k1}
    try:
        import gen23
        gens.update({"k2": gen23.gen_k2, "k3": gen23.gen_k3})
    except ImportError:
        pass
    for k in kernels:
        descs.append(gens[k](a, ts))
    a.raw('.section .rodata,"a"')
    for (n, v, s) in descs:
        kernel_desc(a, n, v, s)
    return a.text()


if __name__ == "__main__":
    out = sys.argv[1] if len(sys.argv) > 1 else f"cdna_kernels/{NAME}.s"
    open(out, "w").write(build())
```

```python
import sys

NAME = "concat_heads__ssm_conv_h3__sliding_block__prompt"
MB = 1 << 20
WS_QF, WS_KF, WS_VF, WS_UR, WS_OF, WS_Y2 = 0, 4 * MB, 8 * MB, 12 * MB, 16 * MB, 20 * MB
WS_SIZE = 24 * MB
WS_TS = 32 * MB

KA = dict(q=0, k=8, v=16, shift=24, ssmk=32, ssmd=40, x=48, wqkv=56, wo=64, out=72, dbg=80, ws=88)


OPT = set()


class Asm:
    def __init__(self):
        self.L = []
        self.uid = 0

    def __call__(self, s):
        self.L.append(s if s.endswith(":") else "    " + s)

    def label(self, s):
        self.L.append(s + ":")

    def raw(self, s):
        self.L.append(s)

    def newlabel(self, base):
        self.uid += 1
        return f"L_{base}_{self.uid}"

    def text(self):
        return "\n".join(self.L) + "\n"


def vr(b, n=1):
    return f"v{b}" if n == 1 else f"v[{b}:{b + n - 1}]"


def sr(b, n=1):
    return f"s{b}" if n == 1 else f"s[{b}:{b + n - 1}]"


def srd(a, d, base, size, off=0):
    if off:
        a(f"s_add_u32 s{d}, s{base}, 0x{off:x}")
        a(f"s_addc_u32 s{d + 1}, s{base + 1}, 0")
    else:
        a(f"s_mov_b32 s{d}, s{base}")
        a(f"s_mov_b32 s{d + 1}, s{base + 1}")
    a(f"s_mov_b32 s{d + 2}, 0x{size:x}")
    a(f"s_mov_b32 s{d + 3}, 0x20000")


def kernel_begin(a, name):
    a.raw(f".globl {name}")
    a.raw(".p2align 8")
    a.raw(f".type {name},@function")
    a.label(name)


def kernel_desc(a, name, vgpr, sgpr, accum=None):
    accum = accum or ((vgpr + 3) // 4) * 4
    a.raw(".p2align 6")
    a.raw(f".amdhsa_kernel {name}")
    a.raw(f"  .amdhsa_next_free_vgpr {vgpr}")
    a.raw(f"  .amdhsa_next_free_sgpr {sgpr}")
    a.raw(f"  .amdhsa_accum_offset {accum}")
    a.raw("  .amdhsa_group_segment_fixed_size 0")
    a.raw("  .amdhsa_kernarg_size 96")
    a.raw("  .amdhsa_user_sgpr_count 2")
    a.raw("  .amdhsa_user_sgpr_kernarg_segment_ptr 1")
    a.raw("  .amdhsa_system_sgpr_workgroup_id_x 1")
    a.raw(".end_amdhsa_kernel")


class TS:
    def __init__(self, on):
        self.on = on
        self.pool = []
        self.used = {}

    def entry(self, a):
        if not self.on:
            return
        a("s_memrealtime s[98:99]")
        a("s_memtime s[100:101]")

    def setup(self, a, kid, ws_pair, wave_s):
        if not self.on:
            return
        srd(a, 92, ws_pair, 4 * MB, WS_TS)
        a(f"s_lshl_b32 s96, s2, 4")
        a(f"s_add_u32 s96, s96, s{wave_s}")
        a(f"s_add_u32 s96, s96, {kid * 4096}")
        a(f"s_lshl_b32 s96, s96, 8")
        a("s_memrealtime s[90:91]")

    def path(self, pool):
        self.pool = list(pool)
        self.used = {30: 98, 0: 90}

    def stamp(self, a, slot):
        if not self.on or slot == 0:
            return
        p = self.pool.pop(0)
        self.used[slot] = p
        a(f"s_memrealtime s[{p}:{p + 1}]")

    def final(self, a, slot):
        if not self.on:
            return
        a("s_waitcnt vmcnt(0)")
        self.stamp(a, slot)
        p = self.pool.pop(0)
        a(f"s_memtime s[{p}:{p + 1}]")
        a("s_waitcnt lgkmcnt(0)")
        a(f"s_sub_u32 s{p}, s{p}, s100")
        a(f"s_subb_u32 s{p + 1}, s{p + 1}, s101")
        self.used[31] = p
        a("v_mov_b32 v0, 0")
        for sl, p in self.used.items():
            a(f"v_mov_b32 v2, s{p}")
            a(f"v_mov_b32 v3, s{p + 1}")
            a(f"buffer_store_dwordx2 v[2:3], v0, s[92:95], s96 offen offset:{sl * 8}")
            a("s_nop 1")


def p1_lists(wave_s, xcd_s, j_s):
    KK, VV, WR = 32, 56, 72
    KF_, WF_, RS_ = 80, 124, 140
    soffs = ["0", "s51", "s52", "s53"]
    setup, loads, comp, stores = [], [], [], []
    if True:
        a = setup.append
        a("v_lshrrev_b32 v12, 3, v0")
        a("v_and_b32 v13, 7, v0")
        a(f"s_lshl_b32 s48, s{j_s}, 6")
        a(f"s_lshl_b32 s49, s{xcd_s}, 2")
        a(f"s_add_u32 s49, s49, s{wave_s}")
        a("s_lshl_b32 s49, s49, 5")
        a("v_lshlrev_b32 v20, 3, v12")
        a("v_add_u32 v20, s48, v20")
        a("v_lshlrev_b32 v21, 2, v13")
        a("v_add_u32 v21, s49, v21")
        a("v_lshlrev_b32 v22, 11, v20")
        a("v_lshl_add_u32 v22, v21, 1, v22")
        a("s_mov_b32 s51, 4096")
        a("s_mov_b32 s52, 8192")
        a("s_mov_b32 s53, 12288")
        for i in range(8):
            loads.append(f"buffer_load_dwordx2 {vr(KK + 6 + 2 * i, 2)}, v22, s[20:23], {soffs[i >> 1]} offen offset:{(i & 1) * 2048}")
        for i in range(8):
            loads.append(f"buffer_load_dwordx2 {vr(VV + 2 * i, 2)}, v22, s[24:27], {soffs[i >> 1]} offen offset:{(i & 1) * 2048}")
        a("v_subrev_u32 v23, 6144, v22")
        a("v_mov_b32 v24, 0x80000000")
        a("v_cmp_gt_u32 vcc, 3, v20")
        a("v_lshlrev_b32 v25, 12, v21")
        a("v_sub_u32 v26, 2040, v20")
        a("v_cndmask_b32 v23, v23, v24, vcc")
        a("v_lshlrev_b32 v24, 3, v21")
        a("v_lshl_add_u32 v25, v26, 1, v25")
        for i in range(3):
            loads.append(f"buffer_load_dwordx2 {vr(KK + 2 * i, 2)}, v23, s[20:23], {soffs[i >> 1]} offen offset:{(i & 1) * 2048}")
        loads.append(f"buffer_load_dwordx4 {vr(WR, 4)}, v24, s[28:31], 0 offen")
        loads.append(f"buffer_load_dwordx4 {vr(WR + 4, 4)}, v24, s[28:31], 0 offen offset:16")
    a = comp.append
    for i in range(11):
        for h2 in range(2):
            src = KK + 2 * i + h2
            a(f"v_lshlrev_b32 v{KF_ + 4 * i + 2 * h2}, 16, v{src}")
            a(f"v_and_b32 v{KF_ + 4 * i + 2 * h2 + 1}, 0xffff0000, v{src}")
    for dd in range(4):
        for h2 in range(2):
            src = WR + 2 * dd + h2
            a(f"v_lshlrev_b32 v{WF_ + 4 * dd + 2 * h2}, 16, v{src}")
            a(f"v_and_b32 v{WF_ + 4 * dd + 2 * h2 + 1}, 0xffff0000, v{src}")
    for s_ in range(8):
        for dd in range(4):
            r = RS_ + 4 * s_ + dd
            a(f"v_mul_f32 v{r}, v{KF_ + 4 * (s_ + 3) + dd}, v{WF_ + 4 * dd}")
            for j in range(1, 4):
                a(f"v_fmac_f32 v{r}, v{KF_ + 4 * (s_ + 3 - j) + dd}, v{WF_ + 4 * dd + j}")
            src = VV + 2 * s_ + (dd >> 1)
            if dd & 1:
                a(f"v_and_b32 v28, 0xffff0000, v{src}")
            else:
                a(f"v_lshlrev_b32 v28, 16, v{src}")
            a(f"v_mul_f32 v{r}, v{r}, v28")
    stores.append(f"s_mov_b32 s54, 0x{WS_UR:x}")
    for dd in range(4):
        o = KK + 4 * dd
        for j in range(4):
            a(f"v_cvt_pk_bf16_f32 v{o + j}, v{RS_ + 4 * (7 - 2 * j) + dd}, v{RS_ + 4 * (6 - 2 * j) + dd}")
        stores.append(f"buffer_store_dwordx4 {vr(o, 4)}, v25, s[16:19], s54 offen")
        if dd < 3:
            stores.append("s_add_u32 s54, s54, 4096")
    return setup, loads, comp, stores


def gen_k1(a, ts):
    name = "k1_kernel"
    kernel_begin(a, name)
    ts.entry(a)
    a("s_cmp_ge_u32 s2, 256")
    a("s_cbranch_scc1 L_k1_end")
    a(f"s_load_dwordx2 s[4:5], s[0:1], {KA['x']}")
    a(f"s_load_dwordx2 s[6:7], s[0:1], {KA['wqkv']}")
    a(f"s_load_dwordx2 s[36:37], s[0:1], {KA['ws']}")
    a(f"s_load_dwordx2 s[38:39], s[0:1], {KA['k']}")
    a(f"s_load_dwordx2 s[40:41], s[0:1], {KA['v']}")
    a(f"s_load_dwordx2 s[42:43], s[0:1], {KA['shift']}")
    a("v_lshrrev_b32 v1, 6, v0")
    a("v_and_b32 v0, 63, v0")
    a("s_and_b32 s3, s2, 7")
    a("v_readfirstlane_b32 s32, v1")
    a("s_lshr_b32 s35, s2, 3")
    a("s_and_b32 s33, s3, 1")
    a("s_lshl_b32 s33, s33, 3")
    a("s_and_b32 s44, s35, 7")
    a("s_add_u32 s33, s33, s44")
    a("s_lshr_b32 s34, s3, 1")
    a("s_lshl_b32 s34, s34, 2")
    a("s_lshr_b32 s44, s35, 3")
    a("s_add_u32 s34, s34, s44")
    a("s_waitcnt lgkmcnt(0)")
    srd(a, 8, 4, 4 * MB)
    srd(a, 12, 6, 6 * MB)
    srd(a, 16, 36, WS_SIZE)
    srd(a, 20, 38, 4 * MB)
    srd(a, 24, 40, 4 * MB)
    srd(a, 28, 42, 8192)
    ts.setup(a, 0, 36, 32)
    ts.stamp(a, 0)
    a("s_cmp_ge_u32 s32, 4")
    a("s_cbranch_scc1 L_k1_loader")

    ts.path(range(58, 90, 2))
    ACC = 80
    FR = [16, 36, 56]
    XA = 2
    WB = 6
    TD = 4
    for o in OPT:
        if o.startswith("td"):
            TD = int(o[2:])
    a("v_and_b32 v8, 15, v0")
    a("v_lshrrev_b32 v9, 4, v0")
    a("s_lshl_b32 s46, s35, 5")
    a("s_lshl_b32 s47, s32, 3")
    a("s_add_u32 s46, s46, s47")
    a("s_and_b32 s47, s3, 1")
    a("s_lshl_b32 s47, s47, 10")
    a("s_add_u32 s46, s46, s47")
    a("v_add_u32 v10, s46, v8")
    a("v_lshlrev_b32 v10, 11, v10")
    a("v_lshl_add_u32 v10, v9, 7, v10")
    a("v_mov_b32 v12, 0x80000000")
    a("v_cmp_gt_u32 vcc, 8, v8")
    a("s_mul_i32 s46, s35, 24")
    a("s_mul_i32 s47, s32, 6")
    a("v_cndmask_b32 v176, v12, v10, vcc")
    a("s_add_u32 s46, s46, s47")
    a("v_add_u32 v10, s46, v8")
    a("v_mul_u32_u24 v11, 5462, v10")
    a("v_lshrrev_b32 v11, 16, v11")
    a("v_mul_u32_u24 v13, 12, v11")
    a("v_sub_u32 v10, v10, v13")
    a("v_lshl_add_u32 v11, v9, 6, v11")
    a("v_mul_u32_u24 v11, 6144, v11")
    a("v_lshrrev_b32 v13, 2, v10")
    a("v_lshl_add_u32 v11, v13, 11, v11")
    a("v_and_b32 v10, 3, v10")
    a("v_lshl_add_u32 v11, v10, 7, v11")
    a("s_lshr_b32 s47, s3, 1")
    a("s_lshl_b32 s47, s47, 9")
    a("v_add_u32 v11, s47, v11")
    a("v_cmp_gt_u32 vcc, 6, v8")
    a("s_nop 1")
    a("v_cndmask_b32 v177, v12, v11, vcc")

    def touch4(t0):
        if "notouch" in OPT or t0 >= 16:
            return []
        return [f"s_mov_b32 s46, {t0 * 128}",
                f"s_mov_b32 s47, {t0 * 393216}",
                f"buffer_load_dword v178, v176, s[8:11], s46 offen",
                f"buffer_load_dword v179, v177, s[12:15], s47 offen"]

    sched = {}
    first = 2
    for x in touch4(first):
        a(x)
    t0 = first + 4
    while t0 < 16:
        sched[max(0, t0 - TD)] = sched.get(max(0, t0 - TD), []) + touch4(t0)
        t0 += 4
    a("s_and_b32 s44, s32, 1")
    a("s_lshr_b32 s45, s32, 1")
    a("v_and_b32 v8, 31, v0")
    a("v_lshrrev_b32 v9, 5, v0")
    a("v_lshrrev_b32 v10, 1, v8")
    a("v_and_b32 v10, 7, v10")
    a("v_lshlrev_b32 v11, 7, v8")
    a("s_lshl_b32 s46, s44, 13")
    a("v_add_u32 v11, s46, v11")
    for ks in range(4):
        a(f"v_add_u32 v12, {2 * ks}, v9")
        a("v_xor_b32 v12, v12, v10")
        a(f"v_lshl_add_u32 v{XA + ks}, v12, 4, v11")
    a("v_and_b32 v10, 15, v0")
    a("v_lshrrev_b32 v11, 4, v0")
    a("v_lshrrev_b32 v12, 2, v10")
    a("v_lshl_add_u32 v12, v9, 3, v12")
    a("v_mul_u32_u24 v12, 384, v12")
    a("v_lshrrev_b32 v13, 3, v10")
    a("v_xor_b32 v13, s45, v13")
    a("v_lshl_add_u32 v12, v13, 6, v12")
    a("v_and_b32 v13, 1, v11")
    a("v_lshl_add_u32 v12, v13, 5, v12")
    a("v_and_b32 v13, 3, v10")
    a("v_lshl_add_u32 v12, v13, 3, v12")
    a(f"v_add_u32 v{WB}, 0x10000, v12")
    a(f"v_add_u32 v{WB + 1}, 0x1c000, v12")

    def reads(t, ks, buf):
        st = t & 3
        f = FR[buf]
        out = []
        xa = XA + ks
        wb = WB + (st >> 1)
        wo = (st & 1) * 24576 + 16 * ks * 384
        out.append(f"ds_read_b128 {vr(f, 4)}, v{xa} offset:{st * 16384}")
        out.append(f"ds_read_b64_tr_b16 {vr(f + 8, 2)}, v{wb} offset:{wo}")
        out.append(f"ds_read_b64_tr_b16 {vr(f + 10, 2)}, v{wb} offset:{wo + 4 * 384}")
        out.append(f"ds_read_b128 {vr(f + 4, 4)}, v{xa} offset:{st * 16384 + 4096}")
        out.append(f"ds_read_b64_tr_b16 {vr(f + 12, 2)}, v{wb} offset:{wo + 128}")
        out.append(f"ds_read_b64_tr_b16 {vr(f + 14, 2)}, v{wb} offset:{wo + 128 + 4 * 384}")
        out.append(f"ds_read_b64_tr_b16 {vr(f + 16, 2)}, v{wb} offset:{wo + 256}")
        out.append(f"ds_read_b64_tr_b16 {vr(f + 18, 2)}, v{wb} offset:{wo + 256 + 4 * 384}")
        return out

    def mfmas(buf, first):
        f = FR[buf]
        X = [vr(f, 4), vr(f + 4, 4)]
        W = [vr(f + 8, 4), vr(f + 12, 4), vr(f + 16, 4)]
        out = []
        for part in range(3):
            for rt in range(2):
                d = vr(ACC + 16 * (2 * part + rt), 16)
                c = "0" if first else d
                if part < 2:
                    out.append(f"v_mfma_f32_32x32x16_bf16 {d}, {W[part]}, {X[rt]}, {c}")
                else:
                    out.append(f"v_mfma_f32_32x32x16_bf16 {d}, {X[rt]}, {W[part]}, {c}")
        return out

    a("s_barrier")
    for r in reads(0, 0, 0):
        a(r)
    for r in reads(0, 1, 1):
        a(r)
    for n in range(64):
        t, ks = n >> 2, n & 3
        buf = n % 3
        m = mfmas(buf, n == 0)
        n2 = n + 2
        r = reads(n2 >> 2, n2 & 3, n2 % 3) if n2 < 64 else []
        if "nomfma" in OPT:
            m = ["s_nop 0"] * 6
        if "noreads" in OPT:
            r = []
        if "notr" in OPT:
            r = [x.replace("ds_read_b64_tr_b16", "ds_read_b64") for x in r]
        tch = sched.get(t, []) if ks == 0 else []
        if ks == 2 and t < 15:
            a("s_waitcnt lgkmcnt(0)")
            a(m[0])
            a("s_barrier")
            rest = m[1:]
        else:
            a(f"s_waitcnt lgkmcnt({8 if n < 63 else 0})")
            a(m[0])
            rest = m[1:]
        ri = 0
        for i, mm in enumerate(rest):
            for _ in range(2):
                if ri < len(r):
                    a(r[ri]); ri += 1
            if i == 4:
                for x in tch:
                    a(x)
            a(mm)
        assert ri == len(r)
    ts.stamp(a, 1)
    a("s_lshl_b32 s46, s34, 1")
    a("s_add_u32 s46, s46, s45")
    a("s_lshl_b32 s46, s46, 6")
    a("s_lshl_b32 s47, s33, 2")
    a("s_add_u32 s46, s46, s47")
    a("s_lshl_b32 s47, s44, 1")
    a("s_add_u32 s46, s46, s47")
    a("s_lshl_b32 s46, s46, 11")
    a(f"s_add_u32 s47, s46, 0x{WS_KF:x}")
    a(f"s_add_u32 s48, s46, 0x{WS_VF:x}")
    a("v_lshlrev_b32 v8, 4, v0")
    a("s_nop 7")
    for part in range(3):
        for rt in range(2):
            b = ACC + 16 * (2 * part + rt)
            for j in range(8):
                a(f"v_cvt_pk_bf16_f32 v{b + j}, v{b + 2 * j}, v{b + 2 * j + 1}")
            for step in range(2):
                a(f"buffer_store_dwordx4 {vr(b + 4 * step, 4)}, v8, s[16:19], s{46 + part} offen offset:{rt * 2048 + step * 1024}")
    if ts.on:
        a("s_waitcnt vmcnt(0)")
    ts.final(a, 2)
    a("s_endpgm")

    a.label("L_k1_loader")
    ts.path(range(58, 90, 2))
    a("s_setprio 3")
    a("s_sub_u32 s44, s32, 4")
    XO = 2
    WO = 6
    a("v_lshrrev_b32 v12, 3, v0")
    a("v_and_b32 v13, 7, v0")
    a("s_lshl_b32 s45, s33, 7")
    a("s_lshl_b32 s46, s44, 5")
    a("s_add_u32 s45, s45, s46")
    a("v_lshrrev_b32 v14, 4, v0")
    a("v_xor_b32 v14, v14, v13")
    a("v_add_u32 v15, s45, v12")
    a("v_lshlrev_b32 v15, 11, v15")
    a(f"v_lshl_add_u32 v{XO}, v14, 4, v15")
    a(f"v_xor_b32 v{XO + 1}, 64, v{XO}")
    a(f"v_add_u32 v{XO + 1}, {16384 - 1024}, v{XO + 1}")
    a(f"v_add_u32 v{XO + 2}, {2 * (16384 - 1024)}, v{XO}")
    a(f"v_add_u32 v{XO + 3}, {2 * (16384 - 1024)}, v{XO + 1}")
    a("s_lshl_b32 s45, s44, 12")

    def issue_x(t):
        st = t & 3
        if "nodma" in OPT:
            return
        a(f"s_add_u32 m0, s45, {st * 16384}")
        a(f"s_mov_b32 s47, {t * 128}")
        for i in range(4):
            a(f"buffer_load_dwordx4 v{XO + i}, s[8:11], s47 offen offset:{1024 * i} lds")

    def issue_w(t):
        st = t & 3
        if "nodma" in OPT:
            return
        a(f"s_add_u32 m0, s46, {st * 24576}")
        a(f"s_mov_b32 s47, {t * 393216}")
        for i in range(4):
            a(f"buffer_load_dwordx4 v{WO + i}, s[12:15], s47 offen offset:{1024 * i} lds")
        a(f"s_add_u32 m0, s46, {st * 24576 + 4096}")
        a("s_nop 0")
        for i in range(4, 6):
            a(f"buffer_load_dwordx4 v{WO + i}, s[12:15], s47 offen offset:{1024 * (i - 4)} lds")

    def issue(t):
        issue_x(t)
        issue_w(t)

    ts.stamp(a, 3)
    issue_x(0)
    a("s_mul_i32 s48, s44, 98304")
    a("s_lshl_b32 s46, s34, 7")
    a("s_add_u32 s48, s48, s46")
    for i in range(6):
        if i:
            a(f"v_add_u32 v14, {64 * i}, v0")
        src = "v14" if i else "v0"
        a(f"v_mul_u32_u24 v15, 2731, {src}")
        a("v_lshrrev_b32 v15, 16, v15")
        a("v_mul_u32_u24 v16, 24, v15")
        a(f"v_sub_u32 v16, {src}, v16")
        a("v_bfe_u32 v18, v15, 1, 1")
        a("v_lshlrev_b32 v18, 2, v18")
        a("v_xor_b32 v16, v16, v18")
        a("v_lshrrev_b32 v18, 3, v16")
        a("v_and_b32 v16, 7, v16")
        a("v_mul_u32_u24 v15, 6144, v15")
        a("v_lshl_add_u32 v15, v18, 11, v15")
        a("v_lshl_add_u32 v15, v16, 4, v15")
        il = i if i < 4 else i - 4
        if il:
            a(f"s_sub_u32 s49, s48, {1024 * il}")
            a(f"v_add_u32 v{WO + i}, s49, v15")
        else:
            a(f"v_add_u32 v{WO + i}, s48, v15")
    a("s_mul_i32 s46, s44, 6144")
    a("s_add_u32 s46, s46, 0x10000")
    issue_w(0)
    ts.stamp(a, 4)
    issue(1)

    p_setup, p_loads, p_comp, p_stores = p1_lists(44, 3, 35)
    for x in p_setup:
        a(x)
    order = ["T0", "T1"]

    def wait_tile(b):
        last = max(i for i, x in enumerate(order) if x == f"T{b}")
        n = sum(10 if x.startswith("T") else 1 for x in order[last + 1:])
        a(f"s_waitcnt vmcnt({n})")

    wait_tile(0)
    ts.stamp(a, 7)
    a("s_barrier")
    ts.stamp(a, 8)
    issue(2); order.append("T2")
    issue(3); order.append("T3")
    ts.stamp(a, 5)
    PL0, PLN = 1, 3
    for o in OPT:
        if o.startswith("pl"):
            PL0, PLN = int(o[2]), int(o[3:])
    pl = list(p_loads)
    pc = list(p_comp)
    last_pl_b = PL0 + (len(p_loads) + PLN - 1) // PLN - 1
    PC0 = last_pl_b + 4
    nsl = max(1, 15 - PC0)
    per = (len(pc) + nsl - 1) // nsl
    for b in range(1, 16):
        wait_tile(b)
        a("s_barrier")
        if b % 2 == 0 or b == 15:
            ts.stamp(a, 8 + b)
        if b + 3 <= 15:
            issue(b + 3); order.append(f"T{b + 3}")
        if b >= PL0:
            for x in pl[:PLN]:
                a(x); order.append("P")
            pl = pl[PLN:]
        if b >= PC0:
            for x in pc[:per]:
                a(x)
            pc = pc[per:]
    a("s_waitcnt vmcnt(0)")
    for x in pc + p_stores:
        a(x)
    ts.stamp(a, 1)
    if ts.on:
        a("s_waitcnt vmcnt(0)")
    ts.final(a, 2)
    a.label("L_k1_end")
    a("s_endpgm")
    return name, 184, 102


def build(instrument=False, kernels=("k1", "k2", "k3")):
    ts = TS(instrument)
    a = Asm()
    launches = {
        "k1": "; @launch kernel=k1_kernel grid=(256,1,1) block=(512,1,1) lds=163840",
        "k2": "; @launch kernel=k2_kernel grid=(256,1,1) block=(768,1,1) lds=150528",
        "k3": "; @launch kernel=k3_kernel grid=(256,1,1) block=(512,1,1) lds=131072",
    }
    for k in kernels:
        a.raw(launches[k])
    a.raw('.amdgcn_target "amdgcn-amd-amdhsa--gfx950"')
    a.raw(".text")
    descs = []
    gens = {"k1": gen_k1}
    try:
        import gen23
        gens.update({"k2": gen23.gen_k2, "k3": gen23.gen_k3})
    except ImportError:
        pass
    for k in kernels:
        descs.append(gens[k](a, ts))
    a.raw('.section .rodata,"a"')
    for (n, v, s) in descs:
        kernel_desc(a, n, v, s)
    return a.text()


if __name__ == "__main__":
    out = sys.argv[1] if len(sys.argv) > 1 else f"cdna_kernels/{NAME}.s"
    open(out, "w").write(build())
```

```python
from gen import *
import struct

def f32hex(x):
    return "0x%08x" % struct.unpack("<I", struct.pack("<f", x))[0]

SCALE_LOG2E = (32 ** -0.5) * 1.4426950408889634

CW = 21248
CPY = 4160
URO = 16640


def gen_k2(a, ts):
    name = "k2_kernel"
    kernel_begin(a, name)
    ts.entry(a)
    a("s_cmp_ge_u32 s2, 256")
    a("s_cbranch_scc1 L_k2_end")
    a(f"s_load_dwordx2 s[4:5], s[0:1], {KA['ws']}")
    a(f"s_load_dwordx2 s[6:7], s[0:1], {KA['ssmk']}")
    a(f"s_load_dwordx2 s[36:37], s[0:1], {KA['ssmd']}")
    a(f"s_load_dwordx2 s[24:25], s[0:1], {KA['wo']}")
    a(f"s_load_dwordx2 s[26:27], s[0:1], {KA['q']}")
    a("v_lshrrev_b32 v1, 6, v0")
    a("v_and_b32 v0, 63, v0")
    a("s_and_b32 s84, s2, 7")
    a("s_lshr_b32 s85, s2, 3")
    a("v_readfirstlane_b32 s32, v1")
    a("s_lshl_b32 s86, s84, 5")
    a("s_add_u32 s86, s86, s85")
    a("s_lshl_b32 s3, s86, 3")
    a("v_lshlrev_b32 v2, 4, v0")
    a("s_waitcnt lgkmcnt(0)")
    a("s_load_dwordx2 s[38:39], s[36:37], s3")
    srd(a, 8, 4, WS_SIZE)
    srd(a, 12, 6, 4 * MB)
    srd(a, 16, 24, 2 * MB)
    srd(a, 20, 26, 4 * MB)
    ts.setup(a, 1, 4, 32)
    ts.stamp(a, 0)
    a("s_cmp_lt_u32 s32, 8")
    a("s_cbranch_scc1 L_k2_attn")

    ts.path(range(48, 80, 2))
    ACC = 8
    FB = [40, 104]
    LD = 40
    ET = 104
    VAB, VBB, VEB, VSO, VWB, VRB = 3, 4, 5, 6, 7, 1
    a("s_sub_u32 s32, s32, 8")
    a("s_lshl_b32 s33, s86, 2")
    a("s_add_u32 s33, s33, s32")
    a("s_lshl_b32 s34, s33, 12")
    a(f"s_mul_i32 s35, s32, {CW}")
    a("s_add_u32 s35, s35, 0x10000")
    a("v_mov_b32 v8, 0")
    a("v_mov_b32 v9, 0")
    a("v_mov_b32 v10, 0")
    a("v_mov_b32 v11, 0")
    a("v_lshlrev_b32 v12, 3, v0")
    a("v_add_u32 v12, s35, v12")
    a(f"ds_write_b64 v12, v[8:9] offset:{URO + 4096}")
    a("v_and_b32 v12, 3, v0")
    a(f"v_mul_u32_u24 v12, {CPY}, v12")
    a("v_bfe_u32 v13, v0, 2, 1")
    a("v_lshl_add_u32 v12, v13, 4, v12")
    a("v_add_u32 v12, s35, v12")
    a("ds_write_b128 v12, v[8:11]")
    a("v_and_b32 v12, 15, v0")
    a("v_lshrrev_b32 v13, 4, v0")
    a("v_add_u32 v14, 1, v12")
    a("v_and_b32 v15, 3, v14")
    a("v_sub_u32 v14, v14, v15")
    a("v_lshl_add_u32 v14, v13, 3, v14")
    a("v_lshlrev_b32 v14, 1, v14")
    a(f"v_mul_u32_u24 v15, {CPY}, v15")
    a(f"v_add3_u32 v{VAB}, v14, v15, s35")
    a("v_lshlrev_b32 v14, 5, v12")
    a("v_lshlrev_b32 v15, 4, v13")
    a(f"v_sub_u32 v{VBB}, v15, v14")
    a(f"v_add_u32 v{VBB}, {URO + 480}, v{VBB}")
    a(f"v_add_u32 v{VBB}, s35, v{VBB}")
    a("v_lshlrev_b32 v15, 3, v13")
    a(f"v_add_u32 v{VSO}, v14, v15")
    a(f"v_sub_u32 v{VEB}, {URO + 504}, v{VSO}")
    a(f"v_add_u32 v{VEB}, s35, v{VEB}")
    a(f"v_add_u32 v{VWB}, s35, v2")
    a(f"v_mov_b32 v{VRB}, s35")
    a(f"s_add_u32 m0, s35, {URO}")
    a(f"s_add_u32 s40, s34, 0x{WS_UR:x}")
    for k in range(4):
        a(f"buffer_load_dwordx4 v2, s[8:11], s40 offen offset:{1024 * k} lds")
    for k in range(4):
        a(f"buffer_load_dwordx4 {vr(LD + 8 * k, 4)}, v2, s[12:15], s34 offen offset:{1024 * k}")
        a(f"buffer_load_dwordx2 {vr(LD + 8 * k + 4, 2)}, v2, s[12:15], s34 offen offset:{1024 * k + 16}")
    a("s_barrier")
    a("s_waitcnt vmcnt(0) lgkmcnt(0)")
    for k in range(4):
        D = LD + 8 * k
        e1, e2, e3 = ET + 12 * k, ET + 12 * k + 4, ET + 12 * k + 8
        for i in range(4):
            a(f"v_alignbit_b32 v{e1 + i}, v{D + i + 1}, v{D + i}, 16")
        for i in range(4):
            a(f"v_mov_b32 v{e2 + i}, v{D + i + 1}")
        for i in range(4):
            a(f"v_alignbit_b32 v{e3 + i}, v{D + i + 2}, v{D + i + 1}, 16")
        a(f"ds_write_b128 v{VWB}, {vr(D, 4)} offset:{32 + 1024 * k}")
        a(f"ds_write_b128 v{VWB}, {vr(e1, 4)} offset:{32 + 1024 * k + CPY}")
        a(f"ds_write_b128 v{VWB}, {vr(e2, 4)} offset:{32 + 1024 * k + 2 * CPY}")
        a(f"ds_write_b128 v{VWB}, {vr(e3, 4)} offset:{32 + 1024 * k + 3 * CPY}")
    a(f"v_lshlrev_b32 v8, 16, v{LD}")
    a("s_mov_b64 exec, 1")
    a(f"ds_write_b32 v{VRB}, v8 offset:{CPY + 28}")
    a(f"ds_write_b32 v{VRB}, v{LD} offset:{2 * CPY + 28}")
    a(f"ds_write_b32 v{VRB}, v8 offset:{3 * CPY + 24}")
    a(f"ds_write_b32 v{VRB}, v{ET} offset:{3 * CPY + 28}")
    a("s_mov_b64 exec, -1")
    a("s_lshl_b32 s41, s85, 2")
    a("s_add_u32 s41, s41, s32")
    a("s_lshl_b32 s41, s41, 6")
    a("v_add_u32 v12, s41, v0")
    a("v_lshrrev_b32 v13, 3, v12")
    a("v_lshlrev_b32 v13, 11, v13")
    a("v_and_b32 v14, 7, v12")
    a("v_lshl_add_u32 v13, v14, 7, v13")
    a("s_lshr_b32 s41, s84, 2")
    a("s_lshl_b32 s41, s41, 10")
    a("buffer_load_dword v1, v13, s[16:19], s41 offen")
    a("v_lshrrev_b32 v13, 2, v12")
    a("v_lshlrev_b32 v13, 11, v13")
    a("v_bfe_u32 v14, v12, 1, 1")
    a("v_lshl_add_u32 v13, v14, 7, v13")
    a("s_lshl_b32 s41, s84, 8")
    a("buffer_load_dword v2, v13, s[20:23], s41 offen")
    a("s_waitcnt lgkmcnt(0)")
    ts.stamp(a, 1)

    def creads(j, buf):
        f = FB[buf]
        out = []
        for q in range(8):
            o = 64 * j + 512 * q
            out.append(f"ds_read_b64 {vr(f + 4 * q, 2)}, v{VAB} offset:{o}")
            out.append(f"ds_read_b64 {vr(f + 4 * q + 2, 2)}, v{VAB} offset:{o + 8}")
            out.append(f"ds_read_b128 {vr(f + 32 + 4 * q, 4)}, v{VBB} offset:{512 * (7 - q) + 64 * j}")
        return out

    def cmfmas(j, buf):
        f = FB[buf]
        out = []
        order = [(q, nt - q) for nt in range(8) for q in range(nt + 1)]
        order.sort(key=lambda x: (max(x[0], x[1]), x[0] + x[1]))
        seen = set()
        for (q, dl) in order:
            nt = q + dl
            d = vr(ACC + 4 * nt, 4)
            c = "0" if (j == 0 and nt not in seen) else d
            seen.add(nt)
            out.append(f"v_mfma_f32_16x16x32_bf16 {d}, {vr(f + 4 * q, 4)}, {vr(f + 32 + 4 * dl, 4)}, {c}")
        return out

    r0 = creads(0, 0)
    for i, r in enumerate(r0):
        a(r)
        if i % 12 == 11:
            a("s_waitcnt lgkmcnt(4)")
    for j in range(8):
        m = cmfmas(j, j & 1)
        r = creads(j + 1, (j + 1) & 1) if j < 7 else []
        a("s_waitcnt lgkmcnt(0)")
        ri = 0
        for i, mm in enumerate(m):
            a(mm)
            if ri < len(r) and i < 30:
                a(r[ri]); ri += 1
            for o in OPT:
                if o.startswith("cnop"):
                    a(f"s_nop {int(o[4:])}")
                if o == "csleep" and i % 4 == 3:
                    a("s_sleep 1")
        assert ri == len(r)
    ts.stamp(a, 2)
    for nt in range(8):
        a(f"ds_read_b64 {vr(FB[0] + 2 * nt, 2)}, v{VEB} offset:{512 * (7 - nt)}")
    a("s_lshl_b32 s41, s32, 4")
    a("s_lshr_b64 s[38:39], s[38:39], s41")
    a("s_lshl_b32 s38, s38, 16")
    a(f"s_add_u32 s40, s34, 0x{WS_Y2:x}")
    a("s_nop 7")
    a("s_waitcnt lgkmcnt(0)")
    for nt in range(8):
        k0, k1 = FB[0] + 2 * nt, FB[0] + 2 * nt + 1
        t = FB[1] + 4 * nt
        ac = ACC + 4 * nt
        a(f"v_and_b32 v{t}, 0xffff0000, v{k1}")
        a(f"v_lshlrev_b32 v{t + 1}, 16, v{k1}")
        a(f"v_and_b32 v{t + 2}, 0xffff0000, v{k0}")
        a(f"v_lshlrev_b32 v{t + 3}, 16, v{k0}")
        for i in range(4):
            a(f"v_fmac_f32 v{ac + i}, s38, v{t + i}")
        a(f"v_cvt_pk_bf16_f32 v{ac}, v{ac}, v{ac + 1}")
        a(f"v_cvt_pk_bf16_f32 v{ac + 1}, v{ac + 2}, v{ac + 3}")
        a(f"buffer_store_dwordx2 {vr(ac, 2)}, v{VSO}, s[8:11], s40 offen offset:{512 * nt}")
    if ts.on:
        a("s_waitcnt vmcnt(0)")
    ts.final(a, 3)
    a("s_endpgm")

    a.label("L_k2_attn")
    ts.path([24, 26, 28, 30, 36, 38, 86, 88])
    if "aprio" in OPT:
        a("s_setprio 3")
    SB = 8
    KV = [88, 96]
    QC = 104
    OA = 112
    VM, VM2, VT, VL, VL2, VNEG, VKB, VMA = 128, 129, 130, 131, 132, 133, 134, 135
    MK = 48
    a("s_lshr_b32 s34, s84, 1")
    a("s_lshl_b32 s34, s34, 3")
    a("s_lshr_b32 s35, s85, 2")
    a("s_add_u32 s34, s34, s35")
    a("s_and_b32 s35, s84, 1")
    a("s_lshl_b32 s35, s35, 2")
    a("s_and_b32 s40, s85, 3")
    a("s_add_u32 s35, s35, s40")
    a("s_lshl_b32 s40, s34, 6")
    a("s_lshl_b32 s41, s35, 3")
    a("s_add_u32 s40, s40, s41")
    a("s_add_u32 s42, s40, s32")
    a("s_lshl_b32 s42, s42, 11")
    a("s_lshl_b32 s40, s40, 11")
    a("s_lshl_b32 s41, s32, 12")
    a("s_add_u32 s40, s40, s41")
    a(f"s_add_u32 s43, s40, 0x{WS_KF - 16384:x}")
    a(f"s_add_u32 s44, s40, 0x{WS_VF - 16384:x}")
    a("s_lshr_b32 s45, s32, 2")
    a("s_or_b32 s45, s45, s35")
    a("s_cmp_eq_u32 s45, 0")
    a("s_cselect_b32 s45, 0x80000000, 0")
    a("v_add_u32 v3, s45, v2")
    a("s_mov_b32 m0, s41")
    for step in range(2):
        a(f"buffer_load_dwordx4 {vr(QC + 4 * step, 4)}, v2, s[8:11], s42 offen offset:{step * 1024}")
    for i in range(4):
        a(f"buffer_load_dwordx4 v3, s[8:11], s43 offen offset:{1024 * i} lds")
    a("s_add_u32 m0, s41, 32768")
    a("s_nop 0")
    for i in range(4):
        a(f"buffer_load_dwordx4 v3, s[8:11], s44 offen offset:{1024 * i} lds")
    a("v_and_b32 v4, 31, v0")
    a("v_lshrrev_b32 v5, 5, v0")
    a("v_lshlrev_b32 v5, 2, v5")
    a("v_sub_u32 v4, v4, v5")
    for r in range(16):
        a(f"v_cmp_le_i32 s[{MK + 2 * r}:{MK + 2 * r + 1}], {8 * (r >> 2) + (r & 3)}, v4")
    a(f"v_mov_b32 v{VNEG}, 0xf149f2ca")
    a("s_lshl_b32 s45, s32, 11")
    a(f"v_add_u32 v{VKB}, s45, v2")
    a("s_sub_u32 s45, 8, s32")
    a("s_cmp_eq_u32 s35, 0")
    a("s_cselect_b32 s45, s45, 0")
    a("s_lshl_b32 s46, s35, 3")
    a("s_add_u32 s46, s46, s32")
    a("s_lshl_b32 s46, s46, 5")
    a("s_add_u32 s46, s46, s34")
    a("s_lshl_b32 s46, s46, 11")
    a(f"s_add_u32 s46, s46, 0x{WS_OF:x}")
    a(f"s_mov_b32 s81, {f32hex(SCALE_LOG2E)}")
    a("s_mov_b32 s82, 0x3f803f80")
    a(f"v_mov_b32 v{VL}, 0")
    a(f"v_mov_b32 v{VL2}, 0")
    a("s_waitcnt vmcnt(0) lgkmcnt(0)")
    a("s_barrier")
    ts.stamp(a, 1)

    def kvread(rel, buf, isv):
        o = rel * 2048 + (32768 if isv else 0)
        return [f"ds_read_b128 {vr(KV[buf], 4)}, v{VKB} offset:{o}",
                f"ds_read_b128 {vr(KV[buf] + 4, 4)}, v{VKB} offset:{o + 1024}"]

    def maxops(rel, slot, first):
        s = SB + 16 * slot
        out = []
        if rel == 0:
            for r in range(16):
                out.append(f"v_cndmask_b32 v{s + r}, v{s + r}, v{VNEG}, s[{MK + 2 * r}:{MK + 2 * r + 1}]")
        if rel == 8:
            for r in range(16):
                out.append(f"v_cndmask_b32 v{s + r}, v{VNEG}, v{s + r}, s[{MK + 2 * r}:{MK + 2 * r + 1}]")
        for i in range(8):
            acc = (VM, VM2)[i & 1]
            if first and i < 2:
                out.append(f"v_max_f32 v{acc}, v{s + 2 * i}, v{s + 2 * i + 1}")
            else:
                out.append(f"v_max3_f32 v{acc}, v{s + 2 * i}, v{s + 2 * i + 1}, v{acc}")
        return out

    fills = []
    nb = 0
    groups = [list(range(0, 5)), list(range(5, 9))]
    for x in kvread(0, 0, False):
        a(x)
    for gi, grp in enumerate(groups):
        n = len(grp)
        for idx, rel in enumerate(grp):
            buf = nb & 1
            nxt = kvread(rel + 1, buf ^ 1, False) if idx < n - 1 else kvread(grp[0], buf ^ 1, True)
            for x in nxt:
                a(x)
            a("s_waitcnt lgkmcnt(2)")
            s = vr(SB + 16 * idx, 16)
            lf, lb = a.newlabel("fill"), a.newlabel("back")
            if rel < 8:
                a(f"s_cmp_gt_u32 s45, {rel}")
                a(f"s_cbranch_scc1 {lf}")
            a(f"v_mfma_f32_32x32x16_bf16 {s}, {vr(KV[buf], 4)}, {vr(QC, 4)}, 0")
            a(f"v_mfma_f32_32x32x16_bf16 {s}, {vr(KV[buf] + 4, 4)}, {vr(QC + 4, 4)}, {s}")
            if rel < 8:
                a.label(lb)
                fills.append((lf, lb, idx))
            if idx >= 2:
                for x in maxops(grp[idx - 2], idx - 2, idx == 2):
                    a(x)
            nb += 1
        for x in maxops(grp[n - 2], n - 2, False):
            a(x)
        a("s_nop 3")
        for x in maxops(grp[n - 1], n - 1, False):
            a(x)
        a(f"v_max_f32 v{VM}, v{VM}, v{VM2}")
        a("s_nop 0")
        a(f"v_mov_b32 v{VT}, v{VM}")
        a("s_nop 1")
        a(f"v_permlane32_swap_b32 v{VM}, v{VT}")
        a("s_nop 1")
        if gi == 0:
            a(f"v_max_f32 v{VM}, v{VM}, v{VT}")
            a(f"v_mul_f32 v{VMA}, s81, v{VM}")
        else:
            a(f"v_max_f32 v{VM}, v{VM}, v{VT}")
            a(f"v_mul_f32 v{VM}, s81, v{VM}")
            a(f"v_max_f32 v{VM}, v{VM}, v{VMA}")
            a(f"v_sub_f32 v{VT}, v{VMA}, v{VM}")
            a(f"v_exp_f32 v{VT}, v{VT}")
            a(f"v_mov_b32 v{VMA}, v{VM}")
            for r in range(16):
                a(f"v_mul_f32 v{OA + r}, v{OA + r}, v{VT}")
            a(f"v_mul_f32 v{VL}, v{VL}, v{VT}")
            a(f"v_mul_f32 v{VL2}, v{VL2}, v{VT}")
        if ts.on:
            ts.stamp(a, 4 + 2 * gi)
        for idx, rel in enumerate(grp):
            buf = nb & 1
            s = SB + 16 * idx
            if idx < n - 1:
                nxt = kvread(rel + 1, buf ^ 1, True)
            elif gi == 0:
                nxt = kvread(groups[1][0], buf ^ 1, False)
            else:
                nxt = []
            for x in nxt:
                a(x)
            for r in range(16):
                a(f"v_fma_f32 v{s + r}, v{s + r}, s81, -v{VMA}")
            for r in range(16):
                a(f"v_exp_f32 v{s + r}, v{s + r}")
            for j in range(8):
                a(f"v_cvt_pk_bf16_f32 v{s + j}, v{s + 2 * j}, v{s + 2 * j + 1}")
            for j in range(8):
                acc = (VL, VL2)[j & 1]
                a(f"v_dot2_f32_bf16 v{acc}, v{s + j}, s82, v{acc}")
            a(f"s_waitcnt lgkmcnt({len(nxt)})")
            o = vr(OA, 16)
            a(f"v_mfma_f32_32x32x16_bf16 {o}, {vr(KV[buf], 4)}, {vr(s, 4)}, {'0' if rel == 0 else o}")
            a(f"v_mfma_f32_32x32x16_bf16 {o}, {vr(KV[buf] + 4, 4)}, {vr(s + 4, 4)}, {o}")
            nb += 1
        if ts.on:
            ts.stamp(a, 5 + 2 * gi)
    a("s_nop 2")
    a(f"v_add_f32 v{VL}, v{VL}, v{VL2}")
    a("s_nop 0")
    a(f"v_mov_b32 v{VT}, v{VL}")
    a("s_nop 1")
    a(f"v_permlane32_swap_b32 v{VL}, v{VT}")
    a("s_nop 1")
    a(f"v_add_f32 v{VL}, v{VL}, v{VT}")
    a(f"v_rcp_f32 v{VL}, v{VL}")
    a("s_nop 7")
    for r in range(16):
        a(f"v_mul_f32 v{OA + r}, v{OA + r}, v{VL}")
    for j in range(8):
        a(f"v_cvt_pk_bf16_f32 v{OA + j}, v{OA + 2 * j}, v{OA + 2 * j + 1}")
    a(f"buffer_store_dwordx4 {vr(OA, 4)}, v2, s[8:11], s46 offen")
    a(f"buffer_store_dwordx4 {vr(OA + 4, 4)}, v2, s[8:11], s46 offen offset:1024")
    if ts.on:
        a("s_waitcnt vmcnt(0)")
    ts.final(a, 3)
    a("s_endpgm")
    for (lf, lb, idx) in fills:
        a.label(lf)
        a("s_nop 7")
        for r in range(16):
            a(f"v_mov_b32 v{SB + 16 * idx + r}, v{VNEG}")
        a(f"s_branch {lb}")
    a.label("L_k2_end")
    a("s_endpgm")
    return name, 168, 102


def gen_k3(a, ts):
    name = "k3_kernel"
    kernel_begin(a, name)
    ts.entry(a)
    a("s_cmp_ge_u32 s2, 256")
    a("s_cbranch_scc1 L_k3_end")
    a(f"s_load_dwordx2 s[4:5], s[0:1], {KA['ws']}")
    a(f"s_load_dwordx2 s[6:7], s[0:1], {KA['wo']}")
    a(f"s_load_dwordx2 s[36:37], s[0:1], {KA['out']}")
    a(f"s_load_dwordx2 s[38:39], s[0:1], {KA['q']}")
    a("v_lshrrev_b32 v1, 6, v0")
    a("v_and_b32 v0, 63, v0")
    a("s_and_b32 s3, s2, 7")
    a("v_readfirstlane_b32 s32, v1")
    a("s_lshr_b32 s35, s2, 3")
    a("s_and_b32 s33, s3, 1")
    a("s_lshl_b32 s33, s33, 1")
    a("s_bfe_u32 s44, s3, 0x10001")
    a("s_add_u32 s33, s33, s44")
    a("s_mov_b32 s60, s33")
    a("s_lshl_b32 s33, s33, 2")
    a("s_and_b32 s44, s35, 3")
    a("s_add_u32 s33, s33, s44")
    a("s_lshr_b32 s34, s3, 2")
    a("s_lshl_b32 s34, s34, 3")
    a("s_lshr_b32 s44, s35, 2")
    a("s_add_u32 s34, s34, s44")
    a("s_waitcnt lgkmcnt(0)")
    srd(a, 8, 4, WS_SIZE)
    srd(a, 12, 6, 2 * MB)
    srd(a, 16, 36, 8 * MB)
    srd(a, 20, 38, 4 * MB)
    ts.setup(a, 2, 4, 32)
    ts.stamp(a, 0)
    a("s_cmp_ge_u32 s32, 4")
    a("s_cbranch_scc1 L_k3_helper")

    ts.path(range(62, 90, 2))
    AF = 64
    BF = [16, 24]
    ACC = 32
    PF = 16
    for o in OPT:
        if o.startswith('pf'):
            PF = int(o[2:])
    a("v_lshlrev_b32 v2, 4, v0")
    a("s_lshl_b32 s44, s33, 2")
    a("s_add_u32 s44, s44, s32")
    a("s_lshl_b32 s45, s44, 16")
    a(f"s_add_u32 s45, s45, 0x{WS_OF:x}")

    def aload(ks):
        out = []
        if ks % 4 == 0 and ks > 0:
            out.append("s_add_u32 s45, s45, 4096")
        out.append(f"buffer_load_dwordx4 {vr(AF + 4 * (ks % PF), 4)}, v2, s[8:11], s45 offen offset:{(ks & 3) * 1024}")
        return out

    if "k3sync" in OPT:
        a("s_barrier")
    for ks in range(PF):
        for x in aload(ks):
            a(x)
    a("v_and_b32 v8, 15, v0")
    a("v_lshrrev_b32 v9, 4, v0")
    a("v_lshrrev_b32 v10, 5, v0")
    a("v_lshrrev_b32 v11, 2, v8")
    a("v_lshl_add_u32 v11, v10, 2, v11")
    a("v_lshlrev_b32 v11, 7, v11")
    a("v_and_b32 v12, 1, v9")
    a("v_lshl_add_u32 v11, v12, 5, v11")
    a("v_and_b32 v12, 3, v8")
    a("v_lshl_add_u32 v11, v12, 3, v11")
    a("v_lshrrev_b32 v12, 3, v8")
    a("v_lshl_add_u32 v4, v12, 6, v11")
    a("v_xor_b32 v12, 1, v12")
    a("v_lshl_add_u32 v5, v12, 6, v11")
    a("v_add_u32 v6, 0x10000, v4")
    a("v_add_u32 v7, 0x10000, v5")

    def breads(ks, buf):
        f = BF[buf]
        hi = ks >= 32
        o = (ks - 32 * hi) * 16 * 128
        out = []
        for ct in range(2):
            va = 4 + ct + 2 * hi
            out.append(f"ds_read_b64_tr_b16 {vr(f + 4 * ct, 2)}, v{va} offset:{o}")
            out.append(f"ds_read_b64_tr_b16 {vr(f + 4 * ct + 2, 2)}, v{va} offset:{o + 1024}")
        return out

    a("s_barrier")
    for x in breads(0, 0):
        a(x)
    for ks in range(64):
        buf = ks & 1
        f = BF[buf]
        nload = min(63, ks + PF - 1) - ks
        a(f"s_waitcnt vmcnt({nload}) lgkmcnt(0)")
        af = vr(AF + 4 * (ks % PF), 4)
        nxt = breads(ks + 1, buf ^ 1) if ks < 63 else []
        d0, d1 = vr(ACC, 16), vr(ACC + 16, 16)
        a(f"v_mfma_f32_32x32x16_bf16 {d0}, {vr(f, 4)}, {af}, {'0' if ks == 0 else d0}")
        if ks % 8 == 7 and ks < 63:
            a("s_barrier")
        for x in nxt:
            a(x)
        a(f"v_mfma_f32_32x32x16_bf16 {d1}, {vr(f + 4, 4)}, {af}, {'0' if ks == 0 else d1}")
        if ks + PF < 64:
            for x in aload(ks + PF):
                a(x)
    ts.stamp(a, 1)
    a("v_and_b32 v8, 31, v0")
    a("s_lshl_b32 s46, s44, 5")
    a("v_add_u32 v8, s46, v8")
    a("v_lshlrev_b32 v8, 12, v8")
    a("v_lshl_add_u32 v8, v10, 4, v8")
    a("s_lshl_b32 s46, s34, 7")
    a("s_add_u32 s46, s46, 2048")
    a("s_nop 7")
    for ct in range(2):
        b = ACC + 16 * ct
        for j in range(8):
            a(f"v_cvt_pk_bf16_f32 v{b + j}, v{b + 2 * j}, v{b + 2 * j + 1}")
        a("s_nop 1")
        for jj in range(2):
            a(f"v_permlane32_swap_b32 v{b + 4 * jj}, v{b + 4 * jj + 2}")
            a(f"v_permlane32_swap_b32 v{b + 4 * jj + 1}, v{b + 4 * jj + 3}")
        for jj in range(2):
            a(f"buffer_store_dwordx4 {vr(b + 4 * jj, 4)}, v8, s[16:19], s46 offen offset:{ct * 64 + jj * 32}")
    if ts.on:
        a("s_waitcnt vmcnt(0)")
    ts.final(a, 2)
    a("s_endpgm")

    a.label("L_k3_helper")
    ts.path(range(62, 90, 2))
    a("s_sub_u32 s44, s32, 4")
    a("v_lshrrev_b32 v12, 3, v0")
    a("v_and_b32 v13, 7, v0")
    a("v_bfe_u32 v14, v0, 4, 1")
    a("v_lshlrev_b32 v14, 2, v14")
    a("v_xor_b32 v14, v14, v13")
    a("v_lshlrev_b32 v2, 11, v12")
    a("v_lshl_add_u32 v2, v14, 4, v2")
    a("s_lshl_b32 s45, s34, 7")
    a("v_add_u32 v2, s45, v2")
    a("s_lshl_b32 s45, s35, 2")
    a("s_add_u32 s45, s45, s44")
    a("s_lshl_b32 s45, s45, 6")
    a("v_add_u32 v3, s45, v0")
    a("v_and_b32 v4, 15, v3")
    a("v_lshrrev_b32 v3, 4, v3")
    a("v_lshlrev_b32 v3, 7, v3")
    a("v_lshl_add_u32 v3, v4, 16, v3")
    a("s_lshl_b32 s45, s60, 20")
    a(f"s_add_u32 s45, s45, 0x{WS_OF:x}")
    a("buffer_load_dword v100, v3, s[8:11], s45 offen")
    if "k3sync" in OPT:
        a("s_waitcnt vmcnt(0)")
        a("s_barrier")
        ts.stamp(a, 3)
    a("s_lshl_b32 s45, s44, 12")
    a("s_lshl_b32 s46, s44, 16")
    for p in range(8):
        a(f"s_add_u32 m0, s45, {p * 16384}")
        for i in range(4):
            a(f"s_add_u32 s47, s46, {p * 16 * 16384 + i * (16384 - 1024)}")
            a(f"buffer_load_dwordx4 v2, s[12:15], s47 offen offset:{1024 * i} lds")
    YY, QQ, OO = 16, 32, 48
    a("s_lshl_b32 s48, s35, 6")
    a("s_lshl_b32 s49, s3, 2")
    a("s_add_u32 s49, s49, s44")
    a("s_lshl_b32 s49, s49, 5")
    a("v_lshlrev_b32 v4, 3, v12")
    a("v_add_u32 v4, s48, v4")
    a("v_lshlrev_b32 v5, 2, v13")
    a("v_add_u32 v5, s49, v5")
    a("v_lshlrev_b32 v6, 12, v5")
    a("v_lshl_add_u32 v6, v4, 1, v6")
    a("v_lshlrev_b32 v7, 11, v4")
    a("v_lshl_add_u32 v7, v5, 1, v7")
    a("v_lshlrev_b32 v8, 12, v4")
    a("v_lshl_add_u32 v8, v5, 1, v8")
    for i in range(8):
        a(f"s_mov_b32 s{52 + i}, {4096 * i}")
    a(f"s_mov_b32 s51, 0x{WS_Y2:x}")
    for dd in range(4):
        a(f"buffer_load_dwordx4 {vr(YY + 4 * dd, 4)}, v6, s[8:11], s51 offen")
        if dd < 3:
            a("s_add_u32 s51, s51, 4096")
    for i in range(8):
        a(f"buffer_load_dwordx2 {vr(QQ + 2 * i, 2)}, v7, s[20:23], s{52 + (i >> 1)} offen offset:{(i & 1) * 2048}")
    for p in range(8):
        a(f"s_waitcnt vmcnt({28 - 4 * p + 12})")
        a("s_barrier")
        ts.stamp(a, 8 + p)
    ts.stamp(a, 1)
    a("s_waitcnt vmcnt(0)")
    for i in range(8):
        for dd in range(4):
            ys = YY + 4 * dd + (i >> 1)
            qs = QQ + 2 * i + (dd >> 1)
            if i & 1:
                a(f"v_and_b32 v9, 0xffff0000, v{ys}")
            else:
                a(f"v_lshlrev_b32 v9, 16, v{ys}")
            if dd & 1:
                a(f"v_and_b32 v10, 0xffff0000, v{qs}")
            else:
                a(f"v_lshlrev_b32 v10, 16, v{qs}")
            a(f"v_mul_f32 v{OO + 4 * i + dd}, v9, v10")
        o = OO + 4 * i
        a(f"v_cvt_pk_bf16_f32 v{o}, v{o}, v{o + 1}")
        a(f"v_cvt_pk_bf16_f32 v{o + 1}, v{o + 2}, v{o + 3}")
        a(f"buffer_store_dwordx2 {vr(o, 2)}, v8, s[16:19], s{52 + i} offen")
    if ts.on:
        a("s_waitcnt vmcnt(0)")
    ts.final(a, 2)
    a.label("L_k3_end")
    a("s_endpgm")
    return name, 64 + 4 * PF, 102
```

```python
import sys, struct
from gen import Asm, vr, srd, kernel_begin, kernel_desc, KA, MB, NAME

OPT = set()
WS_KF, WS_VF, WS_UR, WS_OF, WS_Y2, WS_FL = 4 * MB, 8 * MB, 12 * MB, 16 * MB, 20 * MB, 24 * MB
WS_SIZE = 25 * MB
WS_TS = 32 * MB
FL_UR, FL_KV, FL_Y2, FL_O = 0, 1, 2, 3

CW, CPY, URO = 21248, 4160, 16640
L_R0 = 163840 - 2 * CW
L_PKB = [0, 57344, 73728, 90112]
L_OKV = 16384
L_QH = 49152
SC = " sc1"
SPIN_LIMIT = 1 << 16


def f32hex(x):
    return "0x%08x" % struct.unpack("<I", struct.pack("<f", x))[0]


SCALE_LOG2E = (32 ** -0.5) * 1.4426950408889634

SX, SW, SWS, SK, SV, SSH, SHK, SWO, SQ, SOUT, SDBG = 4, 8, 12, 16, 20, 24, 28, 60, 64, 68, 72


def S(n):
    return f"s[{n}:{n + 3}]"


class TS:
    def __init__(self, on):
        self.on = on

    def entry(self, a):
        if self.on:
            a("s_memrealtime s[98:99]")
            a("s_memtime s[100:101]")

    def setup(self, a, ws_pair):
        if not self.on:
            return
        srd(a, 92, ws_pair, 4 * MB, WS_TS)
        a("s_lshl_b32 s96, s2, 4")
        a("s_add_u32 s96, s96, s32")
        a("s_lshl_b32 s96, s96, 8")
        a("v_mov_b32 v254, s98")
        a("v_mov_b32 v255, s99")
        a("v_mov_b32 v253, 0")
        a(f"buffer_store_dwordx2 v[254:255], v253, s[92:95], s96 offen offset:{30 * 8}")

    def stamp(self, a, slot):
        if not self.on:
            return
        a("s_memrealtime s[90:91]")
        a("s_waitcnt lgkmcnt(0)")
        a("v_mov_b32 v254, s90")
        a("v_mov_b32 v255, s91")
        a(f"buffer_store_dwordx2 v[254:255], v253, s[92:95], s96 offen offset:{slot * 8}")

    def final(self, a, slot):
        if not self.on:
            return
        a("s_waitcnt vmcnt(0)")
        self.stamp(a, slot)
        a("s_memtime s[90:91]")
        a("s_waitcnt lgkmcnt(0)")
        a("s_sub_u32 s90, s90, s100")
        a("s_subb_u32 s91, s91, s101")
        a("s_nop 1")
        a("v_mov_b32 v254, s90")
        a("v_mov_b32 v255, s91")
        a(f"buffer_store_dwordx2 v[254:255], v253, s[92:95], s96 offen offset:{31 * 8}")


def emit_poll(a, voff, nlanes, tmp):
    lp = a.newlabel("poll")
    dn = a.newlabel("polld")
    mask = (1 << nlanes) - 1
    a(f"s_mov_b32 s80, 0x{mask & 0xffffffff:x}")
    a(f"s_mov_b32 s81, 0x{mask >> 32:x}")
    a("s_mov_b32 s85, 0")
    a.label(lp)
    a(f"buffer_load_dwordx2 {vr(tmp, 2)}, v{voff}, {S(SWS)}, 0 offen{SC}")
    a("s_waitcnt vmcnt(0)")
    a(f"v_cmp_eq_u64 vcc, s[78:79], {vr(tmp, 2)}")
    a("s_nop 1")
    a("s_and_b64 s[82:83], vcc, s[80:81]")
    a("s_cmp_eq_u64 s[82:83], s[80:81]")
    a(f"s_cbranch_scc1 {dn}")
    a("s_sleep 2")
    a("s_add_u32 s85, s85, 1")
    a(f"s_cmp_lt_u32 s85, 0x{SPIN_LIMIT:x}")
    a(f"s_cbranch_scc1 {lp}")
    a.label(dn)


def emit_publish(a, kind, t0):
    a(f"s_lshl_b32 s80, s2, 7")
    a(f"s_add_u32 s80, s80, 0x{WS_FL + kind * 32768:x}")
    a(f"v_mov_b32 v{t0}, s78")
    a(f"v_mov_b32 v{t0 + 1}, s79")
    a(f"v_mov_b32 v{t0 + 2}, 0")
    a("s_mov_b64 exec, 1")
    a(f"buffer_store_dwordx2 {vr(t0, 2)}, v{t0 + 2}, {S(SWS)}, s80 offen{SC}")
    a("s_mov_b64 exec, -1")


def emit_token(a, t0):
    a("s_memrealtime s[78:79]")
    a("s_waitcnt lgkmcnt(0)")
    a("s_or_b32 s78, s78, 1")
    a(f"v_mov_b32 v{t0}, s78")
    a(f"v_mov_b32 v{t0 + 1}, s79")
    a(f"v_mov_b32 v{t0 + 2}, 0")
    a(f"v_mov_b32 v{t0 + 3}, 0")
    a(f"v_mov_b32 v{t0 + 4}, 0")
    a("s_mov_b64 exec, 1")
    a(f"buffer_atomic_cmpswap_x2 {vr(t0, 4)}, v{t0 + 4}, {S(SDBG)}, 0 offen{SC}")
    a("s_mov_b64 exec, -1")


def emit_token_finish(a, t0):
    a(f"v_readfirstlane_b32 s80, v{t0}")
    a(f"v_readfirstlane_b32 s81, v{t0 + 1}")
    a("s_nop 1")
    a("s_cmp_eq_u64 s[80:81], 0")
    a("s_cselect_b32 s78, s78, s80")
    a("s_cselect_b32 s79, s79, s81")


def p1_lists():
    KK, VV, WR = 32, 56, 72
    KF_, WF_, RS_ = 80, 124, 140
    soffs = ["0", "s51", "s52", "s53"]
    setup, loads, comp, stores = [], [], [], []
    a = setup.append
    a("v_lshrrev_b32 v12, 3, v0")
    a("v_and_b32 v13, 7, v0")
    a("s_lshl_b32 s48, s35, 6")
    a("s_lshl_b32 s49, s3, 2")
    a("s_add_u32 s49, s49, s44")
    a("s_lshl_b32 s49, s49, 5")
    a("v_lshlrev_b32 v20, 3, v12")
    a("v_add_u32 v20, s48, v20")
    a("v_lshlrev_b32 v21, 2, v13")
    a("v_add_u32 v21, s49, v21")
    a("v_lshlrev_b32 v22, 11, v20")
    a("v_lshl_add_u32 v22, v21, 1, v22")
    a("s_mov_b32 s51, 4096")
    a("s_mov_b32 s52, 8192")
    a("s_mov_b32 s53, 12288")
    a("v_subrev_u32 v23, 6144, v22")
    a("v_mov_b32 v24, 0x80000000")
    a("v_cmp_gt_u32 vcc, 3, v20")
    a("v_lshlrev_b32 v25, 12, v21")
    a("v_sub_u32 v26, 2040, v20")
    a("v_cndmask_b32 v23, v23, v24, vcc")
    a("v_lshlrev_b32 v24, 3, v21")
    a("v_lshl_add_u32 v25, v26, 1, v25")
    for i in range(8):
        loads.append(f"buffer_load_dwordx2 {vr(KK + 6 + 2 * i, 2)}, v22, {S(SK)}, {soffs[i >> 1]} offen offset:{(i & 1) * 2048}")
    for i in range(8):
        loads.append(f"buffer_load_dwordx2 {vr(VV + 2 * i, 2)}, v22, {S(SV)}, {soffs[i >> 1]} offen offset:{(i & 1) * 2048}")
    for i in range(3):
        loads.append(f"buffer_load_dwordx2 {vr(KK + 2 * i, 2)}, v23, {S(SK)}, {soffs[i >> 1]} offen offset:{(i & 1) * 2048}")
    loads.append(f"buffer_load_dwordx4 {vr(WR, 4)}, v24, {S(SSH)}, 0 offen")
    loads.append(f"buffer_load_dwordx4 {vr(WR + 4, 4)}, v24, {S(SSH)}, 0 offen offset:16")
    a = comp.append
    for i in range(11):
        for h2 in range(2):
            src = KK + 2 * i + h2
            a(f"v_lshlrev_b32 v{KF_ + 4 * i + 2 * h2}, 16, v{src}")
            a(f"v_and_b32 v{KF_ + 4 * i + 2 * h2 + 1}, 0xffff0000, v{src}")
    for dd in range(4):
        for h2 in range(2):
            src = WR + 2 * dd + h2
            a(f"v_lshlrev_b32 v{WF_ + 4 * dd + 2 * h2}, 16, v{src}")
            a(f"v_and_b32 v{WF_ + 4 * dd + 2 * h2 + 1}, 0xffff0000, v{src}")
    for s_ in range(8):
        for dd in range(4):
            r = RS_ + 4 * s_ + dd
            a(f"v_mul_f32 v{r}, v{KF_ + 4 * (s_ + 3) + dd}, v{WF_ + 4 * dd}")
            for j in range(1, 4):
                a(f"v_fmac_f32 v{r}, v{KF_ + 4 * (s_ + 3 - j) + dd}, v{WF_ + 4 * dd + j}")
            src = VV + 2 * s_ + (dd >> 1)
            if dd & 1:
                a(f"v_and_b32 v28, 0xffff0000, v{src}")
            else:
                a(f"v_lshlrev_b32 v28, 16, v{src}")
            a(f"v_mul_f32 v{r}, v{r}, v28")
    stores.append(f"s_mov_b32 s54, 0x{WS_UR:x}")
    for dd in range(4):
        o = KK + 4 * dd
        for j in range(4):
            a(f"v_cvt_pk_bf16_f32 v{o + j}, v{RS_ + 4 * (7 - 2 * j) + dd}, v{RS_ + 4 * (6 - 2 * j) + dd}")
        stores.append(f"buffer_store_dwordx4 {vr(o, 4)}, v25, {S(SWS)}, s54 offen{SC}")
        if dd < 3:
            stores.append("s_add_u32 s54, s54, 4096")
    return setup, loads, comp, stores


def emit_conv_addr(a, VAB, VBB, VEB, VSO):
    a("v_and_b32 v12, 15, v0")
    a("v_lshrrev_b32 v13, 4, v0")
    a("v_add_u32 v14, 1, v12")
    a("v_and_b32 v15, 3, v14")
    a("v_sub_u32 v14, v14, v15")
    a("v_lshl_add_u32 v14, v13, 3, v14")
    a("v_lshlrev_b32 v14, 1, v14")
    a(f"v_mul_u32_u24 v15, {CPY}, v15")
    a(f"v_add3_u32 v{VAB}, v14, v15, s46")
    a("v_lshlrev_b32 v14, 5, v12")
    a("v_lshlrev_b32 v15, 4, v13")
    a(f"v_sub_u32 v{VBB}, v15, v14")
    a(f"v_add_u32 v{VBB}, {URO + 480}, v{VBB}")
    a(f"v_add_u32 v{VBB}, s46, v{VBB}")
    a("v_lshlrev_b32 v15, 3, v13")
    a(f"v_add_u32 v{VSO}, v14, v15")
    a(f"v_sub_u32 v{VEB}, {URO + 504}, v{VSO}")
    a(f"v_add_u32 v{VEB}, s46, v{VEB}")


def emit_conv_main(a, nts, ACC, FB, VAB, VBB, VEB, VSO, extra=(), hooks=None):
    mx = max(nts)
    nfr = mx + 1

    def creads(j, buf):
        f = FB[buf]
        out = []
        for q in range(nfr):
            o = 64 * j + 512 * q
            out.append(f"ds_read_b64 {vr(f + 4 * q, 2)}, v{VAB} offset:{o}")
            out.append(f"ds_read_b64 {vr(f + 4 * q + 2, 2)}, v{VAB} offset:{o + 8}")
            out.append(f"ds_read_b128 {vr(f + 4 * nfr + 4 * q, 4)}, v{VBB} offset:{512 * (7 - q) + 64 * j}")
        return out

    def cmfmas(j, buf):
        f = FB[buf]
        order = [(q, nt - q) for nt in nts for q in range(nt + 1)]
        order.sort(key=lambda x: (max(x[0], x[1]), x[0] + x[1]))
        seen = set()
        out = []
        for (q, dl) in order:
            nt = q + dl
            d = vr(ACC + 4 * nts.index(nt), 4)
            c = "0" if (j == 0 and nt not in seen) else d
            seen.add(nt)
            out.append(f"v_mfma_f32_16x16x32_bf16 {d}, {vr(f + 4 * q, 4)}, {vr(f + 4 * nfr + 4 * dl, 4)}, {c}")
        return out

    extra = list(extra)
    for i, r in enumerate(creads(0, 0)):
        a(r)
        if i % 12 == 11:
            a("s_waitcnt lgkmcnt(4)")
    for j in range(8):
        m = cmfmas(j, j & 1)
        r = creads(j + 1, (j + 1) & 1) if j < 7 else []
        if hooks and j in hooks:
            hooks[j]()
        a("s_waitcnt lgkmcnt(0)")
        per = -(-len(r) // max(1, len(m) - 2))
        ri = 0
        for i, mm in enumerate(m):
            a(mm)
            for _ in range(per):
                if ri < len(r):
                    a(r[ri]); ri += 1
            if extra and i % 3 == 2:
                a(extra.pop(0))
        assert ri == len(r)
    for x in extra:
        a(x)
    for i, nt in enumerate(nts):
        a(f"ds_read_b64 {vr(FB[0] + 2 * i, 2)}, v{VEB} offset:{512 * (7 - nt)}")
    a("s_nop 7")
    a("s_waitcnt lgkmcnt(0)")
    for i, nt in enumerate(nts):
        k0, k1 = FB[0] + 2 * i, FB[0] + 2 * i + 1
        t = FB[1] + 4 * i
        ac = ACC + 4 * i
        a(f"v_and_b32 v{t}, 0xffff0000, v{k1}")
        a(f"v_lshlrev_b32 v{t + 1}, 16, v{k1}")
        a(f"v_and_b32 v{t + 2}, 0xffff0000, v{k0}")
        a(f"v_lshlrev_b32 v{t + 3}, 16, v{k0}")
        for e in range(4):
            a(f"v_fmac_f32 v{ac + e}, s38, v{t + e}")
        a(f"v_cvt_pk_bf16_f32 v{ac}, v{ac}, v{ac + 1}")
        a(f"v_cvt_pk_bf16_f32 v{ac + 1}, v{ac + 2}, v{ac + 3}")
        a(f"buffer_store_dwordx2 {vr(ac, 2)}, v{VSO}, {S(SWS)}, s47 offen offset:{512 * nt}{SC}")


MASKS = [4, 6, 8, 10, 16, 18, 20, 22, 24, 26, 48, 50, 52, 54, 56, 58]


def emit_attention(a, ts, QC, fills):
    SB = 8
    KV = [88, 96]
    OA = 112
    VM, VM2, VT, VL, VL2, VNEG, VMA = 128, 129, 130, 131, 132, 133, 135
    VAD = 136
    a("v_and_b32 v4, 31, v0")
    a("v_lshrrev_b32 v5, 5, v0")
    a("v_lshlrev_b32 v5, 2, v5")
    a("v_sub_u32 v4, v4, v5")
    for r in range(16):
        a(f"v_cmp_le_i32 s[{MASKS[r]}:{MASKS[r] + 1}], {8 * (r >> 2) + (r & 3)}, v4")
    a(f"v_mov_b32 v{VNEG}, 0xf149f2ca")
    a("v_lshlrev_b32 v2, 4, v0")
    a("s_cmp_eq_u32 s41, 0")
    a(f"s_mov_b32 s42, {L_PKB[2]}")
    a(f"s_cselect_b32 s42, {L_PKB[0]}, s42")
    a(f"s_mov_b32 s80, {L_PKB[3] - L_PKB[2]}")
    a(f"s_cselect_b32 s80, {L_PKB[1] - L_PKB[0]}, s80")
    a("s_lshl_b32 s43, s41, 14")
    a("s_movk_i32 s81, 0x2000")
    for rel in range(9):
        a(f"s_add_u32 s45, s40, {rel}")
        a("s_lshl_b32 s46, s45, 11")
        a("s_add_u32 s47, s46, s42")
        a("s_add_u32 s46, s46, s43")
        a("s_cmp_lt_u32 s45, 8")
        a("s_cselect_b32 s46, s47, s46")
        a("s_cselect_b32 s47, s80, s81")
        a(f"v_add_u32 v{VAD + rel}, s46, v2")
        a(f"v_add_u32 v{VAD + 9 + rel}, s47, v{VAD + rel}")
    a("s_lshl_b32 s45, s33, 2")
    a("s_add_u32 s45, s45, s40")
    a("s_sub_u32 s46, 8, s45")
    a("s_cmp_lt_u32 s45, 8")
    a("s_cselect_b32 s46, s46, 0")
    a("s_lshl_b32 s47, s45, 5")
    a("s_lshl_b32 s42, s34, 1")
    a("s_add_u32 s47, s47, s42")
    a("s_add_u32 s47, s47, s41")
    a("s_lshl_b32 s47, s47, 11")
    a(f"s_add_u32 s47, s47, 0x{WS_OF:x}")
    a(f"s_mov_b32 s42, {f32hex(SCALE_LOG2E)}")
    a("s_mov_b32 s43, 0x3f803f80")
    a(f"v_mov_b32 v{VL}, 0")
    a(f"v_mov_b32 v{VL2}, 0")

    def kvread(rel, buf, isv):
        ad = VAD + rel + (9 if isv else 0)
        return [f"ds_read_b128 {vr(KV[buf], 4)}, v{ad}",
                f"ds_read_b128 {vr(KV[buf] + 4, 4)}, v{ad} offset:1024"]

    def maxops(rel, slot, first):
        s = SB + 16 * slot
        out = []
        if rel == 0:
            for r in range(16):
                out.append(f"v_cndmask_b32 v{s + r}, v{s + r}, v{VNEG}, s[{MASKS[r]}:{MASKS[r] + 1}]")
        if rel == 8:
            for r in range(16):
                out.append(f"v_cndmask_b32 v{s + r}, v{VNEG}, v{s + r}, s[{MASKS[r]}:{MASKS[r] + 1}]")
        for i in range(8):
            acc = (VM, VM2)[i & 1]
            if first and i < 2:
                out.append(f"v_max_f32 v{acc}, v{s + 2 * i}, v{s + 2 * i + 1}")
            else:
                out.append(f"v_max3_f32 v{acc}, v{s + 2 * i}, v{s + 2 * i + 1}, v{acc}")
        return out

    return_after_setup = []

    def body():
        nb = 0
        groups = [list(range(0, 5)), list(range(5, 9))]
        for x in kvread(0, 0, False):
            a(x)
        for gi, grp in enumerate(groups):
            n = len(grp)
            for idx, rel in enumerate(grp):
                buf = nb & 1
                nxt = kvread(rel + 1, buf ^ 1, False) if idx < n - 1 else kvread(grp[0], buf ^ 1, True)
                for x in nxt:
                    a(x)
                a("s_waitcnt lgkmcnt(2)")
                s = vr(SB + 16 * idx, 16)
                lf, lb = a.newlabel("fill"), a.newlabel("back")
                if rel < 8:
                    a(f"s_cmp_gt_u32 s46, {rel}")
                    a(f"s_cbranch_scc1 {lf}")
                a(f"v_mfma_f32_32x32x16_bf16 {s}, {vr(KV[buf], 4)}, {vr(QC, 4)}, 0")
                a(f"v_mfma_f32_32x32x16_bf16 {s}, {vr(KV[buf] + 4, 4)}, {vr(QC + 4, 4)}, {s}")
                if rel < 8:
                    a.label(lb)
                    fills.append((lf, lb, SB + 16 * idx, VNEG))
                if idx >= 2:
                    for x in maxops(grp[idx - 2], idx - 2, idx == 2):
                        a(x)
                nb += 1
            for x in maxops(grp[n - 2], n - 2, False):
                a(x)
            a("s_nop 3")
            for x in maxops(grp[n - 1], n - 1, False):
                a(x)
            a(f"v_max_f32 v{VM}, v{VM}, v{VM2}")
            a("s_nop 0")
            a(f"v_mov_b32 v{VT}, v{VM}")
            a("s_nop 1")
            a(f"v_permlane32_swap_b32 v{VM}, v{VT}")
            a("s_nop 1")
            a(f"v_max_f32 v{VM}, v{VM}, v{VT}")
            if gi == 0:
                a(f"v_mul_f32 v{VMA}, s42, v{VM}")
            else:
                a(f"v_mul_f32 v{VM}, s42, v{VM}")
                a(f"v_max_f32 v{VM}, v{VM}, v{VMA}")
                a(f"v_sub_f32 v{VT}, v{VMA}, v{VM}")
                a(f"v_exp_f32 v{VT}, v{VT}")
                a(f"v_mov_b32 v{VMA}, v{VM}")
                for r in range(16):
                    a(f"v_mul_f32 v{OA + r}, v{OA + r}, v{VT}")
                a(f"v_mul_f32 v{VL}, v{VL}, v{VT}")
                a(f"v_mul_f32 v{VL2}, v{VL2}, v{VT}")
            for idx, rel in enumerate(grp):
                buf = nb & 1
                s = SB + 16 * idx
                if idx < n - 1:
                    nxt = kvread(rel + 1, buf ^ 1, True)
                elif gi == 0:
                    nxt = kvread(groups[1][0], buf ^ 1, False)
                else:
                    nxt = []
                for x in nxt:
                    a(x)
                for r in range(16):
                    a(f"v_fma_f32 v{s + r}, v{s + r}, s42, -v{VMA}")
                for r in range(16):
                    a(f"v_exp_f32 v{s + r}, v{s + r}")
                for j in range(8):
                    a(f"v_cvt_pk_bf16_f32 v{s + j}, v{s + 2 * j}, v{s + 2 * j + 1}")
                for j in range(8):
                    acc = (VL, VL2)[j & 1]
                    a(f"v_dot2_f32_bf16 v{acc}, v{s + j}, s43, v{acc}")
                a(f"s_waitcnt lgkmcnt({len(nxt)})")
                o = vr(OA, 16)
                a(f"v_mfma_f32_32x32x16_bf16 {o}, {vr(KV[buf], 4)}, {vr(s, 4)}, {'0' if rel == 0 else o}")
                a(f"v_mfma_f32_32x32x16_bf16 {o}, {vr(KV[buf] + 4, 4)}, {vr(s + 4, 4)}, {o}")
                nb += 1
        a("s_nop 2")
        a(f"v_add_f32 v{VL}, v{VL}, v{VL2}")
        a("s_nop 0")
        a(f"v_mov_b32 v{VT}, v{VL}")
        a("s_nop 1")
        a(f"v_permlane32_swap_b32 v{VL}, v{VT}")
        a("s_nop 1")
        a(f"v_add_f32 v{VL}, v{VL}, v{VT}")
        a(f"v_rcp_f32 v{VL}, v{VL}")
        a("s_nop 7")
        for r in range(16):
            a(f"v_mul_f32 v{OA + r}, v{OA + r}, v{VL}")
        for j in range(8):
            a(f"v_cvt_pk_bf16_f32 v{OA + j}, v{OA + 2 * j}, v{OA + 2 * j + 1}")
        a(f"buffer_store_dwordx4 {vr(OA, 4)}, v2, {S(SWS)}, s47 offen{SC}")
        a(f"buffer_store_dwordx4 {vr(OA + 4, 4)}, v2, {S(SWS)}, s47 offen offset:1024{SC}")
    return body


def emit_token_read(a, t0):
    lp = a.newlabel("tok")
    dn = a.newlabel("tokd")
    a(f"v_mov_b32 v{t0 + 2}, 0")
    a("s_mov_b32 s85, 0")
    a.label(lp)
    a(f"buffer_load_dwordx2 {vr(t0, 2)}, v{t0 + 2}, {S(SDBG)}, 0 offen{SC}")
    a("s_waitcnt vmcnt(0)")
    a(f"v_readfirstlane_b32 s78, v{t0}")
    a(f"v_readfirstlane_b32 s79, v{t0 + 1}")
    a("s_nop 1")
    a("s_cmp_lg_u64 s[78:79], 0")
    a(f"s_cbranch_scc1 {dn}")
    a("s_add_u32 s85, s85, 1")
    a(f"s_cmp_lt_u32 s85, 0x{SPIN_LIMIT:x}")
    a(f"s_cbranch_scc1 {lp}")
    a.label(dn)


def emit_wg_of(a, vdst, vrb, vhp, t):
    a(f"v_lshrrev_b32 v{vdst}, 3, v{vrb}")
    a(f"v_lshrrev_b32 v{t}, 2, v{vhp}")
    a(f"v_lshl_add_u32 v{vdst}, v{t}, 1, v{vdst}")
    a(f"v_and_b32 v{t}, 7, v{vrb}")
    a(f"v_lshl_add_u32 v{vdst}, v{t}, 3, v{vdst}")
    a(f"v_and_b32 v{t}, 3, v{vhp}")
    a(f"v_lshl_add_u32 v{vdst}, v{t}, 6, v{vdst}")
    a(f"v_lshlrev_b32 v{vdst}, 7, v{vdst}")


def gen_fused(a, ts):
    name = NAME + "_kernel"
    kernel_begin(a, name)
    ts.entry(a)
    a("s_cmp_ge_u32 s2, 256")
    a("s_cbranch_scc1 L_end")
    a("s_load_dwordx16 s[36:51], s[0:1], 0")
    a("s_load_dwordx8 s[52:59], s[0:1], 64")
    a("v_lshrrev_b32 v1, 6, v0")
    a("v_and_b32 v0, 63, v0")
    a("s_and_b32 s3, s2, 7")
    a("v_readfirstlane_b32 s32, v1")
    a("s_lshr_b32 s35, s2, 3")
    a("s_and_b32 s33, s3, 1")
    a("s_lshl_b32 s33, s33, 3")
    a("s_and_b32 s80, s35, 7")
    a("s_add_u32 s33, s33, s80")
    a("s_lshr_b32 s34, s3, 1")
    a("s_lshl_b32 s34, s34, 2")
    a("s_lshr_b32 s80, s35, 3")
    a("s_add_u32 s34, s34, s80")
    a("s_lshl_b32 s84, s3, 5")
    a("s_add_u32 s84, s84, s35")
    a("s_lshl_b32 s80, s84, 3")
    a("s_waitcnt lgkmcnt(0)")
    a("s_load_dwordx2 s[76:77], s[46:47], s80")
    srd(a, SX, 48, 4 * MB)
    srd(a, SW, 50, 6 * MB)
    srd(a, SWS, 58, WS_SIZE)
    srd(a, SK, 38, 4 * MB)
    srd(a, SV, 40, 4 * MB)
    srd(a, SSH, 42, 8192)
    srd(a, SHK, 44, 4 * MB)
    srd(a, SWO, 52, 2 * MB)
    srd(a, SQ, 36, 4 * MB)
    srd(a, SOUT, 54, 8 * MB)
    srd(a, SDBG, 56, 256)
    ts.setup(a, 58)
    a("s_cmp_ge_u32 s32, 4")
    a("s_cbranch_scc1 L_H")

    ACC = 80
    FR = [16, 36, 56]
    XA, WB = 2, 6
    TD = 5
    a("v_and_b32 v8, 15, v0")
    a("v_lshrrev_b32 v9, 4, v0")
    a("s_lshl_b32 s46, s35, 5")
    a("s_lshl_b32 s47, s32, 3")
    a("s_add_u32 s46, s46, s47")
    a("s_and_b32 s47, s3, 1")
    a("s_lshl_b32 s47, s47, 10")
    a("s_add_u32 s46, s46, s47")
    a("v_add_u32 v10, s46, v8")
    a("v_lshlrev_b32 v10, 11, v10")
    a("v_lshl_add_u32 v10, v9, 7, v10")
    a("v_mov_b32 v12, 0x80000000")
    a("v_cmp_gt_u32 vcc, 8, v8")
    a("s_mul_i32 s46, s35, 24")
    a("s_mul_i32 s47, s32, 6")
    a("v_cndmask_b32 v176, v12, v10, vcc")
    a("s_add_u32 s46, s46, s47")
    a("v_add_u32 v10, s46, v8")
    a("v_mul_u32_u24 v11, 5462, v10")
    a("v_lshrrev_b32 v11, 16, v11")
    a("v_mul_u32_u24 v13, 12, v11")
    a("v_sub_u32 v10, v10, v13")
    a("v_lshl_add_u32 v11, v9, 6, v11")
    a("v_mul_u32_u24 v11, 6144, v11")
    a("v_lshrrev_b32 v13, 2, v10")
    a("v_lshl_add_u32 v11, v13, 11, v11")
    a("v_and_b32 v10, 3, v10")
    a("v_lshl_add_u32 v11, v10, 7, v11")
    a("s_lshr_b32 s47, s3, 1")
    a("s_lshl_b32 s47, s47, 9")
    a("v_add_u32 v11, s47, v11")
    a("v_cmp_gt_u32 vcc, 6, v8")
    a("s_nop 1")
    a("v_cndmask_b32 v177, v12, v11, vcc")

    def touch4(t0):
        return [f"s_mov_b32 s46, {t0 * 128}",
                f"s_mov_b32 s47, {t0 * 393216}",
                f"buffer_load_dword v178, v176, {S(SX)}, s46 offen",
                f"buffer_load_dword v179, v177, {S(SW)}, s47 offen"]

    sched = {}
    schedn = {}
    if "tall" in OPT:
        for i, t0 in enumerate((2, 6, 10, 14)):
            schedn[i] = touch4(t0)
    elif "tall2" in OPT:
        for x in touch4(2):
            a(x)
        for i, t0 in enumerate((6, 10, 14)):
            schedn[2 * i] = touch4(t0)
    else:
        for x in touch4(2):
            a(x)
    ltk = a.newlabel("notok")
    a("s_cmp_lg_u32 s32, 0")
    a(f"s_cbranch_scc1 {ltk}")
    emit_token(a, 180)
    a.label(ltk)
    for o in OPT:
        if o.startswith("td"):
            TD = int(o[2:])
    for t0 in (6, 10, 14):
        if "notouch" not in OPT and "tall" not in OPT and "tall2" not in OPT:
            sched.setdefault(max(0, t0 - TD), []).extend(touch4(t0))
    a("s_and_b32 s44, s32, 1")
    a("s_lshr_b32 s45, s32, 1")
    a("v_and_b32 v8, 31, v0")
    a("v_lshrrev_b32 v9, 5, v0")
    a("v_lshrrev_b32 v10, 1, v8")
    a("v_and_b32 v10, 7, v10")
    a("v_lshlrev_b32 v11, 7, v8")
    a("s_lshl_b32 s46, s44, 13")
    a("v_add_u32 v11, s46, v11")
    for ks in range(4):
        a(f"v_add_u32 v12, {2 * ks}, v9")
        a("v_xor_b32 v12, v12, v10")
        a(f"v_lshl_add_u32 v{XA + ks}, v12, 4, v11")
    a("v_and_b32 v10, 15, v0")
    a("v_lshrrev_b32 v11, 4, v0")
    a("v_lshrrev_b32 v12, 2, v10")
    a("v_lshl_add_u32 v12, v9, 3, v12")
    a("v_mul_u32_u24 v12, 384, v12")
    a("v_lshrrev_b32 v13, 3, v10")
    a("v_xor_b32 v13, s45, v13")
    a("v_lshl_add_u32 v12, v13, 6, v12")
    a("v_and_b32 v13, 1, v11")
    a("v_lshl_add_u32 v12, v13, 5, v12")
    a("v_and_b32 v13, 3, v10")
    a("v_lshl_add_u32 v12, v13, 3, v12")
    a(f"v_add_u32 v{WB}, 0x10000, v12")
    a(f"v_add_u32 v{WB + 1}, 0x1c000, v12")

    def reads(t, ks, buf):
        st = (t + 1) & 3
        f = FR[buf]
        xa = XA + ks
        wb = WB + (st >> 1)
        wo = (st & 1) * 24576 + 16 * ks * 384
        return [f"ds_read_b128 {vr(f, 4)}, v{xa} offset:{st * 16384}",
                f"ds_read_b64_tr_b16 {vr(f + 8, 2)}, v{wb} offset:{wo}",
                f"ds_read_b64_tr_b16 {vr(f + 10, 2)}, v{wb} offset:{wo + 4 * 384}",
                f"ds_read_b128 {vr(f + 4, 4)}, v{xa} offset:{st * 16384 + 4096}",
                f"ds_read_b64_tr_b16 {vr(f + 12, 2)}, v{wb} offset:{wo + 128}",
                f"ds_read_b64_tr_b16 {vr(f + 14, 2)}, v{wb} offset:{wo + 128 + 4 * 384}",
                f"ds_read_b64_tr_b16 {vr(f + 16, 2)}, v{wb} offset:{wo + 256}",
                f"ds_read_b64_tr_b16 {vr(f + 18, 2)}, v{wb} offset:{wo + 256 + 4 * 384}"]

    def mfmas(buf, first):
        f = FR[buf]
        X = [vr(f, 4), vr(f + 4, 4)]
        W = [vr(f + 8, 4), vr(f + 12, 4), vr(f + 16, 4)]
        out = []
        for part in range(3):
            for rt in range(2):
                d = vr(ACC + 16 * (2 * part + rt), 16)
                c = "0" if first else d
                if part < 2:
                    out.append(f"v_mfma_f32_32x32x16_bf16 {d}, {W[part]}, {X[rt]}, {c}")
                else:
                    out.append(f"v_mfma_f32_32x32x16_bf16 {d}, {X[rt]}, {W[part]}, {c}")
        return out

    a("s_barrier")
    for r in reads(0, 0, 0) + reads(0, 1, 1):
        a(r)
    for n in range(64):
        t, ks = n >> 2, n & 3
        m = mfmas(n % 3, n == 0)
        n2 = n + 2
        r = reads(n2 >> 2, n2 & 3, n2 % 3) if n2 < 64 else []
        tch = (sched.get(t, []) if ks == 0 else []) + schedn.get(n, [])
        if n == 44:
            tch = tch + ["v_mov_b32 v188, 0", f"buffer_load_dwordx2 v[186:187], v188, {S(SDBG)}, 0 offen{SC}"]
        if n == 60:
            tch = tch + ["s_waitcnt vmcnt(0)"]
        if ks == 2 and t < 15:
            a("s_waitcnt lgkmcnt(0)")
            a(m[0])
            a("s_barrier")
        else:
            a(f"s_waitcnt lgkmcnt({8 if n < 63 else 0})")
            a(m[0])
        ri = 0
        for i, mm in enumerate(m[1:]):
            for _ in range(2):
                if ri < len(r):
                    a(r[ri]); ri += 1
            if i == 4:
                for x in tch:
                    a(x)
            a(mm)
    ts.stamp(a, 1)
    QC = 224
    a("s_lshl_b32 s46, s34, 1")
    a("s_add_u32 s46, s46, s45")
    a("s_lshl_b32 s46, s46, 6")
    a("s_lshl_b32 s47, s33, 2")
    a("s_add_u32 s46, s46, s47")
    a("s_lshl_b32 s47, s44, 1")
    a("s_add_u32 s46, s46, s47")
    a("s_lshl_b32 s46, s46, 11")
    a(f"s_add_u32 s47, s46, 0x{WS_KF:x}")
    a(f"s_add_u32 s48, s46, 0x{WS_VF:x}")
    a("v_lshlrev_b32 v1, 4, v0")
    a("s_lshl_b32 s80, s45, 14")
    a("s_lshl_b32 s81, s44, 12")
    a("s_add_u32 s80, s80, s81")
    a("v_add_u32 v7, s80, v1")
    a("s_lshl_b32 s80, s32, 11")
    a("v_add_u32 v8, s80, v1")
    a("s_nop 3")
    for part in (1, 2, 0):
        for rt in range(2):
            b = ACC + 16 * (2 * part + rt)
            d = QC if (part == 0 and rt == 0) else b
            for j in range(8):
                a(f"v_cvt_pk_bf16_f32 v{d + j}, v{b + 2 * j}, v{b + 2 * j + 1}")
            for step in range(2):
                if part:
                    a(f"buffer_store_dwordx4 {vr(d + 4 * step, 4)}, v1, {S(SWS)}, s{46 + part} offen offset:{rt * 2048 + step * 1024}{SC}")
                    a(f"ds_write_b128 v7, {vr(d + 4 * step, 4)} offset:{L_OKV + (part - 1) * 8192 + rt * 2048 + step * 1024}")
                elif rt == 1:
                    a(f"ds_write_b128 v8, {vr(d + 4 * step, 4)} offset:{L_QH + step * 1024}")
    a("v_readfirstlane_b32 s78, v186")
    a("v_readfirstlane_b32 s79, v187")
    lok = a.newlabel("tokok")
    a("s_nop 1")
    a("s_cmp_lg_u64 s[78:79], 0")
    a(f"s_cbranch_scc1 {lok}")
    emit_token_read(a, 186)
    a.label(lok)
    a("s_lshl_b32 s40, s44, 1")
    a("s_mov_b32 s41, s45")
    a("s_waitcnt lgkmcnt(0)")
    a("s_branch L_POST")

    a.label("L_H")
    a("s_setprio 3")
    a("s_sub_u32 s44, s32, 4")
    XO, WO = 2, 6
    a("v_lshrrev_b32 v12, 3, v0")
    a("v_and_b32 v13, 7, v0")
    a("s_lshl_b32 s45, s33, 7")
    a("s_lshl_b32 s46, s44, 5")
    a("s_add_u32 s45, s45, s46")
    a("v_lshrrev_b32 v14, 4, v0")
    a("v_xor_b32 v14, v14, v13")
    a("v_add_u32 v15, s45, v12")
    a("v_lshlrev_b32 v15, 11, v15")
    a(f"v_lshl_add_u32 v{XO}, v14, 4, v15")
    a(f"v_xor_b32 v{XO + 1}, 64, v{XO}")
    a(f"v_add_u32 v{XO + 1}, {16384 - 1024}, v{XO + 1}")
    a(f"v_add_u32 v{XO + 2}, {2 * (16384 - 1024)}, v{XO}")
    a(f"v_add_u32 v{XO + 3}, {2 * (16384 - 1024)}, v{XO + 1}")
    a("s_lshl_b32 s45, s44, 12")

    def issue_x(t):
        st = (t + 1) & 3
        a(f"s_add_u32 m0, s45, {st * 16384}")
        a(f"s_mov_b32 s47, {t * 128}")
        for i in range(4):
            a(f"buffer_load_dwordx4 v{XO + i}, {S(SX)}, s47 offen offset:{1024 * i} lds")

    def issue_w(t):
        st = (t + 1) & 3
        a(f"s_add_u32 m0, s46, {st * 24576}")
        a(f"s_mov_b32 s47, {t * 393216}")
        for i in range(4):
            a(f"buffer_load_dwordx4 v{WO + i}, {S(SW)}, s47 offen offset:{1024 * i} lds")
        a(f"s_add_u32 m0, s46, {st * 24576 + 4096}")
        a("s_nop 0")
        for i in range(4, 6):
            a(f"buffer_load_dwordx4 v{WO + i}, {S(SW)}, s47 offen offset:{1024 * (i - 4)} lds")

    def issue(t):
        issue_x(t)
        issue_w(t)

    issue_x(0)
    a("s_mul_i32 s48, s44, 98304")
    a("s_lshl_b32 s46, s34, 7")
    a("s_add_u32 s48, s48, s46")
    for i in range(6):
        if i:
            a(f"v_add_u32 v14, {64 * i}, v0")
        src = "v14" if i else "v0"
        a(f"v_mul_u32_u24 v15, 2731, {src}")
        a("v_lshrrev_b32 v15, 16, v15")
        a("v_mul_u32_u24 v16, 24, v15")
        a(f"v_sub_u32 v16, {src}, v16")
        a("v_bfe_u32 v18, v15, 1, 1")
        a("v_lshlrev_b32 v18, 2, v18")
        a("v_xor_b32 v16, v16, v18")
        a("v_lshrrev_b32 v18, 3, v16")
        a("v_and_b32 v16, 7, v16")
        a("v_mul_u32_u24 v15, 6144, v15")
        a("v_lshl_add_u32 v15, v18, 11, v15")
        a("v_lshl_add_u32 v15, v16, 4, v15")
        il = i if i < 4 else i - 4
        if il:
            a(f"s_sub_u32 s49, s48, {1024 * il}")
            a(f"v_add_u32 v{WO + i}, s49, v15")
        else:
            a(f"v_add_u32 v{WO + i}, s48, v15")
    a("s_mul_i32 s46, s44, 6144")
    a("s_add_u32 s46, s46, 0x10000")
    issue_w(0)
    issue(1)
    order = ["T0", "T1"]
    p_setup, p_loads, p_comp, p_stores = p1_lists()
    for x in p_setup:
        a(x)

    def wait_tile(b):
        last = max(i for i, x in enumerate(order) if x == f"T{b}")
        n = sum(10 if x.startswith("T") else 1 for x in order[last + 1:])
        a(f"s_waitcnt vmcnt({n})")

    wait_tile(0)
    a("s_barrier")
    issue(2); order.append("T2")
    issue(3); order.append("T3")
    PL0, PLN = 1, 6
    for o in OPT:
        if o.startswith("pl"):
            PL0, PLN = int(o[2]), int(o[3:])
    pl, pc = list(p_loads), list(p_comp)
    last_pl_b = PL0 + (len(p_loads) + PLN - 1) // PLN - 1
    PC0 = last_pl_b + 4
    PSB = 10
    assert PC0 < PSB
    per = (len(pc) + (PSB - PC0) - 1) // (PSB - PC0)
    HL, UL = 176, 208
    a("s_lshl_b32 s55, s84, 2")
    a("s_add_u32 s55, s55, s44")
    a("s_lshl_b32 s55, s55, 12")
    a("v_lshlrev_b32 v1, 4, v0")
    a("v_mov_b32 v174, 0")
    hloads = []
    for k in range(4):
        hloads.append(f"buffer_load_dwordx4 {vr(HL + 8 * k, 4)}, v1, {S(SHK)}, s55 offen offset:{1024 * k}")
        hloads.append(f"buffer_load_dwordx2 {vr(HL + 8 * k + 4, 2)}, v1, {S(SHK)}, s55 offen offset:{1024 * k + 16}")
    for b in range(1, 16):
        wait_tile(b)
        a("s_barrier")
        if b == PSB:
            assert not pc
            for x in p_stores:
                a(x)
                if x.startswith("buffer"):
                    order.append("P")
            a(f"buffer_load_dwordx2 v[172:173], v174, {S(SDBG)}, 0 offen{SC}")
            order.append("P")
        if b + 3 <= 15:
            issue(b + 3); order.append(f"T{b + 3}")
        if b >= PL0:
            for x in pl[:PLN]:
                a(x); order.append("P")
            pl = pl[PLN:]
        if b == 12:
            for x in hloads:
                a(x); order.append("P")
        if PC0 <= b < PSB:
            for x in pc[:per]:
                a(x)
            pc = pc[per:]
        if b == PSB + 3:
            a("v_readfirstlane_b32 s78, v172")
            a("v_readfirstlane_b32 s79, v173")
            lok = a.newlabel("tokok")
            a("s_nop 1")
            a("s_cmp_lg_u64 s[78:79], 0")
            a(f"s_cbranch_scc1 {lok}")
            emit_token_read(a, 172)
            a.label(lok)
            lpb = a.newlabel("nopub")
            a("s_cmp_lg_u32 s44, 0")
            a(f"s_cbranch_scc1 {lpb}")
            emit_publish(a, FL_UR, 168)
            a.label(lpb)
    assert not pl
    ts.stamp(a, 1)
    a("v_and_b32 v12, 31, v0")
    a("v_lshlrev_b32 v12, 3, v12")
    a("v_add_u32 v12, s3, v12")
    a("v_lshlrev_b32 v12, 7, v12")
    a(f"v_add_u32 v12, 0x{WS_FL + FL_UR * 32768:x}, v12")
    emit_poll(a, 12, 32, 8)
    a(f"s_add_u32 s80, s55, 0x{WS_UR:x}")
    for k in range(4):
        a(f"buffer_load_dwordx4 {vr(UL + 4 * k, 4)}, v1, {S(SWS)}, s80 offen offset:{1024 * k}{SC}")

    def build_region():
        ET = 16
        a("s_and_b32 s80, s44, 1")
        a(f"s_mul_i32 s80, s80, {CW}")
        a(f"s_add_u32 s80, s80, {L_R0}")
        for k in range(4):
            D = HL + 8 * k
            e1, e2, e3 = ET + 12 * k, ET + 12 * k + 4, ET + 12 * k + 8
            for i in range(4):
                a(f"v_alignbit_b32 v{e1 + i}, v{D + i + 1}, v{D + i}, 16")
            for i in range(4):
                a(f"v_mov_b32 v{e2 + i}, v{D + i + 1}")
            for i in range(4):
                a(f"v_alignbit_b32 v{e3 + i}, v{D + i + 2}, v{D + i + 1}, 16")
        a("v_add_u32 v7, s80, v1")
        for i in range(4):
            a(f"v_mov_b32 v{8 + i}, 0")
        a("v_lshlrev_b32 v64, 3, v0")
        a("v_add_u32 v64, s80, v64")
        a("v_and_b32 v65, 3, v0")
        a(f"v_mul_u32_u24 v65, {CPY}, v65")
        a("v_bfe_u32 v66, v0, 2, 1")
        a("v_lshl_add_u32 v65, v66, 4, v65")
        a("v_add_u32 v65, s80, v65")
        a("v_mov_b32 v66, s80")
        a(f"v_lshlrev_b32 v67, 16, v{HL}")
        a(f"ds_write_b64 v64, v[8:9] offset:{URO + 4096}")
        a("ds_write_b128 v65, v[8:11]")
        for k in range(4):
            D = HL + 8 * k
            e1, e2, e3 = ET + 12 * k, ET + 12 * k + 4, ET + 12 * k + 8
            a(f"ds_write_b128 v7, {vr(D, 4)} offset:{32 + 1024 * k}")
            a(f"ds_write_b128 v7, {vr(e1, 4)} offset:{32 + 1024 * k + CPY}")
            a(f"ds_write_b128 v7, {vr(e2, 4)} offset:{32 + 1024 * k + 2 * CPY}")
            a(f"ds_write_b128 v7, {vr(e3, 4)} offset:{32 + 1024 * k + 3 * CPY}")
            if k == 1:
                a("s_waitcnt lgkmcnt(4)")
        a("s_mov_b64 exec, 1")
        a(f"ds_write_b32 v66, v67 offset:{CPY + 28}")
        a(f"ds_write_b32 v66, v{HL} offset:{2 * CPY + 28}")
        a(f"ds_write_b32 v66, v67 offset:{3 * CPY + 24}")
        a(f"ds_write_b32 v66, v{ET} offset:{3 * CPY + 28}")
        a("s_mov_b64 exec, -1")
        a("s_waitcnt vmcnt(0) lgkmcnt(4)")
        for k in range(4):
            a(f"ds_write_b128 v7, {vr(UL + 4 * k, 4)} offset:{URO + 1024 * k}")
        a("s_waitcnt lgkmcnt(0)")

    lnb = a.newlabel("nobuild")
    a("s_cmp_ge_u32 s44, 2")
    a(f"s_cbranch_scc1 {lnb}")
    build_region()
    a.label(lnb)
    a("s_lshl_b32 s80, s35, 2")
    a("s_add_u32 s80, s80, s44")
    a("s_lshl_b32 s80, s80, 6")
    a("v_add_u32 v12, s80, v0")
    a("v_lshrrev_b32 v13, 3, v12")
    a("v_lshlrev_b32 v13, 11, v13")
    a("v_and_b32 v14, 7, v12")
    a("v_lshl_add_u32 v13, v14, 7, v13")
    a("s_lshr_b32 s80, s3, 2")
    a("s_lshl_b32 s80, s80, 10")
    a(f"buffer_load_dword v240, v13, {S(SWO)}, s80 offen")
    a("v_lshrrev_b32 v13, 2, v12")
    a("v_lshlrev_b32 v13, 11, v13")
    a("v_bfe_u32 v14, v12, 1, 1")
    a("v_lshl_add_u32 v13, v14, 7, v13")
    a("s_lshl_b32 s80, s3, 8")
    a(f"buffer_load_dword v241, v13, {S(SQ)}, s80 offen")
    a("s_and_b32 s40, s44, 1")
    a("s_lshl_b32 s40, s40, 1")
    a("s_add_u32 s40, s40, 1")
    a("s_lshr_b32 s41, s44, 1")
    a("s_setprio 0")
    a("s_waitcnt lgkmcnt(0)")

    a.label("L_POST")
    VAB, VBB, VEB, VSO = 3, 4, 5, 6
    PK = 144
    AF, PF = 156, 24
    SETS = [[7, 0], [6, 1], [5, 2], [4, 3]]
    KVJ, KLJ, OLJ = 2, 5, 5
    for o in OPT:
        if o.startswith("hk"):
            KVJ, KLJ, OLJ = int(o[2]), int(o[3]), int(o[4])
    a("s_and_b32 s86, s32, 1")
    a(f"s_mul_i32 s46, s86, {CW}")
    a(f"s_add_u32 s46, s46, {L_R0}")
    emit_conv_addr(a, VAB, VBB, VEB, VSO)
    a("s_and_b32 s87, s3, 1")
    a("s_lshl_b32 s87, s87, 1")
    a("s_bfe_u32 s80, s3, 0x10001")
    a("s_add_u32 s87, s87, s80")
    a("s_lshl_b32 s87, s87, 2")
    a("s_and_b32 s80, s35, 3")
    a("s_add_u32 s87, s87, s80")
    a("s_lshr_b32 s88, s3, 2")
    a("s_lshl_b32 s88, s88, 3")
    a("s_lshr_b32 s80, s35, 2")
    a("s_add_u32 s88, s88, s80")

    def conv_params(phase):
        a(f"s_add_u32 s80, s86, {2 * phase}")
        a("s_lshl_b32 s47, s84, 2")
        a("s_add_u32 s47, s47, s80")
        a("s_lshl_b32 s47, s47, 12")
        a(f"s_add_u32 s47, s47, 0x{WS_Y2:x}")
        a("s_lshl_b32 s80, s80, 4")
        a("s_lshr_b64 s[38:39], s[76:77], s80")
        a("s_lshl_b32 s38, s38, 16")

    def hook_kvpub_m():
        a("s_waitcnt vmcnt(0)")
        a("s_barrier")

    def hook_kvpub_h():
        a("s_barrier")
        l = a.newlabel("nopub")
        a("s_cmp_lg_u32 s32, 4")
        a(f"s_cbranch_scc1 {l}")
        emit_publish(a, FL_KV, PK)
        a.label(l)

    def hook_kvload():
        a(f"v_and_b32 v{PK + 4}, 1, v0")
        a(f"v_sub_u32 v{PK + 4}, s33, v{PK + 4}")
        a(f"v_subrev_u32 v{PK + 4}, 1, v{PK + 4}")
        a(f"v_max_i32 v{PK + 4}, 0, v{PK + 4}")
        a(f"v_mov_b32 v{PK + 5}, s34")
        emit_wg_of(a, PK + 6, PK + 4, PK + 5, PK + 7)
        a(f"v_add_u32 v{PK + 6}, 0x{WS_FL + FL_KV * 32768:x}, v{PK + 6}")
        emit_poll(a, PK + 6, 2, PK + 8)
        a("s_lshr_b32 s80, s32, 2")
        a("s_lshl_b32 s81, s34, 1")
        a("s_add_u32 s80, s80, s81")
        a("s_lshl_b32 s80, s80, 4")
        a("s_add_u32 s80, s80, s33")
        a("s_add_u32 s80, s80, s86")
        a("s_lshl_b32 s80, s80, 13")
        a("s_bfe_u32 s81, s32, 0x10001")
        a("s_lshl_b32 s81, s81, 22")
        a("s_add_u32 s80, s80, s81")
        a(f"s_add_u32 s80, s80, 0x{WS_KF - 16384:x}")
        a("s_add_u32 s81, s33, s86")
        a("s_cmp_lt_u32 s81, 2")
        a("s_cselect_b32 s81, 0x80000000, 0")
        a("v_add_u32 v7, s81, v1")
        for i in range(8):
            if i == 4:
                a("s_add_u32 s80, s80, 4096")
            a(f"buffer_load_dwordx4 {vr(PK + 4 * i, 4)}, v7, {S(SWS)}, s80 offen offset:{(i & 3) * 1024}{SC}")

    def aload(ks):
        out = []
        if ks % 4 == 0 and ks > 0:
            out.append("s_add_u32 s45, s45, 4096")
        out.append(f"buffer_load_dwordx4 {vr(AF + 4 * (ks % PF), 4)}, v1, {S(SWS)}, s45 offen offset:{(ks & 3) * 1024}{SC}")
        return out

    def hook_oload():
        a(f"v_mov_b32 v{PK}, s87")
        a(f"v_and_b32 v{PK + 1}, 15, v0")
        emit_wg_of(a, PK + 2, PK, PK + 1, PK + 3)
        a(f"v_add_u32 v{PK + 2}, 0x{WS_FL + FL_O * 32768:x}, v{PK + 2}")
        a("s_lshl_b32 s44, s87, 2")
        a("s_add_u32 s44, s44, s32")
        a("s_lshl_b32 s45, s44, 16")
        a(f"s_add_u32 s45, s45, 0x{WS_OF:x}")
        emit_poll(a, PK + 2, 16, PK + 4)
        for ks in range(PF):
            for x in aload(ks):
                a(x)

    def conv_phase(phase):
        done = a.newlabel("cdone")
        labs = [a.newlabel("cset") for _ in range(4)]
        a("s_lshr_b32 s80, s32, 1")
        for i in range(1, 4):
            a(f"s_cmp_eq_u32 s80, {i}")
            a(f"s_cbranch_scc1 {labs[i]}")
        for i in range(4):
            a.label(labs[i])
            if phase == 0:
                hooks = {KVJ: hook_kvpub_m if i < 2 else hook_kvpub_h, KLJ: hook_kvload}
            else:
                hooks = {OLJ: hook_oload} if i < 2 else {}
            emit_conv_main(a, SETS[i], 8, [16, 80], VAB, VBB, VEB, VSO, hooks=hooks)
            if i < 3:
                a(f"s_branch {done}")
        a.label(done)

    conv_params(0)
    a("s_barrier")
    ts.stamp(a, 2)
    conv_phase(0)
    ts.stamp(a, 3)
    a("s_lshr_b32 s80, s32, 1")
    a(f"s_mul_i32 s81, s80, 16384")
    a(f"s_add_u32 s81, s81, {L_PKB[1] - 16384}")
    a("s_cmp_eq_u32 s80, 0")
    a("s_cselect_b32 s81, 0, s81")
    a("s_lshl_b32 s80, s86, 13")
    a("s_add_u32 s81, s81, s80")
    a("v_add_u32 v7, s81, v1")
    a("s_waitcnt vmcnt(0)")
    for i in range(8):
        a(f"ds_write_b128 v7, {vr(PK + 4 * i, 4)} offset:{i * 1024}")
    lq = a.newlabel("noq")
    a("s_cmp_lt_u32 s32, 4")
    a(f"s_cbranch_scc1 {lq}")
    a("s_lshl_b32 s80, s32, 11")
    a("v_add_u32 v7, s80, v1")
    a(f"ds_read_b128 {vr(QC, 4)}, v7 offset:{L_QH - 8192}")
    a(f"ds_read_b128 {vr(QC + 4, 4)}, v7 offset:{L_QH - 8192 + 1024}")
    a.label(lq)
    a("s_waitcnt lgkmcnt(0)")
    a("s_barrier")
    ts.stamp(a, 4)
    lnb = a.newlabel("nobuild")
    a("s_cmp_lt_u32 s32, 6")
    a(f"s_cbranch_scc1 {lnb}")
    build_region()
    a.label(lnb)
    fills = []
    body = emit_attention(a, ts, QC, fills)
    ts.stamp(a, 5)
    body()
    ts.stamp(a, 6)
    a(f"s_mul_i32 s46, s86, {CW}")
    a(f"s_add_u32 s46, s46, {L_R0}")
    emit_conv_addr(a, VAB, VBB, VEB, VSO)
    conv_params(1)
    a("v_lshrrev_b32 v12, 3, v0")
    a("v_and_b32 v13, 7, v0")
    a("v_bfe_u32 v14, v0, 4, 1")
    a("v_lshlrev_b32 v14, 2, v14")
    a("v_xor_b32 v14, v14, v13")
    a("v_lshlrev_b32 v250, 11, v12")
    a("v_lshl_add_u32 v250, v14, 4, v250")
    a("s_lshl_b32 s45, s88, 7")
    a("v_add_u32 v250, s45, v250")
    a("s_waitcnt vmcnt(0)")
    a("s_barrier")
    ts.stamp(a, 7)
    lw = a.newlabel("nowo")
    a("s_cmp_lt_u32 s32, 4")
    a(f"s_cbranch_scc1 {lw}")
    a("s_sub_u32 s44, s32, 4")
    lpb = a.newlabel("nopub")
    a("s_cmp_lg_u32 s44, 0")
    a(f"s_cbranch_scc1 {lpb}")
    emit_publish(a, FL_O, 8)
    a.label(lpb)
    a("s_lshl_b32 s48, s44, 12")
    a("s_lshl_b32 s49, s44, 16")

    def wo_portion(p):
        a(f"s_add_u32 m0, s48, {p * 16384}")
        for i in range(4):
            a(f"s_add_u32 s80, s49, {p * 16 * 16384 + i * (16384 - 1024)}")
            a(f"buffer_load_dwordx4 v250, {S(SWO)}, s80 offen offset:{1024 * i} lds")

    for p in range(7):
        wo_portion(p)
    a.label(lw)
    conv_phase(1)
    ts.stamp(a, 8)
    a("s_cmp_ge_u32 s32, 4")
    a("s_cbranch_scc1 L_H2")

    BF = [16, 24, 32]
    AC2 = 40
    a("v_and_b32 v8, 15, v0")
    a("v_lshrrev_b32 v9, 4, v0")
    a("v_lshrrev_b32 v10, 5, v0")
    a("v_lshrrev_b32 v11, 2, v8")
    a("v_lshl_add_u32 v11, v10, 2, v11")
    a("v_lshlrev_b32 v11, 7, v11")
    a("v_and_b32 v12, 1, v9")
    a("v_lshl_add_u32 v11, v12, 5, v11")
    a("v_and_b32 v12, 3, v8")
    a("v_lshl_add_u32 v11, v12, 3, v11")
    a("v_lshrrev_b32 v12, 3, v8")
    a("v_lshl_add_u32 v4, v12, 6, v11")
    a("v_xor_b32 v12, 1, v12")
    a("v_lshl_add_u32 v5, v12, 6, v11")
    a("v_add_u32 v6, 0x10000, v4")
    a("v_add_u32 v7, 0x10000, v5")

    def breads(ks, buf):
        f = BF[buf]
        hi = ks >= 32
        o = (ks - 32 * hi) * 16 * 128
        out = []
        for ct in range(2):
            va = 4 + ct + 2 * hi
            out.append(f"ds_read_b64_tr_b16 {vr(f + 4 * ct, 2)}, v{va} offset:{o}")
            out.append(f"ds_read_b64_tr_b16 {vr(f + 4 * ct + 2, 2)}, v{va} offset:{o + 1024}")
        return out

    a("s_waitcnt vmcnt(0)")
    a("s_barrier")
    for x in breads(0, 0) + breads(1, 1):
        a(x)
    for ks in range(64):
        f = BF[ks % 3]
        nload = min(63, ks + PF - 1) - max(ks, PF - 1)
        a(f"s_waitcnt vmcnt({min(nload, min(63, ks + PF - 1) - ks)}) lgkmcnt({4 if ks < 63 else 0})")
        af = vr(AF + 4 * (ks % PF), 4)
        nxt = breads(ks + 2, (ks + 2) % 3) if ks + 2 < 64 else []
        d0, d1 = vr(AC2, 16), vr(AC2 + 16, 16)
        a(f"v_mfma_f32_32x32x16_bf16 {d0}, {vr(f, 4)}, {af}, {'0' if ks == 0 else d0}")
        if ks == 54:
            a("s_barrier")
        for x in nxt:
            a(x)
        a(f"v_mfma_f32_32x32x16_bf16 {d1}, {vr(f + 4, 4)}, {af}, {'0' if ks == 0 else d1}")
        if ks + PF < 64:
            for x in aload(ks + PF):
                a(x)
    ts.stamp(a, 9)
    a("v_and_b32 v8, 31, v0")
    a("s_lshl_b32 s46, s44, 5")
    a("v_add_u32 v8, s46, v8")
    a("v_lshlrev_b32 v8, 12, v8")
    a("v_lshl_add_u32 v8, v10, 4, v8")
    a("s_lshl_b32 s46, s88, 7")
    a("s_add_u32 s46, s46, 2048")
    a("s_nop 7")
    for ct in range(2):
        b = AC2 + 16 * ct
        for j in range(8):
            a(f"v_cvt_pk_bf16_f32 v{b + j}, v{b + 2 * j}, v{b + 2 * j + 1}")
        a("s_nop 1")
        for jj in range(2):
            a(f"v_permlane32_swap_b32 v{b + 4 * jj}, v{b + 4 * jj + 2}")
            a(f"v_permlane32_swap_b32 v{b + 4 * jj + 1}, v{b + 4 * jj + 3}")
        for jj in range(2):
            a(f"buffer_store_dwordx4 {vr(b + 4 * jj, 4)}, v8, {S(SOUT)}, s46 offen offset:{ct * 64 + jj * 32}")
    ts.final(a, 10)
    a("s_endpgm")

    a.label("L_H2")
    a("s_setprio 3")
    a("s_waitcnt vmcnt(0)")
    a("s_barrier")
    wo_portion(7)
    lpb = a.newlabel("nopub")
    a("s_cmp_lg_u32 s44, 0")
    a(f"s_cbranch_scc1 {lpb}")
    emit_publish(a, FL_Y2, 8)
    a.label(lpb)
    YY, QQ, OO = 16, 32, 48
    a("v_lshrrev_b32 v12, 3, v0")
    a("v_and_b32 v13, 7, v0")
    a("s_lshl_b32 s48, s35, 6")
    a("s_lshl_b32 s49, s3, 2")
    a("s_add_u32 s49, s49, s44")
    a("s_lshl_b32 s49, s49, 5")
    a("v_lshlrev_b32 v4, 3, v12")
    a("v_add_u32 v4, s48, v4")
    a("v_lshlrev_b32 v5, 2, v13")
    a("v_add_u32 v5, s49, v5")
    a("v_lshlrev_b32 v6, 12, v5")
    a("v_lshl_add_u32 v6, v4, 1, v6")
    a("v_lshlrev_b32 v7, 11, v4")
    a("v_lshl_add_u32 v7, v5, 1, v7")
    a("v_lshlrev_b32 v11, 12, v4")
    a("v_lshl_add_u32 v11, v5, 1, v11")
    for i in range(8):
        a(f"s_mov_b32 s{48 + i}, {4096 * i}")
    for i in range(8):
        a(f"buffer_load_dwordx2 {vr(QQ + 2 * i, 2)}, v7, {S(SQ)}, s{48 + (i >> 1)} offen offset:{(i & 1) * 2048}")
    a("s_waitcnt vmcnt(8)")
    a("s_barrier")
    ts.stamp(a, 9)
    a("v_and_b32 v12, 7, v0")
    a("s_lshl_b32 s45, s44, 3")
    a("v_add_u32 v12, s45, v12")
    a("v_lshlrev_b32 v12, 3, v12")
    a("v_add_u32 v12, s3, v12")
    a("v_lshlrev_b32 v12, 7, v12")
    a(f"v_add_u32 v12, 0x{WS_FL + FL_Y2 * 32768:x}, v12")
    emit_poll(a, 12, 8, 8)
    a(f"s_mov_b32 s45, 0x{WS_Y2:x}")
    for dd in range(4):
        a(f"buffer_load_dwordx4 {vr(YY + 4 * dd, 4)}, v6, {S(SWS)}, s45 offen{SC}")
        if dd < 3:
            a("s_add_u32 s45, s45, 4096")
    a("s_waitcnt vmcnt(0)")
    for i in range(8):
        for dd in range(4):
            ys = YY + 4 * dd + (i >> 1)
            qs = QQ + 2 * i + (dd >> 1)
            a(f"v_and_b32 v9, 0xffff0000, v{ys}" if i & 1 else f"v_lshlrev_b32 v9, 16, v{ys}")
            a(f"v_and_b32 v10, 0xffff0000, v{qs}" if dd & 1 else f"v_lshlrev_b32 v10, 16, v{qs}")
            a(f"v_mul_f32 v{OO + 4 * i + dd}, v9, v10")
        o = OO + 4 * i
        a(f"v_cvt_pk_bf16_f32 v{o}, v{o}, v{o + 1}")
        a(f"v_cvt_pk_bf16_f32 v{o + 1}, v{o + 2}, v{o + 3}")
        a(f"buffer_store_dwordx2 {vr(o, 2)}, v11, {S(SOUT)}, s{48 + i} offen")
    ts.final(a, 10)
    a("s_endpgm")
    for (lf, lb, sreg, vneg) in fills:
        a.label(lf)
        a("s_nop 7")
        for r in range(16):
            a(f"v_mov_b32 v{sreg + r}, v{vneg}")
        a(f"s_branch {lb}")
    a.label("L_end")
    a("s_endpgm")
    return name, 256, 102


def build(instrument=False):
    ts = TS(instrument)
    a = Asm()
    a.raw("; @launch grid=(256,1,1) block=(512,1,1) lds=163840")
    a.raw('.amdgcn_target "amdgcn-amd-amdhsa--gfx950"')
    a.raw(".text")
    n, v, s = gen_fused(a, ts)
    a.raw('.section .rodata,"a"')
    kernel_desc(a, n, v, s)
    return a.text()


if __name__ == "__main__":
    out = sys.argv[1] if len(sys.argv) > 1 else f"cdna_kernels/{NAME}.s"
    open(out, "w").write(build())
```

```python
import sys, struct
from gen import Asm, vr, srd, kernel_begin, kernel_desc, KA, MB, NAME

OPT = set()
WS_KF, WS_VF, WS_UR, WS_OF, WS_Y2, WS_FL = 4 * MB, 8 * MB, 12 * MB, 16 * MB, 20 * MB, 24 * MB
WS_SIZE = 25 * MB
WS_TS = 32 * MB
FL_UR, FL_KV, FL_Y2, FL_O = 0, 1, 2, 3

CW, CPY, URO = 21248, 4160, 16640
L_R0 = 163840 - 2 * CW
L_PKB = [0, 57344, 73728, 90112]
L_OKV = 16384
L_QH = 49152
SC = " sc1"
SPIN_LIMIT = 1 << 16


def f32hex(x):
    return "0x%08x" % struct.unpack("<I", struct.pack("<f", x))[0]


SCALE_LOG2E = (32 ** -0.5) * 1.4426950408889634

SX, SW, SWS, SK, SV, SSH, SHK, SWO, SQ, SOUT, SDBG = 4, 8, 12, 16, 20, 24, 28, 60, 64, 68, 72


def S(n):
    return f"s[{n}:{n + 3}]"


class TS:
    def __init__(self, on):
        self.on = on

    def entry(self, a):
        if self.on:
            a("s_memrealtime s[98:99]")
            a("s_memtime s[100:101]")

    def setup(self, a, ws_pair):
        if not self.on:
            return
        srd(a, 92, ws_pair, 4 * MB, WS_TS)
        a("s_lshl_b32 s96, s2, 4")
        a("s_add_u32 s96, s96, s32")
        a("s_lshl_b32 s96, s96, 8")
        a("v_mov_b32 v254, s98")
        a("v_mov_b32 v255, s99")
        a("v_mov_b32 v253, 0")
        a(f"buffer_store_dwordx2 v[254:255], v253, s[92:95], s96 offen offset:{30 * 8}")

    def stamp(self, a, slot):
        if not self.on:
            return
        a("s_memrealtime s[90:91]")
        a("s_waitcnt lgkmcnt(0)")
        a("v_mov_b32 v254, s90")
        a("v_mov_b32 v255, s91")
        a(f"buffer_store_dwordx2 v[254:255], v253, s[92:95], s96 offen offset:{slot * 8}")

    def final(self, a, slot):
        if not self.on:
            return
        a("s_waitcnt vmcnt(0)")
        self.stamp(a, slot)
        a("s_memtime s[90:91]")
        a("s_waitcnt lgkmcnt(0)")
        a("s_sub_u32 s90, s90, s100")
        a("s_subb_u32 s91, s91, s101")
        a("s_nop 1")
        a("v_mov_b32 v254, s90")
        a("v_mov_b32 v255, s91")
        a(f"buffer_store_dwordx2 v[254:255], v253, s[92:95], s96 offen offset:{31 * 8}")


def emit_poll(a, voff, nlanes, tmp):
    lp = a.newlabel("poll")
    dn = a.newlabel("polld")
    mask = (1 << nlanes) - 1
    a(f"s_mov_b32 s80, 0x{mask & 0xffffffff:x}")
    a(f"s_mov_b32 s81, 0x{mask >> 32:x}")
    a("s_mov_b32 s85, 0")
    a.label(lp)
    a(f"buffer_load_dwordx2 {vr(tmp, 2)}, v{voff}, {S(SWS)}, 0 offen{SC}")
    a("s_waitcnt vmcnt(0)")
    a(f"v_cmp_eq_u64 vcc, s[78:79], {vr(tmp, 2)}")
    a("s_nop 1")
    a("s_and_b64 s[82:83], vcc, s[80:81]")
    a("s_cmp_eq_u64 s[82:83], s[80:81]")
    a(f"s_cbranch_scc1 {dn}")
    a("s_sleep 2")
    a("s_add_u32 s85, s85, 1")
    a(f"s_cmp_lt_u32 s85, 0x{SPIN_LIMIT:x}")
    a(f"s_cbranch_scc1 {lp}")
    a.label(dn)


def emit_publish(a, kind, t0):
    a(f"s_lshl_b32 s80, s2, 7")
    a(f"s_add_u32 s80, s80, 0x{WS_FL + kind * 32768:x}")
    a(f"v_mov_b32 v{t0}, s78")
    a(f"v_mov_b32 v{t0 + 1}, s79")
    a(f"v_mov_b32 v{t0 + 2}, 0")
    a("s_mov_b64 exec, 1")
    a(f"buffer_store_dwordx2 {vr(t0, 2)}, v{t0 + 2}, {S(SWS)}, s80 offen{SC}")
    a("s_mov_b64 exec, -1")


def emit_token(a, t0):
    a("s_memrealtime s[78:79]")
    a("s_waitcnt lgkmcnt(0)")
    a("s_or_b32 s78, s78, 1")
    a(f"v_mov_b32 v{t0}, s78")
    a(f"v_mov_b32 v{t0 + 1}, s79")
    a(f"v_mov_b32 v{t0 + 2}, 0")
    a(f"v_mov_b32 v{t0 + 3}, 0")
    a(f"v_mov_b32 v{t0 + 4}, 0")
    a("s_mov_b64 exec, 1")
    a(f"buffer_atomic_cmpswap_x2 {vr(t0, 4)}, v{t0 + 4}, {S(SDBG)}, 0 offen{SC}")
    a("s_mov_b64 exec, -1")


def emit_token_finish(a, t0):
    a(f"v_readfirstlane_b32 s80, v{t0}")
    a(f"v_readfirstlane_b32 s81, v{t0 + 1}")
    a("s_nop 1")
    a("s_cmp_eq_u64 s[80:81], 0")
    a("s_cselect_b32 s78, s78, s80")
    a("s_cselect_b32 s79, s79, s81")


def p1_lists():
    KK, VV, WR = 32, 56, 72
    KF_, WF_, RS_ = 80, 124, 140
    soffs = ["0", "s51", "s52", "s53"]
    setup, loads, comp, stores = [], [], [], []
    a = setup.append
    a("v_lshrrev_b32 v12, 3, v0")
    a("v_and_b32 v13, 7, v0")
    a("s_lshl_b32 s48, s35, 6")
    a("s_lshl_b32 s49, s3, 2")
    a("s_add_u32 s49, s49, s44")
    a("s_lshl_b32 s49, s49, 5")
    a("v_lshlrev_b32 v20, 3, v12")
    a("v_add_u32 v20, s48, v20")
    a("v_lshlrev_b32 v21, 2, v13")
    a("v_add_u32 v21, s49, v21")
    a("v_lshlrev_b32 v22, 11, v20")
    a("v_lshl_add_u32 v22, v21, 1, v22")
    a("s_mov_b32 s51, 4096")
    a("s_mov_b32 s52, 8192")
    a("s_mov_b32 s53, 12288")
    a("v_subrev_u32 v23, 6144, v22")
    a("v_mov_b32 v24, 0x80000000")
    a("v_cmp_gt_u32 vcc, 3, v20")
    a("v_lshlrev_b32 v25, 12, v21")
    a("v_sub_u32 v26, 2040, v20")
    a("v_cndmask_b32 v23, v23, v24, vcc")
    a("v_lshlrev_b32 v24, 3, v21")
    a("v_lshl_add_u32 v25, v26, 1, v25")
    for i in range(8):
        loads.append(f"buffer_load_dwordx2 {vr(KK + 6 + 2 * i, 2)}, v22, {S(SK)}, {soffs[i >> 1]} offen offset:{(i & 1) * 2048}")
    for i in range(8):
        loads.append(f"buffer_load_dwordx2 {vr(VV + 2 * i, 2)}, v22, {S(SV)}, {soffs[i >> 1]} offen offset:{(i & 1) * 2048}")
    for i in range(3):
        loads.append(f"buffer_load_dwordx2 {vr(KK + 2 * i, 2)}, v23, {S(SK)}, {soffs[i >> 1]} offen offset:{(i & 1) * 2048}")
    loads.append(f"buffer_load_dwordx4 {vr(WR, 4)}, v24, {S(SSH)}, 0 offen")
    loads.append(f"buffer_load_dwordx4 {vr(WR + 4, 4)}, v24, {S(SSH)}, 0 offen offset:16")
    a = comp.append
    for i in range(11):
        for h2 in range(2):
            src = KK + 2 * i + h2
            a(f"v_lshlrev_b32 v{KF_ + 4 * i + 2 * h2}, 16, v{src}")
            a(f"v_and_b32 v{KF_ + 4 * i + 2 * h2 + 1}, 0xffff0000, v{src}")
    for dd in range(4):
        for h2 in range(2):
            src = WR + 2 * dd + h2
            a(f"v_lshlrev_b32 v{WF_ + 4 * dd + 2 * h2}, 16, v{src}")
            a(f"v_and_b32 v{WF_ + 4 * dd + 2 * h2 + 1}, 0xffff0000, v{src}")
    for s_ in range(8):
        for dd in range(4):
            r = RS_ + 4 * s_ + dd
            a(f"v_mul_f32 v{r}, v{KF_ + 4 * (s_ + 3) + dd}, v{WF_ + 4 * dd}")
            for j in range(1, 4):
                a(f"v_fmac_f32 v{r}, v{KF_ + 4 * (s_ + 3 - j) + dd}, v{WF_ + 4 * dd + j}")
            src = VV + 2 * s_ + (dd >> 1)
            if dd & 1:
                a(f"v_and_b32 v28, 0xffff0000, v{src}")
            else:
                a(f"v_lshlrev_b32 v28, 16, v{src}")
            a(f"v_mul_f32 v{r}, v{r}, v28")
    stores.append(f"s_mov_b32 s54, 0x{WS_UR:x}")
    for dd in range(4):
        o = KK + 4 * dd
        for j in range(4):
            a(f"v_cvt_pk_bf16_f32 v{o + j}, v{RS_ + 4 * (7 - 2 * j) + dd}, v{RS_ + 4 * (6 - 2 * j) + dd}")
        stores.append(f"buffer_store_dwordx4 {vr(o, 4)}, v25, {S(SWS)}, s54 offen{SC}")
        if dd < 3:
            stores.append("s_add_u32 s54, s54, 4096")
    return setup, loads, comp, stores


def emit_conv_addr(a, VAB, VBB, VEB, VSO):
    a("v_and_b32 v12, 15, v0")
    a("v_lshrrev_b32 v13, 4, v0")
    a("v_add_u32 v14, 1, v12")
    a("v_and_b32 v15, 3, v14")
    a("v_sub_u32 v14, v14, v15")
    a("v_lshl_add_u32 v14, v13, 3, v14")
    a("v_lshlrev_b32 v14, 1, v14")
    a(f"v_mul_u32_u24 v15, {CPY}, v15")
    a(f"v_add3_u32 v{VAB}, v14, v15, s46")
    a("v_lshlrev_b32 v14, 5, v12")
    a("v_lshlrev_b32 v15, 4, v13")
    a(f"v_sub_u32 v{VBB}, v15, v14")
    a(f"v_add_u32 v{VBB}, {URO + 480}, v{VBB}")
    a(f"v_add_u32 v{VBB}, s46, v{VBB}")
    a("v_lshlrev_b32 v15, 3, v13")
    a(f"v_add_u32 v{VSO}, v14, v15")
    a(f"v_sub_u32 v{VEB}, {URO + 504}, v{VSO}")
    a(f"v_add_u32 v{VEB}, s46, v{VEB}")


def emit_conv_main(a, nts, ACC, FB, VAB, VBB, VEB, VSO, extra=(), hooks=None):
    mx = max(nts)
    nfr = mx + 1

    def creads(j, buf):
        f = FB[buf]
        out = []
        for q in range(nfr):
            o = 64 * j + 512 * q
            out.append(f"ds_read_b64 {vr(f + 4 * q, 2)}, v{VAB} offset:{o}")
            out.append(f"ds_read_b64 {vr(f + 4 * q + 2, 2)}, v{VAB} offset:{o + 8}")
            out.append(f"ds_read_b128 {vr(f + 4 * nfr + 4 * q, 4)}, v{VBB} offset:{512 * (7 - q) + 64 * j}")
        return out

    def cmfmas(j, buf):
        f = FB[buf]
        order = [(q, nt - q) for nt in nts for q in range(nt + 1)]
        order.sort(key=lambda x: (max(x[0], x[1]), x[0] + x[1]))
        seen = set()
        out = []
        for (q, dl) in order:
            nt = q + dl
            d = vr(ACC + 4 * nts.index(nt), 4)
            c = "0" if (j == 0 and nt not in seen) else d
            seen.add(nt)
            out.append(f"v_mfma_f32_16x16x32_bf16 {d}, {vr(f + 4 * q, 4)}, {vr(f + 4 * nfr + 4 * dl, 4)}, {c}")
        return out

    extra = list(extra)
    for i, r in enumerate(creads(0, 0)):
        a(r)
        if i % 12 == 11:
            a("s_waitcnt lgkmcnt(4)")
    for j in range(8):
        m = cmfmas(j, j & 1)
        r = creads(j + 1, (j + 1) & 1) if j < 7 else []
        if hooks and j in hooks:
            hooks[j]()
        a("s_waitcnt lgkmcnt(0)")
        per = -(-len(r) // max(1, len(m) - 2))
        ri = 0
        for i, mm in enumerate(m):
            a(mm)
            for _ in range(per):
                if ri < len(r):
                    a(r[ri]); ri += 1
            if extra and i % 3 == 2:
                a(extra.pop(0))
        assert ri == len(r)
    for x in extra:
        a(x)
    for i, nt in enumerate(nts):
        a(f"ds_read_b64 {vr(FB[0] + 2 * i, 2)}, v{VEB} offset:{512 * (7 - nt)}")
    a("s_nop 7")
    a("s_waitcnt lgkmcnt(0)")
    for i, nt in enumerate(nts):
        k0, k1 = FB[0] + 2 * i, FB[0] + 2 * i + 1
        t = FB[1] + 4 * i
        ac = ACC + 4 * i
        a(f"v_and_b32 v{t}, 0xffff0000, v{k1}")
        a(f"v_lshlrev_b32 v{t + 1}, 16, v{k1}")
        a(f"v_and_b32 v{t + 2}, 0xffff0000, v{k0}")
        a(f"v_lshlrev_b32 v{t + 3}, 16, v{k0}")
        for e in range(4):
            a(f"v_fmac_f32 v{ac + e}, s38, v{t + e}")
        a(f"v_cvt_pk_bf16_f32 v{ac}, v{ac}, v{ac + 1}")
        a(f"v_cvt_pk_bf16_f32 v{ac + 1}, v{ac + 2}, v{ac + 3}")
        a(f"buffer_store_dwordx2 {vr(ac, 2)}, v{VSO}, {S(SWS)}, s47 offen offset:{512 * nt}{SC}")


MASKS = [4, 6, 8, 10, 16, 18, 20, 22, 24, 26, 48, 50, 52, 54, 56, 58]


def emit_attention(a, ts, QC, fills):
    SB = 8
    KV = [88, 96]
    OA = 112
    VM, VM2, VT, VL, VL2, VNEG, VMA = 128, 129, 130, 131, 132, 133, 135
    VAD = 136
    a("v_and_b32 v4, 31, v0")
    a("v_lshrrev_b32 v5, 5, v0")
    a("v_lshlrev_b32 v5, 2, v5")
    a("v_sub_u32 v4, v4, v5")
    for r in range(16):
        a(f"v_cmp_le_i32 s[{MASKS[r]}:{MASKS[r] + 1}], {8 * (r >> 2) + (r & 3)}, v4")
    a(f"v_mov_b32 v{VNEG}, 0xf149f2ca")
    a("v_lshlrev_b32 v2, 4, v0")
    a("s_cmp_eq_u32 s41, 0")
    a(f"s_mov_b32 s42, {L_PKB[2]}")
    a(f"s_cselect_b32 s42, {L_PKB[0]}, s42")
    a(f"s_mov_b32 s80, {L_PKB[3] - L_PKB[2]}")
    a(f"s_cselect_b32 s80, {L_PKB[1] - L_PKB[0]}, s80")
    a("s_lshl_b32 s43, s41, 14")
    a("s_movk_i32 s81, 0x2000")
    for rel in range(9):
        a(f"s_add_u32 s45, s40, {rel}")
        a("s_lshl_b32 s46, s45, 11")
        a("s_add_u32 s47, s46, s42")
        a("s_add_u32 s46, s46, s43")
        a("s_cmp_lt_u32 s45, 8")
        a("s_cselect_b32 s46, s47, s46")
        a("s_cselect_b32 s47, s80, s81")
        a(f"v_add_u32 v{VAD + rel}, s46, v2")
        a(f"v_add_u32 v{VAD + 9 + rel}, s47, v{VAD + rel}")
    a("s_lshl_b32 s45, s33, 2")
    a("s_add_u32 s45, s45, s40")
    a("s_sub_u32 s46, 8, s45")
    a("s_cmp_lt_u32 s45, 8")
    a("s_cselect_b32 s46, s46, 0")
    a("s_lshl_b32 s47, s45, 5")
    a("s_lshl_b32 s42, s34, 1")
    a("s_add_u32 s47, s47, s42")
    a("s_add_u32 s47, s47, s41")
    a("s_lshl_b32 s47, s47, 11")
    a(f"s_add_u32 s47, s47, 0x{WS_OF:x}")
    a(f"s_mov_b32 s42, {f32hex(SCALE_LOG2E)}")
    a("s_mov_b32 s43, 0x3f803f80")
    a(f"v_mov_b32 v{VL}, 0")
    a(f"v_mov_b32 v{VL2}, 0")

    def kvread(rel, buf, isv):
        ad = VAD + rel + (9 if isv else 0)
        return [f"ds_read_b128 {vr(KV[buf], 4)}, v{ad}",
                f"ds_read_b128 {vr(KV[buf] + 4, 4)}, v{ad} offset:1024"]

    def maxops(rel, slot, first):
        s = SB + 16 * slot
        out = []
        if rel == 0:
            for r in range(16):
                out.append(f"v_cndmask_b32 v{s + r}, v{s + r}, v{VNEG}, s[{MASKS[r]}:{MASKS[r] + 1}]")
        if rel == 8:
            for r in range(16):
                out.append(f"v_cndmask_b32 v{s + r}, v{VNEG}, v{s + r}, s[{MASKS[r]}:{MASKS[r] + 1}]")
        for i in range(8):
            acc = (VM, VM2)[i & 1]
            if first and i < 2:
                out.append(f"v_max_f32 v{acc}, v{s + 2 * i}, v{s + 2 * i + 1}")
            else:
                out.append(f"v_max3_f32 v{acc}, v{s + 2 * i}, v{s + 2 * i + 1}, v{acc}")
        return out

    return_after_setup = []

    def body():
        nb = 0
        groups = [list(range(0, 5)), list(range(5, 9))]
        for x in kvread(0, 0, False):
            a(x)
        for gi, grp in enumerate(groups):
            n = len(grp)
            for idx, rel in enumerate(grp):
                buf = nb & 1
                nxt = kvread(rel + 1, buf ^ 1, False) if idx < n - 1 else kvread(grp[0], buf ^ 1, True)
                for x in nxt:
                    a(x)
                a("s_waitcnt lgkmcnt(2)")
                s = vr(SB + 16 * idx, 16)
                lf, lb = a.newlabel("fill"), a.newlabel("back")
                if rel < 8:
                    a(f"s_cmp_gt_u32 s46, {rel}")
                    a(f"s_cbranch_scc1 {lf}")
                a(f"v_mfma_f32_32x32x16_bf16 {s}, {vr(KV[buf], 4)}, {vr(QC, 4)}, 0")
                a(f"v_mfma_f32_32x32x16_bf16 {s}, {vr(KV[buf] + 4, 4)}, {vr(QC + 4, 4)}, {s}")
                if rel < 8:
                    a.label(lb)
                    fills.append((lf, lb, SB + 16 * idx, VNEG))
                if idx >= 2:
                    for x in maxops(grp[idx - 2], idx - 2, idx == 2):
                        a(x)
                nb += 1
            for x in maxops(grp[n - 2], n - 2, False):
                a(x)
            a("s_nop 3")
            for x in maxops(grp[n - 1], n - 1, False):
                a(x)
            a(f"v_max_f32 v{VM}, v{VM}, v{VM2}")
            a("s_nop 0")
            a(f"v_mov_b32 v{VT}, v{VM}")
            a("s_nop 1")
            a(f"v_permlane32_swap_b32 v{VM}, v{VT}")
            a("s_nop 1")
            a(f"v_max_f32 v{VM}, v{VM}, v{VT}")
            if gi == 0:
                a(f"v_mul_f32 v{VMA}, s42, v{VM}")
            else:
                a(f"v_mul_f32 v{VM}, s42, v{VM}")
                a(f"v_max_f32 v{VM}, v{VM}, v{VMA}")
                a(f"v_sub_f32 v{VT}, v{VMA}, v{VM}")
                a(f"v_exp_f32 v{VT}, v{VT}")
                a(f"v_mov_b32 v{VMA}, v{VM}")
                for r in range(16):
                    a(f"v_mul_f32 v{OA + r}, v{OA + r}, v{VT}")
                a(f"v_mul_f32 v{VL}, v{VL}, v{VT}")
                a(f"v_mul_f32 v{VL2}, v{VL2}, v{VT}")
            for idx, rel in enumerate(grp):
                buf = nb & 1
                s = SB + 16 * idx
                if idx < n - 1:
                    nxt = kvread(rel + 1, buf ^ 1, True)
                elif gi == 0:
                    nxt = kvread(groups[1][0], buf ^ 1, False)
                else:
                    nxt = []
                for x in nxt:
                    a(x)
                for r in range(16):
                    a(f"v_fma_f32 v{s + r}, v{s + r}, s42, -v{VMA}")
                for r in range(16):
                    a(f"v_exp_f32 v{s + r}, v{s + r}")
                for j in range(8):
                    a(f"v_cvt_pk_bf16_f32 v{s + j}, v{s + 2 * j}, v{s + 2 * j + 1}")
                for j in range(8):
                    acc = (VL, VL2)[j & 1]
                    a(f"v_dot2_f32_bf16 v{acc}, v{s + j}, s43, v{acc}")
                a(f"s_waitcnt lgkmcnt({len(nxt)})")
                o = vr(OA, 16)
                a(f"v_mfma_f32_32x32x16_bf16 {o}, {vr(KV[buf], 4)}, {vr(s, 4)}, {'0' if rel == 0 else o}")
                a(f"v_mfma_f32_32x32x16_bf16 {o}, {vr(KV[buf] + 4, 4)}, {vr(s + 4, 4)}, {o}")
                nb += 1
        a("s_nop 2")
        a(f"v_add_f32 v{VL}, v{VL}, v{VL2}")
        a("s_nop 0")
        a(f"v_mov_b32 v{VT}, v{VL}")
        a("s_nop 1")
        a(f"v_permlane32_swap_b32 v{VL}, v{VT}")
        a("s_nop 1")
        a(f"v_add_f32 v{VL}, v{VL}, v{VT}")
        a(f"v_rcp_f32 v{VL}, v{VL}")
        a("s_nop 7")
        for r in range(16):
            a(f"v_mul_f32 v{OA + r}, v{OA + r}, v{VL}")
        for j in range(8):
            a(f"v_cvt_pk_bf16_f32 v{OA + j}, v{OA + 2 * j}, v{OA + 2 * j + 1}")
        a(f"buffer_store_dwordx4 {vr(OA, 4)}, v2, {S(SWS)}, s47 offen{SC}")
        a(f"buffer_store_dwordx4 {vr(OA + 4, 4)}, v2, {S(SWS)}, s47 offen offset:1024{SC}")
    return body


def emit_token_read(a, t0):
    lp = a.newlabel("tok")
    dn = a.newlabel("tokd")
    a(f"v_mov_b32 v{t0 + 2}, 0")
    a("s_mov_b32 s85, 0")
    a.label(lp)
    a(f"buffer_load_dwordx2 {vr(t0, 2)}, v{t0 + 2}, {S(SDBG)}, 0 offen{SC}")
    a("s_waitcnt vmcnt(0)")
    a(f"v_readfirstlane_b32 s78, v{t0}")
    a(f"v_readfirstlane_b32 s79, v{t0 + 1}")
    a("s_nop 1")
    a("s_cmp_lg_u64 s[78:79], 0")
    a(f"s_cbranch_scc1 {dn}")
    a("s_add_u32 s85, s85, 1")
    a(f"s_cmp_lt_u32 s85, 0x{SPIN_LIMIT:x}")
    a(f"s_cbranch_scc1 {lp}")
    a.label(dn)


def emit_wg_of(a, vdst, vrb, vhp, t):
    a(f"v_lshrrev_b32 v{vdst}, 3, v{vrb}")
    a(f"v_lshrrev_b32 v{t}, 2, v{vhp}")
    a(f"v_lshl_add_u32 v{vdst}, v{t}, 1, v{vdst}")
    a(f"v_and_b32 v{t}, 7, v{vrb}")
    a(f"v_lshl_add_u32 v{vdst}, v{t}, 3, v{vdst}")
    a(f"v_and_b32 v{t}, 3, v{vhp}")
    a(f"v_lshl_add_u32 v{vdst}, v{t}, 6, v{vdst}")
    a(f"v_lshlrev_b32 v{vdst}, 7, v{vdst}")


def gen_fused(a, ts):
    name = NAME + "_kernel"
    kernel_begin(a, name)
    ts.entry(a)
    a("s_cmp_ge_u32 s2, 256")
    a("s_cbranch_scc1 L_end")
    if "perm" in OPT:
        a("s_and_b32 s3, s2, 7")
        a("s_lshl_b32 s3, s3, 5")
        a("s_lshr_b32 s2, s2, 3")
        a("s_or_b32 s2, s2, s3")
    a("s_load_dwordx16 s[36:51], s[0:1], 0")
    a("s_load_dwordx8 s[52:59], s[0:1], 64")
    a("v_lshrrev_b32 v1, 6, v0")
    a("v_and_b32 v0, 63, v0")
    a("s_and_b32 s3, s2, 7")
    a("v_readfirstlane_b32 s32, v1")
    a("s_lshr_b32 s35, s2, 3")
    a("s_and_b32 s33, s3, 1")
    a("s_lshl_b32 s33, s33, 3")
    a("s_and_b32 s80, s35, 7")
    a("s_add_u32 s33, s33, s80")
    a("s_lshr_b32 s34, s3, 1")
    a("s_lshl_b32 s34, s34, 2")
    a("s_lshr_b32 s80, s35, 3")
    a("s_add_u32 s34, s34, s80")
    a("s_lshl_b32 s84, s3, 5")
    a("s_add_u32 s84, s84, s35")
    a("s_lshl_b32 s80, s84, 3")
    a("s_waitcnt lgkmcnt(0)")
    a("s_load_dwordx2 s[76:77], s[46:47], s80")
    srd(a, SX, 48, 4 * MB)
    srd(a, SW, 50, 6 * MB)
    srd(a, SWS, 58, WS_SIZE)
    srd(a, SK, 38, 4 * MB)
    srd(a, SV, 40, 4 * MB)
    srd(a, SSH, 42, 8192)
    srd(a, SHK, 44, 4 * MB)
    srd(a, SWO, 52, 2 * MB)
    srd(a, SQ, 36, 4 * MB)
    srd(a, SOUT, 54, 8 * MB)
    srd(a, SDBG, 56, 256)
    ts.setup(a, 58)
    a("s_cmp_ge_u32 s32, 4")
    a("s_cbranch_scc1 L_H")

    ACC = 80
    FR = [16, 36, 56]
    XA, WB = 2, 6
    TD = 5
    a("v_and_b32 v8, 15, v0")
    a("v_lshrrev_b32 v9, 4, v0")
    a("s_lshl_b32 s46, s35, 5")
    a("s_lshl_b32 s47, s32, 3")
    a("s_add_u32 s46, s46, s47")
    a("s_and_b32 s47, s3, 1")
    a("s_lshl_b32 s47, s47, 10")
    a("s_add_u32 s46, s46, s47")
    a("v_add_u32 v10, s46, v8")
    a("v_lshlrev_b32 v10, 11, v10")
    a("v_lshl_add_u32 v10, v9, 7, v10")
    a("v_mov_b32 v12, 0x80000000")
    a("v_cmp_gt_u32 vcc, 8, v8")
    a("s_mul_i32 s46, s35, 24")
    a("s_mul_i32 s47, s32, 6")
    a("v_cndmask_b32 v176, v12, v10, vcc")
    a("s_add_u32 s46, s46, s47")
    a("v_add_u32 v10, s46, v8")
    a("v_mul_u32_u24 v11, 5462, v10")
    a("v_lshrrev_b32 v11, 16, v11")
    a("v_mul_u32_u24 v13, 12, v11")
    a("v_sub_u32 v10, v10, v13")
    a("v_lshl_add_u32 v11, v9, 6, v11")
    a("v_mul_u32_u24 v11, 6144, v11")
    a("v_lshrrev_b32 v13, 2, v10")
    a("v_lshl_add_u32 v11, v13, 11, v11")
    a("v_and_b32 v10, 3, v10")
    a("v_lshl_add_u32 v11, v10, 7, v11")
    a("s_lshr_b32 s47, s3, 1")
    a("s_lshl_b32 s47, s47, 9")
    a("v_add_u32 v11, s47, v11")
    a("v_cmp_gt_u32 vcc, 6, v8")
    a("s_nop 1")
    a("v_cndmask_b32 v177, v12, v11, vcc")

    def touch4(t0):
        return [f"s_mov_b32 s46, {t0 * 128}",
                f"s_mov_b32 s47, {t0 * 393216}",
                f"buffer_load_dword v178, v176, {S(SX)}, s46 offen",
                f"buffer_load_dword v179, v177, {S(SW)}, s47 offen"]

    sched = {}
    schedn = {}
    if "tall" in OPT:
        for i, t0 in enumerate((2, 6, 10, 14)):
            schedn[i] = touch4(t0)
    elif "tall2" in OPT:
        for x in touch4(2):
            a(x)
        for i, t0 in enumerate((6, 10, 14)):
            schedn[2 * i] = touch4(t0)
    else:
        for x in touch4(2):
            a(x)
    ltk = a.newlabel("notok")
    a("s_cmp_lg_u32 s32, 0")
    a(f"s_cbranch_scc1 {ltk}")
    emit_token(a, 180)
    a.label(ltk)
    for o in OPT:
        if o.startswith("td"):
            TD = int(o[2:])
    for t0 in (6, 10, 14):
        if "notouch" not in OPT and "tall" not in OPT and "tall2" not in OPT:
            sched.setdefault(max(0, t0 - TD), []).extend(touch4(t0))
    a("s_and_b32 s44, s32, 1")
    a("s_lshr_b32 s45, s32, 1")
    a("v_and_b32 v8, 31, v0")
    a("v_lshrrev_b32 v9, 5, v0")
    a("v_lshrrev_b32 v10, 1, v8")
    a("v_and_b32 v10, 7, v10")
    a("v_lshlrev_b32 v11, 7, v8")
    a("s_lshl_b32 s46, s44, 13")
    a("v_add_u32 v11, s46, v11")
    for ks in range(4):
        a(f"v_add_u32 v12, {2 * ks}, v9")
        a("v_xor_b32 v12, v12, v10")
        a(f"v_lshl_add_u32 v{XA + ks}, v12, 4, v11")
    a("v_and_b32 v10, 15, v0")
    a("v_lshrrev_b32 v11, 4, v0")
    a("v_lshrrev_b32 v12, 2, v10")
    a("v_lshl_add_u32 v12, v9, 3, v12")
    a("v_mul_u32_u24 v12, 384, v12")
    a("v_lshrrev_b32 v13, 3, v10")
    a("v_xor_b32 v13, s45, v13")
    a("v_lshl_add_u32 v12, v13, 6, v12")
    a("v_and_b32 v13, 1, v11")
    a("v_lshl_add_u32 v12, v13, 5, v12")
    a("v_and_b32 v13, 3, v10")
    a("v_lshl_add_u32 v12, v13, 3, v12")
    a(f"v_add_u32 v{WB}, 0x10000, v12")
    a(f"v_add_u32 v{WB + 1}, 0x1c000, v12")

    def reads(t, ks, buf):
        st = (t + 1) & 3
        f = FR[buf]
        xa = XA + ks
        wb = WB + (st >> 1)
        wo = (st & 1) * 24576 + 16 * ks * 384
        return [f"ds_read_b128 {vr(f, 4)}, v{xa} offset:{st * 16384}",
                f"ds_read_b64_tr_b16 {vr(f + 8, 2)}, v{wb} offset:{wo}",
                f"ds_read_b64_tr_b16 {vr(f + 10, 2)}, v{wb} offset:{wo + 4 * 384}",
                f"ds_read_b128 {vr(f + 4, 4)}, v{xa} offset:{st * 16384 + 4096}",
                f"ds_read_b64_tr_b16 {vr(f + 12, 2)}, v{wb} offset:{wo + 128}",
                f"ds_read_b64_tr_b16 {vr(f + 14, 2)}, v{wb} offset:{wo + 128 + 4 * 384}",
                f"ds_read_b64_tr_b16 {vr(f + 16, 2)}, v{wb} offset:{wo + 256}",
                f"ds_read_b64_tr_b16 {vr(f + 18, 2)}, v{wb} offset:{wo + 256 + 4 * 384}"]

    def mfmas(buf, first):
        f = FR[buf]
        X = [vr(f, 4), vr(f + 4, 4)]
        W = [vr(f + 8, 4), vr(f + 12, 4), vr(f + 16, 4)]
        out = []
        for part in range(3):
            for rt in range(2):
                d = vr(ACC + 16 * (2 * part + rt), 16)
                c = "0" if first else d
                if part < 2:
                    out.append(f"v_mfma_f32_32x32x16_bf16 {d}, {W[part]}, {X[rt]}, {c}")
                else:
                    out.append(f"v_mfma_f32_32x32x16_bf16 {d}, {X[rt]}, {W[part]}, {c}")
        return out

    a("s_barrier")
    for r in reads(0, 0, 0) + reads(0, 1, 1):
        a(r)
    for n in range(64):
        t, ks = n >> 2, n & 3
        m = mfmas(n % 3, n == 0)
        n2 = n + 2
        r = reads(n2 >> 2, n2 & 3, n2 % 3) if n2 < 64 else []
        tch = (sched.get(t, []) if ks == 0 else []) + schedn.get(n, [])
        if n == 44:
            tch = tch + ["v_mov_b32 v188, 0", f"buffer_load_dwordx2 v[186:187], v188, {S(SDBG)}, 0 offen{SC}"]
        if n == 60:
            tch = tch + ["s_waitcnt vmcnt(0)"]
        if ks == 2 and t < 15:
            a("s_waitcnt lgkmcnt(0)")
            a(m[0])
            a("s_barrier")
        else:
            a(f"s_waitcnt lgkmcnt({8 if n < 63 else 0})")
            a(m[0])
        ri = 0
        for i, mm in enumerate(m[1:]):
            for _ in range(2):
                if ri < len(r):
                    a(r[ri]); ri += 1
            if i == 4:
                for x in tch:
                    a(x)
            a(mm)
    ts.stamp(a, 1)
    QC = 224
    a("s_lshl_b32 s46, s34, 1")
    a("s_add_u32 s46, s46, s45")
    a("s_lshl_b32 s46, s46, 6")
    a("s_lshl_b32 s47, s33, 2")
    a("s_add_u32 s46, s46, s47")
    a("s_lshl_b32 s47, s44, 1")
    a("s_add_u32 s46, s46, s47")
    a("s_lshl_b32 s46, s46, 11")
    a(f"s_add_u32 s47, s46, 0x{WS_KF:x}")
    a(f"s_add_u32 s48, s46, 0x{WS_VF:x}")
    a("v_lshlrev_b32 v1, 4, v0")
    a("s_lshl_b32 s80, s45, 14")
    a("s_lshl_b32 s81, s44, 12")
    a("s_add_u32 s80, s80, s81")
    a("v_add_u32 v7, s80, v1")
    a("s_lshl_b32 s80, s32, 11")
    a("v_add_u32 v8, s80, v1")
    a("s_nop 3")
    for part in (1, 2, 0):
        for rt in range(2):
            b = ACC + 16 * (2 * part + rt)
            d = QC if (part == 0 and rt == 0) else b
            for j in range(8):
                a(f"v_cvt_pk_bf16_f32 v{d + j}, v{b + 2 * j}, v{b + 2 * j + 1}")
            for step in range(2):
                if part:
                    a(f"buffer_store_dwordx4 {vr(d + 4 * step, 4)}, v1, {S(SWS)}, s{46 + part} offen offset:{rt * 2048 + step * 1024}{SC}")
                    a(f"ds_write_b128 v7, {vr(d + 4 * step, 4)} offset:{L_OKV + (part - 1) * 8192 + rt * 2048 + step * 1024}")
                elif rt == 1:
                    a(f"ds_write_b128 v8, {vr(d + 4 * step, 4)} offset:{L_QH + step * 1024}")
    a("v_readfirstlane_b32 s78, v186")
    a("v_readfirstlane_b32 s79, v187")
    lok = a.newlabel("tokok")
    a("s_nop 1")
    a("s_cmp_lg_u64 s[78:79], 0")
    a(f"s_cbranch_scc1 {lok}")
    emit_token_read(a, 186)
    a.label(lok)
    a("s_lshl_b32 s40, s44, 1")
    a("s_mov_b32 s41, s45")
    a("s_waitcnt lgkmcnt(0)")
    a("s_branch L_POST")

    a.label("L_H")
    a("s_setprio 3")
    a("s_sub_u32 s44, s32, 4")
    XO, WO = 2, 6
    a("v_lshrrev_b32 v12, 3, v0")
    a("v_and_b32 v13, 7, v0")
    a("s_lshl_b32 s45, s33, 7")
    a("s_lshl_b32 s46, s44, 5")
    a("s_add_u32 s45, s45, s46")
    a("v_lshrrev_b32 v14, 4, v0")
    a("v_xor_b32 v14, v14, v13")
    a("v_add_u32 v15, s45, v12")
    a("v_lshlrev_b32 v15, 11, v15")
    a(f"v_lshl_add_u32 v{XO}, v14, 4, v15")
    a(f"v_xor_b32 v{XO + 1}, 64, v{XO}")
    a(f"v_add_u32 v{XO + 1}, {16384 - 1024}, v{XO + 1}")
    a(f"v_add_u32 v{XO + 2}, {2 * (16384 - 1024)}, v{XO}")
    a(f"v_add_u32 v{XO + 3}, {2 * (16384 - 1024)}, v{XO + 1}")
    a("s_lshl_b32 s45, s44, 12")

    def issue_x(t):
        st = (t + 1) & 3
        a(f"s_add_u32 m0, s45, {st * 16384}")
        a(f"s_mov_b32 s47, {t * 128}")
        for i in range(4):
            a(f"buffer_load_dwordx4 v{XO + i}, {S(SX)}, s47 offen offset:{1024 * i} lds")

    def issue_w(t):
        st = (t + 1) & 3
        a(f"s_add_u32 m0, s46, {st * 24576}")
        a(f"s_mov_b32 s47, {t * 393216}")
        for i in range(4):
            a(f"buffer_load_dwordx4 v{WO + i}, {S(SW)}, s47 offen offset:{1024 * i} lds")
        a(f"s_add_u32 m0, s46, {st * 24576 + 4096}")
        a("s_nop 0")
        for i in range(4, 6):
            a(f"buffer_load_dwordx4 v{WO + i}, {S(SW)}, s47 offen offset:{1024 * (i - 4)} lds")

    def issue(t):
        issue_x(t)
        issue_w(t)

    issue_x(0)
    a("s_mul_i32 s48, s44, 98304")
    a("s_lshl_b32 s46, s34, 7")
    a("s_add_u32 s48, s48, s46")
    for i in range(6):
        if i:
            a(f"v_add_u32 v14, {64 * i}, v0")
        src = "v14" if i else "v0"
        a(f"v_mul_u32_u24 v15, 2731, {src}")
        a("v_lshrrev_b32 v15, 16, v15")
        a("v_mul_u32_u24 v16, 24, v15")
        a(f"v_sub_u32 v16, {src}, v16")
        a("v_bfe_u32 v18, v15, 1, 1")
        a("v_lshlrev_b32 v18, 2, v18")
        a("v_xor_b32 v16, v16, v18")
        a("v_lshrrev_b32 v18, 3, v16")
        a("v_and_b32 v16, 7, v16")
        a("v_mul_u32_u24 v15, 6144, v15")
        a("v_lshl_add_u32 v15, v18, 11, v15")
        a("v_lshl_add_u32 v15, v16, 4, v15")
        il = i if i < 4 else i - 4
        if il:
            a(f"s_sub_u32 s49, s48, {1024 * il}")
            a(f"v_add_u32 v{WO + i}, s49, v15")
        else:
            a(f"v_add_u32 v{WO + i}, s48, v15")
    a("s_mul_i32 s46, s44, 6144")
    a("s_add_u32 s46, s46, 0x10000")
    issue_w(0)
    issue(1)
    order = ["T0", "T1"]
    p_setup, p_loads, p_comp, p_stores = p1_lists()
    for x in p_setup:
        a(x)

    def wait_tile(b):
        last = max(i for i, x in enumerate(order) if x == f"T{b}")
        n = sum(10 if x.startswith("T") else 1 for x in order[last + 1:])
        a(f"s_waitcnt vmcnt({n})")

    wait_tile(0)
    a("s_barrier")
    issue(2); order.append("T2")
    issue(3); order.append("T3")
    PL0, PLN = 1, 6
    for o in OPT:
        if o.startswith("pl"):
            PL0, PLN = int(o[2]), int(o[3:])
    pl, pc = list(p_loads), list(p_comp)
    last_pl_b = PL0 + (len(p_loads) + PLN - 1) // PLN - 1
    PC0 = last_pl_b + 4
    PSB = 10
    assert PC0 < PSB
    per = (len(pc) + (PSB - PC0) - 1) // (PSB - PC0)
    HL, UL = 176, 208
    a("s_lshl_b32 s55, s84, 2")
    a("s_add_u32 s55, s55, s44")
    a("s_lshl_b32 s55, s55, 12")
    a("v_lshlrev_b32 v1, 4, v0")
    a("v_mov_b32 v174, 0")
    hloads = []
    for k in range(4):
        hloads.append(f"buffer_load_dwordx4 {vr(HL + 8 * k, 4)}, v1, {S(SHK)}, s55 offen offset:{1024 * k}")
        hloads.append(f"buffer_load_dwordx2 {vr(HL + 8 * k + 4, 2)}, v1, {S(SHK)}, s55 offen offset:{1024 * k + 16}")
    for b in range(1, 16):
        wait_tile(b)
        a("s_barrier")
        if b == PSB:
            assert not pc
            for x in p_stores:
                a(x)
                if x.startswith("buffer"):
                    order.append("P")
            a(f"buffer_load_dwordx2 v[172:173], v174, {S(SDBG)}, 0 offen{SC}")
            order.append("P")
        if b + 3 <= 15:
            issue(b + 3); order.append(f"T{b + 3}")
        if b >= PL0:
            for x in pl[:PLN]:
                a(x); order.append("P")
            pl = pl[PLN:]
        if b == 12:
            for x in hloads:
                a(x); order.append("P")
        if PC0 <= b < PSB:
            for x in pc[:per]:
                a(x)
            pc = pc[per:]
        if b == PSB + 3:
            a("v_readfirstlane_b32 s78, v172")
            a("v_readfirstlane_b32 s79, v173")
            lok = a.newlabel("tokok")
            a("s_nop 1")
            a("s_cmp_lg_u64 s[78:79], 0")
            a(f"s_cbranch_scc1 {lok}")
            emit_token_read(a, 172)
            a.label(lok)
            lpb = a.newlabel("nopub")
            a("s_cmp_lg_u32 s44, 0")
            a(f"s_cbranch_scc1 {lpb}")
            emit_publish(a, FL_UR, 168)
            a.label(lpb)
    assert not pl
    ts.stamp(a, 1)
    a("v_and_b32 v12, 31, v0")
    a("v_lshlrev_b32 v12, 3, v12")
    a("v_add_u32 v12, s3, v12")
    a("v_lshlrev_b32 v12, 7, v12")
    a(f"v_add_u32 v12, 0x{WS_FL + FL_UR * 32768:x}, v12")
    emit_poll(a, 12, 32, 8)
    a(f"s_add_u32 s80, s55, 0x{WS_UR:x}")
    for k in range(4):
        a(f"buffer_load_dwordx4 {vr(UL + 4 * k, 4)}, v1, {S(SWS)}, s80 offen offset:{1024 * k}{SC}")

    def build_region():
        ET = 16
        a("s_and_b32 s80, s44, 1")
        a(f"s_mul_i32 s80, s80, {CW}")
        a(f"s_add_u32 s80, s80, {L_R0}")
        for k in range(4):
            D = HL + 8 * k
            e1, e2, e3 = ET + 12 * k, ET + 12 * k + 4, ET + 12 * k + 8
            for i in range(4):
                a(f"v_alignbit_b32 v{e1 + i}, v{D + i + 1}, v{D + i}, 16")
            for i in range(4):
                a(f"v_mov_b32 v{e2 + i}, v{D + i + 1}")
            for i in range(4):
                a(f"v_alignbit_b32 v{e3 + i}, v{D + i + 2}, v{D + i + 1}, 16")
        a("v_add_u32 v7, s80, v1")
        for i in range(4):
            a(f"v_mov_b32 v{8 + i}, 0")
        a("v_lshlrev_b32 v64, 3, v0")
        a("v_add_u32 v64, s80, v64")
        a("v_and_b32 v65, 3, v0")
        a(f"v_mul_u32_u24 v65, {CPY}, v65")
        a("v_bfe_u32 v66, v0, 2, 1")
        a("v_lshl_add_u32 v65, v66, 4, v65")
        a("v_add_u32 v65, s80, v65")
        a("v_mov_b32 v66, s80")
        a(f"v_lshlrev_b32 v67, 16, v{HL}")
        a(f"ds_write_b64 v64, v[8:9] offset:{URO + 4096}")
        a("ds_write_b128 v65, v[8:11]")
        for k in range(4):
            D = HL + 8 * k
            e1, e2, e3 = ET + 12 * k, ET + 12 * k + 4, ET + 12 * k + 8
            a(f"ds_write_b128 v7, {vr(D, 4)} offset:{32 + 1024 * k}")
            a(f"ds_write_b128 v7, {vr(e1, 4)} offset:{32 + 1024 * k + CPY}")
            a(f"ds_write_b128 v7, {vr(e2, 4)} offset:{32 + 1024 * k + 2 * CPY}")
            a(f"ds_write_b128 v7, {vr(e3, 4)} offset:{32 + 1024 * k + 3 * CPY}")
            if k == 1:
                a("s_waitcnt lgkmcnt(4)")
        a("s_mov_b64 exec, 1")
        a(f"ds_write_b32 v66, v67 offset:{CPY + 28}")
        a(f"ds_write_b32 v66, v{HL} offset:{2 * CPY + 28}")
        a(f"ds_write_b32 v66, v67 offset:{3 * CPY + 24}")
        a(f"ds_write_b32 v66, v{ET} offset:{3 * CPY + 28}")
        a("s_mov_b64 exec, -1")
        a("s_waitcnt vmcnt(0) lgkmcnt(4)")
        for k in range(4):
            a(f"ds_write_b128 v7, {vr(UL + 4 * k, 4)} offset:{URO + 1024 * k}")
        a("s_waitcnt lgkmcnt(0)")

    lnb = a.newlabel("nobuild")
    a("s_cmp_ge_u32 s44, 2")
    a(f"s_cbranch_scc1 {lnb}")
    build_region()
    a.label(lnb)
    a("s_lshl_b32 s80, s35, 2")
    a("s_add_u32 s80, s80, s44")
    a("s_lshl_b32 s80, s80, 6")
    a("v_add_u32 v12, s80, v0")
    a("v_lshrrev_b32 v13, 3, v12")
    a("v_lshlrev_b32 v13, 11, v13")
    a("v_and_b32 v14, 7, v12")
    a("v_lshl_add_u32 v13, v14, 7, v13")
    a("s_lshr_b32 s80, s3, 2")
    a("s_lshl_b32 s80, s80, 10")
    a(f"buffer_load_dword v240, v13, {S(SWO)}, s80 offen")
    a("v_lshrrev_b32 v13, 2, v12")
    a("v_lshlrev_b32 v13, 11, v13")
    a("v_bfe_u32 v14, v12, 1, 1")
    a("v_lshl_add_u32 v13, v14, 7, v13")
    a("s_lshl_b32 s80, s3, 8")
    a(f"buffer_load_dword v241, v13, {S(SQ)}, s80 offen")
    a("s_and_b32 s40, s44, 1")
    a("s_lshl_b32 s40, s40, 1")
    a("s_add_u32 s40, s40, 1")
    a("s_lshr_b32 s41, s44, 1")
    a("s_setprio 0")
    a("s_waitcnt lgkmcnt(0)")

    a.label("L_POST")
    VAB, VBB, VEB, VSO = 3, 4, 5, 6
    PK = 144
    AF, PF = 156, 24
    SETS = [[7, 0], [6, 1], [5, 2], [4, 3]]
    KVJ, KLJ, OLJ = 2, 5, 5
    for o in OPT:
        if o.startswith("hk"):
            KVJ, KLJ, OLJ = int(o[2]), int(o[3]), int(o[4])
    a("s_and_b32 s86, s32, 1")
    a(f"s_mul_i32 s46, s86, {CW}")
    a(f"s_add_u32 s46, s46, {L_R0}")
    emit_conv_addr(a, VAB, VBB, VEB, VSO)
    a("s_and_b32 s87, s3, 1")
    a("s_lshl_b32 s87, s87, 1")
    a("s_bfe_u32 s80, s3, 0x10001")
    a("s_add_u32 s87, s87, s80")
    a("s_lshl_b32 s87, s87, 2")
    a("s_and_b32 s80, s35, 3")
    a("s_add_u32 s87, s87, s80")
    a("s_lshr_b32 s88, s3, 2")
    a("s_lshl_b32 s88, s88, 3")
    a("s_lshr_b32 s80, s35, 2")
    a("s_add_u32 s88, s88, s80")

    def conv_params(phase):
        a(f"s_add_u32 s80, s86, {2 * phase}")
        a("s_lshl_b32 s47, s84, 2")
        a("s_add_u32 s47, s47, s80")
        a("s_lshl_b32 s47, s47, 12")
        a(f"s_add_u32 s47, s47, 0x{WS_Y2:x}")
        a("s_lshl_b32 s80, s80, 4")
        a("s_lshr_b64 s[38:39], s[76:77], s80")
        a("s_lshl_b32 s38, s38, 16")

    def hook_kvpub_m():
        a("s_waitcnt vmcnt(0)")
        a("s_barrier")

    def hook_kvpub_h():
        a("s_barrier")
        l = a.newlabel("nopub")
        a("s_cmp_lg_u32 s32, 4")
        a(f"s_cbranch_scc1 {l}")
        emit_publish(a, FL_KV, PK)
        a.label(l)

    def hook_kvload():
        a(f"v_and_b32 v{PK + 4}, 1, v0")
        a(f"v_sub_u32 v{PK + 4}, s33, v{PK + 4}")
        a(f"v_subrev_u32 v{PK + 4}, 1, v{PK + 4}")
        a(f"v_max_i32 v{PK + 4}, 0, v{PK + 4}")
        a(f"v_mov_b32 v{PK + 5}, s34")
        emit_wg_of(a, PK + 6, PK + 4, PK + 5, PK + 7)
        a(f"v_add_u32 v{PK + 6}, 0x{WS_FL + FL_KV * 32768:x}, v{PK + 6}")
        emit_poll(a, PK + 6, 2, PK + 8)
        a("s_lshr_b32 s80, s32, 2")
        a("s_lshl_b32 s81, s34, 1")
        a("s_add_u32 s80, s80, s81")
        a("s_lshl_b32 s80, s80, 4")
        a("s_add_u32 s80, s80, s33")
        a("s_add_u32 s80, s80, s86")
        a("s_lshl_b32 s80, s80, 13")
        a("s_bfe_u32 s81, s32, 0x10001")
        a("s_lshl_b32 s81, s81, 22")
        a("s_add_u32 s80, s80, s81")
        a(f"s_add_u32 s80, s80, 0x{WS_KF - 16384:x}")
        a("s_add_u32 s81, s33, s86")
        a("s_cmp_lt_u32 s81, 2")
        a("s_cselect_b32 s81, 0x80000000, 0")
        a("v_add_u32 v7, s81, v1")
        for i in range(8):
            if i == 4:
                a("s_add_u32 s80, s80, 4096")
            a(f"buffer_load_dwordx4 {vr(PK + 4 * i, 4)}, v7, {S(SWS)}, s80 offen offset:{(i & 3) * 1024}{SC}")

    def aload(ks):
        out = []
        if ks % 4 == 0 and ks > 0:
            out.append("s_add_u32 s45, s45, 4096")
        out.append(f"buffer_load_dwordx4 {vr(AF + 4 * (ks % PF), 4)}, v1, {S(SWS)}, s45 offen offset:{(ks & 3) * 1024}{SC}")
        return out

    def hook_oload():
        a(f"v_mov_b32 v{PK}, s87")
        a(f"v_and_b32 v{PK + 1}, 15, v0")
        emit_wg_of(a, PK + 2, PK, PK + 1, PK + 3)
        a(f"v_add_u32 v{PK + 2}, 0x{WS_FL + FL_O * 32768:x}, v{PK + 2}")
        a("s_lshl_b32 s44, s87, 2")
        a("s_add_u32 s44, s44, s32")
        a("s_lshl_b32 s45, s44, 16")
        a(f"s_add_u32 s45, s45, 0x{WS_OF:x}")
        emit_poll(a, PK + 2, 16, PK + 4)
        for ks in range(PF):
            for x in aload(ks):
                a(x)

    def conv_phase(phase):
        done = a.newlabel("cdone")
        labs = [a.newlabel("cset") for _ in range(4)]
        a("s_lshr_b32 s80, s32, 1")
        for i in range(1, 4):
            a(f"s_cmp_eq_u32 s80, {i}")
            a(f"s_cbranch_scc1 {labs[i]}")
        for i in range(4):
            a.label(labs[i])
            if phase == 0:
                hooks = {KVJ: hook_kvpub_m if i < 2 else hook_kvpub_h, KLJ: hook_kvload}
            else:
                hooks = {OLJ: hook_oload} if i < 2 else {}
            emit_conv_main(a, SETS[i], 8, [16, 80], VAB, VBB, VEB, VSO, hooks=hooks)
            if i < 3:
                a(f"s_branch {done}")
        a.label(done)

    conv_params(0)
    a("s_barrier")
    ts.stamp(a, 2)
    conv_phase(0)
    ts.stamp(a, 3)
    a("s_lshr_b32 s80, s32, 1")
    a(f"s_mul_i32 s81, s80, 16384")
    a(f"s_add_u32 s81, s81, {L_PKB[1] - 16384}")
    a("s_cmp_eq_u32 s80, 0")
    a("s_cselect_b32 s81, 0, s81")
    a("s_lshl_b32 s80, s86, 13")
    a("s_add_u32 s81, s81, s80")
    a("v_add_u32 v7, s81, v1")
    a("s_waitcnt vmcnt(0)")
    for i in range(8):
        a(f"ds_write_b128 v7, {vr(PK + 4 * i, 4)} offset:{i * 1024}")
    lq = a.newlabel("noq")
    a("s_cmp_lt_u32 s32, 4")
    a(f"s_cbranch_scc1 {lq}")
    a("s_lshl_b32 s80, s32, 11")
    a("v_add_u32 v7, s80, v1")
    a(f"ds_read_b128 {vr(QC, 4)}, v7 offset:{L_QH - 8192}")
    a(f"ds_read_b128 {vr(QC + 4, 4)}, v7 offset:{L_QH - 8192 + 1024}")
    a.label(lq)
    a("s_waitcnt lgkmcnt(0)")
    a("s_barrier")
    ts.stamp(a, 4)
    lnb = a.newlabel("nobuild")
    a("s_cmp_lt_u32 s32, 6")
    a(f"s_cbranch_scc1 {lnb}")
    build_region()
    a.label(lnb)
    fills = []
    body = emit_attention(a, ts, QC, fills)
    ts.stamp(a, 5)
    body()
    ts.stamp(a, 6)
    a(f"s_mul_i32 s46, s86, {CW}")
    a(f"s_add_u32 s46, s46, {L_R0}")
    emit_conv_addr(a, VAB, VBB, VEB, VSO)
    conv_params(1)
    a("v_lshrrev_b32 v12, 3, v0")
    a("v_and_b32 v13, 7, v0")
    a("v_bfe_u32 v14, v0, 4, 1")
    a("v_lshlrev_b32 v14, 2, v14")
    a("v_xor_b32 v14, v14, v13")
    a("v_lshlrev_b32 v250, 11, v12")
    a("v_lshl_add_u32 v250, v14, 4, v250")
    a("s_lshl_b32 s45, s88, 7")
    a("v_add_u32 v250, s45, v250")
    a("s_waitcnt vmcnt(0)")
    a("s_barrier")
    ts.stamp(a, 7)
    lw = a.newlabel("nowo")
    a("s_cmp_lt_u32 s32, 4")
    a(f"s_cbranch_scc1 {lw}")
    a("s_sub_u32 s44, s32, 4")
    lpb = a.newlabel("nopub")
    a("s_cmp_lg_u32 s44, 0")
    a(f"s_cbranch_scc1 {lpb}")
    emit_publish(a, FL_O, 8)
    a.label(lpb)
    a("s_lshl_b32 s48, s44, 12")
    a("s_lshl_b32 s49, s44, 16")

    def wo_portion(p):
        a(f"s_add_u32 m0, s48, {p * 16384}")
        for i in range(4):
            a(f"s_add_u32 s80, s49, {p * 16 * 16384 + i * (16384 - 1024)}")
            a(f"buffer_load_dwordx4 v250, {S(SWO)}, s80 offen offset:{1024 * i} lds")

    for p in range(7):
        wo_portion(p)
    a.label(lw)
    conv_phase(1)
    ts.stamp(a, 8)
    a("s_cmp_ge_u32 s32, 4")
    a("s_cbranch_scc1 L_H2")

    BF = [16, 24, 32]
    AC2 = 40
    a("v_and_b32 v8, 15, v0")
    a("v_lshrrev_b32 v9, 4, v0")
    a("v_lshrrev_b32 v10, 5, v0")
    a("v_lshrrev_b32 v11, 2, v8")
    a("v_lshl_add_u32 v11, v10, 2, v11")
    a("v_lshlrev_b32 v11, 7, v11")
    a("v_and_b32 v12, 1, v9")
    a("v_lshl_add_u32 v11, v12, 5, v11")
    a("v_and_b32 v12, 3, v8")
    a("v_lshl_add_u32 v11, v12, 3, v11")
    a("v_lshrrev_b32 v12, 3, v8")
    a("v_lshl_add_u32 v4, v12, 6, v11")
    a("v_xor_b32 v12, 1, v12")
    a("v_lshl_add_u32 v5, v12, 6, v11")
    a("v_add_u32 v6, 0x10000, v4")
    a("v_add_u32 v7, 0x10000, v5")

    def breads(ks, buf):
        f = BF[buf]
        hi = ks >= 32
        o = (ks - 32 * hi) * 16 * 128
        out = []
        for ct in range(2):
            va = 4 + ct + 2 * hi
            out.append(f"ds_read_b64_tr_b16 {vr(f + 4 * ct, 2)}, v{va} offset:{o}")
            out.append(f"ds_read_b64_tr_b16 {vr(f + 4 * ct + 2, 2)}, v{va} offset:{o + 1024}")
        return out

    a("s_waitcnt vmcnt(0)")
    a("s_barrier")
    for x in breads(0, 0) + breads(1, 1):
        a(x)
    for ks in range(64):
        f = BF[ks % 3]
        nload = min(63, ks + PF - 1) - max(ks, PF - 1)
        a(f"s_waitcnt vmcnt({min(nload, min(63, ks + PF - 1) - ks)}) lgkmcnt({4 if ks < 63 else 0})")
        af = vr(AF + 4 * (ks % PF), 4)
        nxt = breads(ks + 2, (ks + 2) % 3) if ks + 2 < 64 else []
        d0, d1 = vr(AC2, 16), vr(AC2 + 16, 16)
        a(f"v_mfma_f32_32x32x16_bf16 {d0}, {vr(f, 4)}, {af}, {'0' if ks == 0 else d0}")
        if ks == 54:
            a("s_barrier")
        for x in nxt:
            a(x)
        a(f"v_mfma_f32_32x32x16_bf16 {d1}, {vr(f + 4, 4)}, {af}, {'0' if ks == 0 else d1}")
        if ks + PF < 64:
            for x in aload(ks + PF):
                a(x)
    ts.stamp(a, 9)
    a("v_and_b32 v8, 31, v0")
    a("s_lshl_b32 s46, s44, 5")
    a("v_add_u32 v8, s46, v8")
    a("v_lshlrev_b32 v8, 12, v8")
    a("v_lshl_add_u32 v8, v10, 4, v8")
    a("s_lshl_b32 s46, s88, 7")
    a("s_add_u32 s46, s46, 2048")
    a("s_nop 7")
    for ct in range(2):
        b = AC2 + 16 * ct
        for j in range(8):
            a(f"v_cvt_pk_bf16_f32 v{b + j}, v{b + 2 * j}, v{b + 2 * j + 1}")
        a("s_nop 1")
        for jj in range(2):
            a(f"v_permlane32_swap_b32 v{b + 4 * jj}, v{b + 4 * jj + 2}")
            a(f"v_permlane32_swap_b32 v{b + 4 * jj + 1}, v{b + 4 * jj + 3}")
        for jj in range(2):
            a(f"buffer_store_dwordx4 {vr(b + 4 * jj, 4)}, v8, {S(SOUT)}, s46 offen offset:{ct * 64 + jj * 32}")
    ts.final(a, 10)
    a("s_endpgm")

    a.label("L_H2")
    a("s_setprio 3")
    a("s_waitcnt vmcnt(0)")
    a("s_barrier")
    wo_portion(7)
    lpb = a.newlabel("nopub")
    a("s_cmp_lg_u32 s44, 0")
    a(f"s_cbranch_scc1 {lpb}")
    emit_publish(a, FL_Y2, 8)
    a.label(lpb)
    YY, QQ, OO = 16, 32, 48
    a("v_lshrrev_b32 v12, 3, v0")
    a("v_and_b32 v13, 7, v0")
    a("s_lshl_b32 s48, s35, 6")
    a("s_lshl_b32 s49, s3, 2")
    a("s_add_u32 s49, s49, s44")
    a("s_lshl_b32 s49, s49, 5")
    a("v_lshlrev_b32 v4, 3, v12")
    a("v_add_u32 v4, s48, v4")
    a("v_lshlrev_b32 v5, 2, v13")
    a("v_add_u32 v5, s49, v5")
    a("v_lshlrev_b32 v6, 12, v5")
    a("v_lshl_add_u32 v6, v4, 1, v6")
    a("v_lshlrev_b32 v7, 11, v4")
    a("v_lshl_add_u32 v7, v5, 1, v7")
    a("v_lshlrev_b32 v11, 12, v4")
    a("v_lshl_add_u32 v11, v5, 1, v11")
    for i in range(8):
        a(f"s_mov_b32 s{48 + i}, {4096 * i}")
    for i in range(8):
        a(f"buffer_load_dwordx2 {vr(QQ + 2 * i, 2)}, v7, {S(SQ)}, s{48 + (i >> 1)} offen offset:{(i & 1) * 2048}")
    a("s_waitcnt vmcnt(8)")
    a("s_barrier")
    ts.stamp(a, 9)
    a("v_and_b32 v12, 7, v0")
    a("s_lshl_b32 s45, s44, 3")
    a("v_add_u32 v12, s45, v12")
    a("v_lshlrev_b32 v12, 3, v12")
    a("v_add_u32 v12, s3, v12")
    a("v_lshlrev_b32 v12, 7, v12")
    a(f"v_add_u32 v12, 0x{WS_FL + FL_Y2 * 32768:x}, v12")
    emit_poll(a, 12, 8, 8)
    a(f"s_mov_b32 s45, 0x{WS_Y2:x}")
    for dd in range(4):
        a(f"buffer_load_dwordx4 {vr(YY + 4 * dd, 4)}, v6, {S(SWS)}, s45 offen{SC}")
        if dd < 3:
            a("s_add_u32 s45, s45, 4096")
    a("s_waitcnt vmcnt(0)")
    for i in range(8):
        for dd in range(4):
            ys = YY + 4 * dd + (i >> 1)
            qs = QQ + 2 * i + (dd >> 1)
            a(f"v_and_b32 v9, 0xffff0000, v{ys}" if i & 1 else f"v_lshlrev_b32 v9, 16, v{ys}")
            a(f"v_and_b32 v10, 0xffff0000, v{qs}" if dd & 1 else f"v_lshlrev_b32 v10, 16, v{qs}")
            a(f"v_mul_f32 v{OO + 4 * i + dd}, v9, v10")
        o = OO + 4 * i
        a(f"v_cvt_pk_bf16_f32 v{o}, v{o}, v{o + 1}")
        a(f"v_cvt_pk_bf16_f32 v{o + 1}, v{o + 2}, v{o + 3}")
        a(f"buffer_store_dwordx2 {vr(o, 2)}, v11, {S(SOUT)}, s{48 + i} offen")
    ts.final(a, 10)
    a("s_endpgm")
    for (lf, lb, sreg, vneg) in fills:
        a.label(lf)
        a("s_nop 7")
        for r in range(16):
            a(f"v_mov_b32 v{sreg + r}, v{vneg}")
        a(f"s_branch {lb}")
    a.label("L_end")
    a("s_endpgm")
    return name, 256, 102


def build(instrument=False):
    ts = TS(instrument)
    a = Asm()
    a.raw("; @launch grid=(256,1,1) block=(512,1,1) lds=163840")
    a.raw('.amdgcn_target "amdgcn-amd-amdhsa--gfx950"')
    a.raw(".text")
    n, v, s = gen_fused(a, ts)
    a.raw('.section .rodata,"a"')
    kernel_desc(a, n, v, s)
    return a.text()


if __name__ == "__main__":
    out = sys.argv[1] if len(sys.argv) > 1 else f"cdna_kernels/{NAME}.s"
    if len(sys.argv) > 2:
        OPT.update(sys.argv[2].split(","))
    open(out, "w").write(build())
```

```python
import sys, struct
from gen import Asm, vr, srd, kernel_begin, kernel_desc, KA, MB, NAME

OPT = set()
WS_KF, WS_VF, WS_UR, WS_OF, WS_Y2, WS_FL = 4 * MB, 8 * MB, 12 * MB, 16 * MB, 20 * MB, 24 * MB
WS_SIZE = 25 * MB
WS_TS = 32 * MB
FL_UR, FL_KV, FL_Y2, FL_O = 0, 1, 2, 3

CW, CPY, URO = 21248, 4160, 16640
L_R0 = 163840 - 2 * CW
L_PKB = [0, 57344, 73728, 90112]
L_OKV = 16384
L_QH = 49152
SC = " sc1"
SPIN_LIMIT = 1 << 16


def osc():
    return " sc1" if "outsc" in OPT else " nt" if "outnt" in OPT else " sc0 sc1" if "outsys" in OPT else " sc1 nt" if "outscnt" in OPT else ""


def f32hex(x):
    return "0x%08x" % struct.unpack("<I", struct.pack("<f", x))[0]


SCALE_LOG2E = (32 ** -0.5) * 1.4426950408889634

SX, SW, SWS, SK, SV, SSH, SHK, SWO, SQ, SOUT, SDBG = 4, 8, 12, 16, 20, 24, 28, 60, 64, 68, 72


def S(n):
    return f"s[{n}:{n + 3}]"


class TS:
    def __init__(self, on):
        self.on = on

    def entry(self, a):
        if self.on:
            a("s_memrealtime s[98:99]")
            a("s_memtime s[100:101]")

    def setup(self, a, ws_pair):
        if not self.on:
            return
        srd(a, 92, ws_pair, 4 * MB, WS_TS)
        a("s_lshl_b32 s96, s2, 4")
        a("s_add_u32 s96, s96, s32")
        a("s_lshl_b32 s96, s96, 8")
        a("v_mov_b32 v254, s98")
        a("v_mov_b32 v255, s99")
        a("v_mov_b32 v253, 0")
        a(f"buffer_store_dwordx2 v[254:255], v253, s[92:95], s96 offen offset:{30 * 8}")

    def stamp(self, a, slot):
        if not self.on:
            return
        a("s_memrealtime s[90:91]")
        a("s_waitcnt lgkmcnt(0)")
        a("v_mov_b32 v254, s90")
        a("v_mov_b32 v255, s91")
        a(f"buffer_store_dwordx2 v[254:255], v253, s[92:95], s96 offen offset:{slot * 8}")

    def final(self, a, slot):
        if not self.on:
            return
        a("s_waitcnt vmcnt(0)")
        self.stamp(a, slot)
        a("s_memtime s[90:91]")
        a("s_waitcnt lgkmcnt(0)")
        a("s_sub_u32 s90, s90, s100")
        a("s_subb_u32 s91, s91, s101")
        a("s_nop 1")
        a("v_mov_b32 v254, s90")
        a("v_mov_b32 v255, s91")
        a(f"buffer_store_dwordx2 v[254:255], v253, s[92:95], s96 offen offset:{31 * 8}")


def emit_poll(a, voff, nlanes, tmp):
    lp = a.newlabel("poll")
    dn = a.newlabel("polld")
    mask = (1 << nlanes) - 1
    a(f"s_mov_b32 s80, 0x{mask & 0xffffffff:x}")
    a(f"s_mov_b32 s81, 0x{mask >> 32:x}")
    a("s_mov_b32 s85, 0")
    a.label(lp)
    a(f"buffer_load_dwordx2 {vr(tmp, 2)}, v{voff}, {S(SWS)}, 0 offen{SC}")
    a("s_waitcnt vmcnt(0)")
    a(f"v_cmp_eq_u64 vcc, s[78:79], {vr(tmp, 2)}")
    a("s_nop 1")
    a("s_and_b64 s[82:83], vcc, s[80:81]")
    a("s_cmp_eq_u64 s[82:83], s[80:81]")
    a(f"s_cbranch_scc1 {dn}")
    a("s_sleep 2")
    a("s_add_u32 s85, s85, 1")
    a(f"s_cmp_lt_u32 s85, 0x{SPIN_LIMIT:x}")
    a(f"s_cbranch_scc1 {lp}")
    a.label(dn)


def emit_publish(a, kind, t0):
    a(f"s_lshl_b32 s80, s2, 7")
    a(f"s_add_u32 s80, s80, 0x{WS_FL + kind * 32768:x}")
    a(f"v_mov_b32 v{t0}, s78")
    a(f"v_mov_b32 v{t0 + 1}, s79")
    a(f"v_mov_b32 v{t0 + 2}, 0")
    a("s_mov_b64 exec, 1")
    a(f"buffer_store_dwordx2 {vr(t0, 2)}, v{t0 + 2}, {S(SWS)}, s80 offen{SC}")
    a("s_mov_b64 exec, -1")


def emit_token(a, t0):
    a("s_memrealtime s[78:79]")
    a("s_waitcnt lgkmcnt(0)")
    a("s_or_b32 s78, s78, 1")
    a(f"v_mov_b32 v{t0}, s78")
    a(f"v_mov_b32 v{t0 + 1}, s79")
    a(f"v_mov_b32 v{t0 + 2}, 0")
    a(f"v_mov_b32 v{t0 + 3}, 0")
    a(f"v_mov_b32 v{t0 + 4}, 0")
    a("s_mov_b64 exec, 1")
    a(f"buffer_atomic_cmpswap_x2 {vr(t0, 4)}, v{t0 + 4}, {S(SDBG)}, 0 offen{SC}")
    a("s_mov_b64 exec, -1")


def emit_token_finish(a, t0):
    a(f"v_readfirstlane_b32 s80, v{t0}")
    a(f"v_readfirstlane_b32 s81, v{t0 + 1}")
    a("s_nop 1")
    a("s_cmp_eq_u64 s[80:81], 0")
    a("s_cselect_b32 s78, s78, s80")
    a("s_cselect_b32 s79, s79, s81")


def p1_lists():
    KK, VV, WR = 32, 56, 72
    KF_, WF_, RS_ = 80, 124, 140
    soffs = ["0", "s51", "s52", "s53"]
    setup, loads, comp, stores = [], [], [], []
    a = setup.append
    a("v_lshrrev_b32 v12, 3, v0")
    a("v_and_b32 v13, 7, v0")
    a("s_lshl_b32 s48, s35, 6")
    a("s_lshl_b32 s49, s3, 2")
    a("s_add_u32 s49, s49, s44")
    a("s_lshl_b32 s49, s49, 5")
    a("v_lshlrev_b32 v20, 3, v12")
    a("v_add_u32 v20, s48, v20")
    a("v_lshlrev_b32 v21, 2, v13")
    a("v_add_u32 v21, s49, v21")
    a("v_lshlrev_b32 v22, 11, v20")
    a("v_lshl_add_u32 v22, v21, 1, v22")
    a("s_mov_b32 s51, 4096")
    a("s_mov_b32 s52, 8192")
    a("s_mov_b32 s53, 12288")
    a("v_subrev_u32 v23, 6144, v22")
    a("v_mov_b32 v24, 0x80000000")
    a("v_cmp_gt_u32 vcc, 3, v20")
    a("v_lshlrev_b32 v25, 12, v21")
    a("v_sub_u32 v26, 2040, v20")
    a("v_cndmask_b32 v23, v23, v24, vcc")
    a("v_lshlrev_b32 v24, 3, v21")
    a("v_lshl_add_u32 v25, v26, 1, v25")
    for i in range(8):
        loads.append(f"buffer_load_dwordx2 {vr(KK + 6 + 2 * i, 2)}, v22, {S(SK)}, {soffs[i >> 1]} offen offset:{(i & 1) * 2048}")
    for i in range(8):
        loads.append(f"buffer_load_dwordx2 {vr(VV + 2 * i, 2)}, v22, {S(SV)}, {soffs[i >> 1]} offen offset:{(i & 1) * 2048}")
    for i in range(3):
        loads.append(f"buffer_load_dwordx2 {vr(KK + 2 * i, 2)}, v23, {S(SK)}, {soffs[i >> 1]} offen offset:{(i & 1) * 2048}")
    loads.append(f"buffer_load_dwordx4 {vr(WR, 4)}, v24, {S(SSH)}, 0 offen")
    loads.append(f"buffer_load_dwordx4 {vr(WR + 4, 4)}, v24, {S(SSH)}, 0 offen offset:16")
    a = comp.append
    for i in range(11):
        for h2 in range(2):
            src = KK + 2 * i + h2
            a(f"v_lshlrev_b32 v{KF_ + 4 * i + 2 * h2}, 16, v{src}")
            a(f"v_and_b32 v{KF_ + 4 * i + 2 * h2 + 1}, 0xffff0000, v{src}")
    for dd in range(4):
        for h2 in range(2):
            src = WR + 2 * dd + h2
            a(f"v_lshlrev_b32 v{WF_ + 4 * dd + 2 * h2}, 16, v{src}")
            a(f"v_and_b32 v{WF_ + 4 * dd + 2 * h2 + 1}, 0xffff0000, v{src}")
    for s_ in range(8):
        for dd in range(4):
            r = RS_ + 4 * s_ + dd
            a(f"v_mul_f32 v{r}, v{KF_ + 4 * (s_ + 3) + dd}, v{WF_ + 4 * dd}")
            for j in range(1, 4):
                a(f"v_fmac_f32 v{r}, v{KF_ + 4 * (s_ + 3 - j) + dd}, v{WF_ + 4 * dd + j}")
            src = VV + 2 * s_ + (dd >> 1)
            if dd & 1:
                a(f"v_and_b32 v28, 0xffff0000, v{src}")
            else:
                a(f"v_lshlrev_b32 v28, 16, v{src}")
            a(f"v_mul_f32 v{r}, v{r}, v28")
    stores.append(f"s_mov_b32 s54, 0x{WS_UR:x}")
    for dd in range(4):
        o = KK + 4 * dd
        for j in range(4):
            a(f"v_cvt_pk_bf16_f32 v{o + j}, v{RS_ + 4 * (7 - 2 * j) + dd}, v{RS_ + 4 * (6 - 2 * j) + dd}")
        stores.append(f"buffer_store_dwordx4 {vr(o, 4)}, v25, {S(SWS)}, s54 offen{SC}")
        if dd < 3:
            stores.append("s_add_u32 s54, s54, 4096")
    return setup, loads, comp, stores


def emit_conv_addr(a, VAB, VBB, VEB, VSO):
    a("v_and_b32 v12, 15, v0")
    a("v_lshrrev_b32 v13, 4, v0")
    a("v_add_u32 v14, 1, v12")
    a("v_and_b32 v15, 3, v14")
    a("v_sub_u32 v14, v14, v15")
    a("v_lshl_add_u32 v14, v13, 3, v14")
    a("v_lshlrev_b32 v14, 1, v14")
    a(f"v_mul_u32_u24 v15, {CPY}, v15")
    a(f"v_add3_u32 v{VAB}, v14, v15, s46")
    a("v_lshlrev_b32 v14, 5, v12")
    a("v_lshlrev_b32 v15, 4, v13")
    a(f"v_sub_u32 v{VBB}, v15, v14")
    a(f"v_add_u32 v{VBB}, {URO + 480}, v{VBB}")
    a(f"v_add_u32 v{VBB}, s46, v{VBB}")
    a("v_lshlrev_b32 v15, 3, v13")
    a(f"v_add_u32 v{VSO}, v14, v15")
    a(f"v_sub_u32 v{VEB}, {URO + 504}, v{VSO}")
    a(f"v_add_u32 v{VEB}, s46, v{VEB}")


def emit_conv_main(a, nts, ACC, FB, VAB, VBB, VEB, VSO, extra=(), hooks=None):
    mx = max(nts)
    nfr = mx + 1

    def creads(j, buf):
        f = FB[buf]
        out = []
        for q in range(nfr):
            o = 64 * j + 512 * q
            out.append(f"ds_read_b64 {vr(f + 4 * q, 2)}, v{VAB} offset:{o}")
            out.append(f"ds_read_b64 {vr(f + 4 * q + 2, 2)}, v{VAB} offset:{o + 8}")
            out.append(f"ds_read_b128 {vr(f + 4 * nfr + 4 * q, 4)}, v{VBB} offset:{512 * (7 - q) + 64 * j}")
        return out

    def cmfmas(j, buf):
        f = FB[buf]
        order = [(q, nt - q) for nt in nts for q in range(nt + 1)]
        order.sort(key=lambda x: (max(x[0], x[1]), x[0] + x[1]))
        seen = set()
        out = []
        for (q, dl) in order:
            nt = q + dl
            d = vr(ACC + 4 * nts.index(nt), 4)
            c = "0" if (j == 0 and nt not in seen) else d
            seen.add(nt)
            out.append(f"v_mfma_f32_16x16x32_bf16 {d}, {vr(f + 4 * q, 4)}, {vr(f + 4 * nfr + 4 * dl, 4)}, {c}")
        return out

    extra = list(extra)
    for i, r in enumerate(creads(0, 0)):
        a(r)
        if i % 12 == 11:
            a("s_waitcnt lgkmcnt(4)")
    for j in range(8):
        m = cmfmas(j, j & 1)
        r = creads(j + 1, (j + 1) & 1) if j < 7 else []
        if hooks and j in hooks:
            hooks[j]()
        a("s_waitcnt lgkmcnt(0)")
        per = -(-len(r) // max(1, len(m) - 2))
        ri = 0
        for i, mm in enumerate(m):
            a(mm)
            for _ in range(per):
                if ri < len(r):
                    a(r[ri]); ri += 1
            if extra and i % 3 == 2:
                a(extra.pop(0))
        assert ri == len(r)
    for x in extra:
        a(x)
    for i, nt in enumerate(nts):
        a(f"ds_read_b64 {vr(FB[0] + 2 * i, 2)}, v{VEB} offset:{512 * (7 - nt)}")
    a("s_nop 7")
    a("s_waitcnt lgkmcnt(0)")
    for i, nt in enumerate(nts):
        k0, k1 = FB[0] + 2 * i, FB[0] + 2 * i + 1
        t = FB[1] + 4 * i
        ac = ACC + 4 * i
        a(f"v_and_b32 v{t}, 0xffff0000, v{k1}")
        a(f"v_lshlrev_b32 v{t + 1}, 16, v{k1}")
        a(f"v_and_b32 v{t + 2}, 0xffff0000, v{k0}")
        a(f"v_lshlrev_b32 v{t + 3}, 16, v{k0}")
        for e in range(4):
            a(f"v_fmac_f32 v{ac + e}, s38, v{t + e}")
        a(f"v_cvt_pk_bf16_f32 v{ac}, v{ac}, v{ac + 1}")
        a(f"v_cvt_pk_bf16_f32 v{ac + 1}, v{ac + 2}, v{ac + 3}")
        a(f"buffer_store_dwordx2 {vr(ac, 2)}, v{VSO}, {S(SWS)}, s47 offen offset:{512 * nt}{SC}")


MASKS = [4, 6, 8, 10, 16, 18, 20, 22, 24, 26, 48, 50, 52, 54, 56, 58]


def emit_attention(a, ts, QC, fills):
    SB = 8
    KV = [88, 96]
    OA = 112
    VM, VM2, VT, VL, VL2, VNEG, VMA = 128, 129, 130, 131, 132, 133, 135
    VAD = 136
    a("v_and_b32 v4, 31, v0")
    a("v_lshrrev_b32 v5, 5, v0")
    a("v_lshlrev_b32 v5, 2, v5")
    a("v_sub_u32 v4, v4, v5")
    for r in range(16):
        a(f"v_cmp_le_i32 s[{MASKS[r]}:{MASKS[r] + 1}], {8 * (r >> 2) + (r & 3)}, v4")
    a(f"v_mov_b32 v{VNEG}, 0xf149f2ca")
    a("v_lshlrev_b32 v2, 4, v0")
    a("s_cmp_eq_u32 s41, 0")
    a(f"s_mov_b32 s42, {L_PKB[2]}")
    a(f"s_cselect_b32 s42, {L_PKB[0]}, s42")
    a(f"s_mov_b32 s80, {L_PKB[3] - L_PKB[2]}")
    a(f"s_cselect_b32 s80, {L_PKB[1] - L_PKB[0]}, s80")
    a("s_lshl_b32 s43, s41, 14")
    a("s_movk_i32 s81, 0x2000")
    for rel in range(9):
        a(f"s_add_u32 s45, s40, {rel}")
        a("s_lshl_b32 s46, s45, 11")
        a("s_add_u32 s47, s46, s42")
        a("s_add_u32 s46, s46, s43")
        a("s_cmp_lt_u32 s45, 8")
        a("s_cselect_b32 s46, s47, s46")
        a("s_cselect_b32 s47, s80, s81")
        a(f"v_add_u32 v{VAD + rel}, s46, v2")
        a(f"v_add_u32 v{VAD + 9 + rel}, s47, v{VAD + rel}")
    a("s_lshl_b32 s45, s33, 2")
    a("s_add_u32 s45, s45, s40")
    a("s_sub_u32 s46, 8, s45")
    a("s_cmp_lt_u32 s45, 8")
    a("s_cselect_b32 s46, s46, 0")
    a("s_lshl_b32 s47, s45, 5")
    a("s_lshl_b32 s42, s34, 1")
    a("s_add_u32 s47, s47, s42")
    a("s_add_u32 s47, s47, s41")
    a("s_lshl_b32 s47, s47, 11")
    a(f"s_add_u32 s47, s47, 0x{WS_OF:x}")
    a(f"s_mov_b32 s42, {f32hex(SCALE_LOG2E)}")
    a("s_mov_b32 s43, 0x3f803f80")
    a(f"v_mov_b32 v{VL}, 0")
    a(f"v_mov_b32 v{VL2}, 0")

    def kvread(rel, buf, isv):
        ad = VAD + rel + (9 if isv else 0)
        return [f"ds_read_b128 {vr(KV[buf], 4)}, v{ad}",
                f"ds_read_b128 {vr(KV[buf] + 4, 4)}, v{ad} offset:1024"]

    def maxops(rel, slot, first):
        s = SB + 16 * slot
        out = []
        if rel == 0:
            for r in range(16):
                out.append(f"v_cndmask_b32 v{s + r}, v{s + r}, v{VNEG}, s[{MASKS[r]}:{MASKS[r] + 1}]")
        if rel == 8:
            for r in range(16):
                out.append(f"v_cndmask_b32 v{s + r}, v{VNEG}, v{s + r}, s[{MASKS[r]}:{MASKS[r] + 1}]")
        for i in range(8):
            acc = (VM, VM2)[i & 1]
            if first and i < 2:
                out.append(f"v_max_f32 v{acc}, v{s + 2 * i}, v{s + 2 * i + 1}")
            else:
                out.append(f"v_max3_f32 v{acc}, v{s + 2 * i}, v{s + 2 * i + 1}, v{acc}")
        return out

    return_after_setup = []

    def body():
        nb = 0
        groups = [list(range(0, 5)), list(range(5, 9))]
        for x in kvread(0, 0, False):
            a(x)
        for gi, grp in enumerate(groups):
            n = len(grp)
            for idx, rel in enumerate(grp):
                buf = nb & 1
                nxt = kvread(rel + 1, buf ^ 1, False) if idx < n - 1 else kvread(grp[0], buf ^ 1, True)
                for x in nxt:
                    a(x)
                a("s_waitcnt lgkmcnt(2)")
                s = vr(SB + 16 * idx, 16)
                lf, lb = a.newlabel("fill"), a.newlabel("back")
                if rel < 8:
                    a(f"s_cmp_gt_u32 s46, {rel}")
                    a(f"s_cbranch_scc1 {lf}")
                a(f"v_mfma_f32_32x32x16_bf16 {s}, {vr(KV[buf], 4)}, {vr(QC, 4)}, 0")
                a(f"v_mfma_f32_32x32x16_bf16 {s}, {vr(KV[buf] + 4, 4)}, {vr(QC + 4, 4)}, {s}")
                if rel < 8:
                    a.label(lb)
                    fills.append((lf, lb, SB + 16 * idx, VNEG))
                if idx >= 2:
                    for x in maxops(grp[idx - 2], idx - 2, idx == 2):
                        a(x)
                nb += 1
            for x in maxops(grp[n - 2], n - 2, False):
                a(x)
            a("s_nop 3")
            for x in maxops(grp[n - 1], n - 1, False):
                a(x)
            a(f"v_max_f32 v{VM}, v{VM}, v{VM2}")
            a("s_nop 0")
            a(f"v_mov_b32 v{VT}, v{VM}")
            a("s_nop 1")
            a(f"v_permlane32_swap_b32 v{VM}, v{VT}")
            a("s_nop 1")
            a(f"v_max_f32 v{VM}, v{VM}, v{VT}")
            if gi == 0:
                a(f"v_mul_f32 v{VMA}, s42, v{VM}")
            else:
                a(f"v_mul_f32 v{VM}, s42, v{VM}")
                a(f"v_max_f32 v{VM}, v{VM}, v{VMA}")
                a(f"v_sub_f32 v{VT}, v{VMA}, v{VM}")
                a(f"v_exp_f32 v{VT}, v{VT}")
                a(f"v_mov_b32 v{VMA}, v{VM}")
                for r in range(16):
                    a(f"v_mul_f32 v{OA + r}, v{OA + r}, v{VT}")
                a(f"v_mul_f32 v{VL}, v{VL}, v{VT}")
                a(f"v_mul_f32 v{VL2}, v{VL2}, v{VT}")
            for idx, rel in enumerate(grp):
                buf = nb & 1
                s = SB + 16 * idx
                if idx < n - 1:
                    nxt = kvread(rel + 1, buf ^ 1, True)
                elif gi == 0:
                    nxt = kvread(groups[1][0], buf ^ 1, False)
                else:
                    nxt = []
                for x in nxt:
                    a(x)
                for r in range(16):
                    a(f"v_fma_f32 v{s + r}, v{s + r}, s42, -v{VMA}")
                for r in range(16):
                    a(f"v_exp_f32 v{s + r}, v{s + r}")
                for j in range(8):
                    a(f"v_cvt_pk_bf16_f32 v{s + j}, v{s + 2 * j}, v{s + 2 * j + 1}")
                for j in range(8):
                    acc = (VL, VL2)[j & 1]
                    a(f"v_dot2_f32_bf16 v{acc}, v{s + j}, s43, v{acc}")
                a(f"s_waitcnt lgkmcnt({len(nxt)})")
                o = vr(OA, 16)
                a(f"v_mfma_f32_32x32x16_bf16 {o}, {vr(KV[buf], 4)}, {vr(s, 4)}, {'0' if rel == 0 else o}")
                a(f"v_mfma_f32_32x32x16_bf16 {o}, {vr(KV[buf] + 4, 4)}, {vr(s + 4, 4)}, {o}")
                nb += 1
        a("s_nop 2")
        a(f"v_add_f32 v{VL}, v{VL}, v{VL2}")
        a("s_nop 0")
        a(f"v_mov_b32 v{VT}, v{VL}")
        a("s_nop 1")
        a(f"v_permlane32_swap_b32 v{VL}, v{VT}")
        a("s_nop 1")
        a(f"v_add_f32 v{VL}, v{VL}, v{VT}")
        a(f"v_rcp_f32 v{VL}, v{VL}")
        a("s_nop 7")
        for r in range(16):
            a(f"v_mul_f32 v{OA + r}, v{OA + r}, v{VL}")
        for j in range(8):
            a(f"v_cvt_pk_bf16_f32 v{OA + j}, v{OA + 2 * j}, v{OA + 2 * j + 1}")
        a(f"buffer_store_dwordx4 {vr(OA, 4)}, v2, {S(SWS)}, s47 offen{SC}")
        a(f"buffer_store_dwordx4 {vr(OA + 4, 4)}, v2, {S(SWS)}, s47 offen offset:1024{SC}")
    return body


def emit_token_read(a, t0):
    lp = a.newlabel("tok")
    dn = a.newlabel("tokd")
    a(f"v_mov_b32 v{t0 + 2}, 0")
    a("s_mov_b32 s85, 0")
    a.label(lp)
    a(f"buffer_load_dwordx2 {vr(t0, 2)}, v{t0 + 2}, {S(SDBG)}, 0 offen{SC}")
    a("s_waitcnt vmcnt(0)")
    a(f"v_readfirstlane_b32 s78, v{t0}")
    a(f"v_readfirstlane_b32 s79, v{t0 + 1}")
    a("s_nop 1")
    a("s_cmp_lg_u64 s[78:79], 0")
    a(f"s_cbranch_scc1 {dn}")
    a("s_add_u32 s85, s85, 1")
    a(f"s_cmp_lt_u32 s85, 0x{SPIN_LIMIT:x}")
    a(f"s_cbranch_scc1 {lp}")
    a.label(dn)


def emit_wg_of(a, vdst, vrb, vhp, t):
    a(f"v_lshrrev_b32 v{vdst}, 3, v{vrb}")
    a(f"v_lshrrev_b32 v{t}, 2, v{vhp}")
    a(f"v_lshl_add_u32 v{vdst}, v{t}, 1, v{vdst}")
    a(f"v_and_b32 v{t}, 7, v{vrb}")
    a(f"v_lshl_add_u32 v{vdst}, v{t}, 3, v{vdst}")
    a(f"v_and_b32 v{t}, 3, v{vhp}")
    a(f"v_lshl_add_u32 v{vdst}, v{t}, 6, v{vdst}")
    a(f"v_lshlrev_b32 v{vdst}, 7, v{vdst}")


def gen_fused(a, ts):
    name = NAME + "_kernel"
    kernel_begin(a, name)
    ts.entry(a)
    a("s_cmp_ge_u32 s2, 256")
    a("s_cbranch_scc1 L_end")
    if "diagx" in OPT:
        a("s_getreg_b32 s3, hwreg(HW_REG_XCC_ID)")
        a("s_and_b32 s3, s3, 7")
        a("s_and_b32 s4, s2, 7")
        a("s_cmp_eq_u32 s3, s4")
        a("s_cbranch_scc1 L_dx_done")
        a("s_memrealtime s[4:5]")
        a("s_waitcnt lgkmcnt(0)")
        a("s_add_u32 s6, s4, 2000")
        a("s_mov_b32 s7, 0")
        a.label("L_dx")
        a("s_sleep 8")
        a("s_memrealtime s[4:5]")
        a("s_add_u32 s7, s7, 1")
        a("s_cmp_gt_u32 s7, 0x2000")
        a("s_cbranch_scc1 L_dx_done")
        a("s_waitcnt lgkmcnt(0)")
        a("s_sub_u32 s8, s6, s4")
        a("s_cmp_gt_i32 s8, 0")
        a("s_cbranch_scc1 L_dx")
        a.label("L_dx_done")
        a("s_waitcnt lgkmcnt(0)")
    if "perm" in OPT:
        a("s_and_b32 s3, s2, 7")
        a("s_lshl_b32 s3, s3, 5")
        a("s_lshr_b32 s2, s2, 3")
        a("s_or_b32 s2, s2, s3")
    a("s_load_dwordx16 s[36:51], s[0:1], 0")
    a("s_load_dwordx8 s[52:59], s[0:1], 64")
    a("v_lshrrev_b32 v1, 6, v0")
    a("v_and_b32 v0, 63, v0")
    a("s_and_b32 s3, s2, 7")
    a("v_readfirstlane_b32 s32, v1")
    a("s_lshr_b32 s35, s2, 3")
    a("s_and_b32 s33, s3, 1")
    a("s_lshl_b32 s33, s33, 3")
    a("s_and_b32 s80, s35, 7")
    a("s_add_u32 s33, s33, s80")
    a("s_lshr_b32 s34, s3, 1")
    a("s_lshl_b32 s34, s34, 2")
    a("s_lshr_b32 s80, s35, 3")
    a("s_add_u32 s34, s34, s80")
    a("s_lshl_b32 s84, s3, 5")
    a("s_add_u32 s84, s84, s35")
    a("s_lshl_b32 s80, s84, 3")
    a("s_waitcnt lgkmcnt(0)")
    if ts.on and ("tsb" in OPT or "tsd" in OPT):
        a("s_memrealtime s[86:87]")
    a("s_load_dwordx2 s[76:77], s[46:47], s80")
    srd(a, SX, 48, 4 * MB)
    srd(a, SW, 50, 6 * MB)
    srd(a, SWS, 58, WS_SIZE)
    srd(a, SK, 38, 4 * MB)
    srd(a, SV, 40, 4 * MB)
    srd(a, SSH, 42, 8192)
    srd(a, SHK, 44, 4 * MB)
    srd(a, SWO, 52, 2 * MB)
    srd(a, SQ, 36, 4 * MB)
    srd(a, SOUT, 54, 8 * MB)
    srd(a, SDBG, 56, 256)
    ts.setup(a, 58)
    a("s_cmp_ge_u32 s32, 4")
    a("s_cbranch_scc1 L_H")

    ACC = 80
    FR = [16, 36, 56]
    XA, WB = 2, 6
    TD = 5
    a("v_and_b32 v8, 15, v0")
    a("v_lshrrev_b32 v9, 4, v0")
    a("s_lshl_b32 s46, s35, 5")
    a("s_lshl_b32 s47, s32, 3")
    a("s_add_u32 s46, s46, s47")
    a("s_and_b32 s47, s3, 1")
    a("s_lshl_b32 s47, s47, 10")
    a("s_add_u32 s46, s46, s47")
    a("v_add_u32 v10, s46, v8")
    a("v_lshlrev_b32 v10, 11, v10")
    a("v_lshl_add_u32 v10, v9, 7, v10")
    a("v_mov_b32 v12, 0x80000000")
    a("v_cmp_gt_u32 vcc, 8, v8")
    a("s_mul_i32 s46, s35, 24")
    a("s_mul_i32 s47, s32, 6")
    a("v_cndmask_b32 v176, v12, v10, vcc")
    a("s_add_u32 s46, s46, s47")
    a("v_add_u32 v10, s46, v8")
    a("v_mul_u32_u24 v11, 5462, v10")
    a("v_lshrrev_b32 v11, 16, v11")
    a("v_mul_u32_u24 v13, 12, v11")
    a("v_sub_u32 v10, v10, v13")
    a("v_lshl_add_u32 v11, v9, 6, v11")
    a("v_mul_u32_u24 v11, 6144, v11")
    a("v_lshrrev_b32 v13, 2, v10")
    a("v_lshl_add_u32 v11, v13, 11, v11")
    a("v_and_b32 v10, 3, v10")
    a("v_lshl_add_u32 v11, v10, 7, v11")
    a("s_lshr_b32 s47, s3, 1")
    a("s_lshl_b32 s47, s47, 9")
    a("v_add_u32 v11, s47, v11")
    a("v_cmp_gt_u32 vcc, 6, v8")
    a("s_nop 1")
    a("v_cndmask_b32 v177, v12, v11, vcc")

    def touch4(t0):
        return [f"s_mov_b32 s46, {t0 * 128}",
                f"s_mov_b32 s47, {t0 * 393216}",
                f"buffer_load_dword v178, v176, {S(SX)}, s46 offen",
                f"buffer_load_dword v179, v177, {S(SW)}, s47 offen"]

    sched = {}
    schedn = {}
    if "tall" in OPT:
        for i, t0 in enumerate((2, 6, 10, 14)):
            schedn[i] = touch4(t0)
    elif "tall2" in OPT:
        for x in touch4(2):
            a(x)
        for i, t0 in enumerate((6, 10, 14)):
            schedn[2 * i] = touch4(t0)
    elif "not0" not in OPT:
        for x in touch4(2):
            a(x)

    def tok_block():
        ltk = a.newlabel("notok")
        a("s_cmp_lg_u32 s32, 0")
        a(f"s_cbranch_scc1 {ltk}")
        emit_token(a, 180)
        a.label(ltk)
    TOKN = -1
    for o in OPT:
        if o.startswith("tok"):
            TOKN = int(o[3:])
    if TOKN < 0:
        tok_block()
    for o in OPT:
        if o.startswith("td"):
            TD = int(o[2:])
    for t0 in (6, 10, 14):
        if "notouch" not in OPT and "tall" not in OPT and "tall2" not in OPT:
            sched.setdefault(max(0, t0 - TD), []).extend(touch4(t0))
    a("s_and_b32 s44, s32, 1")
    a("s_lshr_b32 s45, s32, 1")
    a("v_and_b32 v8, 31, v0")
    a("v_lshrrev_b32 v9, 5, v0")
    a("v_lshrrev_b32 v10, 1, v8")
    a("v_and_b32 v10, 7, v10")
    a("v_lshlrev_b32 v11, 7, v8")
    a("s_lshl_b32 s46, s44, 13")
    a("v_add_u32 v11, s46, v11")
    for ks in range(4):
        a(f"v_add_u32 v12, {2 * ks}, v9")
        a("v_xor_b32 v12, v12, v10")
        a(f"v_lshl_add_u32 v{XA + ks}, v12, 4, v11")
    a("v_and_b32 v10, 15, v0")
    a("v_lshrrev_b32 v11, 4, v0")
    a("v_lshrrev_b32 v12, 2, v10")
    a("v_lshl_add_u32 v12, v9, 3, v12")
    a("v_mul_u32_u24 v12, 384, v12")
    a("v_lshrrev_b32 v13, 3, v10")
    a("v_xor_b32 v13, s45, v13")
    a("v_lshl_add_u32 v12, v13, 6, v12")
    a("v_and_b32 v13, 1, v11")
    a("v_lshl_add_u32 v12, v13, 5, v12")
    a("v_and_b32 v13, 3, v10")
    a("v_lshl_add_u32 v12, v13, 3, v12")
    a(f"v_add_u32 v{WB}, 0x10000, v12")
    a(f"v_add_u32 v{WB + 1}, 0x1c000, v12")

    def reads(t, ks, buf):
        st = (t + 1) & 3
        f = FR[buf]
        xa = XA + ks
        wb = WB + (st >> 1)
        wo = (st & 1) * 24576 + 16 * ks * 384
        return [f"ds_read_b128 {vr(f, 4)}, v{xa} offset:{st * 16384}",
                f"ds_read_b64_tr_b16 {vr(f + 8, 2)}, v{wb} offset:{wo}",
                f"ds_read_b64_tr_b16 {vr(f + 10, 2)}, v{wb} offset:{wo + 4 * 384}",
                f"ds_read_b128 {vr(f + 4, 4)}, v{xa} offset:{st * 16384 + 4096}",
                f"ds_read_b64_tr_b16 {vr(f + 12, 2)}, v{wb} offset:{wo + 128}",
                f"ds_read_b64_tr_b16 {vr(f + 14, 2)}, v{wb} offset:{wo + 128 + 4 * 384}",
                f"ds_read_b64_tr_b16 {vr(f + 16, 2)}, v{wb} offset:{wo + 256}",
                f"ds_read_b64_tr_b16 {vr(f + 18, 2)}, v{wb} offset:{wo + 256 + 4 * 384}"]

    def mfmas(buf, first):
        f = FR[buf]
        X = [vr(f, 4), vr(f + 4, 4)]
        W = [vr(f + 8, 4), vr(f + 12, 4), vr(f + 16, 4)]
        out = []
        for part in range(3):
            for rt in range(2):
                d = vr(ACC + 16 * (2 * part + rt), 16)
                c = "0" if first else d
                if part < 2:
                    out.append(f"v_mfma_f32_32x32x16_bf16 {d}, {W[part]}, {X[rt]}, {c}")
                else:
                    out.append(f"v_mfma_f32_32x32x16_bf16 {d}, {X[rt]}, {W[part]}, {c}")
        return out

    a("s_barrier")
    for r in reads(0, 0, 0) + reads(0, 1, 1):
        a(r)
    for n in range(64):
        t, ks = n >> 2, n & 3
        if n == TOKN:
            tok_block()
        if n == 0 and "t0late" in OPT:
            for x in touch4(2):
                a(x)
        m = mfmas(n % 3, n == 0)
        n2 = n + 2
        r = reads(n2 >> 2, n2 & 3, n2 % 3) if n2 < 64 else []
        if "nomfma" in OPT:
            m = ["s_nop 0"] * 6
        if "nolds" in OPT:
            r = []
        tch = (sched.get(t, []) if ks == 0 else []) + schedn.get(n, [])
        if n == 44:
            tch = tch + ["v_mov_b32 v188, 0", f"buffer_load_dwordx2 v[186:187], v188, {S(SDBG)}, 0 offen{SC}"]
        if n == 60:
            tch = tch + ["s_waitcnt vmcnt(0)"]
        if ks == 2 and t < 15:
            a("s_waitcnt lgkmcnt(0)")
            a(m[0])
            a("s_barrier")
        else:
            a(f"s_waitcnt lgkmcnt({8 if n < 63 else 0})")
            a(m[0])
        ri = 0
        for i, mm in enumerate(m[1:]):
            for _ in range(2):
                if ri < len(r):
                    a(r[ri]); ri += 1
            if i == 4:
                for x in tch:
                    a(x)
            a(mm)
    ts.stamp(a, 1)
    QC = 224
    a("s_lshl_b32 s46, s34, 1")
    a("s_add_u32 s46, s46, s45")
    a("s_lshl_b32 s46, s46, 6")
    a("s_lshl_b32 s47, s33, 2")
    a("s_add_u32 s46, s46, s47")
    a("s_lshl_b32 s47, s44, 1")
    a("s_add_u32 s46, s46, s47")
    a("s_lshl_b32 s46, s46, 11")
    a(f"s_add_u32 s47, s46, 0x{WS_KF:x}")
    a(f"s_add_u32 s48, s46, 0x{WS_VF:x}")
    a("v_lshlrev_b32 v1, 4, v0")
    a("s_lshl_b32 s80, s45, 14")
    a("s_lshl_b32 s81, s44, 12")
    a("s_add_u32 s80, s80, s81")
    a("v_add_u32 v7, s80, v1")
    a("s_lshl_b32 s80, s32, 11")
    a("v_add_u32 v8, s80, v1")
    a("s_nop 3")
    for part in (1, 2, 0):
        for rt in range(2):
            b = ACC + 16 * (2 * part + rt)
            d = QC if (part == 0 and rt == 0) else b
            for j in range(8):
                a(f"v_cvt_pk_bf16_f32 v{d + j}, v{b + 2 * j}, v{b + 2 * j + 1}")
            for step in range(2):
                if part:
                    a(f"buffer_store_dwordx4 {vr(d + 4 * step, 4)}, v1, {S(SWS)}, s{46 + part} offen offset:{rt * 2048 + step * 1024}{SC}")
                    a(f"ds_write_b128 v7, {vr(d + 4 * step, 4)} offset:{L_OKV + (part - 1) * 8192 + rt * 2048 + step * 1024}")
                elif rt == 1:
                    a(f"ds_write_b128 v8, {vr(d + 4 * step, 4)} offset:{L_QH + step * 1024}")
    a("v_readfirstlane_b32 s78, v186")
    a("v_readfirstlane_b32 s79, v187")
    lok = a.newlabel("tokok")
    a("s_nop 1")
    a("s_cmp_lg_u64 s[78:79], 0")
    a(f"s_cbranch_scc1 {lok}")
    emit_token_read(a, 186)
    a.label(lok)
    a("s_lshl_b32 s40, s44, 1")
    a("s_mov_b32 s41, s45")
    a("s_waitcnt lgkmcnt(0)")
    a("s_branch L_POST")

    a.label("L_H")
    a("s_setprio 3")
    a("s_sub_u32 s44, s32, 4")
    XO, WO = 2, 6
    a("v_lshrrev_b32 v12, 3, v0")
    a("v_and_b32 v13, 7, v0")
    a("s_lshl_b32 s45, s33, 7")
    a("s_lshl_b32 s46, s44, 5")
    a("s_add_u32 s45, s45, s46")
    a("v_lshrrev_b32 v14, 4, v0")
    a("v_xor_b32 v14, v14, v13")
    a("v_add_u32 v15, s45, v12")
    a("v_lshlrev_b32 v15, 11, v15")
    a(f"v_lshl_add_u32 v{XO}, v14, 4, v15")
    a(f"v_xor_b32 v{XO + 1}, 64, v{XO}")
    a(f"v_add_u32 v{XO + 1}, {16384 - 1024}, v{XO + 1}")
    a(f"v_add_u32 v{XO + 2}, {2 * (16384 - 1024)}, v{XO}")
    a(f"v_add_u32 v{XO + 3}, {2 * (16384 - 1024)}, v{XO + 1}")
    a("s_lshl_b32 s45, s44, 12")

    def issue_x(t):
        st = (t + 1) & 3
        a(f"s_add_u32 m0, s45, {st * 16384}")
        a(f"s_mov_b32 s47, {t * 128}")
        for i in range(4):
            a(f"buffer_load_dwordx4 v{XO + i}, {S(SX)}, s47 offen offset:{1024 * i} lds")

    def issue_w(t):
        st = (t + 1) & 3
        a(f"s_add_u32 m0, s46, {st * 24576}")
        a(f"s_mov_b32 s47, {t * 393216}")
        for i in range(4):
            a(f"buffer_load_dwordx4 v{WO + i}, {S(SW)}, s47 offen offset:{1024 * i} lds")
        a(f"s_add_u32 m0, s46, {st * 24576 + 4096}")
        a("s_nop 0")
        for i in range(4, 6):
            a(f"buffer_load_dwordx4 v{WO + i}, {S(SW)}, s47 offen offset:{1024 * (i - 4)} lds")

    def issue(t):
        if "nodma" in OPT and t >= 2:
            for i in range(10):
                a(f"buffer_load_dword v200, off, {S(SSH)}, 0")
            return
        if "nox" in OPT and t >= 2:
            for i in range(4):
                a(f"buffer_load_dword v200, off, {S(SSH)}, 0")
        else:
            issue_x(t)
        if "now" in OPT and t >= 2:
            for i in range(6):
                a(f"buffer_load_dword v200, off, {S(SSH)}, 0")
        else:
            issue_w(t)

    issue_x(0)
    if ts.on and ("tsb" in OPT or "tsd" in OPT):
        a("s_memrealtime s[88:89]")
    a("s_mul_i32 s48, s44, 98304")
    a("s_lshl_b32 s46, s34, 7")
    a("s_add_u32 s48, s48, s46")
    for i in range(6):
        if i:
            a(f"v_add_u32 v14, {64 * i}, v0")
        src = "v14" if i else "v0"
        a(f"v_mul_u32_u24 v15, 2731, {src}")
        a("v_lshrrev_b32 v15, 16, v15")
        a("v_mul_u32_u24 v16, 24, v15")
        a(f"v_sub_u32 v16, {src}, v16")
        a("v_bfe_u32 v18, v15, 1, 1")
        a("v_lshlrev_b32 v18, 2, v18")
        a("v_xor_b32 v16, v16, v18")
        a("v_lshrrev_b32 v18, 3, v16")
        a("v_and_b32 v16, 7, v16")
        a("v_mul_u32_u24 v15, 6144, v15")
        a("v_lshl_add_u32 v15, v18, 11, v15")
        a("v_lshl_add_u32 v15, v16, 4, v15")
        il = i if i < 4 else i - 4
        if il:
            a(f"s_sub_u32 s49, s48, {1024 * il}")
            a(f"v_add_u32 v{WO + i}, s49, v15")
        else:
            a(f"v_add_u32 v{WO + i}, s48, v15")
    a("s_mul_i32 s46, s44, 6144")
    a("s_add_u32 s46, s46, 0x10000")
    issue_w(0)
    issue(1)
    order = ["T0", "T1"]
    p_setup, p_loads, p_comp, p_stores = p1_lists()
    for x in p_setup:
        a(x)

    def wait_tile(b):
        last = max(i for i, x in enumerate(order) if x == f"T{b}")
        n = sum(10 if x.startswith("T") else 1 for x in order[last + 1:])
        a(f"s_waitcnt vmcnt({n})")

    if ts.on and "tsd" in OPT:
        a("s_memrealtime s[36:37]")
        for i, n in enumerate((16, 10, 6, 0)):
            a(f"s_waitcnt vmcnt({n})")
            a(f"s_memrealtime s[{38 + 2 * i if i < 3 else 56}:{39 + 2 * i if i < 3 else 57}]")
        a("s_waitcnt lgkmcnt(0)")
        for (sl, sr_) in ((0, 86), (29, 88), (21, 36), (22, 38), (23, 40), (24, 42), (25, 56)):
            a(f"v_mov_b32 v254, s{sr_}")
            a(f"v_mov_b32 v255, s{sr_ + 1}")
            a(f"buffer_store_dwordx2 v[254:255], v253, s[92:95], s96 offen offset:{sl * 8}")
            order.append("P")
    TB0 = 0
    for o in OPT:
        if o.startswith("tsc"):
            TB0 = int(o[3:])
    tsc = ts.on and any(o.startswith("tsc") for o in OPT)
    wait_tile(0)
    if tsc and TB0 == 0:
        ts.stamp(a, 11); order.append("P")
    a("s_barrier")
    if tsc and TB0 == 0:
        ts.stamp(a, 19); order.append("P")
    if ts.on and "tsb" in OPT:
        ts.stamp(a, 11); order.append("P")
        for (sl, sr_) in ((0, 86), (29, 88)):
            a(f"v_mov_b32 v254, s{sr_}")
            a(f"v_mov_b32 v255, s{sr_ + 1}")
            a(f"buffer_store_dwordx2 v[254:255], v253, s[92:95], s96 offen offset:{sl * 8}")
            order.append("P")
    issue(2); order.append("T2")
    issue(3); order.append("T3")
    PL0, PLN = 1, 6
    for o in OPT:
        if o.startswith("pl"):
            PL0, PLN = int(o[2]), int(o[3:])
    pl, pc = list(p_loads), list(p_comp)
    if "nop1" in OPT:
        pl = []
    last_pl_b = PL0 + (len(p_loads) + PLN - 1) // PLN - 1
    PC0 = last_pl_b + 4
    PSB = 10
    assert PC0 < PSB
    per = (len(pc) + (PSB - PC0) - 1) // (PSB - PC0)
    HL, UL = 176, 208
    a("s_lshl_b32 s55, s84, 2")
    a("s_add_u32 s55, s55, s44")
    a("s_lshl_b32 s55, s55, 12")
    a("v_lshlrev_b32 v1, 4, v0")
    a("v_mov_b32 v174, 0")
    hloads = []
    for k in range(4):
        hloads.append(f"buffer_load_dwordx4 {vr(HL + 8 * k, 4)}, v1, {S(SHK)}, s55 offen offset:{1024 * k}")
        hloads.append(f"buffer_load_dwordx2 {vr(HL + 8 * k + 4, 2)}, v1, {S(SHK)}, s55 offen offset:{1024 * k + 16}")
    for b in range(1, 16):
        wait_tile(b)
        if tsc and TB0 <= b < TB0 + 8:
            ts.stamp(a, 11 + b - TB0); order.append("P")
        a("s_barrier")
        if tsc and TB0 <= b < TB0 + 8:
            ts.stamp(a, 19 + b - TB0); order.append("P")
        if ts.on and "tsb" in OPT:
            ts.stamp(a, 11 + b); order.append("P")
        if b == PSB:
            assert not pc
            for x in p_stores:
                if "nop1" in OPT and x.startswith("buffer"):
                    continue
                a(x)
                if x.startswith("buffer"):
                    order.append("P")
            a(f"buffer_load_dwordx2 v[172:173], v174, {S(SDBG)}, 0 offen{SC}")
            order.append("P")
        if b + 3 <= 15:
            issue(b + 3); order.append(f"T{b + 3}")
        if b >= PL0:
            for x in pl[:PLN]:
                a(x); order.append("P")
            pl = pl[PLN:]
        if b == 12 and "noh" not in OPT:
            for x in hloads:
                a(x); order.append("P")
        if PC0 <= b < PSB:
            for x in pc[:per]:
                if "nop1" not in OPT:
                    a(x)
            pc = pc[per:]
        if b == PSB + 3:
            a("v_readfirstlane_b32 s78, v172")
            a("v_readfirstlane_b32 s79, v173")
            lok = a.newlabel("tokok")
            a("s_nop 1")
            a("s_cmp_lg_u64 s[78:79], 0")
            a(f"s_cbranch_scc1 {lok}")
            emit_token_read(a, 172)
            a.label(lok)
            lpb = a.newlabel("nopub")
            a("s_cmp_lg_u32 s44, 0")
            a(f"s_cbranch_scc1 {lpb}")
            emit_publish(a, FL_UR, 168)
            a.label(lpb)
    assert not pl
    ts.stamp(a, 1)
    a("v_and_b32 v12, 31, v0")
    a("v_lshlrev_b32 v12, 3, v12")
    a("v_add_u32 v12, s3, v12")
    a("v_lshlrev_b32 v12, 7, v12")
    a(f"v_add_u32 v12, 0x{WS_FL + FL_UR * 32768:x}, v12")
    emit_poll(a, 12, 32, 8)
    if "tsb" in OPT:
        ts.stamp(a, 27)
    a(f"s_add_u32 s80, s55, 0x{WS_UR:x}")
    for k in range(4):
        a(f"buffer_load_dwordx4 {vr(UL + 4 * k, 4)}, v1, {S(SWS)}, s80 offen offset:{1024 * k}{SC}")

    def build_region():
        ET = 16
        a("s_and_b32 s80, s44, 1")
        a(f"s_mul_i32 s80, s80, {CW}")
        a(f"s_add_u32 s80, s80, {L_R0}")
        for k in range(4):
            D = HL + 8 * k
            e1, e2, e3 = ET + 12 * k, ET + 12 * k + 4, ET + 12 * k + 8
            for i in range(4):
                a(f"v_alignbit_b32 v{e1 + i}, v{D + i + 1}, v{D + i}, 16")
            for i in range(4):
                a(f"v_mov_b32 v{e2 + i}, v{D + i + 1}")
            for i in range(4):
                a(f"v_alignbit_b32 v{e3 + i}, v{D + i + 2}, v{D + i + 1}, 16")
        a("v_add_u32 v7, s80, v1")
        for i in range(4):
            a(f"v_mov_b32 v{8 + i}, 0")
        a("v_lshlrev_b32 v64, 3, v0")
        a("v_add_u32 v64, s80, v64")
        a("v_and_b32 v65, 3, v0")
        a(f"v_mul_u32_u24 v65, {CPY}, v65")
        a("v_bfe_u32 v66, v0, 2, 1")
        a("v_lshl_add_u32 v65, v66, 4, v65")
        a("v_add_u32 v65, s80, v65")
        a("v_mov_b32 v66, s80")
        a(f"v_lshlrev_b32 v67, 16, v{HL}")
        a(f"ds_write_b64 v64, v[8:9] offset:{URO + 4096}")
        a("ds_write_b128 v65, v[8:11]")
        for k in range(4):
            D = HL + 8 * k
            e1, e2, e3 = ET + 12 * k, ET + 12 * k + 4, ET + 12 * k + 8
            a(f"ds_write_b128 v7, {vr(D, 4)} offset:{32 + 1024 * k}")
            a(f"ds_write_b128 v7, {vr(e1, 4)} offset:{32 + 1024 * k + CPY}")
            a(f"ds_write_b128 v7, {vr(e2, 4)} offset:{32 + 1024 * k + 2 * CPY}")
            a(f"ds_write_b128 v7, {vr(e3, 4)} offset:{32 + 1024 * k + 3 * CPY}")
            if k == 1:
                a("s_waitcnt lgkmcnt(4)")
        a("s_mov_b64 exec, 1")
        a(f"ds_write_b32 v66, v67 offset:{CPY + 28}")
        a(f"ds_write_b32 v66, v{HL} offset:{2 * CPY + 28}")
        a(f"ds_write_b32 v66, v67 offset:{3 * CPY + 24}")
        a(f"ds_write_b32 v66, v{ET} offset:{3 * CPY + 28}")
        a("s_mov_b64 exec, -1")
        a("s_waitcnt vmcnt(0) lgkmcnt(4)")
        for k in range(4):
            a(f"ds_write_b128 v7, {vr(UL + 4 * k, 4)} offset:{URO + 1024 * k}")
        a("s_waitcnt lgkmcnt(0)")

    lnb = a.newlabel("nobuild")
    a("s_cmp_ge_u32 s44, 2")
    a(f"s_cbranch_scc1 {lnb}")
    build_region()
    a.label(lnb)
    if "tsb" in OPT:
        ts.stamp(a, 28)
    a("s_lshl_b32 s80, s35, 2")
    a("s_add_u32 s80, s80, s44")
    a("s_lshl_b32 s80, s80, 6")
    a("v_add_u32 v12, s80, v0")
    a("v_lshrrev_b32 v13, 3, v12")
    a("v_lshlrev_b32 v13, 11, v13")
    a("v_and_b32 v14, 7, v12")
    a("v_lshl_add_u32 v13, v14, 7, v13")
    a("s_lshr_b32 s80, s3, 2")
    a("s_lshl_b32 s80, s80, 10")
    a(f"buffer_load_dword v240, v13, {S(SWO)}, s80 offen")
    a("v_lshrrev_b32 v13, 2, v12")
    a("v_lshlrev_b32 v13, 11, v13")
    a("v_bfe_u32 v14, v12, 1, 1")
    a("v_lshl_add_u32 v13, v14, 7, v13")
    a("s_lshl_b32 s80, s3, 8")
    a(f"buffer_load_dword v241, v13, {S(SQ)}, s80 offen")
    a("s_and_b32 s40, s44, 1")
    a("s_lshl_b32 s40, s40, 1")
    a("s_add_u32 s40, s40, 1")
    a("s_lshr_b32 s41, s44, 1")
    a("s_setprio 0")
    a("s_waitcnt lgkmcnt(0)")

    a.label("L_POST")
    VAB, VBB, VEB, VSO = 3, 4, 5, 6
    PK = 144
    AF, PF = 156, 24
    SETS = [[7, 0], [6, 1], [5, 2], [4, 3]]
    KVJ, KLJ, OLJ = 2, 5, 5
    for o in OPT:
        if o.startswith("hk"):
            KVJ, KLJ, OLJ = int(o[2]), int(o[3]), int(o[4])
    a("s_and_b32 s86, s32, 1")
    a(f"s_mul_i32 s46, s86, {CW}")
    a(f"s_add_u32 s46, s46, {L_R0}")
    emit_conv_addr(a, VAB, VBB, VEB, VSO)
    a("s_and_b32 s87, s3, 1")
    a("s_lshl_b32 s87, s87, 1")
    a("s_bfe_u32 s80, s3, 0x10001")
    a("s_add_u32 s87, s87, s80")
    a("s_lshl_b32 s87, s87, 2")
    a("s_and_b32 s80, s35, 3")
    a("s_add_u32 s87, s87, s80")
    a("s_lshr_b32 s88, s3, 2")
    a("s_lshl_b32 s88, s88, 3")
    a("s_lshr_b32 s80, s35, 2")
    a("s_add_u32 s88, s88, s80")

    def conv_params(phase):
        a(f"s_add_u32 s80, s86, {2 * phase}")
        a("s_lshl_b32 s47, s84, 2")
        a("s_add_u32 s47, s47, s80")
        a("s_lshl_b32 s47, s47, 12")
        a(f"s_add_u32 s47, s47, 0x{WS_Y2:x}")
        a("s_lshl_b32 s80, s80, 4")
        a("s_lshr_b64 s[38:39], s[76:77], s80")
        a("s_lshl_b32 s38, s38, 16")

    def hook_kvpub_m():
        a("s_waitcnt vmcnt(0)")
        a("s_barrier")

    def hook_kvpub_h():
        a("s_barrier")
        l = a.newlabel("nopub")
        a("s_cmp_lg_u32 s32, 4")
        a(f"s_cbranch_scc1 {l}")
        emit_publish(a, FL_KV, PK)
        a.label(l)

    def hook_kvload():
        a(f"v_and_b32 v{PK + 4}, 1, v0")
        a(f"v_sub_u32 v{PK + 4}, s33, v{PK + 4}")
        a(f"v_subrev_u32 v{PK + 4}, 1, v{PK + 4}")
        a(f"v_max_i32 v{PK + 4}, 0, v{PK + 4}")
        a(f"v_mov_b32 v{PK + 5}, s34")
        emit_wg_of(a, PK + 6, PK + 4, PK + 5, PK + 7)
        a(f"v_add_u32 v{PK + 6}, 0x{WS_FL + FL_KV * 32768:x}, v{PK + 6}")
        emit_poll(a, PK + 6, 2, PK + 8)
        a("s_lshr_b32 s80, s32, 2")
        a("s_lshl_b32 s81, s34, 1")
        a("s_add_u32 s80, s80, s81")
        a("s_lshl_b32 s80, s80, 4")
        a("s_add_u32 s80, s80, s33")
        a("s_add_u32 s80, s80, s86")
        a("s_lshl_b32 s80, s80, 13")
        a("s_bfe_u32 s81, s32, 0x10001")
        a("s_lshl_b32 s81, s81, 22")
        a("s_add_u32 s80, s80, s81")
        a(f"s_add_u32 s80, s80, 0x{WS_KF - 16384:x}")
        a("s_add_u32 s81, s33, s86")
        a("s_cmp_lt_u32 s81, 2")
        a("s_cselect_b32 s81, 0x80000000, 0")
        a("v_add_u32 v7, s81, v1")
        for i in range(8):
            if i == 4:
                a("s_add_u32 s80, s80, 4096")
            a(f"buffer_load_dwordx4 {vr(PK + 4 * i, 4)}, v7, {S(SWS)}, s80 offen offset:{(i & 3) * 1024}{SC}")

    def aload(ks):
        out = []
        if ks % 4 == 0 and ks > 0:
            out.append("s_add_u32 s45, s45, 4096")
        out.append(f"buffer_load_dwordx4 {vr(AF + 4 * (ks % PF), 4)}, v1, {S(SWS)}, s45 offen offset:{(ks & 3) * 1024}{SC}")
        return out

    def hook_oload():
        a(f"v_mov_b32 v{PK}, s87")
        a(f"v_and_b32 v{PK + 1}, 15, v0")
        emit_wg_of(a, PK + 2, PK, PK + 1, PK + 3)
        a(f"v_add_u32 v{PK + 2}, 0x{WS_FL + FL_O * 32768:x}, v{PK + 2}")
        a("s_lshl_b32 s44, s87, 2")
        a("s_add_u32 s44, s44, s32")
        a("s_lshl_b32 s45, s44, 16")
        a(f"s_add_u32 s45, s45, 0x{WS_OF:x}")
        emit_poll(a, PK + 2, 16, PK + 4)
        for ks in range(PF):
            for x in aload(ks):
                a(x)

    def conv_phase(phase):
        done = a.newlabel("cdone")
        labs = [a.newlabel("cset") for _ in range(4)]
        a("s_lshr_b32 s80, s32, 1")
        for i in range(1, 4):
            a(f"s_cmp_eq_u32 s80, {i}")
            a(f"s_cbranch_scc1 {labs[i]}")
        for i in range(4):
            a.label(labs[i])
            if phase == 0:
                hooks = {KVJ: hook_kvpub_m if i < 2 else hook_kvpub_h, KLJ: hook_kvload}
            else:
                hooks = {OLJ: hook_oload} if i < 2 else {}
            emit_conv_main(a, SETS[i], 8, [16, 80], VAB, VBB, VEB, VSO, hooks=hooks)
            if i < 3:
                a(f"s_branch {done}")
        a.label(done)

    conv_params(0)
    a("s_barrier")
    ts.stamp(a, 2)
    conv_phase(0)
    ts.stamp(a, 3)
    a("s_lshr_b32 s80, s32, 1")
    a(f"s_mul_i32 s81, s80, 16384")
    a(f"s_add_u32 s81, s81, {L_PKB[1] - 16384}")
    a("s_cmp_eq_u32 s80, 0")
    a("s_cselect_b32 s81, 0, s81")
    a("s_lshl_b32 s80, s86, 13")
    a("s_add_u32 s81, s81, s80")
    a("v_add_u32 v7, s81, v1")
    a("s_waitcnt vmcnt(0)")
    for i in range(8):
        a(f"ds_write_b128 v7, {vr(PK + 4 * i, 4)} offset:{i * 1024}")
    lq = a.newlabel("noq")
    a("s_cmp_lt_u32 s32, 4")
    a(f"s_cbranch_scc1 {lq}")
    a("s_lshl_b32 s80, s32, 11")
    a("v_add_u32 v7, s80, v1")
    a(f"ds_read_b128 {vr(QC, 4)}, v7 offset:{L_QH - 8192}")
    a(f"ds_read_b128 {vr(QC + 4, 4)}, v7 offset:{L_QH - 8192 + 1024}")
    a.label(lq)
    a("s_waitcnt lgkmcnt(0)")
    a("s_barrier")
    ts.stamp(a, 4)
    lnb = a.newlabel("nobuild")
    a("s_cmp_lt_u32 s32, 6")
    a(f"s_cbranch_scc1 {lnb}")
    build_region()
    a.label(lnb)
    fills = []
    body = emit_attention(a, ts, QC, fills)
    ts.stamp(a, 5)
    body()
    ts.stamp(a, 6)
    a(f"s_mul_i32 s46, s86, {CW}")
    a(f"s_add_u32 s46, s46, {L_R0}")
    emit_conv_addr(a, VAB, VBB, VEB, VSO)
    conv_params(1)
    a("v_lshrrev_b32 v12, 3, v0")
    a("v_and_b32 v13, 7, v0")
    a("v_bfe_u32 v14, v0, 4, 1")
    a("v_lshlrev_b32 v14, 2, v14")
    a("v_xor_b32 v14, v14, v13")
    a("v_lshlrev_b32 v250, 11, v12")
    a("v_lshl_add_u32 v250, v14, 4, v250")
    a("s_lshl_b32 s45, s88, 7")
    a("v_add_u32 v250, s45, v250")
    a("s_waitcnt vmcnt(0)")
    a("s_barrier")
    ts.stamp(a, 7)
    lw = a.newlabel("nowo")
    a("s_cmp_lt_u32 s32, 4")
    a(f"s_cbranch_scc1 {lw}")
    a("s_sub_u32 s44, s32, 4")
    lpb = a.newlabel("nopub")
    a("s_cmp_lg_u32 s44, 0")
    a(f"s_cbranch_scc1 {lpb}")
    emit_publish(a, FL_O, 8)
    a.label(lpb)
    a("s_lshl_b32 s48, s44, 12")
    a("s_lshl_b32 s49, s44, 16")

    def wo_portion(p):
        a(f"s_add_u32 m0, s48, {p * 16384}")
        for i in range(4):
            a(f"s_add_u32 s80, s49, {p * 16 * 16384 + i * (16384 - 1024)}")
            a(f"buffer_load_dwordx4 v250, {S(SWO)}, s80 offen offset:{1024 * i} lds")

    for p in range(7):
        wo_portion(p)
    a.label(lw)
    conv_phase(1)
    ts.stamp(a, 8)
    a("s_cmp_ge_u32 s32, 4")
    a("s_cbranch_scc1 L_H2")

    BF = [16, 24, 32]
    AC2 = 40
    a("v_and_b32 v8, 15, v0")
    a("v_lshrrev_b32 v9, 4, v0")
    a("v_lshrrev_b32 v10, 5, v0")
    a("v_lshrrev_b32 v11, 2, v8")
    a("v_lshl_add_u32 v11, v10, 2, v11")
    a("v_lshlrev_b32 v11, 7, v11")
    a("v_and_b32 v12, 1, v9")
    a("v_lshl_add_u32 v11, v12, 5, v11")
    a("v_and_b32 v12, 3, v8")
    a("v_lshl_add_u32 v11, v12, 3, v11")
    a("v_lshrrev_b32 v12, 3, v8")
    a("v_lshl_add_u32 v4, v12, 6, v11")
    a("v_xor_b32 v12, 1, v12")
    a("v_lshl_add_u32 v5, v12, 6, v11")
    a("v_add_u32 v6, 0x10000, v4")
    a("v_add_u32 v7, 0x10000, v5")

    def breads(ks, buf):
        f = BF[buf]
        hi = ks >= 32
        o = (ks - 32 * hi) * 16 * 128
        out = []
        for ct in range(2):
            va = 4 + ct + 2 * hi
            out.append(f"ds_read_b64_tr_b16 {vr(f + 4 * ct, 2)}, v{va} offset:{o}")
            out.append(f"ds_read_b64_tr_b16 {vr(f + 4 * ct + 2, 2)}, v{va} offset:{o + 1024}")
        return out

    a("s_waitcnt vmcnt(0)")
    a("s_barrier")
    for x in breads(0, 0) + breads(1, 1):
        a(x)
    for ks in range(64):
        f = BF[ks % 3]
        nload = min(63, ks + PF - 1) - max(ks, PF - 1)
        a(f"s_waitcnt vmcnt({min(nload, min(63, ks + PF - 1) - ks)}) lgkmcnt({4 if ks < 63 else 0})")
        af = vr(AF + 4 * (ks % PF), 4)
        nxt = breads(ks + 2, (ks + 2) % 3) if ks + 2 < 64 else []
        d0, d1 = vr(AC2, 16), vr(AC2 + 16, 16)
        a(f"v_mfma_f32_32x32x16_bf16 {d0}, {vr(f, 4)}, {af}, {'0' if ks == 0 else d0}")
        if ks == 54:
            a("s_barrier")
        for x in nxt:
            a(x)
        a(f"v_mfma_f32_32x32x16_bf16 {d1}, {vr(f + 4, 4)}, {af}, {'0' if ks == 0 else d1}")
        if ks + PF < 64:
            for x in aload(ks + PF):
                a(x)
    ts.stamp(a, 9)
    a("v_and_b32 v8, 31, v0")
    a("s_lshl_b32 s46, s44, 5")
    a("v_add_u32 v8, s46, v8")
    a("v_lshlrev_b32 v8, 12, v8")
    a("v_lshl_add_u32 v8, v10, 4, v8")
    a("s_lshl_b32 s46, s88, 7")
    a("s_add_u32 s46, s46, 2048")
    a("s_nop 7")
    for ct in range(2):
        b = AC2 + 16 * ct
        for j in range(8):
            a(f"v_cvt_pk_bf16_f32 v{b + j}, v{b + 2 * j}, v{b + 2 * j + 1}")
        a("s_nop 1")
        for jj in range(2):
            a(f"v_permlane32_swap_b32 v{b + 4 * jj}, v{b + 4 * jj + 2}")
            a(f"v_permlane32_swap_b32 v{b + 4 * jj + 1}, v{b + 4 * jj + 3}")
        for jj in range(2):
            a(f"buffer_store_dwordx4 {vr(b + 4 * jj, 4)}, v8, {S(SOUT)}, s46 offen offset:{ct * 64 + jj * 32}{osc()}")
    ts.final(a, 10)
    a("s_endpgm")

    a.label("L_H2")
    a("s_setprio 3")
    a("s_waitcnt vmcnt(0)")
    a("s_barrier")
    wo_portion(7)
    lpb = a.newlabel("nopub")
    a("s_cmp_lg_u32 s44, 0")
    a(f"s_cbranch_scc1 {lpb}")
    emit_publish(a, FL_Y2, 8)
    a.label(lpb)
    YY, QQ, OO = 16, 32, 48
    a("v_lshrrev_b32 v12, 3, v0")
    a("v_and_b32 v13, 7, v0")
    a("s_lshl_b32 s48, s35, 6")
    a("s_lshl_b32 s49, s3, 2")
    a("s_add_u32 s49, s49, s44")
    a("s_lshl_b32 s49, s49, 5")
    a("v_lshlrev_b32 v4, 3, v12")
    a("v_add_u32 v4, s48, v4")
    a("v_lshlrev_b32 v5, 2, v13")
    a("v_add_u32 v5, s49, v5")
    a("v_lshlrev_b32 v6, 12, v5")
    a("v_lshl_add_u32 v6, v4, 1, v6")
    a("v_lshlrev_b32 v7, 11, v4")
    a("v_lshl_add_u32 v7, v5, 1, v7")
    a("v_lshlrev_b32 v11, 12, v4")
    a("v_lshl_add_u32 v11, v5, 1, v11")
    for i in range(8):
        a(f"s_mov_b32 s{48 + i}, {4096 * i}")
    for i in range(8):
        a(f"buffer_load_dwordx2 {vr(QQ + 2 * i, 2)}, v7, {S(SQ)}, s{48 + (i >> 1)} offen offset:{(i & 1) * 2048}")
    a("s_waitcnt vmcnt(8)")
    a("s_barrier")
    ts.stamp(a, 9)
    a("v_and_b32 v12, 7, v0")
    a("s_lshl_b32 s45, s44, 3")
    a("v_add_u32 v12, s45, v12")
    a("v_lshlrev_b32 v12, 3, v12")
    a("v_add_u32 v12, s3, v12")
    a("v_lshlrev_b32 v12, 7, v12")
    a(f"v_add_u32 v12, 0x{WS_FL + FL_Y2 * 32768:x}, v12")
    emit_poll(a, 12, 8, 8)
    a(f"s_mov_b32 s45, 0x{WS_Y2:x}")
    for dd in range(4):
        a(f"buffer_load_dwordx4 {vr(YY + 4 * dd, 4)}, v6, {S(SWS)}, s45 offen{SC}")
        if dd < 3:
            a("s_add_u32 s45, s45, 4096")
    a("s_waitcnt vmcnt(0)")
    for i in range(8):
        for dd in range(4):
            ys = YY + 4 * dd + (i >> 1)
            qs = QQ + 2 * i + (dd >> 1)
            a(f"v_and_b32 v9, 0xffff0000, v{ys}" if i & 1 else f"v_lshlrev_b32 v9, 16, v{ys}")
            a(f"v_and_b32 v10, 0xffff0000, v{qs}" if dd & 1 else f"v_lshlrev_b32 v10, 16, v{qs}")
            a(f"v_mul_f32 v{OO + 4 * i + dd}, v9, v10")
        o = OO + 4 * i
        a(f"v_cvt_pk_bf16_f32 v{o}, v{o}, v{o + 1}")
        a(f"v_cvt_pk_bf16_f32 v{o + 1}, v{o + 2}, v{o + 3}")
        a(f"buffer_store_dwordx2 {vr(o, 2)}, v11, {S(SOUT)}, s{48 + i} offen{osc()}")
    ts.final(a, 10)
    a("s_endpgm")
    for (lf, lb, sreg, vneg) in fills:
        a.label(lf)
        a("s_nop 7")
        for r in range(16):
            a(f"v_mov_b32 v{sreg + r}, v{vneg}")
        a(f"s_branch {lb}")
    a.label("L_end")
    a("s_endpgm")
    return name, 256, 102


def build(instrument=False):
    ts = TS(instrument)
    a = Asm()
    a.raw("; @launch grid=(256,1,1) block=(512,1,1) lds=163840")
    a.raw('.amdgcn_target "amdgcn-amd-amdhsa--gfx950"')
    a.raw(".text")
    n, v, s = gen_fused(a, ts)
    a.raw('.section .rodata,"a"')
    kernel_desc(a, n, v, s)
    return a.text()


if __name__ == "__main__":
    out = sys.argv[1] if len(sys.argv) > 1 else f"cdna_kernels/{NAME}.s"
    if len(sys.argv) > 2:
        OPT.update(sys.argv[2].split(","))
    open(out, "w").write(build())
```

```python
import sys, struct, os
from gen import Asm, vr, srd, kernel_begin, kernel_desc, MB, NAME
from gf import TS, emit_wg_of, f32hex
import gf

OPT = set()
WS_KF, WS_VF, WS_UR, WS_OF, WS_Y2, WS_FL = 4 * MB, 8 * MB, 12 * MB, 16 * MB, 20 * MB, 24 * MB
WS_SIZE = 25 * MB
FL_UR, FL_K, FL_Y2, FL_O, FL_V = 0, 1, 2, 3, 4

CPY, URO, CW = 4160, 8320, 12928
L_HD, L_V = 49152, 24576
L_QH = 98304
L_R0 = 106496
L_FL = L_R0 + 4 * CW
SC = " sc1"
SPIN_LIMIT = 1 << 18
SCALE_LOG2E = (32 ** -0.5) * 1.4426950408889634
SX, SW, SWS, SK, SV, SSH, SHK, SWO, SQ, SOUT, SDBG = 4, 8, 12, 16, 20, 24, 28, 60, 64, 68, 72
MASKS_M = [4, 6, 8, 10, 16, 18, 20, 22, 24, 26, 48, 50, 52, 54, 56, 58]
MASKS_H = MASKS_M


def S(n):
    return f"s[{n}:{n + 3}]"


SCHEDS = {
    0: "T0 X1 b c60 | W1 X2 | W2 T3 K2 | T4 T5 K3 c40 | T6 K0 c40 | T7 K1 c40 | T8 t | T9 P7 | T10 P7 | T11 P7"
       " | T12 V90 | T13 V90 | T14 V90 S | T15 G | U | H R | D | ",
    1: "T0 X1 b c60 | W1 K X2 | W2 T3 | T4 T5 c40 | T6 P7 c40 | T7 P7 c40 | T8 P7 t | T9 V90 | T10 V90 | T11 V90 S"
       " | T12 G | T13 U | T14 | T15 | R | H D | | ",
    2: "T0 X1 b c60 | W1 X2 | W2 T3 K2 | T4 T5 K3 c40 | T6 K0 c40 | T7 K1 c40 t | T8 P7 | T9 P7 | T10 P7 | T11 V130"
       " | T12 V130 S | T13 G | T14 U | T15 | R | H D | | ",
    3: "T0 X1 b c60 | W1 X2 | W2 T3 | T4 T5 P5 c40 | T6 P6 c40 | T7 P5 c40 t | T8 P5 | T9 | T10 V90 | T11 V90"
       " | T12 V90 S | T13 G | T14 U | T15 | R | H D | | ",
}


def scl():
    return "sc1" if "ldsc1" in OPT else ""


def optval(prefix, default):
    for o in OPT:
        if o.startswith(prefix) and o[len(prefix):].lstrip("-").isdigit():
            return int(o[len(prefix):])
    return default


def poll_issue(a, voff, tmp):
    a(f"buffer_load_dwordx2 {vr(tmp, 2)}, v{voff}, {S(SWS)}, 0 offen{SC}")


def emit_poll(a, voff, nlanes, tmp, pre=False, sleep=0):
    lp, ck, dn = a.newlabel("poll"), a.newlabel("pollc"), a.newlabel("polld")
    mask = (1 << nlanes) - 1
    a(f"s_mov_b32 s80, 0x{mask & 0xffffffff:x}")
    a(f"s_mov_b32 s81, 0x{mask >> 32:x}")
    a("s_mov_b32 s85, 0")
    if not pre:
        a.label(lp)
        poll_issue(a, voff, tmp)
        a("s_waitcnt vmcnt(0)")
        a(f"v_cmp_eq_u64 vcc, s[78:79], {vr(tmp, 2)}")
        a("s_add_u32 s85, s85, 1")
        a("s_and_b64 s[82:83], vcc, s[80:81]")
        a("s_cmp_eq_u64 s[82:83], s[80:81]")
        a(f"s_cbranch_scc1 {dn}")
        if sleep:
            a(f"s_sleep {sleep}")
        a(f"s_cmp_lt_u32 s85, 0x{SPIN_LIMIT:x}")
        a(f"s_cbranch_scc1 {lp}")
        a.label(dn)
    else:
        a.label(ck)
        a("s_waitcnt vmcnt(0)")
        a(f"v_cmp_eq_u64 vcc, s[78:79], {vr(tmp, 2)}")
        a("s_add_u32 s85, s85, 1")
        a("s_and_b64 s[82:83], vcc, s[80:81]")
        a("s_cmp_eq_u64 s[82:83], s[80:81]")
        a(f"s_cbranch_scc1 {dn}")
        poll_issue(a, voff, tmp)
        a(f"s_cmp_lt_u32 s85, 0x{SPIN_LIMIT:x}")
        a(f"s_cbranch_scc1 {ck}")
        a("s_waitcnt vmcnt(0)")
        a.label(dn)


def emit_publish(a, kind, t0, vz):
    a(f"s_add_u32 s80, s89, 0x{WS_FL + kind * 32768:x}")
    a(f"v_mov_b32 v{t0}, s78")
    a(f"v_mov_b32 v{t0 + 1}, s79")
    a("s_mov_b64 exec, 1")
    a(f"buffer_store_dwordx2 {vr(t0, 2)}, v{vz}, {S(SWS)}, s80 offen{SC}")
    a("s_mov_b64 exec, -1")


def emit_token_take(a, t0, vz):
    lp, dn = a.newlabel("tok"), a.newlabel("tokd")
    a("s_mov_b32 s85, 0")
    a.label(lp)
    a(f"v_readfirstlane_b32 s78, v{t0}")
    a(f"v_readfirstlane_b32 s79, v{t0 + 1}")
    a("s_add_u32 s85, s85, 1")
    a("s_cmp_lg_u64 s[78:79], 0")
    a(f"s_cbranch_scc1 {dn}")
    a(f"buffer_load_dwordx2 {vr(t0, 2)}, v{vz}, {S(SDBG)}, 0 offen{SC}")
    a("s_waitcnt vmcnt(0)")
    a(f"s_cmp_lt_u32 s85, 0x{SPIN_LIMIT:x}")
    a(f"s_cbranch_scc1 {lp}")
    a.label(dn)


def emit_wline(a, dst, idx, hi, t):
    a(f"v_mul_u32_u24 v{dst}, 5462, v{idx}")
    a(f"v_lshrrev_b32 v{dst}, 16, v{dst}")
    a(f"v_mul_u32_u24 v{t}, 12, v{dst}")
    a(f"v_sub_u32 v{t}, v{idx}, v{t}")
    if hi is not None:
        a(f"v_lshl_add_u32 v{dst}, v{hi}, 6, v{dst}")
    a(f"v_mul_u32_u24 v{dst}, 6144, v{dst}")
    a(f"v_lshrrev_b32 v{t + 1}, 2, v{t}")
    a(f"v_lshl_add_u32 v{dst}, v{t + 1}, 11, v{dst}")
    a(f"v_and_b32 v{t}, 3, v{t}")
    a(f"v_lshl_add_u32 v{dst}, v{t}, 7, v{dst}")
    a("s_lshr_b32 s83, s3, 1")
    a("s_lshl_b32 s83, s83, 9")
    a(f"v_add_u32 v{dst}, s83, v{dst}")


def emit_touch_fine(a, VTX, VTW, t, t0):
    a(f"v_and_b32 v{t}, 7, v0")
    a(f"v_lshrrev_b32 v{t + 1}, 3, v0")
    a(f"s_add_u32 s82, s59, {t0}")
    a(f"v_add_u32 v{t + 1}, s82, v{t + 1}")
    a(f"v_and_b32 v{t + 1}, 15, v{t + 1}")
    a("s_lshl_b32 s82, s35, 2")
    a("s_add_u32 s82, s82, s44")
    a("s_lshl_b32 s81, s82, 3")
    a("s_and_b32 s83, s3, 1")
    a("s_lshl_b32 s83, s83, 10")
    a("s_add_u32 s81, s81, s83")
    a(f"v_add_u32 v{t + 2}, s81, v{t}")
    a(f"v_lshlrev_b32 v{t + 2}, 11, v{t + 2}")
    a(f"v_lshl_add_u32 v{VTX}, v{t + 1}, 7, v{t + 2}")
    a("s_mul_i32 s82, s82, 6")
    a(f"v_add_u32 v{t + 2}, s82, v{t}")
    emit_wline(a, VTW, t + 2, t + 1, t + 3)
    a(f"v_mov_b32 v{t + 4}, 0x80000000")
    a(f"v_cmp_gt_u32 vcc, 6, v{t}")
    a("s_nop 1")
    a(f"v_cndmask_b32 v{VTW}, v{t + 4}, v{VTW}, vcc")


def emit_touch_coarse(a, VTX, VTW, t):
    a("s_lshr_b32 s82, s35, 2")
    a("s_lshl_b32 s82, s82, 2")
    a("s_add_u32 s82, s82, s44")
    a("s_lshl_b32 s81, s82, 5")
    a("s_and_b32 s83, s3, 1")
    a("s_lshl_b32 s83, s83, 10")
    a("s_add_u32 s81, s81, s83")
    a(f"v_add_u32 v{t + 2}, s81, v0")
    a(f"v_lshlrev_b32 v{VTX}, 11, v{t + 2}")
    a("s_mul_i32 s82, s82, 24")
    a(f"v_add_u32 v{t + 2}, s82, v0")
    emit_wline(a, VTW, t + 2, None, t + 3)
    a(f"v_mov_b32 v{t + 4}, 0x80000000")
    a("v_cmp_gt_u32 vcc, 32, v0")
    a("s_nop 1")
    a(f"v_cndmask_b32 v{VTX}, v{t + 4}, v{VTX}, vcc")
    a("v_cmp_gt_u32 vcc, 24, v0")
    a("s_nop 1")
    a(f"v_cndmask_b32 v{VTW}, v{t + 4}, v{VTW}, vcc")


def touch(t0, nt, VTX, VTW, dst):
    m = (1 << (8 * nt)) - 1
    out = []
    if nt < 8:
        out += [f"s_mov_b32 exec_lo, 0x{m & 0xffffffff:x}", f"s_mov_b32 exec_hi, 0x{m >> 32:x}"]
    out += [f"buffer_load_dword v{dst}, v{VTW}, {S(SW)}, 0 offen",
            f"buffer_load_dword v{dst + 1}, v{VTX}, {S(SX)}, 0 offen"]
    if nt < 8:
        out.append("s_mov_b64 exec, -1")
    return out


QC = 224
SBUF = [8, 24, 40]
KB = [56, 64, 72]
VB = [80, 88, 160]
OA = 96
CM = 112
LS = 128
ONE = 132
PM = 136
P0 = 144
VM, VM2, VT, VNEG, VK, VK0 = 152, 153, 154, 155, 156, 157
QQ, PA = 200, 216


def emit_attn_setup(a, MASKS):
    a("v_and_b32 v4, 31, v0")
    a("v_lshrrev_b32 v5, 5, v0")
    a("v_lshlrev_b32 v5, 2, v5")
    a("v_sub_u32 v4, v4, v5")
    for r in range(16):
        a(f"v_cmp_le_i32 s[{MASKS[r]}:{MASKS[r] + 1}], {8 * (r >> 2) + (r & 3)}, v4")
    a(f"v_mov_b32 v{VNEG}, 0xf149f2ca")
    a("v_mov_b32 v4, 0xffff")
    a("v_mov_b32 v5, 0xffff0000")
    for j in range(8):
        a(f"v_cndmask_b32 v{PM + j}, 0, v4, s[{MASKS[2 * j]}:{MASKS[2 * j] + 1}]")
        a(f"v_cndmask_b32 v6, 0, v5, s[{MASKS[2 * j + 1]}:{MASKS[2 * j + 1] + 1}]")
        a(f"v_or_b32 v{PM + j}, v{PM + j}, v6")
    a("v_lshrrev_b32 v4, 4, v0")
    a("v_lshrrev_b32 v5, 2, v0")
    a("v_xor_b32 v4, v4, v5")
    a("v_and_b32 v4, 1, v4")
    a("v_cmp_eq_u32 vcc, 0, v4")
    a("v_mov_b32 v5, 0x3f803f80")
    for i in range(4):
        a(f"v_cndmask_b32 v{ONE + i}, 0, v5, vcc")
    a(f"s_mul_i32 s42, s41, {L_HD}")
    a("s_lshl_b32 s43, s40, 11")
    a("s_add_u32 s42, s42, s43")
    a(f"v_add_u32 v{VK}, s42, v1")
    a("s_lshl_b32 s45, s33, 2")
    a("s_add_u32 s45, s45, s40")
    a("s_sub_u32 s46, 8, s45")
    a("s_cmp_lt_u32 s45, 8")
    a("s_cselect_b32 s46, s46, 0")
    a("s_cselect_b32 s43, 0x4000, 0")
    a(f"v_add_u32 v{VK0}, s43, v{VK}")
    a("s_lshl_b32 s47, s45, 5")
    a("s_lshl_b32 s42, s34, 1")
    a("s_add_u32 s47, s47, s42")
    a("s_add_u32 s47, s47, s41")
    a("s_lshl_b32 s47, s47, 11")
    a(f"s_add_u32 s47, s47, 0x{WS_OF:x}")


def emit_attention(a, ool, hooks, MASKS):
    order = [8, 0, 7, 6, 5, 4, 3, 2, 1]

    def hook(k):
        if k in hooks:
            hooks[k]()

    def kread(i):
        rel, b = order[i % 9], KB[i % 3]
        return [f"ds_read_b128 {vr(b, 4)}, v{VK} offset:{rel * 2048}",
                f"ds_read_b128 {vr(b + 4, 4)}, v{VK} offset:{rel * 2048 + 1024}"]

    def vread(i):
        rel, b = order[i], VB[i % 3]
        ad = VK0 if rel == 0 else VK
        return [f"ds_read_b128 {vr(b, 4)}, v{ad} offset:{L_V + rel * 2048}",
                f"ds_read_b128 {vr(b + 4, 4)}, v{ad} offset:{L_V + rel * 2048 + 1024}"]

    def smf(i, c):
        s, k = vr(SBUF[i % 3], 16), KB[i % 3]
        return [f"v_mfma_f32_32x32x16_bf16 {s}, {vr(k, 4)}, {vr(QC, 4)}, {c}",
                f"v_mfma_f32_32x32x16_bf16 {s}, {vr(k + 4, 4)}, {vr(QC + 4, 4)}, {s}"]

    def merge():
        lf, lb = a.newlabel("mneg"), a.newlabel("mback")
        a("s_cmp_gt_u32 s46, 0")
        a(f"s_cbranch_scc1 {lf}")
        for r in range(16):
            a(f"v_cndmask_b32 v{SBUF[1] + r}, v{SBUF[1] + r}, v{SBUF[0] + r}, s[{MASKS[r]}:{MASKS[r] + 1}]")
        a.label(lb)
        ool.append((lf, [f"v_cndmask_b32 v{SBUF[1] + r}, v{VNEG}, v{SBUF[0] + r}, s[{MASKS[r]}:{MASKS[r] + 1}]"
                         for r in range(16)], lb))

    def maxblk(i):
        s = SBUF[i % 3]
        ta, tb = (VM, VM2) if i == 1 else (VT, VM2)
        if i >= 2:
            a(f"s_cmp_le_u32 s46, {order[i]}")
            a("s_cselect_b64 vcc, -1, 0")
        a(f"v_max3_f32 v{ta}, v{s}, v{s + 1}, v{s + 2}")
        a(f"v_max3_f32 v{tb}, v{s + 3}, v{s + 4}, v{s + 5}")
        for x in range(5):
            t = (ta, tb)[x & 1]
            a(f"v_max3_f32 v{t}, v{s + 6 + 2 * x}, v{s + 7 + 2 * x}, v{t}")
        a(f"v_max_f32 v{ta}, v{ta}, v{tb}")
        if i >= 2:
            a(f"v_cndmask_b32 v{ta}, v{VNEG}, v{ta}, vcc")
            a(f"v_max_f32 v{VM}, v{VM}, v{ta}")

    for x in kread(0) + kread(1):
        a(x)
    for i in range(9):
        a("s_waitcnt lgkmcnt(2)")
        for x in smf(i, "0") + kread(i + 2):
            a(x)
        if i == 2:
            merge()
        if i >= 2:
            maxblk(i - 1)
    a("s_nop 3")
    maxblk(8)
    a(f"v_mov_b32 v{VT}, v{VM}")
    a("s_nop 1")
    a(f"v_permlane32_swap_b32 v{VM}, v{VT}")
    a("s_nop 1")
    a(f"v_max_f32 v{VM}, v{VM}, v{VT}")
    for r in range(16):
        a(f"v_sub_f32 v{CM + r}, 0, v{VM}")
    hook("mid")
    cm, o, ls = vr(CM, 16), vr(OA, 16), vr(LS, 4)

    def pv(i):
        s = SBUF[i % 3]
        if i == 1:
            return [f"v_mfma_f32_32x32x16_bf16 {o}, {vr(VB[0], 4)}, {vr(s + 8, 4)}, 0",
                    f"v_mfma_f32_16x16x32_bf16 {ls}, {vr(ONE, 4)}, {vr(s, 4)}, 0",
                    f"v_mfma_f32_32x32x16_bf16 {o}, {vr(VB[0] + 4, 4)}, {vr(s + 12, 4)}, {o}",
                    f"v_mfma_f32_16x16x32_bf16 {ls}, {vr(ONE, 4)}, {vr(s + 4, 4)}, {ls}",
                    f"v_mfma_f32_32x32x16_bf16 {o}, {vr(VB[1], 4)}, {vr(P0, 4)}, {o}",
                    f"v_mfma_f32_32x32x16_bf16 {o}, {vr(VB[1] + 4, 4)}, {vr(P0 + 4, 4)}, {o}"]
        v = VB[i % 3]
        return [f"v_mfma_f32_32x32x16_bf16 {o}, {vr(v, 4)}, {vr(s, 4)}, {o}",
                f"v_mfma_f32_16x16x32_bf16 {ls}, {vr(ONE, 4)}, {vr(s, 4)}, {ls}",
                f"v_mfma_f32_32x32x16_bf16 {o}, {vr(v + 4, 4)}, {vr(s + 4, 4)}, {o}",
                f"v_mfma_f32_16x16x32_bf16 {ls}, {vr(ONE, 4)}, {vr(s + 4, 4)}, {ls}"]

    def valu(i):
        s = SBUF[i % 3]
        return [(f"v_exp_f32 v{s + r}, v{s + r}", 8) for r in range(16)] + \
               [(f"v_cvt_pk_bf16_f32 v{s + j}, v{s + 2 * j}, v{s + 2 * j + 1}", 4) for j in range(8)]

    def weave(ms, vs):
        vs = list(vs)
        for m in ms:
            a(m)
            need = (32 if "32x32" in m else 16) - 8
            while vs and need > 0:
                x, c = vs.pop(0)
                a(x)
                need -= c
        for x, c in vs:
            a(x)

    fin = a.newlabel("afin")
    for x in kread(2) + vread(0) + vread(1):
        a(x)
    a("s_waitcnt lgkmcnt(6)")
    for x in smf(0, cm) + smf(1, cm):
        a(x)
    a("s_waitcnt lgkmcnt(4)")
    for x in smf(2, cm) + kread(3):
        a(x)
    merge()
    s = SBUF[1]
    for x, c in valu(1):
        a(x)
    for j in range(8):
        a(f"v_and_b32 v{s + 8 + j}, v{s + j}, v{PM + j}")
    for j in range(8):
        a(f"v_xor_b32 v{P0 + j}, v{s + j}, v{s + 8 + j}")
    blk = hooks.get("blk", {})
    for i in range(2, 9):
        ex = a.newlabel("aexit")
        a("s_waitcnt lgkmcnt(0)")
        a(f"s_cmp_gt_u32 s46, {order[i]}")
        a(f"s_cbranch_scc1 {ex}")
        ool.append((ex, pv(i - 1) + [x for k in range(i, 9) for x in blk.get(k, [])], fin))
        for x in blk.get(i, []):
            a(x)
        for x in vread(i) + (kread(i + 2) if i + 2 < 9 else []):
            a(x)
        weave((smf(i + 1, cm) if i + 1 < 9 else []) + pv(i - 1), valu(i))
    a("s_waitcnt lgkmcnt(0)")
    for x in pv(8):
        a(x)
    a.label(fin)
    hook("end")
    a("s_nop 7")
    a("s_nop 3")
    a(f"v_rcp_f32 v{VT}, v{LS}")
    a("s_nop 1")
    for r in range(16):
        a(f"v_mul_f32 v{OA + r}, v{OA + r}, v{VT}")
    for j in range(8):
        a(f"v_cvt_pk_bf16_f32 v{OA + j}, v{OA + 2 * j}, v{OA + 2 * j + 1}")
    a(f"buffer_store_dwordx4 {vr(OA, 4)}, v1, {S(SWS)}, s47 offen{SC}")
    a(f"buffer_store_dwordx4 {vr(OA + 4, 4)}, v1, {S(SWS)}, s47 offen offset:1024{SC}")


def emit_conv(a, hooks):
    ACC, FB = 8, [40, 104]
    VA, VBB, VEB, VSO = 168, 172, 173, 174
    a("v_and_b32 v2, 15, v0")
    a("v_lshrrev_b32 v3, 4, v0")
    a("v_add_u32 v4, 1, v2")
    a("v_and_b32 v5, 1, v4")
    a("v_sub_u32 v4, v4, v5")
    a("v_lshl_add_u32 v4, v3, 3, v4")
    a("v_lshlrev_b32 v4, 1, v4")
    a(f"v_mul_u32_u24 v5, {CPY}, v5")
    a(f"v_add3_u32 v{VA}, v4, v5, s46")
    for i in range(1, 4):
        a(f"v_add_u32 v{VA + i}, {1024 * i}, v{VA}")
    a("v_lshlrev_b32 v4, 5, v2")
    a("v_lshlrev_b32 v5, 4, v3")
    a(f"v_sub_u32 v{VBB}, v5, v4")
    a(f"v_add_u32 v{VBB}, {URO + 480}, v{VBB}")
    a(f"v_add_u32 v{VBB}, s46, v{VBB}")
    a("v_lshlrev_b32 v5, 3, v3")
    a(f"v_add_u32 v{VSO}, v4, v5")
    a(f"v_sub_u32 v{VEB}, {URO + 504}, v{VSO}")
    a(f"v_add_u32 v{VEB}, s46, v{VEB}")

    def creads(j, buf):
        f = FB[buf]
        out = []
        for q in range(8):
            o = (q & 1) * 128 + 16 * j
            va = VA + (q >> 1)
            out.append(f"ds_read2_b32 {vr(f + 4 * q, 2)}, v{va} offset0:{o} offset1:{o + 1}")
            out.append(f"ds_read2_b32 {vr(f + 4 * q + 2, 2)}, v{va} offset0:{o + 2} offset1:{o + 3}")
            out.append(f"ds_read_b128 {vr(f + 32 + 4 * q, 4)}, v{VBB} offset:{512 * (7 - q) + 64 * j}")
        return out

    pairs = [(q, dl) for q in range(8) for dl in range(8 - q)]
    pairs.sort(key=lambda x: (max(x[0], x[1]), x[0] + x[1], x[0]))
    seq, rest = [], list(pairs)
    while rest:
        pick = next((p for p in rest if all(p[0] + p[1] != s[0] + s[1] for s in seq[-2:])), rest[0])
        rest.remove(pick)
        seq.append(pick)

    def cmfmas(j, buf):
        f = FB[buf]
        seen, out = set(), []
        for (q, dl) in seq:
            nt = q + dl
            d = vr(ACC + 4 * nt, 4)
            c = "0" if (j == 0 and nt not in seen) else d
            seen.add(nt)
            out.append(f"v_mfma_f32_16x16x32_bf16 {d}, {vr(f + 4 * q, 4)}, {vr(f + 32 + 4 * dl, 4)}, {c}")
        return out

    if "start" in hooks:
        hooks["start"]()
    for i, r in enumerate(creads(0, 0)):
        a(r)
        if i % 12 == 11:
            a("s_waitcnt lgkmcnt(4)")
    for j in range(8):
        m = cmfmas(j, j & 1)
        r = creads(j + 1, (j + 1) & 1) if j < 7 else \
            [f"ds_read_b64 {vr(FB[0] + 2 * nt, 2)}, v{VEB} offset:{512 * (7 - nt)}" for nt in range(8)]
        a("s_waitcnt lgkmcnt(0)")
        ri = 0
        if "cnolds" in OPT and j < 7:
            r = []
        for i, mm in enumerate(m):
            a(mm if "cnomfma" not in OPT else "s_nop 3")
            if ri < len(r):
                a(r[ri]); ri += 1
            if i == 27 and j in hooks:
                hooks[j]()
        assert ri == len(r)
    a("s_nop 7")
    a("s_waitcnt lgkmcnt(0)")
    for nt in range(8):
        k0, k1 = FB[0] + 2 * nt, FB[0] + 2 * nt + 1
        t = FB[0] + 16 + 4 * (nt & 1)
        ac = ACC + 4 * nt
        a(f"v_and_b32 v{t}, 0xffff0000, v{k1}")
        a(f"v_lshlrev_b32 v{t + 1}, 16, v{k1}")
        a(f"v_and_b32 v{t + 2}, 0xffff0000, v{k0}")
        a(f"v_lshlrev_b32 v{t + 3}, 16, v{k0}")
        for e in range(4):
            a(f"v_fmac_f32 v{ac + e}, s39, v{t + e}")
        a(f"v_cvt_pk_bf16_f32 v{ac}, v{ac}, v{ac + 1}")
        a(f"v_cvt_pk_bf16_f32 v{ac + 1}, v{ac + 2}, v{ac + 3}")
        a(f"buffer_store_dwordx2 {vr(ac, 2)}, v{VSO}, {S(SWS)}, s47 offen offset:{512 * nt}{SC}")


def emit_lds_wait(a, vaddr, off, t):
    lp, dn = a.newlabel("lw"), a.newlabel("lwd")
    a("s_mov_b32 s85, 0")
    a.label(lp)
    a(f"ds_read_b128 {vr(t, 4)}, v{vaddr} offset:{off}")
    a("s_waitcnt lgkmcnt(0)")
    a(f"v_and_b32 v{t}, v{t}, v{t + 1}")
    a(f"v_and_b32 v{t + 2}, v{t + 2}, v{t + 3}")
    a(f"v_and_b32 v{t}, v{t}, v{t + 2}")
    a("s_add_u32 s85, s85, 1")
    a(f"v_readfirstlane_b32 s80, v{t}")
    a("s_nop 1")
    a("s_cmp_lg_u32 s80, 0")
    a(f"s_cbranch_scc1 {dn}")
    a(f"s_cmp_lt_u32 s85, 0x{SPIN_LIMIT:x}")
    a(f"s_cbranch_scc1 {lp}")
    a.label(dn)


def p1_lists():
    KK, VV, WR = 124, 146, 162
    AK, AH, AS, AO = 174, 175, 176, 177
    KF_, WF_, RS_, TT, PO = 12, 56, 72, 104, 108
    soffs = ["0", "s50", "s51", "s52"]
    setup, loads, comp, stores = [], [], [], []
    a = setup.append
    a("v_lshrrev_b32 v24, 3, v0")
    a("v_and_b32 v25, 7, v0")
    a("s_lshl_b32 s80, s35, 6")
    a("s_lshl_b32 s81, s3, 2")
    a("s_add_u32 s81, s81, s44")
    a("s_lshl_b32 s81, s81, 5")
    a("v_lshlrev_b32 v24, 3, v24")
    a("v_add_u32 v24, s80, v24")
    a("v_lshlrev_b32 v25, 2, v25")
    a("v_add_u32 v25, s81, v25")
    a(f"v_lshlrev_b32 v{AK}, 11, v24")
    a(f"v_lshl_add_u32 v{AK}, v25, 1, v{AK}")
    a("s_mov_b32 s50, 4096")
    a("s_mov_b32 s51, 8192")
    a("s_mov_b32 s52, 12288")
    a(f"v_subrev_u32 v{AH}, 6144, v{AK}")
    a("v_mov_b32 v26, 0x80000000")
    a("v_cmp_gt_u32 vcc, 3, v24")
    a(f"v_lshlrev_b32 v{AO}, 12, v25")
    a("v_sub_u32 v24, 2040, v24")
    a(f"v_cndmask_b32 v{AH}, v{AH}, v26, vcc")
    a(f"v_lshlrev_b32 v{AS}, 3, v25")
    a(f"v_lshl_add_u32 v{AO}, v24, 1, v{AO}")
    loads.append(f"buffer_load_dwordx4 {vr(WR, 4)}, v{AS}, {S(SSH)}, 0 offen")
    loads.append(f"buffer_load_dwordx4 {vr(WR + 4, 4)}, v{AS}, {S(SSH)}, 0 offen offset:16")
    for i in range(3):
        loads.append(f"buffer_load_dwordx2 {vr(KK + 2 * i, 2)}, v{AH}, {S(SK)}, {soffs[i >> 1]} offen offset:{(i & 1) * 2048}")
    for i in range(8):
        loads.append(f"buffer_load_dwordx2 {vr(KK + 6 + 2 * i, 2)}, v{AK}, {S(SK)}, {soffs[i >> 1]} offen offset:{(i & 1) * 2048}")
    for i in range(8):
        loads.append(f"buffer_load_dwordx2 {vr(VV + 2 * i, 2)}, v{AK}, {S(SV)}, {soffs[i >> 1]} offen offset:{(i & 1) * 2048}")
    a = comp.append
    for dd in range(4):
        for h2 in range(2):
            src = WR + 2 * dd + h2
            a(f"v_lshlrev_b32 v{WF_ + 4 * dd + 2 * h2}, 16, v{src}")
            a(f"v_and_b32 v{WF_ + 4 * dd + 2 * h2 + 1}, 0xffff0000, v{src}")
    for i in range(11):
        for h2 in range(2):
            src = KK + 2 * i + h2
            a(f"v_lshlrev_b32 v{KF_ + 4 * i + 2 * h2}, 16, v{src}")
            a(f"v_and_b32 v{KF_ + 4 * i + 2 * h2 + 1}, 0xffff0000, v{src}")
    for s_ in range(8):
        for dd in range(4):
            r = RS_ + 4 * s_ + dd
            a(f"v_mul_f32 v{r}, v{KF_ + 4 * (s_ + 3) + dd}, v{WF_ + 4 * dd}")
            for j in range(1, 4):
                a(f"v_fmac_f32 v{r}, v{KF_ + 4 * (s_ + 3 - j) + dd}, v{WF_ + 4 * dd + j}")
    for s_ in range(8):
        for dd in range(4):
            r = RS_ + 4 * s_ + dd
            src = VV + 2 * s_ + (dd >> 1)
            t = TT + (dd & 1)
            a(f"v_and_b32 v{t}, 0xffff0000, v{src}" if dd & 1 else f"v_lshlrev_b32 v{t}, 16, v{src}")
            a(f"v_mul_f32 v{r}, v{r}, v{t}")
    stores.append(f"s_mov_b32 s53, 0x{WS_UR:x}")
    for dd in range(4):
        o = PO + 4 * dd
        for j in range(4):
            stores.append(f"v_cvt_pk_bf16_f32 v{o + j}, v{RS_ + 4 * (7 - 2 * j) + dd}, v{RS_ + 4 * (6 - 2 * j) + dd}")
        stores.append(f"buffer_store_dwordx4 {vr(o, 4)}, v{AO}, {S(SWS)}, s53 offen{SC}")
        if dd < 3:
            stores.append("s_add_u32 s53, s53, 4096")
    return setup, loads, comp, stores


VZ = 252
VLF = 251
SRDS = [(SX, 48, 4 * MB), (SW, 56, 6 * MB), (SWS, 88, WS_SIZE), (SK, 8, 4 * MB), (SV, 16, 4 * MB),
        (SSH, 24, 8192), (SHK, 32, 4 * MB), (SWO, 64, 2 * MB), (SQ, 0, 4 * MB), (SOUT, 72, 8 * MB),
        (SDBG, 80, 256)]


def late_setup(a, ts):
    a("s_lshl_b32 s84, s3, 5")
    a("s_add_u32 s84, s84, s35")
    a("s_lshl_b32 s80, s84, 3")
    a("s_load_dwordx2 s[76:77], s[36:37], s80")
    a("s_lshl_b32 s89, s2, 7")
    a("s_lshl_b32 s81, s32, 3")
    a("s_add_u32 s89, s89, s81")
    for (d, off, size) in SRDS[2:]:
        a(f"s_mov_b32 s{d + 2}, 0x{size:x}")
        a(f"s_mov_b32 s{d + 3}, 0x20000")
    a(f"v_mov_b32 v{VLF}, {L_FL}")
    ts.setup(a, SWS)


def g2_tile(a):
    a("s_and_b32 s86, s3, 1")
    a("s_lshl_b32 s86, s86, 1")
    a("s_bfe_u32 s80, s3, 0x10001")
    a("s_add_u32 s86, s86, s80")
    a("s_lshl_b32 s86, s86, 2")
    a("s_and_b32 s80, s35, 3")
    a("s_add_u32 s86, s86, s80")
    a("s_lshr_b32 s42, s3, 2")
    a("s_lshl_b32 s42, s42, 3")
    a("s_lshr_b32 s43, s35, 2")
    a("s_add_u32 s42, s42, s43")


def wo_addr(a):
    a("v_lshrrev_b32 v12, 3, v0")
    a("v_and_b32 v13, 7, v0")
    a("v_bfe_u32 v14, v0, 4, 1")
    a("v_lshlrev_b32 v14, 2, v14")
    a("v_xor_b32 v14, v14, v13")
    a("v_lshlrev_b32 v250, 11, v12")
    a("v_lshl_add_u32 v250, v14, 4, v250")
    a("s_lshl_b32 s80, s42, 7")
    a("v_add_u32 v250, s80, v250")
    a("s_lshl_b32 s84, s32, 11")
    a("s_lshl_b32 s39, s32, 15")


NE = 3


def wo_part(p, dst):
    return [f"s_add_u32 m0, s84, {dst}",
            f"s_add_u32 s81, s43, {p}",
            "s_and_b32 s81, s81, 7",
            "s_lshl_b32 s81, s81, 18",
            "s_add_u32 s81, s81, s39",
            f"buffer_load_dwordx4 v250, {S(SWO)}, s81 offen lds",
            f"s_add_u32 s81, s81, {16384 - 1024}",
            f"buffer_load_dwordx4 v250, {S(SWO)}, s81 offen offset:1024 lds"]


def wo_early():
    b0 = optval("we", 4)
    return {b0 + p: wo_part(p, L_R0 + p * 16384) for p in range(NE)}


def wo_late(a, ts, filler):
    filler()
    emit_publish(a, FL_O, 220, VZ)
    lds_flag_set(a, 32, 8, 222)
    emit_lds_wait(a, VLF, 32, 8)
    emit_lds_wait(a, VLF, 48, 8)
    ts.stamp(a, 7)
    for p in range(NE, 8):
        for x in wo_part(p, (p - NE) * 16384):
            a(x)


def lds_flag_set(a, word_s, word_add, t):
    a(f"s_lshl_b32 s80, s{word_s}, 2")
    a(f"v_add_u32 v{t}, s80, v{VLF}")
    a(f"v_mov_b32 v{t + 1}, 1")
    a(f"ds_write_b32 v{t}, v{t + 1} offset:{4 * word_add}")


def m_path(a, ts, ool):
    ACC = 80
    PD = optval('pd', 2)
    FR = [16, 36, 56, 192, 212][:PD + 1]
    NB = PD + 1
    LZ = 'lz' in OPT
    XA, WB, XA2 = 2, 6, 8
    a("s_waitcnt lgkmcnt(0)")
    late_setup(a, ts)
    ltk = a.newlabel("notok")
    a("s_cmp_lg_u32 s89, 0")
    a(f"s_cbranch_scc1 {ltk}")
    a("s_memrealtime s[78:79]")
    a("s_waitcnt lgkmcnt(0)")
    a("s_or_b32 s78, s78, 1")
    a("v_mov_b32 v180, s78")
    a("v_mov_b32 v181, s79")
    a("s_mov_b64 exec, 1")
    a(f"buffer_store_dwordx2 v[180:181], v{VZ}, {S(SDBG)}, 0 offen{SC}")
    a("s_mov_b64 exec, -1")
    a.label(ltk)
    a("s_waitcnt lgkmcnt(0)")
    a("s_and_b32 s44, s32, 1")
    a("s_lshr_b32 s45, s32, 1")
    a("v_and_b32 v8, 31, v0")
    a("v_lshrrev_b32 v9, 5, v0")
    a("v_lshrrev_b32 v10, 1, v8")
    a("v_and_b32 v10, 7, v10")
    a("v_lshlrev_b32 v11, 7, v8")
    a("s_lshl_b32 s46, s44, 13")
    a("v_add_u32 v11, s46, v11")
    for ks in range(4):
        a(f"v_add_u32 v12, {2 * ks}, v9")
        a("v_xor_b32 v12, v12, v10")
        a(f"v_lshl_add_u32 v{XA + ks}, v12, 4, v11")
    a("v_and_b32 v10, 15, v0")
    a("v_lshrrev_b32 v11, 4, v0")
    a("v_lshrrev_b32 v12, 2, v10")
    a("v_lshl_add_u32 v12, v9, 3, v12")
    a("v_mul_u32_u24 v12, 384, v12")
    a("v_lshrrev_b32 v13, 3, v10")
    a("v_xor_b32 v13, s45, v13")
    a("v_lshl_add_u32 v12, v13, 6, v12")
    a("v_and_b32 v13, 1, v11")
    a("v_lshl_add_u32 v12, v13, 5, v12")
    a("v_and_b32 v13, 3, v10")
    a("v_lshl_add_u32 v12, v13, 3, v12")
    a(f"v_add_u32 v{WB}, 16384, v12")
    a(f"v_add_u32 v{WB + 1}, {16384 + 81920}, v12")
    for ks in range(4):
        a(f"v_add_u32 v{XA2 + ks}, 81920, v{XA + ks}")

    def reads(t, ks, buf):
        st = (t + 2) & 3
        f = FR[buf]
        xa = (XA2 if st >= 2 else XA) + ks
        xo = (st & 1) * 40960
        wb = WB + (st >> 1)
        wo = (st & 1) * 40960 + 16 * ks * 384
        return [f"ds_read_b128 {vr(f, 4)}, v{xa} offset:{xo}",
                f"ds_read_b64_tr_b16 {vr(f + 8, 2)}, v{wb} offset:{wo}",
                f"ds_read_b64_tr_b16 {vr(f + 10, 2)}, v{wb} offset:{wo + 4 * 384}",
                f"ds_read_b128 {vr(f + 4, 4)}, v{xa} offset:{xo + 4096}",
                f"ds_read_b64_tr_b16 {vr(f + 12, 2)}, v{wb} offset:{wo + 128}",
                f"ds_read_b64_tr_b16 {vr(f + 14, 2)}, v{wb} offset:{wo + 128 + 4 * 384}",
                f"ds_read_b64_tr_b16 {vr(f + 16, 2)}, v{wb} offset:{wo + 256}",
                f"ds_read_b64_tr_b16 {vr(f + 18, 2)}, v{wb} offset:{wo + 256 + 4 * 384}"]

    def mfmas(buf, first, last):
        f = FR[buf]
        X = [vr(f, 4), vr(f + 4, 4)]
        W = [vr(f + 8, 4), vr(f + 12, 4), vr(f + 16, 4)]
        out = []
        for part in ((1, 2, 0) if last else (0, 1, 2)):
            for rt in range(2):
                d = vr(ACC + 16 * (2 * part + rt), 16)
                c = "0" if first else d
                if part < 2:
                    out.append(f"v_mfma_f32_32x32x16_bf16 {d}, {W[part]}, {X[rt]}, {c}")
                else:
                    out.append(f"v_mfma_f32_32x32x16_bf16 {d}, {X[rt]}, {W[part]}, {c}")
        return out

    a("s_lshl_b32 s46, s34, 1")
    a("s_add_u32 s46, s46, s45")
    a("s_lshl_b32 s46, s46, 6")
    a("s_lshl_b32 s47, s33, 2")
    a("s_add_u32 s46, s46, s47")
    a("s_lshl_b32 s47, s44, 1")
    a("s_add_u32 s47, s46, s47")
    a("s_lshl_b32 s47, s47, 11")
    a(f"s_add_u32 s48, s47, 0x{WS_VF:x}")
    a(f"s_add_u32 s47, s47, 0x{WS_KF:x}")
    a(f"s_mul_i32 s80, s45, {L_HD}")
    a("s_lshl_b32 s81, s44, 12")
    a("s_add_u32 s80, s80, s81")
    a("v_add_u32 v182, s80, v1")
    a("s_lshl_b32 s80, s32, 11")
    a(f"s_add_u32 s80, s80, {L_QH}")
    a("v_add_u32 v183, s80, v1")
    a(f"s_mov_b32 s49, {f32hex(SCALE_LOG2E)}")
    a("s_barrier")
    ts.stamp(a, 11)
    for k in range(PD):
        for r in reads(0, k, k):
            a(r)
        if k == 1:
            a("s_waitcnt lgkmcnt(8)")
    TKN = optval("tkn", 41)
    BK = (4 - PD) % 4
    for n in range(64):
        t, ks = n >> 2, n & 3
        m = mfmas(n % NB, n == 0, n == 63)
        n2 = n + PD
        r = reads(n2 >> 2, n2 & 3, n2 % NB) if n2 < 64 else []
        tch = []
        if n == TKN:
            tch = [f"buffer_load_dwordx2 v[186:187], v{VZ}, {S(SDBG)}, 0 offen{SC}"]
        ahead = min(15, 8 * (min(63, n + PD - 1) - n))
        if ks == BK:
            a(f"s_waitcnt lgkmcnt({ahead if (LZ and t < 15) else 0})")
            a(m[0])
            a("s_barrier")
        else:
            a(f"s_waitcnt lgkmcnt({ahead})")
            a(m[0])
        ri = 0
        for i, mm in enumerate(m[1:]):
            for _ in range(2):
                if ri < len(r):
                    a(r[ri]); ri += 1
            if i == 4:
                for x in tch:
                    a(x)
            a(mm)
    ts.stamp(a, 1)
    for part in (1, 2):
        for rt in range(2):
            b = ACC + 16 * (2 * part + rt)
            for j in range(8):
                a(f"v_cvt_pk_bf16_f32 v{b + j}, v{b + 2 * j}, v{b + 2 * j + 1}")
            for step in range(2):
                a(f"buffer_store_dwordx4 {vr(b + 4 * step, 4)}, v1, {S(SWS)}, s{46 + part} offen offset:{rt * 2048 + step * 1024}{SC}")
    for part in (1, 2):
        for rt in range(2):
            b = ACC + 16 * (2 * part + rt)
            for step in range(2):
                a(f"ds_write_b128 v182, {vr(b + 4 * step, 4)} offset:{8 * 2048 + (part - 1) * L_V + rt * 2048 + step * 1024}")
    for rt in (1, 0):
        b = ACC + 16 * rt
        d = QC if rt == 0 else b
        for r in range(16):
            a(f"v_mul_f32 v{b + r}, s49, v{b + r}")
        for j in range(8):
            a(f"v_cvt_pk_bf16_f32 v{d + j}, v{b + 2 * j}, v{b + 2 * j + 1}")
        if rt == 1:
            for step in range(2):
                a(f"ds_write_b128 v183, {vr(d + 4 * step, 4)} offset:{step * 1024}")
    a("s_lshl_b32 s40, s44, 1")
    a("s_mov_b32 s41, s45")
    lz = a.newlabel("nozero")
    a("s_cmp_lg_u32 s32, 0")
    a(f"s_cbranch_scc1 {lz}")
    a(f"v_lshl_add_u32 v190, v0, 2, v{VLF}")
    a(f"ds_write_b32 v190, v{VZ}")
    a.label(lz)
    a("s_add_u32 s38, s33, s44")
    a("s_sub_u32 s80, s38, 2")
    a("s_max_i32 s80, s80, 0")
    a("v_mov_b32 v20, s80")
    a("v_mov_b32 v21, s34")
    emit_wg_of(a, 190, 20, 21, 22)
    a("v_and_b32 v20, 1, v0")
    a("v_lshl_add_u32 v190, v20, 3, v190")
    a("s_lshl_b32 s80, s45, 4")
    a(f"s_add_u32 s80, s80, 0x{WS_FL + FL_K * 32768:x}")
    a("v_add_u32 v190, s80, v190")
    a("s_lshl_b32 s80, s44, 2")
    a("s_add_u32 s36, s46, s80")
    a("s_lshl_b32 s36, s36, 11")
    a(f"s_add_u32 s36, s36, 0x{WS_KF - 8 * 2048:x}")
    a(f"s_mul_i32 s37, s45, {L_HD}")
    a("s_lshl_b32 s80, s44, 13")
    a("s_add_u32 s37, s37, s80")
    emit_attn_setup(a, MASKS_M)
    g2_tile(a)
    wo_addr(a)
    a("s_waitcnt vmcnt(0)")
    emit_token_take(a, 186, VZ)
    emit_publish(a, FL_K, 220, VZ)
    ts.stamp(a, 2)
    lnp = a.newlabel("noprev")
    a("s_cmp_lt_u32 s38, 2")
    a(f"s_cbranch_scc1 {lnp}")
    emit_poll(a, 190, 2, 196, sleep=optval("ks", 1))
    ts.stamp(a, 3)
    for isv in range(2):
        for g in range(2):
            a(f"s_add_u32 m0, s37, {isv * L_V + g * 4096}")
            a(f"s_add_u32 s80, s36, {isv * (WS_VF - WS_KF) + g * 4096}")
            for i in range(4):
                a(f"buffer_load_dwordx4 v1, {S(SWS)}, s80 offen offset:{1024 * i} {scl()} lds")
    a("s_waitcnt vmcnt(0)")
    a.label(lnp)
    ts.stamp(a, 5)
    a("s_waitcnt lgkmcnt(0)")
    a("s_barrier")
    ts.stamp(a, 4)
    emit_attention(a, ool, {"blk": wo_early()}, MASKS_M)
    ts.stamp(a, 6)
    wo_late(a, ts, lambda: a("s_waitcnt vmcnt(0)"))
    BF = [16, 24, 32]
    AC2 = 40
    AF, PF = 72, optval('pf', 24)
    a("v_and_b32 v8, 15, v0")
    a("v_lshrrev_b32 v9, 4, v0")
    a("v_lshrrev_b32 v10, 5, v0")
    a("v_lshrrev_b32 v11, 2, v8")
    a("v_lshl_add_u32 v11, v10, 2, v11")
    a("v_lshlrev_b32 v11, 7, v11")
    a("v_and_b32 v12, 1, v9")
    a("v_lshl_add_u32 v11, v12, 5, v11")
    a("v_and_b32 v12, 3, v8")
    a("v_lshl_add_u32 v11, v12, 3, v11")
    a("v_lshrrev_b32 v12, 3, v8")
    a("v_lshl_add_u32 v2, v12, 6, v11")
    a("v_xor_b32 v12, 1, v12")
    a("v_lshl_add_u32 v3, v12, 6, v11")
    a("v_add_u32 v4, 0x10000, v2")
    a("v_add_u32 v5, 0x10000, v3")
    a(f"v_add_u32 v6, {L_R0}, v2")
    a(f"v_add_u32 v7, {L_R0}, v3")
    a("v_mov_b32 v12, s86")
    a("v_bfe_u32 v13, v0, 1, 4")
    emit_wg_of(a, 14, 12, 13, 15)
    a("v_and_b32 v12, 1, v0")
    a("v_lshl_add_u32 v14, v12, 4, v14")
    a("s_lshr_b32 s80, s32, 1")
    a("s_and_b32 s81, s32, 1")
    a("s_lshl_b32 s81, s81, 2")
    a("s_add_u32 s80, s80, s81")
    a("s_lshl_b32 s80, s80, 3")
    a(f"s_add_u32 s80, s80, 0x{WS_FL + FL_O * 32768:x}")
    a("v_add_u32 v14, s80, v14")
    a("s_lshl_b32 s46, s86, 2")
    a("s_add_u32 s46, s46, s32")
    a("s_lshl_b32 s47, s46, 16")
    a(f"s_add_u32 s47, s47, 0x{WS_OF:x}")
    for p in range(8):
        a(f"s_add_u32 s81, s43, {p}")
        a("s_and_b32 s81, s81, 7")
        a("s_lshl_b32 s81, s81, 13")
        a(f"s_add_u32 s{48 + p}, s47, s81")
    poll_issue(a, 14, 12)
    a("s_waitcnt vmcnt(1)")
    lds_flag_set(a, 32, 0, 16)
    ts.stamp(a, 8)
    emit_poll(a, 14, 32, 12, pre=True)
    ts.stamp(a, 9)

    def aload(ks):
        out = []
        if ks % 8 == 4:
            out.append(f"s_add_u32 s{48 + (ks >> 3)}, s{48 + (ks >> 3)}, 4096")
        out.append(f"buffer_load_dwordx4 {vr(AF + 4 * (ks % PF), 4)}, v1, {S(SWS)}, s{48 + (ks >> 3)} offen offset:{(ks & 3) * 1024} {scl()}")
        return out

    def breads(ks, buf):
        f = BF[buf]
        if ks < 8 * NE:
            base, o = 6, ks * 2048
        elif ks < 8 * NE + 32:
            base, o = 2, (ks - 8 * NE) * 2048
        else:
            base, o = 4, (ks - 8 * NE - 32) * 2048
        out = []
        for ct in range(2):
            out.append(f"ds_read_b64_tr_b16 {vr(f + 4 * ct, 2)}, v{base + ct} offset:{o}")
            out.append(f"ds_read_b64_tr_b16 {vr(f + 4 * ct + 2, 2)}, v{base + ct} offset:{o + 1024}")
        return out

    for ks in range(PF):
        for x in aload(ks):
            a(x)
    emit_lds_wait(a, VLF, 0, 16)
    emit_lds_wait(a, VLF, 16, 16)
    for x in breads(0, 0) + breads(1, 1):
        a(x)
    for ks in range(64):
        f = BF[ks % 3]
        issued = min(63, ks + PF - 1)
        a(f"s_waitcnt vmcnt({issued - ks}) lgkmcnt({4 if ks < 63 else 0})")
        af = vr(AF + 4 * (ks % PF), 4)
        nxt = breads(ks + 2, (ks + 2) % 3) if ks + 2 < 64 else []
        d0, d1 = vr(AC2, 16), vr(AC2 + 16, 16)
        a(f"v_mfma_f32_32x32x16_bf16 {d0}, {vr(f, 4)}, {af}, {'0' if ks == 0 else d0}")
        for x in nxt:
            a(x)
        a(f"v_mfma_f32_32x32x16_bf16 {d1}, {vr(f + 4, 4)}, {af}, {'0' if ks == 0 else d1}")
        if ks + PF < 64:
            for x in aload(ks + PF):
                a(x)
    ts.stamp(a, 28)
    a("v_and_b32 v8, 31, v0")
    a("s_lshl_b32 s46, s46, 5")
    a("v_add_u32 v8, s46, v8")
    a("v_lshlrev_b32 v8, 12, v8")
    a("v_lshl_add_u32 v8, v10, 4, v8")
    a("s_lshl_b32 s46, s42, 7")
    a("s_add_u32 s46, s46, 2048")
    a("s_nop 7")
    for ct in range(2):
        b = AC2 + 16 * ct
        for j in range(8):
            a(f"v_cvt_pk_bf16_f32 v{b + j}, v{b + 2 * j}, v{b + 2 * j + 1}")
        a("s_nop 1")
        for jj in range(2):
            a(f"v_permlane32_swap_b32 v{b + 4 * jj}, v{b + 4 * jj + 2}")
            a(f"v_permlane32_swap_b32 v{b + 4 * jj + 1}, v{b + 4 * jj + 3}")
        for jj in range(2):
            a(f"buffer_store_dwordx4 {vr(b + 4 * jj, 4)}, v8, {S(SOUT)}, s46 offen offset:{ct * 64 + jj * 32}")
    ts.final(a, 10)
    a("s_endpgm")


def h_path(a, ts, ool):
    a(f"s_setprio {optval('hp', 3)}")
    XO, WO = 2, 6
    a("v_lshrrev_b32 v12, 3, v0")
    a("v_and_b32 v13, 7, v0")
    a("s_lshl_b32 s45, s33, 7")
    a("s_lshl_b32 s46, s44, 5")
    a("s_add_u32 s45, s45, s46")
    a("v_lshrrev_b32 v14, 4, v0")
    a("v_xor_b32 v14, v14, v13")
    a("v_add_u32 v15, s45, v12")
    a("v_lshlrev_b32 v15, 11, v15")
    a(f"v_lshl_add_u32 v{XO}, v14, 4, v15")
    a(f"v_xor_b32 v{XO + 1}, 64, v{XO}")
    a(f"v_add_u32 v{XO + 1}, {16384 - 1024}, v{XO + 1}")
    a(f"v_add_u32 v{XO + 2}, {2 * (16384 - 1024)}, v{XO}")
    a(f"v_add_u32 v{XO + 3}, {2 * (16384 - 1024)}, v{XO + 1}")
    a("s_lshl_b32 s45, s44, 12")
    a("s_mul_i32 s48, s44, 98304")
    a("s_lshl_b32 s46, s34, 7")
    a("s_add_u32 s48, s48, s46")
    for i in range(3):
        if i:
            a(f"v_add_u32 v14, {64 * i}, v0")
        src = "v14" if i else "v0"
        a(f"v_mul_u32_u24 v15, 2731, {src}")
        a("v_lshrrev_b32 v15, 16, v15")
        a("v_mul_u32_u24 v16, 24, v15")
        a(f"v_sub_u32 v16, {src}, v16")
        a("v_bfe_u32 v18, v15, 1, 1")
        a("v_lshlrev_b32 v18, 2, v18")
        a("v_xor_b32 v16, v16, v18")
        a("v_lshrrev_b32 v18, 3, v16")
        a("v_and_b32 v16, 7, v16")
        a("v_mul_u32_u24 v15, 6144, v15")
        a("v_lshl_add_u32 v15, v18, 11, v15")
        a("v_lshl_add_u32 v15, v16, 4, v15")
        for ii in (i, i + 3):
            il = ii if ii < 4 else ii - 4
            a(f"s_add_u32 s49, s48, {(8 * 6144 if ii >= 3 else 0) - 1024 * il}")
            a(f"v_add_u32 v{WO + ii}, s49, v15")
    a("s_mul_i32 s43, s44, 6144")
    a("s_add_u32 s43, s43, 16384")
    order = []

    RG = optval("rg", 8)

    def pace(t):
        if t >= 6 and optval("pc", 0):
            a(f"s_nop {optval('pc', 0) - 1}")
            if optval("pc2", 0):
                a(f"s_nop {optval('pc2', 0) - 1}")

    def tile_index(t):
        if "hot" in OPT:
            a(f"s_mov_b32 s42, {t & 1}")
            return
        if RG <= 1:
            a(f"s_mov_b32 s42, {t}")
            return
        a(f"s_add_u32 s42, s56, {t}")
        a(f"s_and_b32 s42, s42, {RG - 1}")
        if t >= RG:
            a(f"s_add_u32 s42, s42, {t // RG * RG}")

    a("s_lshr_b32 s56, s35, 3")
    a("s_lshl_b32 s56, s56, 1")
    a("s_add_u32 s56, s56, s35")
    if RG == 16:
        a("s_lshl_b32 s56, s56, 1")

    def issue_x(t):
        if "nodma" in OPT and t >= 3:
            order.append(f"x{t}")
            return
        a(f"s_add_u32 m0, s45, {((t + 2) & 3) * 40960}")
        tile_index(t)
        a("s_lshl_b32 s42, s42, 7")
        for i in range(4):
            a(f"buffer_load_dwordx4 v{XO + i}, {S(SX)}, s42 offen offset:{1024 * i} lds")
            pace(t)
        order.append(f"X{t}")

    def issue_w(t):
        if "nodma" in OPT and t >= 3:
            order.append(f"x{t}")
            return
        st = (t + 2) & 3
        a(f"s_add_u32 m0, s43, {st * 40960}")
        tile_index(t)
        a("s_mul_i32 s42, s42, 393216")
        for i in range(4):
            a(f"buffer_load_dwordx4 v{WO + i}, {S(SW)}, s42 offen offset:{1024 * i} lds")
            pace(t)
        a(f"s_add_u32 m0, s43, {st * 40960 + 4096}")
        a("s_nop 0")
        for i in range(4, 6):
            a(f"buffer_load_dwordx4 v{WO + i}, {S(SW)}, s42 offen offset:{1024 * (i - 4)} lds")
        order.append(f"W{t}")

    def vm(x):
        a(x)
        if x.startswith("buffer"):
            order.append("P")

    def cnt(lst):
        return sum({"X": 4, "W": 6, "P": 1, "L": 0, "U": 0, "x": 0}[x[0]] for x in lst)

    def wait_tile(b):
        if "nodma" in OPT and b >= 3:
            return
        last = max(i for i, x in enumerate(order) if x in (f"X{b}", f"W{b}"))
        assert f"X{b}" in order and f"W{b}" in order
        n = cnt(order[last + 1:])
        assert n < 64
        a(f"s_waitcnt vmcnt({n})")

    def later():
        a("s_lshl_b32 s87, s84, 2")
        a("s_add_u32 s87, s87, s44")
        a("s_lshl_b32 s87, s87, 12")
        a(f"s_buffer_load_dword s57, {S(SHK)}, s87")
        a(f"s_mul_i32 s88, s44, {CW}")
        a(f"s_add_u32 s88, s88, {L_R0}")
        a("s_lshl_b32 s80, s35, 2")
        a("s_add_u32 s80, s80, s44")
        a("s_lshl_b32 s80, s80, 6")
        a("v_add_u32 v20, s80, v0")
        a("v_lshrrev_b32 v241, 3, v20")
        a("v_lshlrev_b32 v241, 11, v241")
        a("v_and_b32 v20, 7, v20")
        a("v_lshl_add_u32 v241, v20, 7, v241")
        a("s_lshr_b32 s80, s3, 2")
        a("s_lshl_b32 s80, s80, 10")
        a("v_add_u32 v241, s80, v241")
        a("s_lshl_b32 s80, s35, 6")
        a("s_lshl_b32 s81, s44, 4")
        a("s_add_u32 s80, s80, s81")
        a("v_lshrrev_b32 v20, 1, v0")
        a("v_add_u32 v20, s80, v20")
        a("v_lshlrev_b32 v20, 11, v20")
        a("v_and_b32 v21, 1, v0")
        a("v_lshl_add_u32 v20, v21, 7, v20")
        a("s_lshl_b32 s80, s3, 8")
        a("v_add_u32 v20, s80, v20")
        a("v_lshlrev_b32 v21, 7, v0")
        a("v_cmp_gt_u32 vcc, 32, v0")
        a("s_nop 1")
        a("v_cndmask_b32 v242, v240, v20, vcc")
        a("v_cndmask_b32 v243, v240, v21, vcc")
        a("v_lshrrev_b32 v20, 3, v0")
        a("v_and_b32 v21, 7, v0")
        a("s_lshl_b32 s80, s35, 6")
        a("s_lshl_b32 s81, s3, 2")
        a("s_add_u32 s81, s81, s44")
        a("s_lshl_b32 s81, s81, 5")
        a("v_lshlrev_b32 v22, 3, v20")
        a("v_add_u32 v22, s80, v22")
        a("v_lshlrev_b32 v23, 2, v21")
        a("v_add_u32 v23, s81, v23")
        a(f"v_lshlrev_b32 v{PA}, 12, v23")
        a(f"v_lshl_add_u32 v{PA}, v22, 1, v{PA}")
        a(f"v_lshlrev_b32 v{PA + 1}, 11, v22")
        a(f"v_lshl_add_u32 v{PA + 1}, v23, 1, v{PA + 1}")
        a(f"v_lshlrev_b32 v{PA + 2}, 12, v22")
        a(f"v_lshl_add_u32 v{PA + 2}, v23, 1, v{PA + 2}")
        a("v_bfe_u32 v20, v0, 2, 3")
        a("s_lshl_b32 s80, s44, 3")
        a("v_add_u32 v20, s80, v20")
        a("v_lshlrev_b32 v20, 3, v20")
        a("v_add_u32 v20, s3, v20")
        a("v_lshlrev_b32 v20, 7, v20")
        a("v_and_b32 v21, 3, v0")
        a("v_lshl_add_u32 v20, v21, 3, v20")
        a(f"v_add_u32 v{PA + 3}, 0x{WS_FL + FL_Y2 * 32768 + 32:x}, v20")
        a("s_and_b32 s40, s44, 1")
        a("s_lshr_b32 s41, s44, 1")
        a("s_waitcnt lgkmcnt(0)")
        a("s_lshl_b32 s80, s44, 4")
        a("s_lshr_b64 s[38:39], s[76:77], s80")
        a("s_lshl_b32 s39, s38, 16")
        a("s_lshl_b32 s57, s57, 16")
        a("s_add_u32 s38, s33, s40")
        a("s_sub_u32 s80, s38, 2")
        a("s_max_i32 s80, s80, 0")
        a("v_mov_b32 v20, s80")
        a("v_mov_b32 v21, s34")
        emit_wg_of(a, 190, 20, 21, 22)
        a("v_and_b32 v20, 1, v0")
        a("v_lshl_add_u32 v190, v20, 3, v190")
        a("s_lshl_b32 s80, s41, 4")
        a(f"s_add_u32 s80, s80, 0x{WS_FL + FL_K * 32768:x}")
        a("v_add_u32 v190, s80, v190")
        a(f"v_add_u32 v191, 0x{(FL_V - FL_K) * 32768:x}, v190")
        a("s_lshl_b32 s36, s34, 1")
        a("s_add_u32 s36, s36, s41")
        a("s_lshl_b32 s36, s36, 4")
        a("s_add_u32 s36, s36, s38")
        a("s_lshl_b32 s36, s36, 13")
        a(f"s_add_u32 s36, s36, 0x{WS_KF - 8 * 2048:x}")
        a(f"s_mul_i32 s37, s41, {L_HD}")
        a("s_lshl_b32 s80, s40, 13")
        a("s_add_u32 s37, s37, s80")
        a("s_lshl_b32 s40, s40, 1")
        a("s_add_u32 s40, s40, 1")
        a("v_and_b32 v192, 31, v0")
        a("v_lshlrev_b32 v192, 3, v192")
        a("v_add_u32 v192, s3, v192")
        a("v_lshlrev_b32 v192, 7, v192")
        a("s_lshr_b32 s80, s35, 3")
        a("s_lshl_b32 s80, s80, 3")
        a(f"s_add_u32 s80, s80, 0x{WS_FL + FL_UR * 32768 + 32:x}")
        a("v_add_u32 v192, s80, v192")
        a("s_lshl_b32 s80, s44, 11")
        a(f"s_add_u32 s80, s80, {L_QH}")
        a("v_add_u32 v193, s80, v1")
        a("v_lshlrev_b32 v180, 3, v0")
        a("v_add_u32 v180, s88, v180")
        a("v_and_b32 v181, 1, v0")
        a(f"v_mul_u32_u24 v181, {CPY}, v181")
        a("v_bfe_u32 v182, v0, 1, 1")
        a("v_lshl_add_u32 v181, v182, 4, v181")
        a("v_add_u32 v181, s88, v181")
        a("v_mov_b32 v182, s88")
        a("v_mov_b32 v183, s57")
        for i in range(4):
            a(f"v_mov_b32 v{184 + i}, 0")

    p_setup, p_loads, p_comp, p_stores = p1_lists()
    if "nop1" in OPT:
        p_loads, p_comp, p_stores = p_loads[:1], [], []

    main_a = a
    a = Asm()
    for y in p_setup:
        a(y)
    later()
    setup2 = [x.strip() for x in a.L]
    a = main_a

    def act(x):
        k, arg = x[0], x[1:]
        if k == "X":
            issue_x(int(arg))
        elif k == "W":
            issue_w(int(arg))
        elif k == "T":
            issue_x(int(arg)); issue_w(int(arg))
        elif k == "F":
            t0, n = map(int, arg.split("_"))
            emit_touch_fine(a, 234, 235, 228, t0)
            for y in touch(t0, n, 234, 235, 246):
                vm(y)
        elif k == "C":
            t = int(arg)
            a(f"s_cmp_eq_u32 s58, {t & 3}")
            a("s_cselect_b64 vcc, -1, 0")
            a(f"s_mov_b32 s82, {t * 128}")
            a(f"s_mov_b32 s83, {t * 393216}")
            a("v_cndmask_b32 v238, v240, v245, vcc")
            a("v_cndmask_b32 v239, v240, v244, vcc")
            vm(f"buffer_load_dword v246, v238, {S(SW)}, s83 offen")
            vm(f"buffer_load_dword v247, v239, {S(SX)}, s82 offen")
        elif k == "K":
            r = 242
            if arg:
                a(f"s_cmp_eq_u32 s58, {arg}")
                a("s_cselect_b64 vcc, -1, 0")
                a("s_nop 0")
                a("v_cndmask_b32 v237, v240, v242, vcc"); r = 237
            vm(f"buffer_load_dword v248, v{r}, {S(SK)}, 0 offen")
            vm(f"buffer_load_dword v249, v{r}, {S(SV)}, 0 offen")
        elif k == "P":
            for _ in range(int(arg)):
                if p_loads:
                    vm(p_loads.pop(0))
            if not p_loads:
                order.append("L")
        elif k == "V":
            if "L" in order:
                a(f"s_waitcnt vmcnt({cnt(order[order.index('L') + 1:])})")
                order.remove("L")
            for _ in range(int(arg)):
                if p_comp:
                    a(p_comp.pop(0))
        elif k == "S":
            assert not p_comp and not p_loads
            for y in p_stores:
                vm(y)
            order.append("U")
        elif k == "U":
            a(f"s_waitcnt vmcnt({cnt(order[order.index('U') + 1:])})")
            emit_token_take(a, 172, VZ)
            emit_publish(a, FL_UR, 194, VZ)
            order.append("P")
        elif k == "A":
            emit_attn_setup(a, MASKS_H)
        elif k == "R":
            poll_issue(a, 192, 198)
            order.append("P")
        elif k == "Q":
            vm(f"buffer_load_dword v246, v242, {S(SQ)}, 0 offen")
        elif k == "G":
            vm(f"buffer_load_dword v246, v243, {S(SHK)}, s87 offen")
        elif k == "O":
            vm(f"buffer_load_dword v247, v241, {S(SWO)}, 0 offen")
        elif k == "t":
            vm(f"buffer_load_dwordx2 v[172:173], v{VZ}, {S(SDBG)}, 0 offen{SC}")
        elif k == "b":
            late_setup(a, ts)
            if ts.on:
                order.append("P")
            a("v_mov_b32 v240, 0x80000000")
            a("s_and_b32 s58, s35, 3")
        elif k == "c":
            for _ in range(int(arg)):
                if setup2:
                    a(setup2.pop(0))
        elif k == "H":
            a(f"ds_write_b64 v180, v[184:185] offset:{URO + 4096}")
            a("ds_write_b128 v181, v[184:187]")
            a(f"ds_write_b32 v182, v183 offset:{CPY + 28}")
            for c in range(2):
                a(f"s_add_u32 m0, s88, {32 + c * CPY}")
                a(f"s_add_u32 s80, s87, {2 * c}")
                for kk in range(4):
                    vm(f"buffer_load_dwordx4 v1, {S(SHK)}, s80 offen offset:{1024 * kk} lds")
        elif k == "D":
            emit_poll(a, 192, 32, 198, pre=True)
            ts.stamp(a, 2)
            if ts.on:
                order.append("P")
            a(f"s_add_u32 m0, s88, {URO}")
            a(f"s_add_u32 s80, s87, 0x{WS_UR:x}")
            for kk in range(4):
                vm(f"buffer_load_dwordx4 v1, {S(SWS)}, s80 offen offset:{1024 * kk} {scl()} lds")
        else:
            raise ValueError(x)

    sc = os.environ.get("SCHED") or SCHEDS[optval("sc", 0)]
    sched = sc.split("|")
    assert len(sched) == 18, len(sched)
    a("s_waitcnt lgkmcnt(0)")
    for x in sched[0].split():
        act(x)
    for b in range(0, 17):
        if b < 16:
            wait_tile(b)
        a("s_barrier")
        if ts.on and "tsb" in OPT:
            ts.stamp(a, 11 + b); order.append("P")
        for x in sched[b + 1].split():
            if x[0] in "XWT":
                assert int(x[1:]) <= b + 3
            act(x)
    ts.stamp(a, 1)
    assert not setup2
    a("s_mov_b32 s46, s88")
    a(f"s_add_u32 s47, s87, 0x{WS_Y2:x}")

    def c_start():
        a("s_waitcnt vmcnt(0)")
        ts.stamp(a, 3)

    emit_conv(a, {"start": c_start})
    ts.stamp(a, 5)
    emit_attn_setup(a, MASKS_H)
    g2_tile(a)
    wo_addr(a)
    a("s_setprio 0")
    a("s_barrier")
    ts.stamp(a, 4)
    a(f"ds_read_b128 {vr(QC, 4)}, v193")
    a(f"ds_read_b128 {vr(QC + 4, 4)}, v193 offset:1024")
    YY, OO = 168, 8

    def h_mid():
        a("s_waitcnt vmcnt(0)")
        emit_publish(a, FL_Y2, 194, VZ)
        if "O" not in sc:
            a(f"buffer_load_dword v249, v241, {S(SWO)}, 0 offen")
        if "Q" not in sc:
            a(f"buffer_load_dword v246, v242, {S(SQ)}, 0 offen")

    blk = wo_early()
    ql = []
    for i in range(8):
        if i % 2 == 0:
            ql.append(f"s_mov_b32 s80, {4096 * (i >> 1)}")
        ql.append(f"buffer_load_dwordx2 {vr(QQ + 2 * i, 2)}, v{PA + 1}, {S(SQ)}, s80 offen offset:{(i & 1) * 2048}")
    ql.append(f"buffer_load_dwordx2 v[196:197], v{PA + 3}, {S(SWS)}, 0 offen{SC}")
    blk[optval("qb", 7)] = blk.get(optval("qb", 7), []) + ql

    def h_end():
        emit_poll(a, PA + 3, 32, 196, pre=True)
        a(f"s_mov_b32 s80, 0x{WS_Y2:x}")
        for dd in range(4):
            a(f"buffer_load_dwordx4 {vr(YY + 4 * dd, 4)}, v{PA}, {S(SWS)}, s80 offen {scl()}")
            if dd < 3:
                a("s_add_u32 s80, s80, 4096")

    emit_attention(a, ool, {"mid": h_mid, "blk": blk, "end": h_end}, MASKS_H)
    ts.stamp(a, 6)

    def gating():
        a(f"s_waitcnt vmcnt({3 if ts.on else 2})")
        for i in range(8):
            for dd in range(4):
                ys = YY + 4 * dd + (i >> 1)
                qs = QQ + 2 * i + (dd >> 1)
                a(f"v_and_b32 v4, 0xffff0000, v{ys}" if i & 1 else f"v_lshlrev_b32 v4, 16, v{ys}")
                a(f"v_and_b32 v5, 0xffff0000, v{qs}" if dd & 1 else f"v_lshlrev_b32 v5, 16, v{qs}")
                a(f"v_mul_f32 v{OO + 16 + 4 * i + dd}, v4, v5")
            o = OO + 16 + 4 * i
            a(f"v_cvt_pk_bf16_f32 v{o}, v{o}, v{o + 1}")
            a(f"v_cvt_pk_bf16_f32 v{o + 1}, v{o + 2}, v{o + 3}")
        a("s_waitcnt vmcnt(0)")

    wo_late(a, ts, gating)
    a("s_waitcnt vmcnt(0)")
    lds_flag_set(a, 32, 0, 4)
    ts.stamp(a, 8)
    for _ in range(optval("od", 0)):
        a("s_sleep 16")
    for i in range(0 if "noout" in OPT else 8):
        a(f"s_mov_b32 s80, {4096 * i}")
        a(f"buffer_store_dwordx2 {vr(OO + 16 + 4 * i, 2)}, v{PA + 2}, {S(SOUT)}, s80 offen")
    ts.final(a, 10)
    a("s_endpgm")


def gen_fused(a, ts):
    name = NAME + "_kernel"
    kernel_begin(a, name)
    ts.entry(a)
    a("s_cmp_ge_u32 s2, 256")
    a("s_cbranch_scc1 L_end")
    for (d, off, size) in SRDS:
        a(f"s_load_dwordx2 s[{d}:{d + 1}], s[0:1], {off}")
    a("s_load_dwordx2 s[36:37], s[0:1], 40")
    a("v_lshrrev_b32 v1, 6, v0")
    a("v_and_b32 v0, 63, v0")
    a("s_and_b32 s3, s2, 7")
    a("v_readfirstlane_b32 s32, v1")
    a("s_lshr_b32 s35, s2, 3")
    a("s_and_b32 s33, s3, 1")
    a("s_lshl_b32 s33, s33, 3")
    a("s_and_b32 s80, s35, 7")
    a("s_add_u32 s33, s33, s80")
    a("s_lshr_b32 s34, s3, 1")
    a("s_lshl_b32 s34, s34, 2")
    a("s_lshr_b32 s80, s35, 3")
    a("s_add_u32 s34, s34, s80")
    a("v_lshlrev_b32 v1, 4, v0")
    a(f"v_mov_b32 v{VZ}, 0")
    for (d, off, size) in SRDS[:2]:
        a(f"s_mov_b32 s{d + 2}, 0x{size:x}")
        a(f"s_mov_b32 s{d + 3}, 0x20000")
    a("s_and_b32 s44, s32, 3")
    a("s_mov_b32 s59, 0")
    a("s_cmp_lt_u32 s32, 4")
    a("s_cbranch_scc1 L_M")
    ool = []
    h_path(a, ts, ool)
    a.label("L_M")
    m_path(a, ts, ool)
    for (lf, body, lb) in ool:
        a.label(lf)
        for x in body:
            a(x)
        a(f"s_branch {lb}")
    a.label("L_end")
    a("s_endpgm")
    return name, 256, 102


def build(instrument=False):
    ts = TS(instrument)
    a = Asm()
    a.raw("; @launch grid=(256,1,1) block=(512,1,1) lds=163840")
    a.raw('.amdgcn_target "amdgcn-amd-amdhsa--gfx950"')
    a.raw(".text")
    n, v, s = gen_fused(a, ts)
    a.raw('.section .rodata,"a"')
    kernel_desc(a, n, v, s)
    return a.text()


if __name__ == "__main__":
    out = sys.argv[1] if len(sys.argv) > 1 else f"cdna_kernels/{NAME}.s"
    if len(sys.argv) > 2:
        OPT.update(sys.argv[2].split(","))
    open(out, "w").write(build())
```

```python
import sys, struct, os
from gen import Asm, vr, srd, kernel_begin, kernel_desc, MB, NAME
from gf import f32hex
import gf

OPT = set()
WS_KF, WS_VF, WS_UR, WS_OF, WS_Y2, WS_FL = 4 * MB, 8 * MB, 12 * MB, 16 * MB, 20 * MB, 24 * MB
WS_SIZE = 25 * MB
FL_UR, FL_K, FL_Y2, FL_O, FL_V = 0, 1, 2, 3, 4

CPY, URO, CW = 4160, 8320, 12928
L_HD, L_V = 49152, 24576
L_QH = 98304
L_R0 = 106496
L_FL = L_R0 + 4 * CW
SC = " sc1"
SPIN_LIMIT = 1 << 18
SCALE_LOG2E = (32 ** -0.5) * 1.4426950408889634
SX, SW, SWS, SK, SV, SSH, SHK, SWO, SQ, SOUT, SDBG = 4, 8, 12, 16, 20, 24, 28, 60, 64, 68, 72
MASKS_M = [4, 6, 8, 10, 16, 18, 20, 22, 24, 26, 48, 50, 52, 54, 56, 58]
MASKS_H = MASKS_M


WS_TS = 32 * MB


class TS:
    def __init__(self, on):
        self.enabled = on
        self.on = False

    def entry(self, a):
        if self.enabled:
            a("s_memrealtime s[98:99]")
            a("s_memtime s[100:101]")
            a("v_mov_b32 v254, 0")

    def setup(self, a, ws_pair):
        if self.enabled:
            a("v_writelane_b32 v254, s98, 30")

    def stamp(self, a, slot):
        if self.enabled:
            a("s_memrealtime s[90:91]")
            a("s_waitcnt lgkmcnt(0)")
            a(f"v_writelane_b32 v254, s90, {slot}")

    def final(self, a, slot):
        if not self.enabled:
            return
        a("s_waitcnt vmcnt(0)")
        self.stamp(a, slot)
        a("s_memtime s[90:91]")
        srd(a, 92, SWS, 4 * MB, WS_TS)
        a("s_lshl_b32 s96, s2, 4")
        a("s_add_u32 s96, s96, s32")
        a("s_lshl_b32 s96, s96, 8")
        a("s_waitcnt lgkmcnt(0)")
        a("s_sub_u32 s90, s90, s100")
        a("v_writelane_b32 v254, s90, 31")
        a("v_mov_b32 v255, 0")
        a("v_lshlrev_b32 v253, 3, v0")
        a("s_mov_b32 exec_hi, 0")
        a("buffer_store_dwordx2 v[254:255], v253, s[92:95], s96 offen")


def emit_wg_of(a, vdst, vrb, vhp, t):
    if optval("hx", 0):
        a(f"v_xor_b32 v{vhp}, {optval('hx', 0)}, v{vhp}")
    gf.emit_wg_of(a, vdst, vrb, vhp, t)


def S(n):
    return f"s[{n}:{n + 3}]"


SCHEDS = {
    0: "T0 X1 b c60 | W1 X2 P7 | W2 T3 P7 | T4 T5 P7 c40 | T6 c40 | T7 c40 t | T8 V90 | T9 V90 | T10 V90 S | T11 G"
       " | T12 U | T13 | T14 | T15 | | H R | D | ",
    1: "T0 X1 b c60 | W1 X2 | W2 T3 K2 | T4 T5 K3 c40 | T6 K0 c40 | T7 K1 c40 | T8 t | T9 P7 | T10 P7 | T11 P7"
       " | T12 V90 | T13 V90 | T14 V90 S | T15 G | U | H R | D | ",
}


def scl():
    return "sc1" if "ldsc1" in OPT else ""


def optval(prefix, default):
    for o in OPT:
        if o.startswith(prefix) and o[len(prefix):].lstrip("-").isdigit():
            return int(o[len(prefix):])
    return default


def poll_issue(a, voff, tmp):
    a(f"buffer_load_dwordx2 {vr(tmp, 2)}, v{voff}, {S(SWS)}, 0 offen{SC}")


def emit_poll(a, voff, nlanes, tmp, pre=False, sleep=0):
    lp, ck, dn = a.newlabel("poll"), a.newlabel("pollc"), a.newlabel("polld")
    mask = (1 << nlanes) - 1
    a(f"s_mov_b32 s80, 0x{mask & 0xffffffff:x}")
    a(f"s_mov_b32 s81, 0x{mask >> 32:x}")
    a("s_mov_b32 s85, 0")
    if not pre:
        a.label(lp)
        poll_issue(a, voff, tmp)
        a("s_waitcnt vmcnt(0)")
        a(f"v_cmp_eq_u64 vcc, s[78:79], {vr(tmp, 2)}")
        a("s_add_u32 s85, s85, 1")
        a("s_and_b64 s[82:83], vcc, s[80:81]")
        a("s_cmp_eq_u64 s[82:83], s[80:81]")
        a(f"s_cbranch_scc1 {dn}")
        if sleep:
            a(f"s_sleep {sleep}")
        a(f"s_cmp_lt_u32 s85, 0x{SPIN_LIMIT:x}")
        a(f"s_cbranch_scc1 {lp}")
        a.label(dn)
    else:
        a.label(ck)
        a("s_waitcnt vmcnt(0)")
        a(f"v_cmp_eq_u64 vcc, s[78:79], {vr(tmp, 2)}")
        a("s_add_u32 s85, s85, 1")
        a("s_and_b64 s[82:83], vcc, s[80:81]")
        a("s_cmp_eq_u64 s[82:83], s[80:81]")
        a(f"s_cbranch_scc1 {dn}")
        if sleep:
            a(f"s_sleep {sleep}")
        poll_issue(a, voff, tmp)
        a(f"s_cmp_lt_u32 s85, 0x{SPIN_LIMIT:x}")
        a(f"s_cbranch_scc1 {ck}")
        a("s_waitcnt vmcnt(0)")
        a.label(dn)


def emit_publish(a, kind, t0, vz):
    a(f"s_add_u32 s80, s89, 0x{WS_FL + kind * 32768:x}")
    a(f"v_mov_b32 v{t0}, s78")
    a(f"v_mov_b32 v{t0 + 1}, s79")
    a("s_mov_b64 exec, 1")
    a(f"buffer_store_dwordx2 {vr(t0, 2)}, v{vz}, {S(SWS)}, s80 offen{SC}")
    a("s_mov_b64 exec, -1")


def emit_token_take(a, t0, vz):
    lp, dn = a.newlabel("tok"), a.newlabel("tokd")
    a("s_mov_b32 s85, 0")
    a.label(lp)
    a(f"v_readfirstlane_b32 s78, v{t0}")
    a(f"v_readfirstlane_b32 s79, v{t0 + 1}")
    a("s_add_u32 s85, s85, 1")
    a("s_cmp_lg_u64 s[78:79], 0")
    a(f"s_cbranch_scc1 {dn}")
    a(f"buffer_load_dwordx2 {vr(t0, 2)}, v{vz}, {S(SDBG)}, 0 offen{SC}")
    a("s_waitcnt vmcnt(0)")
    a(f"s_cmp_lt_u32 s85, 0x{SPIN_LIMIT:x}")
    a(f"s_cbranch_scc1 {lp}")
    a.label(dn)


def emit_wline(a, dst, idx, hi, t):
    a(f"v_mul_u32_u24 v{dst}, 5462, v{idx}")
    a(f"v_lshrrev_b32 v{dst}, 16, v{dst}")
    a(f"v_mul_u32_u24 v{t}, 12, v{dst}")
    a(f"v_sub_u32 v{t}, v{idx}, v{t}")
    if hi is not None:
        a(f"v_lshl_add_u32 v{dst}, v{hi}, 6, v{dst}")
    a(f"v_mul_u32_u24 v{dst}, 6144, v{dst}")
    a(f"v_lshrrev_b32 v{t + 1}, 2, v{t}")
    a(f"v_lshl_add_u32 v{dst}, v{t + 1}, 11, v{dst}")
    a(f"v_and_b32 v{t}, 3, v{t}")
    a(f"v_lshl_add_u32 v{dst}, v{t}, 7, v{dst}")
    a("s_lshr_b32 s83, s3, 1")
    a("s_lshl_b32 s83, s83, 9")
    a(f"v_add_u32 v{dst}, s83, v{dst}")


def emit_touch_fine(a, VTX, VTW, t, t0):
    a(f"v_and_b32 v{t}, 7, v0")
    a(f"v_lshrrev_b32 v{t + 1}, 3, v0")
    a(f"s_add_u32 s82, s59, {t0}")
    a(f"v_add_u32 v{t + 1}, s82, v{t + 1}")
    a(f"v_and_b32 v{t + 1}, 15, v{t + 1}")
    a("s_lshl_b32 s82, s35, 2")
    a("s_add_u32 s82, s82, s44")
    a("s_lshl_b32 s81, s82, 3")
    a("s_and_b32 s83, s3, 1")
    a("s_lshl_b32 s83, s83, 10")
    a("s_add_u32 s81, s81, s83")
    a(f"v_add_u32 v{t + 2}, s81, v{t}")
    a(f"v_lshlrev_b32 v{t + 2}, 11, v{t + 2}")
    a(f"v_lshl_add_u32 v{VTX}, v{t + 1}, 7, v{t + 2}")
    a("s_mul_i32 s82, s82, 6")
    a(f"v_add_u32 v{t + 2}, s82, v{t}")
    emit_wline(a, VTW, t + 2, t + 1, t + 3)
    a(f"v_mov_b32 v{t + 4}, 0x80000000")
    a(f"v_cmp_gt_u32 vcc, 6, v{t}")
    a("s_nop 1")
    a(f"v_cndmask_b32 v{VTW}, v{t + 4}, v{VTW}, vcc")


def emit_touch_coarse(a, VTX, VTW, t):
    a("s_lshr_b32 s82, s35, 2")
    a("s_lshl_b32 s82, s82, 2")
    a("s_add_u32 s82, s82, s44")
    a("s_lshl_b32 s81, s82, 5")
    a("s_and_b32 s83, s3, 1")
    a("s_lshl_b32 s83, s83, 10")
    a("s_add_u32 s81, s81, s83")
    a(f"v_add_u32 v{t + 2}, s81, v0")
    a(f"v_lshlrev_b32 v{VTX}, 11, v{t + 2}")
    a("s_mul_i32 s82, s82, 24")
    a(f"v_add_u32 v{t + 2}, s82, v0")
    emit_wline(a, VTW, t + 2, None, t + 3)
    a(f"v_mov_b32 v{t + 4}, 0x80000000")
    a("v_cmp_gt_u32 vcc, 32, v0")
    a("s_nop 1")
    a(f"v_cndmask_b32 v{VTX}, v{t + 4}, v{VTX}, vcc")
    a("v_cmp_gt_u32 vcc, 24, v0")
    a("s_nop 1")
    a(f"v_cndmask_b32 v{VTW}, v{t + 4}, v{VTW}, vcc")


def touch(t0, nt, VTX, VTW, dst):
    m = (1 << (8 * nt)) - 1
    out = []
    if nt < 8:
        out += [f"s_mov_b32 exec_lo, 0x{m & 0xffffffff:x}", f"s_mov_b32 exec_hi, 0x{m >> 32:x}"]
    out += [f"buffer_load_dword v{dst}, v{VTW}, {S(SW)}, 0 offen",
            f"buffer_load_dword v{dst + 1}, v{VTX}, {S(SX)}, 0 offen"]
    if nt < 8:
        out.append("s_mov_b64 exec, -1")
    return out


QC = 224
SBUF = [8, 24, 40]
KB = [56, 64, 72]
VB = [80, 88, 160]
OA = 96
CM = 112
LS = 128
ONE = 240
PM = 232
P0 = 144
VM, VM2, VT, VNEG, VK, VK0 = 152, 153, 154, 244, 245, 246
YP = 176
QQ, PA = 200, 216


def emit_attn_setup(a, MASKS):
    a("v_and_b32 v4, 31, v0")
    a("v_lshrrev_b32 v5, 5, v0")
    a("v_lshlrev_b32 v5, 2, v5")
    a("v_sub_u32 v4, v4, v5")
    for r in range(16):
        a(f"v_cmp_le_i32 s[{MASKS[r]}:{MASKS[r] + 1}], {8 * (r >> 2) + (r & 3)}, v4")
    a(f"v_mov_b32 v{VNEG}, 0xf149f2ca")
    a("v_mov_b32 v4, 0xffff")
    a("v_mov_b32 v5, 0xffff0000")
    for j in range(8):
        a(f"v_cndmask_b32 v{PM + j}, 0, v4, s[{MASKS[2 * j]}:{MASKS[2 * j] + 1}]")
        a(f"v_cndmask_b32 v6, 0, v5, s[{MASKS[2 * j + 1]}:{MASKS[2 * j + 1] + 1}]")
        a(f"v_or_b32 v{PM + j}, v{PM + j}, v6")
    a("v_lshrrev_b32 v4, 4, v0")
    a("v_lshrrev_b32 v5, 2, v0")
    a("v_xor_b32 v4, v4, v5")
    a("v_and_b32 v4, 1, v4")
    a("v_cmp_eq_u32 vcc, 0, v4")
    a("v_mov_b32 v5, 0x3f803f80")
    for i in range(4):
        a(f"v_cndmask_b32 v{ONE + i}, 0, v5, vcc")
    a(f"s_mul_i32 s42, s41, {L_HD}")
    a("s_lshl_b32 s43, s40, 11")
    a("s_add_u32 s42, s42, s43")
    a(f"v_add_u32 v{VK}, s42, v1")
    a("s_lshl_b32 s45, s33, 2")
    a("s_add_u32 s45, s45, s40")
    a("s_sub_u32 s46, 8, s45")
    a("s_cmp_lt_u32 s45, 8")
    a("s_cselect_b32 s46, s46, 0")
    a("s_cselect_b32 s43, 0x4000, 0")
    a(f"v_add_u32 v{VK0}, s43, v{VK}")
    a("s_lshl_b32 s47, s45, 5")
    a("s_lshl_b32 s42, s34, 1")
    a("s_add_u32 s47, s47, s42")
    a("s_add_u32 s47, s47, s41")
    a("s_lshl_b32 s47, s47, 11")
    a(f"s_add_u32 s47, s47, 0x{WS_OF:x}")


def emit_attention(a, ool, hooks, MASKS):
    order = [8, 0, 7, 6, 5, 4, 3, 2, 1]

    def hook(k):
        if k in hooks:
            hooks[k]()

    def kread(i):
        rel, b = order[i % 9], KB[i % 3]
        return [f"ds_read_b128 {vr(b, 4)}, v{VK} offset:{rel * 2048}",
                f"ds_read_b128 {vr(b + 4, 4)}, v{VK} offset:{rel * 2048 + 1024}"]

    def vread(i):
        rel, b = order[i], VB[i % 3]
        ad = VK0 if rel == 0 else VK
        return [f"ds_read_b128 {vr(b, 4)}, v{ad} offset:{L_V + rel * 2048}",
                f"ds_read_b128 {vr(b + 4, 4)}, v{ad} offset:{L_V + rel * 2048 + 1024}"]

    def smf(i, c):
        s, k = vr(SBUF[i % 3], 16), KB[i % 3]
        return [f"v_mfma_f32_32x32x16_bf16 {s}, {vr(k, 4)}, {vr(QC, 4)}, {c}",
                f"v_mfma_f32_32x32x16_bf16 {s}, {vr(k + 4, 4)}, {vr(QC + 4, 4)}, {s}"]

    def merge():
        lf, lb = a.newlabel("mneg"), a.newlabel("mback")
        a("s_cmp_gt_u32 s46, 0")
        a(f"s_cbranch_scc1 {lf}")
        for r in range(16):
            a(f"v_cndmask_b32 v{SBUF[1] + r}, v{SBUF[1] + r}, v{SBUF[0] + r}, s[{MASKS[r]}:{MASKS[r] + 1}]")
        a.label(lb)
        ool.append((lf, [f"v_cndmask_b32 v{SBUF[1] + r}, v{VNEG}, v{SBUF[0] + r}, s[{MASKS[r]}:{MASKS[r] + 1}]"
                         for r in range(16)], lb))

    def maxblk(i):
        s = SBUF[i % 3]
        ta, tb = (VM, VM2) if i == 1 else (VT, VM2)
        if i >= 2:
            a(f"s_cmp_le_u32 s46, {order[i]}")
            a("s_cselect_b64 vcc, -1, 0")
        a(f"v_max3_f32 v{ta}, v{s}, v{s + 1}, v{s + 2}")
        a(f"v_max3_f32 v{tb}, v{s + 3}, v{s + 4}, v{s + 5}")
        for x in range(5):
            t = (ta, tb)[x & 1]
            a(f"v_max3_f32 v{t}, v{s + 6 + 2 * x}, v{s + 7 + 2 * x}, v{t}")
        a(f"v_max_f32 v{ta}, v{ta}, v{tb}")
        if i >= 2:
            a(f"v_cndmask_b32 v{ta}, v{VNEG}, v{ta}, vcc")
            a(f"v_max_f32 v{VM}, v{VM}, v{ta}")

    for x in kread(0) + kread(1):
        a(x)
    for i in range(9):
        a("s_waitcnt lgkmcnt(2)")
        for x in smf(i, "0") + kread(i + 2):
            a(x)
        if i == 2:
            merge()
        if i >= 2:
            maxblk(i - 1)
    a("s_nop 3")
    maxblk(8)
    a(f"v_mov_b32 v{VT}, v{VM}")
    a("s_nop 1")
    a(f"v_permlane32_swap_b32 v{VM}, v{VT}")
    a("s_nop 1")
    a(f"v_max_f32 v{VM}, v{VM}, v{VT}")
    for r in range(16):
        a(f"v_sub_f32 v{CM + r}, 0, v{VM}")
    hook("mid")
    cm, o, ls = vr(CM, 16), vr(OA, 16), vr(LS, 4)

    def pv(i):
        s = SBUF[i % 3]
        if i == 1:
            return [f"v_mfma_f32_32x32x16_bf16 {o}, {vr(VB[0], 4)}, {vr(s + 8, 4)}, 0",
                    f"v_mfma_f32_16x16x32_bf16 {ls}, {vr(ONE, 4)}, {vr(s, 4)}, 0",
                    f"v_mfma_f32_32x32x16_bf16 {o}, {vr(VB[0] + 4, 4)}, {vr(s + 12, 4)}, {o}",
                    f"v_mfma_f32_16x16x32_bf16 {ls}, {vr(ONE, 4)}, {vr(s + 4, 4)}, {ls}",
                    f"v_mfma_f32_32x32x16_bf16 {o}, {vr(VB[1], 4)}, {vr(P0, 4)}, {o}",
                    f"v_mfma_f32_32x32x16_bf16 {o}, {vr(VB[1] + 4, 4)}, {vr(P0 + 4, 4)}, {o}"]
        v = VB[i % 3]
        return [f"v_mfma_f32_32x32x16_bf16 {o}, {vr(v, 4)}, {vr(s, 4)}, {o}",
                f"v_mfma_f32_16x16x32_bf16 {ls}, {vr(ONE, 4)}, {vr(s, 4)}, {ls}",
                f"v_mfma_f32_32x32x16_bf16 {o}, {vr(v + 4, 4)}, {vr(s + 4, 4)}, {o}",
                f"v_mfma_f32_16x16x32_bf16 {ls}, {vr(ONE, 4)}, {vr(s + 4, 4)}, {ls}"]

    def valu(i):
        s = SBUF[i % 3]
        return [(f"v_exp_f32 v{s + r}, v{s + r}", 8) for r in range(16)] + \
               [(f"v_cvt_pk_bf16_f32 v{s + j}, v{s + 2 * j}, v{s + 2 * j + 1}", 4) for j in range(8)]

    def weave(ms, vs):
        vs = list(vs)
        for m in ms:
            a(m)
            need = (32 if "32x32" in m else 16) - 8
            while vs and need > 0:
                x, c = vs.pop(0)
                a(x)
                need -= c
        for x, c in vs:
            a(x)

    fin = a.newlabel("afin")
    for x in kread(2) + vread(0) + vread(1):
        a(x)
    a("s_waitcnt lgkmcnt(6)")
    for x in smf(0, cm) + smf(1, cm):
        a(x)
    a("s_waitcnt lgkmcnt(4)")
    for x in smf(2, cm) + kread(3):
        a(x)
    merge()
    s = SBUF[1]
    for x, c in valu(1):
        a(x)
    for j in range(8):
        a(f"v_and_b32 v{s + 8 + j}, v{s + j}, v{PM + j}")
    for j in range(8):
        a(f"v_xor_b32 v{P0 + j}, v{s + j}, v{s + 8 + j}")
    blk = hooks.get("blk", {})
    for i in range(2, 9):
        ex = a.newlabel("aexit")
        a("s_waitcnt lgkmcnt(0)")
        a(f"s_cmp_gt_u32 s46, {order[i]}")
        a(f"s_cbranch_scc1 {ex}")
        ool.append((ex, pv(i - 1) + [x for k in range(i, 9) for x in blk.get(k, [])], fin))
        for x in blk.get(i, []):
            a(x)
        for x in vread(i) + (kread(i + 2) if i + 2 < 9 else []):
            a(x)
        weave((smf(i + 1, cm) if i + 1 < 9 else []) + pv(i - 1), valu(i))
    a("s_waitcnt lgkmcnt(0)")
    for x in pv(8):
        a(x)
    a.label(fin)
    hook("end")
    a("s_nop 7")
    a("s_nop 3")
    a(f"v_rcp_f32 v{VT}, v{LS}")
    a("s_nop 1")
    for r in range(16):
        a(f"v_mul_f32 v{OA + r}, v{OA + r}, v{VT}")
    for j in range(8):
        a(f"v_cvt_pk_bf16_f32 v{OA + j}, v{OA + 2 * j}, v{OA + 2 * j + 1}")
    a(f"buffer_store_dwordx4 {vr(OA, 4)}, v1, {S(SWS)}, s47 offen{SC}")
    a(f"buffer_store_dwordx4 {vr(OA + 4, 4)}, v1, {S(SWS)}, s47 offen offset:1024{SC}")


def emit_conv(a, hooks):
    ACC, FB = 8, [40, 104]
    VA, VBB, VEB, VSO = 168, 172, 173, 174
    a("v_and_b32 v2, 15, v0")
    a("v_lshrrev_b32 v3, 4, v0")
    a("v_add_u32 v4, 1, v2")
    a("v_and_b32 v5, 1, v4")
    a("v_sub_u32 v4, v4, v5")
    a("v_lshl_add_u32 v4, v3, 3, v4")
    a("v_lshlrev_b32 v4, 1, v4")
    a(f"v_mul_u32_u24 v5, {CPY}, v5")
    a(f"v_add3_u32 v{VA}, v4, v5, s46")
    for i in range(1, 4):
        a(f"v_add_u32 v{VA + i}, {1024 * i}, v{VA}")
    a("v_lshlrev_b32 v4, 5, v2")
    a("v_lshlrev_b32 v5, 4, v3")
    a(f"v_sub_u32 v{VBB}, v5, v4")
    a(f"v_add_u32 v{VBB}, {URO + 480}, v{VBB}")
    a(f"v_add_u32 v{VBB}, s46, v{VBB}")
    a("v_lshlrev_b32 v5, 3, v3")
    a(f"v_add_u32 v{VSO}, v4, v5")
    a(f"v_sub_u32 v{VEB}, {URO + 504}, v{VSO}")
    a(f"v_add_u32 v{VEB}, s46, v{VEB}")

    def creads(j, buf):
        f = FB[buf]
        out = []
        for q in range(8):
            o = (q & 1) * 128 + 16 * j
            va = VA + (q >> 1)
            out.append(f"ds_read2_b32 {vr(f + 4 * q, 2)}, v{va} offset0:{o} offset1:{o + 1}")
            out.append(f"ds_read2_b32 {vr(f + 4 * q + 2, 2)}, v{va} offset0:{o + 2} offset1:{o + 3}")
            out.append(f"ds_read_b128 {vr(f + 32 + 4 * q, 4)}, v{VBB} offset:{512 * (7 - q) + 64 * j}")
        return out

    pairs = [(q, dl) for q in range(8) for dl in range(8 - q)]
    pairs.sort(key=lambda x: (max(x[0], x[1]), x[0] + x[1], x[0]))
    seq, rest = [], list(pairs)
    while rest:
        pick = next((p for p in rest if all(p[0] + p[1] != s[0] + s[1] for s in seq[-2:])), rest[0])
        rest.remove(pick)
        seq.append(pick)

    def cmfmas(j, buf):
        f = FB[buf]
        seen, out = set(), []
        for (q, dl) in seq:
            nt = q + dl
            d = vr(ACC + 4 * nt, 4)
            c = "0" if (j == 0 and nt not in seen) else d
            seen.add(nt)
            out.append(f"v_mfma_f32_16x16x32_bf16 {d}, {vr(f + 4 * q, 4)}, {vr(f + 32 + 4 * dl, 4)}, {c}")
        return out

    extra = list(hooks.get("extra", []))
    if "start" in hooks:
        hooks["start"]()
    for i, r in enumerate(creads(0, 0)):
        a(r)
        if i % 12 == 11:
            a("s_waitcnt lgkmcnt(4)")
    for j in range(8):
        m = cmfmas(j, j & 1)
        r = creads(j + 1, (j + 1) & 1) if j < 7 else \
            [f"ds_read_b64 {vr(FB[0] + 2 * nt, 2)}, v{VEB} offset:{512 * (7 - nt)}" for nt in range(8)]
        a("s_waitcnt lgkmcnt(0)")
        ri = 0
        if "cnolds" in OPT and j < 7:
            r = []
        for i, mm in enumerate(m):
            a(mm if "cnomfma" not in OPT else "s_nop 3")
            if ri < len(r):
                a(r[ri]); ri += 1
            if j >= 1 and extra:
                a(extra.pop(0))
        assert ri == len(r)
    a("s_nop 7")
    a("s_waitcnt lgkmcnt(0)")
    stores = []
    for nt in range(8):
        k0, k1 = FB[0] + 2 * nt, FB[0] + 2 * nt + 1
        t = FB[0] + 16 + 4 * (nt & 1)
        ac = ACC + 4 * nt
        a(f"v_and_b32 v{t}, 0xffff0000, v{k1}")
        a(f"v_lshlrev_b32 v{t + 1}, 16, v{k1}")
        a(f"v_and_b32 v{t + 2}, 0xffff0000, v{k0}")
        a(f"v_lshlrev_b32 v{t + 3}, 16, v{k0}")
        for e in range(4):
            a(f"v_fmac_f32 v{ac + e}, s39, v{t + e}")
        a(f"v_cvt_pk_bf16_f32 v{YP + 2 * nt}, v{ac}, v{ac + 1}")
        a(f"v_cvt_pk_bf16_f32 v{YP + 2 * nt + 1}, v{ac + 2}, v{ac + 3}")
        st = f"buffer_store_dwordx2 {vr(YP + 2 * nt, 2)}, v{VSO}, {S(SWS)}, s36 offen offset:{512 * nt}{SC}"
        if "yearly" in OPT:
            a(st)
        else:
            stores.append(st)
    return stores


def emit_lds_wait(a, vaddr, off, t):
    lp, dn = a.newlabel("lw"), a.newlabel("lwd")
    a("s_mov_b32 s85, 0")
    a.label(lp)
    a(f"ds_read_b128 {vr(t, 4)}, v{vaddr} offset:{off}")
    a("s_waitcnt lgkmcnt(0)")
    a(f"v_and_b32 v{t}, v{t}, v{t + 1}")
    a(f"v_and_b32 v{t + 2}, v{t + 2}, v{t + 3}")
    a(f"v_and_b32 v{t}, v{t}, v{t + 2}")
    a("s_add_u32 s85, s85, 1")
    a(f"v_readfirstlane_b32 s80, v{t}")
    a("s_nop 1")
    a("s_cmp_lg_u32 s80, 0")
    a(f"s_cbranch_scc1 {dn}")
    a(f"s_cmp_lt_u32 s85, 0x{SPIN_LIMIT:x}")
    a(f"s_cbranch_scc1 {lp}")
    a.label(dn)


def p1_lists():
    KK, VV, WR = 124, 146, 162
    AK, AH, AS, AO = 174, 175, 176, 177
    KF_, WF_, RS_, TT, PO = 12, 56, 72, 104, 108
    soffs = ["0", "s50", "s51", "s52"]
    setup, loads, comp, stores = [], [], [], []
    a = setup.append
    a("v_lshrrev_b32 v24, 3, v0")
    a("v_and_b32 v25, 7, v0")
    a("s_lshl_b32 s80, s35, 6")
    a("s_lshl_b32 s81, s3, 2")
    a("s_add_u32 s81, s81, s44")
    a("s_lshl_b32 s81, s81, 5")
    a("v_lshlrev_b32 v24, 3, v24")
    a("v_add_u32 v24, s80, v24")
    a("v_lshlrev_b32 v25, 2, v25")
    a("v_add_u32 v25, s81, v25")
    a(f"v_lshlrev_b32 v{AK}, 11, v24")
    a(f"v_lshl_add_u32 v{AK}, v25, 1, v{AK}")
    a("s_mov_b32 s50, 4096")
    a("s_mov_b32 s51, 8192")
    a("s_mov_b32 s52, 12288")
    a(f"v_subrev_u32 v{AH}, 6144, v{AK}")
    a("v_mov_b32 v26, 0x80000000")
    a("v_cmp_gt_u32 vcc, 3, v24")
    a(f"v_lshlrev_b32 v{AO}, 12, v25")
    a("v_sub_u32 v24, 2040, v24")
    a(f"v_cndmask_b32 v{AH}, v{AH}, v26, vcc")
    a(f"v_lshlrev_b32 v{AS}, 3, v25")
    a(f"v_lshl_add_u32 v{AO}, v24, 1, v{AO}")
    loads.append(f"buffer_load_dwordx4 {vr(WR, 4)}, v{AS}, {S(SSH)}, 0 offen")
    loads.append(f"buffer_load_dwordx4 {vr(WR + 4, 4)}, v{AS}, {S(SSH)}, 0 offen offset:16")
    for i in range(3):
        loads.append(f"buffer_load_dwordx2 {vr(KK + 2 * i, 2)}, v{AH}, {S(SK)}, {soffs[i >> 1]} offen offset:{(i & 1) * 2048}")
    for i in range(8):
        loads.append(f"buffer_load_dwordx2 {vr(KK + 6 + 2 * i, 2)}, v{AK}, {S(SK)}, {soffs[i >> 1]} offen offset:{(i & 1) * 2048}")
    for i in range(8):
        loads.append(f"buffer_load_dwordx2 {vr(VV + 2 * i, 2)}, v{AK}, {S(SV)}, {soffs[i >> 1]} offen offset:{(i & 1) * 2048}")
    a = comp.append
    for dd in range(4):
        for h2 in range(2):
            src = WR + 2 * dd + h2
            a(f"v_lshlrev_b32 v{WF_ + 4 * dd + 2 * h2}, 16, v{src}")
            a(f"v_and_b32 v{WF_ + 4 * dd + 2 * h2 + 1}, 0xffff0000, v{src}")
    for i in range(11):
        for h2 in range(2):
            src = KK + 2 * i + h2
            a(f"v_lshlrev_b32 v{KF_ + 4 * i + 2 * h2}, 16, v{src}")
            a(f"v_and_b32 v{KF_ + 4 * i + 2 * h2 + 1}, 0xffff0000, v{src}")
    for s_ in range(8):
        for dd in range(4):
            r = RS_ + 4 * s_ + dd
            a(f"v_mul_f32 v{r}, v{KF_ + 4 * (s_ + 3) + dd}, v{WF_ + 4 * dd}")
            for j in range(1, 4):
                a(f"v_fmac_f32 v{r}, v{KF_ + 4 * (s_ + 3 - j) + dd}, v{WF_ + 4 * dd + j}")
    for s_ in range(8):
        for dd in range(4):
            r = RS_ + 4 * s_ + dd
            src = VV + 2 * s_ + (dd >> 1)
            t = TT + (dd & 1)
            a(f"v_and_b32 v{t}, 0xffff0000, v{src}" if dd & 1 else f"v_lshlrev_b32 v{t}, 16, v{src}")
            a(f"v_mul_f32 v{r}, v{r}, v{t}")
    stores.append(f"s_mov_b32 s53, 0x{WS_UR:x}")
    for dd in range(4):
        o = PO + 4 * dd
        for j in range(4):
            stores.append(f"v_cvt_pk_bf16_f32 v{o + j}, v{RS_ + 4 * (7 - 2 * j) + dd}, v{RS_ + 4 * (6 - 2 * j) + dd}")
        stores.append(f"buffer_store_dwordx4 {vr(o, 4)}, v{AO}, {S(SWS)}, s53 offen{SC}")
        if dd < 3:
            stores.append("s_add_u32 s53, s53, 4096")
    return setup, loads, comp, stores


VZ = 252
VLF = 251
SRDS = [(SX, 48, 4 * MB), (SW, 56, 6 * MB), (SWS, 88, WS_SIZE), (SK, 8, 4 * MB), (SV, 16, 4 * MB),
        (SSH, 24, 8192), (SHK, 32, 4 * MB), (SWO, 64, 2 * MB), (SQ, 0, 4 * MB), (SOUT, 72, 8 * MB),
        (SDBG, 80, 256)]


def late_setup(a, ts):
    a("s_lshl_b32 s84, s3, 5")
    a("s_add_u32 s84, s84, s35")
    a("s_lshl_b32 s80, s84, 3")
    a("s_load_dwordx2 s[76:77], s[36:37], s80")
    a("s_lshl_b32 s89, s2, 7")
    a("s_lshl_b32 s81, s32, 3")
    a("s_add_u32 s89, s89, s81")
    for (d, off, size) in SRDS[2:]:
        a(f"s_mov_b32 s{d + 2}, 0x{size:x}")
        a(f"s_mov_b32 s{d + 3}, 0x20000")
    a(f"v_mov_b32 v{VLF}, {L_FL}")
    ts.setup(a, SWS)


def g2_tile(a):
    a("s_and_b32 s86, s3, 1")
    a("s_lshl_b32 s86, s86, 1")
    a("s_bfe_u32 s80, s3, 0x10001")
    a("s_add_u32 s86, s86, s80")
    a("s_lshl_b32 s86, s86, 2")
    a("s_and_b32 s80, s35, 3")
    a("s_add_u32 s86, s86, s80")
    a("s_lshr_b32 s42, s3, 2")
    a("s_lshl_b32 s42, s42, 3")
    a("s_lshr_b32 s43, s35, 2")
    a("s_add_u32 s42, s42, s43")


def wo_addr(a):
    a("v_lshrrev_b32 v4, 3, v0")
    a("v_and_b32 v5, 7, v0")
    a("v_bfe_u32 v6, v0, 4, 1")
    a("v_lshlrev_b32 v6, 2, v6")
    a("v_xor_b32 v6, v6, v5")
    a("v_lshlrev_b32 v250, 11, v4")
    a("v_lshl_add_u32 v250, v6, 4, v250")
    a("s_lshl_b32 s80, s42, 7")
    a("v_add_u32 v250, s80, v250")
    a("s_lshl_b32 s84, s32, 11")
    a("s_lshl_b32 s88, s32, 15")


NE = 3


def wo_part(p, dst, dw=0):
    return [f"s_add_u32 m0, s84, {dst + dw * 2048}",
            f"s_add_u32 s81, s43, {p}",
            "s_and_b32 s81, s81, 7",
            "s_lshl_b32 s81, s81, 18",
            "s_add_u32 s81, s81, s88"] + ([f"s_add_u32 s81, s81, {dw * 32768}"] if dw else []) + [
            f"buffer_load_dwordx4 v250, {S(SWO)}, s81 offen lds",
            f"s_add_u32 s81, s81, {16384 - 1024}",
            f"buffer_load_dwordx4 v250, {S(SWO)}, s81 offen offset:1024 lds"]


def wo_early():
    b0 = optval("we", 3)
    return {b0 + p: wo_part(p, L_R0 + p * 16384) for p in range(NE)}


def wo_late(a, ts, nyoung, after=None, helper=False):
    HS = "hs" in OPT
    if HS:
        lds_flag_set(a, 32, 8, 222)
    a(f"s_waitcnt vmcnt({nyoung})")
    if "o1" in OPT:
        ln = a.newlabel("notlast")
        a("v_mov_b32 v222, 1")
        a("s_mov_b64 exec, 1")
        a(f"ds_add_rtn_u32 v223, v{VLF}, v222 offset:64")
        a("s_mov_b64 exec, -1")
        a("s_waitcnt lgkmcnt(0)")
        a("v_readfirstlane_b32 s80, v223")
        a("s_nop 1")
        a("s_cmp_lg_u32 s80, 7")
        a(f"s_cbranch_scc1 {ln}")
        a("s_andn2_b32 s89, s89, 127")
        emit_publish(a, FL_O, 220, VZ)
        a.label(ln)
    else:
        emit_publish(a, FL_O, 220, VZ)
    if not HS:
        lds_flag_set(a, 32, 8, 222)
    if after:
        after()
    if HS and not helper:
        ts.stamp(a, 7)
        return
    emit_lds_wait(a, VLF, 32, 8)
    emit_lds_wait(a, VLF, 48, 8)
    ts.stamp(a, 7)
    for p in range(NE, 8):
        for x in wo_part(p, (p - NE) * 16384) + (wo_part(p, (p - NE) * 16384, -4) if HS else []):
            a(x)


def lds_flag_set(a, word_s, word_add, t):
    a(f"s_lshl_b32 s80, s{word_s}, 2")
    a(f"v_add_u32 v{t}, s80, v{VLF}")
    a(f"v_mov_b32 v{t + 1}, 1")
    a(f"ds_write_b32 v{t}, v{t + 1} offset:{4 * word_add}")


def m_path(a, ts, ool):
    ACC = 80
    PD = optval('pd', 2)
    FR = [16, 36, 56, 192, 212][:PD + 1]
    NB = PD + 1
    LZ = 'lz' in OPT
    XA, WB, XA2 = 2, 6, 8
    def code_touch():
        lcp = a.newlabel("nocp")
        a("s_cmp_lg_u32 s32, 1")
        a(f"s_cbranch_scc1 {lcp}")
        a("s_mov_b32 exec_hi, 0")
        a("buffer_load_dword v188, v189, s[52:55], s56 offen")
        a("s_mov_b32 exec_hi, -1")
        a.label(lcp)

    CQ = [int(o[2:]) for o in OPT if o.startswith("cq")]
    if "cp" in OPT or CQ:
        a("s_getpc_b64 s[52:53]")
        a.label("L_pc")
        a(f"s_sub_u32 s52, s52, L_pc-{NAME}_kernel")
        a("s_subb_u32 s53, s53, 0")
        a(f"s_mov_b32 s54, L_end-{NAME}_kernel")
        a("s_mov_b32 s55, 0x20000")
        a("s_lshl_b32 s56, s35, 11")
        a("v_lshlrev_b32 v189, 6, v0")
    if "cp" in OPT:
        code_touch()
    SL = {o[2]: int(o[3:]) for o in OPT if o.startswith("sl")}
    if SL:
        a("s_lshl_b32 s80, s35, 2")
        a("s_add_u32 s80, s80, s32")
        a("s_mul_i32 s81, s80, 12")
        a("v_add_u32 v184, s81, v0")
        a("v_lshlrev_b32 v184, 11, v184")
        a("s_lshr_b32 s81, s3, 2")
        a("s_lshl_b32 s81, s81, 10")
        a("s_add_u32 s81, s81, 384")
        a("v_add_u32 v184, s81, v184")
        a("s_bitcmp1_b32 s3, 1")
        a("s_cselect_b32 s81, 0, 12")
        a("v_mov_b32 v2, 0x80000000")
        a("v_cmp_gt_u32 vcc, s81, v0")
        a("s_lshl_b32 s81, s80, 3")
        a("v_cndmask_b32 v184, v2, v184, vcc")
        a("s_and_b32 s82, s3, 1")
        a("s_lshl_b32 s82, s82, 10")
        a("s_add_u32 s81, s81, s82")
        a("v_add_u32 v185, s81, v0")
        a("v_lshlrev_b32 v185, 11, v185")
        a("v_add_u32 v185, 384, v185")
        a("v_cmp_gt_u32 vcc, 8, v0")
        a("s_mov_b32 s57, 0x300000")
        a("v_cndmask_b32 v185, v2, v185, vcc")

    def slow_touch(n):
        for k, when in sorted(SL.items()):
            if when == n:
                a({"a": f"buffer_load_dword v176, v184, {S(SW)}, 0 offen",
                   "b": f"buffer_load_dword v177, v184, {S(SW)}, s57 offen",
                   "c": f"buffer_load_dword v178, v185, {S(SX)}, 0 offen",
                   "d": f"buffer_load_dword v179, v185, {S(SX)}, 0 offen offset:1024"}[k])

    a("s_waitcnt lgkmcnt(0)")
    slow_touch(99)
    late_setup(a, ts)
    ltk = a.newlabel("notok")
    a("s_cmp_lg_u32 s89, 0")
    a(f"s_cbranch_scc1 {ltk}")
    a("s_memrealtime s[78:79]")
    a("s_waitcnt lgkmcnt(0)")
    a("s_or_b32 s78, s78, 1")
    a("v_mov_b32 v180, s78")
    a("v_mov_b32 v181, s79")
    a("s_mov_b64 exec, 1")
    a(f"buffer_store_dwordx2 v[180:181], v{VZ}, {S(SDBG)}, 0 offen{SC}")
    a("s_mov_b64 exec, -1")
    a.label(ltk)
    a("s_waitcnt lgkmcnt(0)")
    a("s_and_b32 s44, s32, 1")
    a("s_lshr_b32 s45, s32, 1")
    a("v_and_b32 v8, 31, v0")
    a("v_lshrrev_b32 v9, 5, v0")
    a("v_lshrrev_b32 v10, 1, v8")
    a("v_and_b32 v10, 7, v10")
    a("v_lshlrev_b32 v11, 7, v8")
    a("s_lshl_b32 s46, s44, 13")
    a("v_add_u32 v11, s46, v11")
    for ks in range(4):
        a(f"v_add_u32 v12, {2 * ks}, v9")
        a("v_xor_b32 v12, v12, v10")
        a(f"v_lshl_add_u32 v{XA + ks}, v12, 4, v11")
    a("v_and_b32 v10, 15, v0")
    a("v_lshrrev_b32 v11, 4, v0")
    a("v_lshrrev_b32 v12, 2, v10")
    a("v_lshl_add_u32 v12, v9, 3, v12")
    a("v_mul_u32_u24 v12, 384, v12")
    a("v_lshrrev_b32 v13, 3, v10")
    a("v_xor_b32 v13, s45, v13")
    a("v_lshl_add_u32 v12, v13, 6, v12")
    a("v_and_b32 v13, 1, v11")
    a("v_lshl_add_u32 v12, v13, 5, v12")
    a("v_and_b32 v13, 3, v10")
    a("v_lshl_add_u32 v12, v13, 3, v12")
    a(f"v_add_u32 v{WB}, 16384, v12")
    a(f"v_add_u32 v{WB + 1}, {16384 + 81920}, v12")
    for ks in range(4):
        a(f"v_add_u32 v{XA2 + ks}, 81920, v{XA + ks}")

    def reads(t, ks, buf):
        st = (t + 2) & 3
        f = FR[buf]
        xa = (XA2 if st >= 2 else XA) + ks
        xo = (st & 1) * 40960
        wb = WB + (st >> 1)
        wo = (st & 1) * 40960 + 16 * ks * 384
        return [f"ds_read_b128 {vr(f, 4)}, v{xa} offset:{xo}",
                f"ds_read_b64_tr_b16 {vr(f + 8, 2)}, v{wb} offset:{wo}",
                f"ds_read_b64_tr_b16 {vr(f + 10, 2)}, v{wb} offset:{wo + 4 * 384}",
                f"ds_read_b128 {vr(f + 4, 4)}, v{xa} offset:{xo + 4096}",
                f"ds_read_b64_tr_b16 {vr(f + 12, 2)}, v{wb} offset:{wo + 128}",
                f"ds_read_b64_tr_b16 {vr(f + 14, 2)}, v{wb} offset:{wo + 128 + 4 * 384}",
                f"ds_read_b64_tr_b16 {vr(f + 16, 2)}, v{wb} offset:{wo + 256}",
                f"ds_read_b64_tr_b16 {vr(f + 18, 2)}, v{wb} offset:{wo + 256 + 4 * 384}"]

    def mfmas(buf, first, last):
        f = FR[buf]
        X = [vr(f, 4), vr(f + 4, 4)]
        W = [vr(f + 8, 4), vr(f + 12, 4), vr(f + 16, 4)]
        out = []
        for part in ((1, 2, 0) if last else (0, 1, 2)):
            for rt in range(2):
                d = vr(ACC + 16 * (2 * part + rt), 16)
                c = "0" if first else d
                if part < 2:
                    out.append(f"v_mfma_f32_32x32x16_bf16 {d}, {W[part]}, {X[rt]}, {c}")
                else:
                    out.append(f"v_mfma_f32_32x32x16_bf16 {d}, {X[rt]}, {W[part]}, {c}")
        return out

    a("s_lshl_b32 s46, s34, 1")
    a("s_add_u32 s46, s46, s45")
    a("s_lshl_b32 s46, s46, 6")
    a("s_lshl_b32 s47, s33, 2")
    a("s_add_u32 s46, s46, s47")
    a("s_lshl_b32 s47, s44, 1")
    a("s_add_u32 s47, s46, s47")
    a("s_lshl_b32 s47, s47, 11")
    a(f"s_add_u32 s48, s47, 0x{WS_VF:x}")
    a(f"s_add_u32 s47, s47, 0x{WS_KF:x}")
    a(f"s_mul_i32 s80, s45, {L_HD}")
    a("s_lshl_b32 s81, s44, 12")
    a("s_add_u32 s80, s80, s81")
    a("v_add_u32 v182, s80, v1")
    a("s_lshl_b32 s80, s32, 11")
    a(f"s_add_u32 s80, s80, {L_QH}")
    a("v_add_u32 v183, s80, v1")
    a(f"s_mov_b32 s49, {f32hex(SCALE_LOG2E)}")
    a("s_barrier")
    ts.stamp(a, 11)
    for k in range(PD):
        for r in reads(0, k, k):
            a(r)
        if k == 1:
            a("s_waitcnt lgkmcnt(8)")
    TKN = optval("tkn", 41)
    BK = (4 - PD) % 4
    for n in range(64):
        t, ks = n >> 2, n & 3
        m = mfmas(n % NB, n == 0, n == 63)
        n2 = n + PD
        r = reads(n2 >> 2, n2 & 3, n2 % NB) if n2 < 64 else []
        tch = []
        if n == TKN:
            tch = [f"buffer_load_dwordx2 v[186:187], v{VZ}, {S(SDBG)}, 0 offen{SC}"]
        ahead = min(15, 8 * (min(63, n + PD - 1) - n))
        if ks == BK:
            a(f"s_waitcnt lgkmcnt({ahead if (LZ and t < 15) else 0})")
            a(m[0])
            a("s_barrier")
            if "cyc" in OPT and ts.enabled:
                if t:
                    a(f"v_writelane_b32 v254, s{90 + 2 * ((t - 1) & 1)}, {12 + t - 1}")
                a(f"s_memtime s[{90 + 2 * (t & 1)}:{91 + 2 * (t & 1)}]")
        else:
            a(f"s_waitcnt lgkmcnt({ahead})")
            a(m[0])
        ri = 0
        for i, mm in enumerate(m[1:]):
            for _ in range(2):
                if ri < len(r):
                    a(r[ri]); ri += 1
            if i == 4:
                for x in tch:
                    a(x)
                if n in CQ:
                    code_touch()
                slow_touch(n)
            a(mm)
    ts.stamp(a, 1)
    KVS = "kvs" in OPT
    vstores = []
    for part in (1, 2):
        for rt in range(2):
            b = ACC + 16 * (2 * part + rt)
            for j in range(8):
                a(f"v_cvt_pk_bf16_f32 v{b + j}, v{b + 2 * j}, v{b + 2 * j + 1}")
            for step in range(2):
                if KVS and part == 2:
                    vstores.append(f"buffer_store_dwordx4 {vr(b + 4 * step, 4)}, v1, {S(SWS)}, s87 offen offset:{rt * 2048 + step * 1024}{SC}")
                else:
                    a(f"buffer_store_dwordx4 {vr(b + 4 * step, 4)}, v1, {S(SWS)}, s{46 + part} offen offset:{rt * 2048 + step * 1024}{SC}")
    for part in (1, 2):
        for rt in range(2):
            b = ACC + 16 * (2 * part + rt)
            for step in range(2):
                a(f"ds_write_b128 v182, {vr(b + 4 * step, 4)} offset:{8 * 2048 + (part - 1) * L_V + rt * 2048 + step * 1024}")
    for rt in (1, 0):
        b = ACC + 16 * rt
        d = QC if rt == 0 else b
        for r in range(16):
            a(f"v_mul_f32 v{b + r}, s49, v{b + r}")
        for j in range(8):
            a(f"v_cvt_pk_bf16_f32 v{d + j}, v{b + 2 * j}, v{b + 2 * j + 1}")
        if rt == 1:
            for step in range(2):
                a(f"ds_write_b128 v183, {vr(d + 4 * step, 4)} offset:{step * 1024}")
    a("s_lshl_b32 s40, s44, 1")
    a("s_mov_b32 s41, s45")
    lz = a.newlabel("nozero")
    a("s_cmp_lg_u32 s32, 0")
    a(f"s_cbranch_scc1 {lz}")
    a(f"v_lshl_add_u32 v190, v0, 2, v{VLF}")
    a(f"ds_write_b32 v190, v{VZ}")
    a.label(lz)
    a("s_add_u32 s38, s33, s44")
    a("s_sub_u32 s80, s38, 2")
    a("s_max_i32 s80, s80, 0")
    a("v_mov_b32 v20, s80")
    a("v_mov_b32 v21, s34")
    emit_wg_of(a, 190, 20, 21, 22)
    a("v_and_b32 v20, 1, v0")
    a("v_lshl_add_u32 v190, v20, 3, v190")
    a("s_lshl_b32 s80, s45, 4")
    a(f"s_add_u32 s80, s80, 0x{WS_FL + FL_K * 32768:x}")
    a("v_add_u32 v190, s80, v190")
    a("s_lshl_b32 s80, s44, 2")
    a("s_add_u32 s36, s46, s80")
    a("s_lshl_b32 s36, s36, 11")
    a(f"s_add_u32 s36, s36, 0x{WS_KF - 8 * 2048:x}")
    a(f"s_mul_i32 s37, s45, {L_HD}")
    a("s_lshl_b32 s80, s44, 13")
    a("s_add_u32 s37, s37, s80")
    a(f"v_add_u32 v191, 0x{(FL_V - FL_K) * 32768:x}, v190")
    a("s_mov_b32 s87, s48")
    emit_attn_setup(a, MASKS_M)
    g2_tile(a)
    wo_addr(a)
    a("s_lshl_b32 s80, s35, 2")
    a("s_add_u32 s80, s80, s32")
    a("s_lshl_b32 s80, s80, 6")
    a("v_add_u32 v20, s80, v0")
    a("v_lshrrev_b32 v198, 3, v20")
    a("v_lshlrev_b32 v198, 11, v198")
    a("v_and_b32 v20, 7, v20")
    a("v_lshl_add_u32 v198, v20, 7, v198")
    a("s_lshr_b32 s80, s3, 2")
    a("s_lshl_b32 s80, s80, 10")
    a("v_add_u32 v198, s80, v198")
    a("s_lshl_b32 s80, s35, 6")
    a("s_lshl_b32 s81, s32, 4")
    a("s_add_u32 s80, s80, s81")
    a("v_bfe_u32 v20, v0, 1, 4")
    a("v_add_u32 v20, s80, v20")
    a("v_lshlrev_b32 v20, 11, v20")
    a("v_and_b32 v21, 1, v0")
    a("v_lshl_add_u32 v20, v21, 7, v20")
    a("s_lshl_b32 s80, s3, 8")
    a("v_add_u32 v199, s80, v20")
    tl = [f"buffer_load_dword v200, v198, {S(SWO)}, 0 offen", f"buffer_load_dword v201, v199, {S(SQ)}, 0 offen"]

    def prev_dma(isv):
        for g in range(2):
            a(f"s_add_u32 m0, s37, {isv * L_V + g * 4096}")
            a(f"s_add_u32 s80, s36, {isv * (WS_VF - WS_KF) + g * 4096}")
            for i in range(4):
                a(f"buffer_load_dwordx4 v1, {S(SWS)}, s80 offen offset:{1024 * i} {scl()} lds")

    a("s_waitcnt vmcnt(0)")
    emit_token_take(a, 186, VZ)
    emit_publish(a, FL_K, 220, VZ)
    ts.stamp(a, 2)
    lnp = a.newlabel("noprev")
    a("s_cmp_lt_u32 s38, 2")
    a(f"s_cbranch_scc1 {lnp}")
    emit_poll(a, 190, 2, 196, sleep=optval("ks", 1))
    ts.stamp(a, 3)
    prev_dma(0)
    if not KVS:
        prev_dma(1)
    a.label(lnp)
    hk = {"blk": wo_early()}
    tb = optval("tb", 0)
    if KVS:
        for x in vstores:
            a(x)
        a("s_waitcnt vmcnt(4)")

        def m_mid():
            a("s_waitcnt vmcnt(0)")
            a("s_barrier")
            for x in tl:
                a(x)
        hk["mid"] = m_mid
    elif tb == 0:
        for x in tl:
            a(x)
        a("s_waitcnt vmcnt(2)")
    else:
        a("s_waitcnt vmcnt(0)")
    ts.stamp(a, 5)
    a("s_waitcnt lgkmcnt(0)")
    a("s_barrier")
    ts.stamp(a, 4)
    if KVS:
        a("s_waitcnt vmcnt(0)")
        emit_publish(a, FL_V, 222, VZ)
        lnp = a.newlabel("noprev")
        a("s_cmp_lt_u32 s38, 2")
        a(f"s_cbranch_scc1 {lnp}")
        emit_poll(a, 191, 2, 196, sleep=optval("ks", 1))
        prev_dma(1)
        a.label(lnp)
    elif tb == 1:
        for x in tl:
            a(x)
    elif tb == 2:
        hk["mid"] = lambda: [a(x) for x in tl]
    emit_attention(a, ool, hk, MASKS_M)
    ts.stamp(a, 6)
    wo_late(a, ts, 0)
    BF = [16, 24, 32]
    AC2 = 40
    AF, PF = 72, optval('pf', 16)
    a("v_and_b32 v8, 15, v0")
    a("v_lshrrev_b32 v9, 4, v0")
    a("v_lshrrev_b32 v10, 5, v0")
    a("v_lshrrev_b32 v11, 2, v8")
    a("v_lshl_add_u32 v11, v10, 2, v11")
    a("v_lshlrev_b32 v11, 7, v11")
    a("v_and_b32 v12, 1, v9")
    a("v_lshl_add_u32 v11, v12, 5, v11")
    a("v_and_b32 v12, 3, v8")
    a("v_lshl_add_u32 v11, v12, 3, v11")
    a("v_lshrrev_b32 v12, 3, v8")
    a("v_lshl_add_u32 v2, v12, 6, v11")
    a("v_xor_b32 v12, 1, v12")
    a("v_lshl_add_u32 v3, v12, 6, v11")
    a("v_add_u32 v4, 0x10000, v2")
    a("v_add_u32 v5, 0x10000, v3")
    a(f"v_add_u32 v6, {L_R0}, v2")
    a(f"v_add_u32 v7, {L_R0}, v3")
    a("v_mov_b32 v12, s86")
    a("v_bfe_u32 v13, v0, 1, 4")
    emit_wg_of(a, 14, 12, 13, 15)
    if "o1" in OPT:
        a(f"v_add_u32 v14, 0x{WS_FL + FL_O * 32768:x}, v14")
    else:
        a("v_and_b32 v12, 1, v0")
        a("v_lshl_add_u32 v14, v12, 4, v14")
        a("s_lshr_b32 s80, s32, 1")
        a("s_and_b32 s81, s32, 1")
        a("s_lshl_b32 s81, s81, 2")
        a("s_add_u32 s80, s80, s81")
        a("s_lshl_b32 s80, s80, 3")
        a(f"s_add_u32 s80, s80, 0x{WS_FL + FL_O * 32768:x}")
        a("v_add_u32 v14, s80, v14")
    a("s_lshl_b32 s46, s86, 2")
    a("s_add_u32 s46, s46, s32")
    a("s_lshl_b32 s47, s46, 16")
    a(f"s_add_u32 s47, s47, 0x{WS_OF:x}")
    for p in range(8):
        a(f"s_add_u32 s81, s43, {p}")
        a("s_and_b32 s81, s81, 7")
        a("s_lshl_b32 s81, s81, 13")
        a(f"s_add_u32 s{48 + p}, s47, s81")
    if optval("od", 0):
        a("s_waitcnt vmcnt(0)")
        lds_flag_set(a, 32, 0, 16)
        a(f"s_sleep {optval('od', 0) - 1}")
        poll_issue(a, 14, 12)
    else:
        poll_issue(a, 14, 12)
        a("s_waitcnt vmcnt(1)")
        lds_flag_set(a, 32, 0, 16)
    ts.stamp(a, 8)
    emit_poll(a, 14, 32, 12, pre=True, sleep=optval("os", 0))
    ts.stamp(a, 9)

    def aload(ks):
        out = []
        if ks % 8 == 4:
            out.append(f"s_add_u32 s{48 + (ks >> 3)}, s{48 + (ks >> 3)}, 4096")
        out.append(f"buffer_load_dwordx4 {vr(AF + 4 * (ks % PF), 4)}, v1, {S(SWS)}, s{48 + (ks >> 3)} offen offset:{(ks & 3) * 1024} {scl()}")
        return out

    def breads(ks, buf):
        f = BF[buf]
        if ks < 8 * NE:
            base, o = 6, ks * 2048
        elif ks < 8 * NE + 32:
            base, o = 2, (ks - 8 * NE) * 2048
        else:
            base, o = 4, (ks - 8 * NE - 32) * 2048
        out = []
        for ct in range(2):
            out.append(f"ds_read_b64_tr_b16 {vr(f + 4 * ct, 2)}, v{base + ct} offset:{o}")
            out.append(f"ds_read_b64_tr_b16 {vr(f + 4 * ct + 2, 2)}, v{base + ct} offset:{o + 1024}")
        return out

    for ks in range(PF):
        for x in aload(ks):
            a(x)
    emit_lds_wait(a, VLF, 0, 16)
    emit_lds_wait(a, VLF, 16, 16)
    for x in breads(0, 0) + breads(1, 1):
        a(x)
    for ks in range(64):
        f = BF[ks % 3]
        issued = min(63, ks + PF - 1)
        a(f"s_waitcnt vmcnt({issued - ks}) lgkmcnt({4 if ks < 63 else 0})")
        af = vr(AF + 4 * (ks % PF), 4)
        nxt = breads(ks + 2, (ks + 2) % 3) if ks + 2 < 64 else []
        d0, d1 = vr(AC2, 16), vr(AC2 + 16, 16)
        a(f"v_mfma_f32_32x32x16_bf16 {d0}, {vr(f, 4)}, {af}, {'0' if ks == 0 else d0}")
        for x in nxt:
            a(x)
        a(f"v_mfma_f32_32x32x16_bf16 {d1}, {vr(f + 4, 4)}, {af}, {'0' if ks == 0 else d1}")
        if ks + PF < 64:
            for x in aload(ks + PF):
                a(x)
    ts.stamp(a, 28)
    a("v_and_b32 v8, 31, v0")
    a("s_lshl_b32 s46, s46, 5")
    a("v_add_u32 v8, s46, v8")
    a("v_lshlrev_b32 v8, 12, v8")
    a("v_lshl_add_u32 v8, v10, 4, v8")
    a("s_lshl_b32 s46, s42, 7")
    a("s_add_u32 s46, s46, 2048")
    a("s_nop 7")
    for ct in range(2):
        b = AC2 + 16 * ct
        for j in range(8):
            a(f"v_cvt_pk_bf16_f32 v{b + j}, v{b + 2 * j}, v{b + 2 * j + 1}")
        a("s_nop 1")
        for jj in range(2):
            a(f"v_permlane32_swap_b32 v{b + 4 * jj}, v{b + 4 * jj + 2}")
            a(f"v_permlane32_swap_b32 v{b + 4 * jj + 1}, v{b + 4 * jj + 3}")
        for jj in range(2):
            a(f"buffer_store_dwordx4 {vr(b + 4 * jj, 4)}, v8, {S(SOUT)}, s46 offen offset:{ct * 64 + jj * 32}")
    ts.final(a, 10)
    a("s_endpgm")


def h_path(a, ts, ool):
    a(f"s_setprio {optval('hp', 3)}")
    XO, WO = 2, 6
    a("v_lshrrev_b32 v12, 3, v0")
    a("v_and_b32 v13, 7, v0")
    a("s_lshl_b32 s45, s33, 7")
    a("s_lshl_b32 s46, s44, 5")
    a("s_add_u32 s45, s45, s46")
    a("v_lshrrev_b32 v14, 4, v0")
    a("v_xor_b32 v14, v14, v13")
    a("v_add_u32 v15, s45, v12")
    a("v_lshlrev_b32 v15, 11, v15")
    a(f"v_lshl_add_u32 v{XO}, v14, 4, v15")
    a(f"v_xor_b32 v{XO + 1}, 64, v{XO}")
    a(f"v_add_u32 v{XO + 1}, {16384 - 1024}, v{XO + 1}")
    a(f"v_add_u32 v{XO + 2}, {2 * (16384 - 1024)}, v{XO}")
    a(f"v_add_u32 v{XO + 3}, {2 * (16384 - 1024)}, v{XO + 1}")
    a("s_lshl_b32 s45, s44, 12")
    a("s_mul_i32 s48, s44, 98304")
    a("s_lshl_b32 s46, s34, 7")
    a("s_add_u32 s48, s48, s46")
    for i in range(3):
        if i:
            a(f"v_add_u32 v14, {64 * i}, v0")
        src = "v14" if i else "v0"
        a(f"v_mul_u32_u24 v15, 2731, {src}")
        a("v_lshrrev_b32 v15, 16, v15")
        a("v_mul_u32_u24 v16, 24, v15")
        a(f"v_sub_u32 v16, {src}, v16")
        a("v_bfe_u32 v18, v15, 1, 1")
        a("v_lshlrev_b32 v18, 2, v18")
        a("v_xor_b32 v16, v16, v18")
        a("v_lshrrev_b32 v18, 3, v16")
        a("v_and_b32 v16, 7, v16")
        a("v_mul_u32_u24 v15, 6144, v15")
        a("v_lshl_add_u32 v15, v18, 11, v15")
        a("v_lshl_add_u32 v15, v16, 4, v15")
        for ii in (i, i + 3):
            il = ii if ii < 4 else ii - 4
            a(f"s_add_u32 s49, s48, {(8 * 6144 if ii >= 3 else 0) - 1024 * il}")
            a(f"v_add_u32 v{WO + ii}, s49, v15")
    a("s_mul_i32 s43, s44, 6144")
    a("s_add_u32 s43, s43, 16384")
    order = []

    RG = optval("rg", 8)

    def pace(t):
        if t >= 6 and optval("pc", 0):
            a(f"s_nop {optval('pc', 0) - 1}")
            if optval("pc2", 0):
                a(f"s_nop {optval('pc2', 0) - 1}")

    def tile_index(t):
        if "hot" in OPT:
            a(f"s_mov_b32 s42, {t & 1}")
            return
        if RG <= 1:
            a(f"s_mov_b32 s42, {t}")
            return
        a(f"s_add_u32 s42, s56, {t}")
        a(f"s_and_b32 s42, s42, {RG - 1}")
        if t >= RG:
            a(f"s_add_u32 s42, s42, {t // RG * RG}")

    a("s_lshr_b32 s56, s35, 3")
    a("s_lshl_b32 s56, s56, 1")
    a("s_add_u32 s56, s56, s35")
    if RG == 16:
        a("s_lshl_b32 s56, s56, 1")

    def issue_x(t):
        if "nodma" in OPT and t >= 3:
            order.append(f"x{t}")
            return
        a(f"s_add_u32 m0, s45, {((t + 2) & 3) * 40960}")
        tile_index(t)
        a("s_lshl_b32 s42, s42, 7")
        for i in range(4):
            a(f"buffer_load_dwordx4 v{XO + i}, {S(SX)}, s42 offen offset:{1024 * i} lds")
            pace(t)
        order.append(f"X{t}")

    def issue_w(t):
        if "nodma" in OPT and t >= 3:
            order.append(f"x{t}")
            return
        st = (t + 2) & 3
        a(f"s_add_u32 m0, s43, {st * 40960}")
        tile_index(t)
        a("s_mul_i32 s42, s42, 393216")
        for i in range(4):
            a(f"buffer_load_dwordx4 v{WO + i}, {S(SW)}, s42 offen offset:{1024 * i} lds")
            pace(t)
        a(f"s_add_u32 m0, s43, {st * 40960 + 4096}")
        a("s_nop 0")
        for i in range(4, 6):
            a(f"buffer_load_dwordx4 v{WO + i}, {S(SW)}, s42 offen offset:{1024 * (i - 4)} lds")
        order.append(f"W{t}")

    def vm(x):
        a(x)
        if x.startswith("buffer"):
            order.append("P")

    def cnt(lst):
        return sum({"X": 4, "W": 6, "P": 1, "L": 0, "U": 0, "x": 0}[x[0]] for x in lst)

    def wait_tile(b):
        if "nodma" in OPT and b >= 3:
            return
        last = max(i for i, x in enumerate(order) if x in (f"X{b}", f"W{b}"))
        assert f"X{b}" in order and f"W{b}" in order
        n = cnt(order[last + 1:])
        assert n < 64
        a(f"s_waitcnt vmcnt({n})")

    def later():
        a("s_lshl_b32 s87, s84, 2")
        a("s_add_u32 s87, s87, s44")
        a("s_lshl_b32 s87, s87, 12")
        a(f"s_buffer_load_dword s57, {S(SHK)}, s87")
        a(f"s_mul_i32 s88, s44, {CW}")
        a(f"s_add_u32 s88, s88, {L_R0}")
        a("s_lshl_b32 s80, s35, 2")
        a("s_add_u32 s80, s80, s44")
        a("s_lshl_b32 s80, s80, 6")
        a("v_add_u32 v20, s80, v0")
        a("v_lshrrev_b32 v241, 3, v20")
        a("v_lshlrev_b32 v241, 11, v241")
        a("v_and_b32 v20, 7, v20")
        a("v_lshl_add_u32 v241, v20, 7, v241")
        a("s_lshr_b32 s80, s3, 2")
        a("s_lshl_b32 s80, s80, 10")
        a("v_add_u32 v241, s80, v241")
        a("s_lshl_b32 s80, s35, 6")
        a("s_lshl_b32 s81, s44, 4")
        a("s_add_u32 s80, s80, s81")
        a("v_lshrrev_b32 v20, 1, v0")
        a("v_add_u32 v20, s80, v20")
        a("v_lshlrev_b32 v20, 11, v20")
        a("v_and_b32 v21, 1, v0")
        a("v_lshl_add_u32 v20, v21, 7, v20")
        a("s_lshl_b32 s80, s3, 8")
        a("v_add_u32 v20, s80, v20")
        a("v_lshlrev_b32 v21, 7, v0")
        a("v_cmp_gt_u32 vcc, 32, v0")
        a("s_nop 1")
        a("v_cndmask_b32 v242, v240, v20, vcc")
        a("v_cndmask_b32 v243, v240, v21, vcc")
        a("v_lshrrev_b32 v20, 3, v0")
        a("v_and_b32 v21, 7, v0")
        a("s_lshl_b32 s80, s35, 6")
        a("s_lshl_b32 s81, s3, 2")
        a("s_add_u32 s81, s81, s44")
        a("s_lshl_b32 s81, s81, 5")
        a("v_lshlrev_b32 v22, 3, v20")
        a("v_add_u32 v22, s80, v22")
        a("v_lshlrev_b32 v23, 2, v21")
        a("v_add_u32 v23, s81, v23")
        a(f"v_lshlrev_b32 v{PA}, 12, v23")
        a(f"v_lshl_add_u32 v{PA}, v22, 1, v{PA}")
        a(f"v_lshlrev_b32 v{PA + 1}, 11, v22")
        a(f"v_lshl_add_u32 v{PA + 1}, v23, 1, v{PA + 1}")
        a(f"v_lshlrev_b32 v{PA + 2}, 12, v22")
        a(f"v_lshl_add_u32 v{PA + 2}, v23, 1, v{PA + 2}")
        a("v_bfe_u32 v20, v0, 2, 3")
        a("s_lshl_b32 s80, s44, 3")
        a("v_add_u32 v20, s80, v20")
        a("v_lshlrev_b32 v20, 3, v20")
        a("v_add_u32 v20, s3, v20")
        a("v_lshlrev_b32 v20, 7, v20")
        a("v_and_b32 v21, 3, v0")
        a("v_lshl_add_u32 v20, v21, 3, v20")
        a(f"v_add_u32 v{PA + 3}, 0x{WS_FL + FL_Y2 * 32768 + 32:x}, v20")
        a("s_and_b32 s40, s44, 1")
        a("s_lshr_b32 s41, s44, 1")
        a("s_waitcnt lgkmcnt(0)")
        a("s_lshl_b32 s80, s44, 4")
        a("s_lshr_b64 s[38:39], s[76:77], s80")
        a("s_lshl_b32 s39, s38, 16")
        a("s_lshl_b32 s57, s57, 16")
        a("s_add_u32 s38, s33, s40")
        a("s_sub_u32 s80, s38, 2")
        a("s_max_i32 s80, s80, 0")
        a("v_mov_b32 v20, s80")
        a("v_mov_b32 v21, s34")
        emit_wg_of(a, 190, 20, 21, 22)
        a("v_and_b32 v20, 1, v0")
        a("v_lshl_add_u32 v190, v20, 3, v190")
        a("s_lshl_b32 s80, s41, 4")
        a(f"s_add_u32 s80, s80, 0x{WS_FL + FL_K * 32768:x}")
        a("v_add_u32 v190, s80, v190")
        a(f"v_add_u32 v191, 0x{(FL_V - FL_K) * 32768:x}, v190")
        a("s_lshl_b32 s36, s34, 1")
        a("s_add_u32 s36, s36, s41")
        a("s_lshl_b32 s36, s36, 4")
        a("s_add_u32 s36, s36, s38")
        a("s_lshl_b32 s36, s36, 13")
        a(f"s_add_u32 s36, s36, 0x{WS_KF - 8 * 2048:x}")
        a(f"s_mul_i32 s37, s41, {L_HD}")
        a("s_lshl_b32 s80, s40, 13")
        a("s_add_u32 s37, s37, s80")
        a("s_lshl_b32 s40, s40, 1")
        a("s_add_u32 s40, s40, 1")
        a("v_and_b32 v192, 31, v0")
        a("v_lshlrev_b32 v192, 3, v192")
        a("v_add_u32 v192, s3, v192")
        a("v_lshlrev_b32 v192, 7, v192")
        a("s_lshr_b32 s80, s35, 3")
        a("s_lshl_b32 s80, s80, 3")
        a(f"s_add_u32 s80, s80, 0x{WS_FL + FL_UR * 32768 + 32:x}")
        a("v_add_u32 v192, s80, v192")
        a("s_lshl_b32 s80, s44, 11")
        a(f"s_add_u32 s80, s80, {L_QH}")
        a("v_add_u32 v193, s80, v1")
        a("v_lshlrev_b32 v180, 3, v0")
        a("v_add_u32 v180, s88, v180")
        a("v_and_b32 v181, 1, v0")
        a(f"v_mul_u32_u24 v181, {CPY}, v181")
        a("v_bfe_u32 v182, v0, 1, 1")
        a("v_lshl_add_u32 v181, v182, 4, v181")
        a("v_add_u32 v181, s88, v181")
        a("v_mov_b32 v182, s88")
        a("v_mov_b32 v183, s57")
        for i in range(4):
            a(f"v_mov_b32 v{184 + i}, 0")

    p_setup, p_loads, p_comp, p_stores = p1_lists()
    if "nop1" in OPT:
        p_loads, p_comp, p_stores = p_loads[:1], [], []

    main_a = a
    a = Asm()
    for y in p_setup:
        a(y)
    later()
    setup2 = [x.strip() for x in a.L]
    a = main_a

    def act(x):
        k, arg = x[0], x[1:]
        if k == "X":
            issue_x(int(arg))
        elif k == "W":
            issue_w(int(arg))
        elif k == "T":
            issue_x(int(arg)); issue_w(int(arg))
        elif k == "F":
            t0, n = map(int, arg.split("_"))
            emit_touch_fine(a, 234, 235, 228, t0)
            for y in touch(t0, n, 234, 235, 246):
                vm(y)
        elif k == "C":
            t = int(arg)
            a(f"s_cmp_eq_u32 s58, {t & 3}")
            a("s_cselect_b64 vcc, -1, 0")
            a(f"s_mov_b32 s82, {t * 128}")
            a(f"s_mov_b32 s83, {t * 393216}")
            a("v_cndmask_b32 v238, v240, v245, vcc")
            a("v_cndmask_b32 v239, v240, v244, vcc")
            vm(f"buffer_load_dword v246, v238, {S(SW)}, s83 offen")
            vm(f"buffer_load_dword v247, v239, {S(SX)}, s82 offen")
        elif k == "K":
            r = 242
            if arg:
                a(f"s_cmp_eq_u32 s58, {arg}")
                a("s_cselect_b64 vcc, -1, 0")
                a("s_nop 0")
                a("v_cndmask_b32 v237, v240, v242, vcc"); r = 237
            vm(f"buffer_load_dword v248, v{r}, {S(SK)}, 0 offen")
            vm(f"buffer_load_dword v249, v{r}, {S(SV)}, 0 offen")
        elif k == "P":
            for _ in range(int(arg)):
                if p_loads:
                    vm(p_loads.pop(0))
            if not p_loads:
                order.append("L")
        elif k == "V":
            if "L" in order:
                a(f"s_waitcnt vmcnt({cnt(order[order.index('L') + 1:])})")
                order.remove("L")
            for _ in range(int(arg)):
                if p_comp:
                    a(p_comp.pop(0))
        elif k == "S":
            assert not p_comp and not p_loads
            for y in p_stores:
                vm(y)
            order.append("U")
        elif k == "U":
            a(f"s_waitcnt vmcnt({cnt(order[order.index('U') + 1:])})")
            emit_token_take(a, 172, VZ)
            emit_publish(a, FL_UR, 194, VZ)
            order.append("P")
        elif k == "A":
            emit_attn_setup(a, MASKS_H)
        elif k == "R":
            poll_issue(a, 192, 198)
            order.append("P")
        elif k == "Q":
            vm(f"buffer_load_dword v246, v242, {S(SQ)}, 0 offen")
        elif k == "G":
            vm(f"buffer_load_dword v246, v243, {S(SHK)}, s87 offen")
        elif k == "O":
            vm(f"buffer_load_dword v247, v241, {S(SWO)}, 0 offen")
        elif k == "t":
            vm(f"buffer_load_dwordx2 v[172:173], v{VZ}, {S(SDBG)}, 0 offen{SC}")
        elif k == "b":
            late_setup(a, ts)
            if ts.on:
                order.append("P")
            a("v_mov_b32 v240, 0x80000000")
            a("s_and_b32 s58, s35, 3")
        elif k == "c":
            for _ in range(int(arg)):
                if setup2:
                    a(setup2.pop(0))
        elif k == "H":
            a(f"ds_write_b64 v180, v[184:185] offset:{URO + 4096}")
            a("ds_write_b128 v181, v[184:187]")
            a(f"ds_write_b32 v182, v183 offset:{CPY + 28}")
            for c in range(2):
                a(f"s_add_u32 m0, s88, {32 + c * CPY}")
                a(f"s_add_u32 s80, s87, {2 * c}")
                for kk in range(4):
                    vm(f"buffer_load_dwordx4 v1, {S(SHK)}, s80 offen offset:{1024 * kk} lds")
        elif k == "D":
            emit_poll(a, 192, 32, 198, pre=True)
            ts.stamp(a, 2)
            if ts.on:
                order.append("P")
            a(f"s_add_u32 m0, s88, {URO}")
            a(f"s_add_u32 s80, s87, 0x{WS_UR:x}")
            for kk in range(4):
                vm(f"buffer_load_dwordx4 v1, {S(SWS)}, s80 offen offset:{1024 * kk} {scl()} lds")
        else:
            raise ValueError(x)

    sc = os.environ.get("SCHED") or SCHEDS[optval("sc", 0)]
    sched = sc.split("|")
    assert len(sched) == 18, len(sched)
    a("s_waitcnt lgkmcnt(0)")
    for x in sched[0].split():
        act(x)
    for b in range(0, 17):
        if b < 16:
            wait_tile(b)
        a("s_barrier")
        if "tsb" in OPT:
            ts.stamp(a, 11 + b)
        for x in sched[b + 1].split():
            if x[0] in "XWT":
                assert int(x[1:]) <= b + 3
            act(x)
    ts.stamp(a, 1)
    assert not setup2
    a("s_mov_b32 s46, s88")
    a(f"s_add_u32 s36, s87, 0x{WS_Y2:x}")

    def c_start():
        a("s_waitcnt vmcnt(0)")
        ts.stamp(a, 3)

    b = Asm()
    emit_attn_setup(b, MASKS_H)
    g2_tile(b)
    wo_addr(b)
    ys = emit_conv(a, {"start": c_start, "extra": [x.strip() for x in b.L]})
    ts.stamp(a, 5)
    a("s_setprio 0")
    a("s_barrier")
    ts.stamp(a, 4)
    a(f"ds_read_b128 {vr(QC, 4)}, v193")
    a(f"ds_read_b128 {vr(QC + 4, 4)}, v193 offset:1024")
    for x in ys:
        a(x)
    YY, OO = 168, 24
    if optval("ph", 0):
        a(f"s_setprio {optval('ph', 0)}")
    blk = wo_early()
    b = Asm()
    b("s_waitcnt vmcnt(0)")
    emit_publish(b, FL_Y2, 194, VZ)
    yb = optval("yb", 2)
    blk[yb] = [x.strip() for x in b.L] + blk.get(yb, [])
    hk = {"blk": blk}
    if "kvs" in OPT:
        hk["mid"] = lambda: a("s_barrier")
    emit_attention(a, ool, hk, MASKS_H)
    ts.stamp(a, 6)
    for i in range(8):
        if i % 2 == 0:
            a(f"s_mov_b32 s80, {4096 * (i >> 1)}")
        a(f"buffer_load_dwordx2 {vr(QQ + 2 * i, 2)}, v{PA + 1}, {S(SQ)}, s80 offen offset:{(i & 1) * 2048}")
    poll_issue(a, PA + 3, 196)

    def y_loads():
        emit_poll(a, PA + 3, 32, 196, pre=True)
        a(f"s_mov_b32 s80, 0x{WS_Y2:x}")
        for dd in range(4):
            a(f"buffer_load_dwordx4 {vr(YY + 4 * dd, 4)}, v{PA}, {S(SWS)}, s80 offen {scl()}")
            if dd < 3:
                a("s_add_u32 s80, s80, 4096")

    p3 = Asm()
    a, main_a = p3, a
    for i in range(8):
        for dd in range(4):
            ys = YY + 4 * dd + (i >> 1)
            qs = QQ + 2 * i + (dd >> 1)
            a(f"v_and_b32 v4, 0xffff0000, v{ys}" if i & 1 else f"v_lshlrev_b32 v4, 16, v{ys}")
            a(f"v_and_b32 v5, 0xffff0000, v{qs}" if dd & 1 else f"v_lshlrev_b32 v5, 16, v{qs}")
            a(f"v_mul_f32 v{OO + 4 * i + dd}, v4, v5")
        o = OO + 4 * i
        a(f"v_cvt_pk_bf16_f32 v{o}, v{o}, v{o + 1}")
        a(f"v_cvt_pk_bf16_f32 v{o + 1}, v{o + 2}, v{o + 3}")
    a = main_a
    outs = []
    for i in range(8):
        outs += [f"s_mov_b32 s80, {4096 * i}", f"buffer_store_dwordx2 {vr(OO + 4 * i, 2)}, v{PA + 2}, {S(SOUT)}, s80 offen"]

    def gate():
        for x in p3.L:
            a(x.strip())

    if "p3f" in OPT:
        def aft():
            y_loads()
            a("s_waitcnt vmcnt(0)")
            gate()
            for x in outs:
                a(x)
        wo_late(a, ts, 9, aft, True)
        a("s_waitcnt vmcnt(0)")
        lds_flag_set(a, 32, 0, 4)
        ts.stamp(a, 8)
    else:
        wo_late(a, ts, 9, y_loads, True)
        a(f"s_waitcnt vmcnt({(4 if 'hs' in OPT else 2) * (8 - NE)})")
        gate()
        a("s_waitcnt vmcnt(0)")
        lds_flag_set(a, 32, 0, 4)
        ts.stamp(a, 8)
        for x in outs:
            a(x)
    ts.final(a, 10)
    a("s_endpgm")


def gen_fused(a, ts):
    name = NAME + "_kernel"
    kernel_begin(a, name)
    ts.entry(a)
    a("s_cmp_ge_u32 s2, 256")
    a("s_cbranch_scc1 L_end")
    if optval("xj", 0):
        a(f"s_xor_b32 s2, s2, {optval('xj', 0)}")
    for (d, off, size) in SRDS:
        a(f"s_load_dwordx2 s[{d}:{d + 1}], s[0:1], {off}")
    a("s_load_dwordx2 s[36:37], s[0:1], 40")
    a("v_lshrrev_b32 v1, 6, v0")
    a("v_and_b32 v0, 63, v0")
    a("s_and_b32 s3, s2, 7")
    a("v_readfirstlane_b32 s32, v1")
    a("s_lshr_b32 s35, s2, 3")
    a("s_and_b32 s33, s3, 1")
    a("s_lshl_b32 s33, s33, 3")
    a("s_and_b32 s80, s35, 7")
    a("s_add_u32 s33, s33, s80")
    a("s_lshr_b32 s34, s3, 1")
    a("s_lshl_b32 s34, s34, 2")
    a("s_lshr_b32 s80, s35, 3")
    a("s_add_u32 s34, s34, s80")
    if optval("hx", 0):
        a(f"s_xor_b32 s34, s34, {optval('hx', 0)}")
    a("v_lshlrev_b32 v1, 4, v0")
    a(f"v_mov_b32 v{VZ}, 0")
    for (d, off, size) in SRDS[:2]:
        a(f"s_mov_b32 s{d + 2}, 0x{size:x}")
        a(f"s_mov_b32 s{d + 3}, 0x20000")
    a("s_and_b32 s44, s32, 3")
    a("s_mov_b32 s59, 0")
    a("s_cmp_lt_u32 s32, 4")
    a("s_cbranch_scc1 L_M")
    ool = []
    h_path(a, ts, ool)
    a.label("L_M")
    m_path(a, ts, ool)
    for (lf, body, lb) in ool:
        a.label(lf)
        for x in body:
            a(x)
        a(f"s_branch {lb}")
    a.label("L_end")
    a("s_endpgm")
    return name, 256, 102


def build(instrument=False):
    ts = TS(instrument)
    a = Asm()
    a.raw("; fused H3 long-conv | sliding-window attention kernel (generated)")
    a.raw("; @launch grid=(256,1,1) block=(512,1,1) lds=163840")
    a.raw('.amdgcn_target "amdgcn-amd-amdhsa--gfx950"')
    a.raw(".text")
    n, v, s = gen_fused(a, ts)
    a.raw('.section .rodata,"a"')
    kernel_desc(a, n, v, s)
    return a.text()


if __name__ == "__main__":
    out = sys.argv[1] if len(sys.argv) > 1 else f"cdna_kernels/{NAME}.s"
    if len(sys.argv) > 2:
        OPT.update(sys.argv[2].split(","))
    open(out, "w").write(build())
```

```python
import sys, struct, os
from gen import Asm, vr, srd, kernel_begin, kernel_desc, MB, NAME
from gf import f32hex
import gf

OPT = set()
WS_KF, WS_VF, WS_UR, WS_OF, WS_Y2, WS_FL = 4 * MB, 8 * MB, 12 * MB, 16 * MB, 20 * MB, 24 * MB
WS_SIZE = 25 * MB
FL_UR, FL_K, FL_Y2, FL_O, FL_V = 0, 1, 2, 3, 4

CPY, URO, CW = 4160, 8320, 12928
L_HD, L_V = 49152, 24576
L_QH = 98304
L_R0 = 106496
L_FL = L_R0 + 4 * CW
SC = " sc1"
SPIN_LIMIT = 1 << 18
SCALE_LOG2E = (32 ** -0.5) * 1.4426950408889634
SX, SW, SWS, SK, SV, SSH, SHK, SWO, SQ, SOUT, SDBG = 4, 8, 12, 16, 20, 24, 28, 60, 64, 68, 72
MASKS_M = [4, 6, 8, 10, 16, 18, 20, 22, 24, 26, 48, 50, 52, 54, 56, 58]
MASKS_H = MASKS_M


WS_TS = 32 * MB


class TS:
    def __init__(self, on):
        self.enabled = on
        self.on = False

    def entry(self, a):
        if self.enabled:
            a("s_memrealtime s[98:99]")
            a("s_memtime s[100:101]")
            a("v_mov_b32 v254, 0")

    def setup(self, a, ws_pair):
        if self.enabled:
            a("v_writelane_b32 v254, s98, 30")

    def stamp(self, a, slot):
        if self.enabled and ("tsmin" not in OPT or slot == 10):
            a("s_memrealtime s[90:91]")
            a("s_waitcnt lgkmcnt(0)")
            a(f"v_writelane_b32 v254, s90, {slot}")

    def final(self, a, slot):
        if not self.enabled:
            return
        a("s_waitcnt vmcnt(0)")
        self.stamp(a, slot)
        a("s_memtime s[90:91]")
        srd(a, 92, SWS, 4 * MB, WS_TS)
        a("s_lshl_b32 s96, s2, 4")
        a("s_add_u32 s96, s96, s32")
        a("s_lshl_b32 s96, s96, 8")
        a("s_waitcnt lgkmcnt(0)")
        a("s_sub_u32 s90, s90, s100")
        a("v_writelane_b32 v254, s90, 31")
        a("v_mov_b32 v255, 0")
        a("v_lshlrev_b32 v253, 3, v0")
        a("s_mov_b32 exec_hi, 0")
        a("buffer_store_dwordx2 v[254:255], v253, s[92:95], s96 offen")


def emit_wg_of(a, vdst, vrb, vhp, t):
    if optval("hx", 0):
        a(f"v_xor_b32 v{vhp}, {optval('hx', 0)}, v{vhp}")
    gf.emit_wg_of(a, vdst, vrb, vhp, t)


def S(n):
    return f"s[{n}:{n + 3}]"


SCHEDS = {
    0: "T0 X1 b c60 | W1 X2 P7 | W2 T3 P7 | T4 T5 P7 c40 | T6 c40 | T7 c40 t | T8 V90 | T9 V90 | T10 V90 S | T11 G"
       " | T12 U | T13 | T14 | T15 | | H R | D | ",
    1: "T0 X1 b c60 | W1 X2 | W2 T3 K2 | T4 T5 K3 c40 | T6 K0 c40 | T7 K1 c40 | T8 t | T9 P7 | T10 P7 | T11 P7"
       " | T12 V90 | T13 V90 | T14 V90 S | T15 G | U | H R | D | ",
}


def wsy2():
    return WS_UR if "ya" in OPT else WS_Y2


def scl():
    return "sc1" if "ldsc1" in OPT else ""


def optval(prefix, default):
    for o in OPT:
        if o.startswith(prefix) and o[len(prefix):].lstrip("-").isdigit():
            return int(o[len(prefix):])
    return default


def poll_issue(a, voff, tmp):
    a(f"buffer_load_dwordx2 {vr(tmp, 2)}, v{voff}, {S(SWS)}, 0 offen{SC}")


def emit_poll(a, voff, nlanes, tmp, pre=False, sleep=0):
    lp, ck, dn = a.newlabel("poll"), a.newlabel("pollc"), a.newlabel("polld")
    mask = (1 << nlanes) - 1
    a(f"s_mov_b32 s80, 0x{mask & 0xffffffff:x}")
    a(f"s_mov_b32 s81, 0x{mask >> 32:x}")
    a("s_mov_b32 s85, 0")
    if not pre:
        a.label(lp)
        poll_issue(a, voff, tmp)
        a("s_waitcnt vmcnt(0)")
        a(f"v_cmp_eq_u64 vcc, s[78:79], {vr(tmp, 2)}")
        a("s_add_u32 s85, s85, 1")
        a("s_and_b64 s[82:83], vcc, s[80:81]")
        a("s_cmp_eq_u64 s[82:83], s[80:81]")
        a(f"s_cbranch_scc1 {dn}")
        if sleep:
            a(f"s_sleep {sleep}")
        a(f"s_cmp_lt_u32 s85, 0x{SPIN_LIMIT:x}")
        a(f"s_cbranch_scc1 {lp}")
        a.label(dn)
    else:
        a.label(ck)
        a("s_waitcnt vmcnt(0)")
        a(f"v_cmp_eq_u64 vcc, s[78:79], {vr(tmp, 2)}")
        a("s_add_u32 s85, s85, 1")
        a("s_and_b64 s[82:83], vcc, s[80:81]")
        a("s_cmp_eq_u64 s[82:83], s[80:81]")
        a(f"s_cbranch_scc1 {dn}")
        if sleep:
            a(f"s_sleep {sleep}")
        poll_issue(a, voff, tmp)
        a(f"s_cmp_lt_u32 s85, 0x{SPIN_LIMIT:x}")
        a(f"s_cbranch_scc1 {ck}")
        a("s_waitcnt vmcnt(0)")
        a.label(dn)


def emit_publish(a, kind, t0, vz):
    a(f"s_add_u32 s80, s89, 0x{WS_FL + kind * 32768:x}")
    a(f"v_mov_b32 v{t0}, s78")
    a(f"v_mov_b32 v{t0 + 1}, s79")
    a("s_mov_b64 exec, 1")
    a(f"buffer_store_dwordx2 {vr(t0, 2)}, v{vz}, {S(SWS)}, s80 offen{SC}")
    a("s_mov_b64 exec, -1")


def emit_token_take(a, t0, vz):
    lp, dn = a.newlabel("tok"), a.newlabel("tokd")
    a("s_mov_b32 s85, 0")
    a.label(lp)
    a(f"v_readfirstlane_b32 s78, v{t0}")
    a(f"v_readfirstlane_b32 s79, v{t0 + 1}")
    a("s_add_u32 s85, s85, 1")
    a("s_cmp_lg_u64 s[78:79], 0")
    a(f"s_cbranch_scc1 {dn}")
    a(f"buffer_load_dwordx2 {vr(t0, 2)}, v{vz}, {S(SDBG)}, 0 offen{SC}")
    a("s_waitcnt vmcnt(0)")
    a(f"s_cmp_lt_u32 s85, 0x{SPIN_LIMIT:x}")
    a(f"s_cbranch_scc1 {lp}")
    a.label(dn)


def emit_wline(a, dst, idx, hi, t):
    a(f"v_mul_u32_u24 v{dst}, 5462, v{idx}")
    a(f"v_lshrrev_b32 v{dst}, 16, v{dst}")
    a(f"v_mul_u32_u24 v{t}, 12, v{dst}")
    a(f"v_sub_u32 v{t}, v{idx}, v{t}")
    if hi is not None:
        a(f"v_lshl_add_u32 v{dst}, v{hi}, 6, v{dst}")
    a(f"v_mul_u32_u24 v{dst}, 6144, v{dst}")
    a(f"v_lshrrev_b32 v{t + 1}, 2, v{t}")
    a(f"v_lshl_add_u32 v{dst}, v{t + 1}, 11, v{dst}")
    a(f"v_and_b32 v{t}, 3, v{t}")
    a(f"v_lshl_add_u32 v{dst}, v{t}, 7, v{dst}")
    a("s_lshr_b32 s83, s3, 1")
    a("s_lshl_b32 s83, s83, 9")
    a(f"v_add_u32 v{dst}, s83, v{dst}")


def emit_touch_fine(a, VTX, VTW, t, t0):
    a(f"v_and_b32 v{t}, 7, v0")
    a(f"v_lshrrev_b32 v{t + 1}, 3, v0")
    a(f"s_add_u32 s82, s59, {t0}")
    a(f"v_add_u32 v{t + 1}, s82, v{t + 1}")
    a(f"v_and_b32 v{t + 1}, 15, v{t + 1}")
    a("s_lshl_b32 s82, s35, 2")
    a("s_add_u32 s82, s82, s44")
    a("s_lshl_b32 s81, s82, 3")
    a("s_and_b32 s83, s3, 1")
    a("s_lshl_b32 s83, s83, 10")
    a("s_add_u32 s81, s81, s83")
    a(f"v_add_u32 v{t + 2}, s81, v{t}")
    a(f"v_lshlrev_b32 v{t + 2}, 11, v{t + 2}")
    a(f"v_lshl_add_u32 v{VTX}, v{t + 1}, 7, v{t + 2}")
    a("s_mul_i32 s82, s82, 6")
    a(f"v_add_u32 v{t + 2}, s82, v{t}")
    emit_wline(a, VTW, t + 2, t + 1, t + 3)
    a(f"v_mov_b32 v{t + 4}, 0x80000000")
    a(f"v_cmp_gt_u32 vcc, 6, v{t}")
    a("s_nop 1")
    a(f"v_cndmask_b32 v{VTW}, v{t + 4}, v{VTW}, vcc")


def emit_touch_coarse(a, VTX, VTW, t):
    a("s_lshr_b32 s82, s35, 2")
    a("s_lshl_b32 s82, s82, 2")
    a("s_add_u32 s82, s82, s44")
    a("s_lshl_b32 s81, s82, 5")
    a("s_and_b32 s83, s3, 1")
    a("s_lshl_b32 s83, s83, 10")
    a("s_add_u32 s81, s81, s83")
    a(f"v_add_u32 v{t + 2}, s81, v0")
    a(f"v_lshlrev_b32 v{VTX}, 11, v{t + 2}")
    a("s_mul_i32 s82, s82, 24")
    a(f"v_add_u32 v{t + 2}, s82, v0")
    emit_wline(a, VTW, t + 2, None, t + 3)
    a(f"v_mov_b32 v{t + 4}, 0x80000000")
    a("v_cmp_gt_u32 vcc, 32, v0")
    a("s_nop 1")
    a(f"v_cndmask_b32 v{VTX}, v{t + 4}, v{VTX}, vcc")
    a("v_cmp_gt_u32 vcc, 24, v0")
    a("s_nop 1")
    a(f"v_cndmask_b32 v{VTW}, v{t + 4}, v{VTW}, vcc")


def touch(t0, nt, VTX, VTW, dst):
    m = (1 << (8 * nt)) - 1
    out = []
    if nt < 8:
        out += [f"s_mov_b32 exec_lo, 0x{m & 0xffffffff:x}", f"s_mov_b32 exec_hi, 0x{m >> 32:x}"]
    out += [f"buffer_load_dword v{dst}, v{VTW}, {S(SW)}, 0 offen",
            f"buffer_load_dword v{dst + 1}, v{VTX}, {S(SX)}, 0 offen"]
    if nt < 8:
        out.append("s_mov_b64 exec, -1")
    return out


QC = 224
SBUF = [8, 24, 40]
KB = [56, 64, 72]
VB = [80, 88, 160]
OA = 96
CM = 112
LS = 128
ONE = 240
PM = 232
P0 = 144
VM, VM2, VT, VNEG, VK, VK0 = 152, 153, 154, 244, 245, 246
YP = 176
QQ, PA = 200, 216


def emit_attn_setup(a, MASKS):
    a("v_and_b32 v4, 31, v0")
    a("v_lshrrev_b32 v5, 5, v0")
    a("v_lshlrev_b32 v5, 2, v5")
    a("v_sub_u32 v4, v4, v5")
    for r in range(16):
        a(f"v_cmp_le_i32 s[{MASKS[r]}:{MASKS[r] + 1}], {8 * (r >> 2) + (r & 3)}, v4")
    a(f"v_mov_b32 v{VNEG}, 0xf149f2ca")
    a("v_mov_b32 v4, 0xffff")
    a("v_mov_b32 v5, 0xffff0000")
    for j in range(8):
        a(f"v_cndmask_b32 v{PM + j}, 0, v4, s[{MASKS[2 * j]}:{MASKS[2 * j] + 1}]")
        a(f"v_cndmask_b32 v6, 0, v5, s[{MASKS[2 * j + 1]}:{MASKS[2 * j + 1] + 1}]")
        a(f"v_or_b32 v{PM + j}, v{PM + j}, v6")
    a("v_lshrrev_b32 v4, 4, v0")
    a("v_lshrrev_b32 v5, 2, v0")
    a("v_xor_b32 v4, v4, v5")
    a("v_and_b32 v4, 1, v4")
    a("v_cmp_eq_u32 vcc, 0, v4")
    a("v_mov_b32 v5, 0x3f803f80")
    for i in range(4):
        a(f"v_cndmask_b32 v{ONE + i}, 0, v5, vcc")
    a(f"s_mul_i32 s42, s41, {L_HD}")
    a("s_lshl_b32 s43, s40, 11")
    a("s_add_u32 s42, s42, s43")
    a(f"v_add_u32 v{VK}, s42, v1")
    a("s_lshl_b32 s45, s33, 2")
    a("s_add_u32 s45, s45, s40")
    a("s_sub_u32 s46, 8, s45")
    a("s_cmp_lt_u32 s45, 8")
    a("s_cselect_b32 s46, s46, 0")
    a("s_cselect_b32 s43, 0x4000, 0")
    a(f"v_add_u32 v{VK0}, s43, v{VK}")
    a("s_lshl_b32 s47, s45, 5")
    a("s_lshl_b32 s42, s34, 1")
    a("s_add_u32 s47, s47, s42")
    a("s_add_u32 s47, s47, s41")
    a("s_lshl_b32 s47, s47, 11")
    a(f"s_add_u32 s47, s47, 0x{WS_OF:x}")


def emit_attention(a, ool, hooks, MASKS):
    order = [8, 0, 7, 6, 5, 4, 3, 2, 1]

    def hook(k):
        if k in hooks:
            hooks[k]()

    def kread(i):
        rel, b = order[i % 9], KB[i % 3]
        return [f"ds_read_b128 {vr(b, 4)}, v{VK} offset:{rel * 2048}",
                f"ds_read_b128 {vr(b + 4, 4)}, v{VK} offset:{rel * 2048 + 1024}"]

    def vread(i):
        rel, b = order[i], VB[i % 3]
        ad = VK0 if rel == 0 else VK
        return [f"ds_read_b128 {vr(b, 4)}, v{ad} offset:{L_V + rel * 2048}",
                f"ds_read_b128 {vr(b + 4, 4)}, v{ad} offset:{L_V + rel * 2048 + 1024}"]

    def smf(i, c):
        s, k = vr(SBUF[i % 3], 16), KB[i % 3]
        return [f"v_mfma_f32_32x32x16_bf16 {s}, {vr(k, 4)}, {vr(QC, 4)}, {c}",
                f"v_mfma_f32_32x32x16_bf16 {s}, {vr(k + 4, 4)}, {vr(QC + 4, 4)}, {s}"]

    def merge():
        lf, lb = a.newlabel("mneg"), a.newlabel("mback")
        a("s_cmp_gt_u32 s46, 0")
        a(f"s_cbranch_scc1 {lf}")
        for r in range(16):
            a(f"v_cndmask_b32 v{SBUF[1] + r}, v{SBUF[1] + r}, v{SBUF[0] + r}, s[{MASKS[r]}:{MASKS[r] + 1}]")
        a.label(lb)
        ool.append((lf, [f"v_cndmask_b32 v{SBUF[1] + r}, v{VNEG}, v{SBUF[0] + r}, s[{MASKS[r]}:{MASKS[r] + 1}]"
                         for r in range(16)], lb))

    def maxblk(i):
        s = SBUF[i % 3]
        ta, tb = (VM, VM2) if i == 1 else (VT, VM2)
        if i >= 2:
            a(f"s_cmp_le_u32 s46, {order[i]}")
            a("s_cselect_b64 vcc, -1, 0")
        a(f"v_max3_f32 v{ta}, v{s}, v{s + 1}, v{s + 2}")
        a(f"v_max3_f32 v{tb}, v{s + 3}, v{s + 4}, v{s + 5}")
        for x in range(5):
            t = (ta, tb)[x & 1]
            a(f"v_max3_f32 v{t}, v{s + 6 + 2 * x}, v{s + 7 + 2 * x}, v{t}")
        a(f"v_max_f32 v{ta}, v{ta}, v{tb}")
        if i >= 2:
            a(f"v_cndmask_b32 v{ta}, v{VNEG}, v{ta}, vcc")
            a(f"v_max_f32 v{VM}, v{VM}, v{ta}")

    def otouch():
        a("v_lshlrev_b32 v156, 7, v0")
        a("s_mov_b64 exec, 0xffff")
        a(f"buffer_load_dword v157, v156, {S(SWS)}, s47 offen")
        a("s_mov_b64 exec, -1")

    def rowmax_end():
        a(f"v_mov_b32 v{VT}, v{VM}")
        a("s_nop 1")
        a(f"v_permlane32_swap_b32 v{VM}, v{VT}")
        a("s_nop 1")
        a(f"v_max_f32 v{VM}, v{VM}, v{VT}")

    def pass1():
        for x in kread(0) + kread(1):
            a(x)
        for i in range(9):
            a("s_waitcnt lgkmcnt(2)")
            for x in smf(i, "0") + kread(i + 2):
                a(x)
            if i == 2:
                merge()
            if i >= 2:
                maxblk(i - 1)
        a("s_nop 3")
        maxblk(8)
        rowmax_end()

    SP = "sp" in OPT
    if SP:
        lst, lfb, lhm = a.newlabel("astart"), a.newlabel("afall"), a.newlabel("ahave")
        main_a, sub = a, Asm()
        sub.uid = main_a.uid + 1000
        a = sub
        pass1()
        a("s_waitcnt lgkmcnt(0)")
        a("s_mov_b32 s39, 1")
        main_a.uid = sub.uid
        a = main_a
        ool.append((lfb, [x.strip() for x in sub.L], lst))
        a("s_mov_b32 s39, 0")
        a.label(lst)
        for x in kread(0) + kread(1) + kread(2) + vread(0) + vread(1):
            a(x)
        a("s_waitcnt lgkmcnt(8)")
        for x in smf(0, "0"):
            a(x)
        a("s_waitcnt lgkmcnt(6)")
        for x in smf(1, "0") + kread(3):
            a(x)
        a("s_nop 7")
        a("s_nop 7")
        merge()
        a("s_cmp_lg_u32 s39, 0")
        a(f"s_cbranch_scc1 {lhm}")
        maxblk(1)
        rowmax_end()
        a.label(lhm)
    else:
        pass1()
    for r in range(16):
        a(f"v_sub_f32 v{CM + r}, 0, v{VM}")
    hook("mid")
    cm, o, ls = vr(CM, 16), vr(OA, 16), vr(LS, 4)

    def pv(i):
        s = SBUF[i % 3]
        if i == 1:
            return [f"v_mfma_f32_32x32x16_bf16 {o}, {vr(VB[0], 4)}, {vr(s + 8, 4)}, 0",
                    f"v_mfma_f32_16x16x32_bf16 {ls}, {vr(ONE, 4)}, {vr(s, 4)}, 0",
                    f"v_mfma_f32_32x32x16_bf16 {o}, {vr(VB[0] + 4, 4)}, {vr(s + 12, 4)}, {o}",
                    f"v_mfma_f32_16x16x32_bf16 {ls}, {vr(ONE, 4)}, {vr(s + 4, 4)}, {ls}",
                    f"v_mfma_f32_32x32x16_bf16 {o}, {vr(VB[1], 4)}, {vr(P0, 4)}, {o}",
                    f"v_mfma_f32_32x32x16_bf16 {o}, {vr(VB[1] + 4, 4)}, {vr(P0 + 4, 4)}, {o}"]
        v = VB[i % 3]
        return [f"v_mfma_f32_32x32x16_bf16 {o}, {vr(v, 4)}, {vr(s, 4)}, {o}",
                f"v_mfma_f32_16x16x32_bf16 {ls}, {vr(ONE, 4)}, {vr(s, 4)}, {ls}",
                f"v_mfma_f32_32x32x16_bf16 {o}, {vr(v + 4, 4)}, {vr(s + 4, 4)}, {o}",
                f"v_mfma_f32_16x16x32_bf16 {ls}, {vr(ONE, 4)}, {vr(s + 4, 4)}, {ls}"]

    def valu(i):
        s = SBUF[i % 3]
        return [(f"v_exp_f32 v{s + r}, v{s + r}", 8) for r in range(16)] + \
               [(f"v_cvt_pk_bf16_f32 v{s + j}, v{s + 2 * j}, v{s + 2 * j + 1}", 4) for j in range(8)]

    def weave(ms, vs):
        vs = list(vs)
        for m in ms:
            a(m)
            need = (32 if "32x32" in m else 16) - 8
            while vs and need > 0:
                x, c = vs.pop(0)
                a(x)
                need -= c
        for x, c in vs:
            a(x)

    fin = a.newlabel("afin")
    if SP:
        a("s_waitcnt lgkmcnt(6)")
        for x in smf(2, cm):
            a(x)
        for r in range(16):
            a(f"v_sub_f32 v{SBUF[1] + r}, v{SBUF[1] + r}, v{VM}")
    else:
        for x in kread(2) + vread(0) + vread(1):
            a(x)
        a("s_waitcnt lgkmcnt(6)")
        for x in smf(0, cm) + smf(1, cm):
            a(x)
        a("s_waitcnt lgkmcnt(4)")
        for x in smf(2, cm) + kread(3):
            a(x)
        merge()
    s = SBUF[1]
    for x, c in valu(1):
        a(x)
    for j in range(8):
        a(f"v_and_b32 v{s + 8 + j}, v{s + j}, v{PM + j}")
    for j in range(8):
        a(f"v_xor_b32 v{P0 + j}, v{s + j}, v{s + 8 + j}")
    blk = hooks.get("blk", {})
    for i in range(2, 9):
        ex = a.newlabel("aexit")
        a("s_waitcnt lgkmcnt(0)")
        a(f"s_cmp_gt_u32 s46, {order[i]}")
        a(f"s_cbranch_scc1 {ex}")
        ool.append((ex, pv(i - 1) + [x for k in range(i, 9) for x in blk.get(k, [])], fin))
        for x in blk.get(i, []):
            a(x)
        for x in vread(i) + (kread(i + 2) if i + 2 < 9 else []):
            a(x)
        weave((smf(i + 1, cm) if i + 1 < 9 else []) + pv(i - 1), valu(i))
    a("s_waitcnt lgkmcnt(0)")
    for x in pv(8):
        a(x)
    a.label(fin)
    hook("end")
    a("s_nop 7")
    a("s_nop 3")
    a(f"v_rcp_f32 v{VT}, v{LS}")
    if SP:
        lok = a.newlabel("aok")
        a(f"v_mul_f32 v{VM2}, 0, v{OA}")
        for r in range(1, 16):
            a(f"v_fmac_f32 v{LS if r & 1 else VM2}, 0, v{OA + r}")
        a(f"v_add_f32 v{VM2}, v{VM2}, v{LS}")
        a(f"v_cmp_gt_f32 vcc, 0x{0x3f800000 + (optval('thr', 30) << 23):x}, v{VM2}")
        a("s_cmp_lg_u32 s39, 0")
        a(f"s_cbranch_scc1 {lok}")
        a("s_cmp_eq_u64 vcc, -1")
        a(f"s_cbranch_scc0 {lfb}")
        a.label(lok)
    else:
        a("s_nop 1")
    for r in range(16):
        a(f"v_mul_f32 v{OA + r}, v{OA + r}, v{VT}")
    for j in range(8):
        a(f"v_cvt_pk_bf16_f32 v{OA + j}, v{OA + 2 * j}, v{OA + 2 * j + 1}")
    a(f"buffer_store_dwordx4 {vr(OA, 4)}, v1, {S(SWS)}, s47 offen{SC}")
    a(f"buffer_store_dwordx4 {vr(OA + 4, 4)}, v1, {S(SWS)}, s47 offen offset:1024{SC}")


def emit_conv(a, hooks):
    ACC, FB = 8, [40, 104]
    VA, VBB, VEB, VSO = 168, 172, 173, 174
    a("v_and_b32 v2, 15, v0")
    a("v_lshrrev_b32 v3, 4, v0")
    a("v_add_u32 v4, 1, v2")
    a("v_and_b32 v5, 1, v4")
    a("v_sub_u32 v4, v4, v5")
    a("v_lshl_add_u32 v4, v3, 3, v4")
    a("v_lshlrev_b32 v4, 1, v4")
    a(f"v_mul_u32_u24 v5, {CPY}, v5")
    a(f"v_add3_u32 v{VA}, v4, v5, s46")
    for i in range(1, 4):
        a(f"v_add_u32 v{VA + i}, {1024 * i}, v{VA}")
    a("v_lshlrev_b32 v4, 5, v2")
    a("v_lshlrev_b32 v5, 4, v3")
    a(f"v_sub_u32 v{VBB}, v5, v4")
    a(f"v_add_u32 v{VBB}, {URO + 480}, v{VBB}")
    a(f"v_add_u32 v{VBB}, s46, v{VBB}")
    a("v_lshlrev_b32 v5, 3, v3")
    a(f"v_add_u32 v{VSO}, v4, v5")
    a(f"v_sub_u32 v{VEB}, {URO + 504}, v{VSO}")
    a(f"v_add_u32 v{VEB}, s46, v{VEB}")

    def creads(j, buf):
        f = FB[buf]
        out = []
        for q in range(8):
            o = (q & 1) * 128 + 16 * j
            va = VA + (q >> 1)
            out.append(f"ds_read2_b32 {vr(f + 4 * q, 2)}, v{va} offset0:{o} offset1:{o + 1}")
            out.append(f"ds_read2_b32 {vr(f + 4 * q + 2, 2)}, v{va} offset0:{o + 2} offset1:{o + 3}")
            out.append(f"ds_read_b128 {vr(f + 32 + 4 * q, 4)}, v{VBB} offset:{512 * (7 - q) + 64 * j}")
        return out

    pairs = [(q, dl) for q in range(8) for dl in range(8 - q)]
    pairs.sort(key=lambda x: (max(x[0], x[1]), x[0] + x[1], x[0]))
    seq, rest = [], list(pairs)
    while rest:
        pick = next((p for p in rest if all(p[0] + p[1] != s[0] + s[1] for s in seq[-2:])), rest[0])
        rest.remove(pick)
        seq.append(pick)

    def cmfmas(j, buf):
        f = FB[buf]
        seen, out = set(), []
        for (q, dl) in seq:
            nt = q + dl
            d = vr(ACC + 4 * nt, 4)
            c = "0" if (j == 0 and nt not in seen) else d
            seen.add(nt)
            out.append(f"v_mfma_f32_16x16x32_bf16 {d}, {vr(f + 4 * q, 4)}, {vr(f + 32 + 4 * dl, 4)}, {c}")
        return out

    extra = list(hooks.get("extra", []))
    if "start" in hooks:
        hooks["start"]()
    for i, r in enumerate(creads(0, 0)):
        a(r)
        if i % 12 == 11:
            a("s_waitcnt lgkmcnt(4)")
    for j in range(8):
        m = cmfmas(j, j & 1)
        r = creads(j + 1, (j + 1) & 1) if j < 7 else \
            [f"ds_read_b64 {vr(FB[0] + 2 * nt, 2)}, v{VEB} offset:{512 * (7 - nt)}" for nt in range(8)]
        a("s_waitcnt lgkmcnt(0)")
        ri = 0
        if "cnolds" in OPT and j < 7:
            r = []
        for i, mm in enumerate(m):
            a(mm if "cnomfma" not in OPT else "s_nop 3")
            if ri < len(r):
                a(r[ri]); ri += 1
            if j >= 1 and extra:
                a(extra.pop(0))
        assert ri == len(r)
    a("s_nop 7")
    a("s_waitcnt lgkmcnt(0)")
    stores = []
    for nt in range(8):
        k0, k1 = FB[0] + 2 * nt, FB[0] + 2 * nt + 1
        t = FB[0] + 16 + 4 * (nt & 1)
        ac = ACC + 4 * nt
        a(f"v_and_b32 v{t}, 0xffff0000, v{k1}")
        a(f"v_lshlrev_b32 v{t + 1}, 16, v{k1}")
        a(f"v_and_b32 v{t + 2}, 0xffff0000, v{k0}")
        a(f"v_lshlrev_b32 v{t + 3}, 16, v{k0}")
        for e in range(4):
            a(f"v_fmac_f32 v{ac + e}, s39, v{t + e}")
        a(f"v_cvt_pk_bf16_f32 v{YP + 2 * nt}, v{ac}, v{ac + 1}")
        a(f"v_cvt_pk_bf16_f32 v{YP + 2 * nt + 1}, v{ac + 2}, v{ac + 3}")
        st = f"buffer_store_dwordx2 {vr(YP + 2 * nt, 2)}, v{VSO}, {S(SWS)}, s36 offen offset:{512 * nt}{SC}"
        if "yearly" in OPT:
            a(st)
        else:
            stores.append(st)
    return stores


def emit_lds_wait(a, vaddr, off, t):
    lp, dn = a.newlabel("lw"), a.newlabel("lwd")
    a("s_mov_b32 s85, 0")
    a.label(lp)
    a(f"ds_read_b128 {vr(t, 4)}, v{vaddr} offset:{off}")
    a("s_waitcnt lgkmcnt(0)")
    a(f"v_and_b32 v{t}, v{t}, v{t + 1}")
    a(f"v_and_b32 v{t + 2}, v{t + 2}, v{t + 3}")
    a(f"v_and_b32 v{t}, v{t}, v{t + 2}")
    a("s_add_u32 s85, s85, 1")
    a(f"v_readfirstlane_b32 s80, v{t}")
    a("s_nop 1")
    a("s_cmp_lg_u32 s80, 0")
    a(f"s_cbranch_scc1 {dn}")
    a(f"s_cmp_lt_u32 s85, 0x{SPIN_LIMIT:x}")
    a(f"s_cbranch_scc1 {lp}")
    a.label(dn)


def p1_lists():
    KK, VV, WR = 124, 146, 162
    AK, AH, AS, AO = 174, 175, 176, 177
    KF_, WF_, RS_, TT, PO = 12, 56, 72, 104, 108
    soffs = ["0", "s50", "s51", "s52"]
    setup, loads, comp, stores = [], [], [], []
    a = setup.append
    a("v_lshrrev_b32 v24, 3, v0")
    a("v_and_b32 v25, 7, v0")
    a("s_lshl_b32 s80, s35, 6")
    a("s_lshl_b32 s81, s3, 2")
    a("s_add_u32 s81, s81, s44")
    a("s_lshl_b32 s81, s81, 5")
    a("v_lshlrev_b32 v24, 3, v24")
    a("v_add_u32 v24, s80, v24")
    a("v_lshlrev_b32 v25, 2, v25")
    a("v_add_u32 v25, s81, v25")
    a(f"v_lshlrev_b32 v{AK}, 11, v24")
    a(f"v_lshl_add_u32 v{AK}, v25, 1, v{AK}")
    a("s_mov_b32 s50, 4096")
    a("s_mov_b32 s51, 8192")
    a("s_mov_b32 s52, 12288")
    a(f"v_subrev_u32 v{AH}, 6144, v{AK}")
    a("v_mov_b32 v26, 0x80000000")
    a("v_cmp_gt_u32 vcc, 3, v24")
    a(f"v_lshlrev_b32 v{AO}, 12, v25")
    a("v_sub_u32 v24, 2040, v24")
    a(f"v_cndmask_b32 v{AH}, v{AH}, v26, vcc")
    a(f"v_lshlrev_b32 v{AS}, 3, v25")
    a(f"v_lshl_add_u32 v{AO}, v24, 1, v{AO}")
    loads.append(f"buffer_load_dwordx4 {vr(WR, 4)}, v{AS}, {S(SSH)}, 0 offen")
    loads.append(f"buffer_load_dwordx4 {vr(WR + 4, 4)}, v{AS}, {S(SSH)}, 0 offen offset:16")
    for i in range(3):
        loads.append(f"buffer_load_dwordx2 {vr(KK + 2 * i, 2)}, v{AH}, {S(SK)}, {soffs[i >> 1]} offen offset:{(i & 1) * 2048}")
    for i in range(8):
        loads.append(f"buffer_load_dwordx2 {vr(KK + 6 + 2 * i, 2)}, v{AK}, {S(SK)}, {soffs[i >> 1]} offen offset:{(i & 1) * 2048}")
    for i in range(8):
        loads.append(f"buffer_load_dwordx2 {vr(VV + 2 * i, 2)}, v{AK}, {S(SV)}, {soffs[i >> 1]} offen offset:{(i & 1) * 2048}")
    a = comp.append
    for dd in range(4):
        for h2 in range(2):
            src = WR + 2 * dd + h2
            a(f"v_lshlrev_b32 v{WF_ + 4 * dd + 2 * h2}, 16, v{src}")
            a(f"v_and_b32 v{WF_ + 4 * dd + 2 * h2 + 1}, 0xffff0000, v{src}")
    for i in range(11):
        for h2 in range(2):
            src = KK + 2 * i + h2
            a(f"v_lshlrev_b32 v{KF_ + 4 * i + 2 * h2}, 16, v{src}")
            a(f"v_and_b32 v{KF_ + 4 * i + 2 * h2 + 1}, 0xffff0000, v{src}")
    for s_ in range(8):
        for dd in range(4):
            r = RS_ + 4 * s_ + dd
            a(f"v_mul_f32 v{r}, v{KF_ + 4 * (s_ + 3) + dd}, v{WF_ + 4 * dd}")
            for j in range(1, 4):
                a(f"v_fmac_f32 v{r}, v{KF_ + 4 * (s_ + 3 - j) + dd}, v{WF_ + 4 * dd + j}")
    for s_ in range(8):
        for dd in range(4):
            r = RS_ + 4 * s_ + dd
            src = VV + 2 * s_ + (dd >> 1)
            t = TT + (dd & 1)
            a(f"v_and_b32 v{t}, 0xffff0000, v{src}" if dd & 1 else f"v_lshlrev_b32 v{t}, 16, v{src}")
            a(f"v_mul_f32 v{r}, v{r}, v{t}")
    stores.append(f"s_mov_b32 s53, 0x{WS_UR:x}")
    for dd in range(4):
        o = PO + 4 * dd
        for j in range(4):
            stores.append(f"v_cvt_pk_bf16_f32 v{o + j}, v{RS_ + 4 * (7 - 2 * j) + dd}, v{RS_ + 4 * (6 - 2 * j) + dd}")
        stores.append(f"buffer_store_dwordx4 {vr(o, 4)}, v{AO}, {S(SWS)}, s53 offen{SC}")
        if dd < 3:
            stores.append("s_add_u32 s53, s53, 4096")
    return setup, loads, comp, stores


VZ = 252
VLF = 251
SRDS = [(SX, 48, 4 * MB), (SW, 56, 6 * MB), (SWS, 88, WS_SIZE), (SK, 8, 4 * MB), (SV, 16, 4 * MB),
        (SSH, 24, 8192), (SHK, 32, 4 * MB), (SWO, 64, 2 * MB), (SQ, 0, 4 * MB), (SOUT, 72, 8 * MB),
        (SDBG, 80, 256)]


def late_setup(a, ts):
    a("s_lshl_b32 s84, s3, 5")
    a("s_add_u32 s84, s84, s35")
    a("s_lshl_b32 s80, s84, 3")
    a("s_load_dwordx2 s[76:77], s[36:37], s80")
    a("s_lshl_b32 s89, s2, 7")
    a("s_lshl_b32 s81, s32, 3")
    a("s_add_u32 s89, s89, s81")
    for (d, off, size) in SRDS[2:]:
        a(f"s_mov_b32 s{d + 2}, 0x{size:x}")
        a(f"s_mov_b32 s{d + 3}, 0x20000")
    a(f"v_mov_b32 v{VLF}, {L_FL}")
    ts.setup(a, SWS)


def g2_tile(a):
    a("s_and_b32 s86, s3, 1")
    a("s_lshl_b32 s86, s86, 1")
    a("s_bfe_u32 s80, s3, 0x10001")
    a("s_add_u32 s86, s86, s80")
    a("s_lshl_b32 s86, s86, 2")
    a("s_and_b32 s80, s35, 3")
    a("s_add_u32 s86, s86, s80")
    a("s_lshr_b32 s42, s3, 2")
    a("s_lshl_b32 s42, s42, 3")
    a("s_lshr_b32 s43, s35, 2")
    a("s_add_u32 s42, s42, s43")


def wo_addr(a):
    a("v_lshrrev_b32 v4, 3, v0")
    a("v_and_b32 v5, 7, v0")
    a("v_bfe_u32 v6, v0, 4, 1")
    a("v_lshlrev_b32 v6, 2, v6")
    a("v_xor_b32 v6, v6, v5")
    a("v_lshlrev_b32 v250, 11, v4")
    a("v_lshl_add_u32 v250, v6, 4, v250")
    a("s_lshl_b32 s80, s42, 7")
    a("v_add_u32 v250, s80, v250")
    a("s_lshl_b32 s84, s32, 11")
    a("s_lshl_b32 s88, s32, 15")


NE = 3


def wo_part(p, dst, dw=0):
    return [f"s_add_u32 m0, s84, {dst + dw * 2048}",
            f"s_add_u32 s81, s43, {p}",
            "s_and_b32 s81, s81, 7",
            "s_lshl_b32 s81, s81, 18",
            "s_add_u32 s81, s81, s88"] + ([f"s_add_u32 s81, s81, {dw * 32768}"] if dw else []) + [
            f"buffer_load_dwordx4 v250, {S(SWO)}, s81 offen lds",
            f"s_add_u32 s81, s81, {16384 - 1024}",
            f"buffer_load_dwordx4 v250, {S(SWO)}, s81 offen offset:1024 lds"]


def wo_early():
    b0 = optval("we", 3)
    return {b0 + p: wo_part(p, L_R0 + p * 16384) for p in range(NE)}


def wo_late(a, ts, nyoung, after=None, helper=False):
    HS = "hs" in OPT
    if HS:
        lds_flag_set(a, 32, 8, 222)
    a(f"s_waitcnt vmcnt({nyoung})")
    if "o1" in OPT:
        ln = a.newlabel("notlast")
        a("v_mov_b32 v222, 1")
        a("s_mov_b64 exec, 1")
        a(f"ds_add_rtn_u32 v223, v{VLF}, v222 offset:64")
        a("s_mov_b64 exec, -1")
        a("s_waitcnt lgkmcnt(0)")
        a("v_readfirstlane_b32 s80, v223")
        a("s_nop 1")
        a("s_cmp_lg_u32 s80, 7")
        a(f"s_cbranch_scc1 {ln}")
        a("s_andn2_b32 s89, s89, 127")
        emit_publish(a, FL_O, 220, VZ)
        a.label(ln)
    else:
        emit_publish(a, FL_O, 220, VZ)
    if not HS:
        lds_flag_set(a, 32, 8, 222)
    if after:
        after()
    if HS and not helper:
        ts.stamp(a, 7)
        return
    emit_lds_wait(a, VLF, 32, 8)
    emit_lds_wait(a, VLF, 48, 8)
    ts.stamp(a, 7)
    for p in range(NE, 8):
        for x in wo_part(p, (p - NE) * 16384) + (wo_part(p, (p - NE) * 16384, -4) if HS else []):
            a(x)


def lds_flag_set(a, word_s, word_add, t):
    a(f"s_lshl_b32 s80, s{word_s}, 2")
    a(f"v_add_u32 v{t}, s80, v{VLF}")
    a(f"v_mov_b32 v{t + 1}, 1")
    a(f"ds_write_b32 v{t}, v{t + 1} offset:{4 * word_add}")


def m_path(a, ts, ool):
    ACC = 80
    PD = optval('pd', 2)
    FR = [16, 36, 56, 192, 212][:PD + 1]
    NB = PD + 1
    LZ = 'lz' in OPT
    XA, WB, XA2 = 2, 6, 8
    def code_touch():
        lcp = a.newlabel("nocp")
        a("s_cmp_lg_u32 s32, 1")
        a(f"s_cbranch_scc1 {lcp}")
        a("s_mov_b32 exec_hi, 0")
        a("buffer_load_dword v188, v189, s[52:55], s56 offen")
        a("s_mov_b32 exec_hi, -1")
        a.label(lcp)

    CQ = [int(o[2:]) for o in OPT if o.startswith("cq")]
    if "cp" in OPT or CQ:
        a("s_getpc_b64 s[52:53]")
        a.label("L_pc")
        a(f"s_sub_u32 s52, s52, L_pc-{NAME}_kernel")
        a("s_subb_u32 s53, s53, 0")
        a(f"s_mov_b32 s54, L_end-{NAME}_kernel")
        a("s_mov_b32 s55, 0x20000")
        a("s_lshl_b32 s56, s35, 11")
        a("v_lshlrev_b32 v189, 6, v0")
    if "cp" in OPT:
        code_touch()
    SL = {o[2]: int(o[3:]) for o in OPT if o.startswith("sl")}
    if SL:
        a("s_lshl_b32 s80, s35, 2")
        a("s_add_u32 s80, s80, s32")
        a("s_mul_i32 s81, s80, 12")
        a("v_add_u32 v184, s81, v0")
        a("v_lshlrev_b32 v184, 11, v184")
        a("s_lshr_b32 s81, s3, 2")
        a("s_lshl_b32 s81, s81, 10")
        a("s_add_u32 s81, s81, 384")
        a("v_add_u32 v184, s81, v184")
        a("s_bitcmp1_b32 s3, 1")
        a("s_cselect_b32 s81, 0, 12")
        a("v_mov_b32 v2, 0x80000000")
        a("v_cmp_gt_u32 vcc, s81, v0")
        a("s_lshl_b32 s81, s80, 3")
        a("v_cndmask_b32 v184, v2, v184, vcc")
        a("s_and_b32 s82, s3, 1")
        a("s_lshl_b32 s82, s82, 10")
        a("s_add_u32 s81, s81, s82")
        a("v_add_u32 v185, s81, v0")
        a("v_lshlrev_b32 v185, 11, v185")
        a("v_add_u32 v185, 384, v185")
        a("v_cmp_gt_u32 vcc, 8, v0")
        a("s_mov_b32 s57, 0x300000")
        a("v_cndmask_b32 v185, v2, v185, vcc")

    def slow_touch(n):
        for k, when in sorted(SL.items()):
            if when == n:
                a({"a": f"buffer_load_dword v176, v184, {S(SW)}, 0 offen",
                   "b": f"buffer_load_dword v177, v184, {S(SW)}, s57 offen",
                   "c": f"buffer_load_dword v178, v185, {S(SX)}, 0 offen",
                   "d": f"buffer_load_dword v179, v185, {S(SX)}, 0 offen offset:1024"}[k])

    a("s_waitcnt lgkmcnt(0)")
    slow_touch(99)
    late_setup(a, ts)
    ltk = a.newlabel("notok")
    a("s_cmp_lg_u32 s89, 0")
    a(f"s_cbranch_scc1 {ltk}")
    a("s_memrealtime s[78:79]")
    a("s_waitcnt lgkmcnt(0)")
    a("s_or_b32 s78, s78, 1")
    a("v_mov_b32 v180, s78")
    a("v_mov_b32 v181, s79")
    a("s_mov_b64 exec, 1")
    a(f"buffer_store_dwordx2 v[180:181], v{VZ}, {S(SDBG)}, 0 offen{SC}")
    a("s_mov_b64 exec, -1")
    a.label(ltk)
    a("s_waitcnt lgkmcnt(0)")
    a("s_and_b32 s44, s32, 1")
    a("s_lshr_b32 s45, s32, 1")
    a("v_and_b32 v8, 31, v0")
    a("v_lshrrev_b32 v9, 5, v0")
    a("v_lshrrev_b32 v10, 1, v8")
    a("v_and_b32 v10, 7, v10")
    a("v_lshlrev_b32 v11, 7, v8")
    a("s_lshl_b32 s46, s44, 13")
    a("v_add_u32 v11, s46, v11")
    for ks in range(4):
        a(f"v_add_u32 v12, {2 * ks}, v9")
        a("v_xor_b32 v12, v12, v10")
        a(f"v_lshl_add_u32 v{XA + ks}, v12, 4, v11")
    a("v_and_b32 v10, 15, v0")
    a("v_lshrrev_b32 v11, 4, v0")
    a("v_lshrrev_b32 v12, 2, v10")
    a("v_lshl_add_u32 v12, v9, 3, v12")
    a("v_mul_u32_u24 v12, 384, v12")
    a("v_lshrrev_b32 v13, 3, v10")
    a("v_xor_b32 v13, s45, v13")
    a("v_lshl_add_u32 v12, v13, 6, v12")
    a("v_and_b32 v13, 1, v11")
    a("v_lshl_add_u32 v12, v13, 5, v12")
    a("v_and_b32 v13, 3, v10")
    a("v_lshl_add_u32 v12, v13, 3, v12")
    a(f"v_add_u32 v{WB}, 16384, v12")
    a(f"v_add_u32 v{WB + 1}, {16384 + 81920}, v12")
    for ks in range(4):
        a(f"v_add_u32 v{XA2 + ks}, 81920, v{XA + ks}")

    def reads(t, ks, buf):
        st = (t + 2) & 3
        f = FR[buf]
        xa = (XA2 if st >= 2 else XA) + ks
        xo = (st & 1) * 40960
        wb = WB + (st >> 1)
        wo = (st & 1) * 40960 + 16 * ks * 384
        return [f"ds_read_b128 {vr(f, 4)}, v{xa} offset:{xo}",
                f"ds_read_b64_tr_b16 {vr(f + 8, 2)}, v{wb} offset:{wo}",
                f"ds_read_b64_tr_b16 {vr(f + 10, 2)}, v{wb} offset:{wo + 4 * 384}",
                f"ds_read_b128 {vr(f + 4, 4)}, v{xa} offset:{xo + 4096}",
                f"ds_read_b64_tr_b16 {vr(f + 12, 2)}, v{wb} offset:{wo + 128}",
                f"ds_read_b64_tr_b16 {vr(f + 14, 2)}, v{wb} offset:{wo + 128 + 4 * 384}",
                f"ds_read_b64_tr_b16 {vr(f + 16, 2)}, v{wb} offset:{wo + 256}",
                f"ds_read_b64_tr_b16 {vr(f + 18, 2)}, v{wb} offset:{wo + 256 + 4 * 384}"]

    def mfmas(buf, first, last):
        f = FR[buf]
        X = [vr(f, 4), vr(f + 4, 4)]
        W = [vr(f + 8, 4), vr(f + 12, 4), vr(f + 16, 4)]
        out = []
        for part in ((1, 2, 0) if last else (0, 1, 2)):
            for rt in range(2):
                d = vr(ACC + 16 * (2 * part + rt), 16)
                c = "0" if first else d
                if part < 2:
                    out.append(f"v_mfma_f32_32x32x16_bf16 {d}, {W[part]}, {X[rt]}, {c}")
                else:
                    out.append(f"v_mfma_f32_32x32x16_bf16 {d}, {X[rt]}, {W[part]}, {c}")
        return out

    a("s_lshl_b32 s46, s34, 1")
    a("s_add_u32 s46, s46, s45")
    a("s_lshl_b32 s46, s46, 6")
    a("s_lshl_b32 s47, s33, 2")
    a("s_add_u32 s46, s46, s47")
    a("s_lshl_b32 s47, s44, 1")
    a("s_add_u32 s47, s46, s47")
    a("s_lshl_b32 s47, s47, 11")
    a(f"s_add_u32 s48, s47, 0x{WS_VF:x}")
    a(f"s_add_u32 s47, s47, 0x{WS_KF:x}")
    a(f"s_mul_i32 s80, s45, {L_HD}")
    a("s_lshl_b32 s81, s44, 12")
    a("s_add_u32 s80, s80, s81")
    a("v_add_u32 v182, s80, v1")
    a("s_lshl_b32 s80, s32, 11")
    a(f"s_add_u32 s80, s80, {L_QH}")
    a("v_add_u32 v183, s80, v1")
    a(f"s_mov_b32 s49, {f32hex(SCALE_LOG2E)}")
    KT, FT = optval("kt", -1), optval("ft", -1)
    if KT >= 0:
        a("v_and_b32 v192, 31, v0")
        a("v_lshlrev_b32 v192, 7, v192")
        a(f"v_mul_u32_u24 v193, 0x{WS_VF - WS_KF:x}, v9")
        a("v_add_u32 v192, v192, v193")
    if FT >= 0:
        a("v_lshlrev_b32 v194, 15, v0")
        a("s_lshl_b32 s80, s2, 7")
        a(f"s_add_u32 s80, s80, 0x{WS_FL:x}")
        a("v_add_u32 v194, s80, v194")
        a("s_cmp_eq_u32 s32, 2")
        a("s_cselect_b32 s80, 4, 0")
        a("v_mov_b32 v193, 0x80000000")
        a("v_cmp_gt_u32 vcc, s80, v0")
        a("s_nop 1")
        a("v_cndmask_b32 v194, v193, v194, vcc")
    a("s_barrier")
    ts.stamp(a, 11)
    for k in range(PD):
        for r in reads(0, k, k):
            a(r)
        if k == 1:
            a("s_waitcnt lgkmcnt(8)")
    TKN = optval("tkn", 41)
    BK = (4 - PD) % 4
    for n in range(64):
        t, ks = n >> 2, n & 3
        m = mfmas(n % NB, n == 0, n == 63)
        n2 = n + PD
        r = reads(n2 >> 2, n2 & 3, n2 % NB) if n2 < 64 else []
        tch = []
        if n == TKN:
            tch = [f"buffer_load_dwordx2 v[186:187], v{VZ}, {S(SDBG)}, 0 offen{SC}"]
        ahead = min(15, 8 * (min(63, n + PD - 1) - n))
        if ks == BK:
            a(f"s_waitcnt lgkmcnt({ahead if (LZ and t < 15) else 0})")
            a(m[0])
            a("s_barrier")
            if "cyc" in OPT and ts.enabled:
                if t:
                    a(f"v_writelane_b32 v254, s{90 + 2 * ((t - 1) & 1)}, {12 + t - 1}")
                a(f"s_memtime s[{90 + 2 * (t & 1)}:{91 + 2 * (t & 1)}]")
        else:
            a(f"s_waitcnt lgkmcnt({ahead})")
            a(m[0])
        ri = 0
        for i, mm in enumerate(m[1:]):
            for _ in range(2):
                if ri < len(r):
                    a(r[ri]); ri += 1
            if i == 4:
                for x in tch:
                    a(x)
                if n in CQ:
                    code_touch()
                slow_touch(n)
                if n == KT:
                    a(f"buffer_load_dword v193, v192, {S(SWS)}, s47 offen")
                if n == FT:
                    a(f"buffer_load_dword v195, v194, {S(SWS)}, 0 offen")
            a(mm)
    ts.stamp(a, 1)
    KVS = "kvs" in OPT
    vstores = []
    for part in (1, 2):
        for rt in range(2):
            b = ACC + 16 * (2 * part + rt)
            for j in range(8):
                a(f"v_cvt_pk_bf16_f32 v{b + j}, v{b + 2 * j}, v{b + 2 * j + 1}")
            for step in range(2):
                if KVS and part == 2:
                    vstores.append(f"buffer_store_dwordx4 {vr(b + 4 * step, 4)}, v1, {S(SWS)}, s87 offen offset:{rt * 2048 + step * 1024}{SC}")
                else:
                    a(f"buffer_store_dwordx4 {vr(b + 4 * step, 4)}, v1, {S(SWS)}, s{46 + part} offen offset:{rt * 2048 + step * 1024}{SC}")
    for part in (1, 2):
        for rt in range(2):
            b = ACC + 16 * (2 * part + rt)
            for step in range(2):
                a(f"ds_write_b128 v182, {vr(b + 4 * step, 4)} offset:{8 * 2048 + (part - 1) * L_V + rt * 2048 + step * 1024}")
    for rt in (1, 0):
        b = ACC + 16 * rt
        d = QC if rt == 0 else b
        for r in range(16):
            a(f"v_mul_f32 v{b + r}, s49, v{b + r}")
        for j in range(8):
            a(f"v_cvt_pk_bf16_f32 v{d + j}, v{b + 2 * j}, v{b + 2 * j + 1}")
        if rt == 1:
            for step in range(2):
                a(f"ds_write_b128 v183, {vr(d + 4 * step, 4)} offset:{step * 1024}")
    a("s_lshl_b32 s40, s44, 1")
    a("s_mov_b32 s41, s45")
    lz = a.newlabel("nozero")
    a("s_cmp_lg_u32 s32, 0")
    a(f"s_cbranch_scc1 {lz}")
    a(f"v_lshl_add_u32 v190, v0, 2, v{VLF}")
    a(f"ds_write_b32 v190, v{VZ}")
    a.label(lz)
    a("s_add_u32 s38, s33, s44")
    a("s_sub_u32 s80, s38, 2")
    a("s_max_i32 s80, s80, 0")
    a("v_mov_b32 v20, s80")
    a("v_mov_b32 v21, s34")
    emit_wg_of(a, 190, 20, 21, 22)
    a("v_and_b32 v20, 1, v0")
    a("v_lshl_add_u32 v190, v20, 3, v190")
    a("s_lshl_b32 s80, s45, 4")
    a(f"s_add_u32 s80, s80, 0x{WS_FL + FL_K * 32768:x}")
    a("v_add_u32 v190, s80, v190")
    a("s_lshl_b32 s80, s44, 2")
    a("s_add_u32 s36, s46, s80")
    a("s_lshl_b32 s36, s36, 11")
    a(f"s_add_u32 s36, s36, 0x{WS_KF - 8 * 2048:x}")
    a(f"s_mul_i32 s37, s45, {L_HD}")
    a("s_lshl_b32 s80, s44, 13")
    a("s_add_u32 s37, s37, s80")
    a(f"v_add_u32 v191, 0x{(FL_V - FL_K) * 32768:x}, v190")
    a("s_mov_b32 s87, s48")
    emit_attn_setup(a, MASKS_M)
    g2_tile(a)
    wo_addr(a)
    a("s_lshl_b32 s80, s35, 2")
    a("s_add_u32 s80, s80, s32")
    a("s_lshl_b32 s80, s80, 6")
    a("v_add_u32 v20, s80, v0")
    a("v_lshrrev_b32 v198, 3, v20")
    a("v_lshlrev_b32 v198, 11, v198")
    a("v_and_b32 v20, 7, v20")
    a("v_lshl_add_u32 v198, v20, 7, v198")
    a("s_lshr_b32 s80, s3, 2")
    a("s_lshl_b32 s80, s80, 10")
    a("v_add_u32 v198, s80, v198")
    a("s_lshl_b32 s80, s35, 6")
    a("s_lshl_b32 s81, s32, 4")
    a("s_add_u32 s80, s80, s81")
    a("v_bfe_u32 v20, v0, 1, 4")
    a("v_add_u32 v20, s80, v20")
    a("v_lshlrev_b32 v20, 11, v20")
    a("v_and_b32 v21, 1, v0")
    a("v_lshl_add_u32 v20, v21, 7, v20")
    a("s_lshl_b32 s80, s3, 8")
    a("v_add_u32 v199, s80, v20")
    tl = [f"buffer_load_dword v200, v198, {S(SWO)}, 0 offen", f"buffer_load_dword v201, v199, {S(SQ)}, 0 offen"]
    tlw, tlq = tl
    if "tq" in OPT:
        tl = [tlq]
    if "tw" in OPT:
        tl = [tlw]

    def prev_dma(isv):
        for g in range(2):
            a(f"s_add_u32 m0, s37, {isv * L_V + g * 4096}")
            a(f"s_add_u32 s80, s36, {isv * (WS_VF - WS_KF) + g * 4096}")
            for i in range(4):
                a(f"buffer_load_dwordx4 v1, {S(SWS)}, s80 offen offset:{1024 * i} {scl()} lds")

    a("s_waitcnt vmcnt(0)")
    emit_token_take(a, 186, VZ)
    emit_publish(a, FL_K, 220, VZ)
    ts.stamp(a, 2)
    lnp = a.newlabel("noprev")
    a("s_cmp_lt_u32 s38, 2")
    a(f"s_cbranch_scc1 {lnp}")
    emit_poll(a, 190, 2, 196, sleep=optval("ks", 1))
    ts.stamp(a, 3)
    prev_dma(0)
    if not KVS:
        prev_dma(1)
    a.label(lnp)
    hk = {"blk": wo_early()}
    tb = optval("tb", 0)
    if optval("qk", 0):
        hk["blk"][optval("qk", 0)] = hk["blk"].get(optval("qk", 0), []) + [tlq]
    if KVS:
        for x in vstores:
            a(x)
        a("s_waitcnt vmcnt(4)")

        def m_mid():
            a("s_waitcnt vmcnt(0)")
            a("s_barrier")
            for x in tl:
                a(x)
        hk["mid"] = m_mid
    elif tb == 0:
        for x in tl:
            a(x)
        a("s_waitcnt vmcnt(2)")
    else:
        a("s_waitcnt vmcnt(0)")
    ts.stamp(a, 5)
    a("s_waitcnt lgkmcnt(0)")
    a("s_barrier")
    ts.stamp(a, 4)
    if KVS:
        a("s_waitcnt vmcnt(0)")
        emit_publish(a, FL_V, 222, VZ)
        lnp = a.newlabel("noprev")
        a("s_cmp_lt_u32 s38, 2")
        a(f"s_cbranch_scc1 {lnp}")
        emit_poll(a, 191, 2, 196, sleep=optval("ks", 1))
        prev_dma(1)
        a.label(lnp)
    elif tb == 1:
        for x in tl:
            a(x)
    elif tb == 2:
        hk["mid"] = lambda: [a(x) for x in tl]
    emit_attention(a, ool, hk, MASKS_M)
    ts.stamp(a, 6)
    wo_late(a, ts, 0)
    BF = [16, 24, 32]
    AC2 = 40
    AF, PF = 72, optval('pf', 16)
    a("v_and_b32 v8, 15, v0")
    a("v_lshrrev_b32 v9, 4, v0")
    a("v_lshrrev_b32 v10, 5, v0")
    a("v_lshrrev_b32 v11, 2, v8")
    a("v_lshl_add_u32 v11, v10, 2, v11")
    a("v_lshlrev_b32 v11, 7, v11")
    a("v_and_b32 v12, 1, v9")
    a("v_lshl_add_u32 v11, v12, 5, v11")
    a("v_and_b32 v12, 3, v8")
    a("v_lshl_add_u32 v11, v12, 3, v11")
    a("v_lshrrev_b32 v12, 3, v8")
    a("v_lshl_add_u32 v2, v12, 6, v11")
    a("v_xor_b32 v12, 1, v12")
    a("v_lshl_add_u32 v3, v12, 6, v11")
    a("v_add_u32 v4, 0x10000, v2")
    a("v_add_u32 v5, 0x10000, v3")
    a(f"v_add_u32 v6, {L_R0}, v2")
    a(f"v_add_u32 v7, {L_R0}, v3")
    a("v_mov_b32 v12, s86")
    a("v_bfe_u32 v13, v0, 1, 4")
    emit_wg_of(a, 14, 12, 13, 15)
    if "o1" in OPT:
        a(f"v_add_u32 v14, 0x{WS_FL + FL_O * 32768:x}, v14")
    else:
        a("v_and_b32 v12, 1, v0")
        a("v_lshl_add_u32 v14, v12, 4, v14")
        a("s_lshr_b32 s80, s32, 1")
        a("s_and_b32 s81, s32, 1")
        a("s_lshl_b32 s81, s81, 2")
        a("s_add_u32 s80, s80, s81")
        a("s_lshl_b32 s80, s80, 3")
        a(f"s_add_u32 s80, s80, 0x{WS_FL + FL_O * 32768:x}")
        a("v_add_u32 v14, s80, v14")
    a("s_lshl_b32 s46, s86, 2")
    a("s_add_u32 s46, s46, s32")
    a("s_lshl_b32 s47, s46, 16")
    a(f"s_add_u32 s47, s47, 0x{WS_OF:x}")
    for p in range(8):
        a(f"s_add_u32 s81, s43, {p}")
        a("s_and_b32 s81, s81, 7")
        a("s_lshl_b32 s81, s81, 13")
        a(f"s_add_u32 s{48 + p}, s47, s81")
    if optval("od", 0):
        a("s_waitcnt vmcnt(0)")
        lds_flag_set(a, 32, 0, 16)
        a(f"s_sleep {optval('od', 0) - 1}")
        poll_issue(a, 14, 12)
    else:
        poll_issue(a, 14, 12)
        a("s_waitcnt vmcnt(1)")
        lds_flag_set(a, 32, 0, 16)
    ts.stamp(a, 8)
    emit_poll(a, 14, 32, 12, pre=True, sleep=optval("os", 0))
    ts.stamp(a, 9)

    def aload(ks):
        out = []
        if ks % 8 == 4:
            out.append(f"s_add_u32 s{48 + (ks >> 3)}, s{48 + (ks >> 3)}, 4096")
        out.append(f"buffer_load_dwordx4 {vr(AF + 4 * (ks % PF), 4)}, v1, {S(SWS)}, s{48 + (ks >> 3)} offen offset:{(ks & 3) * 1024} {scl()}")
        return out

    def breads(ks, buf):
        f = BF[buf]
        if ks < 8 * NE:
            base, o = 6, ks * 2048
        elif ks < 8 * NE + 32:
            base, o = 2, (ks - 8 * NE) * 2048
        else:
            base, o = 4, (ks - 8 * NE - 32) * 2048
        out = []
        for ct in range(2):
            out.append(f"ds_read_b64_tr_b16 {vr(f + 4 * ct, 2)}, v{base + ct} offset:{o}")
            out.append(f"ds_read_b64_tr_b16 {vr(f + 4 * ct + 2, 2)}, v{base + ct} offset:{o + 1024}")
        return out

    for ks in range(PF):
        for x in aload(ks):
            a(x)
    emit_lds_wait(a, VLF, 0, 16)
    emit_lds_wait(a, VLF, 16, 16)
    for x in breads(0, 0) + breads(1, 1):
        a(x)
    for ks in range(64):
        f = BF[ks % 3]
        issued = min(63, ks + PF - 1)
        a(f"s_waitcnt vmcnt({issued - ks}) lgkmcnt({4 if ks < 63 else 0})")
        af = vr(AF + 4 * (ks % PF), 4)
        nxt = breads(ks + 2, (ks + 2) % 3) if ks + 2 < 64 else []
        d0, d1 = vr(AC2, 16), vr(AC2 + 16, 16)
        a(f"v_mfma_f32_32x32x16_bf16 {d0}, {vr(f, 4)}, {af}, {'0' if ks == 0 else d0}")
        for x in nxt:
            a(x)
        a(f"v_mfma_f32_32x32x16_bf16 {d1}, {vr(f + 4, 4)}, {af}, {'0' if ks == 0 else d1}")
        if ks + PF < 64:
            for x in aload(ks + PF):
                a(x)
    ts.stamp(a, 28)
    a("v_and_b32 v8, 31, v0")
    a("s_lshl_b32 s46, s46, 5")
    a("v_add_u32 v8, s46, v8")
    a("v_lshlrev_b32 v8, 12, v8")
    a("v_lshl_add_u32 v8, v10, 4, v8")
    a("s_lshl_b32 s46, s42, 7")
    a("s_add_u32 s46, s46, 2048")
    a("s_nop 7")
    for ct in range(2):
        b = AC2 + 16 * ct
        for j in range(8):
            a(f"v_cvt_pk_bf16_f32 v{b + j}, v{b + 2 * j}, v{b + 2 * j + 1}")
        a("s_nop 1")
        for jj in range(2):
            a(f"v_permlane32_swap_b32 v{b + 4 * jj}, v{b + 4 * jj + 2}")
            a(f"v_permlane32_swap_b32 v{b + 4 * jj + 1}, v{b + 4 * jj + 3}")
        for jj in range(2):
            a(f"buffer_store_dwordx4 {vr(b + 4 * jj, 4)}, v8, {S(SOUT)}, s46 offen offset:{ct * 64 + jj * 32}")
    ts.final(a, 10)
    a("s_endpgm")


def h_path(a, ts, ool):
    a(f"s_setprio {optval('hp', 3)}")
    XO, WO = 2, 6
    a("v_lshrrev_b32 v12, 3, v0")
    a("v_and_b32 v13, 7, v0")
    a("s_lshl_b32 s45, s33, 7")
    a("s_lshl_b32 s46, s44, 5")
    a("s_add_u32 s45, s45, s46")
    a("v_lshrrev_b32 v14, 4, v0")
    a("v_xor_b32 v14, v14, v13")
    a("v_add_u32 v15, s45, v12")
    a("v_lshlrev_b32 v15, 11, v15")
    a(f"v_lshl_add_u32 v{XO}, v14, 4, v15")
    a(f"v_xor_b32 v{XO + 1}, 64, v{XO}")
    a(f"v_add_u32 v{XO + 1}, {16384 - 1024}, v{XO + 1}")
    a(f"v_add_u32 v{XO + 2}, {2 * (16384 - 1024)}, v{XO}")
    a(f"v_add_u32 v{XO + 3}, {2 * (16384 - 1024)}, v{XO + 1}")
    a("s_lshl_b32 s45, s44, 12")
    a("s_mul_i32 s48, s44, 98304")
    a("s_lshl_b32 s46, s34, 7")
    a("s_add_u32 s48, s48, s46")
    for i in range(3):
        if i:
            a(f"v_add_u32 v14, {64 * i}, v0")
        src = "v14" if i else "v0"
        a(f"v_mul_u32_u24 v15, 2731, {src}")
        a("v_lshrrev_b32 v15, 16, v15")
        a("v_mul_u32_u24 v16, 24, v15")
        a(f"v_sub_u32 v16, {src}, v16")
        a("v_bfe_u32 v18, v15, 1, 1")
        a("v_lshlrev_b32 v18, 2, v18")
        a("v_xor_b32 v16, v16, v18")
        a("v_lshrrev_b32 v18, 3, v16")
        a("v_and_b32 v16, 7, v16")
        a("v_mul_u32_u24 v15, 6144, v15")
        a("v_lshl_add_u32 v15, v18, 11, v15")
        a("v_lshl_add_u32 v15, v16, 4, v15")
        for ii in (i, i + 3):
            il = ii if ii < 4 else ii - 4
            a(f"s_add_u32 s49, s48, {(8 * 6144 if ii >= 3 else 0) - 1024 * il}")
            a(f"v_add_u32 v{WO + ii}, s49, v15")
    a("s_mul_i32 s43, s44, 6144")
    a("s_add_u32 s43, s43, 16384")
    order = []

    RG = optval("rg", 8)

    def pace(t):
        if t >= 6 and optval("pc", 0):
            a(f"s_nop {optval('pc', 0) - 1}")
            if optval("pc2", 0):
                a(f"s_nop {optval('pc2', 0) - 1}")

    def tile_index(t):
        if "hot" in OPT:
            a(f"s_mov_b32 s42, {t & 1}")
            return
        if RG <= 1:
            a(f"s_mov_b32 s42, {t}")
            return
        a(f"s_add_u32 s42, s56, {t}")
        a(f"s_and_b32 s42, s42, {RG - 1}")
        if t >= RG:
            a(f"s_add_u32 s42, s42, {t // RG * RG}")

    a("s_lshr_b32 s56, s35, 3")
    a("s_lshl_b32 s56, s56, 1")
    a("s_add_u32 s56, s56, s35")
    if RG == 16:
        a("s_lshl_b32 s56, s56, 1")

    def issue_x(t):
        if "nodma" in OPT and t >= 3:
            order.append(f"x{t}")
            return
        a(f"s_add_u32 m0, s45, {((t + 2) & 3) * 40960}")
        tile_index(t)
        a("s_lshl_b32 s42, s42, 7")
        for i in range(4):
            a(f"buffer_load_dwordx4 v{XO + i}, {S(SX)}, s42 offen offset:{1024 * i} lds")
            pace(t)
        order.append(f"X{t}")

    def issue_w(t):
        if "nodma" in OPT and t >= 3:
            order.append(f"x{t}")
            return
        st = (t + 2) & 3
        a(f"s_add_u32 m0, s43, {st * 40960}")
        tile_index(t)
        a("s_mul_i32 s42, s42, 393216")
        for i in range(4):
            a(f"buffer_load_dwordx4 v{WO + i}, {S(SW)}, s42 offen offset:{1024 * i} lds")
            pace(t)
        a(f"s_add_u32 m0, s43, {st * 40960 + 4096}")
        a("s_nop 0")
        for i in range(4, 6):
            a(f"buffer_load_dwordx4 v{WO + i}, {S(SW)}, s42 offen offset:{1024 * (i - 4)} lds")
        order.append(f"W{t}")

    def vm(x):
        a(x)
        if x.startswith("buffer"):
            order.append("P")

    def cnt(lst):
        return sum({"X": 4, "W": 6, "P": 1, "L": 0, "U": 0, "x": 0}[x[0]] for x in lst)

    def wait_tile(b):
        if "nodma" in OPT and b >= 3:
            return
        last = max(i for i, x in enumerate(order) if x in (f"X{b}", f"W{b}"))
        assert f"X{b}" in order and f"W{b}" in order
        n = cnt(order[last + 1:])
        assert n < 64
        a(f"s_waitcnt vmcnt({n})")

    def later():
        a("s_lshl_b32 s87, s84, 2")
        a("s_add_u32 s87, s87, s44")
        a("s_lshl_b32 s87, s87, 12")
        a(f"s_buffer_load_dword s57, {S(SHK)}, s87")
        a(f"s_mul_i32 s88, s44, {CW}")
        a(f"s_add_u32 s88, s88, {L_R0}")
        a("s_lshl_b32 s80, s35, 2")
        a("s_add_u32 s80, s80, s44")
        a("s_lshl_b32 s80, s80, 6")
        a("v_add_u32 v20, s80, v0")
        a("v_lshrrev_b32 v241, 3, v20")
        a("v_lshlrev_b32 v241, 11, v241")
        a("v_and_b32 v20, 7, v20")
        a("v_lshl_add_u32 v241, v20, 7, v241")
        a("s_lshr_b32 s80, s3, 2")
        a("s_lshl_b32 s80, s80, 10")
        a("v_add_u32 v241, s80, v241")
        a("s_lshl_b32 s80, s35, 6")
        a("s_lshl_b32 s81, s44, 4")
        a("s_add_u32 s80, s80, s81")
        a("v_lshrrev_b32 v20, 1, v0")
        a("v_add_u32 v20, s80, v20")
        a("v_lshlrev_b32 v20, 11, v20")
        a("v_and_b32 v21, 1, v0")
        a("v_lshl_add_u32 v20, v21, 7, v20")
        a("s_lshl_b32 s80, s3, 8")
        a("v_add_u32 v20, s80, v20")
        a("v_lshlrev_b32 v21, 7, v0")
        a("v_cmp_gt_u32 vcc, 32, v0")
        a("s_nop 1")
        a("v_cndmask_b32 v242, v240, v20, vcc")
        a("v_cndmask_b32 v243, v240, v21, vcc")
        a("v_lshrrev_b32 v20, 3, v0")
        a("v_and_b32 v21, 7, v0")
        a("s_lshl_b32 s80, s35, 6")
        a("s_lshl_b32 s81, s3, 2")
        a("s_add_u32 s81, s81, s44")
        a("s_lshl_b32 s81, s81, 5")
        a("v_lshlrev_b32 v22, 3, v20")
        a("v_add_u32 v22, s80, v22")
        a("v_lshlrev_b32 v23, 2, v21")
        a("v_add_u32 v23, s81, v23")
        a(f"v_lshlrev_b32 v{PA}, 12, v23")
        a(f"v_lshl_add_u32 v{PA}, v22, 1, v{PA}")
        a(f"v_lshlrev_b32 v{PA + 1}, 11, v22")
        a(f"v_lshl_add_u32 v{PA + 1}, v23, 1, v{PA + 1}")
        a(f"v_lshlrev_b32 v{PA + 2}, 12, v22")
        a(f"v_lshl_add_u32 v{PA + 2}, v23, 1, v{PA + 2}")
        a("v_bfe_u32 v20, v0, 2, 3")
        a("s_lshl_b32 s80, s44, 3")
        a("v_add_u32 v20, s80, v20")
        a("v_lshlrev_b32 v20, 3, v20")
        a("v_add_u32 v20, s3, v20")
        a("v_lshlrev_b32 v20, 7, v20")
        a("v_and_b32 v21, 3, v0")
        a("v_lshl_add_u32 v20, v21, 3, v20")
        a(f"v_add_u32 v{PA + 3}, 0x{WS_FL + FL_Y2 * 32768 + 32:x}, v20")
        a("s_and_b32 s40, s44, 1")
        a("s_lshr_b32 s41, s44, 1")
        a("s_waitcnt lgkmcnt(0)")
        a("s_lshl_b32 s80, s44, 4")
        a("s_lshr_b64 s[38:39], s[76:77], s80")
        a("s_lshl_b32 s39, s38, 16")
        a("s_lshl_b32 s57, s57, 16")
        a("s_add_u32 s38, s33, s40")
        a("s_sub_u32 s80, s38, 2")
        a("s_max_i32 s80, s80, 0")
        a("v_mov_b32 v20, s80")
        a("v_mov_b32 v21, s34")
        emit_wg_of(a, 190, 20, 21, 22)
        a("v_and_b32 v20, 1, v0")
        a("v_lshl_add_u32 v190, v20, 3, v190")
        a("s_lshl_b32 s80, s41, 4")
        a(f"s_add_u32 s80, s80, 0x{WS_FL + FL_K * 32768:x}")
        a("v_add_u32 v190, s80, v190")
        a(f"v_add_u32 v191, 0x{(FL_V - FL_K) * 32768:x}, v190")
        a("s_lshl_b32 s36, s34, 1")
        a("s_add_u32 s36, s36, s41")
        a("s_lshl_b32 s36, s36, 4")
        a("s_add_u32 s36, s36, s38")
        a("s_lshl_b32 s36, s36, 13")
        a(f"s_add_u32 s36, s36, 0x{WS_KF - 8 * 2048:x}")
        a(f"s_mul_i32 s37, s41, {L_HD}")
        a("s_lshl_b32 s80, s40, 13")
        a("s_add_u32 s37, s37, s80")
        a("s_lshl_b32 s40, s40, 1")
        a("s_add_u32 s40, s40, 1")
        a("v_and_b32 v192, 31, v0")
        a("v_lshlrev_b32 v192, 3, v192")
        a("v_add_u32 v192, s3, v192")
        a("v_lshlrev_b32 v192, 7, v192")
        a("s_lshr_b32 s80, s35, 3")
        a("s_lshl_b32 s80, s80, 3")
        a(f"s_add_u32 s80, s80, 0x{WS_FL + FL_UR * 32768 + 32:x}")
        a("v_add_u32 v192, s80, v192")
        a("s_lshl_b32 s80, s44, 11")
        a(f"s_add_u32 s80, s80, {L_QH}")
        a("v_add_u32 v193, s80, v1")
        a("v_lshlrev_b32 v180, 3, v0")
        a("v_add_u32 v180, s88, v180")
        a("v_and_b32 v181, 1, v0")
        a(f"v_mul_u32_u24 v181, {CPY}, v181")
        a("v_bfe_u32 v182, v0, 1, 1")
        a("v_lshl_add_u32 v181, v182, 4, v181")
        a("v_add_u32 v181, s88, v181")
        a("v_mov_b32 v182, s88")
        a("v_mov_b32 v183, s57")
        for i in range(4):
            a(f"v_mov_b32 v{184 + i}, 0")

    p_setup, p_loads, p_comp, p_stores = p1_lists()
    if "nop1" in OPT:
        p_loads, p_comp, p_stores = p_loads[:1], [], []

    main_a = a
    a = Asm()
    for y in p_setup:
        a(y)
    later()
    setup2 = [x.strip() for x in a.L]
    a = main_a

    def act(x):
        k, arg = x[0], x[1:]
        if k == "X":
            issue_x(int(arg))
        elif k == "W":
            issue_w(int(arg))
        elif k == "T":
            issue_x(int(arg)); issue_w(int(arg))
        elif k == "F":
            t0, n = map(int, arg.split("_"))
            emit_touch_fine(a, 234, 235, 228, t0)
            for y in touch(t0, n, 234, 235, 246):
                vm(y)
        elif k == "C":
            t = int(arg)
            a(f"s_cmp_eq_u32 s58, {t & 3}")
            a("s_cselect_b64 vcc, -1, 0")
            a(f"s_mov_b32 s82, {t * 128}")
            a(f"s_mov_b32 s83, {t * 393216}")
            a("v_cndmask_b32 v238, v240, v245, vcc")
            a("v_cndmask_b32 v239, v240, v244, vcc")
            vm(f"buffer_load_dword v246, v238, {S(SW)}, s83 offen")
            vm(f"buffer_load_dword v247, v239, {S(SX)}, s82 offen")
        elif k == "K":
            r = 242
            if arg:
                a(f"s_cmp_eq_u32 s58, {arg}")
                a("s_cselect_b64 vcc, -1, 0")
                a("s_nop 0")
                a("v_cndmask_b32 v237, v240, v242, vcc"); r = 237
            vm(f"buffer_load_dword v248, v{r}, {S(SK)}, 0 offen")
            vm(f"buffer_load_dword v249, v{r}, {S(SV)}, 0 offen")
        elif k == "P":
            for _ in range(int(arg)):
                if p_loads:
                    vm(p_loads.pop(0))
            if not p_loads:
                order.append("L")
        elif k == "V":
            if "L" in order:
                a(f"s_waitcnt vmcnt({cnt(order[order.index('L') + 1:])})")
                order.remove("L")
            for _ in range(int(arg)):
                if p_comp:
                    a(p_comp.pop(0))
        elif k == "S":
            assert not p_comp and not p_loads
            for y in p_stores:
                vm(y)
            order.append("U")
        elif k == "U":
            a(f"s_waitcnt vmcnt({cnt(order[order.index('U') + 1:])})")
            emit_token_take(a, 172, VZ)
            emit_publish(a, FL_UR, 194, VZ)
            order.append("P")
        elif k == "A":
            emit_attn_setup(a, MASKS_H)
        elif k == "R":
            poll_issue(a, 192, 198)
            order.append("P")
        elif k == "Q":
            vm(f"buffer_load_dword v246, v242, {S(SQ)}, 0 offen")
        elif k == "G":
            vm(f"buffer_load_dword v246, v243, {S(SHK)}, s87 offen")
        elif k == "O":
            vm(f"buffer_load_dword v247, v241, {S(SWO)}, 0 offen")
        elif k == "t":
            vm(f"buffer_load_dwordx2 v[172:173], v{VZ}, {S(SDBG)}, 0 offen{SC}")
        elif k == "b":
            late_setup(a, ts)
            if ts.on:
                order.append("P")
            a("v_mov_b32 v240, 0x80000000")
            a("s_and_b32 s58, s35, 3")
        elif k == "c":
            for _ in range(int(arg)):
                if setup2:
                    a(setup2.pop(0))
        elif k == "H":
            a(f"ds_write_b64 v180, v[184:185] offset:{URO + 4096}")
            a("ds_write_b128 v181, v[184:187]")
            a(f"ds_write_b32 v182, v183 offset:{CPY + 28}")
            for c in range(2):
                a(f"s_add_u32 m0, s88, {32 + c * CPY}")
                a(f"s_add_u32 s80, s87, {2 * c}")
                for kk in range(4):
                    vm(f"buffer_load_dwordx4 v1, {S(SHK)}, s80 offen offset:{1024 * kk} lds")
        elif k == "D":
            emit_poll(a, 192, 32, 198, pre=True)
            ts.stamp(a, 2)
            if ts.on:
                order.append("P")
            a(f"s_add_u32 m0, s88, {URO}")
            a(f"s_add_u32 s80, s87, 0x{WS_UR:x}")
            for kk in range(4):
                vm(f"buffer_load_dwordx4 v1, {S(SWS)}, s80 offen offset:{1024 * kk} {scl()} lds")
        else:
            raise ValueError(x)

    sc = os.environ.get("SCHED") or SCHEDS[optval("sc", 0)]
    sched = sc.split("|")
    assert len(sched) == 18, len(sched)
    a("s_waitcnt lgkmcnt(0)")
    for x in sched[0].split():
        act(x)
    for b in range(0, 17):
        if b < 16:
            wait_tile(b)
        a("s_barrier")
        if "tsb" in OPT:
            ts.stamp(a, 11 + b)
        for x in sched[b + 1].split():
            if x[0] in "XWT":
                assert int(x[1:]) <= b + 3
            act(x)
    ts.stamp(a, 1)
    assert not setup2
    a("s_mov_b32 s46, s88")
    a(f"s_add_u32 s36, s87, 0x{wsy2():x}")

    def c_start():
        a("s_waitcnt vmcnt(0)")
        ts.stamp(a, 3)

    b = Asm()
    emit_attn_setup(b, MASKS_H)
    g2_tile(b)
    wo_addr(b)
    ys = emit_conv(a, {"start": c_start, "extra": [x.strip() for x in b.L]})
    ts.stamp(a, 5)
    a("s_setprio 0")
    a("s_barrier")
    ts.stamp(a, 4)
    a(f"ds_read_b128 {vr(QC, 4)}, v193")
    a(f"ds_read_b128 {vr(QC + 4, 4)}, v193 offset:1024")
    for x in ys:
        a(x)
    YY, OO = 168, 24
    if optval("ph", 0):
        a(f"s_setprio {optval('ph', 0)}")
    blk = wo_early()
    b = Asm()
    b("s_waitcnt vmcnt(0)")
    emit_publish(b, FL_Y2, 194, VZ)
    yb = optval("yb", 2)
    blk[yb] = [x.strip() for x in b.L] + blk.get(yb, [])
    hk = {"blk": blk}
    if "kvs" in OPT:
        hk["mid"] = lambda: a("s_barrier")
    emit_attention(a, ool, hk, MASKS_H)
    ts.stamp(a, 6)
    for i in range(8):
        if i % 2 == 0:
            a(f"s_mov_b32 s80, {4096 * (i >> 1)}")
        a(f"buffer_load_dwordx2 {vr(QQ + 2 * i, 2)}, v{PA + 1}, {S(SQ)}, s80 offen offset:{(i & 1) * 2048}")
    poll_issue(a, PA + 3, 196)

    def y_loads():
        emit_poll(a, PA + 3, 32, 196, pre=True)
        a(f"s_mov_b32 s80, 0x{wsy2():x}")
        for dd in range(4):
            a(f"buffer_load_dwordx4 {vr(YY + 4 * dd, 4)}, v{PA}, {S(SWS)}, s80 offen {scl()}")
            if dd < 3:
                a("s_add_u32 s80, s80, 4096")

    p3 = Asm()
    a, main_a = p3, a
    for i in range(8):
        for dd in range(4):
            ys = YY + 4 * dd + (i >> 1)
            qs = QQ + 2 * i + (dd >> 1)
            a(f"v_and_b32 v4, 0xffff0000, v{ys}" if i & 1 else f"v_lshlrev_b32 v4, 16, v{ys}")
            a(f"v_and_b32 v5, 0xffff0000, v{qs}" if dd & 1 else f"v_lshlrev_b32 v5, 16, v{qs}")
            a(f"v_mul_f32 v{OO + 4 * i + dd}, v4, v5")
        o = OO + 4 * i
        a(f"v_cvt_pk_bf16_f32 v{o}, v{o}, v{o + 1}")
        a(f"v_cvt_pk_bf16_f32 v{o + 1}, v{o + 2}, v{o + 3}")
    a = main_a
    outs = []
    for i in range(8):
        outs += [f"s_mov_b32 s80, {4096 * i}", f"buffer_store_dwordx2 {vr(OO + 4 * i, 2)}, v{PA + 2}, {S(SOUT)}, s80 offen"]

    def gate():
        for x in p3.L:
            a(x.strip())

    if "p3f" in OPT:
        def aft():
            y_loads()
            a("s_waitcnt vmcnt(0)")
            gate()
            for x in outs:
                a(x)
        wo_late(a, ts, 9, aft, True)
        a("s_waitcnt vmcnt(0)")
        lds_flag_set(a, 32, 0, 4)
        ts.stamp(a, 8)
    else:
        wo_late(a, ts, 9, y_loads, True)
        a(f"s_waitcnt vmcnt({(4 if 'hs' in OPT else 2) * (8 - NE)})")
        gate()
        a("s_waitcnt vmcnt(0)")
        lds_flag_set(a, 32, 0, 4)
        ts.stamp(a, 8)
        for x in outs:
            a(x)
    ts.final(a, 10)
    a("s_endpgm")


def gen_fused(a, ts):
    name = NAME + "_kernel"
    kernel_begin(a, name)
    ts.entry(a)
    a("s_cmp_ge_u32 s2, 256")
    a("s_cbranch_scc1 L_end")
    if optval("xj", 0):
        a(f"s_xor_b32 s2, s2, {optval('xj', 0)}")
    for (d, off, size) in SRDS:
        a(f"s_load_dwordx2 s[{d}:{d + 1}], s[0:1], {off}")
    a("s_load_dwordx2 s[36:37], s[0:1], 40")
    a("v_lshrrev_b32 v1, 6, v0")
    a("v_and_b32 v0, 63, v0")
    a("s_and_b32 s3, s2, 7")
    a("v_readfirstlane_b32 s32, v1")
    a("s_lshr_b32 s35, s2, 3")
    a("s_and_b32 s33, s3, 1")
    a("s_lshl_b32 s33, s33, 3")
    a("s_and_b32 s80, s35, 7")
    a("s_add_u32 s33, s33, s80")
    a("s_lshr_b32 s34, s3, 1")
    a("s_lshl_b32 s34, s34, 2")
    a("s_lshr_b32 s80, s35, 3")
    a("s_add_u32 s34, s34, s80")
    if optval("hx", 0):
        a(f"s_xor_b32 s34, s34, {optval('hx', 0)}")
    a("v_lshlrev_b32 v1, 4, v0")
    a(f"v_mov_b32 v{VZ}, 0")
    for (d, off, size) in SRDS[:2]:
        a(f"s_mov_b32 s{d + 2}, 0x{size:x}")
        a(f"s_mov_b32 s{d + 3}, 0x20000")
    a("s_and_b32 s44, s32, 3")
    a("s_mov_b32 s59, 0")
    a("s_cmp_lt_u32 s32, 4")
    a("s_cbranch_scc1 L_M")
    ool = []
    h_path(a, ts, ool)
    a.label("L_M")
    m_path(a, ts, ool)
    for (lf, body, lb) in ool:
        a.label(lf)
        for x in body:
            a(x)
        a(f"s_branch {lb}")
    a.label("L_end")
    a("s_endpgm")
    return name, 256, 102


def build(instrument=False):
    ts = TS(instrument)
    a = Asm()
    a.raw("; fused H3 long-conv | sliding-window attention kernel (generated)")
    a.raw("; @launch grid=(256,1,1) block=(512,1,1) lds=163840")
    a.raw('.amdgcn_target "amdgcn-amd-amdhsa--gfx950"')
    a.raw(".text")
    n, v, s = gen_fused(a, ts)
    a.raw('.section .rodata,"a"')
    kernel_desc(a, n, v, s)
    return a.text()


if __name__ == "__main__":
    out = sys.argv[1] if len(sys.argv) > 1 else f"cdna_kernels/{NAME}.s"
    if len(sys.argv) > 2:
        OPT.update(sys.argv[2].split(","))
    open(out, "w").write(build())
```

```python
import sys, struct, os, re
from gen import Asm, vr, srd, kernel_begin, kernel_desc, MB, NAME
from gf import f32hex
import gf

OPT = set()
WS_KF, WS_VF, WS_UR, WS_OF, WS_Y2, WS_FL = 4 * MB, 8 * MB, 12 * MB, 16 * MB, 20 * MB, 24 * MB
WS_SIZE = 25 * MB
FL_UR, FL_K, FL_Y2, FL_O, FL_V = 0, 1, 2, 3, 4

CPY, URO, CW = 4160, 8320, 12928
L_HD, L_V = 49152, 24576
L_QH = 98304
L_R0 = 106496
L_FL = L_R0 + 4 * CW
SC = " sc1"
SPIN_LIMIT = 1 << 18
SCALE_LOG2E = (32 ** -0.5) * 1.4426950408889634
SX, SW, SWS, SK, SV, SSH, SHK, SWO, SQ, SOUT, SDBG = 4, 8, 12, 16, 20, 24, 28, 60, 64, 68, 72
MASKS_H = [4, 6, 8, 10, 16, 18, 20, 22, 24, 26, 48, 50, 52, 54, 56, 58]
MASKS_M = [4, 6, 16, 18, 20, 22, 24, 26, 28, 30, 58, 76, 92, 94, 96, 98]


WS_TS = 32 * MB


class TS:
    def __init__(self, on):
        self.enabled = on
        self.on = False

    def entry(self, a):
        if self.enabled:
            a("s_memrealtime s[98:99]")
            a("s_memtime s[100:101]")
            a("v_mov_b32 v254, 0")

    def setup(self, a, ws_pair):
        if self.enabled:
            a("v_writelane_b32 v254, s98, 30")

    def stamp(self, a, slot):
        if self.enabled and ("tsmin" not in OPT or slot == 10):
            a("s_memrealtime s[90:91]")
            a("s_waitcnt lgkmcnt(0)")
            a(f"v_writelane_b32 v254, s90, {slot}")
            if "cya" in OPT and slot < 11:
                a("s_memtime s[90:91]")
                a("s_waitcnt lgkmcnt(0)")
                a(f"v_writelane_b32 v254, s90, {slot + 12}")

    def final(self, a, slot):
        if not self.enabled:
            return
        a("s_waitcnt vmcnt(0)")
        self.stamp(a, slot)
        a("s_memtime s[90:91]")
        srd(a, 92, SWS, 4 * MB, WS_TS)
        a("s_lshl_b32 s96, s2, 4")
        a("s_add_u32 s96, s96, s32")
        a("s_lshl_b32 s96, s96, 8")
        a("s_waitcnt lgkmcnt(0)")
        a("s_sub_u32 s90, s90, s100")
        a("v_writelane_b32 v254, s90, 31")
        a("v_mov_b32 v255, 0")
        a("v_lshlrev_b32 v253, 3, v0")
        a("s_mov_b32 exec_hi, 0")
        a("buffer_store_dwordx2 v[254:255], v253, s[92:95], s96 offen")


def emit_wg_of(a, vdst, vrb, vhp, t):
    if optval("hx", 0):
        a(f"v_xor_b32 v{vhp}, {optval('hx', 0)}, v{vhp}")
    gf.emit_wg_of(a, vdst, vrb, vhp, t)


def S(n):
    return f"s[{n}:{n + 3}]"


SCHEDS = {
    0: "T0 X1 b c60 | W1 X2 P7 | W2 T3 P7 | T4 T5 P7 c40 | T6 c40 G | T7 c40 t | T8 V90 | T9 V90 | T10 V90 S | T11"
       " | T12 U | T13 | T14 | T15 O | R | H | E | D",
}
BEST = "we3,yb3,cp,cq50,slb12,ya,ft30,sp,ye7,prM322110000,prH333221101,pe3,pv1"


def wsy2():
    return WS_UR if "ya" in OPT else WS_Y2


def scl():
    return "sc1" if "ldsc1" in OPT else ""


def optval(prefix, default):
    for o in OPT:
        if o.startswith(prefix) and o[len(prefix):].lstrip("-").isdigit():
            return int(o[len(prefix):])
    return default


def poll_issue(a, voff, tmp):
    a(f"buffer_load_dwordx2 {vr(tmp, 2)}, v{voff}, {S(SWS)}, 0 offen{SC}")


def emit_poll(a, voff, nlanes, tmp, pre=False, sleep=0):
    lp, ck, dn = a.newlabel("poll"), a.newlabel("pollc"), a.newlabel("polld")
    mask = (1 << nlanes) - 1
    a(f"s_mov_b32 s80, 0x{mask & 0xffffffff:x}")
    a(f"s_mov_b32 s81, 0x{mask >> 32:x}")
    a("s_mov_b32 s85, 0")
    if not pre:
        a.label(lp)
        poll_issue(a, voff, tmp)
        a("s_waitcnt vmcnt(0)")
        a(f"v_cmp_eq_u64 vcc, s[78:79], {vr(tmp, 2)}")
        a("s_add_u32 s85, s85, 1")
        a("s_and_b64 s[82:83], vcc, s[80:81]")
        a("s_cmp_eq_u64 s[82:83], s[80:81]")
        a(f"s_cbranch_scc1 {dn}")
        if sleep:
            a(f"s_sleep {sleep}")
        a(f"s_cmp_lt_u32 s85, 0x{SPIN_LIMIT:x}")
        a(f"s_cbranch_scc1 {lp}")
        a.label(dn)
    else:
        a.label(ck)
        a("s_waitcnt vmcnt(0)")
        a(f"v_cmp_eq_u64 vcc, s[78:79], {vr(tmp, 2)}")
        a("s_add_u32 s85, s85, 1")
        a("s_and_b64 s[82:83], vcc, s[80:81]")
        a("s_cmp_eq_u64 s[82:83], s[80:81]")
        a(f"s_cbranch_scc1 {dn}")
        if sleep:
            a(f"s_sleep {sleep}")
        poll_issue(a, voff, tmp)
        a(f"s_cmp_lt_u32 s85, 0x{SPIN_LIMIT:x}")
        a(f"s_cbranch_scc1 {ck}")
        a("s_waitcnt vmcnt(0)")
        a.label(dn)


def emit_publish(a, kind, t0, vz):
    a(f"s_add_u32 s80, s89, 0x{WS_FL + kind * 32768:x}")
    a(f"v_mov_b32 v{t0}, s78")
    a(f"v_mov_b32 v{t0 + 1}, s79")
    a("s_mov_b64 exec, 1")
    a(f"buffer_store_dwordx2 {vr(t0, 2)}, v{vz}, {S(SWS)}, s80 offen{SC}")
    a("s_mov_b64 exec, -1")


def emit_token_take(a, t0, vz):
    lp, dn = a.newlabel("tok"), a.newlabel("tokd")
    a("s_mov_b32 s85, 0")
    a.label(lp)
    a(f"v_readfirstlane_b32 s78, v{t0}")
    a(f"v_readfirstlane_b32 s79, v{t0 + 1}")
    a("s_add_u32 s85, s85, 1")
    a("s_cmp_lg_u64 s[78:79], 0")
    a(f"s_cbranch_scc1 {dn}")
    a(f"buffer_load_dwordx2 {vr(t0, 2)}, v{vz}, {S(SDBG)}, 0 offen{SC}")
    a("s_waitcnt vmcnt(0)")
    a(f"s_cmp_lt_u32 s85, 0x{SPIN_LIMIT:x}")
    a(f"s_cbranch_scc1 {lp}")
    a.label(dn)


def emit_wline(a, dst, idx, hi, t):
    a(f"v_mul_u32_u24 v{dst}, 5462, v{idx}")
    a(f"v_lshrrev_b32 v{dst}, 16, v{dst}")
    a(f"v_mul_u32_u24 v{t}, 12, v{dst}")
    a(f"v_sub_u32 v{t}, v{idx}, v{t}")
    if hi is not None:
        a(f"v_lshl_add_u32 v{dst}, v{hi}, 6, v{dst}")
    a(f"v_mul_u32_u24 v{dst}, 6144, v{dst}")
    a(f"v_lshrrev_b32 v{t + 1}, 2, v{t}")
    a(f"v_lshl_add_u32 v{dst}, v{t + 1}, 11, v{dst}")
    a(f"v_and_b32 v{t}, 3, v{t}")
    a(f"v_lshl_add_u32 v{dst}, v{t}, 7, v{dst}")
    a("s_lshr_b32 s83, s3, 1")
    a("s_lshl_b32 s83, s83, 9")
    a(f"v_add_u32 v{dst}, s83, v{dst}")


def emit_touch_fine(a, VTX, VTW, t, t0):
    a(f"v_and_b32 v{t}, 7, v0")
    a(f"v_lshrrev_b32 v{t + 1}, 3, v0")
    a(f"s_add_u32 s82, s59, {t0}")
    a(f"v_add_u32 v{t + 1}, s82, v{t + 1}")
    a(f"v_and_b32 v{t + 1}, 15, v{t + 1}")
    a("s_lshl_b32 s82, s35, 2")
    a("s_add_u32 s82, s82, s44")
    a("s_lshl_b32 s81, s82, 3")
    a("s_and_b32 s83, s3, 1")
    a("s_lshl_b32 s83, s83, 10")
    a("s_add_u32 s81, s81, s83")
    a(f"v_add_u32 v{t + 2}, s81, v{t}")
    a(f"v_lshlrev_b32 v{t + 2}, 11, v{t + 2}")
    a(f"v_lshl_add_u32 v{VTX}, v{t + 1}, 7, v{t + 2}")
    a("s_mul_i32 s82, s82, 6")
    a(f"v_add_u32 v{t + 2}, s82, v{t}")
    emit_wline(a, VTW, t + 2, t + 1, t + 3)
    a(f"v_mov_b32 v{t + 4}, 0x80000000")
    a(f"v_cmp_gt_u32 vcc, 6, v{t}")
    a("s_nop 1")
    a(f"v_cndmask_b32 v{VTW}, v{t + 4}, v{VTW}, vcc")


def emit_touch_coarse(a, VTX, VTW, t):
    a("s_lshr_b32 s82, s35, 2")
    a("s_lshl_b32 s82, s82, 2")
    a("s_add_u32 s82, s82, s44")
    a("s_lshl_b32 s81, s82, 5")
    a("s_and_b32 s83, s3, 1")
    a("s_lshl_b32 s83, s83, 10")
    a("s_add_u32 s81, s81, s83")
    a(f"v_add_u32 v{t + 2}, s81, v0")
    a(f"v_lshlrev_b32 v{VTX}, 11, v{t + 2}")
    a("s_mul_i32 s82, s82, 24")
    a(f"v_add_u32 v{t + 2}, s82, v0")
    emit_wline(a, VTW, t + 2, None, t + 3)
    a(f"v_mov_b32 v{t + 4}, 0x80000000")
    a("v_cmp_gt_u32 vcc, 32, v0")
    a("s_nop 1")
    a(f"v_cndmask_b32 v{VTX}, v{t + 4}, v{VTX}, vcc")
    a("v_cmp_gt_u32 vcc, 24, v0")
    a("s_nop 1")
    a(f"v_cndmask_b32 v{VTW}, v{t + 4}, v{VTW}, vcc")


def touch(t0, nt, VTX, VTW, dst):
    m = (1 << (8 * nt)) - 1
    out = []
    if nt < 8:
        out += [f"s_mov_b32 exec_lo, 0x{m & 0xffffffff:x}", f"s_mov_b32 exec_hi, 0x{m >> 32:x}"]
    out += [f"buffer_load_dword v{dst}, v{VTW}, {S(SW)}, 0 offen",
            f"buffer_load_dword v{dst + 1}, v{VTX}, {S(SX)}, 0 offen"]
    if nt < 8:
        out.append("s_mov_b64 exec, -1")
    return out


QC = 224
SBUF = [8, 24, 40]
KB = [56, 64, 72]
VB = [80, 88, 160]
OA = 96
CM = 200
LS = 128
ONE = 240
PM = 232
P0 = 144
VM, VM2, VT, VNEG, VK, VK0 = 152, 153, 154, 244, 245, 246
YP = 176
QQ, PA = 112, 216


def emit_attn_setup(a0, MASKS, t=4):
    a = lambda x: a0(re.sub(r"\bv([456])\b", lambda m: f"v{int(m.group(1)) - 4 + t}", x))
    a("v_and_b32 v4, 31, v0")
    a("v_lshrrev_b32 v5, 5, v0")
    a("v_lshlrev_b32 v5, 2, v5")
    a("v_sub_u32 v4, v4, v5")
    for r in range(16):
        a(f"v_cmp_le_i32 s[{MASKS[r]}:{MASKS[r] + 1}], {8 * (r >> 2) + (r & 3)}, v4")
    a(f"v_mov_b32 v{VNEG}, 0xf149f2ca")
    a("v_mov_b32 v4, 0xffff")
    a("v_mov_b32 v5, 0xffff0000")
    for j in range(8):
        a(f"v_cndmask_b32 v{PM + j}, 0, v4, s[{MASKS[2 * j]}:{MASKS[2 * j] + 1}]")
        a(f"v_cndmask_b32 v6, 0, v5, s[{MASKS[2 * j + 1]}:{MASKS[2 * j + 1] + 1}]")
        a(f"v_or_b32 v{PM + j}, v{PM + j}, v6")
    a("v_lshrrev_b32 v4, 4, v0")
    a("v_lshrrev_b32 v5, 2, v0")
    a("v_xor_b32 v4, v4, v5")
    a("v_and_b32 v4, 1, v4")
    a("v_cmp_eq_u32 vcc, 0, v4")
    a("v_mov_b32 v5, 0x3f803f80")
    for i in range(4):
        a(f"v_cndmask_b32 v{ONE + i}, 0, v5, vcc")
    if "sz" in OPT:
        for r in range(16):
            a(f"v_mov_b32 v{CM + r}, 0")
    a(f"s_mul_i32 s42, s41, {L_HD}")
    a("s_lshl_b32 s43, s40, 11")
    a("s_add_u32 s42, s42, s43")
    a(f"v_add_u32 v{VK}, s42, v1")
    a("s_lshl_b32 s45, s33, 2")
    a("s_add_u32 s45, s45, s40")
    a("s_sub_u32 s46, 8, s45")
    a("s_cmp_lt_u32 s45, 8")
    a("s_cselect_b32 s46, s46, 0")
    a("s_cselect_b32 s43, 0x4000, 0")
    a(f"v_add_u32 v{VK0}, s43, v{VK}")
    a("s_lshl_b32 s47, s45, 5")
    a("s_lshl_b32 s42, s34, 1")
    a("s_add_u32 s47, s47, s42")
    a("s_add_u32 s47, s47, s41")
    a("s_lshl_b32 s47, s47, 11")
    a(f"s_add_u32 s47, s47, 0x{WS_OF:x}")


def prio_plan(role):
    for o in OPT:
        if o.startswith("pr" + role):
            d = o[3:]
            out, last = {}, None
            for k, c in zip([0, 2, 3, 4, 5, 6, 7, 8, 9], d):
                if c != last or k == 9:
                    out[k] = int(c)
                last = c
            return out
    return {}


def emit_attention(a, ool, hooks, MASKS):
    order = [8, 0, 7, 6, 5, 4, 3, 2, 1]

    def hook(k):
        if k in hooks:
            hooks[k]()

    def kread(i):
        rel, b = order[i % 9], KB[i % 3]
        return [f"ds_read_b128 {vr(b, 4)}, v{VK} offset:{rel * 2048}",
                f"ds_read_b128 {vr(b + 4, 4)}, v{VK} offset:{rel * 2048 + 1024}"]

    def vread(i):
        rel, b = order[i], VB[i % 3]
        ad = VK0 if rel == 0 else VK
        return [f"ds_read_b128 {vr(b, 4)}, v{ad} offset:{L_V + rel * 2048}",
                f"ds_read_b128 {vr(b + 4, 4)}, v{ad} offset:{L_V + rel * 2048 + 1024}"]

    def smf(i, c):
        s, k = vr(SBUF[i % 3], 16), KB[i % 3]
        return [f"v_mfma_f32_32x32x16_bf16 {s}, {vr(k, 4)}, {vr(QC, 4)}, {c}",
                f"v_mfma_f32_32x32x16_bf16 {s}, {vr(k + 4, 4)}, {vr(QC + 4, 4)}, {s}"]

    def merge():
        lf, lb = a.newlabel("mneg"), a.newlabel("mback")
        a("s_cmp_gt_u32 s46, 0")
        a(f"s_cbranch_scc1 {lf}")
        for r in range(16):
            a(f"v_cndmask_b32 v{SBUF[1] + r}, v{SBUF[1] + r}, v{SBUF[0] + r}, s[{MASKS[r]}:{MASKS[r] + 1}]")
        a.label(lb)
        ool.append((lf, [f"v_cndmask_b32 v{SBUF[1] + r}, v{VNEG}, v{SBUF[0] + r}, s[{MASKS[r]}:{MASKS[r] + 1}]"
                         for r in range(16)], lb))

    def maxblk(i):
        s = SBUF[i % 3]
        ta, tb = (VM, VM2) if i == 1 else (VT, VM2)
        if i >= 2:
            a(f"s_cmp_le_u32 s46, {order[i]}")
            a("s_cselect_b64 vcc, -1, 0")
        a(f"v_max3_f32 v{ta}, v{s}, v{s + 1}, v{s + 2}")
        a(f"v_max3_f32 v{tb}, v{s + 3}, v{s + 4}, v{s + 5}")
        for x in range(5):
            t = (ta, tb)[x & 1]
            a(f"v_max3_f32 v{t}, v{s + 6 + 2 * x}, v{s + 7 + 2 * x}, v{t}")
        a(f"v_max_f32 v{ta}, v{ta}, v{tb}")
        if i >= 2:
            a(f"v_cndmask_b32 v{ta}, v{VNEG}, v{ta}, vcc")
            a(f"v_max_f32 v{VM}, v{VM}, v{ta}")

    def otouch():
        a("v_lshlrev_b32 v156, 7, v0")
        a("s_mov_b64 exec, 0xffff")
        a(f"buffer_load_dword v157, v156, {S(SWS)}, s47 offen")
        a("s_mov_b64 exec, -1")

    def rowmax_end():
        a(f"v_mov_b32 v{VT}, v{VM}")
        a("s_nop 1")
        a(f"v_permlane32_swap_b32 v{VM}, v{VT}")
        a("s_nop 1")
        a(f"v_max_f32 v{VM}, v{VM}, v{VT}")

    def pass1():
        for x in kread(0) + kread(1):
            a(x)
        for i in range(9):
            a("s_waitcnt lgkmcnt(2)")
            for x in smf(i, "0") + kread(i + 2):
                a(x)
            if i == 2:
                merge()
            if i >= 2:
                maxblk(i - 1)
        a("s_nop 3")
        maxblk(8)
        rowmax_end()

    if 0 in hooks.get("prio", {}):
        a(f"s_setprio {hooks['prio'][0]}")
    SP, SZ = "sp" in OPT, "sz" in OPT
    if SP:
        lst, lfb, lhm = a.newlabel("astart"), a.newlabel("afall"), a.newlabel("ahave")
        main_a, sub = a, Asm()
        sub.uid = main_a.uid + 1000
        a = sub
        pass1()
        if SZ:
            for r in range(16):
                a(f"v_sub_f32 v{CM + r}, 0, v{VM}")
        a("s_waitcnt lgkmcnt(0)")
        a("s_mov_b32 s39, 1")
        main_a.uid = sub.uid
        a = main_a
        ool.append((lfb, [x.strip() for x in sub.L], lst))
        a("s_mov_b32 s39, 0")
        a.label(lst)
        for x in kread(0) + kread(1) + kread(2) + vread(0) + vread(1):
            a(x)
        if not SZ:
            a("s_waitcnt lgkmcnt(8)")
            for x in smf(0, "0"):
                a(x)
            a("s_waitcnt lgkmcnt(6)")
            for x in smf(1, "0") + kread(3):
                a(x)
            a("s_nop 7")
            a("s_nop 7")
            merge()
            a("s_cmp_lg_u32 s39, 0")
            a(f"s_cbranch_scc1 {lhm}")
            maxblk(1)
            rowmax_end()
            a.label(lhm)
    else:
        pass1()
    if not SZ:
        for r in range(16):
            a(f"v_sub_f32 v{CM + r}, 0, v{VM}")
    hook("mid")
    cm, o, ls = vr(CM, 16), vr(OA, 16), vr(LS, 4)

    def pv(i):
        s = SBUF[i % 3]
        if i == 1:
            return [f"v_mfma_f32_32x32x16_bf16 {o}, {vr(VB[0], 4)}, {vr(s + 8, 4)}, 0",
                    f"v_mfma_f32_16x16x32_bf16 {ls}, {vr(ONE, 4)}, {vr(s, 4)}, 0",
                    f"v_mfma_f32_32x32x16_bf16 {o}, {vr(VB[0] + 4, 4)}, {vr(s + 12, 4)}, {o}",
                    f"v_mfma_f32_16x16x32_bf16 {ls}, {vr(ONE, 4)}, {vr(s + 4, 4)}, {ls}",
                    f"v_mfma_f32_32x32x16_bf16 {o}, {vr(VB[1], 4)}, {vr(P0, 4)}, {o}",
                    f"v_mfma_f32_32x32x16_bf16 {o}, {vr(VB[1] + 4, 4)}, {vr(P0 + 4, 4)}, {o}"]
        v = VB[i % 3]
        return [f"v_mfma_f32_32x32x16_bf16 {o}, {vr(v, 4)}, {vr(s, 4)}, {o}",
                f"v_mfma_f32_16x16x32_bf16 {ls}, {vr(ONE, 4)}, {vr(s, 4)}, {ls}",
                f"v_mfma_f32_32x32x16_bf16 {o}, {vr(v + 4, 4)}, {vr(s + 4, 4)}, {o}",
                f"v_mfma_f32_16x16x32_bf16 {ls}, {vr(ONE, 4)}, {vr(s + 4, 4)}, {ls}"]

    def valu(i):
        s = SBUF[i % 3]
        return [(f"v_exp_f32 v{s + r}, v{s + r}", 8) for r in range(16)] + \
               [(f"v_cvt_pk_bf16_f32 v{s + j}, v{s + 2 * j}, v{s + 2 * j + 1}", 4) for j in range(8)]

    def weave(ms, vs):
        vs = list(vs)
        for m in ms:
            a(m)
            need = (32 if "32x32" in m else 16) - 8
            while vs and need > 0:
                x, c = vs.pop(0)
                a(x)
                need -= c
        for x, c in vs:
            a(x)

    fin = a.newlabel("afin")
    if SZ:
        for i in range(3):
            a(f"s_waitcnt lgkmcnt({8 - 2 * i})")
            for x in smf(i, cm):
                a(x)
        for x in kread(3):
            a(x)
        merge()
    elif SP:
        a("s_waitcnt lgkmcnt(6)")
        for x in smf(2, cm):
            a(x)
        for r in range(16):
            a(f"v_sub_f32 v{SBUF[1] + r}, v{SBUF[1] + r}, v{VM}")
    else:
        for x in kread(2) + vread(0) + vread(1):
            a(x)
        a("s_waitcnt lgkmcnt(6)")
        for x in smf(0, cm) + smf(1, cm):
            a(x)
        a("s_waitcnt lgkmcnt(4)")
        for x in smf(2, cm) + kread(3):
            a(x)
        merge()
    s = SBUF[1]
    for x, c in valu(1):
        a(x)
    for j in range(8):
        a(f"v_and_b32 v{s + 8 + j}, v{s + j}, v{PM + j}")
    for j in range(8):
        a(f"v_xor_b32 v{P0 + j}, v{s + j}, v{s + 8 + j}")
    blk = hooks.get("blk", {})
    for i in range(2, 9):
        ex = a.newlabel("aexit")
        a("s_waitcnt lgkmcnt(0)")
        a(f"s_cmp_gt_u32 s46, {order[i]}")
        a(f"s_cbranch_scc1 {ex}")
        ool.append((ex, pv(i - 1) + [x for k in range(i, 9) for x in blk.get(k, [])], fin))
        if i in hooks.get("prio", {}):
            a(f"s_setprio {hooks['prio'][i]}")
        for x in blk.get(i, []):
            a(x)
        for x in vread(i) + (kread(i + 2) if i + 2 < 9 else []):
            a(x)
        weave((smf(i + 1, cm) if i + 1 < 9 else []) + pv(i - 1), valu(i))
    a("s_waitcnt lgkmcnt(0)")
    for x in pv(8):
        a(x)
    a.label(fin)
    if 9 in hooks.get("prio", {}):
        a(f"s_setprio {hooks['prio'][9]}")
    hook("end")
    a("s_nop 7")
    a("s_nop 3")
    a(f"v_rcp_f32 v{VT}, v{LS}")
    if SP:
        lok = a.newlabel("aok")
        a(f"v_mul_f32 v{VM2}, 0, v{OA}")
        for r in range(1, 16):
            a(f"v_fmac_f32 v{LS if r & 1 else VM2}, 0, v{OA + r}")
        a(f"v_add_f32 v{VM2}, v{VM2}, v{LS}")
        if SZ:
            a(f"v_add_f32 v{VM2}, v{VM2}, v{VT}")
        a(f"v_cmp_gt_f32 vcc, 0x{0x3f800000 + (optval('thr', 30) << 23):x}, v{VM2}")
        a("s_cmp_lg_u32 s39, 0")
        a(f"s_cbranch_scc1 {lok}")
        a("s_cmp_eq_u64 vcc, -1")
        a(f"s_cbranch_scc0 {lfb}")
        a.label(lok)
    else:
        a("s_nop 1")
    for r in range(16):
        a(f"v_mul_f32 v{OA + r}, v{OA + r}, v{VT}")
    for j in range(8):
        a(f"v_cvt_pk_bf16_f32 v{OA + j}, v{OA + 2 * j}, v{OA + 2 * j + 1}")
    a(f"buffer_store_dwordx4 {vr(OA, 4)}, v1, {S(SWS)}, s47 offen{SC}")
    a(f"buffer_store_dwordx4 {vr(OA + 4, 4)}, v1, {S(SWS)}, s47 offen offset:1024{SC}")


def emit_conv(a, hooks):
    ACC, FB = 8, [40, 104]
    VA, VBB, VEB, VSO = 168, 172, 173, 174
    a("v_and_b32 v2, 15, v0")
    a("v_lshrrev_b32 v3, 4, v0")
    a("v_add_u32 v4, 1, v2")
    a("v_and_b32 v5, 1, v4")
    a("v_sub_u32 v4, v4, v5")
    a("v_lshl_add_u32 v4, v3, 3, v4")
    a("v_lshlrev_b32 v4, 1, v4")
    a(f"v_mul_u32_u24 v5, {CPY}, v5")
    a(f"v_add3_u32 v{VA}, v4, v5, s46")
    for i in range(1, 4):
        a(f"v_add_u32 v{VA + i}, {1024 * i}, v{VA}")
    a("v_lshlrev_b32 v4, 5, v2")
    a("v_lshlrev_b32 v5, 4, v3")
    a(f"v_sub_u32 v{VBB}, v5, v4")
    a(f"v_add_u32 v{VBB}, {URO + 480}, v{VBB}")
    a(f"v_add_u32 v{VBB}, s46, v{VBB}")
    a("v_lshlrev_b32 v5, 3, v3")
    a(f"v_add_u32 v{VSO}, v4, v5")
    a(f"v_sub_u32 v{VEB}, {URO + 504}, v{VSO}")
    a(f"v_add_u32 v{VEB}, s46, v{VEB}")

    def creads(j, buf):
        f = FB[buf]
        out = []
        for q in range(8):
            o = (q & 1) * 128 + 16 * j
            va = VA + (q >> 1)
            out.append(f"ds_read2_b32 {vr(f + 4 * q, 2)}, v{va} offset0:{o} offset1:{o + 1}")
            out.append(f"ds_read2_b32 {vr(f + 4 * q + 2, 2)}, v{va} offset0:{o + 2} offset1:{o + 3}")
            out.append(f"ds_read_b128 {vr(f + 32 + 4 * q, 4)}, v{VBB} offset:{512 * (7 - q) + 64 * j}")
        return out

    pairs = [(q, dl) for q in range(8) for dl in range(8 - q)]
    pairs.sort(key=lambda x: (max(x[0], x[1]), x[0] + x[1], x[0]))
    seq, rest = [], list(pairs)
    while rest:
        pick = next((p for p in rest if all(p[0] + p[1] != s[0] + s[1] for s in seq[-2:])), rest[0])
        rest.remove(pick)
        seq.append(pick)

    def cmfmas(j, buf):
        f = FB[buf]
        seen, out = set(), []
        for (q, dl) in seq:
            nt = q + dl
            d = vr(ACC + 4 * nt, 4)
            c = "0" if (j == 0 and nt not in seen) else d
            seen.add(nt)
            out.append(f"v_mfma_f32_16x16x32_bf16 {d}, {vr(f + 4 * q, 4)}, {vr(f + 32 + 4 * dl, 4)}, {c}")
        return out

    extra = list(hooks.get("extra", []))
    if "start" in hooks:
        hooks["start"]()
    for i, r in enumerate(creads(0, 0)):
        a(r)
        if i % 12 == 11:
            a("s_waitcnt lgkmcnt(4)")
    for j in range(8):
        m = cmfmas(j, j & 1)
        r = creads(j + 1, (j + 1) & 1) if j < 7 else \
            [f"ds_read_b64 {vr(FB[0] + 2 * nt, 2)}, v{VEB} offset:{512 * (7 - nt)}" for nt in range(8)]
        a("s_waitcnt lgkmcnt(0)")
        ri = 0
        if "cnolds" in OPT and j < 7:
            r = []
        for i, mm in enumerate(m):
            a(mm if "cnomfma" not in OPT else "s_nop 3")
            if ri < len(r):
                a(r[ri]); ri += 1
            if j >= 1 and extra:
                a(extra.pop(0))
        assert ri == len(r)
    a("s_nop 7")
    a("s_waitcnt lgkmcnt(0)")
    stores = []
    for nt in range(8):
        k0, k1 = FB[0] + 2 * nt, FB[0] + 2 * nt + 1
        t = FB[0] + 16 + 4 * (nt & 1)
        ac = ACC + 4 * nt
        a(f"v_and_b32 v{t}, 0xffff0000, v{k1}")
        a(f"v_lshlrev_b32 v{t + 1}, 16, v{k1}")
        a(f"v_and_b32 v{t + 2}, 0xffff0000, v{k0}")
        a(f"v_lshlrev_b32 v{t + 3}, 16, v{k0}")
        for e in range(4):
            a(f"v_fmac_f32 v{ac + e}, s39, v{t + e}")
        a(f"v_cvt_pk_bf16_f32 v{YP + 2 * nt}, v{ac}, v{ac + 1}")
        a(f"v_cvt_pk_bf16_f32 v{YP + 2 * nt + 1}, v{ac + 2}, v{ac + 3}")
        st = f"buffer_store_dwordx2 {vr(YP + 2 * nt, 2)}, v{VSO}, {S(SWS)}, s36 offen offset:{512 * nt}{SC}"
        if "yearly" in OPT:
            a(st)
        else:
            stores.append(st)
    return stores


def emit_lds_wait(a, vaddr, off, t):
    lp, dn = a.newlabel("lw"), a.newlabel("lwd")
    a("s_mov_b32 s85, 0")
    a.label(lp)
    a(f"ds_read_b128 {vr(t, 4)}, v{vaddr} offset:{off}")
    a("s_waitcnt lgkmcnt(0)")
    a(f"v_and_b32 v{t}, v{t}, v{t + 1}")
    a(f"v_and_b32 v{t + 2}, v{t + 2}, v{t + 3}")
    a(f"v_and_b32 v{t}, v{t}, v{t + 2}")
    a("s_add_u32 s85, s85, 1")
    a(f"v_readfirstlane_b32 s80, v{t}")
    a("s_nop 1")
    a("s_cmp_lg_u32 s80, 0")
    a(f"s_cbranch_scc1 {dn}")
    a(f"s_cmp_lt_u32 s85, 0x{SPIN_LIMIT:x}")
    a(f"s_cbranch_scc1 {lp}")
    a.label(dn)


def p1_lists():
    KK, VV, WR = 124, 146, 162
    AK, AH, AS, AO = 174, 175, 176, 177
    KF_, WF_, RS_, TT, PO = 12, 56, 72, 104, 108
    soffs = ["0", "s50", "s51", "s52"]
    setup, loads, comp, stores = [], [], [], []
    a = setup.append
    a("v_lshrrev_b32 v24, 3, v0")
    a("v_and_b32 v25, 7, v0")
    a("s_lshl_b32 s80, s35, 6")
    a("s_lshl_b32 s81, s3, 2")
    a("s_add_u32 s81, s81, s44")
    a("s_lshl_b32 s81, s81, 5")
    a("v_lshlrev_b32 v24, 3, v24")
    a("v_add_u32 v24, s80, v24")
    a("v_lshlrev_b32 v25, 2, v25")
    a("v_add_u32 v25, s81, v25")
    a(f"v_lshlrev_b32 v{AK}, 11, v24")
    a(f"v_lshl_add_u32 v{AK}, v25, 1, v{AK}")
    a("s_mov_b32 s50, 4096")
    a("s_mov_b32 s51, 8192")
    a("s_mov_b32 s52, 12288")
    a(f"v_subrev_u32 v{AH}, 6144, v{AK}")
    a("v_mov_b32 v26, 0x80000000")
    a("v_cmp_gt_u32 vcc, 3, v24")
    a(f"v_lshlrev_b32 v{AO}, 12, v25")
    a("v_sub_u32 v24, 2040, v24")
    a(f"v_cndmask_b32 v{AH}, v{AH}, v26, vcc")
    a(f"v_lshlrev_b32 v{AS}, 3, v25")
    a(f"v_lshl_add_u32 v{AO}, v24, 1, v{AO}")
    loads.append(f"buffer_load_dwordx4 {vr(WR, 4)}, v{AS}, {S(SSH)}, 0 offen")
    loads.append(f"buffer_load_dwordx4 {vr(WR + 4, 4)}, v{AS}, {S(SSH)}, 0 offen offset:16")
    for i in range(3):
        loads.append(f"buffer_load_dwordx2 {vr(KK + 2 * i, 2)}, v{AH}, {S(SK)}, {soffs[i >> 1]} offen offset:{(i & 1) * 2048}")
    for i in range(8):
        loads.append(f"buffer_load_dwordx2 {vr(KK + 6 + 2 * i, 2)}, v{AK}, {S(SK)}, {soffs[i >> 1]} offen offset:{(i & 1) * 2048}")
    for i in range(8):
        loads.append(f"buffer_load_dwordx2 {vr(VV + 2 * i, 2)}, v{AK}, {S(SV)}, {soffs[i >> 1]} offen offset:{(i & 1) * 2048}")
    a = comp.append
    for dd in range(4):
        for h2 in range(2):
            src = WR + 2 * dd + h2
            a(f"v_lshlrev_b32 v{WF_ + 4 * dd + 2 * h2}, 16, v{src}")
            a(f"v_and_b32 v{WF_ + 4 * dd + 2 * h2 + 1}, 0xffff0000, v{src}")
    for i in range(11):
        for h2 in range(2):
            src = KK + 2 * i + h2
            a(f"v_lshlrev_b32 v{KF_ + 4 * i + 2 * h2}, 16, v{src}")
            a(f"v_and_b32 v{KF_ + 4 * i + 2 * h2 + 1}, 0xffff0000, v{src}")
    for s_ in range(8):
        for dd in range(4):
            r = RS_ + 4 * s_ + dd
            a(f"v_mul_f32 v{r}, v{KF_ + 4 * (s_ + 3) + dd}, v{WF_ + 4 * dd}")
            for j in range(1, 4):
                a(f"v_fmac_f32 v{r}, v{KF_ + 4 * (s_ + 3 - j) + dd}, v{WF_ + 4 * dd + j}")
    for s_ in range(8):
        for dd in range(4):
            r = RS_ + 4 * s_ + dd
            src = VV + 2 * s_ + (dd >> 1)
            t = TT + (dd & 1)
            a(f"v_and_b32 v{t}, 0xffff0000, v{src}" if dd & 1 else f"v_lshlrev_b32 v{t}, 16, v{src}")
            a(f"v_mul_f32 v{r}, v{r}, v{t}")
    stores.append(f"s_mov_b32 s53, 0x{WS_UR:x}")
    for dd in range(4):
        o = PO + 4 * dd
        for j in range(4):
            stores.append(f"v_cvt_pk_bf16_f32 v{o + j}, v{RS_ + 4 * (7 - 2 * j) + dd}, v{RS_ + 4 * (6 - 2 * j) + dd}")
        stores.append(f"buffer_store_dwordx4 {vr(o, 4)}, v{AO}, {S(SWS)}, s53 offen{SC}")
        if dd < 3:
            stores.append("s_add_u32 s53, s53, 4096")
    return setup, loads, comp, stores


VZ = 252
VLF = 251
SRDS = [(SX, 48, 4 * MB), (SW, 56, 6 * MB), (SWS, 88, WS_SIZE), (SK, 8, 4 * MB), (SV, 16, 4 * MB),
        (SSH, 24, 8192), (SHK, 32, 4 * MB), (SWO, 64, 2 * MB), (SQ, 0, 4 * MB), (SOUT, 72, 8 * MB),
        (SDBG, 80, 256)]


def late_setup(a, ts, helper=True):
    if helper:
        a("s_lshl_b32 s84, s3, 5")
        a("s_add_u32 s84, s84, s35")
        a("s_lshl_b32 s80, s84, 3")
        a("s_load_dwordx2 s[76:77], s[36:37], s80")
    a("s_lshl_b32 s89, s2, 7")
    a("s_lshl_b32 s81, s32, 3")
    a("s_add_u32 s89, s89, s81")
    for (d, off, size) in SRDS[2:]:
        a(f"s_mov_b32 s{d + 2}, 0x{size:x}")
        a(f"s_mov_b32 s{d + 3}, 0x20000")
    a(f"v_mov_b32 v{VLF}, {L_FL}")
    ts.setup(a, SWS)


def g2_tile(a):
    a("s_and_b32 s86, s3, 1")
    a("s_lshl_b32 s86, s86, 1")
    a("s_bfe_u32 s80, s3, 0x10001")
    a("s_add_u32 s86, s86, s80")
    a("s_lshl_b32 s86, s86, 2")
    a("s_and_b32 s80, s35, 3")
    a("s_add_u32 s86, s86, s80")
    a("s_lshr_b32 s42, s3, 2")
    a("s_lshl_b32 s42, s42, 3")
    a("s_lshr_b32 s43, s35, 2")
    a("s_add_u32 s42, s42, s43")


def wo_addr(a0, t=4):
    a = lambda x: a0(re.sub(r"\bv([456])\b", lambda m: f"v{int(m.group(1)) - 4 + t}", x))
    a("v_lshrrev_b32 v4, 3, v0")
    a("v_and_b32 v5, 7, v0")
    a("v_bfe_u32 v6, v0, 4, 1")
    a("v_lshlrev_b32 v6, 2, v6")
    a("v_xor_b32 v6, v6, v5")
    a("v_lshlrev_b32 v250, 11, v4")
    a("v_lshl_add_u32 v250, v6, 4, v250")
    a("s_lshl_b32 s80, s42, 7")
    a("v_add_u32 v250, s80, v250")
    a("s_lshl_b32 s84, s32, 11")
    a("s_lshl_b32 s88, s32, 15")


NE = 3


def wo_part(p, dst, dw=0):
    return [f"s_add_u32 m0, s84, {dst + dw * 2048}",
            f"s_add_u32 s81, s43, {p}",
            "s_and_b32 s81, s81, 7",
            "s_lshl_b32 s81, s81, 18",
            "s_add_u32 s81, s81, s88"] + ([f"s_add_u32 s81, s81, {dw * 32768}"] if dw else []) + [
            f"buffer_load_dwordx4 v250, {S(SWO)}, s81 offen lds",
            f"s_add_u32 s81, s81, {16384 - 1024}",
            f"buffer_load_dwordx4 v250, {S(SWO)}, s81 offen offset:1024 lds"]


def wo_early():
    b0 = optval("we", 3)
    return {b0 + p: wo_part(p, L_R0 + p * 16384) for p in range(NE)}


def wo_late(a, ts, nyoung, after=None, helper=False):
    HS = "hs" in OPT
    if HS:
        lds_flag_set(a, 32, 8, 222)
    a(f"s_waitcnt vmcnt({nyoung})")
    if "o1" in OPT:
        ln = a.newlabel("notlast")
        a("v_mov_b32 v222, 1")
        a("s_mov_b64 exec, 1")
        a(f"ds_add_rtn_u32 v223, v{VLF}, v222 offset:64")
        a("s_mov_b64 exec, -1")
        a("s_waitcnt lgkmcnt(0)")
        a("v_readfirstlane_b32 s80, v223")
        a("s_nop 1")
        a("s_cmp_lg_u32 s80, 7")
        a(f"s_cbranch_scc1 {ln}")
        a("s_andn2_b32 s89, s89, 127")
        emit_publish(a, FL_O, 220, VZ)
        a.label(ln)
    else:
        emit_publish(a, FL_O, 220, VZ)
    if not HS:
        lds_flag_set(a, 32, 8, 222)
    if after:
        after()
    if HS and not helper:
        ts.stamp(a, 7)
        return
    emit_lds_wait(a, VLF, 32, 8)
    emit_lds_wait(a, VLF, 48, 8)
    ts.stamp(a, 7)
    for p in range(NE, 8):
        for x in wo_part(p, (p - NE) * 16384) + (wo_part(p, (p - NE) * 16384, -4) if HS else []):
            a(x)


def lds_flag_set(a, word_s, word_add, t):
    a(f"s_lshl_b32 s80, s{word_s}, 2")
    a(f"v_add_u32 v{t}, s80, v{VLF}")
    a(f"v_mov_b32 v{t + 1}, 1")
    a(f"ds_write_b32 v{t}, v{t + 1} offset:{4 * word_add}")


def m_path(a, ts, ool):
    ACC = 80
    PD = optval('pd', 2)
    FR = [16, 36, 56, 192, 212][:PD + 1]
    NB = PD + 1
    LZ = 'lz' in OPT
    XA, WB, XA2 = 2, 6, 8
    def code_touch():
        lcp = a.newlabel("nocp")
        a("s_cmp_lg_u32 s32, 1")
        a(f"s_cbranch_scc1 {lcp}")
        a("s_mov_b32 exec_hi, 0")
        a("buffer_load_dword v188, v189, s[52:55], s56 offen")
        a("s_mov_b32 exec_hi, -1")
        a.label(lcp)

    CQ = [int(o[2:]) for o in OPT if o.startswith("cq")]
    if "cp" in OPT or CQ:
        a("s_getpc_b64 s[52:53]")
        a.label("L_pc")
        a(f"s_sub_u32 s52, s52, L_pc-{NAME}_kernel")
        a("s_subb_u32 s53, s53, 0")
        a(f"s_mov_b32 s54, L_end-{NAME}_kernel")
        a("s_mov_b32 s55, 0x20000")
        a("s_lshl_b32 s56, s35, 11")
        a("v_lshlrev_b32 v189, 6, v0")
    if "cp" in OPT:
        code_touch()
    SLB = optval("slb", -1)
    if SLB >= 0:
        a("s_lshl_b32 s80, s35, 2")
        a("s_add_u32 s80, s80, s32")
        a("s_mul_i32 s81, s80, 12")
        a("v_add_u32 v184, s81, v0")
        a("v_lshlrev_b32 v184, 11, v184")
        a("s_lshr_b32 s81, s3, 2")
        a("s_lshl_b32 s81, s81, 10")
        a("s_add_u32 s81, s81, 0x300180")
        a("v_add_u32 v184, s81, v184")
        a("s_bitcmp1_b32 s3, 1")
        a("s_cselect_b32 s81, 0, 12")
        a("v_mov_b32 v2, 0x80000000")
        a("v_cmp_gt_u32 vcc, s81, v0")
        a("s_nop 1")
        a("v_cndmask_b32 v184, v2, v184, vcc")

    a("s_waitcnt lgkmcnt(0)")
    late_setup(a, ts, False)
    ltk = a.newlabel("notok")
    a("s_cmp_lg_u32 s89, 0")
    a(f"s_cbranch_scc1 {ltk}")
    a("s_memrealtime s[78:79]")
    a("s_waitcnt lgkmcnt(0)")
    a("s_or_b32 s78, s78, 1")
    a("v_mov_b32 v180, s78")
    a("v_mov_b32 v181, s79")
    a("s_mov_b64 exec, 1")
    a(f"buffer_store_dwordx2 v[180:181], v{VZ}, {S(SDBG)}, 0 offen{SC}")
    a("s_mov_b64 exec, -1")
    a.label(ltk)
    a("s_waitcnt lgkmcnt(0)")
    a("s_and_b32 s44, s32, 1")
    a("s_lshr_b32 s41, s32, 1")
    a("s_lshl_b32 s40, s44, 1")
    a("v_and_b32 v8, 31, v0")
    a("v_lshrrev_b32 v9, 5, v0")
    a("v_lshrrev_b32 v10, 1, v8")
    a("v_and_b32 v10, 7, v10")
    a("v_lshlrev_b32 v11, 7, v8")
    a("s_lshl_b32 s46, s44, 13")
    a("v_add_u32 v11, s46, v11")
    for ks in range(4):
        a(f"v_add_u32 v12, {2 * ks}, v9")
        a("v_xor_b32 v12, v12, v10")
        a(f"v_lshl_add_u32 v{XA + ks}, v12, 4, v11")
    a("v_and_b32 v10, 15, v0")
    a("v_lshrrev_b32 v11, 4, v0")
    a("v_lshrrev_b32 v12, 2, v10")
    a("v_lshl_add_u32 v12, v9, 3, v12")
    a("v_mul_u32_u24 v12, 384, v12")
    a("v_lshrrev_b32 v13, 3, v10")
    a("v_xor_b32 v13, s41, v13")
    a("v_lshl_add_u32 v12, v13, 6, v12")
    a("v_and_b32 v13, 1, v11")
    a("v_lshl_add_u32 v12, v13, 5, v12")
    a("v_and_b32 v13, 3, v10")
    a("v_lshl_add_u32 v12, v13, 3, v12")
    a(f"v_add_u32 v{WB}, 16384, v12")
    a(f"v_add_u32 v{WB + 1}, {16384 + 81920}, v12")
    for ks in range(4):
        a(f"v_add_u32 v{XA2 + ks}, 81920, v{XA + ks}")

    def reads(t, ks, buf):
        st = (t + 2) & 3
        f = FR[buf]
        xa = (XA2 if st >= 2 else XA) + ks
        xo = (st & 1) * 40960
        wb = WB + (st >> 1)
        wo = (st & 1) * 40960 + 16 * ks * 384
        return [f"ds_read_b128 {vr(f, 4)}, v{xa} offset:{xo}",
                f"ds_read_b64_tr_b16 {vr(f + 8, 2)}, v{wb} offset:{wo}",
                f"ds_read_b64_tr_b16 {vr(f + 10, 2)}, v{wb} offset:{wo + 4 * 384}",
                f"ds_read_b128 {vr(f + 4, 4)}, v{xa} offset:{xo + 4096}",
                f"ds_read_b64_tr_b16 {vr(f + 12, 2)}, v{wb} offset:{wo + 128}",
                f"ds_read_b64_tr_b16 {vr(f + 14, 2)}, v{wb} offset:{wo + 128 + 4 * 384}",
                f"ds_read_b64_tr_b16 {vr(f + 16, 2)}, v{wb} offset:{wo + 256}",
                f"ds_read_b64_tr_b16 {vr(f + 18, 2)}, v{wb} offset:{wo + 256 + 4 * 384}"]

    def mfmas(buf, first, last):
        f = FR[buf]
        X = [vr(f, 4), vr(f + 4, 4)]
        W = [vr(f + 8, 4), vr(f + 12, 4), vr(f + 16, 4)]
        out = []
        for part in ((1, 2, 0) if last else (0, 1, 2)):
            for rt in range(2):
                d = vr(ACC + 16 * (2 * part + rt), 16)
                c = "0" if first else d
                if part < 2:
                    out.append(f"v_mfma_f32_32x32x16_bf16 {d}, {W[part]}, {X[rt]}, {c}")
                else:
                    out.append(f"v_mfma_f32_32x32x16_bf16 {d}, {X[rt]}, {W[part]}, {c}")
        return out

    a("s_lshl_b32 s46, s34, 1")
    a("s_add_u32 s46, s46, s41")
    a("s_lshl_b32 s46, s46, 6")
    a("s_lshl_b32 s47, s33, 2")
    a("s_add_u32 s46, s46, s47")
    a("s_add_u32 s48, s46, s40")
    a("s_lshl_b32 s48, s48, 11")
    a(f"s_add_u32 s49, s48, 0x{WS_VF:x}")
    a(f"s_add_u32 s48, s48, 0x{WS_KF:x}")
    a(f"s_mul_i32 s80, s41, {L_HD}")
    a("s_lshl_b32 s81, s44, 12")
    a("s_add_u32 s80, s80, s81")
    a("v_add_u32 v182, s80, v1")
    a("s_lshl_b32 s80, s32, 11")
    a(f"s_add_u32 s80, s80, {L_QH}")
    a("v_add_u32 v183, s80, v1")

    def setup2():
        a("s_add_u32 s38, s33, s44")
        a("s_sub_u32 s80, s38, 2")
        a("s_max_i32 s80, s80, 0")
        a("v_mov_b32 v20, s80")
        a("v_mov_b32 v21, s34")
        emit_wg_of(a, 190, 20, 21, 22)
        a("v_and_b32 v20, 1, v0")
        a("v_lshl_add_u32 v190, v20, 3, v190")
        a("s_lshl_b32 s80, s41, 4")
        a(f"s_add_u32 s80, s80, 0x{WS_FL + FL_K * 32768:x}")
        a("v_add_u32 v190, s80, v190")
        a("s_lshl_b32 s80, s44, 2")
        a("s_add_u32 s36, s46, s80")
        a("s_lshl_b32 s36, s36, 11")
        a(f"s_add_u32 s36, s36, 0x{WS_KF - 8 * 2048:x}")
        a(f"s_mul_i32 s37, s41, {L_HD}")
        a("s_lshl_b32 s80, s44, 13")
        a("s_add_u32 s37, s37, s80")
        emit_attn_setup(a, MASKS_M, 20)
        g2_tile(a)
        wo_addr(a, 20)
        a("s_lshl_b32 s80, s35, 6")
        a("s_lshl_b32 s81, s32, 4")
        a("s_add_u32 s80, s80, s81")
        a("v_bfe_u32 v20, v0, 1, 4")
        a("v_add_u32 v20, s80, v20")
        a("v_lshlrev_b32 v20, 11, v20")
        a("v_and_b32 v21, 1, v0")
        a("v_lshl_add_u32 v20, v21, 7, v20")
        a("s_lshl_b32 s80, s3, 8")
        a("v_add_u32 v199, s80, v20")

    if "ls" not in OPT:
        setup2()
    KT, FT = optval("kt", -1), optval("ft", -1)
    if KT >= 0:
        a("v_and_b32 v185, 31, v0")
        a("v_lshlrev_b32 v185, 7, v185")
        a("v_lshrrev_b32 v20, 5, v0")
        a("v_lshl_add_u32 v185, v20, 22, v185")
    if FT >= 0:
        a("v_lshlrev_b32 v194, 15, v0")
        a("s_lshl_b32 s80, s2, 7")
        a(f"s_add_u32 s80, s80, 0x{WS_FL:x}")
        a("v_add_u32 v194, s80, v194")
        a("s_cmp_eq_u32 s32, 2")
        a("s_cselect_b32 s80, 4, 0")
        a("v_mov_b32 v193, 0x80000000")
        a("v_cmp_gt_u32 vcc, s80, v0")
        a("s_nop 1")
        a("v_cndmask_b32 v194, v193, v194, vcc")
    a("s_barrier")
    ts.stamp(a, 11)
    for k in range(PD):
        for r in reads(0, k, k):
            a(r)
        if k == 1:
            a("s_waitcnt lgkmcnt(8)")
    TKN = optval("tkn", 41)
    BK = (4 - PD) % 4
    for n in range(64):
        t, ks = n >> 2, n & 3
        m = mfmas(n % NB, n == 0, n == 63)
        n2 = n + PD
        r = reads(n2 >> 2, n2 & 3, n2 % NB) if n2 < 64 else []
        tch = []
        if n == TKN:
            tch = [f"buffer_load_dwordx2 v[186:187], v{VZ}, {S(SDBG)}, 0 offen{SC}"]
        ahead = min(15, 8 * (min(63, n + PD - 1) - n))
        if ks == BK:
            a(f"s_waitcnt lgkmcnt({ahead if (LZ and t < 15) else 0})")
            a(m[0])
            a("s_barrier")
        else:
            a(f"s_waitcnt lgkmcnt({ahead})")
            a(m[0])
        ri = 0
        for i, mm in enumerate(m[1:]):
            for _ in range(2):
                if ri < len(r):
                    a(r[ri]); ri += 1
            if i == 4:
                for x in tch:
                    a(x)
                if n in CQ:
                    code_touch()
                if n == SLB:
                    a(f"buffer_load_dword v177, v184, {S(SW)}, 0 offen")
                if n == KT:
                    a(f"buffer_load_dword v178, v185, {S(SWS)}, s48 offen")
                if n == FT:
                    a(f"buffer_load_dword v195, v194, {S(SWS)}, 0 offen")
            a(mm)
    ts.stamp(a, 1)
    if optval("pe", 0):
        a(f"s_setprio {optval('pe', 0)}")
    for part in (1, 2):
        for rt in range(2):
            b = ACC + 16 * (2 * part + rt)
            for j in range(8):
                a(f"v_cvt_pk_bf16_f32 v{b + j}, v{b + 2 * j}, v{b + 2 * j + 1}")
            for step in range(2):
                a(f"buffer_store_dwordx4 {vr(b + 4 * step, 4)}, v1, {S(SWS)}, s{47 + part} offen offset:{rt * 2048 + step * 1024}{SC}")
    if "pes" in OPT:
        a("s_setprio 0")
    for part in (1, 2):
        for rt in range(2):
            b = ACC + 16 * (2 * part + rt)
            for step in range(2):
                a(f"ds_write_b128 v182, {vr(b + 4 * step, 4)} offset:{8 * 2048 + (part - 1) * L_V + rt * 2048 + step * 1024}")
    for rt in (1, 0):
        b = ACC + 16 * rt
        d = QC if rt == 0 else b
        for r in range(16):
            a(f"v_mul_f32 v{b + r}, {f32hex(SCALE_LOG2E)}, v{b + r}")
        for j in range(8):
            a(f"v_cvt_pk_bf16_f32 v{d + j}, v{b + 2 * j}, v{b + 2 * j + 1}")
        if rt == 1:
            for step in range(2):
                a(f"ds_write_b128 v183, {vr(d + 4 * step, 4)} offset:{step * 1024}")
    lz = a.newlabel("nozero")
    a("s_cmp_lg_u32 s32, 0")
    a(f"s_cbranch_scc1 {lz}")
    a(f"v_lshl_add_u32 v20, v0, 2, v{VLF}")
    a(f"ds_write_b32 v20, v{VZ}")
    a.label(lz)
    if "ls" in OPT:
        setup2()
    tlq = f"buffer_load_dword v157, v199, {S(SQ)}, 0 offen"

    def prev_dma(isv):
        for g in range(2):
            a(f"s_add_u32 m0, s37, {isv * L_V + g * 4096}")
            a(f"s_add_u32 s80, s36, {isv * (WS_VF - WS_KF) + g * 4096}")
            for i in range(4):
                a(f"buffer_load_dwordx4 v1, {S(SWS)}, s80 offen offset:{1024 * i} {scl()} lds")

    if "pes" in OPT:
        a(f"s_setprio {optval('pe', 0)}")
    a("s_waitcnt vmcnt(0)")
    emit_token_take(a, 186, VZ)
    emit_publish(a, FL_K, 220, VZ)
    ts.stamp(a, 2)
    lnp = a.newlabel("noprev")
    a("s_cmp_lt_u32 s38, 2")
    a(f"s_cbranch_scc1 {lnp}")
    emit_poll(a, 190, 2, 196, sleep=optval("ks", 1))
    ts.stamp(a, 3)
    prev_dma(0)
    prev_dma(1)
    a.label(lnp)
    a("s_setprio 0")
    BF = [16, 24, 32]
    AC2 = 40
    AF, PF = 72, optval('pf', 16)
    VPA, VOA = 191, 192
    a("v_and_b32 v8, 15, v0")
    a("v_lshrrev_b32 v9, 4, v0")
    a("v_lshrrev_b32 v10, 5, v0")
    a("v_lshrrev_b32 v11, 2, v8")
    a("v_lshl_add_u32 v11, v10, 2, v11")
    a("v_lshlrev_b32 v11, 7, v11")
    a("v_and_b32 v12, 1, v9")
    a("v_lshl_add_u32 v11, v12, 5, v11")
    a("v_and_b32 v12, 3, v8")
    a("v_lshl_add_u32 v11, v12, 3, v11")
    a("v_lshrrev_b32 v12, 3, v8")
    a("v_lshl_add_u32 v2, v12, 6, v11")
    a("v_xor_b32 v12, 1, v12")
    a("v_lshl_add_u32 v3, v12, 6, v11")
    a("v_add_u32 v4, 0x10000, v2")
    a("v_add_u32 v5, 0x10000, v3")
    a(f"v_add_u32 v6, {L_R0}, v2")
    a(f"v_add_u32 v7, {L_R0}, v3")
    a("v_mov_b32 v12, s86")
    a("v_bfe_u32 v13, v0, 1, 4")
    emit_wg_of(a, VPA, 12, 13, 15)
    a("v_and_b32 v12, 1, v0")
    a(f"v_lshl_add_u32 v{VPA}, v12, 4, v{VPA}")
    a("s_lshr_b32 s80, s32, 1")
    a("s_and_b32 s81, s32, 1")
    a("s_lshl_b32 s81, s81, 2")
    a("s_add_u32 s80, s80, s81")
    a("s_lshl_b32 s80, s80, 3")
    a(f"s_add_u32 s80, s80, 0x{WS_FL + FL_O * 32768:x}")
    a(f"v_add_u32 v{VPA}, s80, v{VPA}")
    a("s_lshl_b32 s82, s86, 2")
    a("s_add_u32 s82, s82, s32")
    a("v_and_b32 v8, 31, v0")
    a("s_lshl_b32 s80, s82, 5")
    a("v_add_u32 v8, s80, v8")
    a("v_lshlrev_b32 v8, 12, v8")
    a(f"v_lshl_add_u32 v{VOA}, v10, 4, v8")
    a("s_lshl_b32 s56, s42, 7")
    a("s_add_u32 s56, s56, 2048")
    a("s_lshl_b32 s82, s82, 16")
    a(f"s_add_u32 s82, s82, 0x{WS_OF:x}")
    for p in range(8):
        a(f"s_add_u32 s81, s43, {p}")
        a("s_and_b32 s81, s81, 7")
        a("s_lshl_b32 s81, s81, 13")
        a(f"s_add_u32 s{48 + p}, s82, s81")
    hk = {"blk": wo_early()}
    if optval("qk", 0):
        hk["blk"][optval("qk", 0)] = hk["blk"].get(optval("qk", 0), []) + [tlq]
    else:
        hk["mid"] = lambda: a(tlq)
    a("s_waitcnt vmcnt(0)")
    ts.stamp(a, 5)
    a("s_waitcnt lgkmcnt(0)")
    a("s_barrier")
    ts.stamp(a, 4)
    hk["prio"] = prio_plan("M")
    emit_attention(a, ool, hk, MASKS_M)
    ts.stamp(a, 6)
    wo_late(a, ts, 0)
    poll_issue(a, VPA, 12)
    a("s_waitcnt vmcnt(1)")
    lds_flag_set(a, 32, 0, 16)
    ts.stamp(a, 8)
    emit_poll(a, VPA, 32, 12, pre=True, sleep=optval("os", 0))
    ts.stamp(a, 9)

    def aload(ks):
        out = []
        if ks % 8 == 4:
            out.append(f"s_add_u32 s{48 + (ks >> 3)}, s{48 + (ks >> 3)}, 4096")
        out.append(f"buffer_load_dwordx4 {vr(AF + 4 * (ks % PF), 4)}, v1, {S(SWS)}, s{48 + (ks >> 3)} offen offset:{(ks & 3) * 1024} {scl()}")
        return out

    def breads(ks, buf):
        f = BF[buf]
        if ks < 8 * NE:
            base, o = 6, ks * 2048
        elif ks < 8 * NE + 32:
            base, o = 2, (ks - 8 * NE) * 2048
        else:
            base, o = 4, (ks - 8 * NE - 32) * 2048
        out = []
        for ct in range(2):
            out.append(f"ds_read_b64_tr_b16 {vr(f + 4 * ct, 2)}, v{base + ct} offset:{o}")
            out.append(f"ds_read_b64_tr_b16 {vr(f + 4 * ct + 2, 2)}, v{base + ct} offset:{o + 1024}")
        return out

    for ks in range(PF):
        for x in aload(ks):
            a(x)
    emit_lds_wait(a, VLF, 0, 16)
    emit_lds_wait(a, VLF, 16, 16)
    for x in breads(0, 0) + breads(1, 1):
        a(x)
    for ks in range(64):
        f = BF[ks % 3]
        issued = min(63, ks + PF - 1)
        a(f"s_waitcnt vmcnt({issued - ks}) lgkmcnt({4 if ks < 63 else 0})")
        af = vr(AF + 4 * (ks % PF), 4)
        nxt = breads(ks + 2, (ks + 2) % 3) if ks + 2 < 64 else []
        d0, d1 = vr(AC2, 16), vr(AC2 + 16, 16)
        a(f"v_mfma_f32_32x32x16_bf16 {d0}, {vr(f, 4)}, {af}, {'0' if ks == 0 else d0}")
        for x in nxt:
            a(x)
        a(f"v_mfma_f32_32x32x16_bf16 {d1}, {vr(f + 4, 4)}, {af}, {'0' if ks == 0 else d1}")
        if ks + PF < 64:
            for x in aload(ks + PF):
                a(x)
    ts.stamp(a, 28)
    a("s_nop 7")
    a("s_nop 7")
    for ct in range(2):
        b = AC2 + 16 * ct
        for j in range(8):
            a(f"v_cvt_pk_bf16_f32 v{b + j}, v{b + 2 * j}, v{b + 2 * j + 1}")
        a("s_nop 1")
        for jj in range(2):
            a(f"v_permlane32_swap_b32 v{b + 4 * jj}, v{b + 4 * jj + 2}")
            a(f"v_permlane32_swap_b32 v{b + 4 * jj + 1}, v{b + 4 * jj + 3}")
        for jj in range(2):
            a(f"buffer_store_dwordx4 {vr(b + 4 * jj, 4)}, v{VOA}, {S(SOUT)}, s56 offen offset:{ct * 64 + jj * 32}")
    ts.final(a, 10)
    a("s_endpgm")


def h_path(a, ts, ool):
    a(f"s_setprio {optval('hp', 3)}")
    XO, WO = 2, 6
    a("v_lshrrev_b32 v12, 3, v0")
    a("v_and_b32 v13, 7, v0")
    a("s_lshl_b32 s45, s33, 7")
    a("s_lshl_b32 s46, s44, 5")
    a("s_add_u32 s45, s45, s46")
    a("v_lshrrev_b32 v14, 4, v0")
    a("v_xor_b32 v14, v14, v13")
    a("v_add_u32 v15, s45, v12")
    a("v_lshlrev_b32 v15, 11, v15")
    a(f"v_lshl_add_u32 v{XO}, v14, 4, v15")
    a(f"v_xor_b32 v{XO + 1}, 64, v{XO}")
    a(f"v_add_u32 v{XO + 1}, {16384 - 1024}, v{XO + 1}")
    a(f"v_add_u32 v{XO + 2}, {2 * (16384 - 1024)}, v{XO}")
    a(f"v_add_u32 v{XO + 3}, {2 * (16384 - 1024)}, v{XO + 1}")
    a("s_lshl_b32 s45, s44, 12")
    a("s_mul_i32 s48, s44, 98304")
    a("s_lshl_b32 s46, s34, 7")
    a("s_add_u32 s48, s48, s46")
    for i in range(3):
        if i:
            a(f"v_add_u32 v14, {64 * i}, v0")
        src = "v14" if i else "v0"
        a(f"v_mul_u32_u24 v15, 2731, {src}")
        a("v_lshrrev_b32 v15, 16, v15")
        a("v_mul_u32_u24 v16, 24, v15")
        a(f"v_sub_u32 v16, {src}, v16")
        a("v_bfe_u32 v18, v15, 1, 1")
        a("v_lshlrev_b32 v18, 2, v18")
        a("v_xor_b32 v16, v16, v18")
        a("v_lshrrev_b32 v18, 3, v16")
        a("v_and_b32 v16, 7, v16")
        a("v_mul_u32_u24 v15, 6144, v15")
        a("v_lshl_add_u32 v15, v18, 11, v15")
        a("v_lshl_add_u32 v15, v16, 4, v15")
        for ii in (i, i + 3):
            il = ii if ii < 4 else ii - 4
            a(f"s_add_u32 s49, s48, {(8 * 6144 if ii >= 3 else 0) - 1024 * il}")
            a(f"v_add_u32 v{WO + ii}, s49, v15")
    a("s_mul_i32 s43, s44, 6144")
    a("s_add_u32 s43, s43, 16384")
    order = []

    RG = optval("rg", 8)

    def pace(t):
        if t >= 6 and optval("pc", 0):
            a(f"s_nop {optval('pc', 0) - 1}")
            if optval("pc2", 0):
                a(f"s_nop {optval('pc2', 0) - 1}")

    def tile_index(t):
        if "hot" in OPT:
            a(f"s_mov_b32 s42, {t & 1}")
            return
        if RG <= 1:
            a(f"s_mov_b32 s42, {t}")
            return
        if "f0" in OPT:
            if t == 0:
                a("s_mov_b32 s42, 15")
            elif t <= 8:
                a(f"s_add_u32 s42, s56, {t - 1}")
                a("s_and_b32 s42, s42, 7")
            else:
                a("s_and_b32 s42, s56, 7")
                a("s_min_u32 s42, s42, 6")
                a(f"s_add_u32 s42, s42, {t - 9}")
                a("s_cmp_ge_u32 s42, 7")
                a("s_cselect_b32 s49, 1, 8")
                a("s_add_u32 s42, s42, s49")
            return
        a(f"s_add_u32 s42, s56, {t}")
        a(f"s_and_b32 s42, s42, {RG - 1}")
        if t >= RG:
            a(f"s_add_u32 s42, s42, {t // RG * RG}")

    a("s_lshr_b32 s56, s35, 3")
    a("s_lshl_b32 s56, s56, 1")
    a("s_add_u32 s56, s56, s35")
    if RG == 16:
        a("s_lshl_b32 s56, s56, 1")

    def issue_x(t):
        if "nodma" in OPT and t >= 3:
            order.append(f"x{t}")
            return
        a(f"s_add_u32 m0, s45, {((t + 2) & 3) * 40960}")
        tile_index(t)
        a("s_lshl_b32 s42, s42, 7")
        for i in range(4):
            a(f"buffer_load_dwordx4 v{XO + i}, {S(SX)}, s42 offen offset:{1024 * i} lds")
            pace(t)
        order.append(f"X{t}")

    def issue_w(t):
        if "nodma" in OPT and t >= 3:
            order.append(f"x{t}")
            return
        st = (t + 2) & 3
        a(f"s_add_u32 m0, s43, {st * 40960}")
        tile_index(t)
        a("s_mul_i32 s42, s42, 393216")
        for i in range(4):
            a(f"buffer_load_dwordx4 v{WO + i}, {S(SW)}, s42 offen offset:{1024 * i} lds")
            pace(t)
        a(f"s_add_u32 m0, s43, {st * 40960 + 4096}")
        a("s_nop 0")
        for i in range(4, 6):
            a(f"buffer_load_dwordx4 v{WO + i}, {S(SW)}, s42 offen offset:{1024 * (i - 4)} lds")
        order.append(f"W{t}")

    def vm(x):
        a(x)
        if x.startswith("buffer"):
            order.append("P")

    def cnt(lst):
        return sum({"X": 4, "W": 6, "P": 1, "L": 0, "U": 0, "x": 0, "R": 1, "E": 0}[x[0]] for x in lst)

    def wait_tile(b):
        if "nodma" in OPT and b >= 3:
            return
        last = max(i for i, x in enumerate(order) if x in (f"X{b}", f"W{b}"))
        assert f"X{b}" in order and f"W{b}" in order
        n = cnt(order[last + 1:])
        assert n < 64
        a(f"s_waitcnt vmcnt({n})")

    def later():
        a("s_lshl_b32 s87, s84, 2")
        a("s_add_u32 s87, s87, s44")
        a("s_lshl_b32 s87, s87, 12")
        a(f"s_buffer_load_dword s57, {S(SHK)}, s87")
        a(f"s_mul_i32 s88, s44, {CW}")
        a(f"s_add_u32 s88, s88, {L_R0}")
        a("s_lshl_b32 s80, s35, 2")
        a("s_add_u32 s80, s80, s44")
        a("s_lshl_b32 s80, s80, 6")
        a("v_add_u32 v20, s80, v0")
        a("v_lshrrev_b32 v241, 3, v20")
        a("v_lshlrev_b32 v241, 11, v241")
        a("v_and_b32 v20, 7, v20")
        a("v_lshl_add_u32 v241, v20, 7, v241")
        a("s_lshr_b32 s80, s3, 2")
        a("s_lshl_b32 s80, s80, 10")
        a("v_add_u32 v241, s80, v241")
        a("s_lshl_b32 s80, s35, 6")
        a("s_lshl_b32 s81, s44, 4")
        a("s_add_u32 s80, s80, s81")
        a("v_lshrrev_b32 v20, 1, v0")
        a("v_add_u32 v20, s80, v20")
        a("v_lshlrev_b32 v20, 11, v20")
        a("v_and_b32 v21, 1, v0")
        a("v_lshl_add_u32 v20, v21, 7, v20")
        a("s_lshl_b32 s80, s3, 8")
        a("v_add_u32 v20, s80, v20")
        a("v_lshlrev_b32 v21, 7, v0")
        a("v_cmp_gt_u32 vcc, 32, v0")
        a("s_nop 1")
        a("v_cndmask_b32 v242, v240, v20, vcc")
        a("v_cndmask_b32 v243, v240, v21, vcc")
        a("v_lshrrev_b32 v20, 3, v0")
        a("v_and_b32 v21, 7, v0")
        a("s_lshl_b32 s80, s35, 6")
        a("s_lshl_b32 s81, s3, 2")
        a("s_add_u32 s81, s81, s44")
        a("s_lshl_b32 s81, s81, 5")
        a("v_lshlrev_b32 v22, 3, v20")
        a("v_add_u32 v22, s80, v22")
        a("v_lshlrev_b32 v23, 2, v21")
        a("v_add_u32 v23, s81, v23")
        a(f"v_lshlrev_b32 v{PA}, 12, v23")
        a(f"v_lshl_add_u32 v{PA}, v22, 1, v{PA}")
        a(f"v_lshlrev_b32 v{PA + 1}, 11, v22")
        a(f"v_lshl_add_u32 v{PA + 1}, v23, 1, v{PA + 1}")
        a(f"v_lshlrev_b32 v{PA + 2}, 12, v22")
        a(f"v_lshl_add_u32 v{PA + 2}, v23, 1, v{PA + 2}")
        a("v_bfe_u32 v20, v0, 2, 3")
        a("s_lshl_b32 s80, s44, 3")
        a("v_add_u32 v20, s80, v20")
        a("v_lshlrev_b32 v20, 3, v20")
        a("v_add_u32 v20, s3, v20")
        a("v_lshlrev_b32 v20, 7, v20")
        a("v_and_b32 v21, 3, v0")
        a("v_lshl_add_u32 v20, v21, 3, v20")
        a(f"v_add_u32 v{PA + 3}, 0x{WS_FL + FL_Y2 * 32768 + 32:x}, v20")
        a("s_and_b32 s40, s44, 1")
        a("s_lshr_b32 s41, s44, 1")
        a("s_waitcnt lgkmcnt(0)")
        a("s_lshl_b32 s80, s44, 4")
        a("s_lshr_b64 s[38:39], s[76:77], s80")
        a("s_lshl_b32 s39, s38, 16")
        a("s_lshl_b32 s57, s57, 16")
        a("s_lshl_b32 s40, s40, 1")
        a("s_add_u32 s40, s40, 1")
        a("v_and_b32 v192, 31, v0")
        a("v_lshlrev_b32 v192, 3, v192")
        a("v_add_u32 v192, s3, v192")
        a("v_lshlrev_b32 v192, 7, v192")
        a("s_lshr_b32 s80, s35, 3")
        a("s_lshl_b32 s80, s80, 3")
        a(f"s_add_u32 s80, s80, 0x{WS_FL + FL_UR * 32768 + 32:x}")
        a("v_add_u32 v192, s80, v192")
        a("s_lshl_b32 s80, s44, 11")
        a(f"s_add_u32 s80, s80, {L_QH}")
        a("v_add_u32 v193, s80, v1")
        a("v_lshlrev_b32 v180, 3, v0")
        a("v_add_u32 v180, s88, v180")
        a("v_and_b32 v181, 1, v0")
        a(f"v_mul_u32_u24 v181, {CPY}, v181")
        a("v_bfe_u32 v182, v0, 1, 1")
        a("v_lshl_add_u32 v181, v182, 4, v181")
        a("v_add_u32 v181, s88, v181")
        a("v_mov_b32 v182, s88")
        a("v_mov_b32 v183, s57")
        for i in range(4):
            a(f"v_mov_b32 v{184 + i}, 0")

    p_setup, p_loads, p_comp, p_stores = p1_lists()
    if "nop1" in OPT:
        p_loads, p_comp, p_stores = p_loads[:1], [], []

    main_a = a
    a = Asm()
    for y in p_setup:
        a(y)
    later()
    setup2 = [x.strip() for x in a.L]
    a = main_a

    gl = list(range(32))

    def act(x):
        k, arg = x[0], x[1:]
        if k == "X":
            issue_x(int(arg))
        elif k == "W":
            issue_w(int(arg))
        elif k == "T":
            issue_x(int(arg)); issue_w(int(arg))
        elif k == "F":
            t0, n = map(int, arg.split("_"))
            emit_touch_fine(a, 234, 235, 228, t0)
            for y in touch(t0, n, 234, 235, 246):
                vm(y)
        elif k == "C":
            t = int(arg)
            a(f"s_cmp_eq_u32 s58, {t & 3}")
            a("s_cselect_b64 vcc, -1, 0")
            a(f"s_mov_b32 s82, {t * 128}")
            a(f"s_mov_b32 s83, {t * 393216}")
            a("v_cndmask_b32 v238, v240, v245, vcc")
            a("v_cndmask_b32 v239, v240, v244, vcc")
            vm(f"buffer_load_dword v246, v238, {S(SW)}, s83 offen")
            vm(f"buffer_load_dword v247, v239, {S(SX)}, s82 offen")
        elif k == "K":
            r = 242
            if arg:
                a(f"s_cmp_eq_u32 s58, {arg}")
                a("s_cselect_b64 vcc, -1, 0")
                a("s_nop 0")
                a("v_cndmask_b32 v237, v240, v242, vcc"); r = 237
            vm(f"buffer_load_dword v248, v{r}, {S(SK)}, 0 offen")
            vm(f"buffer_load_dword v249, v{r}, {S(SV)}, 0 offen")
        elif k == "P":
            for _ in range(int(arg)):
                if p_loads:
                    vm(p_loads.pop(0))
            if not p_loads:
                order.append("L")
        elif k == "V":
            if "L" in order:
                a(f"s_waitcnt vmcnt({cnt(order[order.index('L') + 1:])})")
                order.remove("L")
            for _ in range(int(arg)):
                if p_comp:
                    a(p_comp.pop(0))
        elif k == "S":
            assert not p_comp and not p_loads
            for y in p_stores:
                vm(y)
            order.append("U")
        elif k == "U":
            a(f"s_waitcnt vmcnt({cnt(order[order.index('U') + 1:])})")
            emit_token_take(a, 172, VZ)
            emit_publish(a, FL_UR, 194, VZ)
            order.append("P")
        elif k == "A":
            emit_attn_setup(a, MASKS_H)
        elif k == "R":
            poll_issue(a, 192, 198)
            order.append("R")
        elif k == "Q":
            vm(f"buffer_load_dword v246, v242, {S(SQ)}, 0 offen")
        elif k == "G":
            vm(f"buffer_load_dword v246, v243, {S(SHK)}, s87 offen")
        elif k == "O":
            vm(f"buffer_load_dword v247, v241, {S(SWO)}, 0 offen")
        elif k == "t":
            vm(f"buffer_load_dwordx2 v[172:173], v{VZ}, {S(SDBG)}, 0 offen{SC}")
        elif k == "b":
            late_setup(a, ts)
            if ts.on:
                order.append("P")
            a("v_mov_b32 v240, 0x80000000")
            a("s_and_b32 s58, s35, 3")
        elif k == "c":
            for _ in range(int(arg)):
                if setup2:
                    a(setup2.pop(0))
        elif k == "H":
            a(f"ds_write_b64 v180, v[184:185] offset:{URO + 4096}")
            a("ds_write_b128 v181, v[184:187]")
            a(f"ds_write_b32 v182, v183 offset:{CPY + 28}")
            for c in range(2):
                a(f"s_add_u32 m0, s88, {32 + c * CPY}")
                a(f"s_add_u32 s80, s87, {2 * c}")
                for kk in range(4):
                    vm(f"buffer_load_dwordx4 v1, {S(SHK)}, s80 offen offset:{1024 * kk} lds")
        elif k in "DE":
            ls = a.newlabel("urskip")
            if k == "E":
                a(f"s_waitcnt vmcnt({cnt(order[order.index('R') + 1:])})")
                a("v_cmp_eq_u64 vcc, s[78:79], v[198:199]")
                a("s_mov_b32 s38, 0")
                a("s_nop 0")
                a("s_cmp_eq_u32 vcc_lo, -1")
                a(f"s_cbranch_scc0 {ls}")
                a("s_mov_b32 s38, 1")
                order.append("E")
            else:
                if "E" in order:
                    a("s_cmp_eq_u32 s38, 1")
                    a(f"s_cbranch_scc1 {ls}")
                emit_poll(a, 192, 32, 198, pre=True)
                ts.stamp(a, 2)
            a(f"s_add_u32 m0, s88, {URO}")
            a(f"s_add_u32 s80, s87, 0x{WS_UR:x}")
            for kk in range(4):
                a(f"buffer_load_dwordx4 v1, {S(SWS)}, s80 offen offset:{1024 * kk} {scl()} lds")
            a.label(ls)
        else:
            raise ValueError(x)

    sc = os.environ.get("SCHED") or SCHEDS[optval("sc", 0)]
    sched = sc.split("|")
    assert len(sched) == 18, len(sched)
    a("s_waitcnt lgkmcnt(0)")
    for x in sched[0].split():
        act(x)
    for b in range(0, 17):
        if b < 16:
            wait_tile(b)
        a("s_barrier")
        if "tsb" in OPT:
            ts.stamp(a, 11 + b)
        for x in sched[b + 1].split():
            if x[0] in "XWT":
                assert int(x[1:]) <= b + 3
            act(x)
    ts.stamp(a, 1)
    assert not setup2
    a("s_mov_b32 s46, s88")
    a(f"s_add_u32 s36, s87, 0x{wsy2():x}")

    def c_start():
        if optval("pv", -1) >= 0:
            a(f"s_setprio {optval('pv', 0)}")
        a("s_waitcnt vmcnt(0)")
        ts.stamp(a, 3)

    b = Asm()
    emit_attn_setup(b, MASKS_H)
    g2_tile(b)
    wo_addr(b)
    ys = emit_conv(a, {"start": c_start, "extra": [x.strip() for x in b.L]})
    ts.stamp(a, 5)
    a("s_setprio 0")
    a("s_barrier")
    ts.stamp(a, 4)
    a(f"ds_read_b128 {vr(QC, 4)}, v193")
    a(f"ds_read_b128 {vr(QC + 4, 4)}, v193 offset:1024")
    for x in ys:
        a(x)
    YY, OO = 168, 24
    if optval("ph", 0):
        a(f"s_setprio {optval('ph', 0)}")
    blk = wo_early()
    b = Asm()
    b("s_waitcnt vmcnt(0)")
    emit_publish(b, FL_Y2, 194, VZ)
    yb = optval("yb", 2)
    blk[yb] = [x.strip() for x in b.L] + blk.get(yb, [])
    hk = {"blk": blk}
    hk["prio"] = prio_plan("H")
    YE = optval("ye", 0)
    b = Asm()
    for i in range(8):
        if i % 2 == 0:
            b(f"s_mov_b32 s80, {4096 * (i >> 1)}")
        b(f"buffer_load_dwordx2 {vr(QQ + 2 * i, 2)}, v{PA + 1}, {S(SQ)}, s80 offen offset:{(i & 1) * 2048}")
    ql = [x.strip() for x in b.L]
    b = Asm()
    poll_issue(b, PA + 3, 196)
    pl = [x.strip() for x in b.L]
    if YE:
        blk[optval("qe", YE)] = blk.get(optval("qe", YE), []) + ql
        blk[YE] = blk.get(YE, []) + pl
    emit_attention(a, ool, hk, MASKS_H)
    ts.stamp(a, 6)
    if not YE:
        for x in ql + pl:
            a(x)

    def y_issue(va):
        a(f"s_mov_b32 s80, 0x{wsy2():x}")
        for dd in range(4):
            a(f"buffer_load_dwordx4 {vr(YY + 4 * dd, 4)}, v{va}, {S(SWS)}, s80 offen {scl()}")
            if dd < 3:
                a("s_add_u32 s80, s80, 4096")

    def y_loads():
        emit_poll(a, PA + 3, 32, 196, pre=True)
        y_issue(PA)

    p3 = Asm()
    a, main_a = p3, a
    for i in range(8):
        for dd in range(4):
            ys = YY + 4 * dd + (i >> 1)
            qs = QQ + 2 * i + (dd >> 1)
            a(f"v_and_b32 v4, 0xffff0000, v{ys}" if i & 1 else f"v_lshlrev_b32 v4, 16, v{ys}")
            a(f"v_and_b32 v5, 0xffff0000, v{qs}" if dd & 1 else f"v_lshlrev_b32 v5, 16, v{qs}")
            a(f"v_mul_f32 v{OO + 4 * i + dd}, v4, v5")
        o = OO + 4 * i
        a(f"v_cvt_pk_bf16_f32 v{o}, v{o}, v{o + 1}")
        a(f"v_cvt_pk_bf16_f32 v{o + 1}, v{o + 2}, v{o + 3}")
    a = main_a
    outs = []
    for i in range(8):
        outs += [f"s_mov_b32 s80, {4096 * i}", f"buffer_store_dwordx2 {vr(OO + 4 * i, 2)}, v{PA + 2}, {S(SOUT)}, s80 offen"]

    def gate():
        for x in p3.L:
            a(x.strip())

    if YE:
        ll, lr = a.newlabel("ylate"), a.newlabel("yback")
        a("s_waitcnt vmcnt(2)")
        a("v_cmp_eq_u64 vcc, s[78:79], v[196:197]")
        a("v_mov_b32 v4, 0x80000000")
        a("s_nop 0")
        a("s_cmp_eq_u32 vcc_lo, -1")
        a("s_cselect_b32 s38, 1, 0")
        a("s_cselect_b64 vcc, -1, 0")
        a("s_nop 0")
        a(f"v_cndmask_b32 v4, v4, v{PA}, vcc")
        y_issue(4)
        wo_late(a, ts, 4, None, True)
        a("s_cmp_eq_u32 s38, 0")
        a(f"s_cbranch_scc1 {ll}")
        a(f"s_waitcnt vmcnt({(4 if 'hs' in OPT else 2) * (8 - NE)})")
        a.label(lr)
        main_a, sub = a, Asm()
        sub.uid = main_a.uid + 1000
        a = sub
        a("s_waitcnt vmcnt(0)")
        lds_flag_set(a, 32, 0, 4)
        for x in pl:
            a(x)
        y_loads()
        a("s_waitcnt vmcnt(0)")
        main_a.uid = sub.uid
        a = main_a
        ool.append((ll, [x.strip() for x in sub.L], lr))
        gate()
        a("s_waitcnt vmcnt(0)")
        lds_flag_set(a, 32, 0, 4)
        ts.stamp(a, 8)
        for x in outs:
            a(x)
    elif "p3f" in OPT:
        def aft():
            y_loads()
            a("s_waitcnt vmcnt(0)")
            gate()
            for x in outs:
                a(x)
        wo_late(a, ts, 9, aft, True)
        a("s_waitcnt vmcnt(0)")
        lds_flag_set(a, 32, 0, 4)
        ts.stamp(a, 8)
    else:
        wo_late(a, ts, 9, y_loads, True)
        a(f"s_waitcnt vmcnt({(4 if 'hs' in OPT else 2) * (8 - NE)})")
        gate()
        a("s_waitcnt vmcnt(0)")
        lds_flag_set(a, 32, 0, 4)
        ts.stamp(a, 8)
        for x in outs:
            a(x)
    ts.final(a, 10)
    a("s_endpgm")


def gen_fused(a, ts):
    name = NAME + "_kernel"
    kernel_begin(a, name)
    ts.entry(a)
    a("s_cmp_ge_u32 s2, 256")
    a("s_cbranch_scc1 L_end")
    if optval("xj", 0):
        a(f"s_xor_b32 s2, s2, {optval('xj', 0)}")
    for (d, off, size) in SRDS:
        a(f"s_load_dwordx2 s[{d}:{d + 1}], s[0:1], {off}")
    a("s_load_dwordx2 s[36:37], s[0:1], 40")
    a("v_lshrrev_b32 v1, 6, v0")
    a("v_and_b32 v0, 63, v0")
    a("s_and_b32 s3, s2, 7")
    a("v_readfirstlane_b32 s32, v1")
    a("s_lshr_b32 s35, s2, 3")
    a("s_and_b32 s33, s3, 1")
    a("s_lshl_b32 s33, s33, 3")
    a("s_and_b32 s80, s35, 7")
    a("s_add_u32 s33, s33, s80")
    a("s_lshr_b32 s34, s3, 1")
    a("s_lshl_b32 s34, s34, 2")
    a("s_lshr_b32 s80, s35, 3")
    a("s_add_u32 s34, s34, s80")
    if optval("hx", 0):
        a(f"s_xor_b32 s34, s34, {optval('hx', 0)}")
    a("v_lshlrev_b32 v1, 4, v0")
    a(f"v_mov_b32 v{VZ}, 0")
    for (d, off, size) in SRDS[:2]:
        a(f"s_mov_b32 s{d + 2}, 0x{size:x}")
        a(f"s_mov_b32 s{d + 3}, 0x20000")
    a("s_and_b32 s44, s32, 3")
    a("s_mov_b32 s59, 0")
    a("s_cmp_lt_u32 s32, 4")
    a("s_cbranch_scc1 L_M")
    ool = []
    h_path(a, ts, ool)
    a.label("L_M")
    m_path(a, ts, ool)
    for (lf, body, lb) in ool:
        a.label(lf)
        for x in body:
            a(x)
        a(f"s_branch {lb}")
    a.label("L_end")
    a("s_endpgm")
    return name, 256, 102


def build(instrument=False):
    if "best" in OPT:
        have = {o.rstrip("0123456789") for o in OPT}
        OPT.update(o for o in BEST.split(",") if o.rstrip("0123456789") not in have and "no" + o not in OPT)
    ts = TS(instrument)
    a = Asm()
    a.raw("; @launch grid=(256,1,1) block=(512,1,1) lds=163840")
    a.raw('.amdgcn_target "amdgcn-amd-amdhsa--gfx950"')
    a.raw(".text")
    n, v, s = gen_fused(a, ts)
    a.raw('.section .rodata,"a"')
    kernel_desc(a, n, v, s)
    return a.text()


if __name__ == "__main__":
    out = sys.argv[1] if len(sys.argv) > 1 else f"cdna_kernels/{NAME}.s"
    if len(sys.argv) > 2:
        OPT.update(sys.argv[2].split(","))
    open(out, "w").write(build())
```

```python
import sys, struct, os, re
from gen import Asm, vr, srd, kernel_begin, kernel_desc, MB, NAME
from gf import f32hex
import gf

OPT = set()
WS_KF, WS_VF, WS_UR, WS_OF, WS_Y2, WS_FL = 4 * MB, 8 * MB, 12 * MB, 16 * MB, 20 * MB, 24 * MB
WS_SIZE = 25 * MB
FL_UR, FL_K, FL_Y2, FL_O, FL_V = 0, 1, 2, 3, 4

CPY, URO, CW = 4160, 8320, 12928
L_HD, L_V = 49152, 24576
L_QH = 98304
L_R0 = 106496
L_FL = L_R0 + 4 * CW
SC = " sc1"
SPIN_LIMIT = 1 << 18
SCALE_LOG2E = (32 ** -0.5) * 1.4426950408889634
SX, SW, SWS, SK, SV, SSH, SHK, SWO, SQ, SOUT, SDBG = 4, 8, 12, 16, 20, 24, 28, 60, 64, 68, 72
MASKS_H = [4, 6, 8, 10, 16, 18, 20, 22, 24, 26, 48, 50, 52, 54, 56, 58]
MASKS_M = [4, 6, 16, 18, 20, 22, 24, 26, 28, 30, 58, 76, 92, 94, 96, 98]


WS_TS = 32 * MB


class TS:
    def __init__(self, on):
        self.enabled = on
        self.on = False

    def entry(self, a):
        if self.enabled:
            a("s_memrealtime s[98:99]")
            a("s_memtime s[100:101]")
            a("v_mov_b32 v254, 0")

    def setup(self, a, ws_pair):
        if self.enabled:
            a("v_writelane_b32 v254, s98, 30")

    def stamp(self, a, slot):
        if self.enabled and ("tsmin" not in OPT or slot == 10):
            a("s_memrealtime s[90:91]")
            a("s_waitcnt lgkmcnt(0)")
            a(f"v_writelane_b32 v254, s90, {slot}")
            if "cya" in OPT and slot < 11:
                a("s_memtime s[90:91]")
                a("s_waitcnt lgkmcnt(0)")
                a(f"v_writelane_b32 v254, s90, {slot + 12}")

    def final(self, a, slot):
        if not self.enabled:
            return
        a("s_waitcnt vmcnt(0)")
        self.stamp(a, slot)
        a("s_memtime s[90:91]")
        srd(a, 92, SWS, 4 * MB, WS_TS)
        a("s_lshl_b32 s96, s2, 4")
        a("s_add_u32 s96, s96, s32")
        a("s_lshl_b32 s96, s96, 8")
        a("s_waitcnt lgkmcnt(0)")
        a("s_sub_u32 s90, s90, s100")
        a("v_writelane_b32 v254, s90, 31")
        a("v_mov_b32 v255, 0")
        a("v_lshlrev_b32 v253, 3, v0")
        a("s_mov_b32 exec_hi, 0")
        a("buffer_store_dwordx2 v[254:255], v253, s[92:95], s96 offen")


def emit_wg_of(a, vdst, vrb, vhp, t):
    if optval("hx", 0):
        a(f"v_xor_b32 v{vhp}, {optval('hx', 0)}, v{vhp}")
    gf.emit_wg_of(a, vdst, vrb, vhp, t)


def S(n):
    return f"s[{n}:{n + 3}]"


SCHEDS = {
    0: "T0 X1 b c60 | W1 X2 P7 | W2 T3 P7 | T4 T5 P7 c40 | T6 c40 G | T7 c40 t | T8 V90 | T9 V90 | T10 V90 S | T11"
       " | T12 U | T13 | T14 | T15 O | R | H | E | D",
}
BEST = "we3,yb3,cp,cq50,rg4,ry1,ya,ft30,sw14_2,ye7,prM322110000,prH333221101,pe3,pv1,od8"


def wsy2():
    return WS_UR if "ya" in OPT else WS_Y2


def nt(k):
    return "nt" if "nt" + k in OPT else ""


def scl():
    return "sc1" if "ldsc1" in OPT else ""


def optval(prefix, default):
    for o in OPT:
        if o.startswith(prefix) and o[len(prefix):].lstrip("-").isdigit():
            return int(o[len(prefix):])
    return default


def poll_issue(a, voff, tmp):
    a(f"buffer_load_dwordx2 {vr(tmp, 2)}, v{voff}, {S(SWS)}, 0 offen{SC}")


def emit_poll(a, voff, nlanes, tmp, pre=False, sleep=0):
    lp, ck, dn = a.newlabel("poll"), a.newlabel("pollc"), a.newlabel("polld")
    mask = (1 << nlanes) - 1
    a(f"s_mov_b32 s80, 0x{mask & 0xffffffff:x}")
    a(f"s_mov_b32 s81, 0x{mask >> 32:x}")
    a("s_mov_b32 s85, 0")
    if not pre:
        a.label(lp)
        poll_issue(a, voff, tmp)
        a("s_waitcnt vmcnt(0)")
        a(f"v_cmp_eq_u64 vcc, s[78:79], {vr(tmp, 2)}")
        a("s_add_u32 s85, s85, 1")
        a("s_and_b64 s[82:83], vcc, s[80:81]")
        a("s_cmp_eq_u64 s[82:83], s[80:81]")
        a(f"s_cbranch_scc1 {dn}")
        if sleep:
            a(f"s_sleep {sleep}")
        a(f"s_cmp_lt_u32 s85, 0x{SPIN_LIMIT:x}")
        a(f"s_cbranch_scc1 {lp}")
        a.label(dn)
    else:
        a.label(ck)
        a("s_waitcnt vmcnt(0)")
        a(f"v_cmp_eq_u64 vcc, s[78:79], {vr(tmp, 2)}")
        a("s_add_u32 s85, s85, 1")
        a("s_and_b64 s[82:83], vcc, s[80:81]")
        a("s_cmp_eq_u64 s[82:83], s[80:81]")
        a(f"s_cbranch_scc1 {dn}")
        if sleep:
            a(f"s_sleep {sleep}")
        poll_issue(a, voff, tmp)
        a(f"s_cmp_lt_u32 s85, 0x{SPIN_LIMIT:x}")
        a(f"s_cbranch_scc1 {ck}")
        a("s_waitcnt vmcnt(0)")
        a.label(dn)


def emit_publish(a, kind, t0, vz):
    a(f"s_add_u32 s80, s89, 0x{WS_FL + kind * 32768:x}")
    a(f"v_mov_b32 v{t0}, s78")
    a(f"v_mov_b32 v{t0 + 1}, s79")
    a("s_mov_b64 exec, 1")
    a(f"buffer_store_dwordx2 {vr(t0, 2)}, v{vz}, {S(SWS)}, s80 offen{SC}")
    a("s_mov_b64 exec, -1")


def emit_token_take(a, t0, vz):
    lp, dn = a.newlabel("tok"), a.newlabel("tokd")
    a("s_mov_b32 s85, 0")
    a.label(lp)
    a(f"v_readfirstlane_b32 s78, v{t0}")
    a(f"v_readfirstlane_b32 s79, v{t0 + 1}")
    a("s_add_u32 s85, s85, 1")
    a("s_cmp_lg_u64 s[78:79], 0")
    a(f"s_cbranch_scc1 {dn}")
    a(f"buffer_load_dwordx2 {vr(t0, 2)}, v{vz}, {S(SDBG)}, 0 offen{SC}")
    a("s_waitcnt vmcnt(0)")
    a(f"s_cmp_lt_u32 s85, 0x{SPIN_LIMIT:x}")
    a(f"s_cbranch_scc1 {lp}")
    a.label(dn)


def emit_wline(a, dst, idx, hi, t):
    a(f"v_mul_u32_u24 v{dst}, 5462, v{idx}")
    a(f"v_lshrrev_b32 v{dst}, 16, v{dst}")
    a(f"v_mul_u32_u24 v{t}, 12, v{dst}")
    a(f"v_sub_u32 v{t}, v{idx}, v{t}")
    if hi is not None:
        a(f"v_lshl_add_u32 v{dst}, v{hi}, 6, v{dst}")
    a(f"v_mul_u32_u24 v{dst}, 6144, v{dst}")
    a(f"v_lshrrev_b32 v{t + 1}, 2, v{t}")
    a(f"v_lshl_add_u32 v{dst}, v{t + 1}, 11, v{dst}")
    a(f"v_and_b32 v{t}, 3, v{t}")
    a(f"v_lshl_add_u32 v{dst}, v{t}, 7, v{dst}")
    a("s_lshr_b32 s83, s3, 1")
    a("s_lshl_b32 s83, s83, 9")
    a(f"v_add_u32 v{dst}, s83, v{dst}")


def emit_touch_fine(a, VTX, VTW, t, t0):
    a(f"v_and_b32 v{t}, 7, v0")
    a(f"v_lshrrev_b32 v{t + 1}, 3, v0")
    a(f"s_add_u32 s82, s59, {t0}")
    a(f"v_add_u32 v{t + 1}, s82, v{t + 1}")
    a(f"v_and_b32 v{t + 1}, 15, v{t + 1}")
    a("s_lshl_b32 s82, s35, 2")
    a("s_add_u32 s82, s82, s44")
    a("s_lshl_b32 s81, s82, 3")
    a("s_and_b32 s83, s3, 1")
    a("s_lshl_b32 s83, s83, 10")
    a("s_add_u32 s81, s81, s83")
    a(f"v_add_u32 v{t + 2}, s81, v{t}")
    a(f"v_lshlrev_b32 v{t + 2}, 11, v{t + 2}")
    a(f"v_lshl_add_u32 v{VTX}, v{t + 1}, 7, v{t + 2}")
    a("s_mul_i32 s82, s82, 6")
    a(f"v_add_u32 v{t + 2}, s82, v{t}")
    emit_wline(a, VTW, t + 2, t + 1, t + 3)
    a(f"v_mov_b32 v{t + 4}, 0x80000000")
    a(f"v_cmp_gt_u32 vcc, 6, v{t}")
    a("s_nop 1")
    a(f"v_cndmask_b32 v{VTW}, v{t + 4}, v{VTW}, vcc")


def emit_touch_coarse(a, VTX, VTW, t):
    a("s_lshr_b32 s82, s35, 2")
    a("s_lshl_b32 s82, s82, 2")
    a("s_add_u32 s82, s82, s44")
    a("s_lshl_b32 s81, s82, 5")
    a("s_and_b32 s83, s3, 1")
    a("s_lshl_b32 s83, s83, 10")
    a("s_add_u32 s81, s81, s83")
    a(f"v_add_u32 v{t + 2}, s81, v0")
    a(f"v_lshlrev_b32 v{VTX}, 11, v{t + 2}")
    a("s_mul_i32 s82, s82, 24")
    a(f"v_add_u32 v{t + 2}, s82, v0")
    emit_wline(a, VTW, t + 2, None, t + 3)
    a(f"v_mov_b32 v{t + 4}, 0x80000000")
    a("v_cmp_gt_u32 vcc, 32, v0")
    a("s_nop 1")
    a(f"v_cndmask_b32 v{VTX}, v{t + 4}, v{VTX}, vcc")
    a("v_cmp_gt_u32 vcc, 24, v0")
    a("s_nop 1")
    a(f"v_cndmask_b32 v{VTW}, v{t + 4}, v{VTW}, vcc")


def touch(t0, nt, VTX, VTW, dst):
    m = (1 << (8 * nt)) - 1
    out = []
    if nt < 8:
        out += [f"s_mov_b32 exec_lo, 0x{m & 0xffffffff:x}", f"s_mov_b32 exec_hi, 0x{m >> 32:x}"]
    out += [f"buffer_load_dword v{dst}, v{VTW}, {S(SW)}, 0 offen",
            f"buffer_load_dword v{dst + 1}, v{VTX}, {S(SX)}, 0 offen"]
    if nt < 8:
        out.append("s_mov_b64 exec, -1")
    return out


QC = 224
SBUF = [8, 24, 40]
KB = [56, 64, 72]
VB = [80, 88, 160]
OA = 96
CM = 200
LS = 128
ONE = 240
PM = 232
P0 = 144
VM, VM2, VT, VNEG, VK, VK0 = 152, 153, 154, 244, 245, 246
YP = 176
QQ, PA = 112, 216


def emit_attn_setup(a0, MASKS, t=4):
    a = lambda x: a0(re.sub(r"\bv([456])\b", lambda m: f"v{int(m.group(1)) - 4 + t}", x))
    a("v_and_b32 v4, 31, v0")
    a("v_lshrrev_b32 v5, 5, v0")
    a("v_lshlrev_b32 v5, 2, v5")
    a("v_sub_u32 v4, v4, v5")
    for r in range(16):
        a(f"v_cmp_le_i32 s[{MASKS[r]}:{MASKS[r] + 1}], {8 * (r >> 2) + (r & 3)}, v4")
    a(f"v_mov_b32 v{VNEG}, 0xf149f2ca")
    a("v_mov_b32 v4, 0xffff")
    a("v_mov_b32 v5, 0xffff0000")
    for j in range(8):
        a(f"v_cndmask_b32 v{PM + j}, 0, v4, s[{MASKS[2 * j]}:{MASKS[2 * j] + 1}]")
        a(f"v_cndmask_b32 v6, 0, v5, s[{MASKS[2 * j + 1]}:{MASKS[2 * j + 1] + 1}]")
        a(f"v_or_b32 v{PM + j}, v{PM + j}, v6")
    a("v_lshrrev_b32 v4, 4, v0")
    a("v_lshrrev_b32 v5, 2, v0")
    a("v_xor_b32 v4, v4, v5")
    a("v_and_b32 v4, 1, v4")
    a("v_cmp_eq_u32 vcc, 0, v4")
    a("v_mov_b32 v5, 0x3f803f80")
    for i in range(4):
        a(f"v_cndmask_b32 v{ONE + i}, 0, v5, vcc")
    a(f"s_mul_i32 s42, s41, {L_HD}")
    a("s_lshl_b32 s43, s40, 11")
    a("s_add_u32 s42, s42, s43")
    a(f"v_add_u32 v{VK}, s42, v1")
    a("s_lshl_b32 s45, s33, 2")
    a("s_add_u32 s45, s45, s40")
    a("s_sub_u32 s46, 8, s45")
    a("s_cmp_lt_u32 s45, 8")
    a("s_cselect_b32 s46, s46, 0")
    a("s_cselect_b32 s43, 0x4000, 0")
    a(f"v_add_u32 v{VK0}, s43, v{VK}")
    a("s_lshl_b32 s47, s45, 5")
    a("s_lshl_b32 s42, s34, 1")
    a("s_add_u32 s47, s47, s42")
    a("s_add_u32 s47, s47, s41")
    a("s_lshl_b32 s47, s47, 11")
    a(f"s_add_u32 s47, s47, 0x{WS_OF:x}")


def prio_plan(role):
    for o in OPT:
        if o.startswith("pr" + role):
            d = o[3:]
            out, last = {}, None
            for k, c in zip([0, 2, 3, 4, 5, 6, 7, 8, 9], d):
                if c != last or k == 9:
                    out[k] = int(c)
                last = c
            return out
    return {}


def emit_attention(a, ool, hooks, MASKS, role):
    order = [8, 0, 7, 6, 5, 4, 3, 2, 1]

    def hook(k):
        if k in hooks:
            hooks[k]()

    def kread(i):
        rel, b = order[i % 9], KB[i % 3]
        return [f"ds_read_b128 {vr(b, 4)}, v{VK} offset:{rel * 2048}",
                f"ds_read_b128 {vr(b + 4, 4)}, v{VK} offset:{rel * 2048 + 1024}"]

    def vread(i):
        rel, b = order[i], VB[i % 3]
        ad = VK0 if rel == 0 else VK
        return [f"ds_read_b128 {vr(b, 4)}, v{ad} offset:{L_V + rel * 2048}",
                f"ds_read_b128 {vr(b + 4, 4)}, v{ad} offset:{L_V + rel * 2048 + 1024}"]

    def smf(i, c):
        s, k = vr(SBUF[i % 3], 16), KB[i % 3]
        return [f"v_mfma_f32_32x32x16_bf16 {s}, {vr(k, 4)}, {vr(QC, 4)}, {c}",
                f"v_mfma_f32_32x32x16_bf16 {s}, {vr(k + 4, 4)}, {vr(QC + 4, 4)}, {s}"]

    def merge():
        lf, lb = a.newlabel("mneg"), a.newlabel("mback")
        a("s_cmp_gt_u32 s46, 0")
        a(f"s_cbranch_scc1 {lf}")
        for r in range(16):
            a(f"v_cndmask_b32 v{SBUF[1] + r}, v{SBUF[1] + r}, v{SBUF[0] + r}, s[{MASKS[r]}:{MASKS[r] + 1}]")
        a.label(lb)
        ool.append((lf, [f"v_cndmask_b32 v{SBUF[1] + r}, v{VNEG}, v{SBUF[0] + r}, s[{MASKS[r]}:{MASKS[r] + 1}]"
                         for r in range(16)], lb))

    def maxblk(i):
        s = SBUF[i % 3]
        ta, tb = (VM, VM2) if i == 1 else (VT, VM2)
        if i >= 2:
            a(f"s_cmp_le_u32 s46, {order[i]}")
            a("s_cselect_b64 vcc, -1, 0")
        a(f"v_max3_f32 v{ta}, v{s}, v{s + 1}, v{s + 2}")
        a(f"v_max3_f32 v{tb}, v{s + 3}, v{s + 4}, v{s + 5}")
        for x in range(5):
            t = (ta, tb)[x & 1]
            a(f"v_max3_f32 v{t}, v{s + 6 + 2 * x}, v{s + 7 + 2 * x}, v{t}")
        a(f"v_max_f32 v{ta}, v{ta}, v{tb}")
        if i >= 2:
            a(f"v_cndmask_b32 v{ta}, v{VNEG}, v{ta}, vcc")
            a(f"v_max_f32 v{VM}, v{VM}, v{ta}")

    if 0 in hooks.get("prio", {}):
        a(f"s_setprio {hooks['prio'][0]}")
    SZ = "sz" in OPT
    for x in kread(0) + kread(1) + kread(2) + vread(0) + vread(1):
        a(x)
    if not SZ:
        a("s_waitcnt lgkmcnt(8)")
        for x in smf(0, "0"):
            a(x)
        a("s_waitcnt lgkmcnt(6)")
        for x in smf(1, "0") + kread(3):
            a(x)
        a("s_nop 7")
        a("s_nop 7")
        merge()
        maxblk(1)
        a(f"v_mov_b32 v{VT}, v{VM}")
        a("s_nop 1")
        a(f"v_permlane32_swap_b32 v{VM}, v{VT}")
        a("s_nop 1")
        a(f"v_max_f32 v{VM}, v{VM}, v{VT}")
        for r in range(16):
            a(f"v_sub_f32 v{CM + r}, 0, v{VM}")
    hook("mid")
    cm, o, ls = ("0" if SZ else vr(CM, 16)), vr(OA, 16), vr(LS, 4)

    def pv(i):
        s = SBUF[i % 3]
        if i == 1:
            return [f"v_mfma_f32_32x32x16_bf16 {o}, {vr(VB[0], 4)}, {vr(s + 8, 4)}, 0",
                    f"v_mfma_f32_16x16x32_bf16 {ls}, {vr(ONE, 4)}, {vr(s, 4)}, 0",
                    f"v_mfma_f32_32x32x16_bf16 {o}, {vr(VB[0] + 4, 4)}, {vr(s + 12, 4)}, {o}",
                    f"v_mfma_f32_16x16x32_bf16 {ls}, {vr(ONE, 4)}, {vr(s + 4, 4)}, {ls}",
                    f"v_mfma_f32_32x32x16_bf16 {o}, {vr(VB[1], 4)}, {vr(P0, 4)}, {o}",
                    f"v_mfma_f32_32x32x16_bf16 {o}, {vr(VB[1] + 4, 4)}, {vr(P0 + 4, 4)}, {o}"]
        v = VB[i % 3]
        return [f"v_mfma_f32_32x32x16_bf16 {o}, {vr(v, 4)}, {vr(s, 4)}, {o}",
                f"v_mfma_f32_16x16x32_bf16 {ls}, {vr(ONE, 4)}, {vr(s, 4)}, {ls}",
                f"v_mfma_f32_32x32x16_bf16 {o}, {vr(v + 4, 4)}, {vr(s + 4, 4)}, {o}",
                f"v_mfma_f32_16x16x32_bf16 {ls}, {vr(ONE, 4)}, {vr(s + 4, 4)}, {ls}"]

    def valu(i):
        s = SBUF[i % 3]
        return [(f"v_exp_f32 v{s + r}, v{s + r}", 8) for r in range(16)] + \
               [(f"v_cvt_pk_bf16_f32 v{s + j}, v{s + 2 * j}, v{s + 2 * j + 1}", 4) for j in range(8)]

    def weave(ms, vs):
        vs = list(vs)
        for m in ms:
            a(m)
            need = (32 if "32x32" in m else 16) - 8
            while vs and need > 0:
                x, c = vs.pop(0)
                a(x)
                need -= c
        for x, c in vs:
            a(x)

    fin = a.newlabel("afin")
    if SZ:
        for i in range(3):
            a(f"s_waitcnt lgkmcnt({8 - 2 * i})")
            for x in smf(i, cm):
                a(x)
        for x in kread(3):
            a(x)
        merge()
    else:
        a("s_waitcnt lgkmcnt(6)")
        for x in smf(2, cm):
            a(x)
        for r in range(16):
            a(f"v_sub_f32 v{SBUF[1] + r}, v{SBUF[1] + r}, v{VM}")
    s = SBUF[1]
    for x, c in valu(1):
        a(x)
    for j in range(8):
        a(f"v_and_b32 v{s + 8 + j}, v{s + j}, v{PM + j}")
    for j in range(8):
        a(f"v_xor_b32 v{P0 + j}, v{s + j}, v{s + 8 + j}")
    blk = hooks.get("blk", {})
    for i in range(2, 9):
        ex = a.newlabel("aexit")
        a("s_waitcnt lgkmcnt(0)")
        a(f"s_cmp_gt_u32 s46, {order[i]}")
        a(f"s_cbranch_scc1 {ex}")
        ool.append((ex, pv(i - 1) + [x for k in range(i, 9) for x in blk.get(k, [])], fin))
        if i in hooks.get("prio", {}):
            a(f"s_setprio {hooks['prio'][i]}")
        for x in blk.get(i, []):
            a(x)
        for x in vread(i) + (kread(i + 2) if i + 2 < 9 else []):
            a(x)
        weave((smf(i + 1, cm) if i + 1 < 9 else []) + pv(i - 1), valu(i))
    a("s_waitcnt lgkmcnt(0)")
    for x in pv(8):
        a(x)
    a.label(fin)
    if 9 in hooks.get("prio", {}):
        a(f"s_setprio {hooks['prio'][9]}")
    hook("end")
    a("s_nop 7")
    a("s_nop 3")
    a(f"v_rcp_f32 v{VT}, v{LS}")
    a(f"v_mul_f32 v{VM2}, 0, v{OA}")
    for r in range(1, 16):
        a(f"v_fmac_f32 v{LS if r & 1 else VM2}, 0, v{OA + r}")
    a(f"v_add_f32 v{VM2}, v{VM2}, v{LS}")
    a(f"v_add_f32 v{VM2}, v{VM2}, v{VT}")
    a(f"v_cmp_gt_f32 vcc, 0x{0x3f800000 + (optval('thr', 30) << 23):x}, v{VM2}")
    a(f"s_mov_b32 s101, {int(role == 'M')}")
    a("s_nop 0")
    a("s_cmp_eq_u64 vcc, -1")
    a("s_cbranch_scc0 L_exact")
    a.label(f"L_norm{role}")
    for r in range(16):
        a(f"v_mul_f32 v{OA + r}, v{OA + r}, v{VT}")
    for j in range(8):
        a(f"v_cvt_pk_bf16_f32 v{OA + j}, v{OA + 2 * j}, v{OA + 2 * j + 1}")
    a(f"buffer_store_dwordx4 {vr(OA, 4)}, v1, {S(SWS)}, s47 offen{SC}")
    a(f"buffer_store_dwordx4 {vr(OA + 4, 4)}, v1, {S(SWS)}, s47 offen offset:1024{SC}")


def emit_exact(a):
    s, k, v, cm = SBUF[0], KB[0], VB[0], CM
    VD, VN = SBUF[1], SBUF[1] + 1
    a.label("L_exact")
    a("s_waitcnt vmcnt(0) lgkmcnt(0)")
    a(f"v_and_b32 v{VD}, 31, v0")
    a(f"v_lshrrev_b32 v{VN}, 5, v0")
    a(f"v_lshlrev_b32 v{VN}, 2, v{VN}")
    a(f"v_sub_u32 v{VD}, v{VD}, v{VN}")
    a(f"v_mov_b32 v{VN}, 0xf149f2ca")
    a(f"v_mov_b32 v{VM}, v{VN}")
    a("s_lshl_b32 s4, s34, 1")
    a("s_add_u32 s4, s4, s41")
    a("s_lshl_b32 s4, s4, 6")
    a("s_add_u32 s4, s4, s45")
    a("s_lshl_b32 s4, s4, 11")
    a(f"s_add_u32 s4, s4, 0x{WS_KF - 8 * 2048:x}")
    a("s_sub_u32 s5, 8, s45")
    a("s_cmp_lt_u32 s45, 8")
    a("s_cselect_b32 s5, s5, 0")
    for r in range(16):
        a(f"v_mov_b32 v{cm + r}, 0")
        a(f"v_mov_b32 v{OA + r}, 0")
    for r in range(4):
        a(f"v_mov_b32 v{LS + r}, 0")
    a("s_mov_b32 s9, 0")
    a.label("L_expass")
    a("s_mov_b32 s6, s5")
    a.label("L_extile")
    a("s_lshl_b32 s7, s6, 11")
    a("s_add_u32 s7, s7, s4")
    a(f"s_add_u32 s8, s7, 0x{WS_VF - WS_KF:x}")
    for st in range(2):
        a(f"buffer_load_dwordx4 {vr(k + 4 * st, 4)}, v1, {S(SWS)}, s7 offen offset:{1024 * st}")
        a(f"buffer_load_dwordx4 {vr(v + 4 * st, 4)}, v1, {S(SWS)}, s8 offen offset:{1024 * st}")
    a("s_waitcnt vmcnt(0)")
    a(f"v_mfma_f32_32x32x16_bf16 {vr(s, 16)}, {vr(k, 4)}, {vr(QC, 4)}, {vr(cm, 16)}")
    a(f"v_mfma_f32_32x32x16_bf16 {vr(s, 16)}, {vr(k + 4, 4)}, {vr(QC + 4, 4)}, {vr(s, 16)}")
    a("s_nop 7")
    a("s_nop 7")
    for rel, op in ((8, "le"), (0, "gt")):
        a(f"s_cmp_lg_u32 s6, {rel}")
        a(f"s_cbranch_scc1 L_exm{rel}")
        for r in range(16):
            a(f"v_cmp_{op}_i32 vcc, {8 * (r >> 2) + (r & 3)}, v{VD}")
            a(f"v_cndmask_b32 v{s + r}, v{VN}, v{s + r}, vcc")
        a.label(f"L_exm{rel}")
    a("s_cmp_lg_u32 s9, 0")
    a("s_cbranch_scc1 L_exp2")
    for r in range(16):
        a(f"v_max_f32 v{VM}, v{VM}, v{s + r}")
    a("s_branch L_exnext")
    a.label("L_exp2")
    for r in range(16):
        a(f"v_exp_f32 v{s + r}, v{s + r}")
    a("s_nop 0")
    for j in range(8):
        a(f"v_cvt_pk_bf16_f32 v{s + j}, v{s + 2 * j}, v{s + 2 * j + 1}")
    a("s_nop 1")
    for st in range(2):
        a(f"v_mfma_f32_32x32x16_bf16 {vr(OA, 16)}, {vr(v + 4 * st, 4)}, {vr(s + 4 * st, 4)}, {vr(OA, 16)}")
        a(f"v_mfma_f32_16x16x32_bf16 {vr(LS, 4)}, {vr(ONE, 4)}, {vr(s + 4 * st, 4)}, {vr(LS, 4)}")
    a("s_nop 7")
    a("s_nop 7")
    a.label("L_exnext")
    a("s_add_u32 s6, s6, 1")
    a("s_cmp_le_u32 s6, 8")
    a("s_cbranch_scc1 L_extile")
    a("s_cmp_lg_u32 s9, 0")
    a("s_cbranch_scc1 L_exdone")
    a(f"v_mov_b32 v{VT}, v{VM}")
    a("s_nop 1")
    a(f"v_permlane32_swap_b32 v{VM}, v{VT}")
    a("s_nop 1")
    a(f"v_max_f32 v{VM}, v{VM}, v{VT}")
    for r in range(16):
        a(f"v_sub_f32 v{cm + r}, 0, v{VM}")
    a("s_mov_b32 s9, 1")
    a("s_branch L_expass")
    a.label("L_exdone")
    a(f"v_rcp_f32 v{VT}, v{LS}")
    a("s_cmp_eq_u32 s101, 1")
    a("s_cbranch_scc1 L_normM")
    a("s_branch L_normH")


def emit_conv(a, hooks):
    ACC, FB = 8, [40, 104]
    VA, VBB, VEB, VSO = 168, 172, 173, 174
    a("v_and_b32 v2, 15, v0")
    a("v_lshrrev_b32 v3, 4, v0")
    a("v_add_u32 v4, 1, v2")
    a("v_and_b32 v5, 1, v4")
    a("v_sub_u32 v4, v4, v5")
    a("v_lshl_add_u32 v4, v3, 3, v4")
    a("v_lshlrev_b32 v4, 1, v4")
    a(f"v_mul_u32_u24 v5, {CPY}, v5")
    a(f"v_add3_u32 v{VA}, v4, v5, s46")
    for i in range(1, 4):
        a(f"v_add_u32 v{VA + i}, {1024 * i}, v{VA}")
    a("v_lshlrev_b32 v4, 5, v2")
    a("v_lshlrev_b32 v5, 4, v3")
    a(f"v_sub_u32 v{VBB}, v5, v4")
    a(f"v_add_u32 v{VBB}, {URO + 480}, v{VBB}")
    a(f"v_add_u32 v{VBB}, s46, v{VBB}")
    a("v_lshlrev_b32 v5, 3, v3")
    a(f"v_add_u32 v{VSO}, v4, v5")
    a(f"v_sub_u32 v{VEB}, {URO + 504}, v{VSO}")
    a(f"v_add_u32 v{VEB}, s46, v{VEB}")

    def creads(j, buf):
        f = FB[buf]
        out = []
        for q in range(8):
            o = (q & 1) * 128 + 16 * j
            va = VA + (q >> 1)
            out.append(f"ds_read2_b32 {vr(f + 4 * q, 2)}, v{va} offset0:{o} offset1:{o + 1}")
            out.append(f"ds_read2_b32 {vr(f + 4 * q + 2, 2)}, v{va} offset0:{o + 2} offset1:{o + 3}")
            out.append(f"ds_read_b128 {vr(f + 32 + 4 * q, 4)}, v{VBB} offset:{512 * (7 - q) + 64 * j}")
        return out

    pairs = [(q, dl) for q in range(8) for dl in range(8 - q)]
    pairs.sort(key=lambda x: (max(x[0], x[1]), x[0] + x[1], x[0]))
    seq, rest = [], list(pairs)
    while rest:
        pick = next((p for p in rest if all(p[0] + p[1] != s[0] + s[1] for s in seq[-2:])), rest[0])
        rest.remove(pick)
        seq.append(pick)

    def cmfmas(j, buf):
        f = FB[buf]
        seen, out = set(), []
        for (q, dl) in seq:
            nt = q + dl
            d = vr(ACC + 4 * nt, 4)
            c = "0" if (j == 0 and nt not in seen) else d
            seen.add(nt)
            out.append(f"v_mfma_f32_16x16x32_bf16 {d}, {vr(f + 4 * q, 4)}, {vr(f + 32 + 4 * dl, 4)}, {c}")
        return out

    extra = list(hooks.get("extra", []))
    if "start" in hooks:
        hooks["start"]()
    for i, r in enumerate(creads(0, 0)):
        a(r)
        if i % 12 == 11:
            a("s_waitcnt lgkmcnt(4)")
    for j in range(8):
        m = cmfmas(j, j & 1)
        r = creads(j + 1, (j + 1) & 1) if j < 7 else \
            [f"ds_read_b64 {vr(FB[0] + 2 * nt, 2)}, v{VEB} offset:{512 * (7 - nt)}" for nt in range(8)]
        a("s_waitcnt lgkmcnt(0)")
        ri = 0
        if "cnolds" in OPT and j < 7:
            r = []
        for i, mm in enumerate(m):
            a(mm if "cnomfma" not in OPT else "s_nop 3")
            if ri < len(r):
                a(r[ri]); ri += 1
            if j >= 1 and extra:
                a(extra.pop(0))
        assert ri == len(r)
    a("s_nop 7")
    a("s_waitcnt lgkmcnt(0)")
    stores = []
    for nt in range(8):
        k0, k1 = FB[0] + 2 * nt, FB[0] + 2 * nt + 1
        t = FB[0] + 16 + 4 * (nt & 1)
        ac = ACC + 4 * nt
        a(f"v_and_b32 v{t}, 0xffff0000, v{k1}")
        a(f"v_lshlrev_b32 v{t + 1}, 16, v{k1}")
        a(f"v_and_b32 v{t + 2}, 0xffff0000, v{k0}")
        a(f"v_lshlrev_b32 v{t + 3}, 16, v{k0}")
        for e in range(4):
            a(f"v_fmac_f32 v{ac + e}, s39, v{t + e}")
        a(f"v_cvt_pk_bf16_f32 v{YP + 2 * nt}, v{ac}, v{ac + 1}")
        a(f"v_cvt_pk_bf16_f32 v{YP + 2 * nt + 1}, v{ac + 2}, v{ac + 3}")
        st = f"buffer_store_dwordx2 {vr(YP + 2 * nt, 2)}, v{VSO}, {S(SWS)}, s36 offen offset:{512 * nt}{SC}"
        if "yearly" in OPT:
            a(st)
        else:
            stores.append(st)
    return stores


def emit_lds_wait(a, vaddr, off, t):
    lp, dn = a.newlabel("lw"), a.newlabel("lwd")
    a("s_mov_b32 s85, 0")
    a.label(lp)
    a(f"ds_read_b128 {vr(t, 4)}, v{vaddr} offset:{off}")
    a("s_waitcnt lgkmcnt(0)")
    a(f"v_and_b32 v{t}, v{t}, v{t + 1}")
    a(f"v_and_b32 v{t + 2}, v{t + 2}, v{t + 3}")
    a(f"v_and_b32 v{t}, v{t}, v{t + 2}")
    a("s_add_u32 s85, s85, 1")
    a(f"v_readfirstlane_b32 s80, v{t}")
    a("s_nop 1")
    a("s_cmp_lg_u32 s80, 0")
    a(f"s_cbranch_scc1 {dn}")
    a(f"s_cmp_lt_u32 s85, 0x{SPIN_LIMIT:x}")
    a(f"s_cbranch_scc1 {lp}")
    a.label(dn)


def p1_lists():
    KK, VV, WR = 124, 146, 162
    AK, AH, AS, AO = 174, 175, 176, 177
    KF_, WF_, RS_, TT, PO = 12, 56, 72, 104, 108
    soffs = ["0", "s50", "s51", "s52"]
    setup, loads, comp, stores = [], [], [], []
    a = setup.append
    a("v_lshrrev_b32 v24, 3, v0")
    a("v_and_b32 v25, 7, v0")
    a("s_lshl_b32 s80, s35, 6")
    a("s_lshl_b32 s81, s3, 2")
    a("s_add_u32 s81, s81, s44")
    a("s_lshl_b32 s81, s81, 5")
    a("v_lshlrev_b32 v24, 3, v24")
    a("v_add_u32 v24, s80, v24")
    a("v_lshlrev_b32 v25, 2, v25")
    a("v_add_u32 v25, s81, v25")
    a(f"v_lshlrev_b32 v{AK}, 11, v24")
    a(f"v_lshl_add_u32 v{AK}, v25, 1, v{AK}")
    a("s_mov_b32 s50, 4096")
    a("s_mov_b32 s51, 8192")
    a("s_mov_b32 s52, 12288")
    a(f"v_subrev_u32 v{AH}, 6144, v{AK}")
    a("v_mov_b32 v26, 0x80000000")
    a("v_cmp_gt_u32 vcc, 3, v24")
    a(f"v_lshlrev_b32 v{AO}, 12, v25")
    a("v_sub_u32 v24, 2040, v24")
    a(f"v_cndmask_b32 v{AH}, v{AH}, v26, vcc")
    a(f"v_lshlrev_b32 v{AS}, 3, v25")
    a(f"v_lshl_add_u32 v{AO}, v24, 1, v{AO}")
    loads.append(f"buffer_load_dwordx4 {vr(WR, 4)}, v{AS}, {S(SSH)}, 0 offen")
    loads.append(f"buffer_load_dwordx4 {vr(WR + 4, 4)}, v{AS}, {S(SSH)}, 0 offen offset:16")
    for i in range(3):
        loads.append(f"buffer_load_dwordx2 {vr(KK + 2 * i, 2)}, v{AH}, {S(SK)}, {soffs[i >> 1]} offen offset:{(i & 1) * 2048} {nt('p')}")
    for i in range(8):
        loads.append(f"buffer_load_dwordx2 {vr(KK + 6 + 2 * i, 2)}, v{AK}, {S(SK)}, {soffs[i >> 1]} offen offset:{(i & 1) * 2048} {nt('p')}")
    for i in range(8):
        loads.append(f"buffer_load_dwordx2 {vr(VV + 2 * i, 2)}, v{AK}, {S(SV)}, {soffs[i >> 1]} offen offset:{(i & 1) * 2048} {nt('p')}")
    a = comp.append
    for dd in range(4):
        for h2 in range(2):
            src = WR + 2 * dd + h2
            a(f"v_lshlrev_b32 v{WF_ + 4 * dd + 2 * h2}, 16, v{src}")
            a(f"v_and_b32 v{WF_ + 4 * dd + 2 * h2 + 1}, 0xffff0000, v{src}")
    for i in range(11):
        for h2 in range(2):
            src = KK + 2 * i + h2
            a(f"v_lshlrev_b32 v{KF_ + 4 * i + 2 * h2}, 16, v{src}")
            a(f"v_and_b32 v{KF_ + 4 * i + 2 * h2 + 1}, 0xffff0000, v{src}")
    for s_ in range(8):
        for dd in range(4):
            r = RS_ + 4 * s_ + dd
            a(f"v_mul_f32 v{r}, v{KF_ + 4 * (s_ + 3) + dd}, v{WF_ + 4 * dd}")
            for j in range(1, 4):
                a(f"v_fmac_f32 v{r}, v{KF_ + 4 * (s_ + 3 - j) + dd}, v{WF_ + 4 * dd + j}")
    for s_ in range(8):
        for dd in range(4):
            r = RS_ + 4 * s_ + dd
            src = VV + 2 * s_ + (dd >> 1)
            t = TT + (dd & 1)
            a(f"v_and_b32 v{t}, 0xffff0000, v{src}" if dd & 1 else f"v_lshlrev_b32 v{t}, 16, v{src}")
            a(f"v_mul_f32 v{r}, v{r}, v{t}")
    stores.append(f"s_mov_b32 s53, 0x{WS_UR:x}")
    for dd in range(4):
        o = PO + 4 * dd
        for j in range(4):
            stores.append(f"v_cvt_pk_bf16_f32 v{o + j}, v{RS_ + 4 * (7 - 2 * j) + dd}, v{RS_ + 4 * (6 - 2 * j) + dd}")
        stores.append(f"buffer_store_dwordx4 {vr(o, 4)}, v{AO}, {S(SWS)}, s53 offen{SC}")
        if dd < 3:
            stores.append("s_add_u32 s53, s53, 4096")
    return setup, loads, comp, stores


L_W, L_X2 = 32768, 124928
W_RDY, W_PROG = 32, 36
VZ = 252
VLF = 251
SRDS = [(SX, 48, 4 * MB), (SW, 56, 6 * MB), (SWS, 88, WS_SIZE), (SK, 8, 4 * MB), (SV, 16, 4 * MB),
        (SSH, 24, 8192), (SHK, 32, 4 * MB), (SWO, 64, 2 * MB), (SQ, 0, 4 * MB), (SOUT, 72, 8 * MB),
        (SDBG, 80, 256)]


def late_setup(a, ts, helper=True):
    if helper:
        a("s_lshl_b32 s84, s3, 5")
        a("s_add_u32 s84, s84, s35")
        a("s_lshl_b32 s80, s84, 3")
        a("s_load_dwordx2 s[76:77], s[36:37], s80")
    a("s_lshl_b32 s89, s2, 7")
    a("s_lshl_b32 s81, s32, 3")
    a("s_add_u32 s89, s89, s81")
    for (d, off, size) in SRDS[2:]:
        a(f"s_mov_b32 s{d + 2}, 0x{size:x}")
        a(f"s_mov_b32 s{d + 3}, 0x20000")
    ts.setup(a, SWS)


def g2_tile(a):
    a("s_and_b32 s86, s3, 1")
    a("s_lshl_b32 s86, s86, 1")
    a("s_bfe_u32 s80, s3, 0x10001")
    a("s_add_u32 s86, s86, s80")
    a("s_lshl_b32 s86, s86, 2")
    a("s_and_b32 s80, s35, 3")
    a("s_add_u32 s86, s86, s80")
    a("s_lshr_b32 s42, s3, 2")
    a("s_lshl_b32 s42, s42, 3")
    a("s_lshr_b32 s43, s35, 2")
    a("s_add_u32 s42, s42, s43")


def wo_addr(a0, t=4):
    a = lambda x: a0(re.sub(r"\bv([456])\b", lambda m: f"v{int(m.group(1)) - 4 + t}", x))
    a("v_lshrrev_b32 v4, 3, v0")
    a("v_and_b32 v5, 7, v0")
    a("v_bfe_u32 v6, v0, 4, 1")
    a("v_lshlrev_b32 v6, 2, v6")
    a("v_xor_b32 v6, v6, v5")
    a("v_lshlrev_b32 v250, 11, v4")
    a("v_lshl_add_u32 v250, v6, 4, v250")
    a("s_lshl_b32 s80, s42, 7")
    a("v_add_u32 v250, s80, v250")
    a("s_lshl_b32 s84, s32, 11")
    a("s_lshl_b32 s88, s32, 15")


NE = 3


def wo_part(p, dst, dw=0):
    return [f"s_add_u32 m0, s84, {dst + dw * 2048}",
            f"s_add_u32 s81, s43, {p}",
            "s_and_b32 s81, s81, 7",
            "s_lshl_b32 s81, s81, 18",
            "s_add_u32 s81, s81, s88"] + ([f"s_add_u32 s81, s81, {dw * 32768}"] if dw else []) + [
            f"buffer_load_dwordx4 v250, {S(SWO)}, s81 offen lds",
            f"s_add_u32 s81, s81, {16384 - 1024}",
            f"buffer_load_dwordx4 v250, {S(SWO)}, s81 offen offset:1024 lds"]


def wo_early():
    b0 = optval("we", 3)
    return {b0 + p: wo_part(p, L_R0 + p * 16384) for p in range(NE)}


P4 = [x * 4096 for x in list(range(0, 6)) + list(range(9, 18)) + list(range(21, 26))]
WLOC = [L_R0 + k * 2048 for k in range(8 * NE)] + [P4[k >> 1] + (k & 1) * 2048 for k in range(40)]
NLATE = 10


def blk7_flag():
    b = Asm()
    lds_flag_set(b, 32, 16, 158)
    return [x.strip() for x in b.L]


def wo_late(a, ts, nyoung, helper):
    def stage():
        a("s_and_b32 s83, s32, 3")
        a("s_lshl_b32 s82, s83, 10")
        a("s_lshl_b32 s81, s43, 4")
        a("s_add_u32 s83, s83, s81")
        for i in range(NLATE):
            p = 2 * i + int(helper)
            a(f"s_add_u32 m0, s82, {P4[p]}")
            a(f"s_add_u32 s81, s83, {16 * NE + 4 * p}")
            a("s_and_b32 s81, s81, 127")
            a("s_lshl_b32 s81, s81, 14")
            a(f"buffer_load_dwordx4 v250, {S(SWO)}, s81 offen lds")

    ES = optval("es", 0)
    if ES == 1:
        emit_lds_wait(a, VLF, 64, 8)
        emit_lds_wait(a, VLF, 80, 8)
        stage()
        a(f"s_waitcnt vmcnt({nyoung + NLATE})")
    else:
        a(f"s_waitcnt vmcnt({nyoung})")
    emit_publish(a, FL_O, 220, VZ)
    lds_flag_set(a, 32, 8, 222)
    if ES == 2:
        emit_lds_wait(a, VLF, 64, 8)
        emit_lds_wait(a, VLF, 80, 8)
        stage()
    if ES == 0 or not helper:
        emit_lds_wait(a, VLF, 32, 8)
        emit_lds_wait(a, VLF, 48, 8)
    ts.stamp(a, 7)
    if ES == 0:
        stage()


def lds_flag_set(a, word_s, word_add, t):
    a(f"s_lshl_b32 s80, s{word_s}, 2")
    a(f"v_add_u32 v{t}, s80, v{VLF}")
    a(f"v_mov_b32 v{t + 1}, 1")
    a(f"ds_write_b32 v{t}, v{t + 1} offset:{4 * word_add}")


def m_path(a, ts, ool):
    ACC = 80
    PD = optval('pd', 2)
    FR = [16, 36, 56, 192, 212][:PD + 1]
    NB = PD + 1
    LZ = 'lz' in OPT
    XA, WB, XA2 = 2, 6, 8
    a(f"v_lshl_add_u32 v2, v0, 2, v{VLF}")
    a(f"ds_write_b32 v2, v{VZ}")
    def code_touch():
        lcp = a.newlabel("nocp")
        a("s_cmp_lg_u32 s32, 1")
        a(f"s_cbranch_scc1 {lcp}")
        a("s_mov_b32 exec_hi, 0")
        a("buffer_load_dword v188, v189, s[52:55], s56 offen")
        a("s_mov_b32 exec_hi, -1")
        a.label(lcp)

    CQ = [int(o[2:]) for o in OPT if o.startswith("cq")]
    if "cp" in OPT or CQ:
        a("s_getpc_b64 s[52:53]")
        a.label("L_pc")
        a(f"s_sub_u32 s52, s52, L_pc-{NAME}_kernel")
        a("s_subb_u32 s53, s53, 0")
        a(f"s_mov_b32 s54, L_end-{NAME}_kernel")
        a("s_mov_b32 s55, 0x20000")
        a("s_lshl_b32 s56, s35, 11")
        a("v_lshlrev_b32 v189, 6, v0")
    if "cp" in OPT:
        code_touch()
    SW_ = {}
    for o in OPT:
        if o.startswith("sw"):
            m, n = o[2:].split("_")
            SW_[int(n)] = int(m)
    if SW_:
        a("s_lshl_b32 s80, s35, 2")
        a("s_add_u32 s80, s80, s32")
        a("s_mul_i32 s81, s80, 6")
        a("v_and_b32 v3, 7, v0")
        a("v_lshrrev_b32 v184, 3, v0")
        a("v_mul_u32_u24 v184, 768, v184")
        a("v_add3_u32 v184, v184, v3, s81")
        a("v_lshlrev_b32 v184, 11, v184")
        a("s_lshr_b32 s81, s3, 2")
        a("s_lshl_b32 s81, s81, 10")
        a("s_add_u32 s81, s81, 0x180")
        a("v_add_u32 v184, s81, v184")
        a("s_bitcmp1_b32 s3, 1")
        a("s_cselect_b32 s81, 0, 6")
        a("v_mov_b32 v2, 0x80000000")
        a("v_cmp_gt_u32 vcc, s81, v3")
        a("s_nop 1")
        a("v_cndmask_b32 v184, v2, v184, vcc")

    def slow_touch(n):
        if n in SW_:
            a(f"s_mov_b64 exec, 0x{sum(0xff << (8 * q) for q in range(4) if SW_[n] >> q & 1):x}")
            a(f"buffer_load_dword v177, v184, {S(SW)}, 0 offen")
            a("s_mov_b64 exec, -1")

    a("s_waitcnt lgkmcnt(0)")
    a("s_barrier")
    slow_touch(99)
    late_setup(a, ts, False)
    ltk = a.newlabel("notok")
    a("s_cmp_lg_u32 s89, 0")
    a(f"s_cbranch_scc1 {ltk}")
    a("s_memrealtime s[78:79]")
    a("s_waitcnt lgkmcnt(0)")
    a("s_or_b32 s78, s78, 1")
    a("v_mov_b32 v180, s78")
    a("v_mov_b32 v181, s79")
    a("s_mov_b64 exec, 1")
    a(f"buffer_store_dwordx2 v[180:181], v{VZ}, {S(SDBG)}, 0 offen{SC}")
    a("s_mov_b64 exec, -1")
    a.label(ltk)
    a("s_waitcnt lgkmcnt(0)")
    a("s_and_b32 s44, s32, 1")
    a("s_lshr_b32 s41, s32, 1")
    a("s_lshl_b32 s40, s44, 1")
    a("v_and_b32 v8, 31, v0")
    a("v_lshrrev_b32 v9, 5, v0")
    a("v_lshrrev_b32 v10, 1, v8")
    a("v_and_b32 v10, 7, v10")
    a("v_lshlrev_b32 v11, 7, v8")
    a("s_lshl_b32 s46, s44, 13")
    a("v_add_u32 v11, s46, v11")
    for ks in range(4):
        a(f"v_add_u32 v12, {2 * ks}, v9")
        a("v_xor_b32 v12, v12, v10")
        a(f"v_lshl_add_u32 v{XA + ks}, v12, 4, v11")
    a("v_and_b32 v10, 15, v0")
    a("v_lshrrev_b32 v11, 4, v0")
    a("v_lshrrev_b32 v12, 2, v10")
    a("v_lshl_add_u32 v12, v9, 3, v12")
    a("v_mul_u32_u24 v12, 384, v12")
    a("v_lshrrev_b32 v13, 3, v10")
    a("v_xor_b32 v13, s41, v13")
    a("v_lshl_add_u32 v12, v13, 6, v12")
    a("v_and_b32 v13, 1, v11")
    a("v_lshl_add_u32 v12, v13, 5, v12")
    a("v_and_b32 v13, 3, v10")
    a("v_lshl_add_u32 v12, v13, 3, v12")
    a(f"v_add_u32 v{WB}, {L_W}, v12")
    a(f"v_add_u32 v{WB + 1}, {L_W + 10 * 6144}, v12")
    for ks in range(4):
        a(f"v_add_u32 v{XA2 + ks}, {L_X2}, v{XA + ks}")

    def reads(t, ks, buf):
        st = (t + 2) & 3
        f = FR[buf]
        xa = (XA2 if st >= 2 else XA) + ks
        xo = (st & 1) * 16384
        slot = (4 * t + ks + 4) % 15
        wb = WB + (slot >= 10)
        wo = (slot % 10) * 6144
        return [f"ds_read_b128 {vr(f, 4)}, v{xa} offset:{xo}",
                f"ds_read_b64_tr_b16 {vr(f + 8, 2)}, v{wb} offset:{wo}",
                f"ds_read_b64_tr_b16 {vr(f + 10, 2)}, v{wb} offset:{wo + 4 * 384}",
                f"ds_read_b128 {vr(f + 4, 4)}, v{xa} offset:{xo + 4096}",
                f"ds_read_b64_tr_b16 {vr(f + 12, 2)}, v{wb} offset:{wo + 128}",
                f"ds_read_b64_tr_b16 {vr(f + 14, 2)}, v{wb} offset:{wo + 128 + 4 * 384}",
                f"ds_read_b64_tr_b16 {vr(f + 16, 2)}, v{wb} offset:{wo + 256}",
                f"ds_read_b64_tr_b16 {vr(f + 18, 2)}, v{wb} offset:{wo + 256 + 4 * 384}"]

    def mfmas(buf, first, last):
        f = FR[buf]
        X = [vr(f, 4), vr(f + 4, 4)]
        W = [vr(f + 8, 4), vr(f + 12, 4), vr(f + 16, 4)]
        out = []
        for part in ((1, 2, 0) if last else (0, 1, 2)):
            for rt in range(2):
                d = vr(ACC + 16 * (2 * part + rt), 16)
                c = "0" if first else d
                if part < 2:
                    out.append(f"v_mfma_f32_32x32x16_bf16 {d}, {W[part]}, {X[rt]}, {c}")
                else:
                    out.append(f"v_mfma_f32_32x32x16_bf16 {d}, {X[rt]}, {W[part]}, {c}")
        return out

    a("s_lshl_b32 s46, s34, 1")
    a("s_add_u32 s46, s46, s41")
    a("s_lshl_b32 s46, s46, 6")
    a("s_lshl_b32 s47, s33, 2")
    a("s_add_u32 s46, s46, s47")
    a("s_add_u32 s48, s46, s40")
    a("s_lshl_b32 s48, s48, 11")
    a(f"s_add_u32 s49, s48, 0x{WS_VF:x}")
    a(f"s_add_u32 s48, s48, 0x{WS_KF:x}")
    a(f"s_mul_i32 s80, s41, {L_HD}")
    a("s_lshl_b32 s81, s44, 12")
    a("s_add_u32 s80, s80, s81")
    a("v_add_u32 v182, s80, v1")
    a("s_lshl_b32 s80, s32, 11")
    a(f"s_add_u32 s80, s80, {L_QH}")
    a("v_add_u32 v183, s80, v1")

    def setup2():
        a("s_add_u32 s38, s33, s44")
        a("s_sub_u32 s80, s38, 2")
        a("s_max_i32 s80, s80, 0")
        a("v_mov_b32 v20, s80")
        a("v_mov_b32 v21, s34")
        emit_wg_of(a, 190, 20, 21, 22)
        a("v_and_b32 v20, 1, v0")
        a("v_lshl_add_u32 v190, v20, 3, v190")
        a("s_lshl_b32 s80, s41, 4")
        a(f"s_add_u32 s80, s80, 0x{WS_FL + FL_K * 32768:x}")
        a("v_add_u32 v190, s80, v190")
        a("s_lshl_b32 s80, s44, 2")
        a("s_add_u32 s36, s46, s80")
        a("s_lshl_b32 s36, s36, 11")
        a(f"s_add_u32 s36, s36, 0x{WS_KF - 8 * 2048:x}")
        a(f"s_mul_i32 s37, s41, {L_HD}")
        a("s_lshl_b32 s80, s44, 13")
        a("s_add_u32 s37, s37, s80")
        emit_attn_setup(a, MASKS_M, 20)
        g2_tile(a)
        wo_addr(a, 20)
        a("s_lshl_b32 s80, s35, 2")
        a("s_add_u32 s80, s80, s32")
        a("s_lshl_b32 s80, s80, 6")
        a("v_add_u32 v20, s80, v0")
        a("v_lshrrev_b32 v198, 3, v20")
        a("v_lshlrev_b32 v198, 11, v198")
        a("v_and_b32 v20, 7, v20")
        a("v_lshl_add_u32 v198, v20, 7, v198")
        a("s_lshr_b32 s80, s3, 2")
        a("s_lshl_b32 s80, s80, 10")
        a("v_add_u32 v198, s80, v198")
        a("s_lshl_b32 s80, s35, 6")
        a("s_lshl_b32 s81, s32, 4")
        a("s_add_u32 s80, s80, s81")
        a("v_bfe_u32 v20, v0, 1, 4")
        a("v_add_u32 v20, s80, v20")
        a("v_lshlrev_b32 v20, 11, v20")
        a("v_and_b32 v21, 1, v0")
        a("v_lshl_add_u32 v20, v21, 7, v20")
        a("s_lshl_b32 s80, s3, 8")
        a("v_add_u32 v199, s80, v20")

    if "ls" not in OPT:
        setup2()
    KT, FT = optval("kt", -1), optval("ft", -1)
    if KT >= 0:
        a("v_and_b32 v185, 31, v0")
        a("v_lshlrev_b32 v185, 7, v185")
        a("v_lshrrev_b32 v20, 5, v0")
        a("v_lshl_add_u32 v185, v20, 22, v185")
    if FT >= 0:
        a("v_lshlrev_b32 v194, 15, v0")
        a("s_lshl_b32 s80, s2, 7")
        a(f"s_add_u32 s80, s80, 0x{WS_FL:x}")
        a("v_add_u32 v194, s80, v194")
        a("s_cmp_eq_u32 s32, 2")
        a("s_cselect_b32 s80, 4, 0")
        a("v_mov_b32 v193, 0x80000000")
        a("v_cmp_gt_u32 vcc, s80, v0")
        a("s_nop 1")
        a("v_cndmask_b32 v194, v193, v194, vcc")
    slow_touch(98)
    a("s_lshl_b32 s80, s32, 2")
    a(f"v_add_u32 v185, s80, v{VLF}")
    RD = 76
    rdr = f"ds_read_b128 {vr(RD, 4)}, v{VLF} offset:{4 * W_RDY}"

    def rdy_test(t):
        return [f"v_min3_u32 v{RD}, v{RD}, v{RD + 1}, v{RD + 2}",
                f"v_min_u32 v{RD}, v{RD}, v{RD + 3}",
                "s_nop 0",
                f"v_readfirstlane_b32 s80, v{RD}",
                "s_nop 1",
                f"s_cmp_gt_u32 s80, {t}"]

    def rdy_check(t, inline):
        lp, bk = a.newlabel("rdy"), a.newlabel("rdyb")
        spin = ["s_mov_b32 s85, 0", f"{lp}_l:", rdr, "s_add_u32 s85, s85, 1", "s_waitcnt lgkmcnt(0)"] + rdy_test(t) + \
               [f"s_cbranch_scc1 {bk}", f"s_sleep {optval('ms', 1)}", f"s_cmp_lt_u32 s85, 0x{SPIN_LIMIT:x}", f"s_cbranch_scc1 {lp}_l"]
        if inline:
            for x in spin:
                a(x)
        else:
            for x in rdy_test(t):
                a(x)
            a(f"s_cbranch_scc0 {lp}")
            ool.append((lp, spin, bk))
        a.label(bk)

    rdy_check(0, True)
    ts.stamp(a, 11)
    for k in range(PD):
        for r in reads(0, k, k):
            a(r)
    TKN = optval("tkn", 41)
    for n in range(64):
        t, ks = n >> 2, n & 3
        m = mfmas(n % NB, n == 0, n == 63)
        n2 = n + PD
        r = reads(n2 >> 2, n2 & 3, n2 % NB) if n2 < 64 else []
        tch = []
        if n == TKN:
            tch = [f"buffer_load_dwordx2 v[186:187], v{VZ}, {S(SDBG)}, 0 offen{SC}"]
        prog = ks in (0, 3) and n < 60
        if prog:
            a(f"v_mov_b32 v176, {n + 1}")
        a(f"s_waitcnt lgkmcnt({0 if n >= 62 else 8})")
        a(m[0])
        if prog:
            a(f"ds_write_b32 v185, v176 offset:{4 * W_PROG}")
        if ks == 1 and t < 15:
            a(rdr)
        if ks == 2 and t < 15:
            rdy_check(t + 1, False)
            if "tsb" in OPT:
                ts.stamp(a, 12 + t)
        if n == 62:
            a("s_barrier")
        ri = 0
        for i, mm in enumerate(m[1:]):
            for _ in range(2):
                if ri < len(r):
                    a(r[ri]); ri += 1
            if i == 4:
                for x in tch:
                    a(x)
                if n in CQ:
                    code_touch()
                slow_touch(n)
                if n == KT:
                    a(f"buffer_load_dword v178, v185, {S(SWS)}, s48 offen")
                if n == FT:
                    if "fst" in OPT:
                        a(f"buffer_store_dword v{VZ}, v194, {S(SWS)}, 0 offen offset:64{SC}")
                    else:
                        a(f"buffer_load_dword v195, v194, {S(SWS)}, 0 offen")
            a(mm)
    ts.stamp(a, 1)
    if optval("pe", 0):
        a(f"s_setprio {optval('pe', 0)}")
    for part in (1, 2):
        for rt in range(2):
            b = ACC + 16 * (2 * part + rt)
            for j in range(8):
                a(f"v_cvt_pk_bf16_f32 v{b + j}, v{b + 2 * j}, v{b + 2 * j + 1}")
            for step in range(2):
                a(f"buffer_store_dwordx4 {vr(b + 4 * step, 4)}, v1, {S(SWS)}, s{47 + part} offen offset:{rt * 2048 + step * 1024}{SC}")
    if "pes" in OPT:
        a("s_setprio 0")
    for part in (1, 2):
        for rt in range(2):
            b = ACC + 16 * (2 * part + rt)
            for step in range(2):
                a(f"ds_write_b128 v182, {vr(b + 4 * step, 4)} offset:{8 * 2048 + (part - 1) * L_V + rt * 2048 + step * 1024}")
    for rt in (1, 0):
        b = ACC + 16 * rt
        d = QC if rt == 0 else b
        for r in range(16):
            a(f"v_mul_f32 v{b + r}, {f32hex(SCALE_LOG2E)}, v{b + r}")
        for j in range(8):
            a(f"v_cvt_pk_bf16_f32 v{d + j}, v{b + 2 * j}, v{b + 2 * j + 1}")
        if rt == 1:
            for step in range(2):
                a(f"ds_write_b128 v183, {vr(d + 4 * step, 4)} offset:{step * 1024}")
    if "ls" in OPT:
        setup2()
    tlq = f"buffer_load_dword v157, v199, {S(SQ)}, 0 offen"

    def prev_dma(isv):
        for g in range(2):
            a(f"s_add_u32 m0, s37, {isv * L_V + g * 4096}")
            a(f"s_add_u32 s80, s36, {isv * (WS_VF - WS_KF) + g * 4096}")
            for i in range(4):
                a(f"buffer_load_dwordx4 v1, {S(SWS)}, s80 offen offset:{1024 * i} {nt('k')} lds")

    if "pes" in OPT:
        a(f"s_setprio {optval('pe', 0)}")
    a("s_waitcnt vmcnt(0)")
    emit_token_take(a, 186, VZ)
    emit_publish(a, FL_K, 220, VZ)
    ts.stamp(a, 2)
    lnp = a.newlabel("noprev")
    a("s_cmp_lt_u32 s38, 2")
    a(f"s_cbranch_scc1 {lnp}")
    emit_poll(a, 190, 2, 196, sleep=optval("ks", 1))
    ts.stamp(a, 3)
    prev_dma(0)
    prev_dma(1)
    a.label(lnp)
    a("s_setprio 0")
    BF = [16, 24, 32]
    AC2 = 40
    AF, PF = 72, optval('pf', 16)
    VPA, VOA = 191, 192
    a("v_and_b32 v8, 15, v0")
    a("v_lshrrev_b32 v9, 4, v0")
    a("v_lshrrev_b32 v10, 5, v0")
    a("v_lshrrev_b32 v11, 2, v8")
    a("v_lshl_add_u32 v11, v10, 2, v11")
    a("v_lshlrev_b32 v11, 7, v11")
    a("v_and_b32 v12, 1, v9")
    a("v_lshl_add_u32 v11, v12, 5, v11")
    a("v_and_b32 v12, 3, v8")
    a("v_lshl_add_u32 v11, v12, 3, v11")
    a("v_lshrrev_b32 v12, 3, v8")
    a("v_lshl_add_u32 v2, v12, 6, v11")
    a("v_xor_b32 v12, 1, v12")
    a("v_lshl_add_u32 v3, v12, 6, v11")
    a("v_add_u32 v4, 0x10000, v2")
    a("v_add_u32 v5, 0x10000, v3")
    a(f"v_add_u32 v6, {L_R0}, v2")
    a(f"v_add_u32 v7, {L_R0}, v3")
    a("v_mov_b32 v12, s86")
    a("v_bfe_u32 v13, v0, 1, 4")
    emit_wg_of(a, VPA, 12, 13, 15)
    a("v_and_b32 v12, 1, v0")
    a(f"v_lshl_add_u32 v{VPA}, v12, 4, v{VPA}")
    a("s_lshr_b32 s80, s32, 1")
    a("s_and_b32 s81, s32, 1")
    a("s_lshl_b32 s81, s81, 2")
    a("s_add_u32 s80, s80, s81")
    a("s_lshl_b32 s80, s80, 3")
    a(f"s_add_u32 s80, s80, 0x{WS_FL + FL_O * 32768:x}")
    a(f"v_add_u32 v{VPA}, s80, v{VPA}")
    a("s_lshl_b32 s82, s86, 2")
    a("s_add_u32 s82, s82, s32")
    a("v_and_b32 v8, 31, v0")
    a("s_lshl_b32 s80, s82, 5")
    a("v_add_u32 v8, s80, v8")
    a("v_lshlrev_b32 v8, 12, v8")
    a(f"v_lshl_add_u32 v{VOA}, v10, 4, v8")
    a("s_lshl_b32 s56, s42, 7")
    a("s_add_u32 s56, s56, 2048")
    a("s_lshl_b32 s82, s82, 16")
    a(f"s_add_u32 s82, s82, 0x{WS_OF:x}")
    for p in range(8):
        a(f"s_add_u32 s81, s43, {p}")
        a("s_and_b32 s81, s81, 7")
        a("s_lshl_b32 s81, s81, 13")
        a(f"s_add_u32 s{48 + p}, s82, s81")
    hk = {"blk": wo_early()}
    if optval("qk", 0):
        hk["blk"][optval("qk", 0)] = hk["blk"].get(optval("qk", 0), []) + [tlq]
    else:
        hk["mid"] = lambda: a(tlq)
    a("s_waitcnt vmcnt(0)")
    ts.stamp(a, 5)
    a("s_waitcnt lgkmcnt(0)")
    a("s_barrier")
    ts.stamp(a, 4)
    hk["blk"][7] = blk7_flag() + hk["blk"].get(7, [])
    if optval("wt", 0):
        hk["blk"][optval("wt", 0)] = hk["blk"].get(optval("wt", 0), []) + [f"buffer_load_dword v156, v198, {S(SWO)}, 0 offen"]
    hk["prio"] = prio_plan("M")
    emit_attention(a, ool, hk, MASKS_M, "M")
    ts.stamp(a, 6)
    wo_late(a, ts, 0, False)
    if optval('od', 0):
        a(f"s_sleep {optval('od', 0)}")
    poll_issue(a, VPA, 12)
    a("s_waitcnt vmcnt(1)")
    lds_flag_set(a, 32, 0, 16)
    ts.stamp(a, 8)
    emit_poll(a, VPA, 32, 12, pre=True, sleep=optval("os", 0))
    ts.stamp(a, 9)

    def aload(ks):
        out = []
        if ks % 8 == 4:
            out.append(f"s_add_u32 s{48 + (ks >> 3)}, s{48 + (ks >> 3)}, 4096")
        out.append(f"buffer_load_dwordx4 {vr(AF + 4 * (ks % PF), 4)}, v1, {S(SWS)}, s{48 + (ks >> 3)} offen offset:{(ks & 3) * 1024} {scl()}")
        return out

    def breads(ks, buf):
        f = BF[buf]
        o = WLOC[ks]
        base, o = (6, o - L_R0) if o >= L_R0 else (4, o - 65536) if o >= 65536 else (2, o)
        out = []
        for ct in range(2):
            out.append(f"ds_read_b64_tr_b16 {vr(f + 4 * ct, 2)}, v{base + ct} offset:{o}")
            out.append(f"ds_read_b64_tr_b16 {vr(f + 4 * ct + 2, 2)}, v{base + ct} offset:{o + 1024}")
        return out

    for ks in range(PF):
        for x in aload(ks):
            a(x)
    emit_lds_wait(a, VLF, 0, 16)
    emit_lds_wait(a, VLF, 16, 16)
    for x in breads(0, 0) + breads(1, 1):
        a(x)
    for ks in range(64):
        f = BF[ks % 3]
        issued = min(63, ks + PF - 1)
        a(f"s_waitcnt vmcnt({issued - ks}) lgkmcnt({4 if ks < 63 else 0})")
        af = vr(AF + 4 * (ks % PF), 4)
        nxt = breads(ks + 2, (ks + 2) % 3) if ks + 2 < 64 else []
        d0, d1 = vr(AC2, 16), vr(AC2 + 16, 16)
        a(f"v_mfma_f32_32x32x16_bf16 {d0}, {vr(f, 4)}, {af}, {'0' if ks == 0 else d0}")
        for x in nxt:
            a(x)
        a(f"v_mfma_f32_32x32x16_bf16 {d1}, {vr(f + 4, 4)}, {af}, {'0' if ks == 0 else d1}")
        if ks + PF < 64:
            for x in aload(ks + PF):
                a(x)
    ts.stamp(a, 28)
    a("s_nop 7")
    a("s_nop 7")
    for ct in range(2):
        b = AC2 + 16 * ct
        for j in range(8):
            a(f"v_cvt_pk_bf16_f32 v{b + j}, v{b + 2 * j}, v{b + 2 * j + 1}")
        a("s_nop 1")
        for jj in range(2):
            a(f"v_permlane32_swap_b32 v{b + 4 * jj}, v{b + 4 * jj + 2}")
            a(f"v_permlane32_swap_b32 v{b + 4 * jj + 1}, v{b + 4 * jj + 3}")
        for jj in range(2):
            a(f"buffer_store_dwordx4 {vr(b + 4 * jj, 4)}, v{VOA}, {S(SOUT)}, s56 offen offset:{ct * 64 + jj * 32}{' sc1' if 'ob' in OPT else ''}{' nt' if 'nb' in OPT else ''}")
    ts.final(a, 10)
    a("s_endpgm")


def h_path(a, ts, ool):
    a(f"s_setprio {optval('hp', 3)}")
    XO, WO = 2, 6
    a("v_lshrrev_b32 v12, 3, v0")
    a("v_and_b32 v13, 7, v0")
    a("s_lshl_b32 s45, s33, 7")
    a("s_lshl_b32 s46, s44, 5")
    a("s_add_u32 s45, s45, s46")
    a("v_lshrrev_b32 v14, 4, v0")
    a("v_xor_b32 v14, v14, v13")
    a("v_add_u32 v15, s45, v12")
    a("v_lshlrev_b32 v15, 11, v15")
    a(f"v_lshl_add_u32 v{XO}, v14, 4, v15")
    a(f"v_xor_b32 v{XO + 1}, 64, v{XO}")
    a(f"v_add_u32 v{XO + 1}, {16384 - 1024}, v{XO + 1}")
    a(f"v_add_u32 v{XO + 2}, {2 * (16384 - 1024)}, v{XO}")
    a(f"v_add_u32 v{XO + 3}, {2 * (16384 - 1024)}, v{XO + 1}")
    a("s_lshl_b32 s45, s44, 12")
    a("s_mul_i32 s48, s44, 98304")
    a("s_lshl_b32 s46, s34, 7")
    a("s_add_u32 s48, s48, s46")
    for i in range(3):
        if i:
            a(f"v_add_u32 v14, {64 * i}, v0")
        src = "v14" if i else "v0"
        a(f"v_mul_u32_u24 v15, 2731, {src}")
        a("v_lshrrev_b32 v15, 16, v15")
        a("v_mul_u32_u24 v16, 24, v15")
        a(f"v_sub_u32 v16, {src}, v16")
        a("v_bfe_u32 v18, v15, 1, 1")
        a("v_lshlrev_b32 v18, 2, v18")
        a("v_xor_b32 v16, v16, v18")
        a("v_lshrrev_b32 v18, 3, v16")
        a("v_and_b32 v16, 7, v16")
        a("v_mul_u32_u24 v15, 6144, v15")
        a("v_lshl_add_u32 v15, v18, 11, v15")
        a("v_lshl_add_u32 v15, v16, 4, v15")
        for ii in (i, i + 3):
            il = ii if ii < 4 else ii - 4
            a(f"s_add_u32 s49, s48, {(8 * 6144 if ii >= 3 else 0) - 1024 * il}")
            a(f"v_add_u32 v{WO + ii}, s49, v15")
    a("s_mul_i32 s43, s44, 6144")
    a(f"s_add_u32 s43, s43, {L_W}")
    a("s_lshl_b32 s46, s44, 2")
    a(f"v_add_u32 v233, s46, v{VLF}")
    a("s_cmp_eq_u32 s44, 3")
    a("s_cselect_b32 s47, 1, 0")
    order = []

    RG = optval("rg", 8)

    def pace(t):
        if t >= 6 and optval("pc", 0):
            a(f"s_nop {optval('pc', 0) - 1}")
            if optval("pc2", 0):
                a(f"s_nop {optval('pc2', 0) - 1}")

    def tile_index(t):
        if "hot" in OPT:
            a(f"s_mov_b32 s42, {t & 1}")
            return
        if RG <= 1:
            a(f"s_mov_b32 s42, {t}")
            return
        if SG:
            a(f"s_bfe_u32 s42, s{54 + (t >> 3)}, 0x{0x40000 + 4 * (t & 7):x}")
            return
        if "f0" in OPT:
            if t == 0:
                a("s_mov_b32 s42, 15")
            elif t <= 8:
                a(f"s_add_u32 s42, s56, {t - 1}")
                a("s_and_b32 s42, s42, 7")
            else:
                a("s_and_b32 s42, s56, 7")
                a("s_min_u32 s42, s42, 6")
                a(f"s_add_u32 s42, s42, {t - 9}")
                a("s_cmp_ge_u32 s42, 7")
                a("s_cselect_b32 s49, 1, 8")
                a("s_add_u32 s42, s42, s49")
            return
        a(f"s_add_u32 s42, s56, {t}")
        a(f"s_and_b32 s42, s42, {RG - 1}")
        if t >= RG:
            a(f"s_add_u32 s42, s42, {t // RG * RG}")

    SG = optval("sg", 0)
    if SG:
        a("s_lshr_b32 s56, s35, 3")
        a("s_add_u32 s56, s56, s35")
        a("s_and_b32 s56, s56, 3")
        for c in range(4):
            seq = sorted(range(16), key=lambda x: (x - SG - 0.5) if (x & 3) == c else x)
            w = [sum(seq[8 * h + i] << (4 * i) for i in range(8)) for h in range(2)]
            if c == 0:
                a(f"s_mov_b32 s54, 0x{w[0]:x}")
                a(f"s_mov_b32 s55, 0x{w[1]:x}")
            else:
                a(f"s_cmp_eq_u32 s56, {c}")
                a(f"s_cselect_b32 s54, 0x{w[0]:x}, s54")
                a(f"s_cselect_b32 s55, 0x{w[1]:x}, s55")
    a("s_lshr_b32 s56, s35, 3")
    a(f"s_mul_i32 s56, s56, {optval('rb', 2)}")
    if optval("ra", 0):
        a(f"s_bfe_u32 s49, s35, 0x{((3 - optval('ra', 0)) << 16) + optval('ra', 0):x}")
        a("s_add_u32 s56, s56, s49")
    else:
        a("s_add_u32 s56, s56, s35")
    if optval("rx", 0):
        a(f"s_mul_i32 s49, s3, {optval('rx', 0)}")
        a("s_add_u32 s56, s56, s49")
    if optval("ry", 0):
        a("s_lshr_b32 s49, s3, 1")
        a(f"s_mul_i32 s49, s49, {optval('ry', 0)}")
        a("s_add_u32 s56, s56, s49")
    if RG == 16:
        a("s_lshl_b32 s56, s56, 1")

    def issue_x(t):
        if "nodma" in OPT and t >= 3:
            order.append(f"x{t}")
            return
        a(f"s_add_u32 m0, s45, {(L_X2 if (t + 2) & 2 else 0) + (t & 1) * 16384}")
        tile_index(t)
        a("s_lshl_b32 s42, s42, 7")
        for i in range(4):
            a(f"buffer_load_dwordx4 v{XO + i}, {S(SX)}, s42 offen offset:{1024 * i} {nt('x') if t % RG == RG - 1 else ''} lds")
            pace(t)
        order.append(f"X{t}")

    def issue_w(t):
        if "nodma" in OPT and t >= 3:
            order.append(f"x{t}")
            return
        c = (4 * t + 4) % 15
        if c + 3 < 15:
            a(f"s_add_u32 s49, s43, {c * 6144}")
        else:
            a(f"s_cmp_ge_u32 s44, {15 - c}")
            a(f"s_cselect_b32 s49, {15 * 6144}, 0")
            a("s_sub_u32 s49, s43, s49")
            a(f"s_add_u32 s49, s49, {c * 6144}")
        a("s_mov_b32 m0, s49")
        tile_index(t)
        a("s_mul_i32 s42, s42, 393216")
        for i in range(4):
            a(f"buffer_load_dwordx4 v{WO + i}, {S(SW)}, s42 offen offset:{1024 * i} {nt('x') if t % RG == RG - 1 else ''} lds")
            pace(t)
        a("s_add_u32 m0, s49, 4096")
        a("s_nop 0")
        for i in range(4, 6):
            a(f"buffer_load_dwordx4 v{WO + i}, {S(SW)}, s42 offen offset:{1024 * (i - 4)} {nt('x') if t % RG == RG - 1 else ''} lds")
        order.append(f"W{t}")

    def vm(x):
        a(x)
        if x.startswith("buffer"):
            order.append("P")

    def cnt(lst):
        return sum({"X": 4, "W": 6, "P": 1, "L": 0, "U": 0, "x": 0, "R": 1, "E": 0}[x[0]] for x in lst)

    def wait_tile(b):
        if "nodma" in OPT and b >= 3:
            return
        last = max(i for i, x in enumerate(order) if x in (f"X{b}", f"W{b}"))
        assert f"X{b}" in order and f"W{b}" in order
        n = cnt(order[last + 1:])
        assert n < 64
        a(f"s_waitcnt vmcnt({n})")

    def later():
        a("s_lshl_b32 s87, s84, 2")
        a("s_add_u32 s87, s87, s44")
        a("s_lshl_b32 s87, s87, 12")
        a(f"s_buffer_load_dword s57, {S(SHK)}, s87")
        a(f"s_mul_i32 s88, s44, {CW}")
        a(f"s_add_u32 s88, s88, {L_R0}")
        a("s_lshl_b32 s80, s35, 2")
        a("s_add_u32 s80, s80, s44")
        a("s_lshl_b32 s80, s80, 6")
        a("v_add_u32 v20, s80, v0")
        a("v_lshrrev_b32 v241, 3, v20")
        a("v_lshlrev_b32 v241, 11, v241")
        a("v_and_b32 v20, 7, v20")
        a("v_lshl_add_u32 v241, v20, 7, v241")
        a("s_lshr_b32 s80, s3, 2")
        a("s_lshl_b32 s80, s80, 10")
        a("v_add_u32 v241, s80, v241")
        a("s_lshl_b32 s80, s35, 6")
        a("s_lshl_b32 s81, s44, 4")
        a("s_add_u32 s80, s80, s81")
        a("v_lshrrev_b32 v20, 1, v0")
        a("v_add_u32 v20, s80, v20")
        a("v_lshlrev_b32 v20, 11, v20")
        a("v_and_b32 v21, 1, v0")
        a("v_lshl_add_u32 v20, v21, 7, v20")
        a("s_lshl_b32 s80, s3, 8")
        a("v_add_u32 v20, s80, v20")
        a("v_lshlrev_b32 v21, 7, v0")
        a("v_cmp_gt_u32 vcc, 32, v0")
        a("s_nop 1")
        a("v_cndmask_b32 v242, v240, v20, vcc")
        a("v_cndmask_b32 v243, v240, v21, vcc")
        a("v_lshrrev_b32 v20, 3, v0")
        a("v_and_b32 v21, 7, v0")
        a("s_lshl_b32 s80, s35, 6")
        a("s_lshl_b32 s81, s3, 2")
        a("s_add_u32 s81, s81, s44")
        a("s_lshl_b32 s81, s81, 5")
        a("v_lshlrev_b32 v22, 3, v20")
        a("v_add_u32 v22, s80, v22")
        a("v_lshlrev_b32 v23, 2, v21")
        a("v_add_u32 v23, s81, v23")
        a(f"v_lshlrev_b32 v{PA}, 12, v23")
        a(f"v_lshl_add_u32 v{PA}, v22, 1, v{PA}")
        a(f"v_lshlrev_b32 v{PA + 1}, 11, v22")
        a(f"v_lshl_add_u32 v{PA + 1}, v23, 1, v{PA + 1}")
        a(f"v_lshlrev_b32 v{PA + 2}, 12, v22")
        a(f"v_lshl_add_u32 v{PA + 2}, v23, 1, v{PA + 2}")
        a("v_bfe_u32 v20, v0, 2, 3")
        a("s_lshl_b32 s80, s44, 3")
        a("v_add_u32 v20, s80, v20")
        a("v_lshlrev_b32 v20, 3, v20")
        a("v_add_u32 v20, s3, v20")
        a("v_lshlrev_b32 v20, 7, v20")
        a("v_and_b32 v21, 3, v0")
        a("v_lshl_add_u32 v20, v21, 3, v20")
        a(f"v_add_u32 v{PA + 3}, 0x{WS_FL + FL_Y2 * 32768 + 32:x}, v20")
        a("s_and_b32 s40, s44, 1")
        a("s_lshr_b32 s41, s44, 1")
        a("s_waitcnt lgkmcnt(0)")
        a("s_lshl_b32 s80, s44, 4")
        a("s_lshr_b64 s[38:39], s[76:77], s80")
        a("s_lshl_b32 s39, s38, 16")
        a("s_lshl_b32 s57, s57, 16")
        a("s_lshl_b32 s40, s40, 1")
        a("s_add_u32 s40, s40, 1")
        a("v_and_b32 v192, 31, v0")
        a("v_lshlrev_b32 v192, 3, v192")
        a("v_add_u32 v192, s3, v192")
        a("v_lshlrev_b32 v192, 7, v192")
        a("s_lshr_b32 s80, s35, 3")
        a("s_lshl_b32 s80, s80, 3")
        a(f"s_add_u32 s80, s80, 0x{WS_FL + FL_UR * 32768 + 32:x}")
        a("v_add_u32 v192, s80, v192")
        a("s_lshl_b32 s80, s44, 11")
        a(f"s_add_u32 s80, s80, {L_QH}")
        a("v_add_u32 v193, s80, v1")
        a("v_lshlrev_b32 v180, 3, v0")
        a("v_add_u32 v180, s88, v180")
        a("v_and_b32 v181, 1, v0")
        a(f"v_mul_u32_u24 v181, {CPY}, v181")
        a("v_bfe_u32 v182, v0, 1, 1")
        a("v_lshl_add_u32 v181, v182, 4, v181")
        a("v_add_u32 v181, s88, v181")
        a("v_mov_b32 v182, s88")
        a("v_mov_b32 v183, s57")
        for i in range(4):
            a(f"v_mov_b32 v{184 + i}, 0")

    p_setup, p_loads, p_comp, p_stores = p1_lists()
    if "nop1" in OPT:
        p_loads, p_comp, p_stores = p_loads[:1], [], []

    main_a = a
    a = Asm()
    for y in p_setup:
        a(y)
    later()
    setup2 = [x.strip() for x in a.L]
    a = main_a

    gl = list(range(32))

    def act(x):
        k, arg = x[0], x[1:]
        if k == "X":
            issue_x(int(arg))
        elif k == "W":
            issue_w(int(arg))
        elif k == "T":
            issue_x(int(arg)); issue_w(int(arg))
        elif k == "F":
            t0, n = map(int, arg.split("_"))
            emit_touch_fine(a, 234, 235, 228, t0)
            for y in touch(t0, n, 234, 235, 246):
                vm(y)
        elif k == "C":
            t = int(arg)
            a(f"s_cmp_eq_u32 s58, {t & 3}")
            a("s_cselect_b64 vcc, -1, 0")
            a(f"s_mov_b32 s82, {t * 128}")
            a(f"s_mov_b32 s83, {t * 393216}")
            a("v_cndmask_b32 v238, v240, v245, vcc")
            a("v_cndmask_b32 v239, v240, v244, vcc")
            vm(f"buffer_load_dword v246, v238, {S(SW)}, s83 offen")
            vm(f"buffer_load_dword v247, v239, {S(SX)}, s82 offen")
        elif k == "K":
            r = 242
            if arg:
                a(f"s_cmp_eq_u32 s58, {arg}")
                a("s_cselect_b64 vcc, -1, 0")
                a("s_nop 0")
                a("v_cndmask_b32 v237, v240, v242, vcc"); r = 237
            vm(f"buffer_load_dword v248, v{r}, {S(SK)}, 0 offen")
            vm(f"buffer_load_dword v249, v{r}, {S(SV)}, 0 offen")
        elif k == "P":
            for _ in range(int(arg)):
                if p_loads:
                    vm(p_loads.pop(0))
            if not p_loads:
                order.append("L")
        elif k == "V":
            if "L" in order:
                a(f"s_waitcnt vmcnt({cnt(order[order.index('L') + 1:])})")
                order.remove("L")
            for _ in range(int(arg)):
                if p_comp:
                    a(p_comp.pop(0))
        elif k == "S":
            assert not p_comp and not p_loads
            for y in p_stores:
                vm(y)
            order.append("U")
        elif k == "U":
            a(f"s_waitcnt vmcnt({cnt(order[order.index('U') + 1:])})")
            emit_token_take(a, 172, VZ)
            emit_publish(a, FL_UR, 194, VZ)
            order.append("P")
        elif k == "A":
            emit_attn_setup(a, MASKS_H)
        elif k == "R":
            poll_issue(a, 192, 198)
            order.append("R")
        elif k == "Q":
            vm(f"buffer_load_dword v246, v242, {S(SQ)}, 0 offen")
        elif k == "G":
            vm(f"buffer_load_dword v246, v243, {S(SHK)}, s87 offen")
        elif k == "O":
            vm(f"buffer_load_dword v247, v241, {S(SWO)}, 0 offen")
        elif k == "t":
            vm(f"buffer_load_dwordx2 v[172:173], v{VZ}, {S(SDBG)}, 0 offen{SC}")
        elif k == "b":
            late_setup(a, ts)
            if ts.on:
                order.append("P")
            a("v_mov_b32 v240, 0x80000000")
            a("s_and_b32 s58, s35, 3")
        elif k == "c":
            for _ in range(int(arg)):
                if setup2:
                    a(setup2.pop(0))
        elif k == "H":
            a(f"ds_write_b64 v180, v[184:185] offset:{URO + 4096}")
            a("ds_write_b128 v181, v[184:187]")
            a(f"ds_write_b32 v182, v183 offset:{CPY + 28}")
            for c in range(2):
                a(f"s_add_u32 m0, s88, {32 + c * CPY}")
                a(f"s_add_u32 s80, s87, {2 * c}")
                for kk in range(4):
                    vm(f"buffer_load_dwordx4 v1, {S(SHK)}, s80 offen offset:{1024 * kk} {nt('h') if c else ''} lds")
        elif k in "DE":
            ls = a.newlabel("urskip")
            if k == "E":
                a(f"s_waitcnt vmcnt({cnt(order[order.index('R') + 1:])})")
                a("v_cmp_eq_u64 vcc, s[78:79], v[198:199]")
                a("s_mov_b32 s38, 0")
                a("s_nop 0")
                a("s_cmp_eq_u32 vcc_lo, -1")
                a(f"s_cbranch_scc0 {ls}")
                a("s_mov_b32 s38, 1")
                order.append("E")
            else:
                if "E" in order:
                    a("s_cmp_eq_u32 s38, 1")
                    a(f"s_cbranch_scc1 {ls}")
                emit_poll(a, 192, 32, 198, pre=True)
                ts.stamp(a, 2)
            a(f"s_add_u32 m0, s88, {URO}")
            a(f"s_add_u32 s80, s87, 0x{WS_UR:x}")
            for kk in range(4):
                a(f"buffer_load_dwordx4 v1, {S(SWS)}, s80 offen offset:{1024 * kk} {nt('u')} lds")
            a.label(ls)
        else:
            raise ValueError(x)

    sc = os.environ.get("SCHED") or SCHEDS[optval("sc", 0)]
    sched = sc.split("|")
    assert len(sched) == 18, len(sched)
    a("s_waitcnt lgkmcnt(0)")
    for i, x in enumerate(sched[0].split()):
        act(x)
        if i == 0:
            a("s_barrier")
    told = [-1]

    def landed(t):
        b = Asm()
        nonlocal a
        a, keep = b, a
        wait_tile(t)
        a(f"v_mov_b32 v232, {t + 1}")
        a(f"ds_write_b32 v233, v232 offset:{4 * W_RDY}")
        a = keep
        return [x.strip() for x in b.L]

    def complete():
        return [t for t in range(16) if f"X{t}" in order and f"W{t}" in order]

    prd = f"ds_read_b128 v[228:231], v{VLF} offset:{4 * W_PROG}"

    def prog_test(need, w3):
        return ["v_min3_u32 v228, v228, v229, v230", "v_min_u32 v228, v228, v231", "s_nop 0",
                "v_readfirstlane_b32 s46, v228", "s_nop 1"] + (["s_sub_u32 s46, s46, s47"] if w3 else []) + \
               [f"s_cmp_ge_i32 s46, {need}"]

    def announce(t):
        if t > told[0]:
            for x in landed(t):
                a(x)
            told[0] = t

    def gated(b):
        acts = sched[b + 1].split()
        w3 = any(x in (f"T{b + 3}", f"W{b + 3}") for x in acts)
        return bool(b < 16 and (b > 0 or w3) and acts), w3

    pre = False
    for b in range(0, 17):
        done = complete()
        acts = sched[b + 1].split()
        gate, w3 = gated(b)
        if gate and not pre:
            a(prd)
        more = any(y[0] in "XWT" for z in sched[b + 1:] for y in z.split())
        announce(min(b, 15) if more else 15)
        if gate:
            lp, bk = a.newlabel("pw"), a.newlabel("pwb")
            a("s_waitcnt lgkmcnt(0)")
            for x in prog_test(4 * b, w3):
                a(x)
            a(f"s_cbranch_scc0 {lp}")
            body = landed(max(done)) if max(done) > told[0] else []
            body += ["s_mov_b32 s59, 0", f"{lp}_l:", prd, "s_add_u32 s59, s59, 1", "s_waitcnt lgkmcnt(0)"] + prog_test(4 * b, w3) + \
                    [f"s_cbranch_scc1 {bk}", "s_sleep 1", f"s_cmp_lt_u32 s59, 0x{SPIN_LIMIT:x}", f"s_cbranch_scc1 {lp}_l"]
            ool.append((lp, body, bk))
            a.label(bk)
        if b == 16:
            a("s_barrier")
        if "tsb" in OPT:
            ts.stamp(a, 11 + b)
        pre = False
        lastd = max([i for i, x in enumerate(acts) if x[0] in "XWT"], default=-1)
        for i, x in enumerate(acts):
            if x[0] in "XWT":
                assert int(x[1:]) <= b + 3
            if i == lastd and b < 16 and gated(b + 1)[0] and "np" not in OPT:
                a(prd)
                pre = True
            act(x)
            if x[0] in "WT":
                announce(max([t for t in complete() if t < int(x[1:])], default=-1))
    ts.stamp(a, 1)
    assert not setup2
    a("s_mov_b32 s46, s88")
    a(f"s_add_u32 s36, s87, 0x{wsy2():x}")

    def c_start():
        if optval("pv", -1) >= 0:
            a(f"s_setprio {optval('pv', 0)}")
        a("s_waitcnt vmcnt(0)")
        ts.stamp(a, 3)

    b = Asm()
    emit_attn_setup(b, MASKS_H)
    g2_tile(b)
    wo_addr(b)
    ys = emit_conv(a, {"start": c_start, "extra": [x.strip() for x in b.L]})
    ts.stamp(a, 5)
    a("s_setprio 0")
    a("s_barrier")
    ts.stamp(a, 4)
    a(f"ds_read_b128 {vr(QC, 4)}, v193")
    a(f"ds_read_b128 {vr(QC + 4, 4)}, v193 offset:1024")
    for x in ys:
        a(x)
    YY, OO = 168, 24
    if optval("ph", 0):
        a(f"s_setprio {optval('ph', 0)}")
    blk = wo_early()
    b = Asm()
    b("s_waitcnt vmcnt(0)")
    emit_publish(b, FL_Y2, 194, VZ)
    yb = optval("yb", 2)
    blk[yb] = [x.strip() for x in b.L] + blk.get(yb, [])
    hk = {"blk": blk}
    blk[7] = blk7_flag() + blk.get(7, [])
    hk["prio"] = prio_plan("H")
    YE = optval("ye", 0)
    b = Asm()
    for i in range(8):
        if i % 2 == 0:
            b(f"s_mov_b32 s80, {4096 * (i >> 1)}")
        b(f"buffer_load_dwordx2 {vr(QQ + 2 * i, 2)}, v{PA + 1}, {S(SQ)}, s80 offen offset:{(i & 1) * 2048}")
    ql = [x.strip() for x in b.L]
    b = Asm()
    poll_issue(b, PA + 3, 196)
    pl = [x.strip() for x in b.L]
    if YE:
        blk[optval("qe", YE)] = blk.get(optval("qe", YE), []) + ql
        blk[YE] = blk.get(YE, []) + pl
    emit_attention(a, ool, hk, MASKS_H, "H")
    ts.stamp(a, 6)
    if not YE:
        for x in ql + pl:
            a(x)

    def y_issue(va):
        a(f"s_mov_b32 s80, 0x{wsy2():x}")
        for dd in range(4):
            a(f"buffer_load_dwordx4 {vr(YY + 4 * dd, 4)}, v{va}, {S(SWS)}, s80 offen {scl()}")
            if dd < 3:
                a("s_add_u32 s80, s80, 4096")

    def y_loads():
        emit_poll(a, PA + 3, 32, 196, pre=True)
        y_issue(PA)

    p3 = Asm()
    a, main_a = p3, a
    for i in range(8):
        for dd in range(4):
            ys = YY + 4 * dd + (i >> 1)
            qs = QQ + 2 * i + (dd >> 1)
            a(f"v_and_b32 v4, 0xffff0000, v{ys}" if i & 1 else f"v_lshlrev_b32 v4, 16, v{ys}")
            a(f"v_and_b32 v5, 0xffff0000, v{qs}" if dd & 1 else f"v_lshlrev_b32 v5, 16, v{qs}")
            a(f"v_mul_f32 v{OO + 4 * i + dd}, v4, v5")
        o = OO + 4 * i
        a(f"v_cvt_pk_bf16_f32 v{o}, v{o}, v{o + 1}")
        a(f"v_cvt_pk_bf16_f32 v{o + 1}, v{o + 2}, v{o + 3}")
    a = main_a
    outs = []
    for i in range(8):
        outs += [f"s_mov_b32 s80, {4096 * i}", f"buffer_store_dwordx2 {vr(OO + 4 * i, 2)}, v{PA + 2}, {S(SOUT)}, s80 offen{' sc1' if 'oa' in OPT else ''}{' nt' if 'na' in OPT else ''}"]

    def gate():
        for x in p3.L:
            a(x.strip())

    if YE:
        ll, lr = a.newlabel("ylate"), a.newlabel("yback")
        a("s_waitcnt vmcnt(2)")
        a("v_cmp_eq_u64 vcc, s[78:79], v[196:197]")
        a("v_mov_b32 v4, 0x80000000")
        a("s_nop 0")
        a("s_cmp_eq_u32 vcc_lo, -1")
        a("s_cselect_b32 s38, 1, 0")
        a("s_cselect_b64 vcc, -1, 0")
        a("s_nop 0")
        a(f"v_cndmask_b32 v4, v4, v{PA}, vcc")
        y_issue(4)
        wo_late(a, ts, 4, True)
        a("s_cmp_eq_u32 s38, 0")
        a(f"s_cbranch_scc1 {ll}")
        a(f"s_waitcnt vmcnt({NLATE + (1 if optval('es', 0) == 1 else 0)})")
        a.label(lr)
        main_a, sub = a, Asm()
        sub.uid = main_a.uid + 1000
        a = sub
        a("s_waitcnt vmcnt(0)")
        lds_flag_set(a, 32, 0, 4)
        for x in pl:
            a(x)
        y_loads()
        a("s_waitcnt vmcnt(0)")
        main_a.uid = sub.uid
        a = main_a
        ool.append((ll, [x.strip() for x in sub.L], lr))
        gate()
        a("s_waitcnt vmcnt(0)")
        lds_flag_set(a, 32, 0, 4)
        ts.stamp(a, 8)
        if optval("ad", 0):
            a(f"s_sleep {optval('ad', 0)}")
        for x in outs:
            a(x)
    else:
        raise ValueError("ye required")
    if optval("wb", 0):
        lw = a.newlabel("nowb")
        a(f"s_and_b32 s80, s35, {optval('wb', 0) - 1}")
        a("s_or_b32 s80, s80, s44")
        a("s_cmp_lg_u32 s80, 0")
        a(f"s_cbranch_scc1 {lw}")
        a("s_waitcnt vmcnt(0)")
        a(f"s_sleep {optval('wd', 16)}")
        a("buffer_wbl2 sc1")
        a("s_waitcnt vmcnt(0)")
        a.label(lw)
    ts.final(a, 10)
    a("s_endpgm")


def gen_fused(a, ts):
    name = NAME + "_kernel"
    kernel_begin(a, name)
    ts.entry(a)
    a("s_cmp_ge_u32 s2, 256")
    a("s_cbranch_scc1 L_end")
    if optval("xj", 0):
        a(f"s_xor_b32 s2, s2, {optval('xj', 0)}")
    for (d, off, size) in SRDS:
        a(f"s_load_dwordx2 s[{d}:{d + 1}], s[0:1], {off}")
    a("s_load_dwordx2 s[36:37], s[0:1], 40")
    a("v_lshrrev_b32 v1, 6, v0")
    a("v_and_b32 v0, 63, v0")
    a("s_and_b32 s3, s2, 7")
    a("v_readfirstlane_b32 s32, v1")
    a("s_lshr_b32 s35, s2, 3")
    a("s_and_b32 s33, s3, 1")
    a("s_lshl_b32 s33, s33, 3")
    a("s_and_b32 s80, s35, 7")
    a("s_add_u32 s33, s33, s80")
    a("s_lshr_b32 s34, s3, 1")
    a("s_lshl_b32 s34, s34, 2")
    a("s_lshr_b32 s80, s35, 3")
    a("s_add_u32 s34, s34, s80")
    if optval("hx", 0):
        a(f"s_xor_b32 s34, s34, {optval('hx', 0)}")
    a("v_lshlrev_b32 v1, 4, v0")
    a(f"v_mov_b32 v{VZ}, 0")
    a(f"v_mov_b32 v{VLF}, {L_FL}")
    for (d, off, size) in SRDS[:2]:
        a(f"s_mov_b32 s{d + 2}, 0x{size:x}")
        a(f"s_mov_b32 s{d + 3}, 0x20000")
    a("s_and_b32 s44, s32, 3")
    a("s_mov_b32 s59, 0")
    a("s_cmp_lt_u32 s32, 4")
    a("s_cbranch_scc1 L_M")
    ool = []
    h_path(a, ts, ool)
    a.label("L_M")
    m_path(a, ts, ool)
    for (lf, body, lb) in ool:
        a.label(lf)
        for x in body:
            a(x)
        a(f"s_branch {lb}")
    a.label("L_end")
    a("s_endpgm")
    emit_exact(a)
    return name, 256, 102


def build(instrument=False):
    if "best" in OPT:
        have = {o.rstrip("0123456789") for o in OPT}
        OPT.update(o for o in BEST.split(",") if o.rstrip("0123456789") not in have and "no" + o not in OPT)
    ts = TS(instrument)
    a = Asm()
    a.raw("; fused H3 long-conv | sliding-window attention kernel (generated)")
    a.raw("; @launch grid=(256,1,1) block=(512,1,1) lds=163840")
    a.raw('.amdgcn_target "amdgcn-amd-amdhsa--gfx950"')
    a.raw(".text")
    n, v, s = gen_fused(a, ts)
    a.raw('.section .rodata,"a"')
    kernel_desc(a, n, v, s)
    return a.text()


if __name__ == "__main__":
    out = sys.argv[1] if len(sys.argv) > 1 else f"cdna_kernels/{NAME}.s"
    if len(sys.argv) > 2:
        OPT.update(sys.argv[2].split(","))
    open(out, "w").write(build())
```

```python
import sys
sys.path.insert(0,'dev')
from lib import *
import gfi
gfi.OPT.update(x for x in (sys.argv[1].split(',') if len(sys.argv) > 1 else []) if x)
for ts in (False, True):
    asm = gfi.build(ts)
    co = build(asm, "f2.co", gfi.NAME+"_kernel", 12)
    print(cl.address_register_problem(co, gfi.NAME+"_kernel"))
```

```python
import sys, struct, os, re
from gen import Asm, vr, srd, kernel_begin, kernel_desc, MB, NAME
from gf import f32hex
import gf

OPT = set()
WS_KF, WS_VF, WS_UR, WS_OF, WS_Y2, WS_FL = 4 * MB, 8 * MB, 12 * MB, 16 * MB, 20 * MB, 24 * MB
WS_SIZE = 25 * MB
FL_UR, FL_K, FL_Y2, FL_O, FL_V = 0, 1, 2, 3, 4

CPY, URO, CW = 4160, 8320, 12928
L_HD, L_V = 49152, 24576
L_QH = 98304
L_R0 = 106496
L_FL = L_R0 + 4 * CW
SC = " sc1"
SPIN_LIMIT = 1 << 18
SCALE_LOG2E = (32 ** -0.5) * 1.4426950408889634
SX, SW, SWS, SK, SV, SSH, SHK, SWO, SQ, SOUT, SDBG = 4, 8, 12, 16, 20, 24, 28, 60, 64, 68, 72
MASKS_H = [4, 6, 8, 10, 16, 18, 20, 22, 24, 26, 48, 50, 52, 54, 56, 58]
MASKS_M = [4, 6, 16, 18, 20, 22, 24, 26, 28, 30, 58, 76, 92, 94, 96, 98]


WS_TS = 32 * MB


class TS:
    def __init__(self, on):
        self.enabled = on
        self.on = False

    def entry(self, a):
        if self.enabled:
            a("s_memrealtime s[98:99]")
            a("s_memtime s[100:101]")
            a("v_mov_b32 v254, 0")

    def setup(self, a, ws_pair):
        if self.enabled:
            a("v_writelane_b32 v254, s98, 30")

    def stamp(self, a, slot):
        if self.enabled and ("tsmin" not in OPT or slot == 10):
            a("s_memrealtime s[90:91]")
            a("s_waitcnt lgkmcnt(0)")
            a(f"v_writelane_b32 v254, s90, {slot}")
            if "cya" in OPT and slot < 11:
                a("s_memtime s[90:91]")
                a("s_waitcnt lgkmcnt(0)")
                a(f"v_writelane_b32 v254, s90, {slot + 12}")

    def final(self, a, slot):
        if not self.enabled:
            return
        a("s_waitcnt vmcnt(0)")
        self.stamp(a, slot)
        a("s_memtime s[90:91]")
        srd(a, 92, SWS, 4 * MB, WS_TS)
        a("s_lshl_b32 s96, s2, 4")
        a("s_add_u32 s96, s96, s32")
        a("s_lshl_b32 s96, s96, 8")
        a("s_waitcnt lgkmcnt(0)")
        a("s_sub_u32 s90, s90, s100")
        a("v_writelane_b32 v254, s90, 31")
        a("v_mov_b32 v255, 0")
        a("v_lshlrev_b32 v253, 3, v0")
        a("s_mov_b32 exec_hi, 0")
        a("buffer_store_dwordx2 v[254:255], v253, s[92:95], s96 offen")


def emit_wg_of(a, vdst, vrb, vhp, t):
    if optval("hx", 0):
        a(f"v_xor_b32 v{vhp}, {optval('hx', 0)}, v{vhp}")
    gf.emit_wg_of(a, vdst, vrb, vhp, t)


def S(n):
    return f"s[{n}:{n + 3}]"


SCHEDS = {
    0: "T0 X1 b c60 | W1 X2 P7 | W2 T3 P7 | T4 T5 P7 c40 | T6 c40 G | T7 c40 t | T8 V90 | T9 V90 | T10 V90 S | T11"
       " | T12 U | T13 | T14 | T15 O | R | H | E | D",
}
BEST = "we3,yb3,cp,cq50,rg4,ry1,ya,ft30,sw14_2,ye7,prM322110000,prH333221101,pe3,pv1"


def wsy2():
    return WS_UR if "ya" in OPT else WS_Y2


def nt(k):
    return "nt" if "nt" + k in OPT else ""


def scl():
    return "sc1" if "ldsc1" in OPT else ""


def optval(prefix, default):
    for o in OPT:
        if o.startswith(prefix) and o[len(prefix):].lstrip("-").isdigit():
            return int(o[len(prefix):])
    return default


def poll_issue(a, voff, tmp):
    a(f"buffer_load_dwordx2 {vr(tmp, 2)}, v{voff}, {S(SWS)}, 0 offen{SC}")


def emit_poll(a, voff, nlanes, tmp, pre=False, sleep=0):
    lp, ck, dn = a.newlabel("poll"), a.newlabel("pollc"), a.newlabel("polld")
    mask = (1 << nlanes) - 1
    a(f"s_mov_b32 s80, 0x{mask & 0xffffffff:x}")
    a(f"s_mov_b32 s81, 0x{mask >> 32:x}")
    a("s_mov_b32 s85, 0")
    if not pre:
        a.label(lp)
        poll_issue(a, voff, tmp)
        a("s_waitcnt vmcnt(0)")
        a(f"v_cmp_eq_u64 vcc, s[78:79], {vr(tmp, 2)}")
        a("s_add_u32 s85, s85, 1")
        a("s_and_b64 s[82:83], vcc, s[80:81]")
        a("s_cmp_eq_u64 s[82:83], s[80:81]")
        a(f"s_cbranch_scc1 {dn}")
        if sleep:
            a(f"s_sleep {sleep}")
        a(f"s_cmp_lt_u32 s85, 0x{SPIN_LIMIT:x}")
        a(f"s_cbranch_scc1 {lp}")
        a.label(dn)
    else:
        a.label(ck)
        a("s_waitcnt vmcnt(0)")
        a(f"v_cmp_eq_u64 vcc, s[78:79], {vr(tmp, 2)}")
        a("s_add_u32 s85, s85, 1")
        a("s_and_b64 s[82:83], vcc, s[80:81]")
        a("s_cmp_eq_u64 s[82:83], s[80:81]")
        a(f"s_cbranch_scc1 {dn}")
        if sleep:
            a(f"s_sleep {sleep}")
        poll_issue(a, voff, tmp)
        a(f"s_cmp_lt_u32 s85, 0x{SPIN_LIMIT:x}")
        a(f"s_cbranch_scc1 {ck}")
        a("s_waitcnt vmcnt(0)")
        a.label(dn)


def emit_publish(a, kind, t0, vz):
    a(f"s_add_u32 s80, s89, 0x{WS_FL + kind * 32768:x}")
    a(f"v_mov_b32 v{t0}, s78")
    a(f"v_mov_b32 v{t0 + 1}, s79")
    a("s_mov_b64 exec, 1")
    a(f"buffer_store_dwordx2 {vr(t0, 2)}, v{vz}, {S(SWS)}, s80 offen{SC}")
    a("s_mov_b64 exec, -1")


def emit_token_take(a, t0, vz):
    lp, dn = a.newlabel("tok"), a.newlabel("tokd")
    a("s_mov_b32 s85, 0")
    a.label(lp)
    a(f"v_readfirstlane_b32 s78, v{t0}")
    a(f"v_readfirstlane_b32 s79, v{t0 + 1}")
    a("s_add_u32 s85, s85, 1")
    a("s_cmp_lg_u64 s[78:79], 0")
    a(f"s_cbranch_scc1 {dn}")
    a(f"buffer_load_dwordx2 {vr(t0, 2)}, v{vz}, {S(SDBG)}, 0 offen{SC}")
    a("s_waitcnt vmcnt(0)")
    a(f"s_cmp_lt_u32 s85, 0x{SPIN_LIMIT:x}")
    a(f"s_cbranch_scc1 {lp}")
    a.label(dn)


def emit_wline(a, dst, idx, hi, t):
    a(f"v_mul_u32_u24 v{dst}, 5462, v{idx}")
    a(f"v_lshrrev_b32 v{dst}, 16, v{dst}")
    a(f"v_mul_u32_u24 v{t}, 12, v{dst}")
    a(f"v_sub_u32 v{t}, v{idx}, v{t}")
    if hi is not None:
        a(f"v_lshl_add_u32 v{dst}, v{hi}, 6, v{dst}")
    a(f"v_mul_u32_u24 v{dst}, 6144, v{dst}")
    a(f"v_lshrrev_b32 v{t + 1}, 2, v{t}")
    a(f"v_lshl_add_u32 v{dst}, v{t + 1}, 11, v{dst}")
    a(f"v_and_b32 v{t}, 3, v{t}")
    a(f"v_lshl_add_u32 v{dst}, v{t}, 7, v{dst}")
    a("s_lshr_b32 s83, s3, 1")
    a("s_lshl_b32 s83, s83, 9")
    a(f"v_add_u32 v{dst}, s83, v{dst}")


def emit_touch_fine(a, VTX, VTW, t, t0):
    a(f"v_and_b32 v{t}, 7, v0")
    a(f"v_lshrrev_b32 v{t + 1}, 3, v0")
    a(f"s_add_u32 s82, s59, {t0}")
    a(f"v_add_u32 v{t + 1}, s82, v{t + 1}")
    a(f"v_and_b32 v{t + 1}, 15, v{t + 1}")
    a("s_lshl_b32 s82, s35, 2")
    a("s_add_u32 s82, s82, s44")
    a("s_lshl_b32 s81, s82, 3")
    a("s_and_b32 s83, s3, 1")
    a("s_lshl_b32 s83, s83, 10")
    a("s_add_u32 s81, s81, s83")
    a(f"v_add_u32 v{t + 2}, s81, v{t}")
    a(f"v_lshlrev_b32 v{t + 2}, 11, v{t + 2}")
    a(f"v_lshl_add_u32 v{VTX}, v{t + 1}, 7, v{t + 2}")
    a("s_mul_i32 s82, s82, 6")
    a(f"v_add_u32 v{t + 2}, s82, v{t}")
    emit_wline(a, VTW, t + 2, t + 1, t + 3)
    a(f"v_mov_b32 v{t + 4}, 0x80000000")
    a(f"v_cmp_gt_u32 vcc, 6, v{t}")
    a("s_nop 1")
    a(f"v_cndmask_b32 v{VTW}, v{t + 4}, v{VTW}, vcc")


def emit_touch_coarse(a, VTX, VTW, t):
    a("s_lshr_b32 s82, s35, 2")
    a("s_lshl_b32 s82, s82, 2")
    a("s_add_u32 s82, s82, s44")
    a("s_lshl_b32 s81, s82, 5")
    a("s_and_b32 s83, s3, 1")
    a("s_lshl_b32 s83, s83, 10")
    a("s_add_u32 s81, s81, s83")
    a(f"v_add_u32 v{t + 2}, s81, v0")
    a(f"v_lshlrev_b32 v{VTX}, 11, v{t + 2}")
    a("s_mul_i32 s82, s82, 24")
    a(f"v_add_u32 v{t + 2}, s82, v0")
    emit_wline(a, VTW, t + 2, None, t + 3)
    a(f"v_mov_b32 v{t + 4}, 0x80000000")
    a("v_cmp_gt_u32 vcc, 32, v0")
    a("s_nop 1")
    a(f"v_cndmask_b32 v{VTX}, v{t + 4}, v{VTX}, vcc")
    a("v_cmp_gt_u32 vcc, 24, v0")
    a("s_nop 1")
    a(f"v_cndmask_b32 v{VTW}, v{t + 4}, v{VTW}, vcc")


def touch(t0, nt, VTX, VTW, dst):
    m = (1 << (8 * nt)) - 1
    out = []
    if nt < 8:
        out += [f"s_mov_b32 exec_lo, 0x{m & 0xffffffff:x}", f"s_mov_b32 exec_hi, 0x{m >> 32:x}"]
    out += [f"buffer_load_dword v{dst}, v{VTW}, {S(SW)}, 0 offen",
            f"buffer_load_dword v{dst + 1}, v{VTX}, {S(SX)}, 0 offen"]
    if nt < 8:
        out.append("s_mov_b64 exec, -1")
    return out


QC = 224
SBUF = [8, 24, 40]
KB = [56, 64, 72]
VB = [80, 88, 160]
OA = 96
CM = 200
LS = 128
ONE = 240
PM = 232
P0 = 144
VM, VM2, VT, VNEG, VK, VK0 = 152, 153, 154, 244, 245, 246
YP = 176
QQ, PA = 112, 216


def emit_attn_setup(a0, MASKS, t=4):
    a = lambda x: a0(re.sub(r"\bv([456])\b", lambda m: f"v{int(m.group(1)) - 4 + t}", x))
    a("v_and_b32 v4, 31, v0")
    a("v_lshrrev_b32 v5, 5, v0")
    a("v_lshlrev_b32 v5, 2, v5")
    a("v_sub_u32 v4, v4, v5")
    for r in range(16):
        a(f"v_cmp_le_i32 s[{MASKS[r]}:{MASKS[r] + 1}], {8 * (r >> 2) + (r & 3)}, v4")
    a(f"v_mov_b32 v{VNEG}, 0xf149f2ca")
    a("v_mov_b32 v4, 0xffff")
    a("v_mov_b32 v5, 0xffff0000")
    for j in range(8):
        a(f"v_cndmask_b32 v{PM + j}, 0, v4, s[{MASKS[2 * j]}:{MASKS[2 * j] + 1}]")
        a(f"v_cndmask_b32 v6, 0, v5, s[{MASKS[2 * j + 1]}:{MASKS[2 * j + 1] + 1}]")
        a(f"v_or_b32 v{PM + j}, v{PM + j}, v6")
    a("v_lshrrev_b32 v4, 4, v0")
    a("v_lshrrev_b32 v5, 2, v0")
    a("v_xor_b32 v4, v4, v5")
    a("v_and_b32 v4, 1, v4")
    a("v_cmp_eq_u32 vcc, 0, v4")
    a("v_mov_b32 v5, 0x3f803f80")
    for i in range(4):
        a(f"v_cndmask_b32 v{ONE + i}, 0, v5, vcc")
    a(f"s_mul_i32 s42, s41, {L_HD}")
    a("s_lshl_b32 s43, s40, 11")
    a("s_add_u32 s42, s42, s43")
    a(f"v_add_u32 v{VK}, s42, v1")
    a("s_lshl_b32 s45, s33, 2")
    a("s_add_u32 s45, s45, s40")
    a("s_sub_u32 s46, 8, s45")
    a("s_cmp_lt_u32 s45, 8")
    a("s_cselect_b32 s46, s46, 0")
    a("s_cselect_b32 s43, 0x4000, 0")
    a(f"v_add_u32 v{VK0}, s43, v{VK}")
    a("s_lshl_b32 s47, s45, 5")
    a("s_lshl_b32 s42, s34, 1")
    a("s_add_u32 s47, s47, s42")
    a("s_add_u32 s47, s47, s41")
    a("s_lshl_b32 s47, s47, 11")
    a(f"s_add_u32 s47, s47, 0x{WS_OF:x}")


def prio_plan(role):
    for o in OPT:
        if o.startswith("pr" + role):
            d = o[3:]
            out, last = {}, None
            for k, c in zip([0, 2, 3, 4, 5, 6, 7, 8, 9], d):
                if c != last or k == 9:
                    out[k] = int(c)
                last = c
            return out
    return {}


def emit_attention(a, ool, hooks, MASKS, role):
    order = [8, 0, 7, 6, 5, 4, 3, 2, 1]

    def hook(k):
        if k in hooks:
            hooks[k]()

    def kread(i):
        rel, b = order[i % 9], KB[i % 3]
        return [f"ds_read_b128 {vr(b, 4)}, v{VK} offset:{rel * 2048}",
                f"ds_read_b128 {vr(b + 4, 4)}, v{VK} offset:{rel * 2048 + 1024}"]

    def vread(i):
        rel, b = order[i], VB[i % 3]
        ad = VK0 if rel == 0 else VK
        return [f"ds_read_b128 {vr(b, 4)}, v{ad} offset:{L_V + rel * 2048}",
                f"ds_read_b128 {vr(b + 4, 4)}, v{ad} offset:{L_V + rel * 2048 + 1024}"]

    def smf(i, c):
        s, k = vr(SBUF[i % 3], 16), KB[i % 3]
        return [f"v_mfma_f32_32x32x16_bf16 {s}, {vr(k, 4)}, {vr(QC, 4)}, {c}",
                f"v_mfma_f32_32x32x16_bf16 {s}, {vr(k + 4, 4)}, {vr(QC + 4, 4)}, {s}"]

    def merge():
        lf, lb = a.newlabel("mneg"), a.newlabel("mback")
        a("s_cmp_gt_u32 s46, 0")
        a(f"s_cbranch_scc1 {lf}")
        for r in range(16):
            a(f"v_cndmask_b32 v{SBUF[1] + r}, v{SBUF[1] + r}, v{SBUF[0] + r}, s[{MASKS[r]}:{MASKS[r] + 1}]")
        a.label(lb)
        ool.append((lf, [f"v_cndmask_b32 v{SBUF[1] + r}, v{VNEG}, v{SBUF[0] + r}, s[{MASKS[r]}:{MASKS[r] + 1}]"
                         for r in range(16)], lb))

    def maxblk(i):
        s = SBUF[i % 3]
        ta, tb = (VM, VM2) if i == 1 else (VT, VM2)
        if i >= 2:
            a(f"s_cmp_le_u32 s46, {order[i]}")
            a("s_cselect_b64 vcc, -1, 0")
        a(f"v_max3_f32 v{ta}, v{s}, v{s + 1}, v{s + 2}")
        a(f"v_max3_f32 v{tb}, v{s + 3}, v{s + 4}, v{s + 5}")
        for x in range(5):
            t = (ta, tb)[x & 1]
            a(f"v_max3_f32 v{t}, v{s + 6 + 2 * x}, v{s + 7 + 2 * x}, v{t}")
        a(f"v_max_f32 v{ta}, v{ta}, v{tb}")
        if i >= 2:
            a(f"v_cndmask_b32 v{ta}, v{VNEG}, v{ta}, vcc")
            a(f"v_max_f32 v{VM}, v{VM}, v{ta}")

    if 0 in hooks.get("prio", {}):
        a(f"s_setprio {hooks['prio'][0]}")
    SZ = "sz" in OPT
    for x in kread(0) + kread(1) + kread(2) + vread(0) + vread(1):
        a(x)
    if not SZ:
        a("s_waitcnt lgkmcnt(8)")
        for x in smf(0, "0"):
            a(x)
        a("s_waitcnt lgkmcnt(6)")
        for x in smf(1, "0") + kread(3):
            a(x)
        a("s_nop 7")
        a("s_nop 7")
        merge()
        maxblk(1)
        a(f"v_mov_b32 v{VT}, v{VM}")
        a("s_nop 1")
        a(f"v_permlane32_swap_b32 v{VM}, v{VT}")
        a("s_nop 1")
        a(f"v_max_f32 v{VM}, v{VM}, v{VT}")
        for r in range(16):
            a(f"v_sub_f32 v{CM + r}, 0, v{VM}")
    hook("mid")
    cm, o, ls = ("0" if SZ else vr(CM, 16)), vr(OA, 16), vr(LS, 4)

    def pv(i):
        s = SBUF[i % 3]
        if i == 1:
            return [f"v_mfma_f32_32x32x16_bf16 {o}, {vr(VB[0], 4)}, {vr(s + 8, 4)}, 0",
                    f"v_mfma_f32_16x16x32_bf16 {ls}, {vr(ONE, 4)}, {vr(s, 4)}, 0",
                    f"v_mfma_f32_32x32x16_bf16 {o}, {vr(VB[0] + 4, 4)}, {vr(s + 12, 4)}, {o}",
                    f"v_mfma_f32_16x16x32_bf16 {ls}, {vr(ONE, 4)}, {vr(s + 4, 4)}, {ls}",
                    f"v_mfma_f32_32x32x16_bf16 {o}, {vr(VB[1], 4)}, {vr(P0, 4)}, {o}",
                    f"v_mfma_f32_32x32x16_bf16 {o}, {vr(VB[1] + 4, 4)}, {vr(P0 + 4, 4)}, {o}"]
        v = VB[i % 3]
        return [f"v_mfma_f32_32x32x16_bf16 {o}, {vr(v, 4)}, {vr(s, 4)}, {o}",
                f"v_mfma_f32_16x16x32_bf16 {ls}, {vr(ONE, 4)}, {vr(s, 4)}, {ls}",
                f"v_mfma_f32_32x32x16_bf16 {o}, {vr(v + 4, 4)}, {vr(s + 4, 4)}, {o}",
                f"v_mfma_f32_16x16x32_bf16 {ls}, {vr(ONE, 4)}, {vr(s + 4, 4)}, {ls}"]

    def valu(i):
        s = SBUF[i % 3]
        return [(f"v_exp_f32 v{s + r}, v{s + r}", 8) for r in range(16)] + \
               [(f"v_cvt_pk_bf16_f32 v{s + j}, v{s + 2 * j}, v{s + 2 * j + 1}", 4) for j in range(8)]

    def weave(ms, vs):
        vs = list(vs)
        for m in ms:
            a(m)
            need = (32 if "32x32" in m else 16) - 8
            while vs and need > 0:
                x, c = vs.pop(0)
                a(x)
                need -= c
        for x, c in vs:
            a(x)

    fin = a.newlabel("afin")
    if SZ:
        for i in range(3):
            a(f"s_waitcnt lgkmcnt({8 - 2 * i})")
            for x in smf(i, cm):
                a(x)
        for x in kread(3):
            a(x)
        merge()
    else:
        a("s_waitcnt lgkmcnt(6)")
        for x in smf(2, cm):
            a(x)
        for r in range(16):
            a(f"v_sub_f32 v{SBUF[1] + r}, v{SBUF[1] + r}, v{VM}")
    s = SBUF[1]
    for x, c in valu(1):
        a(x)
    for j in range(8):
        a(f"v_and_b32 v{s + 8 + j}, v{s + j}, v{PM + j}")
    for j in range(8):
        a(f"v_xor_b32 v{P0 + j}, v{s + j}, v{s + 8 + j}")
    blk = hooks.get("blk", {})
    for i in range(2, 9):
        ex = a.newlabel("aexit")
        a("s_waitcnt lgkmcnt(0)")
        a(f"s_cmp_gt_u32 s46, {order[i]}")
        a(f"s_cbranch_scc1 {ex}")
        ool.append((ex, pv(i - 1) + [x for k in range(i, 9) for x in blk.get(k, [])], fin))
        if i in hooks.get("prio", {}):
            a(f"s_setprio {hooks['prio'][i]}")
        for x in blk.get(i, []):
            a(x)
        for x in vread(i) + (kread(i + 2) if i + 2 < 9 else []):
            a(x)
        weave((smf(i + 1, cm) if i + 1 < 9 else []) + pv(i - 1), valu(i))
    a("s_waitcnt lgkmcnt(0)")
    for x in pv(8):
        a(x)
    a.label(fin)
    if 9 in hooks.get("prio", {}):
        a(f"s_setprio {hooks['prio'][9]}")
    hook("end")
    a("s_nop 7")
    a("s_nop 3")
    a(f"v_rcp_f32 v{VT}, v{LS}")
    a(f"v_mul_f32 v{VM2}, 0, v{OA}")
    for r in range(1, 16):
        a(f"v_fmac_f32 v{LS if r & 1 else VM2}, 0, v{OA + r}")
    a(f"v_add_f32 v{VM2}, v{VM2}, v{LS}")
    a(f"v_add_f32 v{VM2}, v{VM2}, v{VT}")
    a(f"v_cmp_gt_f32 vcc, 0x{0x3f800000 + (optval('thr', 30) << 23):x}, v{VM2}")
    a(f"s_mov_b32 s101, {int(role == 'M')}")
    a("s_nop 0")
    a("s_cmp_eq_u64 vcc, -1")
    a("s_cbranch_scc0 L_exact")
    a.label(f"L_norm{role}")
    for r in range(16):
        a(f"v_mul_f32 v{OA + r}, v{OA + r}, v{VT}")
    for j in range(8):
        a(f"v_cvt_pk_bf16_f32 v{OA + j}, v{OA + 2 * j}, v{OA + 2 * j + 1}")
    a(f"buffer_store_dwordx4 {vr(OA, 4)}, v1, {S(SWS)}, s47 offen{SC}")
    a(f"buffer_store_dwordx4 {vr(OA + 4, 4)}, v1, {S(SWS)}, s47 offen offset:1024{SC}")


def emit_exact(a):
    s, k, v, cm = SBUF[0], KB[0], VB[0], CM
    VD, VN = SBUF[1], SBUF[1] + 1
    a.label("L_exact")
    a("s_waitcnt vmcnt(0) lgkmcnt(0)")
    a(f"v_and_b32 v{VD}, 31, v0")
    a(f"v_lshrrev_b32 v{VN}, 5, v0")
    a(f"v_lshlrev_b32 v{VN}, 2, v{VN}")
    a(f"v_sub_u32 v{VD}, v{VD}, v{VN}")
    a(f"v_mov_b32 v{VN}, 0xf149f2ca")
    a(f"v_mov_b32 v{VM}, v{VN}")
    a("s_lshl_b32 s4, s34, 1")
    a("s_add_u32 s4, s4, s41")
    a("s_lshl_b32 s4, s4, 6")
    a("s_add_u32 s4, s4, s45")
    a("s_lshl_b32 s4, s4, 11")
    a(f"s_add_u32 s4, s4, 0x{WS_KF - 8 * 2048:x}")
    a("s_sub_u32 s5, 8, s45")
    a("s_cmp_lt_u32 s45, 8")
    a("s_cselect_b32 s5, s5, 0")
    for r in range(16):
        a(f"v_mov_b32 v{cm + r}, 0")
        a(f"v_mov_b32 v{OA + r}, 0")
    for r in range(4):
        a(f"v_mov_b32 v{LS + r}, 0")
    a("s_mov_b32 s9, 0")
    a.label("L_expass")
    a("s_mov_b32 s6, s5")
    a.label("L_extile")
    a("s_lshl_b32 s7, s6, 11")
    a("s_add_u32 s7, s7, s4")
    a(f"s_add_u32 s8, s7, 0x{WS_VF - WS_KF:x}")
    for st in range(2):
        a(f"buffer_load_dwordx4 {vr(k + 4 * st, 4)}, v1, {S(SWS)}, s7 offen offset:{1024 * st}")
        a(f"buffer_load_dwordx4 {vr(v + 4 * st, 4)}, v1, {S(SWS)}, s8 offen offset:{1024 * st}")
    a("s_waitcnt vmcnt(0)")
    a(f"v_mfma_f32_32x32x16_bf16 {vr(s, 16)}, {vr(k, 4)}, {vr(QC, 4)}, {vr(cm, 16)}")
    a(f"v_mfma_f32_32x32x16_bf16 {vr(s, 16)}, {vr(k + 4, 4)}, {vr(QC + 4, 4)}, {vr(s, 16)}")
    a("s_nop 7")
    a("s_nop 7")
    for rel, op in ((8, "le"), (0, "gt")):
        a(f"s_cmp_lg_u32 s6, {rel}")
        a(f"s_cbranch_scc1 L_exm{rel}")
        for r in range(16):
            a(f"v_cmp_{op}_i32 vcc, {8 * (r >> 2) + (r & 3)}, v{VD}")
            a(f"v_cndmask_b32 v{s + r}, v{VN}, v{s + r}, vcc")
        a.label(f"L_exm{rel}")
    a("s_cmp_lg_u32 s9, 0")
    a("s_cbranch_scc1 L_exp2")
    for r in range(16):
        a(f"v_max_f32 v{VM}, v{VM}, v{s + r}")
    a("s_branch L_exnext")
    a.label("L_exp2")
    for r in range(16):
        a(f"v_exp_f32 v{s + r}, v{s + r}")
    a("s_nop 0")
    for j in range(8):
        a(f"v_cvt_pk_bf16_f32 v{s + j}, v{s + 2 * j}, v{s + 2 * j + 1}")
    a("s_nop 1")
    for st in range(2):
        a(f"v_mfma_f32_32x32x16_bf16 {vr(OA, 16)}, {vr(v + 4 * st, 4)}, {vr(s + 4 * st, 4)}, {vr(OA, 16)}")
        a(f"v_mfma_f32_16x16x32_bf16 {vr(LS, 4)}, {vr(ONE, 4)}, {vr(s + 4 * st, 4)}, {vr(LS, 4)}")
    a("s_nop 7")
    a("s_nop 7")
    a.label("L_exnext")
    a("s_add_u32 s6, s6, 1")
    a("s_cmp_le_u32 s6, 8")
    a("s_cbranch_scc1 L_extile")
    a("s_cmp_lg_u32 s9, 0")
    a("s_cbranch_scc1 L_exdone")
    a(f"v_mov_b32 v{VT}, v{VM}")
    a("s_nop 1")
    a(f"v_permlane32_swap_b32 v{VM}, v{VT}")
    a("s_nop 1")
    a(f"v_max_f32 v{VM}, v{VM}, v{VT}")
    for r in range(16):
        a(f"v_sub_f32 v{cm + r}, 0, v{VM}")
    a("s_mov_b32 s9, 1")
    a("s_branch L_expass")
    a.label("L_exdone")
    a(f"v_rcp_f32 v{VT}, v{LS}")
    a("s_cmp_eq_u32 s101, 1")
    a("s_cbranch_scc1 L_normM")
    a("s_branch L_normH")


def emit_conv(a, hooks):
    ACC, FB = 8, [40, 104]
    VA, VBB, VEB, VSO = 168, 172, 173, 174
    a("v_and_b32 v2, 15, v0")
    a("v_lshrrev_b32 v3, 4, v0")
    a("v_add_u32 v4, 1, v2")
    a("v_and_b32 v5, 1, v4")
    a("v_sub_u32 v4, v4, v5")
    a("v_lshl_add_u32 v4, v3, 3, v4")
    a("v_lshlrev_b32 v4, 1, v4")
    a(f"v_mul_u32_u24 v5, {CPY}, v5")
    a(f"v_add3_u32 v{VA}, v4, v5, s46")
    for i in range(1, 4):
        a(f"v_add_u32 v{VA + i}, {1024 * i}, v{VA}")
    a("v_lshlrev_b32 v4, 5, v2")
    a("v_lshlrev_b32 v5, 4, v3")
    a(f"v_sub_u32 v{VBB}, v5, v4")
    a(f"v_add_u32 v{VBB}, {URO + 480}, v{VBB}")
    a(f"v_add_u32 v{VBB}, s46, v{VBB}")
    a("v_lshlrev_b32 v5, 3, v3")
    a(f"v_add_u32 v{VSO}, v4, v5")
    a(f"v_sub_u32 v{VEB}, {URO + 504}, v{VSO}")
    a(f"v_add_u32 v{VEB}, s46, v{VEB}")

    def creads(j, buf):
        f = FB[buf]
        out = []
        for q in range(8):
            o = (q & 1) * 128 + 16 * j
            va = VA + (q >> 1)
            out.append(f"ds_read2_b32 {vr(f + 4 * q, 2)}, v{va} offset0:{o} offset1:{o + 1}")
            out.append(f"ds_read2_b32 {vr(f + 4 * q + 2, 2)}, v{va} offset0:{o + 2} offset1:{o + 3}")
            out.append(f"ds_read_b128 {vr(f + 32 + 4 * q, 4)}, v{VBB} offset:{512 * (7 - q) + 64 * j}")
        return out

    pairs = [(q, dl) for q in range(8) for dl in range(8 - q)]
    pairs.sort(key=lambda x: (max(x[0], x[1]), x[0] + x[1], x[0]))
    seq, rest = [], list(pairs)
    while rest:
        pick = next((p for p in rest if all(p[0] + p[1] != s[0] + s[1] for s in seq[-2:])), rest[0])
        rest.remove(pick)
        seq.append(pick)

    def cmfmas(j, buf):
        f = FB[buf]
        seen, out = set(), []
        for (q, dl) in seq:
            nt = q + dl
            d = vr(ACC + 4 * nt, 4)
            c = "0" if (j == 0 and nt not in seen) else d
            seen.add(nt)
            out.append(f"v_mfma_f32_16x16x32_bf16 {d}, {vr(f + 4 * q, 4)}, {vr(f + 32 + 4 * dl, 4)}, {c}")
        return out

    extra = list(hooks.get("extra", []))
    if "start" in hooks:
        hooks["start"]()
    for i, r in enumerate(creads(0, 0)):
        a(r)
        if i % 12 == 11:
            a("s_waitcnt lgkmcnt(4)")
    for j in range(8):
        m = cmfmas(j, j & 1)
        r = creads(j + 1, (j + 1) & 1) if j < 7 else \
            [f"ds_read_b64 {vr(FB[0] + 2 * nt, 2)}, v{VEB} offset:{512 * (7 - nt)}" for nt in range(8)]
        a("s_waitcnt lgkmcnt(0)")
        ri = 0
        if "cnolds" in OPT and j < 7:
            r = []
        for i, mm in enumerate(m):
            a(mm if "cnomfma" not in OPT else "s_nop 3")
            if ri < len(r):
                a(r[ri]); ri += 1
            if j >= 1 and extra:
                a(extra.pop(0))
        assert ri == len(r)
    a("s_nop 7")
    a("s_waitcnt lgkmcnt(0)")
    stores = []
    for nt in range(8):
        k0, k1 = FB[0] + 2 * nt, FB[0] + 2 * nt + 1
        t = FB[0] + 16 + 4 * (nt & 1)
        ac = ACC + 4 * nt
        a(f"v_and_b32 v{t}, 0xffff0000, v{k1}")
        a(f"v_lshlrev_b32 v{t + 1}, 16, v{k1}")
        a(f"v_and_b32 v{t + 2}, 0xffff0000, v{k0}")
        a(f"v_lshlrev_b32 v{t + 3}, 16, v{k0}")
        for e in range(4):
            a(f"v_fmac_f32 v{ac + e}, s39, v{t + e}")
        a(f"v_cvt_pk_bf16_f32 v{YP + 2 * nt}, v{ac}, v{ac + 1}")
        a(f"v_cvt_pk_bf16_f32 v{YP + 2 * nt + 1}, v{ac + 2}, v{ac + 3}")
        st = f"buffer_store_dwordx2 {vr(YP + 2 * nt, 2)}, v{VSO}, {S(SWS)}, s36 offen offset:{512 * nt}{SC}"
        if "yearly" in OPT:
            a(st)
        else:
            stores.append(st)
    return stores


def emit_lds_wait(a, vaddr, off, t):
    lp, dn = a.newlabel("lw"), a.newlabel("lwd")
    a("s_mov_b32 s85, 0")
    a.label(lp)
    a(f"ds_read_b128 {vr(t, 4)}, v{vaddr} offset:{off}")
    a("s_waitcnt lgkmcnt(0)")
    a(f"v_and_b32 v{t}, v{t}, v{t + 1}")
    a(f"v_and_b32 v{t + 2}, v{t + 2}, v{t + 3}")
    a(f"v_and_b32 v{t}, v{t}, v{t + 2}")
    a("s_add_u32 s85, s85, 1")
    a(f"v_readfirstlane_b32 s80, v{t}")
    a("s_nop 1")
    a("s_cmp_lg_u32 s80, 0")
    a(f"s_cbranch_scc1 {dn}")
    a(f"s_cmp_lt_u32 s85, 0x{SPIN_LIMIT:x}")
    a(f"s_cbranch_scc1 {lp}")
    a.label(dn)


def p1_lists():
    KK, VV, WR = 124, 146, 162
    AK, AH, AS, AO = 174, 175, 176, 177
    KF_, WF_, RS_, TT, PO = 12, 56, 72, 104, 108
    soffs = ["0", "s50", "s51", "s52"]
    setup, loads, comp, stores = [], [], [], []
    a = setup.append
    a("v_lshrrev_b32 v24, 3, v0")
    a("v_and_b32 v25, 7, v0")
    a("s_lshl_b32 s80, s35, 6")
    a("s_lshl_b32 s81, s3, 2")
    a("s_add_u32 s81, s81, s44")
    a("s_lshl_b32 s81, s81, 5")
    a("v_lshlrev_b32 v24, 3, v24")
    a("v_add_u32 v24, s80, v24")
    a("v_lshlrev_b32 v25, 2, v25")
    a("v_add_u32 v25, s81, v25")
    a(f"v_lshlrev_b32 v{AK}, 11, v24")
    a(f"v_lshl_add_u32 v{AK}, v25, 1, v{AK}")
    a("s_mov_b32 s50, 4096")
    a("s_mov_b32 s51, 8192")
    a("s_mov_b32 s52, 12288")
    a(f"v_subrev_u32 v{AH}, 6144, v{AK}")
    a("v_mov_b32 v26, 0x80000000")
    a("v_cmp_gt_u32 vcc, 3, v24")
    a(f"v_lshlrev_b32 v{AO}, 12, v25")
    a("v_sub_u32 v24, 2040, v24")
    a(f"v_cndmask_b32 v{AH}, v{AH}, v26, vcc")
    a(f"v_lshlrev_b32 v{AS}, 3, v25")
    a(f"v_lshl_add_u32 v{AO}, v24, 1, v{AO}")
    loads.append(f"buffer_load_dwordx4 {vr(WR, 4)}, v{AS}, {S(SSH)}, 0 offen")
    loads.append(f"buffer_load_dwordx4 {vr(WR + 4, 4)}, v{AS}, {S(SSH)}, 0 offen offset:16")
    for i in range(3):
        loads.append(f"buffer_load_dwordx2 {vr(KK + 2 * i, 2)}, v{AH}, {S(SK)}, {soffs[i >> 1]} offen offset:{(i & 1) * 2048} {nt('p')}")
    for i in range(8):
        loads.append(f"buffer_load_dwordx2 {vr(KK + 6 + 2 * i, 2)}, v{AK}, {S(SK)}, {soffs[i >> 1]} offen offset:{(i & 1) * 2048} {nt('p')}")
    for i in range(8):
        loads.append(f"buffer_load_dwordx2 {vr(VV + 2 * i, 2)}, v{AK}, {S(SV)}, {soffs[i >> 1]} offen offset:{(i & 1) * 2048} {nt('p')}")
    a = comp.append
    for dd in range(4):
        for h2 in range(2):
            src = WR + 2 * dd + h2
            a(f"v_lshlrev_b32 v{WF_ + 4 * dd + 2 * h2}, 16, v{src}")
            a(f"v_and_b32 v{WF_ + 4 * dd + 2 * h2 + 1}, 0xffff0000, v{src}")
    for i in range(11):
        for h2 in range(2):
            src = KK + 2 * i + h2
            a(f"v_lshlrev_b32 v{KF_ + 4 * i + 2 * h2}, 16, v{src}")
            a(f"v_and_b32 v{KF_ + 4 * i + 2 * h2 + 1}, 0xffff0000, v{src}")
    for s_ in range(8):
        for dd in range(4):
            r = RS_ + 4 * s_ + dd
            a(f"v_mul_f32 v{r}, v{KF_ + 4 * (s_ + 3) + dd}, v{WF_ + 4 * dd}")
            for j in range(1, 4):
                a(f"v_fmac_f32 v{r}, v{KF_ + 4 * (s_ + 3 - j) + dd}, v{WF_ + 4 * dd + j}")
    for s_ in range(8):
        for dd in range(4):
            r = RS_ + 4 * s_ + dd
            src = VV + 2 * s_ + (dd >> 1)
            t = TT + (dd & 1)
            a(f"v_and_b32 v{t}, 0xffff0000, v{src}" if dd & 1 else f"v_lshlrev_b32 v{t}, 16, v{src}")
            a(f"v_mul_f32 v{r}, v{r}, v{t}")
    stores.append(f"s_mov_b32 s53, 0x{WS_UR:x}")
    for dd in range(4):
        o = PO + 4 * dd
        for j in range(4):
            stores.append(f"v_cvt_pk_bf16_f32 v{o + j}, v{RS_ + 4 * (7 - 2 * j) + dd}, v{RS_ + 4 * (6 - 2 * j) + dd}")
        stores.append(f"buffer_store_dwordx4 {vr(o, 4)}, v{AO}, {S(SWS)}, s53 offen{SC}")
        if dd < 3:
            stores.append("s_add_u32 s53, s53, 4096")
    return setup, loads, comp, stores


VZ = 252
VLF = 251
SRDS = [(SX, 48, 4 * MB), (SW, 56, 6 * MB), (SWS, 88, WS_SIZE), (SK, 8, 4 * MB), (SV, 16, 4 * MB),
        (SSH, 24, 8192), (SHK, 32, 4 * MB), (SWO, 64, 2 * MB), (SQ, 0, 4 * MB), (SOUT, 72, 8 * MB),
        (SDBG, 80, 256)]


def late_setup(a, ts, helper=True):
    if helper:
        a("s_lshl_b32 s84, s3, 5")
        a("s_add_u32 s84, s84, s35")
        a("s_lshl_b32 s80, s84, 3")
        a("s_load_dwordx2 s[76:77], s[36:37], s80")
    a("s_lshl_b32 s89, s2, 7")
    a("s_lshl_b32 s81, s32, 3")
    a("s_add_u32 s89, s89, s81")
    for (d, off, size) in SRDS[2:]:
        a(f"s_mov_b32 s{d + 2}, 0x{size:x}")
        a(f"s_mov_b32 s{d + 3}, 0x20000")
    a(f"v_mov_b32 v{VLF}, {L_FL}")
    ts.setup(a, SWS)


def g2_tile(a):
    a("s_and_b32 s86, s3, 1")
    a("s_lshl_b32 s86, s86, 1")
    a("s_bfe_u32 s80, s3, 0x10001")
    a("s_add_u32 s86, s86, s80")
    a("s_lshl_b32 s86, s86, 2")
    a("s_and_b32 s80, s35, 3")
    a("s_add_u32 s86, s86, s80")
    a("s_lshr_b32 s42, s3, 2")
    a("s_lshl_b32 s42, s42, 3")
    a("s_lshr_b32 s43, s35, 2")
    a("s_add_u32 s42, s42, s43")


def wo_addr(a0, t=4):
    a = lambda x: a0(re.sub(r"\bv([456])\b", lambda m: f"v{int(m.group(1)) - 4 + t}", x))
    a("v_lshrrev_b32 v4, 3, v0")
    a("v_and_b32 v5, 7, v0")
    a("v_bfe_u32 v6, v0, 4, 1")
    a("v_lshlrev_b32 v6, 2, v6")
    a("v_xor_b32 v6, v6, v5")
    a("v_lshlrev_b32 v250, 11, v4")
    a("v_lshl_add_u32 v250, v6, 4, v250")
    a("s_lshl_b32 s80, s42, 7")
    a("v_add_u32 v250, s80, v250")
    a("s_lshl_b32 s84, s32, 11")
    a("s_lshl_b32 s88, s32, 15")


NE = 3


def wo_part(p, dst, dw=0):
    return [f"s_add_u32 m0, s84, {dst + dw * 2048}",
            f"s_add_u32 s81, s43, {p}",
            "s_and_b32 s81, s81, 7",
            "s_lshl_b32 s81, s81, 18",
            "s_add_u32 s81, s81, s88"] + ([f"s_add_u32 s81, s81, {dw * 32768}"] if dw else []) + [
            f"buffer_load_dwordx4 v250, {S(SWO)}, s81 offen lds",
            f"s_add_u32 s81, s81, {16384 - 1024}",
            f"buffer_load_dwordx4 v250, {S(SWO)}, s81 offen offset:1024 lds"]


def wo_early():
    b0 = optval("we", 3)
    return {b0 + p: wo_part(p, L_R0 + p * 16384) for p in range(NE)}


P4 = [x * 4096 for x in list(range(0, 6)) + list(range(9, 18)) + list(range(21, 26))]
WLOC = [L_R0 + k * 2048 for k in range(8 * NE)] + [P4[k >> 1] + (k & 1) * 2048 for k in range(40)]
NLATE = 10


def blk7_flag():
    b = Asm()
    lds_flag_set(b, 32, 16, 158)
    return [x.strip() for x in b.L]


def wo_late(a, ts, nyoung, helper):
    def stage():
        a("s_and_b32 s83, s32, 3")
        a("s_lshl_b32 s82, s83, 10")
        a("s_lshl_b32 s81, s43, 4")
        a("s_add_u32 s83, s83, s81")
        for i in range(NLATE):
            p = 2 * i + int(helper)
            a(f"s_add_u32 m0, s82, {P4[p]}")
            a(f"s_add_u32 s81, s83, {16 * NE + 4 * p}")
            a("s_and_b32 s81, s81, 127")
            a("s_lshl_b32 s81, s81, 14")
            a(f"buffer_load_dwordx4 v250, {S(SWO)}, s81 offen lds")

    ES = optval("es", 0)
    if ES == 1:
        emit_lds_wait(a, VLF, 64, 8)
        emit_lds_wait(a, VLF, 80, 8)
        stage()
        a(f"s_waitcnt vmcnt({nyoung + NLATE})")
    else:
        a(f"s_waitcnt vmcnt({nyoung})")
    emit_publish(a, FL_O, 220, VZ)
    lds_flag_set(a, 32, 8, 222)
    if ES == 2:
        emit_lds_wait(a, VLF, 64, 8)
        emit_lds_wait(a, VLF, 80, 8)
        stage()
    if ES == 0 or not helper:
        emit_lds_wait(a, VLF, 32, 8)
        emit_lds_wait(a, VLF, 48, 8)
    ts.stamp(a, 7)
    if ES == 0:
        stage()


def lds_flag_set(a, word_s, word_add, t):
    a(f"s_lshl_b32 s80, s{word_s}, 2")
    a(f"v_add_u32 v{t}, s80, v{VLF}")
    a(f"v_mov_b32 v{t + 1}, 1")
    a(f"ds_write_b32 v{t}, v{t + 1} offset:{4 * word_add}")


def m_path(a, ts, ool):
    ACC = 80
    PD = optval('pd', 2)
    FR = [16, 36, 56, 192, 212][:PD + 1]
    NB = PD + 1
    LZ = 'lz' in OPT
    XA, WB, XA2 = 2, 6, 8
    def code_touch():
        lcp = a.newlabel("nocp")
        a("s_cmp_lg_u32 s32, 1")
        a(f"s_cbranch_scc1 {lcp}")
        a("s_mov_b32 exec_hi, 0")
        a("buffer_load_dword v188, v189, s[52:55], s56 offen")
        a("s_mov_b32 exec_hi, -1")
        a.label(lcp)

    CQ = [int(o[2:]) for o in OPT if o.startswith("cq")]
    if "cp" in OPT or CQ:
        a("s_getpc_b64 s[52:53]")
        a.label("L_pc")
        a(f"s_sub_u32 s52, s52, L_pc-{NAME}_kernel")
        a("s_subb_u32 s53, s53, 0")
        a(f"s_mov_b32 s54, L_end-{NAME}_kernel")
        a("s_mov_b32 s55, 0x20000")
        a("s_lshl_b32 s56, s35, 11")
        a("v_lshlrev_b32 v189, 6, v0")
    if "cp" in OPT:
        code_touch()
    SW_ = {}
    for o in OPT:
        if o.startswith("sw"):
            m, n = o[2:].split("_")
            SW_[int(n)] = int(m)
    if SW_:
        a("s_lshl_b32 s80, s35, 2")
        a("s_add_u32 s80, s80, s32")
        a("s_mul_i32 s81, s80, 6")
        a("v_and_b32 v3, 7, v0")
        a("v_lshrrev_b32 v184, 3, v0")
        a("v_mul_u32_u24 v184, 768, v184")
        a("v_add3_u32 v184, v184, v3, s81")
        a("v_lshlrev_b32 v184, 11, v184")
        a("s_lshr_b32 s81, s3, 2")
        a("s_lshl_b32 s81, s81, 10")
        a("s_add_u32 s81, s81, 0x180")
        a("v_add_u32 v184, s81, v184")
        a("s_bitcmp1_b32 s3, 1")
        a("s_cselect_b32 s81, 0, 6")
        a("v_mov_b32 v2, 0x80000000")
        a("v_cmp_gt_u32 vcc, s81, v3")
        a("s_nop 1")
        a("v_cndmask_b32 v184, v2, v184, vcc")

    def slow_touch(n):
        if n in SW_:
            a(f"s_mov_b64 exec, 0x{sum(0xff << (8 * q) for q in range(4) if SW_[n] >> q & 1):x}")
            a(f"buffer_load_dword v177, v184, {S(SW)}, 0 offen")
            a("s_mov_b64 exec, -1")

    a("s_waitcnt lgkmcnt(0)")
    slow_touch(99)
    late_setup(a, ts, False)
    ltk = a.newlabel("notok")
    a("s_cmp_lg_u32 s89, 0")
    a(f"s_cbranch_scc1 {ltk}")
    a("s_memrealtime s[78:79]")
    a("s_waitcnt lgkmcnt(0)")
    a("s_or_b32 s78, s78, 1")
    a("v_mov_b32 v180, s78")
    a("v_mov_b32 v181, s79")
    a("s_mov_b64 exec, 1")
    a(f"buffer_store_dwordx2 v[180:181], v{VZ}, {S(SDBG)}, 0 offen{SC}")
    a("s_mov_b64 exec, -1")
    a.label(ltk)
    a("s_waitcnt lgkmcnt(0)")
    a("s_and_b32 s44, s32, 1")
    a("s_lshr_b32 s41, s32, 1")
    a("s_lshl_b32 s40, s44, 1")
    a("v_and_b32 v8, 31, v0")
    a("v_lshrrev_b32 v9, 5, v0")
    a("v_lshrrev_b32 v10, 1, v8")
    a("v_and_b32 v10, 7, v10")
    a("v_lshlrev_b32 v11, 7, v8")
    a("s_lshl_b32 s46, s44, 13")
    a("v_add_u32 v11, s46, v11")
    for ks in range(4):
        a(f"v_add_u32 v12, {2 * ks}, v9")
        a("v_xor_b32 v12, v12, v10")
        a(f"v_lshl_add_u32 v{XA + ks}, v12, 4, v11")
    a("v_and_b32 v10, 15, v0")
    a("v_lshrrev_b32 v11, 4, v0")
    a("v_lshrrev_b32 v12, 2, v10")
    a("v_lshl_add_u32 v12, v9, 3, v12")
    a("v_mul_u32_u24 v12, 384, v12")
    a("v_lshrrev_b32 v13, 3, v10")
    a("v_xor_b32 v13, s41, v13")
    a("v_lshl_add_u32 v12, v13, 6, v12")
    a("v_and_b32 v13, 1, v11")
    a("v_lshl_add_u32 v12, v13, 5, v12")
    a("v_and_b32 v13, 3, v10")
    a("v_lshl_add_u32 v12, v13, 3, v12")
    a(f"v_add_u32 v{WB}, 16384, v12")
    a(f"v_add_u32 v{WB + 1}, {16384 + 81920}, v12")
    for ks in range(4):
        a(f"v_add_u32 v{XA2 + ks}, 81920, v{XA + ks}")

    def reads(t, ks, buf):
        st = (t + 2) & 3
        f = FR[buf]
        xa = (XA2 if st >= 2 else XA) + ks
        xo = (st & 1) * 40960
        wb = WB + (st >> 1)
        wo = (st & 1) * 40960 + 16 * ks * 384
        return [f"ds_read_b128 {vr(f, 4)}, v{xa} offset:{xo}",
                f"ds_read_b64_tr_b16 {vr(f + 8, 2)}, v{wb} offset:{wo}",
                f"ds_read_b64_tr_b16 {vr(f + 10, 2)}, v{wb} offset:{wo + 4 * 384}",
                f"ds_read_b128 {vr(f + 4, 4)}, v{xa} offset:{xo + 4096}",
                f"ds_read_b64_tr_b16 {vr(f + 12, 2)}, v{wb} offset:{wo + 128}",
                f"ds_read_b64_tr_b16 {vr(f + 14, 2)}, v{wb} offset:{wo + 128 + 4 * 384}",
                f"ds_read_b64_tr_b16 {vr(f + 16, 2)}, v{wb} offset:{wo + 256}",
                f"ds_read_b64_tr_b16 {vr(f + 18, 2)}, v{wb} offset:{wo + 256 + 4 * 384}"]

    def mfmas(buf, first, last):
        f = FR[buf]
        X = [vr(f, 4), vr(f + 4, 4)]
        W = [vr(f + 8, 4), vr(f + 12, 4), vr(f + 16, 4)]
        out = []
        for part in ((1, 2, 0) if last else (0, 1, 2)):
            for rt in range(2):
                d = vr(ACC + 16 * (2 * part + rt), 16)
                c = "0" if first else d
                if part < 2:
                    out.append(f"v_mfma_f32_32x32x16_bf16 {d}, {W[part]}, {X[rt]}, {c}")
                else:
                    out.append(f"v_mfma_f32_32x32x16_bf16 {d}, {X[rt]}, {W[part]}, {c}")
        return out

    a("s_lshl_b32 s46, s34, 1")
    a("s_add_u32 s46, s46, s41")
    a("s_lshl_b32 s46, s46, 6")
    a("s_lshl_b32 s47, s33, 2")
    a("s_add_u32 s46, s46, s47")
    a("s_add_u32 s48, s46, s40")
    a("s_lshl_b32 s48, s48, 11")
    a(f"s_add_u32 s49, s48, 0x{WS_VF:x}")
    a(f"s_add_u32 s48, s48, 0x{WS_KF:x}")
    a(f"s_mul_i32 s80, s41, {L_HD}")
    a("s_lshl_b32 s81, s44, 12")
    a("s_add_u32 s80, s80, s81")
    a("v_add_u32 v182, s80, v1")
    a("s_lshl_b32 s80, s32, 11")
    a(f"s_add_u32 s80, s80, {L_QH}")
    a("v_add_u32 v183, s80, v1")

    def setup2():
        a("s_add_u32 s38, s33, s44")
        a("s_sub_u32 s80, s38, 2")
        a("s_max_i32 s80, s80, 0")
        a("v_mov_b32 v20, s80")
        a("v_mov_b32 v21, s34")
        emit_wg_of(a, 190, 20, 21, 22)
        a("v_and_b32 v20, 1, v0")
        a("v_lshl_add_u32 v190, v20, 3, v190")
        a("s_lshl_b32 s80, s41, 4")
        a(f"s_add_u32 s80, s80, 0x{WS_FL + FL_K * 32768:x}")
        a("v_add_u32 v190, s80, v190")
        a("s_lshl_b32 s80, s44, 2")
        a("s_add_u32 s36, s46, s80")
        a("s_lshl_b32 s36, s36, 11")
        a(f"s_add_u32 s36, s36, 0x{WS_KF - 8 * 2048:x}")
        a(f"s_mul_i32 s37, s41, {L_HD}")
        a("s_lshl_b32 s80, s44, 13")
        a("s_add_u32 s37, s37, s80")
        emit_attn_setup(a, MASKS_M, 20)
        g2_tile(a)
        wo_addr(a, 20)
        a("s_lshl_b32 s80, s35, 2")
        a("s_add_u32 s80, s80, s32")
        a("s_lshl_b32 s80, s80, 6")
        a("v_add_u32 v20, s80, v0")
        a("v_lshrrev_b32 v198, 3, v20")
        a("v_lshlrev_b32 v198, 11, v198")
        a("v_and_b32 v20, 7, v20")
        a("v_lshl_add_u32 v198, v20, 7, v198")
        a("s_lshr_b32 s80, s3, 2")
        a("s_lshl_b32 s80, s80, 10")
        a("v_add_u32 v198, s80, v198")
        a("s_lshl_b32 s80, s35, 6")
        a("s_lshl_b32 s81, s32, 4")
        a("s_add_u32 s80, s80, s81")
        a("v_bfe_u32 v20, v0, 1, 4")
        a("v_add_u32 v20, s80, v20")
        a("v_lshlrev_b32 v20, 11, v20")
        a("v_and_b32 v21, 1, v0")
        a("v_lshl_add_u32 v20, v21, 7, v20")
        a("s_lshl_b32 s80, s3, 8")
        a("v_add_u32 v199, s80, v20")

    if "ls" not in OPT:
        setup2()
    KT, FT = optval("kt", -1), optval("ft", -1)
    if KT >= 0:
        a("v_and_b32 v185, 31, v0")
        a("v_lshlrev_b32 v185, 7, v185")
        a("v_lshrrev_b32 v20, 5, v0")
        a("v_lshl_add_u32 v185, v20, 22, v185")
    if FT >= 0:
        a("v_lshlrev_b32 v194, 15, v0")
        a("s_lshl_b32 s80, s2, 7")
        a(f"s_add_u32 s80, s80, 0x{WS_FL:x}")
        a("v_add_u32 v194, s80, v194")
        a("s_cmp_eq_u32 s32, 2")
        a("s_cselect_b32 s80, 4, 0")
        a("v_mov_b32 v193, 0x80000000")
        a("v_cmp_gt_u32 vcc, s80, v0")
        a("s_nop 1")
        a("v_cndmask_b32 v194, v193, v194, vcc")
    slow_touch(98)
    a("s_barrier")
    ts.stamp(a, 11)
    for k in range(PD):
        for r in reads(0, k, k):
            a(r)
        if k == 1:
            a("s_waitcnt lgkmcnt(8)")
    TKN = optval("tkn", 41)
    BK = (4 - PD) % 4
    for n in range(64):
        t, ks = n >> 2, n & 3
        m = mfmas(n % NB, n == 0, n == 63)
        n2 = n + PD
        r = reads(n2 >> 2, n2 & 3, n2 % NB) if n2 < 64 else []
        tch = []
        if n == TKN:
            tch = [f"buffer_load_dwordx2 v[186:187], v{VZ}, {S(SDBG)}, 0 offen{SC}"]
        ahead = min(15, 8 * (min(63, n + PD - 1) - n))
        if ks == BK:
            a(f"s_waitcnt lgkmcnt({ahead if (LZ and t < 15) else 0})")
            a(m[0])
            a("s_barrier")
        else:
            a(f"s_waitcnt lgkmcnt({ahead})")
            a(m[0])
        ri = 0
        for i, mm in enumerate(m[1:]):
            for _ in range(2):
                if ri < len(r):
                    a(r[ri]); ri += 1
            if i == 4:
                for x in tch:
                    a(x)
                if n in CQ:
                    code_touch()
                slow_touch(n)
                if n == KT:
                    a(f"buffer_load_dword v178, v185, {S(SWS)}, s48 offen")
                if n == FT:
                    if "fst" in OPT:
                        a(f"buffer_store_dword v{VZ}, v194, {S(SWS)}, 0 offen offset:64{SC}")
                    else:
                        a(f"buffer_load_dword v195, v194, {S(SWS)}, 0 offen")
            a(mm)
    ts.stamp(a, 1)
    if optval("pe", 0):
        a(f"s_setprio {optval('pe', 0)}")
    for part in (1, 2):
        for rt in range(2):
            b = ACC + 16 * (2 * part + rt)
            for j in range(8):
                a(f"v_cvt_pk_bf16_f32 v{b + j}, v{b + 2 * j}, v{b + 2 * j + 1}")
            for step in range(2):
                a(f"buffer_store_dwordx4 {vr(b + 4 * step, 4)}, v1, {S(SWS)}, s{47 + part} offen offset:{rt * 2048 + step * 1024}{SC}")
    if "pes" in OPT:
        a("s_setprio 0")
    for part in (1, 2):
        for rt in range(2):
            b = ACC + 16 * (2 * part + rt)
            for step in range(2):
                a(f"ds_write_b128 v182, {vr(b + 4 * step, 4)} offset:{8 * 2048 + (part - 1) * L_V + rt * 2048 + step * 1024}")
    for rt in (1, 0):
        b = ACC + 16 * rt
        d = QC if rt == 0 else b
        for r in range(16):
            a(f"v_mul_f32 v{b + r}, {f32hex(SCALE_LOG2E)}, v{b + r}")
        for j in range(8):
            a(f"v_cvt_pk_bf16_f32 v{d + j}, v{b + 2 * j}, v{b + 2 * j + 1}")
        if rt == 1:
            for step in range(2):
                a(f"ds_write_b128 v183, {vr(d + 4 * step, 4)} offset:{step * 1024}")
    lz = a.newlabel("nozero")
    a("s_cmp_lg_u32 s32, 0")
    a(f"s_cbranch_scc1 {lz}")
    a(f"v_lshl_add_u32 v20, v0, 2, v{VLF}")
    a(f"ds_write_b32 v20, v{VZ}")
    a.label(lz)
    if "ls" in OPT:
        setup2()
    tlq = f"buffer_load_dword v157, v199, {S(SQ)}, 0 offen"

    def prev_dma(isv):
        for g in range(2):
            a(f"s_add_u32 m0, s37, {isv * L_V + g * 4096}")
            a(f"s_add_u32 s80, s36, {isv * (WS_VF - WS_KF) + g * 4096}")
            for i in range(4):
                a(f"buffer_load_dwordx4 v1, {S(SWS)}, s80 offen offset:{1024 * i} {nt('k')} lds")

    if "pes" in OPT:
        a(f"s_setprio {optval('pe', 0)}")
    a("s_waitcnt vmcnt(0)")
    emit_token_take(a, 186, VZ)
    emit_publish(a, FL_K, 220, VZ)
    ts.stamp(a, 2)
    lnp = a.newlabel("noprev")
    a("s_cmp_lt_u32 s38, 2")
    a(f"s_cbranch_scc1 {lnp}")
    emit_poll(a, 190, 2, 196, sleep=optval("ks", 1))
    ts.stamp(a, 3)
    prev_dma(0)
    prev_dma(1)
    a.label(lnp)
    a("s_setprio 0")
    BF = [16, 24, 32]
    AC2 = 40
    AF, PF = 72, optval('pf', 16)
    VPA, VOA = 191, 192
    a("v_and_b32 v8, 15, v0")
    a("v_lshrrev_b32 v9, 4, v0")
    a("v_lshrrev_b32 v10, 5, v0")
    a("v_lshrrev_b32 v11, 2, v8")
    a("v_lshl_add_u32 v11, v10, 2, v11")
    a("v_lshlrev_b32 v11, 7, v11")
    a("v_and_b32 v12, 1, v9")
    a("v_lshl_add_u32 v11, v12, 5, v11")
    a("v_and_b32 v12, 3, v8")
    a("v_lshl_add_u32 v11, v12, 3, v11")
    a("v_lshrrev_b32 v12, 3, v8")
    a("v_lshl_add_u32 v2, v12, 6, v11")
    a("v_xor_b32 v12, 1, v12")
    a("v_lshl_add_u32 v3, v12, 6, v11")
    a("v_add_u32 v4, 0x10000, v2")
    a("v_add_u32 v5, 0x10000, v3")
    a(f"v_add_u32 v6, {L_R0}, v2")
    a(f"v_add_u32 v7, {L_R0}, v3")
    a("v_mov_b32 v12, s86")
    a("v_bfe_u32 v13, v0, 1, 4")
    emit_wg_of(a, VPA, 12, 13, 15)
    a("v_and_b32 v12, 1, v0")
    a(f"v_lshl_add_u32 v{VPA}, v12, 4, v{VPA}")
    a("s_lshr_b32 s80, s32, 1")
    a("s_and_b32 s81, s32, 1")
    a("s_lshl_b32 s81, s81, 2")
    a("s_add_u32 s80, s80, s81")
    a("s_lshl_b32 s80, s80, 3")
    a(f"s_add_u32 s80, s80, 0x{WS_FL + FL_O * 32768:x}")
    a(f"v_add_u32 v{VPA}, s80, v{VPA}")
    a("s_lshl_b32 s82, s86, 2")
    a("s_add_u32 s82, s82, s32")
    a("v_and_b32 v8, 31, v0")
    a("s_lshl_b32 s80, s82, 5")
    a("v_add_u32 v8, s80, v8")
    a("v_lshlrev_b32 v8, 12, v8")
    a(f"v_lshl_add_u32 v{VOA}, v10, 4, v8")
    a("s_lshl_b32 s56, s42, 7")
    a("s_add_u32 s56, s56, 2048")
    a("s_lshl_b32 s82, s82, 16")
    a(f"s_add_u32 s82, s82, 0x{WS_OF:x}")
    for p in range(8):
        a(f"s_add_u32 s81, s43, {p}")
        a("s_and_b32 s81, s81, 7")
        a("s_lshl_b32 s81, s81, 13")
        a(f"s_add_u32 s{48 + p}, s82, s81")
    hk = {"blk": wo_early()}
    if optval("qk", 0):
        hk["blk"][optval("qk", 0)] = hk["blk"].get(optval("qk", 0), []) + [tlq]
    else:
        hk["mid"] = lambda: a(tlq)
    a("s_waitcnt vmcnt(0)")
    ts.stamp(a, 5)
    a("s_waitcnt lgkmcnt(0)")
    a("s_barrier")
    ts.stamp(a, 4)
    hk["blk"][7] = blk7_flag() + hk["blk"].get(7, [])
    if optval("wt", 0):
        hk["blk"][optval("wt", 0)] = hk["blk"].get(optval("wt", 0), []) + [f"buffer_load_dword v156, v198, {S(SWO)}, 0 offen"]
    hk["prio"] = prio_plan("M")
    emit_attention(a, ool, hk, MASKS_M, "M")
    ts.stamp(a, 6)
    wo_late(a, ts, 0, False)
    if optval('od', 0):
        a(f"s_sleep {optval('od', 0)}")
    poll_issue(a, VPA, 12)
    a("s_waitcnt vmcnt(1)")
    lds_flag_set(a, 32, 0, 16)
    ts.stamp(a, 8)
    emit_poll(a, VPA, 32, 12, pre=True, sleep=optval("os", 0))
    ts.stamp(a, 9)

    def aload(ks):
        out = []
        if ks % 8 == 4:
            out.append(f"s_add_u32 s{48 + (ks >> 3)}, s{48 + (ks >> 3)}, 4096")
        out.append(f"buffer_load_dwordx4 {vr(AF + 4 * (ks % PF), 4)}, v1, {S(SWS)}, s{48 + (ks >> 3)} offen offset:{(ks & 3) * 1024} {scl()}")
        return out

    def breads(ks, buf):
        f = BF[buf]
        o = WLOC[ks]
        base, o = (6, o - L_R0) if o >= L_R0 else (4, o - 65536) if o >= 65536 else (2, o)
        out = []
        for ct in range(2):
            out.append(f"ds_read_b64_tr_b16 {vr(f + 4 * ct, 2)}, v{base + ct} offset:{o}")
            out.append(f"ds_read_b64_tr_b16 {vr(f + 4 * ct + 2, 2)}, v{base + ct} offset:{o + 1024}")
        return out

    for ks in range(PF):
        for x in aload(ks):
            a(x)
    emit_lds_wait(a, VLF, 0, 16)
    emit_lds_wait(a, VLF, 16, 16)
    for x in breads(0, 0) + breads(1, 1):
        a(x)
    for ks in range(64):
        f = BF[ks % 3]
        issued = min(63, ks + PF - 1)
        a(f"s_waitcnt vmcnt({issued - ks}) lgkmcnt({4 if ks < 63 else 0})")
        af = vr(AF + 4 * (ks % PF), 4)
        nxt = breads(ks + 2, (ks + 2) % 3) if ks + 2 < 64 else []
        d0, d1 = vr(AC2, 16), vr(AC2 + 16, 16)
        a(f"v_mfma_f32_32x32x16_bf16 {d0}, {vr(f, 4)}, {af}, {'0' if ks == 0 else d0}")
        for x in nxt:
            a(x)
        a(f"v_mfma_f32_32x32x16_bf16 {d1}, {vr(f + 4, 4)}, {af}, {'0' if ks == 0 else d1}")
        if ks + PF < 64:
            for x in aload(ks + PF):
                a(x)
    ts.stamp(a, 28)
    a("s_nop 7")
    a("s_nop 7")
    for ct in range(2):
        b = AC2 + 16 * ct
        for j in range(8):
            a(f"v_cvt_pk_bf16_f32 v{b + j}, v{b + 2 * j}, v{b + 2 * j + 1}")
        a("s_nop 1")
        for jj in range(2):
            a(f"v_permlane32_swap_b32 v{b + 4 * jj}, v{b + 4 * jj + 2}")
            a(f"v_permlane32_swap_b32 v{b + 4 * jj + 1}, v{b + 4 * jj + 3}")
        for jj in range(2):
            a(f"buffer_store_dwordx4 {vr(b + 4 * jj, 4)}, v{VOA}, {S(SOUT)}, s56 offen offset:{ct * 64 + jj * 32}")
    ts.final(a, 10)
    a("s_endpgm")


def h_path(a, ts, ool):
    a(f"s_setprio {optval('hp', 3)}")
    XO, WO = 2, 6
    a("v_lshrrev_b32 v12, 3, v0")
    a("v_and_b32 v13, 7, v0")
    a("s_lshl_b32 s45, s33, 7")
    a("s_lshl_b32 s46, s44, 5")
    a("s_add_u32 s45, s45, s46")
    a("v_lshrrev_b32 v14, 4, v0")
    a("v_xor_b32 v14, v14, v13")
    a("v_add_u32 v15, s45, v12")
    a("v_lshlrev_b32 v15, 11, v15")
    a(f"v_lshl_add_u32 v{XO}, v14, 4, v15")
    a(f"v_xor_b32 v{XO + 1}, 64, v{XO}")
    a(f"v_add_u32 v{XO + 1}, {16384 - 1024}, v{XO + 1}")
    a(f"v_add_u32 v{XO + 2}, {2 * (16384 - 1024)}, v{XO}")
    a(f"v_add_u32 v{XO + 3}, {2 * (16384 - 1024)}, v{XO + 1}")
    a("s_lshl_b32 s45, s44, 12")
    a("s_mul_i32 s48, s44, 98304")
    a("s_lshl_b32 s46, s34, 7")
    a("s_add_u32 s48, s48, s46")
    for i in range(3):
        if i:
            a(f"v_add_u32 v14, {64 * i}, v0")
        src = "v14" if i else "v0"
        a(f"v_mul_u32_u24 v15, 2731, {src}")
        a("v_lshrrev_b32 v15, 16, v15")
        a("v_mul_u32_u24 v16, 24, v15")
        a(f"v_sub_u32 v16, {src}, v16")
        a("v_bfe_u32 v18, v15, 1, 1")
        a("v_lshlrev_b32 v18, 2, v18")
        a("v_xor_b32 v16, v16, v18")
        a("v_lshrrev_b32 v18, 3, v16")
        a("v_and_b32 v16, 7, v16")
        a("v_mul_u32_u24 v15, 6144, v15")
        a("v_lshl_add_u32 v15, v18, 11, v15")
        a("v_lshl_add_u32 v15, v16, 4, v15")
        for ii in (i, i + 3):
            il = ii if ii < 4 else ii - 4
            a(f"s_add_u32 s49, s48, {(8 * 6144 if ii >= 3 else 0) - 1024 * il}")
            a(f"v_add_u32 v{WO + ii}, s49, v15")
    a("s_mul_i32 s43, s44, 6144")
    a("s_add_u32 s43, s43, 16384")
    order = []

    RG = optval("rg", 8)

    def pace(t):
        if t >= 6 and optval("pc", 0):
            a(f"s_nop {optval('pc', 0) - 1}")
            if optval("pc2", 0):
                a(f"s_nop {optval('pc2', 0) - 1}")

    def tile_index(t):
        if "hot" in OPT:
            a(f"s_mov_b32 s42, {t & 1}")
            return
        if RG <= 1:
            a(f"s_mov_b32 s42, {t}")
            return
        if SG:
            a(f"s_bfe_u32 s42, s{54 + (t >> 3)}, 0x{0x40000 + 4 * (t & 7):x}")
            return
        if "f0" in OPT:
            if t == 0:
                a("s_mov_b32 s42, 15")
            elif t <= 8:
                a(f"s_add_u32 s42, s56, {t - 1}")
                a("s_and_b32 s42, s42, 7")
            else:
                a("s_and_b32 s42, s56, 7")
                a("s_min_u32 s42, s42, 6")
                a(f"s_add_u32 s42, s42, {t - 9}")
                a("s_cmp_ge_u32 s42, 7")
                a("s_cselect_b32 s49, 1, 8")
                a("s_add_u32 s42, s42, s49")
            return
        a(f"s_add_u32 s42, s56, {t}")
        a(f"s_and_b32 s42, s42, {RG - 1}")
        if t >= RG:
            a(f"s_add_u32 s42, s42, {t // RG * RG}")

    SG = optval("sg", 0)
    if SG:
        a("s_lshr_b32 s56, s35, 3")
        a("s_add_u32 s56, s56, s35")
        a("s_and_b32 s56, s56, 3")
        for c in range(4):
            seq = sorted(range(16), key=lambda x: (x - SG - 0.5) if (x & 3) == c else x)
            w = [sum(seq[8 * h + i] << (4 * i) for i in range(8)) for h in range(2)]
            if c == 0:
                a(f"s_mov_b32 s54, 0x{w[0]:x}")
                a(f"s_mov_b32 s55, 0x{w[1]:x}")
            else:
                a(f"s_cmp_eq_u32 s56, {c}")
                a(f"s_cselect_b32 s54, 0x{w[0]:x}, s54")
                a(f"s_cselect_b32 s55, 0x{w[1]:x}, s55")
    a("s_lshr_b32 s56, s35, 3")
    a(f"s_mul_i32 s56, s56, {optval('rb', 2)}")
    if optval("ra", 0):
        a(f"s_bfe_u32 s49, s35, 0x{((3 - optval('ra', 0)) << 16) + optval('ra', 0):x}")
        a("s_add_u32 s56, s56, s49")
    else:
        a("s_add_u32 s56, s56, s35")
    if optval("rx", 0):
        a(f"s_mul_i32 s49, s3, {optval('rx', 0)}")
        a("s_add_u32 s56, s56, s49")
    if optval("ry", 0):
        a("s_lshr_b32 s49, s3, 1")
        a(f"s_mul_i32 s49, s49, {optval('ry', 0)}")
        a("s_add_u32 s56, s56, s49")
    if RG == 16:
        a("s_lshl_b32 s56, s56, 1")

    def issue_x(t):
        if "nodma" in OPT and t >= 3:
            order.append(f"x{t}")
            return
        a(f"s_add_u32 m0, s45, {((t + 2) & 3) * 40960}")
        tile_index(t)
        a("s_lshl_b32 s42, s42, 7")
        for i in range(4):
            a(f"buffer_load_dwordx4 v{XO + i}, {S(SX)}, s42 offen offset:{1024 * i} {nt('x') if t % RG == RG - 1 else ''} lds")
            pace(t)
        order.append(f"X{t}")

    def issue_w(t):
        if "nodma" in OPT and t >= 3:
            order.append(f"x{t}")
            return
        st = (t + 2) & 3
        a(f"s_add_u32 m0, s43, {st * 40960}")
        tile_index(t)
        a("s_mul_i32 s42, s42, 393216")
        for i in range(4):
            a(f"buffer_load_dwordx4 v{WO + i}, {S(SW)}, s42 offen offset:{1024 * i} {nt('x') if t % RG == RG - 1 else ''} lds")
            pace(t)
        a(f"s_add_u32 m0, s43, {st * 40960 + 4096}")
        a("s_nop 0")
        for i in range(4, 6):
            a(f"buffer_load_dwordx4 v{WO + i}, {S(SW)}, s42 offen offset:{1024 * (i - 4)} {nt('x') if t % RG == RG - 1 else ''} lds")
        order.append(f"W{t}")

    def vm(x):
        a(x)
        if x.startswith("buffer"):
            order.append("P")

    def cnt(lst):
        return sum({"X": 4, "W": 6, "P": 1, "L": 0, "U": 0, "x": 0, "R": 1, "E": 0}[x[0]] for x in lst)

    def wait_tile(b):
        if "nodma" in OPT and b >= 3:
            return
        last = max(i for i, x in enumerate(order) if x in (f"X{b}", f"W{b}"))
        assert f"X{b}" in order and f"W{b}" in order
        n = cnt(order[last + 1:])
        assert n < 64
        a(f"s_waitcnt vmcnt({n})")

    def later():
        a("s_lshl_b32 s87, s84, 2")
        a("s_add_u32 s87, s87, s44")
        a("s_lshl_b32 s87, s87, 12")
        a(f"s_buffer_load_dword s57, {S(SHK)}, s87")
        a(f"s_mul_i32 s88, s44, {CW}")
        a(f"s_add_u32 s88, s88, {L_R0}")
        a("s_lshl_b32 s80, s35, 2")
        a("s_add_u32 s80, s80, s44")
        a("s_lshl_b32 s80, s80, 6")
        a("v_add_u32 v20, s80, v0")
        a("v_lshrrev_b32 v241, 3, v20")
        a("v_lshlrev_b32 v241, 11, v241")
        a("v_and_b32 v20, 7, v20")
        a("v_lshl_add_u32 v241, v20, 7, v241")
        a("s_lshr_b32 s80, s3, 2")
        a("s_lshl_b32 s80, s80, 10")
        a("v_add_u32 v241, s80, v241")
        a("s_lshl_b32 s80, s35, 6")
        a("s_lshl_b32 s81, s44, 4")
        a("s_add_u32 s80, s80, s81")
        a("v_lshrrev_b32 v20, 1, v0")
        a("v_add_u32 v20, s80, v20")
        a("v_lshlrev_b32 v20, 11, v20")
        a("v_and_b32 v21, 1, v0")
        a("v_lshl_add_u32 v20, v21, 7, v20")
        a("s_lshl_b32 s80, s3, 8")
        a("v_add_u32 v20, s80, v20")
        a("v_lshlrev_b32 v21, 7, v0")
        a("v_cmp_gt_u32 vcc, 32, v0")
        a("s_nop 1")
        a("v_cndmask_b32 v242, v240, v20, vcc")
        a("v_cndmask_b32 v243, v240, v21, vcc")
        a("v_lshrrev_b32 v20, 3, v0")
        a("v_and_b32 v21, 7, v0")
        a("s_lshl_b32 s80, s35, 6")
        a("s_lshl_b32 s81, s3, 2")
        a("s_add_u32 s81, s81, s44")
        a("s_lshl_b32 s81, s81, 5")
        a("v_lshlrev_b32 v22, 3, v20")
        a("v_add_u32 v22, s80, v22")
        a("v_lshlrev_b32 v23, 2, v21")
        a("v_add_u32 v23, s81, v23")
        a(f"v_lshlrev_b32 v{PA}, 12, v23")
        a(f"v_lshl_add_u32 v{PA}, v22, 1, v{PA}")
        a(f"v_lshlrev_b32 v{PA + 1}, 11, v22")
        a(f"v_lshl_add_u32 v{PA + 1}, v23, 1, v{PA + 1}")
        a(f"v_lshlrev_b32 v{PA + 2}, 12, v22")
        a(f"v_lshl_add_u32 v{PA + 2}, v23, 1, v{PA + 2}")
        a("v_bfe_u32 v20, v0, 2, 3")
        a("s_lshl_b32 s80, s44, 3")
        a("v_add_u32 v20, s80, v20")
        a("v_lshlrev_b32 v20, 3, v20")
        a("v_add_u32 v20, s3, v20")
        a("v_lshlrev_b32 v20, 7, v20")
        a("v_and_b32 v21, 3, v0")
        a("v_lshl_add_u32 v20, v21, 3, v20")
        a(f"v_add_u32 v{PA + 3}, 0x{WS_FL + FL_Y2 * 32768 + 32:x}, v20")
        a("s_and_b32 s40, s44, 1")
        a("s_lshr_b32 s41, s44, 1")
        a("s_waitcnt lgkmcnt(0)")
        a("s_lshl_b32 s80, s44, 4")
        a("s_lshr_b64 s[38:39], s[76:77], s80")
        a("s_lshl_b32 s39, s38, 16")
        a("s_lshl_b32 s57, s57, 16")
        a("s_lshl_b32 s40, s40, 1")
        a("s_add_u32 s40, s40, 1")
        a("v_and_b32 v192, 31, v0")
        a("v_lshlrev_b32 v192, 3, v192")
        a("v_add_u32 v192, s3, v192")
        a("v_lshlrev_b32 v192, 7, v192")
        a("s_lshr_b32 s80, s35, 3")
        a("s_lshl_b32 s80, s80, 3")
        a(f"s_add_u32 s80, s80, 0x{WS_FL + FL_UR * 32768 + 32:x}")
        a("v_add_u32 v192, s80, v192")
        a("s_lshl_b32 s80, s44, 11")
        a(f"s_add_u32 s80, s80, {L_QH}")
        a("v_add_u32 v193, s80, v1")
        a("v_lshlrev_b32 v180, 3, v0")
        a("v_add_u32 v180, s88, v180")
        a("v_and_b32 v181, 1, v0")
        a(f"v_mul_u32_u24 v181, {CPY}, v181")
        a("v_bfe_u32 v182, v0, 1, 1")
        a("v_lshl_add_u32 v181, v182, 4, v181")
        a("v_add_u32 v181, s88, v181")
        a("v_mov_b32 v182, s88")
        a("v_mov_b32 v183, s57")
        for i in range(4):
            a(f"v_mov_b32 v{184 + i}, 0")

    p_setup, p_loads, p_comp, p_stores = p1_lists()
    if "nop1" in OPT:
        p_loads, p_comp, p_stores = p_loads[:1], [], []

    main_a = a
    a = Asm()
    for y in p_setup:
        a(y)
    later()
    setup2 = [x.strip() for x in a.L]
    a = main_a

    gl = list(range(32))

    def act(x):
        k, arg = x[0], x[1:]
        if k == "X":
            issue_x(int(arg))
        elif k == "W":
            issue_w(int(arg))
        elif k == "T":
            issue_x(int(arg)); issue_w(int(arg))
        elif k == "F":
            t0, n = map(int, arg.split("_"))
            emit_touch_fine(a, 234, 235, 228, t0)
            for y in touch(t0, n, 234, 235, 246):
                vm(y)
        elif k == "C":
            t = int(arg)
            a(f"s_cmp_eq_u32 s58, {t & 3}")
            a("s_cselect_b64 vcc, -1, 0")
            a(f"s_mov_b32 s82, {t * 128}")
            a(f"s_mov_b32 s83, {t * 393216}")
            a("v_cndmask_b32 v238, v240, v245, vcc")
            a("v_cndmask_b32 v239, v240, v244, vcc")
            vm(f"buffer_load_dword v246, v238, {S(SW)}, s83 offen")
            vm(f"buffer_load_dword v247, v239, {S(SX)}, s82 offen")
        elif k == "K":
            r = 242
            if arg:
                a(f"s_cmp_eq_u32 s58, {arg}")
                a("s_cselect_b64 vcc, -1, 0")
                a("s_nop 0")
                a("v_cndmask_b32 v237, v240, v242, vcc"); r = 237
            vm(f"buffer_load_dword v248, v{r}, {S(SK)}, 0 offen")
            vm(f"buffer_load_dword v249, v{r}, {S(SV)}, 0 offen")
        elif k == "P":
            for _ in range(int(arg)):
                if p_loads:
                    vm(p_loads.pop(0))
            if not p_loads:
                order.append("L")
        elif k == "V":
            if "L" in order:
                a(f"s_waitcnt vmcnt({cnt(order[order.index('L') + 1:])})")
                order.remove("L")
            for _ in range(int(arg)):
                if p_comp:
                    a(p_comp.pop(0))
        elif k == "S":
            assert not p_comp and not p_loads
            for y in p_stores:
                vm(y)
            order.append("U")
        elif k == "U":
            a(f"s_waitcnt vmcnt({cnt(order[order.index('U') + 1:])})")
            emit_token_take(a, 172, VZ)
            emit_publish(a, FL_UR, 194, VZ)
            order.append("P")
        elif k == "A":
            emit_attn_setup(a, MASKS_H)
        elif k == "R":
            poll_issue(a, 192, 198)
            order.append("R")
        elif k == "Q":
            vm(f"buffer_load_dword v246, v242, {S(SQ)}, 0 offen")
        elif k == "G":
            vm(f"buffer_load_dword v246, v243, {S(SHK)}, s87 offen")
        elif k == "O":
            vm(f"buffer_load_dword v247, v241, {S(SWO)}, 0 offen")
        elif k == "t":
            vm(f"buffer_load_dwordx2 v[172:173], v{VZ}, {S(SDBG)}, 0 offen{SC}")
        elif k == "b":
            late_setup(a, ts)
            if ts.on:
                order.append("P")
            a("v_mov_b32 v240, 0x80000000")
            a("s_and_b32 s58, s35, 3")
        elif k == "c":
            for _ in range(int(arg)):
                if setup2:
                    a(setup2.pop(0))
        elif k == "H":
            a(f"ds_write_b64 v180, v[184:185] offset:{URO + 4096}")
            a("ds_write_b128 v181, v[184:187]")
            a(f"ds_write_b32 v182, v183 offset:{CPY + 28}")
            for c in range(2):
                a(f"s_add_u32 m0, s88, {32 + c * CPY}")
                a(f"s_add_u32 s80, s87, {2 * c}")
                for kk in range(4):
                    vm(f"buffer_load_dwordx4 v1, {S(SHK)}, s80 offen offset:{1024 * kk} {nt('h') if c else ''} lds")
        elif k in "DE":
            ls = a.newlabel("urskip")
            if k == "E":
                a(f"s_waitcnt vmcnt({cnt(order[order.index('R') + 1:])})")
                a("v_cmp_eq_u64 vcc, s[78:79], v[198:199]")
                a("s_mov_b32 s38, 0")
                a("s_nop 0")
                a("s_cmp_eq_u32 vcc_lo, -1")
                a(f"s_cbranch_scc0 {ls}")
                a("s_mov_b32 s38, 1")
                order.append("E")
            else:
                if "E" in order:
                    a("s_cmp_eq_u32 s38, 1")
                    a(f"s_cbranch_scc1 {ls}")
                emit_poll(a, 192, 32, 198, pre=True)
                ts.stamp(a, 2)
            a(f"s_add_u32 m0, s88, {URO}")
            a(f"s_add_u32 s80, s87, 0x{WS_UR:x}")
            for kk in range(4):
                a(f"buffer_load_dwordx4 v1, {S(SWS)}, s80 offen offset:{1024 * kk} {nt('u')} lds")
            a.label(ls)
        else:
            raise ValueError(x)

    sc = os.environ.get("SCHED") or SCHEDS[optval("sc", 0)]
    sched = sc.split("|")
    assert len(sched) == 18, len(sched)
    a("s_waitcnt lgkmcnt(0)")
    for x in sched[0].split():
        act(x)
    for b in range(0, 17):
        if b < 16:
            wait_tile(b)
        a("s_barrier")
        if "tsb" in OPT:
            ts.stamp(a, 11 + b)
        for x in sched[b + 1].split():
            if x[0] in "XWT":
                assert int(x[1:]) <= b + 3
            act(x)
    ts.stamp(a, 1)
    assert not setup2
    a("s_mov_b32 s46, s88")
    a(f"s_add_u32 s36, s87, 0x{wsy2():x}")

    def c_start():
        if optval("pv", -1) >= 0:
            a(f"s_setprio {optval('pv', 0)}")
        a("s_waitcnt vmcnt(0)")
        ts.stamp(a, 3)

    b = Asm()
    emit_attn_setup(b, MASKS_H)
    g2_tile(b)
    wo_addr(b)
    ys = emit_conv(a, {"start": c_start, "extra": [x.strip() for x in b.L]})
    ts.stamp(a, 5)
    a("s_setprio 0")
    a("s_barrier")
    ts.stamp(a, 4)
    a(f"ds_read_b128 {vr(QC, 4)}, v193")
    a(f"ds_read_b128 {vr(QC + 4, 4)}, v193 offset:1024")
    for x in ys:
        a(x)
    YY, OO = 168, 24
    if optval("ph", 0):
        a(f"s_setprio {optval('ph', 0)}")
    blk = wo_early()
    b = Asm()
    b("s_waitcnt vmcnt(0)")
    emit_publish(b, FL_Y2, 194, VZ)
    yb = optval("yb", 2)
    blk[yb] = [x.strip() for x in b.L] + blk.get(yb, [])
    hk = {"blk": blk}
    blk[7] = blk7_flag() + blk.get(7, [])
    hk["prio"] = prio_plan("H")
    YE = optval("ye", 0)
    b = Asm()
    for i in range(8):
        if i % 2 == 0:
            b(f"s_mov_b32 s80, {4096 * (i >> 1)}")
        b(f"buffer_load_dwordx2 {vr(QQ + 2 * i, 2)}, v{PA + 1}, {S(SQ)}, s80 offen offset:{(i & 1) * 2048}")
    ql = [x.strip() for x in b.L]
    b = Asm()
    poll_issue(b, PA + 3, 196)
    pl = [x.strip() for x in b.L]
    if YE:
        blk[optval("qe", YE)] = blk.get(optval("qe", YE), []) + ql
        blk[YE] = blk.get(YE, []) + pl
    emit_attention(a, ool, hk, MASKS_H, "H")
    ts.stamp(a, 6)
    if not YE:
        for x in ql + pl:
            a(x)

    def y_issue(va):
        a(f"s_mov_b32 s80, 0x{wsy2():x}")
        for dd in range(4):
            a(f"buffer_load_dwordx4 {vr(YY + 4 * dd, 4)}, v{va}, {S(SWS)}, s80 offen {scl()}")
            if dd < 3:
                a("s_add_u32 s80, s80, 4096")

    def y_loads():
        emit_poll(a, PA + 3, 32, 196, pre=True)
        y_issue(PA)

    p3 = Asm()
    a, main_a = p3, a
    for i in range(8):
        for dd in range(4):
            ys = YY + 4 * dd + (i >> 1)
            qs = QQ + 2 * i + (dd >> 1)
            a(f"v_and_b32 v4, 0xffff0000, v{ys}" if i & 1 else f"v_lshlrev_b32 v4, 16, v{ys}")
            a(f"v_and_b32 v5, 0xffff0000, v{qs}" if dd & 1 else f"v_lshlrev_b32 v5, 16, v{qs}")
            a(f"v_mul_f32 v{OO + 4 * i + dd}, v4, v5")
        o = OO + 4 * i
        a(f"v_cvt_pk_bf16_f32 v{o}, v{o}, v{o + 1}")
        a(f"v_cvt_pk_bf16_f32 v{o + 1}, v{o + 2}, v{o + 3}")
    a = main_a
    outs = []
    for i in range(8):
        outs += [f"s_mov_b32 s80, {4096 * i}", f"buffer_store_dwordx2 {vr(OO + 4 * i, 2)}, v{PA + 2}, {S(SOUT)}, s80 offen"]

    def gate():
        for x in p3.L:
            a(x.strip())

    if YE:
        ll, lr = a.newlabel("ylate"), a.newlabel("yback")
        a("s_waitcnt vmcnt(2)")
        a("v_cmp_eq_u64 vcc, s[78:79], v[196:197]")
        a("v_mov_b32 v4, 0x80000000")
        a("s_nop 0")
        a("s_cmp_eq_u32 vcc_lo, -1")
        a("s_cselect_b32 s38, 1, 0")
        a("s_cselect_b64 vcc, -1, 0")
        a("s_nop 0")
        a(f"v_cndmask_b32 v4, v4, v{PA}, vcc")
        y_issue(4)
        wo_late(a, ts, 4, True)
        a("s_cmp_eq_u32 s38, 0")
        a(f"s_cbranch_scc1 {ll}")
        a(f"s_waitcnt vmcnt({NLATE + (1 if optval('es', 0) == 1 else 0)})")
        a.label(lr)
        main_a, sub = a, Asm()
        sub.uid = main_a.uid + 1000
        a = sub
        a("s_waitcnt vmcnt(0)")
        lds_flag_set(a, 32, 0, 4)
        for x in pl:
            a(x)
        y_loads()
        a("s_waitcnt vmcnt(0)")
        main_a.uid = sub.uid
        a = main_a
        ool.append((ll, [x.strip() for x in sub.L], lr))
        gate()
        a("s_waitcnt vmcnt(0)")
        lds_flag_set(a, 32, 0, 4)
        ts.stamp(a, 8)
        for x in outs:
            a(x)
    else:
        raise ValueError("ye required")
    ts.final(a, 10)
    a("s_endpgm")


def gen_fused(a, ts):
    name = NAME + "_kernel"
    kernel_begin(a, name)
    ts.entry(a)
    a("s_cmp_ge_u32 s2, 256")
    a("s_cbranch_scc1 L_end")
    if optval("xj", 0):
        a(f"s_xor_b32 s2, s2, {optval('xj', 0)}")
    for (d, off, size) in SRDS:
        a(f"s_load_dwordx2 s[{d}:{d + 1}], s[0:1], {off}")
    a("s_load_dwordx2 s[36:37], s[0:1], 40")
    a("v_lshrrev_b32 v1, 6, v0")
    a("v_and_b32 v0, 63, v0")
    a("s_and_b32 s3, s2, 7")
    a("v_readfirstlane_b32 s32, v1")
    a("s_lshr_b32 s35, s2, 3")
    a("s_and_b32 s33, s3, 1")
    a("s_lshl_b32 s33, s33, 3")
    a("s_and_b32 s80, s35, 7")
    a("s_add_u32 s33, s33, s80")
    a("s_lshr_b32 s34, s3, 1")
    a("s_lshl_b32 s34, s34, 2")
    a("s_lshr_b32 s80, s35, 3")
    a("s_add_u32 s34, s34, s80")
    if optval("hx", 0):
        a(f"s_xor_b32 s34, s34, {optval('hx', 0)}")
    a("v_lshlrev_b32 v1, 4, v0")
    a(f"v_mov_b32 v{VZ}, 0")
    for (d, off, size) in SRDS[:2]:
        a(f"s_mov_b32 s{d + 2}, 0x{size:x}")
        a(f"s_mov_b32 s{d + 3}, 0x20000")
    a("s_and_b32 s44, s32, 3")
    a("s_mov_b32 s59, 0")
    a("s_cmp_lt_u32 s32, 4")
    a("s_cbranch_scc1 L_M")
    ool = []
    h_path(a, ts, ool)
    a.label("L_M")
    m_path(a, ts, ool)
    for (lf, body, lb) in ool:
        a.label(lf)
        for x in body:
            a(x)
        a(f"s_branch {lb}")
    a.label("L_end")
    a("s_endpgm")
    emit_exact(a)
    return name, 256, 102


def build(instrument=False):
    if "best" in OPT:
        have = {o.rstrip("0123456789") for o in OPT}
        OPT.update(o for o in BEST.split(",") if o.rstrip("0123456789") not in have and "no" + o not in OPT)
    ts = TS(instrument)
    a = Asm()
    a.raw("; fused H3 long-conv | sliding-window attention kernel (generated)")
    a.raw("; @launch grid=(256,1,1) block=(512,1,1) lds=163840")
    a.raw('.amdgcn_target "amdgcn-amd-amdhsa--gfx950"')
    a.raw(".text")
    n, v, s = gen_fused(a, ts)
    a.raw('.section .rodata,"a"')
    kernel_desc(a, n, v, s)
    return a.text()


if __name__ == "__main__":
    out = sys.argv[1] if len(sys.argv) > 1 else f"cdna_kernels/{NAME}.s"
    if len(sys.argv) > 2:
        OPT.update(sys.argv[2].split(","))
    open(out, "w").write(build())
```

```python
import sys, struct, os, re
from gen import Asm, vr, srd, kernel_begin, kernel_desc, MB, NAME
from gf import f32hex
import gf

OPT = set()
WS_KF, WS_VF, WS_UR, WS_OF, WS_Y2, WS_FL = 4 * MB, 8 * MB, 12 * MB, 16 * MB, 20 * MB, 24 * MB
WS_SIZE = 25 * MB
FL_UR, FL_K, FL_Y2, FL_O, FL_V = 0, 1, 2, 3, 4

CPY, URO, CW = 4160, 8320, 12928
L_HD, L_V = 49152, 24576
L_QH = 98304
L_R0 = 106496
L_FL = L_R0 + 4 * CW
SC = " sc1"
SPIN_LIMIT = 1 << 18
SCALE_LOG2E = (32 ** -0.5) * 1.4426950408889634
SX, SW, SWS, SK, SV, SSH, SHK, SWO, SQ, SOUT, SDBG = 4, 8, 12, 16, 20, 24, 28, 60, 64, 68, 72
MASKS_H = [4, 6, 8, 10, 16, 18, 20, 22, 24, 26, 48, 50, 52, 54, 56, 58]
MASKS_M = [4, 6, 16, 18, 20, 22, 24, 26, 28, 30, 58, 76, 92, 94, 96, 98]


WS_TS = 32 * MB


class TS:
    def __init__(self, on):
        self.enabled = on
        self.on = False

    def entry(self, a):
        if self.enabled:
            a("s_memrealtime s[98:99]")
            a("s_memtime s[100:101]")
            a("v_mov_b32 v254, 0")

    def setup(self, a, ws_pair):
        if self.enabled:
            a("v_writelane_b32 v254, s98, 30")

    def stamp(self, a, slot):
        if self.enabled and ("tsmin" not in OPT or slot == 10):
            a("s_memrealtime s[90:91]")
            a("s_waitcnt lgkmcnt(0)")
            a(f"v_writelane_b32 v254, s90, {slot}")
            if "cya" in OPT and slot < 11:
                a("s_memtime s[90:91]")
                a("s_waitcnt lgkmcnt(0)")
                a(f"v_writelane_b32 v254, s90, {slot + 12}")

    def final(self, a, slot):
        if not self.enabled:
            return
        a("s_waitcnt vmcnt(0)")
        self.stamp(a, slot)
        a("s_memtime s[90:91]")
        srd(a, 92, SWS, 4 * MB, WS_TS)
        a("s_lshl_b32 s96, s2, 4")
        a("s_add_u32 s96, s96, s32")
        a("s_lshl_b32 s96, s96, 8")
        a("s_waitcnt lgkmcnt(0)")
        a("s_sub_u32 s90, s90, s100")
        a("v_writelane_b32 v254, s90, 31")
        a("v_mov_b32 v255, 0")
        a("v_lshlrev_b32 v253, 3, v0")
        a("s_mov_b32 exec_hi, 0")
        a("buffer_store_dwordx2 v[254:255], v253, s[92:95], s96 offen")


def emit_wg_of(a, vdst, vrb, vhp, t):
    if optval("hx", 0):
        a(f"v_xor_b32 v{vhp}, {optval('hx', 0)}, v{vhp}")
    gf.emit_wg_of(a, vdst, vrb, vhp, t)


def S(n):
    return f"s[{n}:{n + 3}]"


SCHEDS = {
    0: "X0 a W0 X1 b c30 W1 | X2 P7 W2 c30 | T3 P7 X4 | W4 T5 P7 c40 | T6 c40 G | T7 c45 t | T8 V90 | T9 V90 | T10 V90 S | T11"
       " | T12 U | T13 | T14 | T15 O | R | H | E | D",
}
BEST = "we3,yb3,cp,cq50,rg4,ry1,ya,ft30,sw14_2,ye7,prM322110000,prH333221101,pe3,pv1,od8,fs,ms233"


def skipped():
    return {int(c, 16) for o in OPT if o.startswith("sk") for c in o[2:]}


def slot(t):
    return (3, 2, 0, 1)[t & 3]


def wsy2():
    return WS_UR if "ya" in OPT else WS_Y2


def nt(k):
    return "nt" if "nt" + k in OPT else ""


def scl():
    return "sc1" if "ldsc1" in OPT else ""


def optval(prefix, default):
    for o in OPT:
        if o.startswith(prefix) and o[len(prefix):].lstrip("-").isdigit():
            return int(o[len(prefix):])
    return default


def poll_issue(a, voff, tmp):
    a(f"buffer_load_dwordx2 {vr(tmp, 2)}, v{voff}, {S(SWS)}, 0 offen{SC}")


def emit_poll(a, voff, nlanes, tmp, pre=False, sleep=0):
    lp, ck, dn = a.newlabel("poll"), a.newlabel("pollc"), a.newlabel("polld")
    mask = (1 << nlanes) - 1
    a(f"s_mov_b32 s80, 0x{mask & 0xffffffff:x}")
    a(f"s_mov_b32 s81, 0x{mask >> 32:x}")
    a("s_mov_b32 s85, 0")
    if not pre:
        a.label(lp)
        poll_issue(a, voff, tmp)
        a("s_waitcnt vmcnt(0)")
        a(f"v_cmp_eq_u64 vcc, s[78:79], {vr(tmp, 2)}")
        a("s_add_u32 s85, s85, 1")
        a("s_and_b64 s[82:83], vcc, s[80:81]")
        a("s_cmp_eq_u64 s[82:83], s[80:81]")
        a(f"s_cbranch_scc1 {dn}")
        if sleep:
            a(f"s_sleep {sleep}")
        a(f"s_cmp_lt_u32 s85, 0x{SPIN_LIMIT:x}")
        a(f"s_cbranch_scc1 {lp}")
        a.label(dn)
    else:
        a.label(ck)
        a("s_waitcnt vmcnt(0)")
        a(f"v_cmp_eq_u64 vcc, s[78:79], {vr(tmp, 2)}")
        a("s_add_u32 s85, s85, 1")
        a("s_and_b64 s[82:83], vcc, s[80:81]")
        a("s_cmp_eq_u64 s[82:83], s[80:81]")
        a(f"s_cbranch_scc1 {dn}")
        if sleep:
            a(f"s_sleep {sleep}")
        poll_issue(a, voff, tmp)
        a(f"s_cmp_lt_u32 s85, 0x{SPIN_LIMIT:x}")
        a(f"s_cbranch_scc1 {ck}")
        a("s_waitcnt vmcnt(0)")
        a.label(dn)


def emit_publish(a, kind, t0, vz, smode=None, lo=78):
    a(f"s_add_u32 s80, s89, 0x{WS_FL + kind * 32768:x}")
    a(f"v_mov_b32 v{t0}, s{lo}")
    a(f"v_mov_b32 v{t0 + 1}, s79")
    if smode is None:
        a("s_mov_b64 exec, 1")
    else:
        a("s_mov_b32 exec_hi, 0")
        a(f"s_mov_b32 exec_lo, s{smode}")
        a(f"buffer_store_dwordx2 {vr(t0, 2)}, v{vz}, {S(SWS)}, s80 offen")
        a(f"s_xor_b32 exec_lo, s{smode}, 1")
    a(f"buffer_store_dwordx2 {vr(t0, 2)}, v{vz}, {S(SWS)}, s80 offen{SC}")
    a("s_mov_b64 exec, -1")


def emit_token_take(a, t0, vz):
    lp, dn = a.newlabel("tok"), a.newlabel("tokd")
    a("s_mov_b32 s85, 0")
    a.label(lp)
    a(f"v_readfirstlane_b32 s78, v{t0}")
    a(f"v_readfirstlane_b32 s79, v{t0 + 1}")
    a("s_add_u32 s85, s85, 1")
    a("s_cmp_lg_u64 s[78:79], 0")
    a(f"s_cbranch_scc1 {dn}")
    a(f"buffer_load_dwordx2 {vr(t0, 2)}, v{vz}, {S(SDBG)}, 0 offen{SC}")
    a("s_waitcnt vmcnt(0)")
    a(f"s_cmp_lt_u32 s85, 0x{SPIN_LIMIT:x}")
    a(f"s_cbranch_scc1 {lp}")
    a.label(dn)


def emit_wline(a, dst, idx, hi, t):
    a(f"v_mul_u32_u24 v{dst}, 5462, v{idx}")
    a(f"v_lshrrev_b32 v{dst}, 16, v{dst}")
    a(f"v_mul_u32_u24 v{t}, 12, v{dst}")
    a(f"v_sub_u32 v{t}, v{idx}, v{t}")
    if hi is not None:
        a(f"v_lshl_add_u32 v{dst}, v{hi}, 6, v{dst}")
    a(f"v_mul_u32_u24 v{dst}, 6144, v{dst}")
    a(f"v_lshrrev_b32 v{t + 1}, 2, v{t}")
    a(f"v_lshl_add_u32 v{dst}, v{t + 1}, 11, v{dst}")
    a(f"v_and_b32 v{t}, 3, v{t}")
    a(f"v_lshl_add_u32 v{dst}, v{t}, 7, v{dst}")
    a("s_lshr_b32 s83, s3, 1")
    a("s_lshl_b32 s83, s83, 9")
    a(f"v_add_u32 v{dst}, s83, v{dst}")


def emit_touch_fine(a, VTX, VTW, t, t0):
    a(f"v_and_b32 v{t}, 7, v0")
    a(f"v_lshrrev_b32 v{t + 1}, 3, v0")
    a(f"s_add_u32 s82, s59, {t0}")
    a(f"v_add_u32 v{t + 1}, s82, v{t + 1}")
    a(f"v_and_b32 v{t + 1}, 15, v{t + 1}")
    a("s_lshl_b32 s82, s35, 2")
    a("s_add_u32 s82, s82, s44")
    a("s_lshl_b32 s81, s82, 3")
    a("s_and_b32 s83, s3, 1")
    a("s_lshl_b32 s83, s83, 10")
    a("s_add_u32 s81, s81, s83")
    a(f"v_add_u32 v{t + 2}, s81, v{t}")
    a(f"v_lshlrev_b32 v{t + 2}, 11, v{t + 2}")
    a(f"v_lshl_add_u32 v{VTX}, v{t + 1}, 7, v{t + 2}")
    a("s_mul_i32 s82, s82, 6")
    a(f"v_add_u32 v{t + 2}, s82, v{t}")
    emit_wline(a, VTW, t + 2, t + 1, t + 3)
    a(f"v_mov_b32 v{t + 4}, 0x80000000")
    a(f"v_cmp_gt_u32 vcc, 6, v{t}")
    a("s_nop 1")
    a(f"v_cndmask_b32 v{VTW}, v{t + 4}, v{VTW}, vcc")


def emit_touch_coarse(a, VTX, VTW, t):
    a("s_lshr_b32 s82, s35, 2")
    a("s_lshl_b32 s82, s82, 2")
    a("s_add_u32 s82, s82, s44")
    a("s_lshl_b32 s81, s82, 5")
    a("s_and_b32 s83, s3, 1")
    a("s_lshl_b32 s83, s83, 10")
    a("s_add_u32 s81, s81, s83")
    a(f"v_add_u32 v{t + 2}, s81, v0")
    a(f"v_lshlrev_b32 v{VTX}, 11, v{t + 2}")
    a("s_mul_i32 s82, s82, 24")
    a(f"v_add_u32 v{t + 2}, s82, v0")
    emit_wline(a, VTW, t + 2, None, t + 3)
    a(f"v_mov_b32 v{t + 4}, 0x80000000")
    a("v_cmp_gt_u32 vcc, 32, v0")
    a("s_nop 1")
    a(f"v_cndmask_b32 v{VTX}, v{t + 4}, v{VTX}, vcc")
    a("v_cmp_gt_u32 vcc, 24, v0")
    a("s_nop 1")
    a(f"v_cndmask_b32 v{VTW}, v{t + 4}, v{VTW}, vcc")


def touch(t0, nt, VTX, VTW, dst):
    m = (1 << (8 * nt)) - 1
    out = []
    if nt < 8:
        out += [f"s_mov_b32 exec_lo, 0x{m & 0xffffffff:x}", f"s_mov_b32 exec_hi, 0x{m >> 32:x}"]
    out += [f"buffer_load_dword v{dst}, v{VTW}, {S(SW)}, 0 offen",
            f"buffer_load_dword v{dst + 1}, v{VTX}, {S(SX)}, 0 offen"]
    if nt < 8:
        out.append("s_mov_b64 exec, -1")
    return out


QC = 224
SBUF = [8, 24, 40]
KB = [56, 64, 72]
VB = [80, 88, 160]
OA = 96
CM = 200
LS = 128
ONE = 240
PM = 232
P0 = 144
VM, VM2, VT, VNEG, VK, VK0 = 152, 153, 154, 244, 245, 246
YP = 176
QQ, PA = 112, 216


def emit_attn_setup(a0, MASKS, t=4):
    a = lambda x: a0(re.sub(r"\bv([456])\b", lambda m: f"v{int(m.group(1)) - 4 + t}", x))
    a("v_and_b32 v4, 31, v0")
    a("v_lshrrev_b32 v5, 5, v0")
    a("v_lshlrev_b32 v5, 2, v5")
    a("v_sub_u32 v4, v4, v5")
    for r in range(16):
        a(f"v_cmp_le_i32 s[{MASKS[r]}:{MASKS[r] + 1}], {8 * (r >> 2) + (r & 3)}, v4")
    a(f"v_mov_b32 v{VNEG}, 0xf149f2ca")
    a("v_mov_b32 v4, 0xffff")
    a("v_mov_b32 v5, 0xffff0000")
    for j in range(8):
        a(f"v_cndmask_b32 v{PM + j}, 0, v4, s[{MASKS[2 * j]}:{MASKS[2 * j] + 1}]")
        a(f"v_cndmask_b32 v6, 0, v5, s[{MASKS[2 * j + 1]}:{MASKS[2 * j + 1] + 1}]")
        a(f"v_or_b32 v{PM + j}, v{PM + j}, v6")
    a("v_lshrrev_b32 v4, 4, v0")
    a("v_lshrrev_b32 v5, 2, v0")
    a("v_xor_b32 v4, v4, v5")
    a("v_and_b32 v4, 1, v4")
    a("v_cmp_eq_u32 vcc, 0, v4")
    a("v_mov_b32 v5, 0x3f803f80")
    for i in range(4):
        a(f"v_cndmask_b32 v{ONE + i}, 0, v5, vcc")
    a(f"s_mul_i32 s42, s41, {L_HD}")
    a("s_lshl_b32 s43, s40, 11")
    a("s_add_u32 s42, s42, s43")
    a(f"v_add_u32 v{VK}, s42, v1")
    a("s_lshl_b32 s45, s33, 2")
    a("s_add_u32 s45, s45, s40")
    a("s_sub_u32 s46, 8, s45")
    a("s_cmp_lt_u32 s45, 8")
    a("s_cselect_b32 s46, s46, 0")
    a("s_cselect_b32 s43, 0x4000, 0")
    a(f"v_add_u32 v{VK0}, s43, v{VK}")
    a("s_lshl_b32 s47, s45, 5")
    a("s_lshl_b32 s42, s34, 1")
    a("s_add_u32 s47, s47, s42")
    a("s_add_u32 s47, s47, s41")
    a("s_lshl_b32 s47, s47, 11")
    a(f"s_add_u32 s47, s47, 0x{WS_OF:x}")


def prio_plan(role):
    for o in OPT:
        if o.startswith("pr" + role):
            d = o[3:]
            out, last = {}, None
            for k, c in zip([0, 2, 3, 4, 5, 6, 7, 8, 9], d):
                if c != last or k == 9:
                    out[k] = int(c)
                last = c
            return out
    return {}


def emit_attention(a, ool, hooks, MASKS, role):
    order = [8, 0, 7, 6, 5, 4, 3, 2, 1]

    def hook(k):
        if k in hooks:
            hooks[k]()

    def kread(i):
        rel, b = order[i % 9], KB[i % 3]
        return [f"ds_read_b128 {vr(b, 4)}, v{VK} offset:{rel * 2048}",
                f"ds_read_b128 {vr(b + 4, 4)}, v{VK} offset:{rel * 2048 + 1024}"]

    def vread(i):
        rel, b = order[i], VB[i % 3]
        ad = VK0 if rel == 0 else VK
        return [f"ds_read_b128 {vr(b, 4)}, v{ad} offset:{L_V + rel * 2048}",
                f"ds_read_b128 {vr(b + 4, 4)}, v{ad} offset:{L_V + rel * 2048 + 1024}"]

    def smf(i, c):
        s, k = vr(SBUF[i % 3], 16), KB[i % 3]
        return [f"v_mfma_f32_32x32x16_bf16 {s}, {vr(k, 4)}, {vr(QC, 4)}, {c}",
                f"v_mfma_f32_32x32x16_bf16 {s}, {vr(k + 4, 4)}, {vr(QC + 4, 4)}, {s}"]

    def merge():
        lf, lb = a.newlabel("mneg"), a.newlabel("mback")
        a("s_cmp_gt_u32 s46, 0")
        a(f"s_cbranch_scc1 {lf}")
        for r in range(16):
            a(f"v_cndmask_b32 v{SBUF[1] + r}, v{SBUF[1] + r}, v{SBUF[0] + r}, s[{MASKS[r]}:{MASKS[r] + 1}]")
        a.label(lb)
        ool.append((lf, [f"v_cndmask_b32 v{SBUF[1] + r}, v{VNEG}, v{SBUF[0] + r}, s[{MASKS[r]}:{MASKS[r] + 1}]"
                         for r in range(16)], lb))

    def maxblk(i):
        s = SBUF[i % 3]
        ta, tb = (VM, VM2) if i == 1 else (VT, VM2)
        if i >= 2:
            a(f"s_cmp_le_u32 s46, {order[i]}")
            a("s_cselect_b64 vcc, -1, 0")
        a(f"v_max3_f32 v{ta}, v{s}, v{s + 1}, v{s + 2}")
        a(f"v_max3_f32 v{tb}, v{s + 3}, v{s + 4}, v{s + 5}")
        for x in range(5):
            t = (ta, tb)[x & 1]
            a(f"v_max3_f32 v{t}, v{s + 6 + 2 * x}, v{s + 7 + 2 * x}, v{t}")
        a(f"v_max_f32 v{ta}, v{ta}, v{tb}")
        if i >= 2:
            a(f"v_cndmask_b32 v{ta}, v{VNEG}, v{ta}, vcc")
            a(f"v_max_f32 v{VM}, v{VM}, v{ta}")

    if 0 in hooks.get("prio", {}):
        a(f"s_setprio {hooks['prio'][0]}")
    SZ = "sz" in OPT
    for x in kread(0) + kread(1) + kread(2) + vread(0) + vread(1):
        a(x)
    if not SZ:
        a("s_waitcnt lgkmcnt(8)")
        for x in smf(0, "0"):
            a(x)
        a("s_waitcnt lgkmcnt(6)")
        for x in smf(1, "0") + kread(3):
            a(x)
        a("s_nop 7")
        a("s_nop 7")
        merge()
        maxblk(1)
        a(f"v_mov_b32 v{VT}, v{VM}")
        a("s_nop 1")
        a(f"v_permlane32_swap_b32 v{VM}, v{VT}")
        a("s_nop 1")
        a(f"v_max_f32 v{VM}, v{VM}, v{VT}")
        for r in range(16):
            a(f"v_sub_f32 v{CM + r}, 0, v{VM}")
    hook("mid")
    cm, o, ls = ("0" if SZ else vr(CM, 16)), vr(OA, 16), vr(LS, 4)

    def pv(i):
        s = SBUF[i % 3]
        if i == 1:
            return [f"v_mfma_f32_32x32x16_bf16 {o}, {vr(VB[0], 4)}, {vr(s + 8, 4)}, 0",
                    f"v_mfma_f32_16x16x32_bf16 {ls}, {vr(ONE, 4)}, {vr(s, 4)}, 0",
                    f"v_mfma_f32_32x32x16_bf16 {o}, {vr(VB[0] + 4, 4)}, {vr(s + 12, 4)}, {o}",
                    f"v_mfma_f32_16x16x32_bf16 {ls}, {vr(ONE, 4)}, {vr(s + 4, 4)}, {ls}",
                    f"v_mfma_f32_32x32x16_bf16 {o}, {vr(VB[1], 4)}, {vr(P0, 4)}, {o}",
                    f"v_mfma_f32_32x32x16_bf16 {o}, {vr(VB[1] + 4, 4)}, {vr(P0 + 4, 4)}, {o}"]
        v = VB[i % 3]
        return [f"v_mfma_f32_32x32x16_bf16 {o}, {vr(v, 4)}, {vr(s, 4)}, {o}",
                f"v_mfma_f32_16x16x32_bf16 {ls}, {vr(ONE, 4)}, {vr(s, 4)}, {ls}",
                f"v_mfma_f32_32x32x16_bf16 {o}, {vr(v + 4, 4)}, {vr(s + 4, 4)}, {o}",
                f"v_mfma_f32_16x16x32_bf16 {ls}, {vr(ONE, 4)}, {vr(s + 4, 4)}, {ls}"]

    def valu(i):
        s = SBUF[i % 3]
        return [(f"v_exp_f32 v{s + r}, v{s + r}", 8) for r in range(16)] + \
               [(f"v_cvt_pk_bf16_f32 v{s + j}, v{s + 2 * j}, v{s + 2 * j + 1}", 4) for j in range(8)]

    def weave(ms, vs):
        vs = list(vs)
        for m in ms:
            a(m)
            need = (32 if "32x32" in m else 16) - 8
            while vs and need > 0:
                x, c = vs.pop(0)
                a(x)
                need -= c
        for x, c in vs:
            a(x)

    fin = a.newlabel("afin")
    if SZ:
        for i in range(3):
            a(f"s_waitcnt lgkmcnt({8 - 2 * i})")
            for x in smf(i, cm):
                a(x)
        for x in kread(3):
            a(x)
        merge()
    else:
        a("s_waitcnt lgkmcnt(6)")
        for x in smf(2, cm):
            a(x)
        for r in range(16):
            a(f"v_sub_f32 v{SBUF[1] + r}, v{SBUF[1] + r}, v{VM}")
    s = SBUF[1]
    for x, c in valu(1):
        a(x)
    for j in range(8):
        a(f"v_and_b32 v{s + 8 + j}, v{s + j}, v{PM + j}")
    for j in range(8):
        a(f"v_xor_b32 v{P0 + j}, v{s + j}, v{s + 8 + j}")
    blk = hooks.get("blk", {})
    for i in range(2, 9):
        ex = a.newlabel("aexit")
        a("s_waitcnt lgkmcnt(0)")
        a(f"s_cmp_gt_u32 s46, {order[i]}")
        a(f"s_cbranch_scc1 {ex}")
        ool.append((ex, pv(i - 1) + [x for k in range(i, 9) for x in blk.get(k, [])], fin))
        if i in hooks.get("prio", {}):
            a(f"s_setprio {hooks['prio'][i]}")
        for x in blk.get(i, []):
            a(x)
        for x in vread(i) + (kread(i + 2) if i + 2 < 9 else []):
            a(x)
        weave((smf(i + 1, cm) if i + 1 < 9 else []) + pv(i - 1), valu(i))
    a("s_waitcnt lgkmcnt(0)")
    for x in pv(8):
        a(x)
    a.label(fin)
    if 9 in hooks.get("prio", {}):
        a(f"s_setprio {hooks['prio'][9]}")
    hook("end")
    a("s_nop 7")
    a("s_nop 3")
    a(f"v_rcp_f32 v{VT}, v{LS}")
    a(f"v_mul_f32 v{VM2}, 0, v{OA}")
    for r in range(1, 16):
        a(f"v_fmac_f32 v{LS if r & 1 else VM2}, 0, v{OA + r}")
    a(f"v_add_f32 v{VM2}, v{VM2}, v{LS}")
    a(f"v_add_f32 v{VM2}, v{VM2}, v{VT}")
    a(f"v_cmp_gt_f32 vcc, 0x{0x3f800000 + (optval('thr', 30) << 23):x}, v{VM2}")
    a(f"s_mov_b32 s101, {int(role == 'M')}")
    a("s_nop 0")
    a("s_cmp_eq_u64 vcc, -1")
    a("s_cbranch_scc0 L_exact")
    a.label(f"L_norm{role}")
    for r in range(16):
        a(f"v_mul_f32 v{OA + r}, v{OA + r}, v{VT}")
    for j in range(8):
        a(f"v_cvt_pk_bf16_f32 v{OA + j}, v{OA + 2 * j}, v{OA + 2 * j + 1}")
    a(f"buffer_store_dwordx4 {vr(OA, 4)}, v1, {S(SWS)}, s47 offen{SC}")
    a(f"buffer_store_dwordx4 {vr(OA + 4, 4)}, v1, {S(SWS)}, s47 offen offset:1024{SC}")


def emit_exact(a):
    s, k, v, cm = SBUF[0], KB[0], VB[0], CM
    VD, VN = SBUF[1], SBUF[1] + 1
    a.label("L_exact")
    a("s_waitcnt vmcnt(0) lgkmcnt(0)")
    a(f"v_and_b32 v{VD}, 31, v0")
    a(f"v_lshrrev_b32 v{VN}, 5, v0")
    a(f"v_lshlrev_b32 v{VN}, 2, v{VN}")
    a(f"v_sub_u32 v{VD}, v{VD}, v{VN}")
    a(f"v_mov_b32 v{VN}, 0xf149f2ca")
    a(f"v_mov_b32 v{VM}, v{VN}")
    a("s_lshl_b32 s4, s34, 1")
    a("s_add_u32 s4, s4, s41")
    a("s_lshl_b32 s4, s4, 6")
    a("s_add_u32 s4, s4, s45")
    a("s_lshl_b32 s4, s4, 11")
    a(f"s_add_u32 s4, s4, 0x{WS_KF - 8 * 2048:x}")
    a("s_sub_u32 s5, 8, s45")
    a("s_cmp_lt_u32 s45, 8")
    a("s_cselect_b32 s5, s5, 0")
    for r in range(16):
        a(f"v_mov_b32 v{cm + r}, 0")
        a(f"v_mov_b32 v{OA + r}, 0")
    for r in range(4):
        a(f"v_mov_b32 v{LS + r}, 0")
    a("s_mov_b32 s9, 0")
    a.label("L_expass")
    a("s_mov_b32 s6, s5")
    a.label("L_extile")
    a("s_lshl_b32 s7, s6, 11")
    a("s_add_u32 s7, s7, s4")
    a(f"s_add_u32 s8, s7, 0x{WS_VF - WS_KF:x}")
    for st in range(2):
        a(f"buffer_load_dwordx4 {vr(k + 4 * st, 4)}, v1, {S(SWS)}, s7 offen offset:{1024 * st}")
        a(f"buffer_load_dwordx4 {vr(v + 4 * st, 4)}, v1, {S(SWS)}, s8 offen offset:{1024 * st}")
    a("s_waitcnt vmcnt(0)")
    a(f"v_mfma_f32_32x32x16_bf16 {vr(s, 16)}, {vr(k, 4)}, {vr(QC, 4)}, {vr(cm, 16)}")
    a(f"v_mfma_f32_32x32x16_bf16 {vr(s, 16)}, {vr(k + 4, 4)}, {vr(QC + 4, 4)}, {vr(s, 16)}")
    a("s_nop 7")
    a("s_nop 7")
    for rel, op in ((8, "le"), (0, "gt")):
        a(f"s_cmp_lg_u32 s6, {rel}")
        a(f"s_cbranch_scc1 L_exm{rel}")
        for r in range(16):
            a(f"v_cmp_{op}_i32 vcc, {8 * (r >> 2) + (r & 3)}, v{VD}")
            a(f"v_cndmask_b32 v{s + r}, v{VN}, v{s + r}, vcc")
        a.label(f"L_exm{rel}")
    a("s_cmp_lg_u32 s9, 0")
    a("s_cbranch_scc1 L_exp2")
    for r in range(16):
        a(f"v_max_f32 v{VM}, v{VM}, v{s + r}")
    a("s_branch L_exnext")
    a.label("L_exp2")
    for r in range(16):
        a(f"v_exp_f32 v{s + r}, v{s + r}")
    a("s_nop 0")
    for j in range(8):
        a(f"v_cvt_pk_bf16_f32 v{s + j}, v{s + 2 * j}, v{s + 2 * j + 1}")
    a("s_nop 1")
    for st in range(2):
        a(f"v_mfma_f32_32x32x16_bf16 {vr(OA, 16)}, {vr(v + 4 * st, 4)}, {vr(s + 4 * st, 4)}, {vr(OA, 16)}")
        a(f"v_mfma_f32_16x16x32_bf16 {vr(LS, 4)}, {vr(ONE, 4)}, {vr(s + 4 * st, 4)}, {vr(LS, 4)}")
    a("s_nop 7")
    a("s_nop 7")
    a.label("L_exnext")
    a("s_add_u32 s6, s6, 1")
    a("s_cmp_le_u32 s6, 8")
    a("s_cbranch_scc1 L_extile")
    a("s_cmp_lg_u32 s9, 0")
    a("s_cbranch_scc1 L_exdone")
    a(f"v_mov_b32 v{VT}, v{VM}")
    a("s_nop 1")
    a(f"v_permlane32_swap_b32 v{VM}, v{VT}")
    a("s_nop 1")
    a(f"v_max_f32 v{VM}, v{VM}, v{VT}")
    for r in range(16):
        a(f"v_sub_f32 v{cm + r}, 0, v{VM}")
    a("s_mov_b32 s9, 1")
    a("s_branch L_expass")
    a.label("L_exdone")
    a(f"v_rcp_f32 v{VT}, v{LS}")
    a("s_cmp_eq_u32 s101, 1")
    a("s_cbranch_scc1 L_normM")
    a("s_branch L_normH")


def emit_conv(a, hooks):
    ACC, FB = 8, [40, 104]
    VA, VBB, VEB, VSO = 168, 172, 173, 174
    a("v_and_b32 v2, 15, v0")
    a("v_lshrrev_b32 v3, 4, v0")
    a("v_add_u32 v4, 1, v2")
    a("v_and_b32 v5, 1, v4")
    a("v_sub_u32 v4, v4, v5")
    a("v_lshl_add_u32 v4, v3, 3, v4")
    a("v_lshlrev_b32 v4, 1, v4")
    a(f"v_mul_u32_u24 v5, {CPY}, v5")
    a(f"v_add3_u32 v{VA}, v4, v5, s46")
    for i in range(1, 4):
        a(f"v_add_u32 v{VA + i}, {1024 * i}, v{VA}")
    a("v_lshlrev_b32 v4, 5, v2")
    a("v_lshlrev_b32 v5, 4, v3")
    a(f"v_sub_u32 v{VBB}, v5, v4")
    a(f"v_add_u32 v{VBB}, {URO + 480}, v{VBB}")
    a(f"v_add_u32 v{VBB}, s86, v{VBB}")
    a("v_lshlrev_b32 v5, 3, v3")
    a(f"v_add_u32 v{VSO}, v4, v5")
    a(f"v_sub_u32 v{VEB}, {URO + 504}, v{VSO}")
    a(f"v_add_u32 v{VEB}, s86, v{VEB}")

    def creads(j, buf):
        f = FB[buf]
        out = []
        for q in range(8):
            o = (q & 1) * 128 + 16 * j
            va = VA + (q >> 1)
            out.append(f"ds_read2_b32 {vr(f + 4 * q, 2)}, v{va} offset0:{o} offset1:{o + 1}")
            out.append(f"ds_read2_b32 {vr(f + 4 * q + 2, 2)}, v{va} offset0:{o + 2} offset1:{o + 3}")
            out.append(f"ds_read_b128 {vr(f + 32 + 4 * q, 4)}, v{VBB} offset:{512 * (7 - q) + 64 * j}")
        return out

    pairs = [(q, dl) for q in range(8) for dl in range(8 - q)]
    pairs.sort(key=lambda x: (max(x[0], x[1]), x[0] + x[1], x[0]))
    seq, rest = [], list(pairs)
    while rest:
        pick = next((p for p in rest if all(p[0] + p[1] != s[0] + s[1] for s in seq[-2:])), rest[0])
        rest.remove(pick)
        seq.append(pick)

    def cmfmas(j, buf):
        f = FB[buf]
        seen, out = set(), []
        for (q, dl) in seq:
            nt = q + dl
            d = vr(ACC + 4 * nt, 4)
            c = "0" if (j == 0 and nt not in seen) else d
            seen.add(nt)
            out.append(f"v_mfma_f32_16x16x32_bf16 {d}, {vr(f + 4 * q, 4)}, {vr(f + 32 + 4 * dl, 4)}, {c}")
        return out

    extra = list(hooks.get("extra", []))
    if "start" in hooks:
        hooks["start"]()
    for i, r in enumerate(creads(0, 0)):
        a(r)
        if i % 12 == 11:
            a("s_waitcnt lgkmcnt(4)")
    def epi(nt):
        k0, k1 = FB[0] + 2 * nt, FB[0] + 2 * nt + 1
        t = FB[0] + 16 + 4 * nt
        ac = ACC + 4 * nt
        pre = [f"v_and_b32 v{t}, 0xffff0000, v{k1}", f"v_lshlrev_b32 v{t + 1}, 16, v{k1}",
               f"v_and_b32 v{t + 2}, 0xffff0000, v{k0}", f"v_lshlrev_b32 v{t + 3}, 16, v{k0}"]
        post = [f"v_fmac_f32 v{ac + e}, s39, v{t + e}" for e in range(4)] + \
               [f"v_cvt_pk_bf16_f32 v{YP + 2 * nt}, v{ac}, v{ac + 1}",
                f"v_cvt_pk_bf16_f32 v{YP + 2 * nt + 1}, v{ac + 2}, v{ac + 3}"]
        return pre, post

    def last_step():
        f = FB[1]
        left = {nt: [(q, nt - q) for q in range(nt + 1)] for nt in range(8)}
        a("s_waitcnt lgkmcnt(0)")
        for nt in range(8):
            a(f"ds_read_b64 {vr(FB[0] + 2 * nt, 2)}, v{VEB} offset:{512 * (7 - nt)}")
        hist, n, ready, pre = [], 0, [], [x for nt in range(8) for x in epi(nt)[0]]
        done = {}
        for i in range(36):
            rem = 36 - i
            cand = [nt for nt in range(8) if left[nt] and nt not in hist[-2:]]
            urgent = [nt for nt in cand if 3 * len(left[nt]) - 2 >= rem - 2]
            nt = max(urgent, key=lambda x: len(left[x])) if urgent else cand[0] if cand else \
                max((x for x in range(8) if left[x] and x != hist[-1]), key=lambda x: len(left[x]))
            q, dl = left[nt].pop()
            d = vr(ACC + 4 * nt, 4)
            a(f"v_mfma_f32_16x16x32_bf16 {d}, {vr(f + 4 * q, 4)}, {vr(f + 32 + 4 * dl, 4)}, {d}")
            n += 1
            hist.append(nt)
            if not left[nt]:
                done[nt] = n
            if i == 5:
                a("s_waitcnt lgkmcnt(0)")
                if "eb" in OPT:
                    hooks["bar"]()
            if i < 5:
                continue
            for _ in range(2):
                for x in sorted(done):
                    if n - done[x] >= 10 and len(pre) <= 4 * (7 - x):
                        ready += epi(x)[1]
                        del done[x]
                if ready:
                    a(ready.pop(0)); n += 1
                elif pre:
                    a(pre.pop(0)); n += 1
        for x in pre + ready:
            a(x); n += 1
        for x in sorted(done, key=done.get):
            if n - done[x] < 10:
                a(f"s_nop {min(7, 9 - (n - done[x]))}")
                a("s_nop 1")
                n += 10
            for y in epi(x)[1]:
                a(y); n += 1
        return [f"buffer_store_dwordx2 {vr(YP + 2 * nt, 2)}, v{VSO}, {S(SWS)}, s36 offen offset:{512 * nt}{SC}" for nt in range(8)]

    for j in range(8):
        if j == 7 and "ce" in OPT:
            assert not extra
            return last_step()
        m = cmfmas(j, j & 1)
        r = creads(j + 1, (j + 1) & 1) if j < 7 else \
            [f"ds_read_b64 {vr(FB[0] + 2 * nt, 2)}, v{VEB} offset:{512 * (7 - nt)}" for nt in range(8)]
        a("s_waitcnt lgkmcnt(0)")
        ri = 0
        if "cnolds" in OPT and j < 7:
            r = []
        for i, mm in enumerate(m):
            a(mm if "cnomfma" not in OPT else "s_nop 3")
            if ri < len(r):
                a(r[ri]); ri += 1
            if j >= 1 and extra:
                a(extra.pop(0))
        assert ri == len(r)
    a("s_nop 7")
    a("s_waitcnt lgkmcnt(0)")
    stores = []
    for nt in range(8):
        k0, k1 = FB[0] + 2 * nt, FB[0] + 2 * nt + 1
        t = FB[0] + 16 + 4 * (nt & 1)
        ac = ACC + 4 * nt
        a(f"v_and_b32 v{t}, 0xffff0000, v{k1}")
        a(f"v_lshlrev_b32 v{t + 1}, 16, v{k1}")
        a(f"v_and_b32 v{t + 2}, 0xffff0000, v{k0}")
        a(f"v_lshlrev_b32 v{t + 3}, 16, v{k0}")
        for e in range(4):
            a(f"v_fmac_f32 v{ac + e}, s39, v{t + e}")
        a(f"v_cvt_pk_bf16_f32 v{YP + 2 * nt}, v{ac}, v{ac + 1}")
        a(f"v_cvt_pk_bf16_f32 v{YP + 2 * nt + 1}, v{ac + 2}, v{ac + 3}")
        st = f"buffer_store_dwordx2 {vr(YP + 2 * nt, 2)}, v{VSO}, {S(SWS)}, s36 offen offset:{512 * nt}{SC}"
        if "yearly" in OPT:
            a(st)
        else:
            stores.append(st)
    return stores


def emit_lds_wait(a, vaddr, off, t):
    lp, dn = a.newlabel("lw"), a.newlabel("lwd")
    a("s_mov_b32 s85, 0")
    a.label(lp)
    a(f"ds_read_b128 {vr(t, 4)}, v{vaddr} offset:{off}")
    a("s_waitcnt lgkmcnt(0)")
    a(f"v_and_b32 v{t}, v{t}, v{t + 1}")
    a(f"v_and_b32 v{t + 2}, v{t + 2}, v{t + 3}")
    a(f"v_and_b32 v{t}, v{t}, v{t + 2}")
    a("s_add_u32 s85, s85, 1")
    a(f"v_readfirstlane_b32 s80, v{t}")
    a("s_nop 1")
    a("s_cmp_lg_u32 s80, 0")
    a(f"s_cbranch_scc1 {dn}")
    a(f"s_cmp_lt_u32 s85, 0x{SPIN_LIMIT:x}")
    a(f"s_cbranch_scc1 {lp}")
    a.label(dn)


def p1_lists():
    KK, VV, WR = 124, 146, 162
    AK, AH, AS, AO = 174, 175, 176, 177
    KF_, WF_, RS_, TT, PO = 12, 56, 72, 104, 108
    soffs = ["0", "s50", "s51", "s52"]
    setup, loads, comp, stores = [], [], [], []
    a = setup.append
    a("v_lshrrev_b32 v24, 3, v0")
    a("v_and_b32 v25, 7, v0")
    a("s_lshl_b32 s80, s35, 6")
    a("s_lshl_b32 s81, s3, 2")
    a("s_add_u32 s81, s81, s44")
    a("s_lshl_b32 s81, s81, 5")
    a("v_lshlrev_b32 v24, 3, v24")
    a("v_add_u32 v24, s80, v24")
    a("v_lshlrev_b32 v25, 2, v25")
    a("v_add_u32 v25, s81, v25")
    a(f"v_lshlrev_b32 v{AK}, 11, v24")
    a(f"v_lshl_add_u32 v{AK}, v25, 1, v{AK}")
    a("s_mov_b32 s50, 4096")
    a("s_mov_b32 s51, 8192")
    a("s_mov_b32 s52, 12288")
    a(f"v_subrev_u32 v{AH}, 6144, v{AK}")
    a("v_mov_b32 v26, 0x80000000")
    a("v_cmp_gt_u32 vcc, 3, v24")
    a(f"v_lshlrev_b32 v{AO}, 12, v25")
    a("v_sub_u32 v24, 2040, v24")
    a(f"v_cndmask_b32 v{AH}, v{AH}, v26, vcc")
    a(f"v_lshlrev_b32 v{AS}, 3, v25")
    a(f"v_lshl_add_u32 v{AO}, v24, 1, v{AO}")
    loads.append(f"buffer_load_dwordx4 {vr(WR, 4)}, v{AS}, {S(SSH)}, 0 offen")
    loads.append(f"buffer_load_dwordx4 {vr(WR + 4, 4)}, v{AS}, {S(SSH)}, 0 offen offset:16")
    for i in range(3):
        loads.append(f"buffer_load_dwordx2 {vr(KK + 2 * i, 2)}, v{AH}, {S(SK)}, {soffs[i >> 1]} offen offset:{(i & 1) * 2048} {nt('p')}")
    for i in range(8):
        loads.append(f"buffer_load_dwordx2 {vr(KK + 6 + 2 * i, 2)}, v{AK}, {S(SK)}, {soffs[i >> 1]} offen offset:{(i & 1) * 2048} {nt('p')}")
    for i in range(8):
        loads.append(f"buffer_load_dwordx2 {vr(VV + 2 * i, 2)}, v{AK}, {S(SV)}, {soffs[i >> 1]} offen offset:{(i & 1) * 2048} {nt('p')}")
    a = comp.append
    if "pk" in OPT:
        for dd in range(4):
            for h2 in range(2):
                src = WR + 2 * dd + h2
                a(f"v_lshlrev_b32 v{WF_ + 8 * h2 + dd}, 16, v{src}")
                a(f"v_and_b32 v{WF_ + 8 * h2 + 4 + dd}, 0xffff0000, v{src}")

        def kun(i):
            for h2 in range(2):
                src = KK + 2 * i + h2
                a(f"v_lshlrev_b32 v{KF_ + 4 * i + 2 * h2}, 16, v{src}")
                a(f"v_and_b32 v{KF_ + 4 * i + 2 * h2 + 1}, 0xffff0000, v{src}")
        for i in range(3):
            kun(i)
        for s_ in range(8):
            kun(s_ + 3)
            for h2 in range(2):
                src = VV + 2 * s_ + h2
                a(f"v_lshlrev_b32 v{TT + 2 * h2}, 16, v{src}")
                a(f"v_and_b32 v{TT + 2 * h2 + 1}, 0xffff0000, v{src}")
            for j in range(4):
                for dd in (0, 2):
                    r, k_, w_ = vr(RS_ + 4 * s_ + dd, 2), vr(KF_ + 4 * (s_ + 3 - j) + dd, 2), vr(WF_ + 4 * j + dd, 2)
                    a(f"v_pk_fma_f32 {r}, {k_}, {w_}, {r}" if j else f"v_pk_mul_f32 {r}, {k_}, {w_}")
            for dd in (0, 2):
                r = vr(RS_ + 4 * s_ + dd, 2)
                a(f"v_pk_mul_f32 {r}, {r}, {vr(TT + dd, 2)}")
        a = lambda x: None
    for dd in range(4):
        for h2 in range(2):
            src = WR + 2 * dd + h2
            a(f"v_lshlrev_b32 v{WF_ + 4 * dd + 2 * h2}, 16, v{src}")
            a(f"v_and_b32 v{WF_ + 4 * dd + 2 * h2 + 1}, 0xffff0000, v{src}")
    for i in range(11):
        for h2 in range(2):
            src = KK + 2 * i + h2
            a(f"v_lshlrev_b32 v{KF_ + 4 * i + 2 * h2}, 16, v{src}")
            a(f"v_and_b32 v{KF_ + 4 * i + 2 * h2 + 1}, 0xffff0000, v{src}")
    for s_ in range(8):
        for dd in range(4):
            r = RS_ + 4 * s_ + dd
            a(f"v_mul_f32 v{r}, v{KF_ + 4 * (s_ + 3) + dd}, v{WF_ + 4 * dd}")
            for j in range(1, 4):
                a(f"v_fmac_f32 v{r}, v{KF_ + 4 * (s_ + 3 - j) + dd}, v{WF_ + 4 * dd + j}")
    for s_ in range(8):
        for dd in range(4):
            r = RS_ + 4 * s_ + dd
            src = VV + 2 * s_ + (dd >> 1)
            t = TT + (dd & 1)
            a(f"v_and_b32 v{t}, 0xffff0000, v{src}" if dd & 1 else f"v_lshlrev_b32 v{t}, 16, v{src}")
            a(f"v_mul_f32 v{r}, v{r}, v{t}")
    stores.append(f"s_mov_b32 s53, 0x{WS_UR:x}")
    for dd in range(4):
        o = PO + 4 * dd
        for j in range(4):
            stores.append(f"v_cvt_pk_bf16_f32 v{o + j}, v{RS_ + 4 * (7 - 2 * j) + dd}, v{RS_ + 4 * (6 - 2 * j) + dd}")
        stores.append(f"buffer_store_dwordx4 {vr(o, 4)}, v{AO}, {S(SWS)}, s53 offen{SC}")
        if dd < 3:
            stores.append("s_add_u32 s53, s53, 4096")
    return setup, loads, comp, stores


VZ = 252
VLF = 251
SRDS = [(SX, 48, 4 * MB), (SW, 56, 6 * MB), (SWS, 88, WS_SIZE), (SK, 8, 4 * MB), (SV, 16, 4 * MB),
        (SSH, 24, 8192), (SHK, 32, 4 * MB), (SWO, 64, 2 * MB), (SQ, 0, 4 * MB), (SOUT, 72, 8 * MB),
        (SDBG, 80, 256)]


def late_setup(a, ts, helper=True):
    if helper:
        a("s_lshl_b32 s84, s3, 5")
        a("s_add_u32 s84, s84, s35")
        a("s_lshl_b32 s80, s84, 3")
        a("s_load_dwordx2 s[76:77], s[36:37], s80")
    a("s_lshl_b32 s89, s2, 7")
    a("s_lshl_b32 s81, s32, 3")
    a("s_add_u32 s89, s89, s81")
    for (d, off, size) in SRDS[2:]:
        if not helper and d in (SK, SV, SSH, SHK):
            continue
        a(f"s_mov_b32 s{d + 2}, 0x{size:x}")
        a(f"s_mov_b32 s{d + 3}, 0x20000")
    a(f"v_mov_b32 v{VLF}, {L_FL}")
    ts.setup(a, SWS)


def g2_tile(a):
    a("s_and_b32 s86, s3, 1")
    a("s_lshl_b32 s86, s86, 1")
    a("s_bfe_u32 s80, s3, 0x10001")
    a("s_add_u32 s86, s86, s80")
    a("s_lshl_b32 s86, s86, 2")
    a("s_and_b32 s80, s35, 3")
    a("s_add_u32 s86, s86, s80")
    a("s_lshr_b32 s42, s3, 2")
    a("s_lshl_b32 s42, s42, 3")
    a("s_lshr_b32 s43, s35, 2")
    a("s_add_u32 s42, s42, s43")


def wo_addr(a0, t=4):
    a = lambda x: a0(re.sub(r"\bv([456])\b", lambda m: f"v{int(m.group(1)) - 4 + t}", x))
    a("v_lshrrev_b32 v4, 3, v0")
    a("v_and_b32 v5, 7, v0")
    a("v_bfe_u32 v6, v0, 4, 1")
    a("v_lshlrev_b32 v6, 2, v6")
    a("v_xor_b32 v6, v6, v5")
    a("v_lshlrev_b32 v250, 11, v4")
    a("v_lshl_add_u32 v250, v6, 4, v250")
    a("s_lshl_b32 s80, s42, 7")
    a("v_add_u32 v250, s80, v250")
    a("s_lshl_b32 s84, s32, 11")
    a("s_lshl_b32 s88, s32, 15")


NE = 3


def wo_part(p, dst, dw=0):
    return [f"s_add_u32 m0, s84, {dst + dw * 2048}",
            f"s_add_u32 s81, s43, {p}",
            "s_and_b32 s81, s81, 7",
            "s_lshl_b32 s81, s81, 18",
            "s_add_u32 s81, s81, s88"] + ([f"s_add_u32 s81, s81, {dw * 32768}"] if dw else []) + [
            f"buffer_load_dwordx4 v250, {S(SWO)}, s81 offen lds",
            f"s_add_u32 s81, s81, {16384 - 1024}",
            f"buffer_load_dwordx4 v250, {S(SWO)}, s81 offen offset:1024 lds"]


def wo_early():
    b0 = optval("we", 3)
    return {b0 + p: wo_part(p, L_R0 + p * 16384) for p in range(NE)}


P4 = [x * 4096 for x in list(range(0, 6)) + list(range(9, 18)) + list(range(21, 26))]
WLOC = [L_R0 + k * 2048 for k in range(8 * NE)] + [P4[k >> 1] + (k & 1) * 2048 for k in range(40)]
NLATE = 10


def blk7_flag():
    b = Asm()
    lds_flag_set(b, 32, 16, 158)
    return [x.strip() for x in b.L]


def wo_late(a, ts, nyoung, helper):
    def stage():
        a("s_and_b32 s83, s32, 3")
        a("s_lshl_b32 s82, s83, 10")
        a("s_lshl_b32 s81, s43, 4")
        a("s_add_u32 s83, s83, s81")
        for i in range(NLATE):
            p = 2 * i + int(helper)
            a(f"s_add_u32 m0, s82, {P4[p]}")
            a(f"s_add_u32 s81, s83, {16 * NE + 4 * p}")
            a("s_and_b32 s81, s81, 127")
            a("s_lshl_b32 s81, s81, 14")
            a(f"buffer_load_dwordx4 v250, {S(SWO)}, s81 offen lds")

    ES = optval("es", 0)
    if ES == 1:
        emit_lds_wait(a, VLF, 64, 8)
        emit_lds_wait(a, VLF, 80, 8)
        stage()
        a(f"s_waitcnt vmcnt({nyoung + NLATE})")
    else:
        a(f"s_waitcnt vmcnt({nyoung})")
    emit_publish(a, FL_O, 220, VZ)
    lds_flag_set(a, 32, 8, 222)
    if ES == 2:
        emit_lds_wait(a, VLF, 64, 8)
        emit_lds_wait(a, VLF, 80, 8)
        stage()
    if ES == 0 or not helper:
        emit_lds_wait(a, VLF, 32, 8)
        emit_lds_wait(a, VLF, 48, 8)
    ts.stamp(a, 7)
    if ES == 0:
        stage()


def lds_flag_set(a, word_s, word_add, t):
    a(f"s_lshl_b32 s80, s{word_s}, 2")
    a(f"v_add_u32 v{t}, s80, v{VLF}")
    a(f"v_mov_b32 v{t + 1}, 1")
    a(f"ds_write_b32 v{t}, v{t + 1} offset:{4 * word_add}")


def m_path(a, ts, ool):
    ACC = 80
    PD = optval('pd', 2)
    FR = [16, 36, 56, 192, 212][:PD + 1]
    NB = PD + 1
    LZ = 'lz' in OPT
    XA, WB, XA2 = 2, 6, 8
    def code_touch():
        lcp = a.newlabel("nocp")
        a("s_cmp_lg_u32 s32, 1")
        a(f"s_cbranch_scc1 {lcp}")
        a("s_mov_b32 exec_hi, 0")
        a("buffer_load_dword v188, v189, s[52:55], s56 offen")
        a("s_mov_b32 exec_hi, -1")
        a.label(lcp)

    CQ = [int(o[2:]) for o in OPT if o.startswith("cq")]
    if "cp" in OPT or CQ:
        a("s_getpc_b64 s[52:53]")
        a.label("L_pc")
        a(f"s_sub_u32 s52, s52, L_pc-{NAME}_kernel")
        a("s_subb_u32 s53, s53, 0")
        a(f"s_mov_b32 s54, L_end-{NAME}_kernel")
        a("s_mov_b32 s55, 0x20000")
        a("s_lshl_b32 s56, s35, 11")
        a("v_lshlrev_b32 v189, 6, v0")
    if "cp" in OPT:
        code_touch()
    SW_ = {}
    for o in OPT:
        if o.startswith("sw"):
            m, n = o[2:].split("_")
            SW_[int(n)] = int(m)
    if SW_:
        a("s_lshl_b32 s80, s35, 2")
        a("s_add_u32 s80, s80, s32")
        a("s_mul_i32 s81, s80, 6")
        a("v_and_b32 v3, 7, v0")
        a("v_lshrrev_b32 v184, 3, v0")
        a("v_mul_u32_u24 v184, 768, v184")
        a("v_add3_u32 v184, v184, v3, s81")
        a("v_lshlrev_b32 v184, 11, v184")
        a("s_lshr_b32 s81, s3, 2")
        a("s_lshl_b32 s81, s81, 10")
        a("s_add_u32 s81, s81, 0x180")
        a("v_add_u32 v184, s81, v184")
        a("s_bitcmp1_b32 s3, 1")
        a("s_cselect_b32 s81, 0, 6")
        a("v_mov_b32 v2, 0x80000000")
        a("v_cmp_gt_u32 vcc, s81, v3")
        a("s_nop 1")
        a("v_cndmask_b32 v184, v2, v184, vcc")

    def slow_touch(n):
        if n in SW_:
            a(f"s_mov_b64 exec, 0x{sum(0xff << (8 * q) for q in range(4) if SW_[n] >> q & 1):x}")
            a(f"buffer_load_dword v177, v184, {S(SW)}, 0 offen")
            a("s_mov_b64 exec, -1")

    MS = [o[2:] for o in OPT if o.startswith("ms")]
    ltk = a.newlabel("notok")
    if MS:
        a("s_or_b32 s80, s2, s32")
        a(f"s_cbranch_scc1 {ltk}")
        a(f"s_mov_b32 s{SDBG + 2}, 256")
        a(f"s_mov_b32 s{SDBG + 3}, 0x20000")
    else:
        a("s_waitcnt lgkmcnt(0)")
        slow_touch(99)
        late_setup(a, ts, False)
        a("s_cmp_lg_u32 s89, 0")
        a(f"s_cbranch_scc1 {ltk}")
    a("s_memrealtime s[78:79]")
    a("s_waitcnt lgkmcnt(0)")
    a("s_or_b32 s78, s78, 1")
    a("v_mov_b32 v180, s78")
    a("v_mov_b32 v181, s79")
    a("s_mov_b64 exec, 1")
    a(f"buffer_store_dwordx2 v[180:181], v{VZ}, {S(SDBG)}, 0 offen{SC}")
    a("s_mov_b64 exec, -1")
    a.label(ltk)
    a("s_and_b32 s44, s32, 1")
    a("s_lshr_b32 s41, s32, 1")
    a("s_lshl_b32 s40, s44, 1")
    a("v_and_b32 v8, 31, v0")
    a("v_lshrrev_b32 v9, 5, v0")
    a("v_lshrrev_b32 v10, 1, v8")
    a("v_and_b32 v10, 7, v10")
    a("v_lshlrev_b32 v11, 7, v8")
    a("s_lshl_b32 s46, s44, 13")
    a("v_add_u32 v11, s46, v11")
    for ks in range(4):
        a(f"v_add_u32 v12, {2 * ks}, v9")
        a("v_xor_b32 v12, v12, v10")
        a(f"v_lshl_add_u32 v{XA + ks}, v12, 4, v11")
    a("v_and_b32 v10, 15, v0")
    a("v_lshrrev_b32 v11, 4, v0")
    a("v_lshrrev_b32 v12, 2, v10")
    a("v_lshl_add_u32 v12, v9, 3, v12")
    a(f"v_mul_u32_u24 v12, {128 if 'wl' in OPT else 384}, v12")
    a("v_lshrrev_b32 v13, 3, v10")
    a("v_xor_b32 v13, s41, v13")
    a("v_lshl_add_u32 v12, v13, 6, v12")
    a("v_and_b32 v13, 1, v11")
    a("v_lshl_add_u32 v12, v13, 5, v12")
    a("v_and_b32 v13, 3, v10")
    a("v_lshl_add_u32 v12, v13, 3, v12")
    a(f"v_add_u32 v{WB}, 16384, v12")
    a(f"v_add_u32 v{WB + 1}, {16384 + 81920}, v12")
    for ks in range(4):
        a(f"v_add_u32 v{XA2 + ks}, 81920, v{XA + ks}")

    def reads(t, ks, buf):
        st = slot(t)
        f = FR[buf]
        xa = (XA2 if st >= 2 else XA) + ks
        xo = (st & 1) * 40960
        wb = WB + (st >> 1)
        wo = (st & 1) * 40960 + 16 * ks * 384
        if "wl" in OPT:
            tr = lambda i: f"ds_read_b64_tr_b16 {vr(f + 8 + 2 * i, 2)}, v{wb} offset:{wo + (i >> 1) * 2048 + (i & 1) * 512}"
            return [f"ds_read_b128 {vr(f, 4)}, v{xa} offset:{xo}", tr(0), tr(1),
                    f"ds_read_b128 {vr(f + 4, 4)}, v{xa} offset:{xo + 4096}", tr(2), tr(3), tr(4), tr(5)]
        return [f"ds_read_b128 {vr(f, 4)}, v{xa} offset:{xo}",
                f"ds_read_b64_tr_b16 {vr(f + 8, 2)}, v{wb} offset:{wo}",
                f"ds_read_b64_tr_b16 {vr(f + 10, 2)}, v{wb} offset:{wo + 4 * 384}",
                f"ds_read_b128 {vr(f + 4, 4)}, v{xa} offset:{xo + 4096}",
                f"ds_read_b64_tr_b16 {vr(f + 12, 2)}, v{wb} offset:{wo + 128}",
                f"ds_read_b64_tr_b16 {vr(f + 14, 2)}, v{wb} offset:{wo + 128 + 4 * 384}",
                f"ds_read_b64_tr_b16 {vr(f + 16, 2)}, v{wb} offset:{wo + 256}",
                f"ds_read_b64_tr_b16 {vr(f + 18, 2)}, v{wb} offset:{wo + 256 + 4 * 384}"]

    def mfmas(buf, first, last):
        f = FR[buf]
        X = [vr(f, 4), vr(f + 4, 4)]
        W = [vr(f + 8, 4), vr(f + 12, 4), vr(f + 16, 4)]
        out = []
        for part in ((1, 2, 0) if last else (0, 1, 2)):
            for rt in range(2):
                d = vr(ACC + 16 * (2 * part + rt), 16)
                c = "0" if first else d
                if part < 2:
                    out.append(f"v_mfma_f32_32x32x16_bf16 {d}, {W[part]}, {X[rt]}, {c}")
                else:
                    out.append(f"v_mfma_f32_32x32x16_bf16 {d}, {X[rt]}, {W[part]}, {c}")
        return out

    main_a = a
    if MS:
        a = Asm()
        late_setup(a, ts, False)
    a("s_lshl_b32 s46, s34, 1")
    a("s_add_u32 s46, s46, s41")
    a("s_lshl_b32 s46, s46, 6")
    a("s_lshl_b32 s47, s33, 2")
    a("s_add_u32 s46, s46, s47")
    a("s_add_u32 s48, s46, s40")
    a("s_lshl_b32 s48, s48, 11")
    a(f"s_add_u32 s49, s48, 0x{WS_VF:x}")
    a(f"s_add_u32 s48, s48, 0x{WS_KF:x}")
    a(f"s_mul_i32 s80, s41, {L_HD}")
    a("s_lshl_b32 s81, s44, 12")
    a("s_add_u32 s80, s80, s81")
    a("v_add_u32 v182, s80, v1")
    a("s_lshl_b32 s80, s32, 11")
    a(f"s_add_u32 s80, s80, {L_QH}")
    a("v_add_u32 v183, s80, v1")

    def setup2():
        a("s_add_u32 s38, s33, s44")
        a("s_sub_u32 s80, s38, 2")
        a("s_max_i32 s80, s80, 0")
        a("v_mov_b32 v20, s80")
        a("v_mov_b32 v21, s34")
        emit_wg_of(a, 190, 20, 21, 22)
        a("v_and_b32 v20, 1, v0")
        a("v_lshl_add_u32 v190, v20, 3, v190")
        a("s_lshl_b32 s80, s41, 4")
        a(f"s_add_u32 s80, s80, 0x{WS_FL + FL_K * 32768:x}")
        a("v_add_u32 v190, s80, v190")
        a("s_lshl_b32 s80, s44, 2")
        a("s_add_u32 s36, s46, s80")
        a("s_lshl_b32 s36, s36, 11")
        a(f"s_add_u32 s36, s36, 0x{WS_KF - 8 * 2048:x}")
        a(f"s_mul_i32 s37, s41, {L_HD}")
        a("s_lshl_b32 s80, s44, 13")
        a("s_add_u32 s37, s37, s80")
        a("; attention")
        emit_attn_setup(a, MASKS_M, 20)
        a("; projection")
        g2_tile(a)
        wo_addr(a, 20)
        a("s_lshl_b32 s80, s35, 2")
        a("s_add_u32 s80, s80, s32")
        a("s_lshl_b32 s80, s80, 6")
        a("v_add_u32 v20, s80, v0")
        a("v_lshrrev_b32 v198, 3, v20")
        a("v_lshlrev_b32 v198, 11, v198")
        a("v_and_b32 v20, 7, v20")
        a("v_lshl_add_u32 v198, v20, 7, v198")
        a("s_lshr_b32 s80, s3, 2")
        a("s_lshl_b32 s80, s80, 10")
        a("v_add_u32 v198, s80, v198")
        a("s_lshl_b32 s80, s35, 6")
        a("s_lshl_b32 s81, s32, 4")
        a("s_add_u32 s80, s80, s81")
        a("v_bfe_u32 v20, v0, 1, 4")
        a("v_add_u32 v20, s80, v20")
        a("v_lshlrev_b32 v20, 11, v20")
        a("v_and_b32 v21, 1, v0")
        a("v_lshl_add_u32 v20, v21, 7, v20")
        a("s_lshl_b32 s80, s3, 8")
        a("v_add_u32 v199, s80, v20")

    if "ls" not in OPT:
        setup2()
    KT, FT = optval("kt", -1), optval("ft", -1)
    if KT >= 0:
        a("v_and_b32 v185, 31, v0")
        a("v_lshlrev_b32 v185, 7, v185")
        a("v_lshrrev_b32 v20, 5, v0")
        a("v_lshl_add_u32 v185, v20, 22, v185")
    if FT >= 0:
        a("v_lshlrev_b32 v194, 15, v0")
        a("s_lshl_b32 s80, s2, 7")
        a(f"s_add_u32 s80, s80, 0x{WS_FL:x}")
        a("v_add_u32 v194, s80, v194")
        a("s_cmp_eq_u32 s32, 2")
        a("s_cselect_b32 s80, 4, 0")
        a("v_mov_b32 v193, 0x80000000")
        a("v_cmp_gt_u32 vcc, s80, v0")
        a("s_nop 1")
        a("v_cndmask_b32 v194, v193, v194, vcc")
    late = {}
    if MS:
        blk_ = 0
        for x in a.L:
            if x.strip().startswith(";"):
                blk_ += 1
                continue
            late.setdefault(int(MS[0][blk_]), []).append(re.sub(r"\bv2([012])\b", r"v1\g<1>", x.strip()).replace("v10", "v13").replace("v11", "v14"))
        a = main_a
        for x in late.get(0, []):
            a(x)
    a("s_waitcnt lgkmcnt(0)")
    slow_touch(98)
    if "tse" in OPT:
        ts.stamp(a, 0)
    a("s_barrier")
    ts.stamp(a, 11)
    for k in range(PD):
        for r in reads(0, k, k):
            a(r)
        if k == 1:
            a("s_waitcnt lgkmcnt(8)")
    TKN = optval("tkn", 41)
    BK = (4 - PD) % 4
    for n in range(64):
        t, ks = n >> 2, n & 3
        m = mfmas(n % NB, n == 0, n == 63)
        n2 = n + PD
        r = reads(n2 >> 2, n2 & 3, n2 % NB) if n2 < 64 else []
        tch = []
        if n == TKN:
            tch = [f"buffer_load_dwordx2 v[186:187], v{VZ}, {S(SDBG)}, 0 offen{SC}"]
        ahead = min(15, 8 * (min(63, n + PD - 1) - n))
        if ks == BK and t + 1 not in skipped():
            a(f"s_waitcnt lgkmcnt({ahead if (LZ and t < 15) else 0})")
            a(m[0])
            for x in late.get(t + 1, []):
                a(x)
            a("s_barrier")
        else:
            a(f"s_waitcnt lgkmcnt({ahead})")
            a(m[0])
        ri = 0
        for i, mm in enumerate(m[1:]):
            for _ in range(2):
                if ri < len(r):
                    a(r[ri]); ri += 1
            if i == 4:
                for x in tch:
                    a(x)
                if n in CQ:
                    code_touch()
                slow_touch(n)
                if n == KT:
                    a(f"buffer_load_dword v178, v185, {S(SWS)}, s48 offen")
                if n == FT:
                    if "fst" in OPT:
                        a(f"buffer_store_dword v{VZ}, v194, {S(SWS)}, 0 offen offset:64{SC}")
                    else:
                        a(f"buffer_load_dword v195, v194, {S(SWS)}, 0 offen")
            a(mm)
    ts.stamp(a, 1)
    if optval("pe", 0):
        a(f"s_setprio {optval('pe', 0)}")
    if "fk" in OPT:
        a("s_and_b32 s80, s33, 14")
        a("s_cmp_lg_u32 s80, 6")
        a("s_cselect_b32 s39, 1, 0")
        a("s_cselect_b64 s[50:51], -1, 0")
    for part in (1, 2):
        for rt in range(2):
            b = ACC + 16 * (2 * part + rt)
            for j in range(8):
                a(f"v_cvt_pk_bf16_f32 v{b + j}, v{b + 2 * j}, v{b + 2 * j + 1}")
            if "fk" in OPT:
                a("s_mov_b64 exec, s[50:51]")
                for step in range(2):
                    a(f"buffer_store_dwordx4 {vr(b + 4 * step, 4)}, v1, {S(SWS)}, s{47 + part} offen offset:{rt * 2048 + step * 1024}")
                a("s_not_b64 exec, exec")
            for step in range(2):
                a(f"buffer_store_dwordx4 {vr(b + 4 * step, 4)}, v1, {S(SWS)}, s{47 + part} offen offset:{rt * 2048 + step * 1024}{SC}")
            if "fk" in OPT:
                a("s_mov_b64 exec, -1")
    if "fp" in OPT:
        a("s_waitcnt vmcnt(0)")
        emit_token_take(a, 186, VZ)
        emit_publish(a, FL_K, 220, VZ, 39 if "fk" in OPT else None)
        ts.stamp(a, 2)
    if "pes" in OPT:
        a("s_setprio 0")
    for part in (1, 2):
        for rt in range(2):
            b = ACC + 16 * (2 * part + rt)
            for step in range(2):
                a(f"ds_write_b128 v182, {vr(b + 4 * step, 4)} offset:{8 * 2048 + (part - 1) * L_V + rt * 2048 + step * 1024}")
    for rt in (1, 0):
        b = ACC + 16 * rt
        d = QC if rt == 0 else b
        for r in range(16):
            a(f"v_mul_f32 v{b + r}, {f32hex(SCALE_LOG2E)}, v{b + r}")
        for j in range(8):
            a(f"v_cvt_pk_bf16_f32 v{d + j}, v{b + 2 * j}, v{b + 2 * j + 1}")
        if rt == 1:
            for step in range(2):
                a(f"ds_write_b128 v183, {vr(d + 4 * step, 4)} offset:{step * 1024}")
    lz = a.newlabel("nozero")
    a("s_cmp_lg_u32 s32, 0")
    a(f"s_cbranch_scc1 {lz}")
    a(f"v_lshl_add_u32 v20, v0, 2, v{VLF}")
    a(f"ds_write_b32 v20, v{VZ}")
    a.label(lz)
    if "ls" in OPT:
        setup2()
    tlq = f"buffer_load_dword v157, v199, {S(SQ)}, 0 offen"

    def prev_dma(isv):
        for g in range(2):
            a(f"s_add_u32 m0, s37, {isv * L_V + g * 4096}")
            a(f"s_add_u32 s80, s36, {isv * (WS_VF - WS_KF) + g * 4096}")
            for i in range(4):
                a(f"buffer_load_dwordx4 v1, {S(SWS)}, s80 offen offset:{1024 * i} {nt('k')} lds")

    if "pes" in OPT:
        a(f"s_setprio {optval('pe', 0)}")
    if "fp" not in OPT:
        a("s_waitcnt vmcnt(0)")
        emit_token_take(a, 186, VZ)
        emit_publish(a, FL_K, 220, VZ, 39 if "fk" in OPT else None)
        ts.stamp(a, 2)
    lnp = a.newlabel("noprev")
    a("s_cmp_lt_u32 s38, 2")
    a(f"s_cbranch_scc1 {lnp}")
    emit_poll(a, 190, 2, 196, sleep=optval("ks", 1))
    ts.stamp(a, 3)
    prev_dma(0)
    prev_dma(1)
    a.label(lnp)
    a("s_setprio 0")
    BF = [16, 24, 32]
    AC2 = 40
    AF, PF = 72, optval('pf', 16)
    VPA, VOA = 191, 192
    a("v_and_b32 v8, 15, v0")
    a("v_lshrrev_b32 v9, 4, v0")
    a("v_lshrrev_b32 v10, 5, v0")
    a("v_lshrrev_b32 v11, 2, v8")
    a("v_lshl_add_u32 v11, v10, 2, v11")
    a("v_lshlrev_b32 v11, 7, v11")
    a("v_and_b32 v12, 1, v9")
    a("v_lshl_add_u32 v11, v12, 5, v11")
    a("v_and_b32 v12, 3, v8")
    a("v_lshl_add_u32 v11, v12, 3, v11")
    a("v_lshrrev_b32 v12, 3, v8")
    a("v_lshl_add_u32 v2, v12, 6, v11")
    a("v_xor_b32 v12, 1, v12")
    a("v_lshl_add_u32 v3, v12, 6, v11")
    a("v_add_u32 v4, 0x10000, v2")
    a("v_add_u32 v5, 0x10000, v3")
    a(f"v_add_u32 v6, {L_R0}, v2")
    a(f"v_add_u32 v7, {L_R0}, v3")
    a("v_mov_b32 v12, s86")
    a("v_bfe_u32 v13, v0, 1, 4")
    emit_wg_of(a, VPA, 12, 13, 15)
    a("v_and_b32 v12, 1, v0")
    a(f"v_lshl_add_u32 v{VPA}, v12, 4, v{VPA}")
    a("s_lshr_b32 s80, s32, 1")
    a("s_and_b32 s81, s32, 1")
    a("s_lshl_b32 s81, s81, 2")
    a("s_add_u32 s80, s80, s81")
    a("s_lshl_b32 s80, s80, 3")
    a(f"s_add_u32 s80, s80, 0x{WS_FL + FL_O * 32768:x}")
    a(f"v_add_u32 v{VPA}, s80, v{VPA}")
    a("s_lshl_b32 s82, s86, 2")
    a("s_add_u32 s82, s82, s32")
    a("v_and_b32 v8, 31, v0")
    a("s_lshl_b32 s80, s82, 5")
    a("v_add_u32 v8, s80, v8")
    a("v_lshlrev_b32 v8, 12, v8")
    a(f"v_lshl_add_u32 v{VOA}, v10, 4, v8")
    a("s_lshl_b32 s56, s42, 7")
    a("s_add_u32 s56, s56, 2048")
    a("s_lshl_b32 s82, s82, 16")
    a(f"s_add_u32 s82, s82, 0x{WS_OF:x}")
    for p in range(8):
        a(f"s_add_u32 s81, s43, {p}")
        a("s_and_b32 s81, s81, 7")
        a("s_lshl_b32 s81, s81, 13")
        a(f"s_add_u32 s{48 + p}, s82, s81")
    hk = {"blk": wo_early()}
    if optval("qk", 0):
        hk["blk"][optval("qk", 0)] = hk["blk"].get(optval("qk", 0), []) + [tlq]
    else:
        hk["mid"] = lambda: a(tlq)
    a("s_waitcnt vmcnt(0)")
    ts.stamp(a, 5)
    a("s_waitcnt lgkmcnt(0)")
    a("s_barrier")
    ts.stamp(a, 4)
    hk["blk"][7] = blk7_flag() + hk["blk"].get(7, [])
    if optval("wt", 0):
        hk["blk"][optval("wt", 0)] = hk["blk"].get(optval("wt", 0), []) + [f"buffer_load_dword v156, v198, {S(SWO)}, 0 offen"]
    hk["prio"] = prio_plan("M")
    emit_attention(a, ool, hk, MASKS_M, "M")
    ts.stamp(a, 6)
    wo_late(a, ts, 0, False)
    if optval('od', 0):
        a(f"s_sleep {optval('od', 0)}")
    poll_issue(a, VPA, 12)
    a("s_waitcnt vmcnt(1)")
    lds_flag_set(a, 32, 0, 16)
    ts.stamp(a, 8)
    emit_poll(a, VPA, 32, 12, pre=True, sleep=optval("os", 0))
    ts.stamp(a, 9)

    def aload(ks):
        out = []
        if ks % 8 == 4:
            out.append(f"s_add_u32 s{48 + (ks >> 3)}, s{48 + (ks >> 3)}, 4096")
        out.append(f"buffer_load_dwordx4 {vr(AF + 4 * (ks % PF), 4)}, v1, {S(SWS)}, s{48 + (ks >> 3)} offen offset:{(ks & 3) * 1024} {scl()}")
        return out

    def breads(ks, buf):
        f = BF[buf]
        o = WLOC[ks]
        base, o = (6, o - L_R0) if o >= L_R0 else (4, o - 65536) if o >= 65536 else (2, o)
        out = []
        for ct in range(2):
            out.append(f"ds_read_b64_tr_b16 {vr(f + 4 * ct, 2)}, v{base + ct} offset:{o}")
            out.append(f"ds_read_b64_tr_b16 {vr(f + 4 * ct + 2, 2)}, v{base + ct} offset:{o + 1024}")
        return out

    for ks in range(PF):
        for x in aload(ks):
            a(x)
    emit_lds_wait(a, VLF, 0, 16)
    emit_lds_wait(a, VLF, 16, 16)
    for x in breads(0, 0) + breads(1, 1):
        a(x)
    for ks in range(64):
        f = BF[ks % 3]
        issued = min(63, ks + PF - 1)
        a(f"s_waitcnt vmcnt({issued - ks}) lgkmcnt({4 if ks < 63 else 0})")
        af = vr(AF + 4 * (ks % PF), 4)
        nxt = breads(ks + 2, (ks + 2) % 3) if ks + 2 < 64 else []
        d0, d1 = vr(AC2, 16), vr(AC2 + 16, 16)
        a(f"v_mfma_f32_32x32x16_bf16 {d0}, {vr(f, 4)}, {af}, {'0' if ks == 0 else d0}")
        for x in nxt:
            a(x)
        a(f"v_mfma_f32_32x32x16_bf16 {d1}, {vr(f + 4, 4)}, {af}, {'0' if ks == 0 else d1}")
        if ks + PF < 64:
            for x in aload(ks + PF):
                a(x)
    ts.stamp(a, 28)
    a("s_nop 7")
    a("s_nop 7")
    for ct in range(2):
        b = AC2 + 16 * ct
        for j in range(8):
            a(f"v_cvt_pk_bf16_f32 v{b + j}, v{b + 2 * j}, v{b + 2 * j + 1}")
        a("s_nop 1")
        for jj in range(2):
            a(f"v_permlane32_swap_b32 v{b + 4 * jj}, v{b + 4 * jj + 2}")
            a(f"v_permlane32_swap_b32 v{b + 4 * jj + 1}, v{b + 4 * jj + 3}")
        for jj in range(2):
            a(f"buffer_store_dwordx4 {vr(b + 4 * jj, 4)}, v{VOA}, {S(SOUT)}, s56 offen offset:{ct * 64 + jj * 32}{' sc1' if 'ob' in OPT else ''}{' nt' if 'nb' in OPT else ''}")
    ts.final(a, 10)
    a("s_endpgm")


def h_path(a, ts, ool):
    a(f"s_setprio {optval('hp', 3)}")
    XO, WO = 2, 6
    a("v_lshrrev_b32 v12, 3, v0")
    a("v_and_b32 v13, 7, v0")
    a("s_lshl_b32 s45, s33, 7")
    a("s_lshl_b32 s46, s44, 5")
    a("s_add_u32 s45, s45, s46")
    a("v_lshrrev_b32 v14, 4, v0")
    a("v_xor_b32 v14, v14, v13")
    a("v_add_u32 v15, s45, v12")
    a("v_lshlrev_b32 v15, 11, v15")
    a(f"v_lshl_add_u32 v{XO}, v14, 4, v15")
    a(f"v_xor_b32 v{XO + 1}, 64, v{XO}")
    a(f"v_add_u32 v{XO + 1}, {16384 - 1024}, v{XO + 1}")
    a(f"v_add_u32 v{XO + 2}, {2 * (16384 - 1024)}, v{XO}")
    a(f"v_add_u32 v{XO + 3}, {2 * (16384 - 1024)}, v{XO + 1}")
    a("s_lshl_b32 s45, s44, 12")
    main_a = a
    if "fs" in OPT:
        a = Asm()
    a("s_mul_i32 s48, s44, 98304")
    a("s_lshl_b32 s46, s34, 7")
    a("s_add_u32 s48, s48, s46")
    if "wl" in OPT:
        a("v_lshrrev_b32 v14, 2, v0")
        a("v_and_b32 v14, 4, v14")
        a("v_xor_b32 v14, v14, v13")
        a("v_mul_u32_u24 v15, 6144, v12")
        a("v_lshl_add_u32 v15, v14, 4, v15")
        a(f"v_add_u32 v{WO}, s48, v15")
        a(f"v_add_u32 v{WO + 1}, 48128, v{WO}")
    for i in range(3 if "wl" not in OPT else 0):
        if i:
            a(f"v_add_u32 v14, {64 * i}, v0")
        src = "v14" if i else "v0"
        a(f"v_mul_u32_u24 v15, 2731, {src}")
        a("v_lshrrev_b32 v15, 16, v15")
        a("v_mul_u32_u24 v16, 24, v15")
        a(f"v_sub_u32 v16, {src}, v16")
        a("v_bfe_u32 v18, v15, 1, 1")
        a("v_lshlrev_b32 v18, 2, v18")
        a("v_xor_b32 v16, v16, v18")
        a("v_lshrrev_b32 v18, 3, v16")
        a("v_and_b32 v16, 7, v16")
        a("v_mul_u32_u24 v15, 6144, v15")
        a("v_lshl_add_u32 v15, v18, 11, v15")
        a("v_lshl_add_u32 v15, v16, 4, v15")
        for ii in (i, i + 3):
            il = ii if ii < 4 else ii - 4
            a(f"s_add_u32 s49, s48, {(8 * 6144 if ii >= 3 else 0) - 1024 * il}")
            a(f"v_add_u32 v{WO + ii}, s49, v15")
    a("s_mul_i32 s43, s44, 6144")
    a("s_add_u32 s43, s43, 16384")
    wsetup = [x.strip() for x in a.L] if "fs" in OPT else []
    a = main_a
    order = []

    RG = optval("rg", 8)

    def pace(t):
        if t >= 6 and optval("pc", 0):
            a(f"s_nop {optval('pc', 0) - 1}")
            if optval("pc2", 0):
                a(f"s_nop {optval('pc2', 0) - 1}")

    def tile_index(t):
        if "hot" in OPT:
            a(f"s_mov_b32 s42, {t & 1}")
            return
        if RG <= 1:
            a(f"s_mov_b32 s42, {t}")
            return
        if SG:
            a(f"s_bfe_u32 s42, s{54 + (t >> 3)}, 0x{0x40000 + 4 * (t & 7):x}")
            return
        if "f0" in OPT:
            if t == 0:
                a("s_mov_b32 s42, 15")
            elif t <= 8:
                a(f"s_add_u32 s42, s56, {t - 1}")
                a("s_and_b32 s42, s42, 7")
            else:
                a("s_and_b32 s42, s56, 7")
                a("s_min_u32 s42, s42, 6")
                a(f"s_add_u32 s42, s42, {t - 9}")
                a("s_cmp_ge_u32 s42, 7")
                a("s_cselect_b32 s49, 1, 8")
                a("s_add_u32 s42, s42, s49")
            return
        GR = [o[2:] for o in OPT if o.startswith("gr")]
        if GR:
            g0 = 0
            for c in GR[0]:
                if t < g0 + int(c):
                    break
                g0 += int(c)
            a(f"s_add_u32 s42, s56, {t}")
            a(f"s_and_b32 s42, s42, {int(c) - 1}")
            if g0:
                a(f"s_add_u32 s42, s42, {g0}")
            return
        a(f"s_add_u32 s42, s56, {t}")
        a(f"s_and_b32 s42, s42, {RG - 1}")
        if t >= RG:
            a(f"s_add_u32 s42, s42, {t // RG * RG}")

    SG = optval("sg", 0)
    if SG:
        a("s_lshr_b32 s56, s35, 3")
        a("s_add_u32 s56, s56, s35")
        a("s_and_b32 s56, s56, 3")
        for c in range(4):
            seq = sorted(range(16), key=lambda x: (x - SG - 0.5) if (x & 3) == c else x)
            w = [sum(seq[8 * h + i] << (4 * i) for i in range(8)) for h in range(2)]
            if c == 0:
                a(f"s_mov_b32 s54, 0x{w[0]:x}")
                a(f"s_mov_b32 s55, 0x{w[1]:x}")
            else:
                a(f"s_cmp_eq_u32 s56, {c}")
                a(f"s_cselect_b32 s54, 0x{w[0]:x}, s54")
                a(f"s_cselect_b32 s55, 0x{w[1]:x}, s55")
    a("s_lshr_b32 s56, s35, 3")
    a(f"s_mul_i32 s56, s56, {optval('rb', 2)}")
    if optval("ra", 0):
        a(f"s_bfe_u32 s49, s35, 0x{((3 - optval('ra', 0)) << 16) + optval('ra', 0):x}")
        a("s_add_u32 s56, s56, s49")
    else:
        a("s_add_u32 s56, s56, s35")
    if optval("rx", 0):
        a(f"s_mul_i32 s49, s3, {optval('rx', 0)}")
        a("s_add_u32 s56, s56, s49")
    if optval("ry", 0):
        a("s_lshr_b32 s49, s3, 1")
        a(f"s_mul_i32 s49, s49, {optval('ry', 0)}")
        a("s_add_u32 s56, s56, s49")
    if RG == 16:
        a("s_lshl_b32 s56, s56, 1")

    def issue_x(t):
        if "nodma" in OPT and t >= 3:
            order.append(f"x{t}")
            return
        a(f"s_add_u32 m0, s45, {slot(t) * 40960}")
        tile_index(t)
        a("s_lshl_b32 s42, s42, 7")
        for i in range(4):
            a(f"buffer_load_dwordx4 v{XO + i}, {S(SX)}, s42 offen offset:{1024 * i} {nt('x') if t % RG == RG - 1 else ''} lds")
            pace(t)
        order.append(f"X{t}")

    def issue_w(t):
        if "nodma" in OPT and t >= 3:
            order.append(f"x{t}")
            return
        while wsetup:
            a(wsetup.pop(0))
        st = slot(t)
        a(f"s_add_u32 m0, s43, {st * 40960}")
        tile_index(t)
        a("s_mul_i32 s42, s42, 393216")
        if "wl" in OPT:
            for i in range(6):
                if i == 4:
                    a(f"s_add_u32 m0, s43, {st * 40960 + 4096}")
                    a("s_add_u32 s42, s42, 4096")
                a(f"buffer_load_dwordx4 v{WO + (i & 1)}, {S(SW)}, s42 offen offset:{1024 * (i & 3)} lds")
            order.append(f"W{t}")
            return
        for i in range(4):
            a(f"buffer_load_dwordx4 v{WO + i}, {S(SW)}, s42 offen offset:{1024 * i} {nt('x') if t % RG == RG - 1 else ''} lds")
            pace(t)
        a(f"s_add_u32 m0, s43, {st * 40960 + 4096}")
        a("s_nop 0")
        for i in range(4, 6):
            a(f"buffer_load_dwordx4 v{WO + i}, {S(SW)}, s42 offen offset:{1024 * (i - 4)} {nt('x') if t % RG == RG - 1 else ''} lds")
        order.append(f"W{t}")

    RQ = [list(range(28, 68, 4)), list(range(68, 108, 4)),
          list(range(108, 124, 4)) + list(range(200, 216, 4)) + [220, 224]]
    parked = {}

    def park(t, part):
        if t not in parked:
            parked[t] = next(b for b in range(3) if b not in parked.values())
        q = RQ[parked[t]]
        tile_index(t)
        if part == "X":
            a("s_lshl_b32 s42, s42, 7")
            for i in range(4):
                a(f"buffer_load_dwordx4 {vr(q[i], 4)}, v{XO + i}, {S(SX)}, s42 offen offset:{1024 * i}")
        else:
            a("s_mul_i32 s42, s42, 393216")
            for i in range(6):
                a(f"buffer_load_dwordx4 {vr(q[4 + i], 4)}, v{WO + i}, {S(SW)}, s42 offen offset:{1024 * (i & 3)}")
        order.append(f"{part}{t}")

    def unpark(t):
        wait_tile(t)
        q = RQ[parked[t]]
        a(f"s_add_u32 s42, s45, {slot(t) * 40960}")
        a("v_add_u32 v170, s42, v1")
        a(f"s_add_u32 s42, s43, {slot(t) * 40960}")
        a("v_add_u32 v171, s42, v1")
        for i in range(10):
            a(f"ds_write_b128 v{170 + (i >= 4)}, {vr(q[i], 4)} offset:{1024 * (i if i < 4 else i - 4)}")
        parked[t] = -1

    def vm(x):
        a(x)
        if x.startswith("buffer"):
            order.append("P")

    def cnt(lst):
        return sum({"X": 4, "W": 6, "P": 1, "L": 0, "U": 0, "x": 0, "R": 1, "E": 0, "a": 0}[x[0]] for x in lst)

    def wait_tile(b):
        if "nodma" in OPT and b >= 3:
            return
        last = max(i for i, x in enumerate(order) if x in (f"X{b}", f"W{b}"))
        assert f"X{b}" in order and f"W{b}" in order
        n = cnt(order[last + 1:])
        assert n < 64
        a(f"s_waitcnt vmcnt({n})")

    def later():
        a("s_lshl_b32 s80, s84, 2")
        a("s_add_u32 s80, s80, s44")
        a("s_lshl_b32 s80, s80, 11")
        a("v_lshlrev_b32 v179, 5, v0")
        a("v_add_u32 v179, s80, v179")
        a("s_lshl_b32 s87, s84, 2")
        a("s_add_u32 s87, s87, s44")
        a("s_lshl_b32 s87, s87, 12")
        a(f"s_buffer_load_dword s57, {S(SHK)}, s87")
        a(f"s_mul_i32 s88, s44, {URO}")
        a(f"s_add_u32 s88, s88, {L_R0 + 4 * (CW - URO)}")
        a(f"s_mul_i32 s86, s44, {CW - URO}")
        a(f"s_add_u32 s86, s86, {L_R0 - URO}")
        a("s_lshl_b32 s80, s35, 2")
        a("s_add_u32 s80, s80, s44")
        a("s_lshl_b32 s80, s80, 6")
        a("v_add_u32 v20, s80, v0")
        a("v_lshrrev_b32 v241, 3, v20")
        a("v_lshlrev_b32 v241, 11, v241")
        a("v_and_b32 v20, 7, v20")
        a("v_lshl_add_u32 v241, v20, 7, v241")
        a("s_lshr_b32 s80, s3, 2")
        a("s_lshl_b32 s80, s80, 10")
        a("v_add_u32 v241, s80, v241")
        a("s_lshl_b32 s80, s35, 6")
        a("s_lshl_b32 s81, s44, 4")
        a("s_add_u32 s80, s80, s81")
        a("v_lshrrev_b32 v20, 1, v0")
        a("v_add_u32 v20, s80, v20")
        a("v_lshlrev_b32 v20, 11, v20")
        a("v_and_b32 v21, 1, v0")
        a("v_lshl_add_u32 v20, v21, 7, v20")
        a("s_lshl_b32 s80, s3, 8")
        a("v_add_u32 v20, s80, v20")
        a("v_lshlrev_b32 v21, 7, v0")
        a("v_cmp_gt_u32 vcc, 32, v0")
        a("s_nop 1")
        a("v_cndmask_b32 v242, v240, v20, vcc")
        a("v_cndmask_b32 v243, v240, v21, vcc")
        a("v_lshrrev_b32 v20, 3, v0")
        a("v_and_b32 v21, 7, v0")
        a("s_lshl_b32 s80, s35, 6")
        a("s_lshl_b32 s81, s3, 2")
        a("s_add_u32 s81, s81, s44")
        a("s_lshl_b32 s81, s81, 5")
        a("v_lshlrev_b32 v22, 3, v20")
        a("v_add_u32 v22, s80, v22")
        a("v_lshlrev_b32 v23, 2, v21")
        a("v_add_u32 v23, s81, v23")
        a(f"v_lshlrev_b32 v{PA}, 12, v23")
        a(f"v_lshl_add_u32 v{PA}, v22, 1, v{PA}")
        a(f"v_lshlrev_b32 v{PA + 1}, 11, v22")
        a(f"v_lshl_add_u32 v{PA + 1}, v23, 1, v{PA + 1}")
        a(f"v_lshlrev_b32 v{PA + 2}, 12, v22")
        a(f"v_lshl_add_u32 v{PA + 2}, v23, 1, v{PA + 2}")
        a("v_bfe_u32 v20, v0, 2, 3")
        a("s_lshl_b32 s80, s44, 3")
        a("v_add_u32 v20, s80, v20")
        a("v_lshlrev_b32 v20, 3, v20")
        a("v_add_u32 v20, s3, v20")
        a("v_lshlrev_b32 v20, 7, v20")
        a("v_and_b32 v21, 3, v0")
        a("v_lshl_add_u32 v20, v21, 3, v20")
        a(f"v_add_u32 v{PA + 3}, 0x{WS_FL + FL_Y2 * 32768 + 32:x}, v20")
        a("s_and_b32 s40, s44, 1")
        a("s_lshr_b32 s41, s44, 1")
        a("s_waitcnt lgkmcnt(0)")
        a("s_lshl_b32 s80, s44, 4")
        a("s_lshr_b64 s[38:39], s[76:77], s80")
        a("s_lshl_b32 s39, s38, 16")
        a("s_lshl_b32 s57, s57, 16")
        a("s_lshl_b32 s40, s40, 1")
        a("s_add_u32 s40, s40, 1")
        a("v_and_b32 v192, 31, v0")
        a("v_lshlrev_b32 v192, 3, v192")
        a("v_add_u32 v192, s3, v192")
        a("v_lshlrev_b32 v192, 7, v192")
        a("s_lshr_b32 s80, s35, 3")
        a("s_lshl_b32 s80, s80, 3")
        a(f"s_add_u32 s80, s80, 0x{WS_FL + FL_UR * 32768 + 32:x}")
        a("v_add_u32 v192, s80, v192")
        a("s_lshl_b32 s80, s44, 11")
        a(f"s_add_u32 s80, s80, {L_QH}")
        a("v_add_u32 v193, s80, v1")
        a("v_lshlrev_b32 v180, 3, v0")
        a("v_add_u32 v180, s86, v180")
        a("v_and_b32 v181, 1, v0")
        a(f"v_mul_u32_u24 v181, {CPY}, v181")
        a("v_bfe_u32 v182, v0, 1, 1")
        a("v_lshl_add_u32 v181, v182, 4, v181")
        a("v_add_u32 v181, s88, v181")
        a("v_mov_b32 v182, s88")
        a("v_mov_b32 v183, s57")
        for i in range(4):
            a(f"v_mov_b32 v{184 + i}, 0")

    p_setup, p_loads, p_comp, p_stores = p1_lists()
    if "nop1" in OPT:
        p_loads, p_comp, p_stores = p_loads[:1], [], []

    main_a = a
    a = Asm()
    for y in p_setup:
        a(y)
    later()
    setup2 = [x.strip() for x in a.L]
    a = main_a

    gl = list(range(32))

    def act(x):
        k, arg = x[0], x[1:]
        if k == "X":
            issue_x(int(arg))
        elif k == "W":
            issue_w(int(arg))
        elif k == "T":
            issue_x(int(arg)); issue_w(int(arg))
        elif k == "Y":
            park(int(arg), "X"); park(int(arg), "W")
        elif k == "Z":
            unpark(int(arg))
        elif k == "F":
            t0, n = map(int, arg.split("_"))
            emit_touch_fine(a, 234, 235, 228, t0)
            for y in touch(t0, n, 234, 235, 246):
                vm(y)
        elif k == "C":
            t = int(arg)
            a(f"s_cmp_eq_u32 s58, {t & 3}")
            a("s_cselect_b64 vcc, -1, 0")
            a(f"s_mov_b32 s82, {t * 128}")
            a(f"s_mov_b32 s83, {t * 393216}")
            a("v_cndmask_b32 v238, v240, v245, vcc")
            a("v_cndmask_b32 v239, v240, v244, vcc")
            vm(f"buffer_load_dword v246, v238, {S(SW)}, s83 offen")
            vm(f"buffer_load_dword v247, v239, {S(SX)}, s82 offen")
        elif k == "K":
            r = 242
            if arg:
                a(f"s_cmp_eq_u32 s58, {arg}")
                a("s_cselect_b64 vcc, -1, 0")
                a("s_nop 0")
                a("v_cndmask_b32 v237, v240, v242, vcc"); r = 237
            vm(f"buffer_load_dword v248, v{r}, {S(SK)}, 0 offen")
            vm(f"buffer_load_dword v249, v{r}, {S(SV)}, 0 offen")
        elif k == "P":
            for _ in range(int(arg)):
                if p_loads:
                    vm(p_loads.pop(0))
            if not p_loads:
                order.append("L")
        elif k == "V":
            assert all(v < 0 for v in parked.values())
            if "L" in order:
                a(f"s_waitcnt vmcnt({cnt(order[order.index('L') + 1:])})")
                order.remove("L")
            for _ in range(int(arg)):
                if p_comp:
                    a(p_comp.pop(0))
        elif k == "S":
            assert not p_comp and not p_loads
            for y in p_stores:
                vm(y)
            order.append("U")
        elif k == "U":
            a(f"s_waitcnt vmcnt({cnt(order[order.index('U') + 1:])})")
            emit_token_take(a, 172, VZ)
            emit_publish(a, FL_UR, 194, VZ)
            order.append("P")
        elif k == "A":
            emit_attn_setup(a, MASKS_H)
        elif k == "R":
            poll_issue(a, 192, 198)
            order.append("R")
        elif k == "o":
            vm(f"buffer_load_dword v178, v179, {S(SWO)}, 0 offen")
        elif k == "Q":
            vm(f"buffer_load_dword v246, v242, {S(SQ)}, 0 offen")
        elif k == "G":
            vm(f"buffer_load_dword v246, v243, {S(SHK)}, s87 offen")
        elif k == "O":
            vm(f"buffer_load_dword v247, v241, {S(SWO)}, 0 offen")
        elif k == "t":
            vm(f"buffer_load_dwordx2 v[172:173], v{VZ}, {S(SDBG)}, 0 offen{SC}")
        elif k == "a":
            ptr_loads(a)
            order.append("a")
        elif k == "b":
            if "fs" in OPT:
                if "a" not in order:
                    ptr_loads(a)
                a("s_waitcnt lgkmcnt(0)")
            late_setup(a, ts)
            if ts.on:
                order.append("P")
            a("v_mov_b32 v240, 0x80000000")
            a("s_and_b32 s58, s35, 3")
        elif k == "c":
            for _ in range(int(arg)):
                if setup2:
                    a(setup2.pop(0))
        elif k == "H":
            a("ds_write_b128 v181, v[184:187]")
            a(f"ds_write_b32 v182, v183 offset:{CPY + 28}")
            for c in range(2):
                a(f"s_add_u32 m0, s88, {32 + c * CPY}")
                a(f"s_add_u32 s80, s87, {2 * c}")
                for kk in range(4):
                    vm(f"buffer_load_dwordx4 v1, {S(SHK)}, s80 offen offset:{1024 * kk} {nt('h') if c else ''} lds")
        elif k in "DE":
            ls = a.newlabel("urskip")
            if "E" not in order:
                a(f"ds_write_b64 v180, v[184:185] offset:{URO + 4096}")
            if k == "E":
                a(f"s_waitcnt vmcnt({cnt(order[order.index('R') + 1:])})")
                a("v_cmp_eq_u64 vcc, s[78:79], v[198:199]")
                a("s_mov_b32 s38, 0")
                a("s_nop 0")
                a("s_cmp_eq_u32 vcc_lo, -1")
                a(f"s_cbranch_scc0 {ls}")
                a("s_mov_b32 s38, 1")
                order.append("E")
            else:
                if "E" in order:
                    a("s_cmp_eq_u32 s38, 1")
                    a(f"s_cbranch_scc1 {ls}")
                emit_poll(a, 192, 32, 198, pre=True)
                ts.stamp(a, 2)
            a(f"s_add_u32 m0, s86, {URO}")
            a(f"s_add_u32 s80, s87, 0x{WS_UR:x}")
            for kk in range(4):
                a(f"buffer_load_dwordx4 v1, {S(SWS)}, s80 offen offset:{1024 * kk} {nt('u')} lds")
            a.label(ls)
        else:
            raise ValueError(x)

    sc = os.environ.get("SCHED") or SCHEDS[optval("sc", 0)]
    sched = sc.split("|")
    assert len(sched) == 18, len(sched)
    if "tse" in OPT and ts.enabled:
        a("s_memrealtime s[92:93]")
    if "wn" in OPT:
        while wsetup:
            a(wsetup.pop(0))
    a("s_waitcnt lgkmcnt(0)")
    if "tse" in OPT and ts.enabled:
        a("v_writelane_b32 v254, s92, 29")
        ts.stamp(a, 0)
    for x in sched[0].split():
        act(x)
        if "tse" in OPT and x == "X1":
            ts.stamp(a, 9)
        if "tse" in OPT and x[0] == "c":
            ts.stamp(a, 2)
    for b in range(0, 17):
        if b not in skipped():
            real, nb = b, b
            while nb + 1 in skipped():
                nb += 1
            if b in parked:
                assert parked[b] < 0
                a("s_waitcnt lgkmcnt(0)")
            elif b < 16:
                wait_tile(max(range(b, nb + 1), key=lambda t: max(order.index(f"X{t}"), order.index(f"W{t}"))))
            if "tse" in OPT and b == 0:
                ts.stamp(a, 28)
            a("s_barrier")
        if "tsb" in OPT:
            ts.stamp(a, 11 + b)
        for x in sched[b + 1].split():
            if x[0] in "XWTZ":
                assert int(x[1:]) <= real + 3
            act(x)
    ts.stamp(a, 1)
    assert not setup2
    a("s_mov_b32 s46, s88")
    a(f"s_add_u32 s36, s87, 0x{wsy2():x}")

    def c_start():
        if optval("pv", -1) >= 0:
            a(f"s_setprio {optval('pv', 0)}")
        a("s_waitcnt vmcnt(0)")
        ts.stamp(a, 3)

    b = Asm()
    emit_attn_setup(b, MASKS_H)
    g2_tile(b)
    wo_addr(b)
    ys = emit_conv(a, {"start": c_start, "extra": [x.strip() for x in b.L], "bar": lambda: a("s_barrier")})
    ts.stamp(a, 5)
    a("s_setprio 0")
    if "eb" not in OPT:
        a("s_barrier")
    ts.stamp(a, 4)
    a(f"ds_read_b128 {vr(QC, 4)}, v193")
    a(f"ds_read_b128 {vr(QC + 4, 4)}, v193 offset:1024")
    for x in ys:
        a(x)
    YY, OO = 168, 24
    if optval("ph", 0):
        a(f"s_setprio {optval('ph', 0)}")
    blk = wo_early()
    b = Asm()
    b("s_waitcnt vmcnt(0)")
    emit_publish(b, FL_Y2, 194, VZ)
    yb = optval("yb", 2)
    blk[yb] = [x.strip() for x in b.L] + blk.get(yb, [])
    hk = {"blk": blk}
    blk[7] = blk7_flag() + blk.get(7, [])
    hk["prio"] = prio_plan("H")
    YE = optval("ye", 0)
    b = Asm()
    for i in range(8):
        if i % 2 == 0:
            b(f"s_mov_b32 s80, {4096 * (i >> 1)}")
        b(f"buffer_load_dwordx2 {vr(QQ + 2 * i, 2)}, v{PA + 1}, {S(SQ)}, s80 offen offset:{(i & 1) * 2048}")
    ql = [x.strip() for x in b.L]
    b = Asm()
    poll_issue(b, PA + 3, 196)
    pl = [x.strip() for x in b.L]
    if YE:
        blk[optval("qe", YE)] = blk.get(optval("qe", YE), []) + ql
        blk[YE] = blk.get(YE, []) + pl
    emit_attention(a, ool, hk, MASKS_H, "H")
    ts.stamp(a, 6)
    if not YE:
        for x in ql + pl:
            a(x)

    def y_issue(va):
        a(f"s_mov_b32 s80, 0x{wsy2():x}")
        for dd in range(4):
            a(f"buffer_load_dwordx4 {vr(YY + 4 * dd, 4)}, v{va}, {S(SWS)}, s80 offen {scl()}")
            if dd < 3:
                a("s_add_u32 s80, s80, 4096")

    def y_loads():
        emit_poll(a, PA + 3, 32, 196, pre=True)
        y_issue(PA)

    p3 = Asm()
    a, main_a = p3, a
    for i in range(8):
        for dd in range(4):
            ys = YY + 4 * dd + (i >> 1)
            qs = QQ + 2 * i + (dd >> 1)
            a(f"v_and_b32 v4, 0xffff0000, v{ys}" if i & 1 else f"v_lshlrev_b32 v4, 16, v{ys}")
            a(f"v_and_b32 v5, 0xffff0000, v{qs}" if dd & 1 else f"v_lshlrev_b32 v5, 16, v{qs}")
            a(f"v_mul_f32 v{OO + 4 * i + dd}, v4, v5")
        o = OO + 4 * i
        a(f"v_cvt_pk_bf16_f32 v{o}, v{o}, v{o + 1}")
        a(f"v_cvt_pk_bf16_f32 v{o + 1}, v{o + 2}, v{o + 3}")
    a = main_a
    outs = []
    for i in range(8):
        outs += [f"s_mov_b32 s80, {4096 * i}", f"buffer_store_dwordx2 {vr(OO + 4 * i, 2)}, v{PA + 2}, {S(SOUT)}, s80 offen{' sc1' if 'oa' in OPT else ''}{' nt' if 'na' in OPT else ''}"]

    def gate():
        for x in p3.L:
            a(x.strip())

    if YE:
        ll, lr = a.newlabel("ylate"), a.newlabel("yback")
        a("s_waitcnt vmcnt(2)")
        a("v_cmp_eq_u64 vcc, s[78:79], v[196:197]")
        a("v_mov_b32 v4, 0x80000000")
        a("s_nop 0")
        a("s_cmp_eq_u32 vcc_lo, -1")
        a("s_cselect_b32 s38, 1, 0")
        a("s_cselect_b64 vcc, -1, 0")
        a("s_nop 0")
        a(f"v_cndmask_b32 v4, v4, v{PA}, vcc")
        y_issue(4)
        wo_late(a, ts, 4, True)
        a("s_cmp_eq_u32 s38, 0")
        a(f"s_cbranch_scc1 {ll}")
        a(f"s_waitcnt vmcnt({NLATE + (1 if optval('es', 0) == 1 else 0)})")
        a.label(lr)
        main_a, sub = a, Asm()
        sub.uid = main_a.uid + 1000
        a = sub
        a("s_waitcnt vmcnt(0)")
        lds_flag_set(a, 32, 0, 4)
        for x in pl:
            a(x)
        y_loads()
        a("s_waitcnt vmcnt(0)")
        main_a.uid = sub.uid
        a = main_a
        ool.append((ll, [x.strip() for x in sub.L], lr))
        gate()
        a("s_waitcnt vmcnt(0)")
        lds_flag_set(a, 32, 0, 4)
        ts.stamp(a, 8)
        if optval("ad", 0):
            a(f"s_sleep {optval('ad', 0)}")
        for x in outs:
            a(x)
    else:
        raise ValueError("ye required")
    if optval("wb", 0):
        lw = a.newlabel("nowb")
        a(f"s_and_b32 s80, s35, {optval('wb', 0) - 1}")
        a("s_or_b32 s80, s80, s44")
        a("s_cmp_lg_u32 s80, 0")
        a(f"s_cbranch_scc1 {lw}")
        a("s_waitcnt vmcnt(0)")
        a(f"s_sleep {optval('wd', 16)}")
        a("buffer_wbl2 sc1")
        a("s_waitcnt vmcnt(0)")
        a.label(lw)
    ts.final(a, 10)
    a("s_endpgm")


def ptr_loads(a, helper=True):
    for (d, off, size) in SRDS[2:]:
        if helper or d not in (SK, SV, SSH, SHK):
            a(f"s_load_dwordx2 s[{d}:{d + 1}], s[0:1], {off}")
    if helper:
        a("s_load_dwordx2 s[36:37], s[0:1], 40")


def gen_fused(a, ts):
    name = NAME + "_kernel"
    kernel_begin(a, name)
    ts.entry(a)
    a("s_cmp_ge_u32 s2, 256")
    a("s_cbranch_scc1 L_end")
    if optval("xj", 0):
        a(f"s_xor_b32 s2, s2, {optval('xj', 0)}")
    for (d, off, size) in SRDS[:2]:
        a(f"s_load_dwordx2 s[{d}:{d + 1}], s[0:1], {off}")
    if "fs" not in OPT:
        ptr_loads(a)
    a("v_lshrrev_b32 v1, 6, v0")
    if "hf" in OPT:
        a("v_xor_b32 v1, 4, v1")
    a("v_and_b32 v0, 63, v0")
    a("s_and_b32 s3, s2, 7")
    a("v_readfirstlane_b32 s32, v1")
    a("s_lshr_b32 s35, s2, 3")
    a("s_and_b32 s33, s3, 1")
    a("s_lshl_b32 s33, s33, 3")
    a("s_and_b32 s80, s35, 7")
    a("s_add_u32 s33, s33, s80")
    a("s_lshr_b32 s34, s3, 1")
    a("s_lshl_b32 s34, s34, 2")
    a("s_lshr_b32 s80, s35, 3")
    a("s_add_u32 s34, s34, s80")
    if optval("hx", 0):
        a(f"s_xor_b32 s34, s34, {optval('hx', 0)}")
    a("v_lshlrev_b32 v1, 4, v0")
    a(f"v_mov_b32 v{VZ}, 0")
    for (d, off, size) in SRDS[:2]:
        a(f"s_mov_b32 s{d + 2}, 0x{size:x}")
        a(f"s_mov_b32 s{d + 3}, 0x20000")
    a("s_and_b32 s44, s32, 3")
    a("s_mov_b32 s59, 0")
    a("s_cmp_lt_u32 s32, 4")
    a("s_cbranch_scc1 L_M")
    ool = []
    h_path(a, ts, ool)
    a.label("L_M")
    if "fs" in OPT:
        ptr_loads(a, False)
    m_path(a, ts, ool)
    for (lf, body, lb) in ool:
        a.label(lf)
        for x in body:
            a(x)
        a(f"s_branch {lb}")
    a.label("L_end")
    a("s_endpgm")
    emit_exact(a)
    return name, 256, 102


def build(instrument=False):
    if "best" in OPT:
        have = {o.rstrip("0123456789") for o in OPT}
        OPT.update(o for o in BEST.split(",") if o.rstrip("0123456789") not in have and "no" + o not in OPT)
    ts = TS(instrument)
    a = Asm()
    a.raw("; fused H3 long-conv | sliding-window attention kernel (generated)")
    a.raw("; @launch grid=(256,1,1) block=(512,1,1) lds=163840")
    a.raw('.amdgcn_target "amdgcn-amd-amdhsa--gfx950"')
    a.raw(".text")
    n, v, s = gen_fused(a, ts)
    a.raw('.section .rodata,"a"')
    kernel_desc(a, n, v, s)
    return a.text()


if __name__ == "__main__":
    out = sys.argv[1] if len(sys.argv) > 1 else f"cdna_kernels/{NAME}.s"
    if len(sys.argv) > 2:
        OPT.update(sys.argv[2].split(","))
    open(out, "w").write(build())
```

```python
import sys, struct, os, re
from gen import Asm, vr, srd, kernel_begin, kernel_desc, MB, NAME
from gf import f32hex
import gf

OPT = set()
WS_KF, WS_VF, WS_UR, WS_OF, WS_Y2, WS_FL = 4 * MB, 8 * MB, 12 * MB, 16 * MB, 20 * MB, 24 * MB
WS_SIZE = 25 * MB
FL_UR, FL_K, FL_Y2, FL_O, FL_V = 0, 1, 2, 3, 4

CPY, URO, CW = 4160, 8320, 12928
L_HD, L_V = 49152, 24576
L_QH = 98304
L_R0 = 106496
L_FL = L_R0 + 4 * CW
SC = " sc1"
SPIN_LIMIT = 1 << 18
SCALE_LOG2E = (32 ** -0.5) * 1.4426950408889634
SX, SW, SWS, SK, SV, SSH, SHK, SWO, SQ, SOUT, SDBG = 4, 8, 12, 16, 20, 24, 28, 60, 64, 68, 72
MASKS_H = [4, 6, 8, 10, 16, 18, 20, 22, 24, 26, 48, 50, 52, 54, 56, 58]
MASKS_M = [4, 6, 16, 18, 20, 22, 24, 26, 28, 30, 58, 76, 92, 94, 96, 98]


WS_TS = 32 * MB


class TS:
    def __init__(self, on):
        self.enabled = on
        self.on = False

    def entry(self, a):
        if self.enabled:
            a("s_memrealtime s[98:99]")
            a("s_memtime s[100:101]")
            a("v_mov_b32 v254, 0")

    def setup(self, a, ws_pair):
        if self.enabled:
            a("v_writelane_b32 v254, s98, 30")

    def stamp(self, a, slot):
        if self.enabled and ("tsmin" not in OPT or slot == 10):
            a("s_memrealtime s[90:91]")
            a("s_waitcnt lgkmcnt(0)")
            a(f"v_writelane_b32 v254, s90, {slot}")
            if "cya" in OPT and slot < 11:
                a("s_memtime s[90:91]")
                a("s_waitcnt lgkmcnt(0)")
                a(f"v_writelane_b32 v254, s90, {slot + 12}")

    def final(self, a, slot):
        if not self.enabled:
            return
        a("s_waitcnt vmcnt(0)")
        self.stamp(a, slot)
        a("s_memtime s[90:91]")
        srd(a, 92, SWS, 4 * MB, WS_TS)
        a("s_lshl_b32 s96, s2, 4")
        a("s_add_u32 s96, s96, s32")
        a("s_lshl_b32 s96, s96, 8")
        a("s_waitcnt lgkmcnt(0)")
        a("s_sub_u32 s90, s90, s100")
        a("v_writelane_b32 v254, s90, 31")
        a("v_mov_b32 v255, 0")
        a("v_lshlrev_b32 v253, 3, v0")
        a("s_mov_b32 exec_hi, 0")
        a("buffer_store_dwordx2 v[254:255], v253, s[92:95], s96 offen")


def emit_wg_of(a, vdst, vrb, vhp, t):
    if optval("hx", 0):
        a(f"v_xor_b32 v{vhp}, {optval('hx', 0)}, v{vhp}")
    gf.emit_wg_of(a, vdst, vrb, vhp, t)


def S(n):
    return f"s[{n}:{n + 3}]"


SCHEDS = {
    0: "X0 a W0 X1 b c30 W1 | X2 P7 W2 c30 | T3 P7 X4 | W4 T5 P7 c40 | T6 c40 G | T7 c45 t | T8 V90 | T9 V90 | T10 V90 S | T11"
       " | T12 U | T13 | T14 | T15 O | R | H | E | D",
}
BEST = "we3,yb3,cp,cq50,rg4,ry1,ya,ft30,sw14_2,ye7,prM322110000,prH333221101,pe3,pv1,od8,fs,ms233"


def skipped():
    return {int(c, 16) for o in OPT if o.startswith("sk") for c in o[2:]}


def slot(t):
    return (3, 2, 0, 1)[t & 3]


def wsy2():
    return WS_UR if "ya" in OPT else WS_Y2


def nt(k):
    return "nt" if "nt" + k in OPT else ""


def scl():
    return "sc1" if "ldsc1" in OPT else ""


def optval(prefix, default):
    for o in OPT:
        if o.startswith(prefix) and o[len(prefix):].lstrip("-").isdigit():
            return int(o[len(prefix):])
    return default


def poll_issue(a, voff, tmp):
    ps = optval("ps", 0) if (voff == 191 or "psa" in OPT) else 0
    if ps == 4:
        a(f"v_mov_b32 v{tmp}, 0")
        a(f"v_mov_b32 v{tmp + 1}, 0")
        a(f"buffer_atomic_or_x2 {vr(tmp, 2)}, v{voff}, {S(SWS)}, 0 offen sc0 sc1")
        return
    a(f"buffer_load_dwordx2 {vr(tmp, 2)}, v{voff}, {S(SWS)}, 0 offen{[SC, ' sc0 sc1', ' sc1 nt', ' sc0 sc1 nt'][ps]}")


def emit_poll(a, voff, nlanes, tmp, pre=False, sleep=0):
    lp, ck, dn = a.newlabel("poll"), a.newlabel("pollc"), a.newlabel("polld")
    mask = (1 << nlanes) - 1
    a(f"s_mov_b32 s80, 0x{mask & 0xffffffff:x}")
    a(f"s_mov_b32 s81, 0x{mask >> 32:x}")
    a("s_mov_b32 s85, 0")
    if not pre:
        a.label(lp)
        poll_issue(a, voff, tmp)
        a("s_waitcnt vmcnt(0)")
        a(f"v_cmp_eq_u64 vcc, s[78:79], {vr(tmp, 2)}")
        a("s_add_u32 s85, s85, 1")
        a("s_and_b64 s[82:83], vcc, s[80:81]")
        a("s_cmp_eq_u64 s[82:83], s[80:81]")
        a(f"s_cbranch_scc1 {dn}")
        if sleep:
            a(f"s_sleep {sleep}")
        a(f"s_cmp_lt_u32 s85, 0x{SPIN_LIMIT:x}")
        a(f"s_cbranch_scc1 {lp}")
        a.label(dn)
    else:
        a.label(ck)
        a("s_waitcnt vmcnt(0)")
        a(f"v_cmp_eq_u64 vcc, s[78:79], {vr(tmp, 2)}")
        a("s_add_u32 s85, s85, 1")
        a("s_and_b64 s[82:83], vcc, s[80:81]")
        a("s_cmp_eq_u64 s[82:83], s[80:81]")
        a(f"s_cbranch_scc1 {dn}")
        if sleep:
            a(f"s_sleep {sleep}")
        poll_issue(a, voff, tmp)
        a(f"s_cmp_lt_u32 s85, 0x{SPIN_LIMIT:x}")
        a(f"s_cbranch_scc1 {ck}")
        a("s_waitcnt vmcnt(0)")
        a.label(dn)


def emit_publish(a, kind, t0, vz, smode=None, lo=78):
    if kind == FL_O and "fl" in OPT:
        a("s_lshl_b32 s80, s89, 4")
        a(f"s_add_u32 s80, s80, 0x{WS_FL + 0x80000:x}")
    else:
        a(f"s_add_u32 s80, s89, 0x{WS_FL + kind * 32768:x}")
    a(f"v_mov_b32 v{t0}, s{lo}")
    a(f"v_mov_b32 v{t0 + 1}, s79")
    if smode is None:
        a("s_mov_b64 exec, 1")
    else:
        a("s_mov_b32 exec_hi, 0")
        a(f"s_mov_b32 exec_lo, s{smode}")
        a(f"buffer_store_dwordx2 {vr(t0, 2)}, v{vz}, {S(SWS)}, s80 offen")
        a(f"s_xor_b32 exec_lo, s{smode}, 1")
    a(f"buffer_store_dwordx2 {vr(t0, 2)}, v{vz}, {S(SWS)}, s80 offen{SC}")
    a("s_mov_b64 exec, -1")


def emit_token_take(a, t0, vz):
    lp, dn = a.newlabel("tok"), a.newlabel("tokd")
    a("s_mov_b32 s85, 0")
    a.label(lp)
    a(f"v_readfirstlane_b32 s78, v{t0}")
    a(f"v_readfirstlane_b32 s79, v{t0 + 1}")
    a("s_add_u32 s85, s85, 1")
    a("s_cmp_lg_u64 s[78:79], 0")
    a(f"s_cbranch_scc1 {dn}")
    a(f"buffer_load_dwordx2 {vr(t0, 2)}, v{vz}, {S(SDBG)}, 0 offen{SC}")
    a("s_waitcnt vmcnt(0)")
    a(f"s_cmp_lt_u32 s85, 0x{SPIN_LIMIT:x}")
    a(f"s_cbranch_scc1 {lp}")
    a.label(dn)


def emit_wline(a, dst, idx, hi, t):
    a(f"v_mul_u32_u24 v{dst}, 5462, v{idx}")
    a(f"v_lshrrev_b32 v{dst}, 16, v{dst}")
    a(f"v_mul_u32_u24 v{t}, 12, v{dst}")
    a(f"v_sub_u32 v{t}, v{idx}, v{t}")
    if hi is not None:
        a(f"v_lshl_add_u32 v{dst}, v{hi}, 6, v{dst}")
    a(f"v_mul_u32_u24 v{dst}, 6144, v{dst}")
    a(f"v_lshrrev_b32 v{t + 1}, 2, v{t}")
    a(f"v_lshl_add_u32 v{dst}, v{t + 1}, 11, v{dst}")
    a(f"v_and_b32 v{t}, 3, v{t}")
    a(f"v_lshl_add_u32 v{dst}, v{t}, 7, v{dst}")
    a("s_lshr_b32 s83, s3, 1")
    a("s_lshl_b32 s83, s83, 9")
    a(f"v_add_u32 v{dst}, s83, v{dst}")


def emit_touch_fine(a, VTX, VTW, t, t0):
    a(f"v_and_b32 v{t}, 7, v0")
    a(f"v_lshrrev_b32 v{t + 1}, 3, v0")
    a(f"s_add_u32 s82, s59, {t0}")
    a(f"v_add_u32 v{t + 1}, s82, v{t + 1}")
    a(f"v_and_b32 v{t + 1}, 15, v{t + 1}")
    a("s_lshl_b32 s82, s35, 2")
    a("s_add_u32 s82, s82, s44")
    a("s_lshl_b32 s81, s82, 3")
    a("s_and_b32 s83, s3, 1")
    a("s_lshl_b32 s83, s83, 10")
    a("s_add_u32 s81, s81, s83")
    a(f"v_add_u32 v{t + 2}, s81, v{t}")
    a(f"v_lshlrev_b32 v{t + 2}, 11, v{t + 2}")
    a(f"v_lshl_add_u32 v{VTX}, v{t + 1}, 7, v{t + 2}")
    a("s_mul_i32 s82, s82, 6")
    a(f"v_add_u32 v{t + 2}, s82, v{t}")
    emit_wline(a, VTW, t + 2, t + 1, t + 3)
    a(f"v_mov_b32 v{t + 4}, 0x80000000")
    a(f"v_cmp_gt_u32 vcc, 6, v{t}")
    a("s_nop 1")
    a(f"v_cndmask_b32 v{VTW}, v{t + 4}, v{VTW}, vcc")


def emit_touch_coarse(a, VTX, VTW, t):
    a("s_lshr_b32 s82, s35, 2")
    a("s_lshl_b32 s82, s82, 2")
    a("s_add_u32 s82, s82, s44")
    a("s_lshl_b32 s81, s82, 5")
    a("s_and_b32 s83, s3, 1")
    a("s_lshl_b32 s83, s83, 10")
    a("s_add_u32 s81, s81, s83")
    a(f"v_add_u32 v{t + 2}, s81, v0")
    a(f"v_lshlrev_b32 v{VTX}, 11, v{t + 2}")
    a("s_mul_i32 s82, s82, 24")
    a(f"v_add_u32 v{t + 2}, s82, v0")
    emit_wline(a, VTW, t + 2, None, t + 3)
    a(f"v_mov_b32 v{t + 4}, 0x80000000")
    a("v_cmp_gt_u32 vcc, 32, v0")
    a("s_nop 1")
    a(f"v_cndmask_b32 v{VTX}, v{t + 4}, v{VTX}, vcc")
    a("v_cmp_gt_u32 vcc, 24, v0")
    a("s_nop 1")
    a(f"v_cndmask_b32 v{VTW}, v{t + 4}, v{VTW}, vcc")


def touch(t0, nt, VTX, VTW, dst):
    m = (1 << (8 * nt)) - 1
    out = []
    if nt < 8:
        out += [f"s_mov_b32 exec_lo, 0x{m & 0xffffffff:x}", f"s_mov_b32 exec_hi, 0x{m >> 32:x}"]
    out += [f"buffer_load_dword v{dst}, v{VTW}, {S(SW)}, 0 offen",
            f"buffer_load_dword v{dst + 1}, v{VTX}, {S(SX)}, 0 offen"]
    if nt < 8:
        out.append("s_mov_b64 exec, -1")
    return out


QC = 224
SBUF = [8, 24, 40]
KB = [56, 64, 72]
VB = [80, 88, 160]
OA = 96
CM = 200
LS = 128
ONE = 240
PM = 232
P0 = 144
VM, VM2, VT, VNEG, VK, VK0 = 152, 153, 154, 244, 245, 246
YP = 176
QQ, PA = 112, 216


def emit_attn_setup(a0, MASKS, t=4):
    a = lambda x: a0(re.sub(r"\bv([456])\b", lambda m: f"v{int(m.group(1)) - 4 + t}", x))
    a("v_and_b32 v4, 31, v0")
    a("v_lshrrev_b32 v5, 5, v0")
    a("v_lshlrev_b32 v5, 2, v5")
    a("v_sub_u32 v4, v4, v5")
    for r in range(16):
        a(f"v_cmp_le_i32 s[{MASKS[r]}:{MASKS[r] + 1}], {8 * (r >> 2) + (r & 3)}, v4")
    a(f"v_mov_b32 v{VNEG}, 0xf149f2ca")
    a("v_mov_b32 v4, 0xffff")
    a("v_mov_b32 v5, 0xffff0000")
    for j in range(8):
        a(f"v_cndmask_b32 v{PM + j}, 0, v4, s[{MASKS[2 * j]}:{MASKS[2 * j] + 1}]")
        a(f"v_cndmask_b32 v6, 0, v5, s[{MASKS[2 * j + 1]}:{MASKS[2 * j + 1] + 1}]")
        a(f"v_or_b32 v{PM + j}, v{PM + j}, v6")
    a("v_lshrrev_b32 v4, 4, v0")
    a("v_lshrrev_b32 v5, 2, v0")
    a("v_xor_b32 v4, v4, v5")
    a("v_and_b32 v4, 1, v4")
    a("v_cmp_eq_u32 vcc, 0, v4")
    a("v_mov_b32 v5, 0x3f803f80")
    for i in range(4):
        a(f"v_cndmask_b32 v{ONE + i}, 0, v5, vcc")
    a(f"s_mul_i32 s42, s41, {L_HD}")
    a("s_lshl_b32 s43, s40, 11")
    a("s_add_u32 s42, s42, s43")
    a(f"v_add_u32 v{VK}, s42, v1")
    a("s_lshl_b32 s45, s33, 2")
    a("s_add_u32 s45, s45, s40")
    a("s_sub_u32 s46, 8, s45")
    a("s_cmp_lt_u32 s45, 8")
    a("s_cselect_b32 s46, s46, 0")
    a("s_cselect_b32 s43, 0x4000, 0")
    a(f"v_add_u32 v{VK0}, s43, v{VK}")
    a("s_lshl_b32 s47, s45, 5")
    a("s_lshl_b32 s42, s34, 1")
    a("s_add_u32 s47, s47, s42")
    a("s_add_u32 s47, s47, s41")
    a("s_lshl_b32 s47, s47, 11")
    a(f"s_add_u32 s47, s47, 0x{WS_OF:x}")


def prio_plan(role):
    for o in OPT:
        if o.startswith("pr" + role):
            d = o[3:]
            out, last = {}, None
            for k, c in zip([0, 2, 3, 4, 5, 6, 7, 8, 9], d):
                if c != last or k == 9:
                    out[k] = int(c)
                last = c
            return out
    return {}


def emit_attention(a, ool, hooks, MASKS, role):
    order = [8, 0, 7, 6, 5, 4, 3, 2, 1]

    def hook(k):
        if k in hooks:
            hooks[k]()

    def kread(i):
        rel, b = order[i % 9], KB[i % 3]
        return [f"ds_read_b128 {vr(b, 4)}, v{VK} offset:{rel * 2048}",
                f"ds_read_b128 {vr(b + 4, 4)}, v{VK} offset:{rel * 2048 + 1024}"]

    def vread(i):
        rel, b = order[i], VB[i % 3]
        ad = VK0 if rel == 0 else VK
        return [f"ds_read_b128 {vr(b, 4)}, v{ad} offset:{L_V + rel * 2048}",
                f"ds_read_b128 {vr(b + 4, 4)}, v{ad} offset:{L_V + rel * 2048 + 1024}"]

    def smf(i, c):
        s, k = vr(SBUF[i % 3], 16), KB[i % 3]
        return [f"v_mfma_f32_32x32x16_bf16 {s}, {vr(k, 4)}, {vr(QC, 4)}, {c}",
                f"v_mfma_f32_32x32x16_bf16 {s}, {vr(k + 4, 4)}, {vr(QC + 4, 4)}, {s}"]

    def merge():
        lf, lb = a.newlabel("mneg"), a.newlabel("mback")
        a("s_cmp_gt_u32 s46, 0")
        a(f"s_cbranch_scc1 {lf}")
        for r in range(16):
            a(f"v_cndmask_b32 v{SBUF[1] + r}, v{SBUF[1] + r}, v{SBUF[0] + r}, s[{MASKS[r]}:{MASKS[r] + 1}]")
        a.label(lb)
        ool.append((lf, [f"v_cndmask_b32 v{SBUF[1] + r}, v{VNEG}, v{SBUF[0] + r}, s[{MASKS[r]}:{MASKS[r] + 1}]"
                         for r in range(16)], lb))

    def maxblk(i):
        s = SBUF[i % 3]
        ta, tb = (VM, VM2) if i == 1 else (VT, VM2)
        if i >= 2:
            a(f"s_cmp_le_u32 s46, {order[i]}")
            a("s_cselect_b64 vcc, -1, 0")
        a(f"v_max3_f32 v{ta}, v{s}, v{s + 1}, v{s + 2}")
        a(f"v_max3_f32 v{tb}, v{s + 3}, v{s + 4}, v{s + 5}")
        for x in range(5):
            t = (ta, tb)[x & 1]
            a(f"v_max3_f32 v{t}, v{s + 6 + 2 * x}, v{s + 7 + 2 * x}, v{t}")
        a(f"v_max_f32 v{ta}, v{ta}, v{tb}")
        if i >= 2:
            a(f"v_cndmask_b32 v{ta}, v{VNEG}, v{ta}, vcc")
            a(f"v_max_f32 v{VM}, v{VM}, v{ta}")

    if 0 in hooks.get("prio", {}):
        a(f"s_setprio {hooks['prio'][0]}")
    SZ = "sz" in OPT
    for x in kread(0) + kread(1) + kread(2) + vread(0) + vread(1):
        a(x)
    if not SZ:
        a("s_waitcnt lgkmcnt(8)")
        for x in smf(0, "0"):
            a(x)
        a("s_waitcnt lgkmcnt(6)")
        for x in smf(1, "0") + kread(3):
            a(x)
        a("s_nop 7")
        a("s_nop 7")
        merge()
        maxblk(1)
        a(f"v_mov_b32 v{VT}, v{VM}")
        a("s_nop 1")
        a(f"v_permlane32_swap_b32 v{VM}, v{VT}")
        a("s_nop 1")
        a(f"v_max_f32 v{VM}, v{VM}, v{VT}")
        for r in range(16):
            a(f"v_sub_f32 v{CM + r}, 0, v{VM}")
    hook("mid")
    cm, o, ls = ("0" if SZ else vr(CM, 16)), vr(OA, 16), vr(LS, 4)

    def pv(i):
        s = SBUF[i % 3]
        if i == 1:
            return [f"v_mfma_f32_32x32x16_bf16 {o}, {vr(VB[0], 4)}, {vr(s + 8, 4)}, 0",
                    f"v_mfma_f32_16x16x32_bf16 {ls}, {vr(ONE, 4)}, {vr(s, 4)}, 0",
                    f"v_mfma_f32_32x32x16_bf16 {o}, {vr(VB[0] + 4, 4)}, {vr(s + 12, 4)}, {o}",
                    f"v_mfma_f32_16x16x32_bf16 {ls}, {vr(ONE, 4)}, {vr(s + 4, 4)}, {ls}",
                    f"v_mfma_f32_32x32x16_bf16 {o}, {vr(VB[1], 4)}, {vr(P0, 4)}, {o}",
                    f"v_mfma_f32_32x32x16_bf16 {o}, {vr(VB[1] + 4, 4)}, {vr(P0 + 4, 4)}, {o}"]
        v = VB[i % 3]
        return [f"v_mfma_f32_32x32x16_bf16 {o}, {vr(v, 4)}, {vr(s, 4)}, {o}",
                f"v_mfma_f32_16x16x32_bf16 {ls}, {vr(ONE, 4)}, {vr(s, 4)}, {ls}",
                f"v_mfma_f32_32x32x16_bf16 {o}, {vr(v + 4, 4)}, {vr(s + 4, 4)}, {o}",
                f"v_mfma_f32_16x16x32_bf16 {ls}, {vr(ONE, 4)}, {vr(s + 4, 4)}, {ls}"]

    def valu(i):
        s = SBUF[i % 3]
        return [(f"v_exp_f32 v{s + r}, v{s + r}", 8) for r in range(16)] + \
               [(f"v_cvt_pk_bf16_f32 v{s + j}, v{s + 2 * j}, v{s + 2 * j + 1}", 4) for j in range(8)]

    def weave(ms, vs):
        vs = list(vs)
        for m in ms:
            a(m)
            need = (32 if "32x32" in m else 16) - 8
            while vs and need > 0:
                x, c = vs.pop(0)
                a(x)
                need -= c
        for x, c in vs:
            a(x)

    fin = a.newlabel("afin")
    if SZ:
        for i in range(3):
            a(f"s_waitcnt lgkmcnt({8 - 2 * i})")
            for x in smf(i, cm):
                a(x)
        for x in kread(3):
            a(x)
        merge()
    else:
        a("s_waitcnt lgkmcnt(6)")
        for x in smf(2, cm):
            a(x)
        for r in range(16):
            a(f"v_sub_f32 v{SBUF[1] + r}, v{SBUF[1] + r}, v{VM}")
    s = SBUF[1]
    for x, c in valu(1):
        a(x)
    for j in range(8):
        a(f"v_and_b32 v{s + 8 + j}, v{s + j}, v{PM + j}")
    for j in range(8):
        a(f"v_xor_b32 v{P0 + j}, v{s + j}, v{s + 8 + j}")
    blk = hooks.get("blk", {})
    for i in range(2, 9):
        ex = a.newlabel("aexit")
        a("s_waitcnt lgkmcnt(0)")
        a(f"s_cmp_gt_u32 s46, {order[i]}")
        a(f"s_cbranch_scc1 {ex}")
        ool.append((ex, pv(i - 1) + [x for k in range(i, 9) for x in blk.get(k, [])], fin))
        if i in hooks.get("prio", {}):
            a(f"s_setprio {hooks['prio'][i]}")
        for x in blk.get(i, []):
            a(x)
        for x in vread(i) + (kread(i + 2) if i + 2 < 9 else []):
            a(x)
        weave((smf(i + 1, cm) if i + 1 < 9 else []) + pv(i - 1), valu(i))
    a("s_waitcnt lgkmcnt(0)")
    for x in pv(8):
        a(x)
    a.label(fin)
    if 9 in hooks.get("prio", {}):
        a(f"s_setprio {hooks['prio'][9]}")
    hook("end")
    a("s_nop 7")
    a("s_nop 3")
    a(f"v_rcp_f32 v{VT}, v{LS}")
    a(f"v_mul_f32 v{VM2}, 0, v{OA}")
    for r in range(1, 16):
        a(f"v_fmac_f32 v{LS if r & 1 else VM2}, 0, v{OA + r}")
    a(f"v_add_f32 v{VM2}, v{VM2}, v{LS}")
    a(f"v_add_f32 v{VM2}, v{VM2}, v{VT}")
    a(f"v_cmp_gt_f32 vcc, 0x{0x3f800000 + (optval('thr', 30) << 23):x}, v{VM2}")
    a(f"s_mov_b32 s101, {int(role == 'M')}")
    a("s_nop 0")
    a("s_cmp_eq_u64 vcc, -1")
    a("s_cbranch_scc0 L_exact")
    a.label(f"L_norm{role}")
    for r in range(16):
        a(f"v_mul_f32 v{OA + r}, v{OA + r}, v{VT}")
    for j in range(8):
        a(f"v_cvt_pk_bf16_f32 v{OA + j}, v{OA + 2 * j}, v{OA + 2 * j + 1}")
    a(f"buffer_store_dwordx4 {vr(OA, 4)}, v1, {S(SWS)}, s47 offen{SC}")
    a(f"buffer_store_dwordx4 {vr(OA + 4, 4)}, v1, {S(SWS)}, s47 offen offset:1024{SC}")


def emit_exact(a):
    s, k, v, cm = SBUF[0], KB[0], VB[0], CM
    VD, VN = SBUF[1], SBUF[1] + 1
    a.label("L_exact")
    a("s_waitcnt vmcnt(0) lgkmcnt(0)")
    a(f"v_and_b32 v{VD}, 31, v0")
    a(f"v_lshrrev_b32 v{VN}, 5, v0")
    a(f"v_lshlrev_b32 v{VN}, 2, v{VN}")
    a(f"v_sub_u32 v{VD}, v{VD}, v{VN}")
    a(f"v_mov_b32 v{VN}, 0xf149f2ca")
    a(f"v_mov_b32 v{VM}, v{VN}")
    a("s_lshl_b32 s4, s34, 1")
    a("s_add_u32 s4, s4, s41")
    a("s_lshl_b32 s4, s4, 6")
    a("s_add_u32 s4, s4, s45")
    a("s_lshl_b32 s4, s4, 11")
    a(f"s_add_u32 s4, s4, 0x{WS_KF - 8 * 2048:x}")
    a("s_sub_u32 s5, 8, s45")
    a("s_cmp_lt_u32 s45, 8")
    a("s_cselect_b32 s5, s5, 0")
    for r in range(16):
        a(f"v_mov_b32 v{cm + r}, 0")
        a(f"v_mov_b32 v{OA + r}, 0")
    for r in range(4):
        a(f"v_mov_b32 v{LS + r}, 0")
    a("s_mov_b32 s9, 0")
    a.label("L_expass")
    a("s_mov_b32 s6, s5")
    a.label("L_extile")
    a("s_lshl_b32 s7, s6, 11")
    a("s_add_u32 s7, s7, s4")
    a(f"s_add_u32 s8, s7, 0x{WS_VF - WS_KF:x}")
    for st in range(2):
        a(f"buffer_load_dwordx4 {vr(k + 4 * st, 4)}, v1, {S(SWS)}, s7 offen offset:{1024 * st}")
        a(f"buffer_load_dwordx4 {vr(v + 4 * st, 4)}, v1, {S(SWS)}, s8 offen offset:{1024 * st}")
    a("s_waitcnt vmcnt(0)")
    a(f"v_mfma_f32_32x32x16_bf16 {vr(s, 16)}, {vr(k, 4)}, {vr(QC, 4)}, {vr(cm, 16)}")
    a(f"v_mfma_f32_32x32x16_bf16 {vr(s, 16)}, {vr(k + 4, 4)}, {vr(QC + 4, 4)}, {vr(s, 16)}")
    a("s_nop 7")
    a("s_nop 7")
    for rel, op in ((8, "le"), (0, "gt")):
        a(f"s_cmp_lg_u32 s6, {rel}")
        a(f"s_cbranch_scc1 L_exm{rel}")
        for r in range(16):
            a(f"v_cmp_{op}_i32 vcc, {8 * (r >> 2) + (r & 3)}, v{VD}")
            a(f"v_cndmask_b32 v{s + r}, v{VN}, v{s + r}, vcc")
        a.label(f"L_exm{rel}")
    a("s_cmp_lg_u32 s9, 0")
    a("s_cbranch_scc1 L_exp2")
    for r in range(16):
        a(f"v_max_f32 v{VM}, v{VM}, v{s + r}")
    a("s_branch L_exnext")
    a.label("L_exp2")
    for r in range(16):
        a(f"v_exp_f32 v{s + r}, v{s + r}")
    a("s_nop 0")
    for j in range(8):
        a(f"v_cvt_pk_bf16_f32 v{s + j}, v{s + 2 * j}, v{s + 2 * j + 1}")
    a("s_nop 1")
    for st in range(2):
        a(f"v_mfma_f32_32x32x16_bf16 {vr(OA, 16)}, {vr(v + 4 * st, 4)}, {vr(s + 4 * st, 4)}, {vr(OA, 16)}")
        a(f"v_mfma_f32_16x16x32_bf16 {vr(LS, 4)}, {vr(ONE, 4)}, {vr(s + 4 * st, 4)}, {vr(LS, 4)}")
    a("s_nop 7")
    a("s_nop 7")
    a.label("L_exnext")
    a("s_add_u32 s6, s6, 1")
    a("s_cmp_le_u32 s6, 8")
    a("s_cbranch_scc1 L_extile")
    a("s_cmp_lg_u32 s9, 0")
    a("s_cbranch_scc1 L_exdone")
    a(f"v_mov_b32 v{VT}, v{VM}")
    a("s_nop 1")
    a(f"v_permlane32_swap_b32 v{VM}, v{VT}")
    a("s_nop 1")
    a(f"v_max_f32 v{VM}, v{VM}, v{VT}")
    for r in range(16):
        a(f"v_sub_f32 v{cm + r}, 0, v{VM}")
    a("s_mov_b32 s9, 1")
    a("s_branch L_expass")
    a.label("L_exdone")
    a(f"v_rcp_f32 v{VT}, v{LS}")
    a("s_cmp_eq_u32 s101, 1")
    a("s_cbranch_scc1 L_normM")
    a("s_branch L_normH")


def emit_conv(a, hooks):
    ACC, FB = 8, [40, 104]
    VA, VBB, VEB, VSO = 168, 172, 173, 174
    a("v_and_b32 v2, 15, v0")
    a("v_lshrrev_b32 v3, 4, v0")
    a("v_add_u32 v4, 1, v2")
    a("v_and_b32 v5, 1, v4")
    a("v_sub_u32 v4, v4, v5")
    a("v_lshl_add_u32 v4, v3, 3, v4")
    a("v_lshlrev_b32 v4, 1, v4")
    a(f"v_mul_u32_u24 v5, {CPY}, v5")
    a(f"v_add3_u32 v{VA}, v4, v5, s46")
    for i in range(1, 4):
        a(f"v_add_u32 v{VA + i}, {1024 * i}, v{VA}")
    a("v_lshlrev_b32 v4, 5, v2")
    a("v_lshlrev_b32 v5, 4, v3")
    a(f"v_sub_u32 v{VBB}, v5, v4")
    a(f"v_add_u32 v{VBB}, {URO + 480}, v{VBB}")
    a(f"v_add_u32 v{VBB}, s86, v{VBB}")
    a("v_lshlrev_b32 v5, 3, v3")
    a(f"v_add_u32 v{VSO}, v4, v5")
    a(f"v_sub_u32 v{VEB}, {URO + 504}, v{VSO}")
    a(f"v_add_u32 v{VEB}, s86, v{VEB}")

    def creads(j, buf):
        f = FB[buf]
        out = []
        for q in range(8):
            o = (q & 1) * 128 + 16 * j
            va = VA + (q >> 1)
            out.append(f"ds_read2_b32 {vr(f + 4 * q, 2)}, v{va} offset0:{o} offset1:{o + 1}")
            out.append(f"ds_read2_b32 {vr(f + 4 * q + 2, 2)}, v{va} offset0:{o + 2} offset1:{o + 3}")
            out.append(f"ds_read_b128 {vr(f + 32 + 4 * q, 4)}, v{VBB} offset:{512 * (7 - q) + 64 * j}")
        return out

    pairs = [(q, dl) for q in range(8) for dl in range(8 - q)]
    pairs.sort(key=lambda x: (max(x[0], x[1]), x[0] + x[1], x[0]))
    seq, rest = [], list(pairs)
    while rest:
        pick = next((p for p in rest if all(p[0] + p[1] != s[0] + s[1] for s in seq[-2:])), rest[0])
        rest.remove(pick)
        seq.append(pick)

    def cmfmas(j, buf):
        f = FB[buf]
        seen, out = set(), []
        for (q, dl) in seq:
            nt = q + dl
            d = vr(ACC + 4 * nt, 4)
            c = "0" if (j == 0 and nt not in seen) else d
            seen.add(nt)
            out.append(f"v_mfma_f32_16x16x32_bf16 {d}, {vr(f + 4 * q, 4)}, {vr(f + 32 + 4 * dl, 4)}, {c}")
        return out

    extra = list(hooks.get("extra", []))
    if "start" in hooks:
        hooks["start"]()
    for i, r in enumerate(creads(0, 0)):
        a(r)
        if i % 12 == 11:
            a("s_waitcnt lgkmcnt(4)")
    def epi(nt):
        k0, k1 = FB[0] + 2 * nt, FB[0] + 2 * nt + 1
        t = FB[0] + 16 + 4 * nt
        ac = ACC + 4 * nt
        pre = [f"v_and_b32 v{t}, 0xffff0000, v{k1}", f"v_lshlrev_b32 v{t + 1}, 16, v{k1}",
               f"v_and_b32 v{t + 2}, 0xffff0000, v{k0}", f"v_lshlrev_b32 v{t + 3}, 16, v{k0}"]
        post = [f"v_fmac_f32 v{ac + e}, s39, v{t + e}" for e in range(4)] + \
               [f"v_cvt_pk_bf16_f32 v{YP + 2 * nt}, v{ac}, v{ac + 1}",
                f"v_cvt_pk_bf16_f32 v{YP + 2 * nt + 1}, v{ac + 2}, v{ac + 3}"]
        return pre, post

    def last_step():
        f = FB[1]
        left = {nt: [(q, nt - q) for q in range(nt + 1)] for nt in range(8)}
        a("s_waitcnt lgkmcnt(0)")
        for nt in range(8):
            a(f"ds_read_b64 {vr(FB[0] + 2 * nt, 2)}, v{VEB} offset:{512 * (7 - nt)}")
        hist, n, ready, pre = [], 0, [], [x for nt in range(8) for x in epi(nt)[0]]
        done = {}
        for i in range(36):
            rem = 36 - i
            cand = [nt for nt in range(8) if left[nt] and nt not in hist[-2:]]
            urgent = [nt for nt in cand if 3 * len(left[nt]) - 2 >= rem - 2]
            nt = max(urgent, key=lambda x: len(left[x])) if urgent else cand[0] if cand else \
                max((x for x in range(8) if left[x] and x != hist[-1]), key=lambda x: len(left[x]))
            q, dl = left[nt].pop()
            d = vr(ACC + 4 * nt, 4)
            a(f"v_mfma_f32_16x16x32_bf16 {d}, {vr(f + 4 * q, 4)}, {vr(f + 32 + 4 * dl, 4)}, {d}")
            n += 1
            hist.append(nt)
            if not left[nt]:
                done[nt] = n
            if i == 5:
                a("s_waitcnt lgkmcnt(0)")
                if "eb" in OPT:
                    hooks["bar"]()
            if i < 5:
                continue
            for _ in range(2):
                for x in sorted(done):
                    if n - done[x] >= 10 and len(pre) <= 4 * (7 - x):
                        ready += epi(x)[1]
                        del done[x]
                if ready:
                    a(ready.pop(0)); n += 1
                elif pre:
                    a(pre.pop(0)); n += 1
        for x in pre + ready:
            a(x); n += 1
        for x in sorted(done, key=done.get):
            if n - done[x] < 10:
                a(f"s_nop {min(7, 9 - (n - done[x]))}")
                a("s_nop 1")
                n += 10
            for y in epi(x)[1]:
                a(y); n += 1
        return [f"buffer_store_dwordx2 {vr(YP + 2 * nt, 2)}, v{VSO}, {S(SWS)}, s36 offen offset:{512 * nt}{SC}" for nt in range(8)]

    for j in range(8):
        if j == 7 and "ce" in OPT:
            assert not extra
            return last_step()
        m = cmfmas(j, j & 1)
        r = creads(j + 1, (j + 1) & 1) if j < 7 else \
            [f"ds_read_b64 {vr(FB[0] + 2 * nt, 2)}, v{VEB} offset:{512 * (7 - nt)}" for nt in range(8)]
        a("s_waitcnt lgkmcnt(0)")
        ri = 0
        if "cnolds" in OPT and j < 7:
            r = []
        for i, mm in enumerate(m):
            if j < optval("cj", 8) or i < 4:
                a(mm if "cnomfma" not in OPT else "s_nop 3")
            if ri < len(r):
                a(r[ri]); ri += 1
            if j >= 1 and extra:
                a(extra.pop(0))
        assert ri == len(r)
    a("s_nop 7")
    a("s_waitcnt lgkmcnt(0)")
    stores = []
    for nt in range(8):
        k0, k1 = FB[0] + 2 * nt, FB[0] + 2 * nt + 1
        t = FB[0] + 16 + 4 * (nt & 1)
        ac = ACC + 4 * nt
        a(f"v_and_b32 v{t}, 0xffff0000, v{k1}")
        a(f"v_lshlrev_b32 v{t + 1}, 16, v{k1}")
        a(f"v_and_b32 v{t + 2}, 0xffff0000, v{k0}")
        a(f"v_lshlrev_b32 v{t + 3}, 16, v{k0}")
        for e in range(4):
            a(f"v_fmac_f32 v{ac + e}, s39, v{t + e}")
        a(f"v_cvt_pk_bf16_f32 v{YP + 2 * nt}, v{ac}, v{ac + 1}")
        a(f"v_cvt_pk_bf16_f32 v{YP + 2 * nt + 1}, v{ac + 2}, v{ac + 3}")
        st = f"buffer_store_dwordx2 {vr(YP + 2 * nt, 2)}, v{VSO}, {S(SWS)}, s36 offen offset:{512 * nt}{SC}"
        if "yearly" in OPT:
            a(st)
        else:
            stores.append(st)
    return stores


def emit_lds_wait(a, vaddr, off, t):
    lp, dn = a.newlabel("lw"), a.newlabel("lwd")
    a("s_mov_b32 s85, 0")
    a.label(lp)
    a(f"ds_read_b128 {vr(t, 4)}, v{vaddr} offset:{off}")
    a("s_waitcnt lgkmcnt(0)")
    a(f"v_and_b32 v{t}, v{t}, v{t + 1}")
    a(f"v_and_b32 v{t + 2}, v{t + 2}, v{t + 3}")
    a(f"v_and_b32 v{t}, v{t}, v{t + 2}")
    a("s_add_u32 s85, s85, 1")
    a(f"v_readfirstlane_b32 s80, v{t}")
    a("s_nop 1")
    a("s_cmp_lg_u32 s80, 0")
    a(f"s_cbranch_scc1 {dn}")
    a(f"s_cmp_lt_u32 s85, 0x{SPIN_LIMIT:x}")
    a(f"s_cbranch_scc1 {lp}")
    a.label(dn)


def p1_lists():
    KK, VV, WR = 124, 146, 162
    AK, AH, AS, AO = 174, 175, 176, 177
    KF_, WF_, RS_, TT, PO = 12, 56, 72, 104, 108
    soffs = ["0", "s50", "s51", "s52"]
    setup, loads, comp, stores = [], [], [], []
    a = setup.append
    a("v_lshrrev_b32 v24, 3, v0")
    a("v_and_b32 v25, 7, v0")
    a("s_lshl_b32 s80, s35, 6")
    a("s_lshl_b32 s81, s3, 2")
    a("s_add_u32 s81, s81, s44")
    a("s_lshl_b32 s81, s81, 5")
    a("v_lshlrev_b32 v24, 3, v24")
    a("v_add_u32 v24, s80, v24")
    a("v_lshlrev_b32 v25, 2, v25")
    a("v_add_u32 v25, s81, v25")
    a(f"v_lshlrev_b32 v{AK}, 11, v24")
    a(f"v_lshl_add_u32 v{AK}, v25, 1, v{AK}")
    a("s_mov_b32 s50, 4096")
    a("s_mov_b32 s51, 8192")
    a("s_mov_b32 s52, 12288")
    a(f"v_subrev_u32 v{AH}, 6144, v{AK}")
    a("v_mov_b32 v26, 0x80000000")
    a("v_cmp_gt_u32 vcc, 3, v24")
    a(f"v_lshlrev_b32 v{AO}, 12, v25")
    a("v_sub_u32 v24, 2040, v24")
    a(f"v_cndmask_b32 v{AH}, v{AH}, v26, vcc")
    a(f"v_lshlrev_b32 v{AS}, 3, v25")
    a(f"v_lshl_add_u32 v{AO}, v24, 1, v{AO}")
    loads.append(f"buffer_load_dwordx4 {vr(WR, 4)}, v{AS}, {S(SSH)}, 0 offen")
    loads.append(f"buffer_load_dwordx4 {vr(WR + 4, 4)}, v{AS}, {S(SSH)}, 0 offen offset:16")
    for i in range(3):
        loads.append(f"buffer_load_dwordx2 {vr(KK + 2 * i, 2)}, v{AH}, {S(SK)}, {soffs[i >> 1]} offen offset:{(i & 1) * 2048} {nt('p')}")
    for i in range(8):
        loads.append(f"buffer_load_dwordx2 {vr(KK + 6 + 2 * i, 2)}, v{AK}, {S(SK)}, {soffs[i >> 1]} offen offset:{(i & 1) * 2048} {nt('p')}")
    for i in range(8):
        loads.append(f"buffer_load_dwordx2 {vr(VV + 2 * i, 2)}, v{AK}, {S(SV)}, {soffs[i >> 1]} offen offset:{(i & 1) * 2048} {nt('p')}")
    a = comp.append
    if "pk" in OPT:
        for dd in range(4):
            for h2 in range(2):
                src = WR + 2 * dd + h2
                a(f"v_lshlrev_b32 v{WF_ + 8 * h2 + dd}, 16, v{src}")
                a(f"v_and_b32 v{WF_ + 8 * h2 + 4 + dd}, 0xffff0000, v{src}")

        def kun(i):
            for h2 in range(2):
                src = KK + 2 * i + h2
                a(f"v_lshlrev_b32 v{KF_ + 4 * i + 2 * h2}, 16, v{src}")
                a(f"v_and_b32 v{KF_ + 4 * i + 2 * h2 + 1}, 0xffff0000, v{src}")
        for i in range(3):
            kun(i)
        for s_ in range(8):
            kun(s_ + 3)
            for h2 in range(2):
                src = VV + 2 * s_ + h2
                a(f"v_lshlrev_b32 v{TT + 2 * h2}, 16, v{src}")
                a(f"v_and_b32 v{TT + 2 * h2 + 1}, 0xffff0000, v{src}")
            for j in range(4):
                for dd in (0, 2):
                    r, k_, w_ = vr(RS_ + 4 * s_ + dd, 2), vr(KF_ + 4 * (s_ + 3 - j) + dd, 2), vr(WF_ + 4 * j + dd, 2)
                    a(f"v_pk_fma_f32 {r}, {k_}, {w_}, {r}" if j else f"v_pk_mul_f32 {r}, {k_}, {w_}")
            for dd in (0, 2):
                r = vr(RS_ + 4 * s_ + dd, 2)
                a(f"v_pk_mul_f32 {r}, {r}, {vr(TT + dd, 2)}")
        a = lambda x: None
    for dd in range(4):
        for h2 in range(2):
            src = WR + 2 * dd + h2
            a(f"v_lshlrev_b32 v{WF_ + 4 * dd + 2 * h2}, 16, v{src}")
            a(f"v_and_b32 v{WF_ + 4 * dd + 2 * h2 + 1}, 0xffff0000, v{src}")
    for i in range(11):
        for h2 in range(2):
            src = KK + 2 * i + h2
            a(f"v_lshlrev_b32 v{KF_ + 4 * i + 2 * h2}, 16, v{src}")
            a(f"v_and_b32 v{KF_ + 4 * i + 2 * h2 + 1}, 0xffff0000, v{src}")
    for s_ in range(8):
        for dd in range(4):
            r = RS_ + 4 * s_ + dd
            a(f"v_mul_f32 v{r}, v{KF_ + 4 * (s_ + 3) + dd}, v{WF_ + 4 * dd}")
            for j in range(1, 4):
                a(f"v_fmac_f32 v{r}, v{KF_ + 4 * (s_ + 3 - j) + dd}, v{WF_ + 4 * dd + j}")
    for s_ in range(8):
        for dd in range(4):
            r = RS_ + 4 * s_ + dd
            src = VV + 2 * s_ + (dd >> 1)
            t = TT + (dd & 1)
            a(f"v_and_b32 v{t}, 0xffff0000, v{src}" if dd & 1 else f"v_lshlrev_b32 v{t}, 16, v{src}")
            a(f"v_mul_f32 v{r}, v{r}, v{t}")
    stores.append(f"s_mov_b32 s53, 0x{WS_UR:x}")
    for dd in range(4):
        o = PO + 4 * dd
        for j in range(4):
            stores.append(f"v_cvt_pk_bf16_f32 v{o + j}, v{RS_ + 4 * (7 - 2 * j) + dd}, v{RS_ + 4 * (6 - 2 * j) + dd}")
        stores.append(f"buffer_store_dwordx4 {vr(o, 4)}, v{AO}, {S(SWS)}, s53 offen{SC}")
        if dd < 3:
            stores.append("s_add_u32 s53, s53, 4096")
    return setup, loads, comp, stores


VZ = 252
VLF = 251
SRDS = [(SX, 48, 4 * MB), (SW, 56, 6 * MB), (SWS, 88, WS_SIZE), (SK, 8, 4 * MB), (SV, 16, 4 * MB),
        (SSH, 24, 8192), (SHK, 32, 4 * MB), (SWO, 64, 2 * MB), (SQ, 0, 4 * MB), (SOUT, 72, 8 * MB),
        (SDBG, 80, 256)]


def late_setup(a, ts, helper=True):
    if helper:
        a("s_lshl_b32 s84, s3, 5")
        a("s_add_u32 s84, s84, s35")
        a("s_lshl_b32 s80, s84, 3")
        a("s_load_dwordx2 s[76:77], s[36:37], s80")
    a("s_lshl_b32 s89, s2, 7")
    a("s_lshl_b32 s81, s32, 3")
    a("s_add_u32 s89, s89, s81")
    for (d, off, size) in SRDS[2:]:
        if not helper and d in (SK, SV, SSH, SHK):
            continue
        a(f"s_mov_b32 s{d + 2}, 0x{size:x}")
        a(f"s_mov_b32 s{d + 3}, 0x20000")
    a(f"v_mov_b32 v{VLF}, {L_FL}")
    ts.setup(a, SWS)


def g2_tile(a):
    a("s_and_b32 s86, s3, 1")
    a("s_lshl_b32 s86, s86, 1")
    a("s_bfe_u32 s80, s3, 0x10001")
    a("s_add_u32 s86, s86, s80")
    a("s_lshl_b32 s86, s86, 2")
    a("s_and_b32 s80, s35, 3")
    a("s_add_u32 s86, s86, s80")
    a("s_lshr_b32 s42, s3, 2")
    a("s_lshl_b32 s42, s42, 3")
    a("s_lshr_b32 s43, s35, 2")
    a("s_add_u32 s42, s42, s43")


def wo_addr(a0, t=4):
    a = lambda x: a0(re.sub(r"\bv([456])\b", lambda m: f"v{int(m.group(1)) - 4 + t}", x))
    a("v_lshrrev_b32 v4, 3, v0")
    a("v_and_b32 v5, 7, v0")
    a("v_bfe_u32 v6, v0, 4, 1")
    a("v_lshlrev_b32 v6, 2, v6")
    a("v_xor_b32 v6, v6, v5")
    a("v_lshlrev_b32 v250, 11, v4")
    a("v_lshl_add_u32 v250, v6, 4, v250")
    a("s_lshl_b32 s80, s42, 7")
    a("v_add_u32 v250, s80, v250")
    a("s_lshl_b32 s84, s32, 11")
    a("s_lshl_b32 s88, s32, 15")


NE = 3


def wo_part(p, dst, dw=0):
    return [f"s_add_u32 m0, s84, {dst + dw * 2048}",
            f"s_add_u32 s81, s43, {p}",
            "s_and_b32 s81, s81, 7",
            "s_lshl_b32 s81, s81, 18",
            "s_add_u32 s81, s81, s88"] + ([f"s_add_u32 s81, s81, {dw * 32768}"] if dw else []) + [
            f"buffer_load_dwordx4 v250, {S(SWO)}, s81 offen lds",
            f"s_add_u32 s81, s81, {16384 - 1024}",
            f"buffer_load_dwordx4 v250, {S(SWO)}, s81 offen offset:1024 lds"]


def wo_early():
    b0 = optval("we", 3)
    return {b0 + p: wo_part(p, L_R0 + p * 16384) for p in range(NE)}


P4 = [x * 4096 for x in list(range(0, 6)) + list(range(9, 18)) + list(range(21, 26))]
WLOC = [L_R0 + k * 2048 for k in range(8 * NE)] + [P4[k >> 1] + (k & 1) * 2048 for k in range(40)]
NLATE = 10


def nlate():
    return 2 * NLATE - optval("gm", 0) if "g2e" in OPT else NLATE


def blk7_flag():
    b = Asm()
    if "g2e" in OPT:
        b("s_waitcnt vmcnt(0)")
    lds_flag_set(b, 32, 16, 158)
    return [x.strip() for x in b.L]


def wo_late(a, ts, nyoung, helper):
    def stage():
        a("s_and_b32 s83, s32, 3")
        a("s_lshl_b32 s82, s83, 10")
        a("s_lshl_b32 s81, s43, 4")
        a("s_add_u32 s83, s83, s81")
        for i in range(NLATE if "g2e" not in OPT else nlate() if helper else optval("gm", 0)):
            p = 2 * i + int(helper) if "g2e" not in OPT else i if helper else nlate() + i
            a(f"s_add_u32 m0, s82, {P4[p]}")
            a(f"s_add_u32 s81, s83, {16 * NE + 4 * p}")
            a("s_and_b32 s81, s81, 127")
            a("s_lshl_b32 s81, s81, 14")
            if "nolate" not in OPT:
                a(f"buffer_load_dwordx4 v250, {S(SWO)}, s81 offen lds")

    if "g2e" in OPT:
        a(f"s_waitcnt vmcnt({nyoung})")
        emit_publish(a, FL_O, 220, VZ)
        emit_lds_wait(a, VLF, 64, 8)
        emit_lds_wait(a, VLF, 80, 8)
        ts.stamp(a, 7)
        stage()
        return
    ES = optval("es", 0)
    if ES == 1:
        emit_lds_wait(a, VLF, 64, 8)
        emit_lds_wait(a, VLF, 80, 8)
        stage()
        a(f"s_waitcnt vmcnt({nyoung + NLATE})")
    else:
        a(f"s_waitcnt vmcnt({nyoung})")
    emit_publish(a, FL_O, 220, VZ)
    lds_flag_set(a, 32, 8, 222)
    if ES == 2:
        emit_lds_wait(a, VLF, 64, 8)
        emit_lds_wait(a, VLF, 80, 8)
        stage()
    if ES == 0 or not helper:
        emit_lds_wait(a, VLF, 32, 8)
        emit_lds_wait(a, VLF, 48, 8)
    ts.stamp(a, 7)
    if ES == 0:
        stage()


def lds_flag_set(a, word_s, word_add, t):
    a(f"s_lshl_b32 s80, s{word_s}, 2")
    a(f"v_add_u32 v{t}, s80, v{VLF}")
    a(f"v_mov_b32 v{t + 1}, 1")
    a(f"ds_write_b32 v{t}, v{t + 1} offset:{4 * word_add}")


def m_path(a, ts, ool):
    ACC = 80
    PD = optval('pd', 2)
    FR = [16, 36, 56, 192, 212][:PD + 1]
    NB = PD + 1
    LZ = 'lz' in OPT
    XA, WB, XA2 = 2, 6, 8
    def code_touch():
        lcp = a.newlabel("nocp")
        a("s_cmp_lg_u32 s32, 1")
        a(f"s_cbranch_scc1 {lcp}")
        a("s_mov_b32 exec_hi, 0")
        a("buffer_load_dword v188, v189, s[52:55], s56 offen")
        a("s_mov_b32 exec_hi, -1")
        a.label(lcp)

    CQ = [int(o[2:]) for o in OPT if o.startswith("cq")]
    if "cp" in OPT or CQ:
        a("s_getpc_b64 s[52:53]")
        a.label("L_pc")
        a(f"s_sub_u32 s52, s52, L_pc-{NAME}_kernel")
        a("s_subb_u32 s53, s53, 0")
        a(f"s_mov_b32 s54, L_end-{NAME}_kernel")
        a("s_mov_b32 s55, 0x20000")
        a("s_lshl_b32 s56, s35, 11")
        a("v_lshlrev_b32 v189, 6, v0")
    if "cp" in OPT:
        code_touch()
    SW_ = {}
    for o in OPT:
        if o.startswith("sw"):
            m, n = o[2:].split("_")
            SW_[int(n)] = int(m)
    if SW_:
        a("s_lshl_b32 s80, s35, 2")
        a("s_add_u32 s80, s80, s32")
        a("s_mul_i32 s81, s80, 6")
        a("v_and_b32 v3, 7, v0")
        a("v_lshrrev_b32 v184, 3, v0")
        a("v_mul_u32_u24 v184, 768, v184")
        a("v_add3_u32 v184, v184, v3, s81")
        a("v_lshlrev_b32 v184, 11, v184")
        a("s_lshr_b32 s81, s3, 2")
        a("s_lshl_b32 s81, s81, 10")
        a("s_add_u32 s81, s81, 0x180")
        a("v_add_u32 v184, s81, v184")
        a("s_bitcmp1_b32 s3, 1")
        a("s_cselect_b32 s81, 0, 6")
        a("v_mov_b32 v2, 0x80000000")
        a("v_cmp_gt_u32 vcc, s81, v3")
        a("s_nop 1")
        a("v_cndmask_b32 v184, v2, v184, vcc")

    def slow_touch(n):
        if n in SW_:
            a(f"s_mov_b64 exec, 0x{sum(0xff << (8 * q) for q in range(4) if SW_[n] >> q & 1):x}")
            a(f"buffer_load_dword v177, v184, {S(SW)}, 0 offen")
            a("s_mov_b64 exec, -1")

    MS = [o[2:] for o in OPT if o.startswith("ms")]
    ltk = a.newlabel("notok")
    if MS:
        a("s_or_b32 s80, s2, s32")
        a(f"s_cbranch_scc1 {ltk}")
        a(f"s_mov_b32 s{SDBG + 2}, 256")
        a(f"s_mov_b32 s{SDBG + 3}, 0x20000")
    else:
        a("s_waitcnt lgkmcnt(0)")
        slow_touch(99)
        late_setup(a, ts, False)
        a("s_cmp_lg_u32 s89, 0")
        a(f"s_cbranch_scc1 {ltk}")
    a("s_memrealtime s[78:79]")
    a("s_waitcnt lgkmcnt(0)")
    a("s_or_b32 s78, s78, 1")
    a("v_mov_b32 v180, s78")
    a("v_mov_b32 v181, s79")
    a("s_mov_b64 exec, 1")
    a(f"buffer_store_dwordx2 v[180:181], v{VZ}, {S(SDBG)}, 0 offen{SC}")
    a("s_mov_b64 exec, -1")
    a.label(ltk)
    a("s_and_b32 s44, s32, 1")
    a("s_lshr_b32 s41, s32, 1")
    a("s_lshl_b32 s40, s44, 1")
    a("v_and_b32 v8, 31, v0")
    a("v_lshrrev_b32 v9, 5, v0")
    a("v_lshrrev_b32 v10, 1, v8")
    a("v_and_b32 v10, 7, v10")
    a("v_lshlrev_b32 v11, 7, v8")
    a("s_lshl_b32 s46, s44, 13")
    a("v_add_u32 v11, s46, v11")
    for ks in range(4):
        a(f"v_add_u32 v12, {2 * ks}, v9")
        a("v_xor_b32 v12, v12, v10")
        a(f"v_lshl_add_u32 v{XA + ks}, v12, 4, v11")
    a("v_and_b32 v10, 15, v0")
    a("v_lshrrev_b32 v11, 4, v0")
    a("v_lshrrev_b32 v12, 2, v10")
    a("v_lshl_add_u32 v12, v9, 3, v12")
    a(f"v_mul_u32_u24 v12, {128 if 'wl' in OPT else 384}, v12")
    a("v_lshrrev_b32 v13, 3, v10")
    a("v_xor_b32 v13, s41, v13")
    a("v_lshl_add_u32 v12, v13, 6, v12")
    a("v_and_b32 v13, 1, v11")
    a("v_lshl_add_u32 v12, v13, 5, v12")
    a("v_and_b32 v13, 3, v10")
    a("v_lshl_add_u32 v12, v13, 3, v12")
    a(f"v_add_u32 v{WB}, 16384, v12")
    a(f"v_add_u32 v{WB + 1}, {16384 + 81920}, v12")
    for ks in range(4):
        a(f"v_add_u32 v{XA2 + ks}, 81920, v{XA + ks}")

    def reads(t, ks, buf):
        st = slot(t)
        f = FR[buf]
        xa = (XA2 if st >= 2 else XA) + ks
        xo = (st & 1) * 40960
        wb = WB + (st >> 1)
        wo = (st & 1) * 40960 + 16 * ks * 384
        if "wl" in OPT:
            tr = lambda i: f"ds_read_b64_tr_b16 {vr(f + 8 + 2 * i, 2)}, v{wb} offset:{wo + (i >> 1) * 2048 + (i & 1) * 512}"
            return [f"ds_read_b128 {vr(f, 4)}, v{xa} offset:{xo}", tr(0), tr(1),
                    f"ds_read_b128 {vr(f + 4, 4)}, v{xa} offset:{xo + 4096}", tr(2), tr(3), tr(4), tr(5)]
        return [f"ds_read_b128 {vr(f, 4)}, v{xa} offset:{xo}",
                f"ds_read_b64_tr_b16 {vr(f + 8, 2)}, v{wb} offset:{wo}",
                f"ds_read_b64_tr_b16 {vr(f + 10, 2)}, v{wb} offset:{wo + 4 * 384}",
                f"ds_read_b128 {vr(f + 4, 4)}, v{xa} offset:{xo + 4096}",
                f"ds_read_b64_tr_b16 {vr(f + 12, 2)}, v{wb} offset:{wo + 128}",
                f"ds_read_b64_tr_b16 {vr(f + 14, 2)}, v{wb} offset:{wo + 128 + 4 * 384}",
                f"ds_read_b64_tr_b16 {vr(f + 16, 2)}, v{wb} offset:{wo + 256}",
                f"ds_read_b64_tr_b16 {vr(f + 18, 2)}, v{wb} offset:{wo + 256 + 4 * 384}"]

    def mfmas(buf, first, last):
        f = FR[buf]
        X = [vr(f, 4), vr(f + 4, 4)]
        W = [vr(f + 8, 4), vr(f + 12, 4), vr(f + 16, 4)]
        out = []
        for part in ((1, 2, 0) if last else (0, 1, 2)):
            for rt in range(2):
                d = vr(ACC + 16 * (2 * part + rt), 16)
                c = "0" if first else d
                if part < 2:
                    out.append(f"v_mfma_f32_32x32x16_bf16 {d}, {W[part]}, {X[rt]}, {c}")
                else:
                    out.append(f"v_mfma_f32_32x32x16_bf16 {d}, {X[rt]}, {W[part]}, {c}")
        return out

    main_a = a
    if MS:
        a = Asm()
        late_setup(a, ts, False)
    a("s_lshl_b32 s46, s34, 1")
    a("s_add_u32 s46, s46, s41")
    a("s_lshl_b32 s46, s46, 6")
    a("s_lshl_b32 s47, s33, 2")
    a("s_add_u32 s46, s46, s47")
    a("s_add_u32 s48, s46, s40")
    a("s_lshl_b32 s48, s48, 11")
    a(f"s_add_u32 s49, s48, 0x{WS_VF:x}")
    a(f"s_add_u32 s48, s48, 0x{WS_KF:x}")
    a(f"s_mul_i32 s80, s41, {L_HD}")
    a("s_lshl_b32 s81, s44, 12")
    a("s_add_u32 s80, s80, s81")
    a("v_add_u32 v182, s80, v1")
    a("s_lshl_b32 s80, s32, 11")
    a(f"s_add_u32 s80, s80, {L_QH}")
    a("v_add_u32 v183, s80, v1")

    def setup2():
        a("s_add_u32 s38, s33, s44")
        a("s_sub_u32 s80, s38, 2")
        a("s_max_i32 s80, s80, 0")
        a("v_mov_b32 v20, s80")
        a("v_mov_b32 v21, s34")
        emit_wg_of(a, 190, 20, 21, 22)
        a("v_and_b32 v20, 1, v0")
        a("v_lshl_add_u32 v190, v20, 3, v190")
        a("s_lshl_b32 s80, s41, 4")
        a(f"s_add_u32 s80, s80, 0x{WS_FL + FL_K * 32768:x}")
        a("v_add_u32 v190, s80, v190")
        a("s_lshl_b32 s80, s44, 2")
        a("s_add_u32 s36, s46, s80")
        a("s_lshl_b32 s36, s36, 11")
        a(f"s_add_u32 s36, s36, 0x{WS_KF - 8 * 2048:x}")
        a(f"s_mul_i32 s37, s41, {L_HD}")
        a("s_lshl_b32 s80, s44, 13")
        a("s_add_u32 s37, s37, s80")
        a("; attention")
        emit_attn_setup(a, MASKS_M, 20)
        a("; projection")
        g2_tile(a)
        wo_addr(a, 20)
        a("s_lshl_b32 s80, s35, 2")
        a("s_add_u32 s80, s80, s32")
        a("s_lshl_b32 s80, s80, 6")
        a("v_add_u32 v20, s80, v0")
        a("v_lshrrev_b32 v198, 3, v20")
        a("v_lshlrev_b32 v198, 11, v198")
        a("v_and_b32 v20, 7, v20")
        a("v_lshl_add_u32 v198, v20, 7, v198")
        a("s_lshr_b32 s80, s3, 2")
        a("s_lshl_b32 s80, s80, 10")
        a("v_add_u32 v198, s80, v198")
        a("s_lshl_b32 s80, s35, 6")
        a("s_lshl_b32 s81, s32, 4")
        a("s_add_u32 s80, s80, s81")
        a("v_bfe_u32 v20, v0, 1, 4")
        a("v_add_u32 v20, s80, v20")
        a("v_lshlrev_b32 v20, 11, v20")
        a("v_and_b32 v21, 1, v0")
        a("v_lshl_add_u32 v20, v21, 7, v20")
        a("s_lshl_b32 s80, s3, 8")
        a("v_add_u32 v199, s80, v20")

    if "ls" not in OPT:
        setup2()
    KT, FT = optval("kt", -1), optval("ft", -1)
    if KT >= 0:
        a("v_and_b32 v185, 31, v0")
        a("v_lshlrev_b32 v185, 7, v185")
        a("v_lshrrev_b32 v20, 5, v0")
        a("v_lshl_add_u32 v185, v20, 22, v185")
    if FT >= 0:
        a("v_lshlrev_b32 v194, 15, v0")
        a("s_lshl_b32 s80, s2, 7")
        a(f"s_add_u32 s80, s80, 0x{WS_FL:x}")
        a("v_add_u32 v194, s80, v194")
        if "fl" in OPT and "nft" not in OPT:
            a("s_lshl_b32 s80, s2, 11")
            a(f"s_add_u32 s80, s80, 0x{WS_FL + 0x80000 - 3 * 128:x}")
            a("v_lshlrev_b32 v193, 7, v0")
            a("v_add_u32 v193, s80, v193")
            a("v_cmp_gt_u32 vcc, 3, v0")
            a("s_nop 1")
            a("v_cndmask_b32 v194, v193, v194, vcc")
        a("s_cmp_eq_u32 s32, 2")
        a(f"s_cselect_b32 s80, {5 if 'kv2' in OPT else 4 if 'fl' not in OPT else 3 if 'nft' in OPT else 11}, 0")
        a("v_mov_b32 v193, 0x80000000")
        a("v_cmp_gt_u32 vcc, s80, v0")
        a("s_nop 1")
        a("v_cndmask_b32 v194, v193, v194, vcc")
    late = {}
    if MS:
        blk_ = 0
        for x in a.L:
            if x.strip().startswith(";"):
                blk_ += 1
                continue
            late.setdefault(int(MS[0][blk_]), []).append(re.sub(r"\bv2([012])\b", r"v1\g<1>", x.strip()).replace("v10", "v13").replace("v11", "v14"))
        a = main_a
        for x in late.get(0, []):
            a(x)
    a("s_waitcnt lgkmcnt(0)")
    slow_touch(98)
    if "tse" in OPT:
        ts.stamp(a, 0)
    a("s_barrier")
    ts.stamp(a, 11)
    for k in range(PD):
        for r in reads(0, k, k):
            a(r)
        if k == 1:
            a("s_waitcnt lgkmcnt(8)")
    TKN = optval("tkn", 41)
    BK = (4 - PD) % 4
    for n in range(64):
        t, ks = n >> 2, n & 3
        m = mfmas(n % NB, n == 0, n == 63)
        n2 = n + PD
        r = reads(n2 >> 2, n2 & 3, n2 % NB) if n2 < 64 else []
        tch = []
        if n == TKN:
            tch = [f"buffer_load_dwordx2 v[186:187], v{VZ}, {S(SDBG)}, 0 offen{SC}"]
        ahead = min(15, 8 * (min(63, n + PD - 1) - n))
        if ks == BK and t + 1 not in skipped():
            a(f"s_waitcnt lgkmcnt({ahead if (LZ and t < 15) else 0})")
            a(m[0])
            for x in late.get(t + 1, []):
                a(x)
            a("s_barrier")
        else:
            a(f"s_waitcnt lgkmcnt({ahead})")
            a(m[0])
        ri = 0
        for i, mm in enumerate(m[1:]):
            for _ in range(2):
                if ri < len(r):
                    a(r[ri]); ri += 1
            if i == 4:
                for x in tch:
                    a(x)
                if n in CQ:
                    code_touch()
                slow_touch(n)
                if n == KT:
                    a(f"buffer_load_dword v178, v185, {S(SWS)}, s48 offen")
                if n == FT:
                    if "fst" in OPT:
                        a(f"buffer_store_dword v{VZ}, v194, {S(SWS)}, 0 offen offset:64{SC}")
                    else:
                        a(f"buffer_load_dword v195, v194, {S(SWS)}, 0 offen")
            a(mm)
    ts.stamp(a, 1)
    if optval("pe", 0):
        a(f"s_setprio {optval('pe', 0)}")
    if "fk" in OPT:
        a("s_and_b32 s80, s33, 14")
        a("s_cmp_lg_u32 s80, 6")
        a("s_cselect_b32 s39, 1, 0")
        a("s_cselect_b64 s[50:51], -1, 0")
    for part in (1, 2):
        for rt in range(2):
            b = ACC + 16 * (2 * part + rt)
            for j in range(8):
                a(f"v_cvt_pk_bf16_f32 v{b + j}, v{b + 2 * j}, v{b + 2 * j + 1}")
            if "fk" in OPT:
                a("s_mov_b64 exec, s[50:51]")
                for step in range(2):
                    a(f"buffer_store_dwordx4 {vr(b + 4 * step, 4)}, v1, {S(SWS)}, s{47 + part} offen offset:{rt * 2048 + step * 1024}")
                a("s_not_b64 exec, exec")
            for step in range(2):
                a(f"buffer_store_dwordx4 {vr(b + 4 * step, 4)}, v1, {S(SWS)}, s{47 + part} offen offset:{rt * 2048 + step * 1024}{SC}")
            if "fk" in OPT:
                a("s_mov_b64 exec, -1")
    if "fp" in OPT:
        a("s_waitcnt vmcnt(0)")
        emit_token_take(a, 186, VZ)
        emit_publish(a, FL_K, 220, VZ, 39 if "fk" in OPT else None)
        ts.stamp(a, 2)
    if "pes" in OPT:
        a("s_setprio 0")
    for part in (1, 2):
        for rt in range(2):
            b = ACC + 16 * (2 * part + rt)
            for step in range(2):
                a(f"ds_write_b128 v182, {vr(b + 4 * step, 4)} offset:{8 * 2048 + (part - 1) * L_V + rt * 2048 + step * 1024}")
    for rt in (1, 0):
        b = ACC + 16 * rt
        d = QC if rt == 0 else b
        for r in range(16):
            a(f"v_mul_f32 v{b + r}, {f32hex(SCALE_LOG2E)}, v{b + r}")
        for j in range(8):
            a(f"v_cvt_pk_bf16_f32 v{d + j}, v{b + 2 * j}, v{b + 2 * j + 1}")
        if rt == 1:
            for step in range(2):
                a(f"ds_write_b128 v183, {vr(d + 4 * step, 4)} offset:{step * 1024}")
    lz = a.newlabel("nozero")
    a("s_cmp_lg_u32 s32, 0")
    a(f"s_cbranch_scc1 {lz}")
    a(f"v_lshl_add_u32 v20, v0, 2, v{VLF}")
    a(f"ds_write_b32 v20, v{VZ}")
    a.label(lz)
    if "ls" in OPT:
        setup2()
    tlq = f"buffer_load_dword v157, v199, {S(SQ)}, 0 offen"

    def prev_dma(isv):
        for g in range(2):
            a(f"s_add_u32 m0, s37, {isv * L_V + g * 4096}")
            a(f"s_add_u32 s80, s36, {isv * (WS_VF - WS_KF) + g * 4096}")
            for i in range(4):
                a(f"buffer_load_dwordx4 v1, {S(SWS)}, s80 offen offset:{1024 * i} {nt('k')} lds")

    if "pes" in OPT:
        a(f"s_setprio {optval('pe', 0)}")
    if "kv2" in OPT:
        a("s_waitcnt vmcnt(4)")
        emit_token_take(a, 186, VZ)
        emit_publish(a, FL_K, 220, VZ)
        a(f"v_add_u32 v189, {(FL_V - FL_K) * 32768}, v190")
        a("s_waitcnt vmcnt(1)")
        emit_publish(a, FL_V, 222, VZ)
        ts.stamp(a, 2)
    elif "fp" not in OPT:
        a("s_waitcnt vmcnt(0)")
        emit_token_take(a, 186, VZ)
        emit_publish(a, FL_K, 220, VZ, 39 if "fk" in OPT else None)
        ts.stamp(a, 2)
    lnp = a.newlabel("noprev")
    a(f"s_cmp_lt_u32 s38, {99 if 'nokv' in OPT else 2}")
    a(f"s_cbranch_scc1 {lnp}")
    emit_poll(a, 190, 2, 196, sleep=optval("ks", 1))
    ts.stamp(a, 3)
    if "kv2" in OPT:
        poll_issue(a, 189, 196)
    prev_dma(0)
    if "kv2" in OPT:
        lv = a.newlabel("vok")
        a("s_waitcnt vmcnt(8)")
        a("v_cmp_eq_u64 vcc, s[78:79], v[196:197]")
        a("s_nop 1")
        a("s_and_b32 s80, vcc_lo, 3")
        a("s_cmp_eq_u32 s80, 3")
        a(f"s_cbranch_scc1 {lv}")
        emit_poll(a, 189, 2, 196, sleep=optval("ks", 1))
        a.label(lv)
    prev_dma(1)
    a.label(lnp)
    a("s_setprio 0")
    BF = [16, 24, 32]
    AC2 = 40
    AF, PF = 72, optval('pf', 16)
    VPA, VOA = 191, 192
    a("v_and_b32 v8, 15, v0")
    a("v_lshrrev_b32 v9, 4, v0")
    a("v_lshrrev_b32 v10, 5, v0")
    a("v_lshrrev_b32 v11, 2, v8")
    a("v_lshl_add_u32 v11, v10, 2, v11")
    a("v_lshlrev_b32 v11, 7, v11")
    a("v_and_b32 v12, 1, v9")
    a("v_lshl_add_u32 v11, v12, 5, v11")
    a("v_and_b32 v12, 3, v8")
    a("v_lshl_add_u32 v11, v12, 3, v11")
    a("v_lshrrev_b32 v12, 3, v8")
    a("v_lshl_add_u32 v2, v12, 6, v11")
    a("v_xor_b32 v12, 1, v12")
    a("v_lshl_add_u32 v3, v12, 6, v11")
    a("v_add_u32 v4, 0x10000, v2")
    a("v_add_u32 v5, 0x10000, v3")
    a(f"v_add_u32 v6, {L_R0}, v2")
    a(f"v_add_u32 v7, {L_R0}, v3")
    a("v_mov_b32 v12, s86")
    a("v_bfe_u32 v13, v0, 1, 4")
    emit_wg_of(a, VPA, 12, 13, 15)
    a("v_and_b32 v12, 1, v0")
    a(f"v_lshl_add_u32 v{VPA}, v12, 4, v{VPA}")
    a("s_lshr_b32 s80, s32, 1")
    a("s_and_b32 s81, s32, 1")
    a("s_lshl_b32 s81, s81, 2")
    a("s_add_u32 s80, s80, s81")
    a("s_lshl_b32 s80, s80, 3")
    if "fl" in OPT:
        a(f"s_add_u32 s80, s80, 0x{(WS_FL + 0x80000) >> 4:x}")
        a(f"v_add_lshl_u32 v{VPA}, s80, v{VPA}, 4")
    else:
        a(f"s_add_u32 s80, s80, 0x{WS_FL + FL_O * 32768:x}")
        a(f"v_add_u32 v{VPA}, s80, v{VPA}")
    a("s_lshl_b32 s82, s86, 2")
    a("s_add_u32 s82, s82, s32")
    a("v_and_b32 v8, 31, v0")
    a("s_lshl_b32 s80, s82, 5")
    a("v_add_u32 v8, s80, v8")
    a("v_lshlrev_b32 v8, 12, v8")
    a(f"v_lshl_add_u32 v{VOA}, v10, 4, v8")
    a("s_lshl_b32 s56, s42, 7")
    a("s_add_u32 s56, s56, 2048")
    a("s_lshl_b32 s82, s82, 16")
    a(f"s_add_u32 s82, s82, 0x{WS_OF:x}")
    for p in range(8):
        a(f"s_add_u32 s81, s43, {p}")
        a("s_and_b32 s81, s81, 7")
        a("s_lshl_b32 s81, s81, 13")
        a(f"s_add_u32 s{48 + p}, s82, s81")
    hk = {"blk": wo_early()}
    if optval("qk", 0):
        hk["blk"][optval("qk", 0)] = hk["blk"].get(optval("qk", 0), []) + [tlq]
    else:
        hk["mid"] = lambda: a(tlq)
    a("s_waitcnt vmcnt(0)")
    ts.stamp(a, 5)
    a("s_waitcnt lgkmcnt(0)")
    a("s_barrier")
    ts.stamp(a, 4)
    hk["blk"][7] = blk7_flag() + hk["blk"].get(7, [])
    if optval("wt", 0):
        hk["blk"][optval("wt", 0)] = hk["blk"].get(optval("wt", 0), []) + [f"buffer_load_dword v156, v198, {S(SWO)}, 0 offen"]
    hk["prio"] = prio_plan("M")
    emit_attention(a, ool, hk, MASKS_M, "M")
    ts.stamp(a, 6)
    wo_late(a, ts, 0, False)
    if optval('od', 0):
        a(f"s_sleep {optval('od', 0)}")
    poll_issue(a, VPA, 12)
    a("s_waitcnt vmcnt(1)")
    lds_flag_set(a, 32, 0, 16)
    ts.stamp(a, 8)
    if "noo" not in OPT:
        emit_poll(a, VPA, 32, 12, pre=True, sleep=optval("os", 0))
    ts.stamp(a, 9)

    def aload(ks):
        out = []
        if ks % 8 == 4:
            out.append(f"s_add_u32 s{48 + (ks >> 3)}, s{48 + (ks >> 3)}, 4096")
        out.append(f"buffer_load_dwordx4 {vr(AF + 4 * (ks % PF), 4)}, v1, {S(SWS)}, s{48 + (ks >> 3)} offen offset:{(ks & 3) * 1024} {scl()}")
        return out

    def breads(ks, buf):
        f = BF[buf]
        o = WLOC[ks]
        base, o = (6, o - L_R0) if o >= L_R0 else (4, o - 65536) if o >= 65536 else (2, o)
        out = []
        for ct in range(2):
            out.append(f"ds_read_b64_tr_b16 {vr(f + 4 * ct, 2)}, v{base + ct} offset:{o}")
            out.append(f"ds_read_b64_tr_b16 {vr(f + 4 * ct + 2, 2)}, v{base + ct} offset:{o + 1024}")
        return out

    for ks in range(PF):
        for x in aload(ks):
            a(x)
    CHK = {}
    if "g2e" in OPT:
        CHK = {8 * NE - 2: (0, 16)}
    else:
        emit_lds_wait(a, VLF, 0, 16)
        emit_lds_wait(a, VLF, 16, 16)
    for x in breads(0, 0) + breads(1, 1):
        a(x)
    for ks in range(64):
        f = BF[ks % 3]
        issued = min(63, ks + PF - 1)
        a(f"s_waitcnt vmcnt({issued - ks}) lgkmcnt({4 if ks < 63 else 0})")
        af = vr(AF + 4 * (ks % PF), 4)
        nxt = breads(ks + 2, (ks + 2) % 3) if ks + 2 < 64 else []
        d0, d1 = vr(AC2, 16), vr(AC2 + 16, 16)
        a(f"v_mfma_f32_32x32x16_bf16 {d0}, {vr(f, 4)}, {af}, {'0' if ks == 0 else d0}")
        if ks + 1 in CHK:
            for i, o in enumerate(CHK[ks + 1]):
                a(f"ds_read_b128 {vr(8 + 4 * i, 4)}, v{VLF} offset:{o}")
        if ks in CHK:
            for i in range(4):
                a(f"v_and_b32 v{8 + i}, v{8 + i}, v{12 + i}")
            a("v_and_b32 v8, v8, v9")
            a("v_and_b32 v10, v10, v11")
            a("v_and_b32 v8, v8, v10")
            lf, lb = a.newlabel("wspin"), a.newlabel("wback")
            a("v_cmp_ne_u32 vcc, 0, v8")
            a(f"s_cbranch_vccz {lf}")
            a.label(lb)
            sub = Asm()
            sub.uid = a.uid + 2000
            for o in CHK[ks]:
                emit_lds_wait(sub, VLF, o, 8)
            a.uid = sub.uid
            ool.append((lf, [x.strip() for x in sub.L], lb))
        for x in nxt:
            a(x)
        a(f"v_mfma_f32_32x32x16_bf16 {d1}, {vr(f + 4, 4)}, {af}, {'0' if ks == 0 else d1}")
        if ks + PF < 64:
            for x in aload(ks + PF):
                a(x)
    ts.stamp(a, 28)
    a("s_nop 7")
    a("s_nop 7")
    for ct in range(2):
        b = AC2 + 16 * ct
        for j in range(8):
            a(f"v_cvt_pk_bf16_f32 v{b + j}, v{b + 2 * j}, v{b + 2 * j + 1}")
        a("s_nop 1")
        for jj in range(2):
            a(f"v_permlane32_swap_b32 v{b + 4 * jj}, v{b + 4 * jj + 2}")
            a(f"v_permlane32_swap_b32 v{b + 4 * jj + 1}, v{b + 4 * jj + 3}")
        for jj in range(2):
            a(f"buffer_store_dwordx4 {vr(b + 4 * jj, 4)}, v{VOA}, {S(SOUT)}, s56 offen offset:{ct * 64 + jj * 32}{' sc1' if 'ob' in OPT else ''}{' nt' if 'nb' in OPT else ''}")
    ts.final(a, 10)
    a("s_endpgm")


def h_path(a, ts, ool):
    a(f"s_setprio {optval('hp', 3)}")
    XO, WO = 2, 6
    a("v_lshrrev_b32 v12, 3, v0")
    a("v_and_b32 v13, 7, v0")
    a("s_lshl_b32 s45, s33, 7")
    a("s_lshl_b32 s46, s44, 5")
    a("s_add_u32 s45, s45, s46")
    a("v_lshrrev_b32 v14, 4, v0")
    a("v_xor_b32 v14, v14, v13")
    a("v_add_u32 v15, s45, v12")
    a("v_lshlrev_b32 v15, 11, v15")
    a(f"v_lshl_add_u32 v{XO}, v14, 4, v15")
    a(f"v_xor_b32 v{XO + 1}, 64, v{XO}")
    a(f"v_add_u32 v{XO + 1}, {16384 - 1024}, v{XO + 1}")
    a(f"v_add_u32 v{XO + 2}, {2 * (16384 - 1024)}, v{XO}")
    a(f"v_add_u32 v{XO + 3}, {2 * (16384 - 1024)}, v{XO + 1}")
    a("s_lshl_b32 s45, s44, 12")
    main_a = a
    if "fs" in OPT:
        a = Asm()
    a("s_mul_i32 s48, s44, 98304")
    a("s_lshl_b32 s46, s34, 7")
    a("s_add_u32 s48, s48, s46")
    if "wl" in OPT:
        a("v_lshrrev_b32 v14, 2, v0")
        a("v_and_b32 v14, 4, v14")
        a("v_xor_b32 v14, v14, v13")
        a("v_mul_u32_u24 v15, 6144, v12")
        a("v_lshl_add_u32 v15, v14, 4, v15")
        a(f"v_add_u32 v{WO}, s48, v15")
        a(f"v_add_u32 v{WO + 1}, 48128, v{WO}")
    for i in range(3 if "wl" not in OPT else 0):
        if i:
            a(f"v_add_u32 v14, {64 * i}, v0")
        src = "v14" if i else "v0"
        a(f"v_mul_u32_u24 v15, 2731, {src}")
        a("v_lshrrev_b32 v15, 16, v15")
        a("v_mul_u32_u24 v16, 24, v15")
        a(f"v_sub_u32 v16, {src}, v16")
        a("v_bfe_u32 v18, v15, 1, 1")
        a("v_lshlrev_b32 v18, 2, v18")
        a("v_xor_b32 v16, v16, v18")
        a("v_lshrrev_b32 v18, 3, v16")
        a("v_and_b32 v16, 7, v16")
        a("v_mul_u32_u24 v15, 6144, v15")
        a("v_lshl_add_u32 v15, v18, 11, v15")
        a("v_lshl_add_u32 v15, v16, 4, v15")
        for ii in (i, i + 3):
            il = ii if ii < 4 else ii - 4
            a(f"s_add_u32 s49, s48, {(8 * 6144 if ii >= 3 else 0) - 1024 * il}")
            a(f"v_add_u32 v{WO + ii}, s49, v15")
    a("s_mul_i32 s43, s44, 6144")
    a("s_add_u32 s43, s43, 16384")
    wsetup = [x.strip() for x in a.L] if "fs" in OPT else []
    a = main_a
    order = []

    RG = optval("rg", 8)

    def pace(t):
        if t >= 6 and optval("pc", 0):
            a(f"s_nop {optval('pc', 0) - 1}")
            if optval("pc2", 0):
                a(f"s_nop {optval('pc2', 0) - 1}")

    def tile_index(t):
        if "hot" in OPT:
            a(f"s_mov_b32 s42, {t & 1}")
            return
        if RG <= 1:
            a(f"s_mov_b32 s42, {t}")
            return
        if SG:
            a(f"s_bfe_u32 s42, s{54 + (t >> 3)}, 0x{0x40000 + 4 * (t & 7):x}")
            return
        if "f0" in OPT:
            if t == 0:
                a("s_mov_b32 s42, 15")
            elif t <= 8:
                a(f"s_add_u32 s42, s56, {t - 1}")
                a("s_and_b32 s42, s42, 7")
            else:
                a("s_and_b32 s42, s56, 7")
                a("s_min_u32 s42, s42, 6")
                a(f"s_add_u32 s42, s42, {t - 9}")
                a("s_cmp_ge_u32 s42, 7")
                a("s_cselect_b32 s49, 1, 8")
                a("s_add_u32 s42, s42, s49")
            return
        GR = [o[2:] for o in OPT if o.startswith("gr")]
        if GR:
            g0 = 0
            for c in GR[0]:
                if t < g0 + int(c):
                    break
                g0 += int(c)
            a(f"s_add_u32 s42, s56, {t}")
            a(f"s_and_b32 s42, s42, {int(c) - 1}")
            if g0:
                a(f"s_add_u32 s42, s42, {g0}")
            return
        a(f"s_add_u32 s42, s56, {t}")
        a(f"s_and_b32 s42, s42, {RG - 1}")
        if t >= RG:
            a(f"s_add_u32 s42, s42, {t // RG * RG}")

    SG = optval("sg", 0)
    if SG:
        a("s_lshr_b32 s56, s35, 3")
        a("s_add_u32 s56, s56, s35")
        a("s_and_b32 s56, s56, 3")
        for c in range(4):
            seq = sorted(range(16), key=lambda x: (x - SG - 0.5) if (x & 3) == c else x)
            w = [sum(seq[8 * h + i] << (4 * i) for i in range(8)) for h in range(2)]
            if c == 0:
                a(f"s_mov_b32 s54, 0x{w[0]:x}")
                a(f"s_mov_b32 s55, 0x{w[1]:x}")
            else:
                a(f"s_cmp_eq_u32 s56, {c}")
                a(f"s_cselect_b32 s54, 0x{w[0]:x}, s54")
                a(f"s_cselect_b32 s55, 0x{w[1]:x}, s55")
    a("s_lshr_b32 s56, s35, 3")
    a(f"s_mul_i32 s56, s56, {optval('rb', 2)}")
    if optval("ra", 0):
        a(f"s_bfe_u32 s49, s35, 0x{((3 - optval('ra', 0)) << 16) + optval('ra', 0):x}")
        a("s_add_u32 s56, s56, s49")
    else:
        a("s_add_u32 s56, s56, s35")
    if optval("rx", 0):
        a(f"s_mul_i32 s49, s3, {optval('rx', 0)}")
        a("s_add_u32 s56, s56, s49")
    if optval("ry", 0):
        a("s_lshr_b32 s49, s3, 1")
        a(f"s_mul_i32 s49, s49, {optval('ry', 0)}")
        a("s_add_u32 s56, s56, s49")
    if RG == 16:
        a("s_lshl_b32 s56, s56, 1")

    def issue_x(t):
        if "nodma" in OPT and t >= 3:
            order.append(f"x{t}")
            return
        a(f"s_add_u32 m0, s45, {slot(t) * 40960}")
        tile_index(t)
        a("s_lshl_b32 s42, s42, 7")
        for i in range(4):
            a(f"buffer_load_dwordx4 v{XO + i}, {S(SX)}, s42 offen offset:{1024 * i} {nt('x') if t % RG == RG - 1 else ''} lds")
            pace(t)
        order.append(f"X{t}")

    def issue_w(t):
        if "nodma" in OPT and t >= 3:
            order.append(f"x{t}")
            return
        while wsetup:
            a(wsetup.pop(0))
        st = slot(t)
        a(f"s_add_u32 m0, s43, {st * 40960}")
        tile_index(t)
        a("s_mul_i32 s42, s42, 393216")
        if "wl" in OPT:
            for i in range(6):
                if i == 4:
                    a(f"s_add_u32 m0, s43, {st * 40960 + 4096}")
                    a("s_add_u32 s42, s42, 4096")
                a(f"buffer_load_dwordx4 v{WO + (i & 1)}, {S(SW)}, s42 offen offset:{1024 * (i & 3)} lds")
            order.append(f"W{t}")
            return
        for i in range(4):
            a(f"buffer_load_dwordx4 v{WO + i}, {S(SW)}, s42 offen offset:{1024 * i} {nt('x') if t % RG == RG - 1 else ''} lds")
            pace(t)
        a(f"s_add_u32 m0, s43, {st * 40960 + 4096}")
        a("s_nop 0")
        for i in range(4, 6):
            a(f"buffer_load_dwordx4 v{WO + i}, {S(SW)}, s42 offen offset:{1024 * (i - 4)} {nt('x') if t % RG == RG - 1 else ''} lds")
        order.append(f"W{t}")

    RQ = [list(range(28, 68, 4)), list(range(68, 108, 4)),
          list(range(108, 124, 4)) + list(range(200, 216, 4)) + [220, 224]]
    parked = {}

    def park(t, part):
        if t not in parked:
            parked[t] = next(b for b in range(3) if b not in parked.values())
        q = RQ[parked[t]]
        tile_index(t)
        if part == "X":
            a("s_lshl_b32 s42, s42, 7")
            for i in range(4):
                a(f"buffer_load_dwordx4 {vr(q[i], 4)}, v{XO + i}, {S(SX)}, s42 offen offset:{1024 * i}")
        else:
            a("s_mul_i32 s42, s42, 393216")
            for i in range(6):
                a(f"buffer_load_dwordx4 {vr(q[4 + i], 4)}, v{WO + i}, {S(SW)}, s42 offen offset:{1024 * (i & 3)}")
        order.append(f"{part}{t}")

    def unpark(t):
        wait_tile(t)
        q = RQ[parked[t]]
        a(f"s_add_u32 s42, s45, {slot(t) * 40960}")
        a("v_add_u32 v170, s42, v1")
        a(f"s_add_u32 s42, s43, {slot(t) * 40960}")
        a("v_add_u32 v171, s42, v1")
        for i in range(10):
            a(f"ds_write_b128 v{170 + (i >= 4)}, {vr(q[i], 4)} offset:{1024 * (i if i < 4 else i - 4)}")
        parked[t] = -1

    def vm(x):
        a(x)
        if x.startswith("buffer"):
            order.append("P")

    def cnt(lst):
        return sum({"X": 4, "W": 6, "P": 1, "L": 0, "U": 0, "x": 0, "R": 1, "E": 0, "a": 0}[x[0]] for x in lst)

    def wait_tile(b):
        if "nodma" in OPT and b >= 3:
            return
        last = max(i for i, x in enumerate(order) if x in (f"X{b}", f"W{b}"))
        assert f"X{b}" in order and f"W{b}" in order
        n = cnt(order[last + 1:])
        assert n < 64
        a(f"s_waitcnt vmcnt({n})")

    def later():
        a("s_lshl_b32 s80, s84, 2")
        a("s_add_u32 s80, s80, s44")
        a("s_lshl_b32 s80, s80, 11")
        a("v_lshlrev_b32 v179, 5, v0")
        a("v_add_u32 v179, s80, v179")
        a("s_lshl_b32 s87, s84, 2")
        a("s_add_u32 s87, s87, s44")
        a("s_lshl_b32 s87, s87, 12")
        a(f"s_buffer_load_dword s57, {S(SHK)}, s87")
        a(f"s_mul_i32 s88, s44, {URO}")
        a(f"s_add_u32 s88, s88, {L_R0 + 4 * (CW - URO)}")
        a(f"s_mul_i32 s86, s44, {CW - URO}")
        a(f"s_add_u32 s86, s86, {L_R0 - URO}")
        a("s_lshl_b32 s80, s35, 2")
        a("s_add_u32 s80, s80, s44")
        a("s_lshl_b32 s80, s80, 6")
        a("v_add_u32 v20, s80, v0")
        a("v_lshrrev_b32 v241, 3, v20")
        a("v_lshlrev_b32 v241, 11, v241")
        a("v_and_b32 v20, 7, v20")
        a("v_lshl_add_u32 v241, v20, 7, v241")
        a("s_lshr_b32 s80, s3, 2")
        a("s_lshl_b32 s80, s80, 10")
        a("v_add_u32 v241, s80, v241")
        a("s_lshl_b32 s80, s35, 6")
        a("s_lshl_b32 s81, s44, 4")
        a("s_add_u32 s80, s80, s81")
        a("v_lshrrev_b32 v20, 1, v0")
        a("v_add_u32 v20, s80, v20")
        a("v_lshlrev_b32 v20, 11, v20")
        a("v_and_b32 v21, 1, v0")
        a("v_lshl_add_u32 v20, v21, 7, v20")
        a("s_lshl_b32 s80, s3, 8")
        a("v_add_u32 v20, s80, v20")
        a("v_lshlrev_b32 v21, 7, v0")
        a("v_cmp_gt_u32 vcc, 32, v0")
        a("s_nop 1")
        a("v_cndmask_b32 v242, v240, v20, vcc")
        a("v_cndmask_b32 v243, v240, v21, vcc")
        a("v_lshrrev_b32 v20, 3, v0")
        a("v_and_b32 v21, 7, v0")
        a("s_lshl_b32 s80, s35, 6")
        a("s_lshl_b32 s81, s3, 2")
        a("s_add_u32 s81, s81, s44")
        a("s_lshl_b32 s81, s81, 5")
        a("v_lshlrev_b32 v22, 3, v20")
        a("v_add_u32 v22, s80, v22")
        a("v_lshlrev_b32 v23, 2, v21")
        a("v_add_u32 v23, s81, v23")
        a(f"v_lshlrev_b32 v{PA}, 12, v23")
        a(f"v_lshl_add_u32 v{PA}, v22, 1, v{PA}")
        a(f"v_lshlrev_b32 v{PA + 1}, 11, v22")
        a(f"v_lshl_add_u32 v{PA + 1}, v23, 1, v{PA + 1}")
        a(f"v_lshlrev_b32 v{PA + 2}, 12, v22")
        a(f"v_lshl_add_u32 v{PA + 2}, v23, 1, v{PA + 2}")
        a("v_bfe_u32 v20, v0, 2, 3")
        a("s_lshl_b32 s80, s44, 3")
        a("v_add_u32 v20, s80, v20")
        a("v_lshlrev_b32 v20, 3, v20")
        a("v_add_u32 v20, s3, v20")
        a("v_lshlrev_b32 v20, 7, v20")
        a("v_and_b32 v21, 3, v0")
        a("v_lshl_add_u32 v20, v21, 3, v20")
        a(f"v_add_u32 v{PA + 3}, 0x{WS_FL + FL_Y2 * 32768 + 32:x}, v20")
        a("s_and_b32 s40, s44, 1")
        a("s_lshr_b32 s41, s44, 1")
        a("s_waitcnt lgkmcnt(0)")
        a("s_lshl_b32 s80, s44, 4")
        a("s_lshr_b64 s[38:39], s[76:77], s80")
        a("s_lshl_b32 s39, s38, 16")
        a("s_lshl_b32 s57, s57, 16")
        a("s_lshl_b32 s40, s40, 1")
        a("s_add_u32 s40, s40, 1")
        a("v_and_b32 v192, 31, v0")
        a("v_lshlrev_b32 v192, 3, v192")
        a("v_add_u32 v192, s3, v192")
        a("v_lshlrev_b32 v192, 7, v192")
        a("s_lshr_b32 s80, s35, 3")
        a("s_lshl_b32 s80, s80, 3")
        a(f"s_add_u32 s80, s80, 0x{WS_FL + FL_UR * 32768 + 32:x}")
        a("v_add_u32 v192, s80, v192")
        a("s_lshl_b32 s80, s44, 11")
        a(f"s_add_u32 s80, s80, {L_QH}")
        a("v_add_u32 v193, s80, v1")
        a("v_lshlrev_b32 v180, 3, v0")
        a("v_add_u32 v180, s86, v180")
        a("v_and_b32 v181, 1, v0")
        a(f"v_mul_u32_u24 v181, {CPY}, v181")
        a("v_bfe_u32 v182, v0, 1, 1")
        a("v_lshl_add_u32 v181, v182, 4, v181")
        a("v_add_u32 v181, s88, v181")
        a("v_mov_b32 v182, s88")
        a("v_mov_b32 v183, s57")
        for i in range(4):
            a(f"v_mov_b32 v{184 + i}, 0")

    p_setup, p_loads, p_comp, p_stores = p1_lists()
    if "nop1" in OPT:
        p_loads, p_comp, p_stores = p_loads[:1], [], []

    main_a = a
    a = Asm()
    for y in p_setup:
        a(y)
    later()
    setup2 = [x.strip() for x in a.L]
    a = main_a

    gl = list(range(32))

    def act(x):
        k, arg = x[0], x[1:]
        if k == "X":
            issue_x(int(arg))
        elif k == "W":
            issue_w(int(arg))
        elif k == "T":
            issue_x(int(arg)); issue_w(int(arg))
        elif k == "Y":
            park(int(arg), "X"); park(int(arg), "W")
        elif k == "Z":
            unpark(int(arg))
        elif k == "F":
            t0, n = map(int, arg.split("_"))
            emit_touch_fine(a, 234, 235, 228, t0)
            for y in touch(t0, n, 234, 235, 246):
                vm(y)
        elif k == "C":
            t = int(arg)
            a(f"s_cmp_eq_u32 s58, {t & 3}")
            a("s_cselect_b64 vcc, -1, 0")
            a(f"s_mov_b32 s82, {t * 128}")
            a(f"s_mov_b32 s83, {t * 393216}")
            a("v_cndmask_b32 v238, v240, v245, vcc")
            a("v_cndmask_b32 v239, v240, v244, vcc")
            vm(f"buffer_load_dword v246, v238, {S(SW)}, s83 offen")
            vm(f"buffer_load_dword v247, v239, {S(SX)}, s82 offen")
        elif k == "K":
            r = 242
            if arg:
                a(f"s_cmp_eq_u32 s58, {arg}")
                a("s_cselect_b64 vcc, -1, 0")
                a("s_nop 0")
                a("v_cndmask_b32 v237, v240, v242, vcc"); r = 237
            vm(f"buffer_load_dword v248, v{r}, {S(SK)}, 0 offen")
            vm(f"buffer_load_dword v249, v{r}, {S(SV)}, 0 offen")
        elif k == "P":
            for _ in range(int(arg)):
                if p_loads:
                    vm(p_loads.pop(0))
            if not p_loads:
                order.append("L")
        elif k == "V":
            assert all(v < 0 for v in parked.values())
            if "L" in order:
                a(f"s_waitcnt vmcnt({cnt(order[order.index('L') + 1:])})")
                order.remove("L")
            for _ in range(int(arg)):
                if p_comp:
                    a(p_comp.pop(0))
        elif k == "S":
            assert not p_comp and not p_loads
            for y in p_stores:
                vm(y)
            order.append("U")
        elif k == "U":
            a(f"s_waitcnt vmcnt({cnt(order[order.index('U') + 1:])})")
            emit_token_take(a, 172, VZ)
            emit_publish(a, FL_UR, 194, VZ)
            order.append("P")
        elif k == "A":
            emit_attn_setup(a, MASKS_H)
        elif k == "R":
            poll_issue(a, 192, 198)
            order.append("R")
        elif k == "o":
            vm(f"buffer_load_dword v178, v179, {S(SWO)}, 0 offen")
        elif k == "Q":
            vm(f"buffer_load_dword v246, v242, {S(SQ)}, 0 offen")
        elif k == "G":
            vm(f"buffer_load_dword v246, v243, {S(SHK)}, s87 offen")
        elif k == "O":
            vm(f"buffer_load_dword v247, v241, {S(SWO)}, 0 offen")
        elif k == "t":
            vm(f"buffer_load_dwordx2 v[172:173], v{VZ}, {S(SDBG)}, 0 offen{SC}")
        elif k == "a":
            ptr_loads(a)
            order.append("a")
        elif k == "b":
            if "fs" in OPT:
                if "a" not in order:
                    ptr_loads(a)
                a("s_waitcnt lgkmcnt(0)")
            late_setup(a, ts)
            if ts.on:
                order.append("P")
            a("v_mov_b32 v240, 0x80000000")
            a("s_and_b32 s58, s35, 3")
        elif k == "c":
            for _ in range(int(arg)):
                if setup2:
                    a(setup2.pop(0))
        elif k == "H":
            a("ds_write_b128 v181, v[184:187]")
            a(f"ds_write_b32 v182, v183 offset:{CPY + 28}")
            for c in range(2):
                a(f"s_add_u32 m0, s88, {32 + c * CPY}")
                a(f"s_add_u32 s80, s87, {2 * c}")
                for kk in range(4):
                    vm(f"buffer_load_dwordx4 v1, {S(SHK)}, s80 offen offset:{1024 * kk} {nt('h') if c else ''} lds")
        elif k in "DE":
            ls = a.newlabel("urskip")
            if "E" not in order:
                a(f"ds_write_b64 v180, v[184:185] offset:{URO + 4096}")
            if k == "E":
                a(f"s_waitcnt vmcnt({cnt(order[order.index('R') + 1:])})")
                a("v_cmp_eq_u64 vcc, s[78:79], v[198:199]")
                a("s_mov_b32 s38, 0")
                a("s_nop 0")
                a("s_cmp_eq_u32 vcc_lo, -1")
                a(f"s_cbranch_scc0 {ls}")
                a("s_mov_b32 s38, 1")
                order.append("E")
            else:
                if "E" in order:
                    a("s_cmp_eq_u32 s38, 1")
                    a(f"s_cbranch_scc1 {ls}")
                emit_poll(a, 192, 32, 198, pre=True)
                ts.stamp(a, 2)
            a(f"s_add_u32 m0, s86, {URO}")
            a(f"s_add_u32 s80, s87, 0x{WS_UR:x}")
            for kk in range(4):
                a(f"buffer_load_dwordx4 v1, {S(SWS)}, s80 offen offset:{1024 * kk} {nt('u')} lds")
            a.label(ls)
        else:
            raise ValueError(x)

    sc = os.environ.get("SCHED") or SCHEDS[optval("sc", 0)]
    sched = sc.split("|")
    assert len(sched) == 18, len(sched)
    if "tse" in OPT and ts.enabled:
        a("s_memrealtime s[92:93]")
    if "wn" in OPT:
        while wsetup:
            a(wsetup.pop(0))
    a("s_waitcnt lgkmcnt(0)")
    if "tse" in OPT and ts.enabled:
        a("v_writelane_b32 v254, s92, 29")
        ts.stamp(a, 0)
    for x in sched[0].split():
        act(x)
        if "tse" in OPT and x == "X1":
            ts.stamp(a, 9)
        if "tse" in OPT and x[0] == "c":
            ts.stamp(a, 2)
    for b in range(0, 17):
        if b not in skipped():
            real, nb = b, b
            while nb + 1 in skipped():
                nb += 1
            if b in parked:
                assert parked[b] < 0
                a("s_waitcnt lgkmcnt(0)")
            elif b < 16:
                wait_tile(max(range(b, nb + 1), key=lambda t: max(order.index(f"X{t}"), order.index(f"W{t}"))))
            if "tse" in OPT and b == 0:
                ts.stamp(a, 28)
            a("s_barrier")
        if "tsb" in OPT:
            ts.stamp(a, 11 + b)
        for x in sched[b + 1].split():
            if x[0] in "XWTZ":
                assert int(x[1:]) <= real + 3
            act(x)
    ts.stamp(a, 1)
    assert not setup2
    a("s_mov_b32 s46, s88")
    a(f"s_add_u32 s36, s87, 0x{wsy2():x}")

    def c_start():
        if optval("pv", -1) >= 0:
            a(f"s_setprio {optval('pv', 0)}")
        a("s_waitcnt vmcnt(0)")
        ts.stamp(a, 3)

    b = Asm()
    emit_attn_setup(b, MASKS_H)
    g2_tile(b)
    wo_addr(b)
    ys = emit_conv(a, {"start": c_start, "extra": [x.strip() for x in b.L], "bar": lambda: a("s_barrier")})
    ts.stamp(a, 5)
    a("s_setprio 0")
    if "eb" not in OPT:
        a("s_barrier")
    ts.stamp(a, 4)
    a(f"ds_read_b128 {vr(QC, 4)}, v193")
    a(f"ds_read_b128 {vr(QC + 4, 4)}, v193 offset:1024")
    for x in ys:
        a(x)
    YY, OO = 168, 24
    if optval("ph", 0):
        a(f"s_setprio {optval('ph', 0)}")
    blk = wo_early()
    b = Asm()
    b("s_waitcnt vmcnt(0)")
    emit_publish(b, FL_Y2, 194, VZ)
    yb = optval("yb", 2)
    blk[yb] = [x.strip() for x in b.L] + blk.get(yb, [])
    hk = {"blk": blk}
    blk[7] = blk7_flag() + blk.get(7, [])
    hk["prio"] = prio_plan("H")
    YE = optval("ye", 0)
    b = Asm()
    for i in range(8):
        if i % 2 == 0:
            b(f"s_mov_b32 s80, {4096 * (i >> 1)}")
        b(f"buffer_load_dwordx2 {vr(QQ + 2 * i, 2)}, v{PA + 1}, {S(SQ)}, s80 offen offset:{(i & 1) * 2048}")
    ql = [x.strip() for x in b.L]
    b = Asm()
    poll_issue(b, PA + 3, 196)
    pl = [x.strip() for x in b.L]
    if YE:
        blk[optval("qe", YE)] = blk.get(optval("qe", YE), []) + ql
        blk[YE] = blk.get(YE, []) + pl
    emit_attention(a, ool, hk, MASKS_H, "H")
    ts.stamp(a, 6)
    if not YE:
        for x in ql + pl:
            a(x)

    def y_issue(va):
        a(f"s_mov_b32 s80, 0x{wsy2():x}")
        for dd in range(4):
            a(f"buffer_load_dwordx4 {vr(YY + 4 * dd, 4)}, v{va}, {S(SWS)}, s80 offen {scl()}")
            if dd < 3:
                a("s_add_u32 s80, s80, 4096")

    def y_loads():
        emit_poll(a, PA + 3, 32, 196, pre=True)
        y_issue(PA)

    p3 = Asm()
    a, main_a = p3, a
    for i in range(8):
        for dd in range(4):
            ys = YY + 4 * dd + (i >> 1)
            qs = QQ + 2 * i + (dd >> 1)
            a(f"v_and_b32 v4, 0xffff0000, v{ys}" if i & 1 else f"v_lshlrev_b32 v4, 16, v{ys}")
            a(f"v_and_b32 v5, 0xffff0000, v{qs}" if dd & 1 else f"v_lshlrev_b32 v5, 16, v{qs}")
            a(f"v_mul_f32 v{OO + 4 * i + dd}, v4, v5")
        o = OO + 4 * i
        a(f"v_cvt_pk_bf16_f32 v{o}, v{o}, v{o + 1}")
        a(f"v_cvt_pk_bf16_f32 v{o + 1}, v{o + 2}, v{o + 3}")
    a = main_a
    outs = []
    for i in range(8):
        outs += [f"s_mov_b32 s80, {4096 * i}", f"buffer_store_dwordx2 {vr(OO + 4 * i, 2)}, v{PA + 2}, {S(SOUT)}, s80 offen{' sc1' if 'oa' in OPT else ''}{' nt' if 'na' in OPT else ''}"]

    def gate():
        for x in p3.L:
            a(x.strip())

    if YE:
        ll, lr = a.newlabel("ylate"), a.newlabel("yback")
        a("s_waitcnt vmcnt(2)")
        a("v_cmp_eq_u64 vcc, s[78:79], v[196:197]")
        a("v_mov_b32 v4, 0x80000000")
        a("s_nop 0")
        a("s_cmp_eq_u32 vcc_lo, -1")
        a("s_cselect_b32 s38, 1, 0")
        a("s_cselect_b64 vcc, -1, 0")
        a("s_nop 0")
        a(f"v_cndmask_b32 v4, v4, v{PA}, vcc")
        y_issue(4)
        wo_late(a, ts, 4, True)
        a("s_cmp_eq_u32 s38, 0")
        a(f"s_cbranch_scc1 {ll}")
        a(f"s_waitcnt vmcnt({0 if 'nolate' in OPT else nlate() + (1 if optval('es', 0) == 1 else 0)})")
        a.label(lr)
        main_a, sub = a, Asm()
        sub.uid = main_a.uid + 1000
        a = sub
        a("s_waitcnt vmcnt(0)")
        lds_flag_set(a, 32, 0, 4)
        for x in pl:
            a(x)
        y_loads()
        a("s_waitcnt vmcnt(0)")
        main_a.uid = sub.uid
        a = main_a
        ool.append((ll, [x.strip() for x in sub.L], lr))
        gate()
        a("s_waitcnt vmcnt(0)")
        lds_flag_set(a, 32, 0, 4)
        ts.stamp(a, 8)
        if optval("ad", 0):
            a(f"s_sleep {optval('ad', 0)}")
        for x in outs:
            a(x)
    else:
        raise ValueError("ye required")
    if optval("wb", 0):
        lw = a.newlabel("nowb")
        a(f"s_and_b32 s80, s35, {optval('wb', 0) - 1}")
        a("s_or_b32 s80, s80, s44")
        a("s_cmp_lg_u32 s80, 0")
        a(f"s_cbranch_scc1 {lw}")
        a("s_waitcnt vmcnt(0)")
        a(f"s_sleep {optval('wd', 16)}")
        a("buffer_wbl2 sc1")
        a("s_waitcnt vmcnt(0)")
        a.label(lw)
    ts.final(a, 10)
    a("s_endpgm")


def ptr_loads(a, helper=True):
    for (d, off, size) in SRDS[2:]:
        if helper or d not in (SK, SV, SSH, SHK):
            a(f"s_load_dwordx2 s[{d}:{d + 1}], s[0:1], {off}")
    if helper:
        a("s_load_dwordx2 s[36:37], s[0:1], 40")


def gen_fused(a, ts):
    name = NAME + "_kernel"
    kernel_begin(a, name)
    ts.entry(a)
    a("s_cmp_ge_u32 s2, 256")
    a("s_cbranch_scc1 L_end")
    if optval("xj", 0):
        a(f"s_xor_b32 s2, s2, {optval('xj', 0)}")
    for (d, off, size) in SRDS[:2]:
        a(f"s_load_dwordx2 s[{d}:{d + 1}], s[0:1], {off}")
    if "fs" not in OPT:
        ptr_loads(a)
    for o in OPT:
        if o.startswith("xp"):
            c = sum((int(d) ^ p) << (2 * p + 1) for p, d in enumerate(o[2:]))
            a("s_and_b32 s80, s2, 6")
            a(f"s_lshr_b32 s80, 0x{c:x}, s80")
            a("s_and_b32 s80, s80, 6")
            a("s_xor_b32 s2, s2, s80")
    a("v_lshrrev_b32 v1, 6, v0")
    if "hf" in OPT:
        a("v_xor_b32 v1, 4, v1")
    a("v_and_b32 v0, 63, v0")
    a("s_and_b32 s3, s2, 7")
    a("v_readfirstlane_b32 s32, v1")
    a("s_lshr_b32 s35, s2, 3")
    a("s_and_b32 s33, s3, 1")
    a("s_lshl_b32 s33, s33, 3")
    a("s_and_b32 s80, s35, 7")
    a("s_add_u32 s33, s33, s80")
    a("s_lshr_b32 s34, s3, 1")
    a("s_lshl_b32 s34, s34, 2")
    a("s_lshr_b32 s80, s35, 3")
    a("s_add_u32 s34, s34, s80")
    if optval("hx", 0):
        a(f"s_xor_b32 s34, s34, {optval('hx', 0)}")
    a("v_lshlrev_b32 v1, 4, v0")
    a(f"v_mov_b32 v{VZ}, 0")
    for (d, off, size) in SRDS[:2]:
        a(f"s_mov_b32 s{d + 2}, 0x{size:x}")
        a(f"s_mov_b32 s{d + 3}, 0x20000")
    a("s_and_b32 s44, s32, 3")
    a("s_mov_b32 s59, 0")
    a("s_cmp_lt_u32 s32, 4")
    a("s_cbranch_scc1 L_M")
    ool = []
    h_path(a, ts, ool)
    a.label("L_M")
    if "fs" in OPT:
        ptr_loads(a, False)
    m_path(a, ts, ool)
    for (lf, body, lb) in ool:
        a.label(lf)
        for x in body:
            a(x)
        a(f"s_branch {lb}")
    a.label("L_end")
    a("s_endpgm")
    emit_exact(a)
    return name, 256, 102


def build(instrument=False):
    if "best" in OPT:
        have = {o.rstrip("0123456789") for o in OPT}
        OPT.update(o for o in BEST.split(",") if o.rstrip("0123456789") not in have and "no" + o not in OPT)
    ts = TS(instrument)
    a = Asm()
    a.raw("; fused H3 long-conv | sliding-window attention kernel (generated)")
    a.raw("; @launch grid=(256,1,1) block=(512,1,1) lds=163840")
    a.raw('.amdgcn_target "amdgcn-amd-amdhsa--gfx950"')
    a.raw(".text")
    n, v, s = gen_fused(a, ts)
    a.raw('.section .rodata,"a"')
    kernel_desc(a, n, v, s)
    return a.text()


if __name__ == "__main__":
    out = sys.argv[1] if len(sys.argv) > 1 else f"cdna_kernels/{NAME}.s"
    if len(sys.argv) > 2:
        OPT.update(sys.argv[2].split(","))
    open(out, "w").write(build())
```

```python
import sys
sys.path.insert(0,'dev')
from lib import *
import gfk
gfk.OPT.update(x for x in (sys.argv[1].split(',') if len(sys.argv) > 1 else []) if x)
for ts in (False, True):
    asm = gfk.build(ts)
    co = build(asm, "f2.co", gfk.NAME+"_kernel", 12)
    print(cl.address_register_problem(co, gfk.NAME+"_kernel"))
```

```python
import sys, struct, os, re
from gen import Asm, vr, srd, kernel_begin, kernel_desc, MB, NAME
from gf import f32hex
import gf

OPT = set()
WS_KF, WS_VF, WS_UR, WS_OF, WS_Y2, WS_FL = 4 * MB, 8 * MB, 12 * MB, 16 * MB, 20 * MB, 24 * MB
WS_SIZE = 25 * MB
FL_UR, FL_K, FL_Y2, FL_O, FL_V = 0, 1, 2, 3, 4

CPY, URO, CW = 4160, 8320, 12928
L_HD, L_V = 49152, 24576
L_QH = 98304
L_R0 = 106496
L_FL = L_R0 + 4 * CW
SC = " sc1"
SPIN_LIMIT = 1 << 18
SCALE_LOG2E = (32 ** -0.5) * 1.4426950408889634
SX, SW, SWS, SK, SV, SSH, SHK, SWO, SQ, SOUT, SDBG = 4, 8, 12, 16, 20, 24, 28, 60, 64, 68, 72
MASKS_H = [4, 6, 8, 10, 16, 18, 20, 22, 24, 26, 48, 50, 52, 54, 56, 58]
MASKS_M = [4, 6, 16, 18, 20, 22, 24, 26, 28, 30, 58, 76, 92, 94, 96, 98]


WS_TS = 32 * MB


class TS:
    def __init__(self, on):
        self.enabled = on
        self.on = False

    def entry(self, a):
        if self.enabled:
            a("s_memrealtime s[98:99]")
            a("s_memtime s[100:101]")
            a("v_mov_b32 v254, 0")

    def setup(self, a, ws_pair):
        if self.enabled:
            a("v_writelane_b32 v254, s98, 30")

    def stamp(self, a, slot):
        if self.enabled and ("tsmin" not in OPT or slot == 10):
            a("s_memrealtime s[90:91]")
            a("s_waitcnt lgkmcnt(0)")
            a(f"v_writelane_b32 v254, s90, {slot}")
            if "cya" in OPT and slot < 11:
                a("s_memtime s[90:91]")
                a("s_waitcnt lgkmcnt(0)")
                a(f"v_writelane_b32 v254, s90, {slot + 12}")

    def final(self, a, slot):
        if not self.enabled:
            return
        a("s_waitcnt vmcnt(0)")
        self.stamp(a, slot)
        a("s_memtime s[90:91]")
        srd(a, 92, SWS, 4 * MB, WS_TS)
        a("s_lshl_b32 s96, s2, 4")
        a("s_add_u32 s96, s96, s32")
        a("s_lshl_b32 s96, s96, 8")
        a("s_waitcnt lgkmcnt(0)")
        a("s_sub_u32 s90, s90, s100")
        a("v_writelane_b32 v254, s90, 31")
        a("v_mov_b32 v255, 0")
        a("v_lshlrev_b32 v253, 3, v0")
        a("s_mov_b32 exec_hi, 0")
        a("buffer_store_dwordx2 v[254:255], v253, s[92:95], s96 offen")


def emit_wg_of(a, vdst, vrb, vhp, t):
    if optval("hx", 0):
        a(f"v_xor_b32 v{vhp}, {optval('hx', 0)}, v{vhp}")
    gf.emit_wg_of(a, vdst, vrb, vhp, t)


def S(n):
    return f"s[{n}:{n + 3}]"


SCHEDS = {
    0: "X0 a W0 X1 b c30 W1 | X2 P7 W2 c36 | T3 P7 X4 | W4 T5 P7 c44 | T6 c44 G | T7 c50 t | T8 V95 | T9 V95 | T10 V95 S | T11"
       " | T12 U | T13 | T14 | T15 O | R | H | E | D",
}
BEST = "we3,yb3,cp,cq50,rg4,ry1,ya,ft30,sw14_2,ye7,prM322110000,prH333221101,pe3,pv1,od8,fs,ms233,bf,ob,af,oa"


def skipped():
    return {int(c, 16) for o in OPT if o.startswith("sk") for c in o[2:]}


def slot(t):
    return (3, 2, 0, 1)[t & 3]


def wsy2():
    return WS_UR if "ya" in OPT else WS_Y2


def nt(k):
    return "nt" if "nt" + k in OPT else ""


def scl():
    return "sc1" if "ldsc1" in OPT else ""


def optval(prefix, default):
    for o in OPT:
        if o.startswith(prefix) and o[len(prefix):].lstrip("-").isdigit():
            return int(o[len(prefix):])
    return default


def poll_issue(a, voff, tmp):
    ps = optval("ps", 0) if (voff == 191 or "psa" in OPT) else 0
    if ps == 4:
        a(f"v_mov_b32 v{tmp}, 0")
        a(f"v_mov_b32 v{tmp + 1}, 0")
        a(f"buffer_atomic_or_x2 {vr(tmp, 2)}, v{voff}, {S(SWS)}, 0 offen sc0 sc1")
        return
    a(f"buffer_load_dwordx2 {vr(tmp, 2)}, v{voff}, {S(SWS)}, 0 offen{[SC, ' sc0 sc1', ' sc1 nt', ' sc0 sc1 nt'][ps]}")


def emit_poll(a, voff, nlanes, tmp, pre=False, sleep=0):
    lp, ck, dn = a.newlabel("poll"), a.newlabel("pollc"), a.newlabel("polld")
    mask = (1 << nlanes) - 1
    a(f"s_mov_b32 s80, 0x{mask & 0xffffffff:x}")
    a(f"s_mov_b32 s81, 0x{mask >> 32:x}")
    a("s_mov_b32 s85, 0")
    if not pre:
        a.label(lp)
        poll_issue(a, voff, tmp)
        a("s_waitcnt vmcnt(0)")
        a(f"v_cmp_eq_u64 vcc, s[78:79], {vr(tmp, 2)}")
        a("s_add_u32 s85, s85, 1")
        a("s_and_b64 s[82:83], vcc, s[80:81]")
        a("s_cmp_eq_u64 s[82:83], s[80:81]")
        a(f"s_cbranch_scc1 {dn}")
        if sleep:
            a(f"s_sleep {sleep}")
        a(f"s_cmp_lt_u32 s85, 0x{SPIN_LIMIT:x}")
        a(f"s_cbranch_scc1 {lp}")
        a.label(dn)
    else:
        a.label(ck)
        a("s_waitcnt vmcnt(0)")
        a(f"v_cmp_eq_u64 vcc, s[78:79], {vr(tmp, 2)}")
        a("s_add_u32 s85, s85, 1")
        a("s_and_b64 s[82:83], vcc, s[80:81]")
        a("s_cmp_eq_u64 s[82:83], s[80:81]")
        a(f"s_cbranch_scc1 {dn}")
        if sleep:
            a(f"s_sleep {sleep}")
        poll_issue(a, voff, tmp)
        a(f"s_cmp_lt_u32 s85, 0x{SPIN_LIMIT:x}")
        a(f"s_cbranch_scc1 {ck}")
        a("s_waitcnt vmcnt(0)")
        a.label(dn)


def emit_publish(a, kind, t0, vz, smode=None, lo=78):
    if kind == FL_O and "fl" in OPT:
        a("s_lshl_b32 s80, s89, 4")
        a(f"s_add_u32 s80, s80, 0x{WS_FL + 0x80000:x}")
    else:
        a(f"s_add_u32 s80, s89, 0x{WS_FL + kind * 32768:x}")
    a(f"v_mov_b32 v{t0}, s{lo}")
    a(f"v_mov_b32 v{t0 + 1}, s79")
    if smode is None:
        a("s_mov_b64 exec, 1")
    else:
        a("s_mov_b32 exec_hi, 0")
        a(f"s_mov_b32 exec_lo, s{smode}")
        a(f"buffer_store_dwordx2 {vr(t0, 2)}, v{vz}, {S(SWS)}, s80 offen")
        a(f"s_xor_b32 exec_lo, s{smode}, 1")
    a(f"buffer_store_dwordx2 {vr(t0, 2)}, v{vz}, {S(SWS)}, s80 offen{SC}")
    a("s_mov_b64 exec, -1")


def emit_token_take(a, t0, vz):
    lp, dn = a.newlabel("tok"), a.newlabel("tokd")
    a("s_mov_b32 s85, 0")
    a.label(lp)
    a(f"v_readfirstlane_b32 s78, v{t0}")
    a(f"v_readfirstlane_b32 s79, v{t0 + 1}")
    a("s_add_u32 s85, s85, 1")
    a("s_cmp_lg_u64 s[78:79], 0")
    a(f"s_cbranch_scc1 {dn}")
    a(f"buffer_load_dwordx2 {vr(t0, 2)}, v{vz}, {S(SDBG)}, 0 offen{SC}")
    a("s_waitcnt vmcnt(0)")
    a(f"s_cmp_lt_u32 s85, 0x{SPIN_LIMIT:x}")
    a(f"s_cbranch_scc1 {lp}")
    a.label(dn)


def emit_wline(a, dst, idx, hi, t):
    a(f"v_mul_u32_u24 v{dst}, 5462, v{idx}")
    a(f"v_lshrrev_b32 v{dst}, 16, v{dst}")
    a(f"v_mul_u32_u24 v{t}, 12, v{dst}")
    a(f"v_sub_u32 v{t}, v{idx}, v{t}")
    if hi is not None:
        a(f"v_lshl_add_u32 v{dst}, v{hi}, 6, v{dst}")
    a(f"v_mul_u32_u24 v{dst}, 6144, v{dst}")
    a(f"v_lshrrev_b32 v{t + 1}, 2, v{t}")
    a(f"v_lshl_add_u32 v{dst}, v{t + 1}, 11, v{dst}")
    a(f"v_and_b32 v{t}, 3, v{t}")
    a(f"v_lshl_add_u32 v{dst}, v{t}, 7, v{dst}")
    a("s_lshr_b32 s83, s3, 1")
    a("s_lshl_b32 s83, s83, 9")
    a(f"v_add_u32 v{dst}, s83, v{dst}")


def emit_touch_fine(a, VTX, VTW, t, t0):
    a(f"v_and_b32 v{t}, 7, v0")
    a(f"v_lshrrev_b32 v{t + 1}, 3, v0")
    a(f"s_add_u32 s82, s59, {t0}")
    a(f"v_add_u32 v{t + 1}, s82, v{t + 1}")
    a(f"v_and_b32 v{t + 1}, 15, v{t + 1}")
    a("s_lshl_b32 s82, s35, 2")
    a("s_add_u32 s82, s82, s44")
    a("s_lshl_b32 s81, s82, 3")
    a("s_and_b32 s83, s3, 1")
    a("s_lshl_b32 s83, s83, 10")
    a("s_add_u32 s81, s81, s83")
    a(f"v_add_u32 v{t + 2}, s81, v{t}")
    a(f"v_lshlrev_b32 v{t + 2}, 11, v{t + 2}")
    a(f"v_lshl_add_u32 v{VTX}, v{t + 1}, 7, v{t + 2}")
    a("s_mul_i32 s82, s82, 6")
    a(f"v_add_u32 v{t + 2}, s82, v{t}")
    emit_wline(a, VTW, t + 2, t + 1, t + 3)
    a(f"v_mov_b32 v{t + 4}, 0x80000000")
    a(f"v_cmp_gt_u32 vcc, 6, v{t}")
    a("s_nop 1")
    a(f"v_cndmask_b32 v{VTW}, v{t + 4}, v{VTW}, vcc")


def emit_touch_coarse(a, VTX, VTW, t):
    a("s_lshr_b32 s82, s35, 2")
    a("s_lshl_b32 s82, s82, 2")
    a("s_add_u32 s82, s82, s44")
    a("s_lshl_b32 s81, s82, 5")
    a("s_and_b32 s83, s3, 1")
    a("s_lshl_b32 s83, s83, 10")
    a("s_add_u32 s81, s81, s83")
    a(f"v_add_u32 v{t + 2}, s81, v0")
    a(f"v_lshlrev_b32 v{VTX}, 11, v{t + 2}")
    a("s_mul_i32 s82, s82, 24")
    a(f"v_add_u32 v{t + 2}, s82, v0")
    emit_wline(a, VTW, t + 2, None, t + 3)
    a(f"v_mov_b32 v{t + 4}, 0x80000000")
    a("v_cmp_gt_u32 vcc, 32, v0")
    a("s_nop 1")
    a(f"v_cndmask_b32 v{VTX}, v{t + 4}, v{VTX}, vcc")
    a("v_cmp_gt_u32 vcc, 24, v0")
    a("s_nop 1")
    a(f"v_cndmask_b32 v{VTW}, v{t + 4}, v{VTW}, vcc")


def touch(t0, nt, VTX, VTW, dst):
    m = (1 << (8 * nt)) - 1
    out = []
    if nt < 8:
        out += [f"s_mov_b32 exec_lo, 0x{m & 0xffffffff:x}", f"s_mov_b32 exec_hi, 0x{m >> 32:x}"]
    out += [f"buffer_load_dword v{dst}, v{VTW}, {S(SW)}, 0 offen",
            f"buffer_load_dword v{dst + 1}, v{VTX}, {S(SX)}, 0 offen"]
    if nt < 8:
        out.append("s_mov_b64 exec, -1")
    return out


QC = 224
SBUF = [8, 24, 40]
KB = [56, 64, 72]
VB = [80, 88, 160]
OA = 96
CM = 200
LS = 128
ONE = 240
PM = 232
P0 = 144
VM, VM2, VT, VNEG, VK, VK0 = 152, 153, 154, 244, 245, 246
YP = 176
QQ, PA = 112, 216


def emit_attn_setup(a0, MASKS, t=4):
    a = lambda x: a0(re.sub(r"\bv([456])\b", lambda m: f"v{int(m.group(1)) - 4 + t}", x))
    a("v_and_b32 v4, 31, v0")
    a("v_lshrrev_b32 v5, 5, v0")
    a("v_lshlrev_b32 v5, 2, v5")
    a("v_sub_u32 v4, v4, v5")
    for r in range(16):
        a(f"v_cmp_le_i32 s[{MASKS[r]}:{MASKS[r] + 1}], {8 * (r >> 2) + (r & 3)}, v4")
    a(f"v_mov_b32 v{VNEG}, 0xf149f2ca")
    a("v_mov_b32 v4, 0xffff")
    a("v_mov_b32 v5, 0xffff0000")
    for j in range(8):
        a(f"v_cndmask_b32 v{PM + j}, 0, v4, s[{MASKS[2 * j]}:{MASKS[2 * j] + 1}]")
        a(f"v_cndmask_b32 v6, 0, v5, s[{MASKS[2 * j + 1]}:{MASKS[2 * j + 1] + 1}]")
        a(f"v_or_b32 v{PM + j}, v{PM + j}, v6")
    a("v_lshrrev_b32 v4, 4, v0")
    a("v_lshrrev_b32 v5, 2, v0")
    a("v_xor_b32 v4, v4, v5")
    a("v_and_b32 v4, 1, v4")
    a("v_cmp_eq_u32 vcc, 0, v4")
    a("v_mov_b32 v5, 0x3f803f80")
    for i in range(4):
        a(f"v_cndmask_b32 v{ONE + i}, 0, v5, vcc")
    a(f"s_mul_i32 s42, s41, {L_HD}")
    a("s_lshl_b32 s43, s40, 11")
    a("s_add_u32 s42, s42, s43")
    a(f"v_add_u32 v{VK}, s42, v1")
    a("s_lshl_b32 s45, s33, 2")
    a("s_add_u32 s45, s45, s40")
    a("s_sub_u32 s46, 8, s45")
    a("s_cmp_lt_u32 s45, 8")
    a("s_cselect_b32 s46, s46, 0")
    a("s_cselect_b32 s43, 0x4000, 0")
    a(f"v_add_u32 v{VK0}, s43, v{VK}")
    a("s_lshl_b32 s47, s45, 5")
    a("s_lshl_b32 s42, s34, 1")
    a("s_add_u32 s47, s47, s42")
    a("s_add_u32 s47, s47, s41")
    a("s_lshl_b32 s47, s47, 11")
    a(f"s_add_u32 s47, s47, 0x{WS_OF:x}")


def prio_plan(role):
    for o in OPT:
        if o.startswith("pr" + role):
            d = o[3:]
            out, last = {}, None
            for k, c in zip([0, 2, 3, 4, 5, 6, 7, 8, 9], d):
                if c != last or k == 9:
                    out[k] = int(c)
                last = c
            return out
    return {}


def emit_attention(a, ool, hooks, MASKS, role):
    order = [8, 0, 7, 6, 5, 4, 3, 2, 1]

    def hook(k):
        if k in hooks:
            hooks[k]()

    def kread(i):
        rel, b = order[i % 9], KB[i % 3]
        return [f"ds_read_b128 {vr(b, 4)}, v{VK} offset:{rel * 2048}",
                f"ds_read_b128 {vr(b + 4, 4)}, v{VK} offset:{rel * 2048 + 1024}"]

    def vread(i):
        rel, b = order[i], VB[i % 3]
        ad = VK0 if rel == 0 else VK
        return [f"ds_read_b128 {vr(b, 4)}, v{ad} offset:{L_V + rel * 2048}",
                f"ds_read_b128 {vr(b + 4, 4)}, v{ad} offset:{L_V + rel * 2048 + 1024}"]

    def smf(i, c):
        s, k = vr(SBUF[i % 3], 16), KB[i % 3]
        return [f"v_mfma_f32_32x32x16_bf16 {s}, {vr(k, 4)}, {vr(QC, 4)}, {c}",
                f"v_mfma_f32_32x32x16_bf16 {s}, {vr(k + 4, 4)}, {vr(QC + 4, 4)}, {s}"]

    def merge():
        lf, lb = a.newlabel("mneg"), a.newlabel("mback")
        a("s_cmp_gt_u32 s46, 0")
        a(f"s_cbranch_scc1 {lf}")
        for r in range(16):
            a(f"v_cndmask_b32 v{SBUF[1] + r}, v{SBUF[1] + r}, v{SBUF[0] + r}, s[{MASKS[r]}:{MASKS[r] + 1}]")
        a.label(lb)
        ool.append((lf, [f"v_cndmask_b32 v{SBUF[1] + r}, v{VNEG}, v{SBUF[0] + r}, s[{MASKS[r]}:{MASKS[r] + 1}]"
                         for r in range(16)], lb))

    def maxblk(i):
        s = SBUF[i % 3]
        ta, tb = (VM, VM2) if i == 1 else (VT, VM2)
        if i >= 2:
            a(f"s_cmp_le_u32 s46, {order[i]}")
            a("s_cselect_b64 vcc, -1, 0")
        a(f"v_max3_f32 v{ta}, v{s}, v{s + 1}, v{s + 2}")
        a(f"v_max3_f32 v{tb}, v{s + 3}, v{s + 4}, v{s + 5}")
        for x in range(5):
            t = (ta, tb)[x & 1]
            a(f"v_max3_f32 v{t}, v{s + 6 + 2 * x}, v{s + 7 + 2 * x}, v{t}")
        a(f"v_max_f32 v{ta}, v{ta}, v{tb}")
        if i >= 2:
            a(f"v_cndmask_b32 v{ta}, v{VNEG}, v{ta}, vcc")
            a(f"v_max_f32 v{VM}, v{VM}, v{ta}")

    if 0 in hooks.get("prio", {}):
        a(f"s_setprio {hooks['prio'][0]}")
    SZ = "sz" in OPT
    for x in kread(0) + kread(1) + kread(2) + vread(0) + vread(1):
        a(x)
    if not SZ:
        a("s_waitcnt lgkmcnt(8)")
        for x in smf(0, "0"):
            a(x)
        a("s_waitcnt lgkmcnt(6)")
        for x in smf(1, "0") + kread(3):
            a(x)
        a("s_nop 7")
        a("s_nop 7")
        merge()
        maxblk(1)
        a(f"v_mov_b32 v{VT}, v{VM}")
        a("s_nop 1")
        a(f"v_permlane32_swap_b32 v{VM}, v{VT}")
        a("s_nop 1")
        a(f"v_max_f32 v{VM}, v{VM}, v{VT}")
        for r in range(16):
            a(f"v_sub_f32 v{CM + r}, 0, v{VM}")
    hook("mid")
    cm, o, ls = ("0" if SZ else vr(CM, 16)), vr(OA, 16), vr(LS, 4)

    def pv(i):
        s = SBUF[i % 3]
        if i == 1:
            return [f"v_mfma_f32_32x32x16_bf16 {o}, {vr(VB[0], 4)}, {vr(s + 8, 4)}, 0",
                    f"v_mfma_f32_16x16x32_bf16 {ls}, {vr(ONE, 4)}, {vr(s, 4)}, 0",
                    f"v_mfma_f32_32x32x16_bf16 {o}, {vr(VB[0] + 4, 4)}, {vr(s + 12, 4)}, {o}",
                    f"v_mfma_f32_16x16x32_bf16 {ls}, {vr(ONE, 4)}, {vr(s + 4, 4)}, {ls}",
                    f"v_mfma_f32_32x32x16_bf16 {o}, {vr(VB[1], 4)}, {vr(P0, 4)}, {o}",
                    f"v_mfma_f32_32x32x16_bf16 {o}, {vr(VB[1] + 4, 4)}, {vr(P0 + 4, 4)}, {o}"]
        v = VB[i % 3]
        return [f"v_mfma_f32_32x32x16_bf16 {o}, {vr(v, 4)}, {vr(s, 4)}, {o}",
                f"v_mfma_f32_16x16x32_bf16 {ls}, {vr(ONE, 4)}, {vr(s, 4)}, {ls}",
                f"v_mfma_f32_32x32x16_bf16 {o}, {vr(v + 4, 4)}, {vr(s + 4, 4)}, {o}",
                f"v_mfma_f32_16x16x32_bf16 {ls}, {vr(ONE, 4)}, {vr(s + 4, 4)}, {ls}"]

    def valu(i):
        s = SBUF[i % 3]
        return [(f"v_exp_f32 v{s + r}, v{s + r}", 8) for r in range(16)] + \
               [(f"v_cvt_pk_bf16_f32 v{s + j}, v{s + 2 * j}, v{s + 2 * j + 1}", 4) for j in range(8)]

    def weave(ms, vs):
        vs = list(vs)
        for m in ms:
            a(m)
            need = (32 if "32x32" in m else 16) - 8
            while vs and need > 0:
                x, c = vs.pop(0)
                a(x)
                need -= c
        for x, c in vs:
            a(x)

    fin = a.newlabel("afin")
    if SZ:
        for i in range(3):
            a(f"s_waitcnt lgkmcnt({8 - 2 * i})")
            for x in smf(i, cm):
                a(x)
        for x in kread(3):
            a(x)
        merge()
    else:
        a("s_waitcnt lgkmcnt(6)")
        for x in smf(2, cm):
            a(x)
        for r in range(16):
            a(f"v_sub_f32 v{SBUF[1] + r}, v{SBUF[1] + r}, v{VM}")
    s = SBUF[1]
    for x, c in valu(1):
        a(x)
    for j in range(8):
        a(f"v_and_b32 v{s + 8 + j}, v{s + j}, v{PM + j}")
    for j in range(8):
        a(f"v_xor_b32 v{P0 + j}, v{s + j}, v{s + 8 + j}")
    blk = hooks.get("blk", {})
    for i in range(2, 9):
        ex = a.newlabel("aexit")
        a("s_waitcnt lgkmcnt(0)")
        a(f"s_cmp_gt_u32 s46, {order[i]}")
        a(f"s_cbranch_scc1 {ex}")
        ool.append((ex, pv(i - 1) + [x for k in range(i, 9) for x in blk.get(k, [])], fin))
        if i in hooks.get("prio", {}):
            a(f"s_setprio {hooks['prio'][i]}")
        for x in blk.get(i, []):
            a(x)
        for x in vread(i) + (kread(i + 2) if i + 2 < 9 else []):
            a(x)
        weave((smf(i + 1, cm) if i + 1 < 9 else []) + pv(i - 1), valu(i))
    a("s_waitcnt lgkmcnt(0)")
    for x in pv(8):
        a(x)
    a.label(fin)
    if 9 in hooks.get("prio", {}):
        a(f"s_setprio {hooks['prio'][9]}")
    hook("end")
    a("s_nop 7")
    a("s_nop 3")
    a(f"v_rcp_f32 v{VT}, v{LS}")
    a(f"v_mul_f32 v{VM2}, 0, v{OA}")
    for r in range(1, 16):
        a(f"v_fmac_f32 v{LS if r & 1 else VM2}, 0, v{OA + r}")
    a(f"v_add_f32 v{VM2}, v{VM2}, v{LS}")
    a(f"v_add_f32 v{VM2}, v{VM2}, v{VT}")
    a(f"v_cmp_gt_f32 vcc, 0x{0x3f800000 + (optval('thr', 30) << 23):x}, v{VM2}")
    a(f"s_mov_b32 s101, {int(role == 'M')}")
    a("s_nop 0")
    a("s_cmp_eq_u64 vcc, -1")
    a("s_cbranch_scc0 L_exact")
    a.label(f"L_norm{role}")
    for r in range(16):
        a(f"v_mul_f32 v{OA + r}, v{OA + r}, v{VT}")
    for j in range(8):
        a(f"v_cvt_pk_bf16_f32 v{OA + j}, v{OA + 2 * j}, v{OA + 2 * j + 1}")
    a(f"buffer_store_dwordx4 {vr(OA, 4)}, v1, {S(SWS)}, s47 offen{SC}")
    a(f"buffer_store_dwordx4 {vr(OA + 4, 4)}, v1, {S(SWS)}, s47 offen offset:1024{SC}")


def emit_exact(a):
    s, k, v, cm = SBUF[0], KB[0], VB[0], CM
    VD, VN = SBUF[1], SBUF[1] + 1
    a.label("L_exact")
    a("s_waitcnt vmcnt(0) lgkmcnt(0)")
    a(f"v_and_b32 v{VD}, 31, v0")
    a(f"v_lshrrev_b32 v{VN}, 5, v0")
    a(f"v_lshlrev_b32 v{VN}, 2, v{VN}")
    a(f"v_sub_u32 v{VD}, v{VD}, v{VN}")
    a(f"v_mov_b32 v{VN}, 0xf149f2ca")
    a(f"v_mov_b32 v{VM}, v{VN}")
    a("s_lshl_b32 s4, s34, 1")
    a("s_add_u32 s4, s4, s41")
    a("s_lshl_b32 s4, s4, 6")
    a("s_add_u32 s4, s4, s45")
    a("s_lshl_b32 s4, s4, 11")
    a(f"s_add_u32 s4, s4, 0x{WS_KF - 8 * 2048:x}")
    a("s_sub_u32 s5, 8, s45")
    a("s_cmp_lt_u32 s45, 8")
    a("s_cselect_b32 s5, s5, 0")
    for r in range(16):
        a(f"v_mov_b32 v{cm + r}, 0")
        a(f"v_mov_b32 v{OA + r}, 0")
    for r in range(4):
        a(f"v_mov_b32 v{LS + r}, 0")
    a("s_mov_b32 s9, 0")
    a.label("L_expass")
    a("s_mov_b32 s6, s5")
    a.label("L_extile")
    a("s_lshl_b32 s7, s6, 11")
    a("s_add_u32 s7, s7, s4")
    a(f"s_add_u32 s8, s7, 0x{WS_VF - WS_KF:x}")
    for st in range(2):
        a(f"buffer_load_dwordx4 {vr(k + 4 * st, 4)}, v1, {S(SWS)}, s7 offen offset:{1024 * st}")
        a(f"buffer_load_dwordx4 {vr(v + 4 * st, 4)}, v1, {S(SWS)}, s8 offen offset:{1024 * st}")
    a("s_waitcnt vmcnt(0)")
    a(f"v_mfma_f32_32x32x16_bf16 {vr(s, 16)}, {vr(k, 4)}, {vr(QC, 4)}, {vr(cm, 16)}")
    a(f"v_mfma_f32_32x32x16_bf16 {vr(s, 16)}, {vr(k + 4, 4)}, {vr(QC + 4, 4)}, {vr(s, 16)}")
    a("s_nop 7")
    a("s_nop 7")
    for rel, op in ((8, "le"), (0, "gt")):
        a(f"s_cmp_lg_u32 s6, {rel}")
        a(f"s_cbranch_scc1 L_exm{rel}")
        for r in range(16):
            a(f"v_cmp_{op}_i32 vcc, {8 * (r >> 2) + (r & 3)}, v{VD}")
            a(f"v_cndmask_b32 v{s + r}, v{VN}, v{s + r}, vcc")
        a.label(f"L_exm{rel}")
    a("s_cmp_lg_u32 s9, 0")
    a("s_cbranch_scc1 L_exp2")
    for r in range(16):
        a(f"v_max_f32 v{VM}, v{VM}, v{s + r}")
    a("s_branch L_exnext")
    a.label("L_exp2")
    for r in range(16):
        a(f"v_exp_f32 v{s + r}, v{s + r}")
    a("s_nop 0")
    for j in range(8):
        a(f"v_cvt_pk_bf16_f32 v{s + j}, v{s + 2 * j}, v{s + 2 * j + 1}")
    a("s_nop 1")
    for st in range(2):
        a(f"v_mfma_f32_32x32x16_bf16 {vr(OA, 16)}, {vr(v + 4 * st, 4)}, {vr(s + 4 * st, 4)}, {vr(OA, 16)}")
        a(f"v_mfma_f32_16x16x32_bf16 {vr(LS, 4)}, {vr(ONE, 4)}, {vr(s + 4 * st, 4)}, {vr(LS, 4)}")
    a("s_nop 7")
    a("s_nop 7")
    a.label("L_exnext")
    a("s_add_u32 s6, s6, 1")
    a("s_cmp_le_u32 s6, 8")
    a("s_cbranch_scc1 L_extile")
    a("s_cmp_lg_u32 s9, 0")
    a("s_cbranch_scc1 L_exdone")
    a(f"v_mov_b32 v{VT}, v{VM}")
    a("s_nop 1")
    a(f"v_permlane32_swap_b32 v{VM}, v{VT}")
    a("s_nop 1")
    a(f"v_max_f32 v{VM}, v{VM}, v{VT}")
    for r in range(16):
        a(f"v_sub_f32 v{cm + r}, 0, v{VM}")
    a("s_mov_b32 s9, 1")
    a("s_branch L_expass")
    a.label("L_exdone")
    a(f"v_rcp_f32 v{VT}, v{LS}")
    a("s_cmp_eq_u32 s101, 1")
    a("s_cbranch_scc1 L_normM")
    a("s_branch L_normH")


def emit_conv(a, hooks):
    ACC, FB = 8, [40, 104]
    VA, VBB, VEB, VSO = 168, 172, 173, 174
    a("v_and_b32 v2, 15, v0")
    a("v_lshrrev_b32 v3, 4, v0")
    a("v_add_u32 v4, 1, v2")
    a("v_and_b32 v5, 1, v4")
    a("v_sub_u32 v4, v4, v5")
    a("v_lshl_add_u32 v4, v3, 3, v4")
    a("v_lshlrev_b32 v4, 1, v4")
    a(f"v_mul_u32_u24 v5, {CPY}, v5")
    a(f"v_add3_u32 v{VA}, v4, v5, s46")
    for i in range(1, 4):
        a(f"v_add_u32 v{VA + i}, {1024 * i}, v{VA}")
    a("v_lshlrev_b32 v4, 5, v2")
    a("v_lshlrev_b32 v5, 4, v3")
    a(f"v_sub_u32 v{VBB}, v5, v4")
    a(f"v_add_u32 v{VBB}, {URO + 480}, v{VBB}")
    a(f"v_add_u32 v{VBB}, s86, v{VBB}")
    a("v_lshlrev_b32 v5, 3, v3")
    a(f"v_add_u32 v{VSO}, v4, v5")
    a(f"v_sub_u32 v{VEB}, {URO + 504}, v{VSO}")
    a(f"v_add_u32 v{VEB}, s86, v{VEB}")

    def creads(j, buf):
        f = FB[buf]
        out = []
        for q in range(8):
            o = (q & 1) * 128 + 16 * j
            va = VA + (q >> 1)
            out.append(f"ds_read2_b32 {vr(f + 4 * q, 2)}, v{va} offset0:{o} offset1:{o + 1}")
            out.append(f"ds_read2_b32 {vr(f + 4 * q + 2, 2)}, v{va} offset0:{o + 2} offset1:{o + 3}")
            out.append(f"ds_read_b128 {vr(f + 32 + 4 * q, 4)}, v{VBB} offset:{512 * (7 - q) + 64 * j}")
        return out

    pairs = [(q, dl) for q in range(8) for dl in range(8 - q)]
    pairs.sort(key=lambda x: (max(x[0], x[1]), x[0] + x[1], x[0]))
    seq, rest = [], list(pairs)
    while rest:
        pick = next((p for p in rest if all(p[0] + p[1] != s[0] + s[1] for s in seq[-2:])), rest[0])
        rest.remove(pick)
        seq.append(pick)

    def cmfmas(j, buf):
        f = FB[buf]
        seen, out = set(), []
        for (q, dl) in seq:
            nt = q + dl
            d = vr(ACC + 4 * nt, 4)
            c = "0" if (j == 0 and nt not in seen) else d
            seen.add(nt)
            out.append(f"v_mfma_f32_16x16x32_bf16 {d}, {vr(f + 4 * q, 4)}, {vr(f + 32 + 4 * dl, 4)}, {c}")
        return out

    extra = list(hooks.get("extra", []))
    if "start" in hooks:
        hooks["start"]()
    for i, r in enumerate(creads(0, 0)):
        a(r)
        if i % 12 == 11:
            a("s_waitcnt lgkmcnt(4)")
    def epi(nt):
        k0, k1 = FB[0] + 2 * nt, FB[0] + 2 * nt + 1
        t = FB[0] + 16 + 4 * nt
        ac = ACC + 4 * nt
        pre = [f"v_and_b32 v{t}, 0xffff0000, v{k1}", f"v_lshlrev_b32 v{t + 1}, 16, v{k1}",
               f"v_and_b32 v{t + 2}, 0xffff0000, v{k0}", f"v_lshlrev_b32 v{t + 3}, 16, v{k0}"]
        post = [f"v_fmac_f32 v{ac + e}, s39, v{t + e}" for e in range(4)] + \
               [f"v_cvt_pk_bf16_f32 v{YP + 2 * nt}, v{ac}, v{ac + 1}",
                f"v_cvt_pk_bf16_f32 v{YP + 2 * nt + 1}, v{ac + 2}, v{ac + 3}"]
        return pre, post

    def last_step():
        f = FB[1]
        left = {nt: [(q, nt - q) for q in range(nt + 1)] for nt in range(8)}
        a("s_waitcnt lgkmcnt(0)")
        for nt in range(8):
            a(f"ds_read_b64 {vr(FB[0] + 2 * nt, 2)}, v{VEB} offset:{512 * (7 - nt)}")
        hist, n, ready, pre = [], 0, [], [x for nt in range(8) for x in epi(nt)[0]]
        done = {}
        for i in range(36):
            rem = 36 - i
            cand = [nt for nt in range(8) if left[nt] and nt not in hist[-2:]]
            urgent = [nt for nt in cand if 3 * len(left[nt]) - 2 >= rem - 2]
            nt = max(urgent, key=lambda x: len(left[x])) if urgent else cand[0] if cand else \
                max((x for x in range(8) if left[x] and x != hist[-1]), key=lambda x: len(left[x]))
            q, dl = left[nt].pop()
            d = vr(ACC + 4 * nt, 4)
            a(f"v_mfma_f32_16x16x32_bf16 {d}, {vr(f + 4 * q, 4)}, {vr(f + 32 + 4 * dl, 4)}, {d}")
            n += 1
            hist.append(nt)
            if not left[nt]:
                done[nt] = n
            if i == 5:
                a("s_waitcnt lgkmcnt(0)")
                if "eb" in OPT:
                    hooks["bar"]()
            if i < 5:
                continue
            for _ in range(2):
                for x in sorted(done):
                    if n - done[x] >= 10 and len(pre) <= 4 * (7 - x):
                        ready += epi(x)[1]
                        del done[x]
                if ready:
                    a(ready.pop(0)); n += 1
                elif pre:
                    a(pre.pop(0)); n += 1
        for x in pre + ready:
            a(x); n += 1
        for x in sorted(done, key=done.get):
            if n - done[x] < 10:
                a(f"s_nop {min(7, 9 - (n - done[x]))}")
                a("s_nop 1")
                n += 10
            for y in epi(x)[1]:
                a(y); n += 1
        return [f"buffer_store_dwordx2 {vr(YP + 2 * nt, 2)}, v{VSO}, {S(SWS)}, s36 offen offset:{512 * nt}{SC}" for nt in range(8)]

    for j in range(8):
        if j == 7 and "ce" in OPT:
            assert not extra
            return last_step()
        m = cmfmas(j, j & 1)
        r = creads(j + 1, (j + 1) & 1) if j < 7 else \
            [f"ds_read_b64 {vr(FB[0] + 2 * nt, 2)}, v{VEB} offset:{512 * (7 - nt)}" for nt in range(8)]
        a("s_waitcnt lgkmcnt(0)")
        ri = 0
        if "cnolds" in OPT and j < 7:
            r = []
        for i, mm in enumerate(m):
            if j < optval("cj", 8) or i < 4:
                a(mm if "cnomfma" not in OPT else "s_nop 3")
            if ri < len(r):
                a(r[ri]); ri += 1
            if j >= 1 and extra:
                a(extra.pop(0))
        assert ri == len(r)
    a("s_nop 7")
    a("s_waitcnt lgkmcnt(0)")
    stores = []
    for nt in range(8):
        k0, k1 = FB[0] + 2 * nt, FB[0] + 2 * nt + 1
        t = FB[0] + 16 + 4 * (nt & 1)
        ac = ACC + 4 * nt
        a(f"v_and_b32 v{t}, 0xffff0000, v{k1}")
        a(f"v_lshlrev_b32 v{t + 1}, 16, v{k1}")
        a(f"v_and_b32 v{t + 2}, 0xffff0000, v{k0}")
        a(f"v_lshlrev_b32 v{t + 3}, 16, v{k0}")
        for e in range(4):
            a(f"v_fmac_f32 v{ac + e}, s39, v{t + e}")
        a(f"v_cvt_pk_bf16_f32 v{YP + 2 * nt}, v{ac}, v{ac + 1}")
        a(f"v_cvt_pk_bf16_f32 v{YP + 2 * nt + 1}, v{ac + 2}, v{ac + 3}")
        st = f"buffer_store_dwordx2 {vr(YP + 2 * nt, 2)}, v{VSO}, {S(SWS)}, s36 offen offset:{512 * nt}{SC}"
        if "yearly" in OPT:
            a(st)
        else:
            stores.append(st)
    return stores


def emit_lds_wait(a, vaddr, off, t):
    lp, dn = a.newlabel("lw"), a.newlabel("lwd")
    a("s_mov_b32 s85, 0")
    a.label(lp)
    a(f"ds_read_b128 {vr(t, 4)}, v{vaddr} offset:{off}")
    a("s_waitcnt lgkmcnt(0)")
    a(f"v_and_b32 v{t}, v{t}, v{t + 1}")
    a(f"v_and_b32 v{t + 2}, v{t + 2}, v{t + 3}")
    a(f"v_and_b32 v{t}, v{t}, v{t + 2}")
    a("s_add_u32 s85, s85, 1")
    a(f"v_readfirstlane_b32 s80, v{t}")
    a("s_nop 1")
    a("s_cmp_lg_u32 s80, 0")
    a(f"s_cbranch_scc1 {dn}")
    a(f"s_cmp_lt_u32 s85, 0x{SPIN_LIMIT:x}")
    a(f"s_cbranch_scc1 {lp}")
    a.label(dn)


def p1_lists():
    KK, VV, WR = 124, 146, 162
    AK, AH, AS, AO = 174, 175, 176, 177
    KF_, WF_, RS_, TT, PO = 12, 56, 72, 104, 108
    soffs = ["0", "s50", "s51", "s52"]
    setup, loads, comp, stores = [], [], [], []
    a = setup.append
    a("v_lshrrev_b32 v24, 3, v0")
    a("v_and_b32 v25, 7, v0")
    a("s_lshl_b32 s80, s35, 6")
    a("s_lshl_b32 s81, s3, 2")
    a("s_add_u32 s81, s81, s44")
    a("s_lshl_b32 s81, s81, 5")
    a("v_lshlrev_b32 v24, 3, v24")
    a("v_add_u32 v24, s80, v24")
    a("v_lshlrev_b32 v25, 2, v25")
    a("v_add_u32 v25, s81, v25")
    a(f"v_lshlrev_b32 v{AK}, 11, v24")
    a(f"v_lshl_add_u32 v{AK}, v25, 1, v{AK}")
    a("s_mov_b32 s50, 4096")
    a("s_mov_b32 s51, 8192")
    a("s_mov_b32 s52, 12288")
    a(f"v_subrev_u32 v{AH}, 6144, v{AK}")
    a("v_mov_b32 v26, 0x80000000")
    a("v_cmp_gt_u32 vcc, 3, v24")
    a(f"v_lshlrev_b32 v{AO}, 12, v25")
    a("v_sub_u32 v24, 2040, v24")
    a(f"v_cndmask_b32 v{AH}, v{AH}, v26, vcc")
    a(f"v_lshlrev_b32 v{AS}, 3, v25")
    a(f"v_lshl_add_u32 v{AO}, v24, 1, v{AO}")
    if "uc" in OPT:
        a("v_and_b32 v24, 7, v0")
        a("v_lshrrev_b32 v25, 3, v0")
        a("v_sub_u32 v24, 7, v24")
        a("v_lshl_add_u32 v24, v24, 3, v25")
        a("v_lshlrev_b32 v170, 2, v24")
        a(f"ds_bpermute_b32 v{AO}, v170, v{AO}")
    loads.append(f"buffer_load_dwordx4 {vr(WR, 4)}, v{AS}, {S(SSH)}, 0 offen")
    loads.append(f"buffer_load_dwordx4 {vr(WR + 4, 4)}, v{AS}, {S(SSH)}, 0 offen offset:16")
    for i in range(3):
        loads.append(f"buffer_load_dwordx2 {vr(KK + 2 * i, 2)}, v{AH}, {S(SK)}, {soffs[i >> 1]} offen offset:{(i & 1) * 2048} {nt('p')}")
    for i in range(8):
        loads.append(f"buffer_load_dwordx2 {vr(KK + 6 + 2 * i, 2)}, v{AK}, {S(SK)}, {soffs[i >> 1]} offen offset:{(i & 1) * 2048} {nt('p')}")
    for i in range(8):
        loads.append(f"buffer_load_dwordx2 {vr(VV + 2 * i, 2)}, v{AK}, {S(SV)}, {soffs[i >> 1]} offen offset:{(i & 1) * 2048} {nt('p')}")
    a = comp.append
    if "pk" in OPT:
        for dd in range(4):
            for h2 in range(2):
                src = WR + 2 * dd + h2
                a(f"v_lshlrev_b32 v{WF_ + 8 * h2 + dd}, 16, v{src}")
                a(f"v_and_b32 v{WF_ + 8 * h2 + 4 + dd}, 0xffff0000, v{src}")

        def kun(i):
            for h2 in range(2):
                src = KK + 2 * i + h2
                a(f"v_lshlrev_b32 v{KF_ + 4 * i + 2 * h2}, 16, v{src}")
                a(f"v_and_b32 v{KF_ + 4 * i + 2 * h2 + 1}, 0xffff0000, v{src}")
        for i in range(3):
            kun(i)
        for s_ in range(8):
            kun(s_ + 3)
            for h2 in range(2):
                src = VV + 2 * s_ + h2
                a(f"v_lshlrev_b32 v{TT + 2 * h2}, 16, v{src}")
                a(f"v_and_b32 v{TT + 2 * h2 + 1}, 0xffff0000, v{src}")
            for j in range(4):
                for dd in (0, 2):
                    r, k_, w_ = vr(RS_ + 4 * s_ + dd, 2), vr(KF_ + 4 * (s_ + 3 - j) + dd, 2), vr(WF_ + 4 * j + dd, 2)
                    a(f"v_pk_fma_f32 {r}, {k_}, {w_}, {r}" if j else f"v_pk_mul_f32 {r}, {k_}, {w_}")
            for dd in (0, 2):
                r = vr(RS_ + 4 * s_ + dd, 2)
                a(f"v_pk_mul_f32 {r}, {r}, {vr(TT + dd, 2)}")
        a = lambda x: None
    for dd in range(4):
        for h2 in range(2):
            src = WR + 2 * dd + h2
            a(f"v_lshlrev_b32 v{WF_ + 4 * dd + 2 * h2}, 16, v{src}")
            a(f"v_and_b32 v{WF_ + 4 * dd + 2 * h2 + 1}, 0xffff0000, v{src}")
    for i in range(11):
        for h2 in range(2):
            src = KK + 2 * i + h2
            a(f"v_lshlrev_b32 v{KF_ + 4 * i + 2 * h2}, 16, v{src}")
            a(f"v_and_b32 v{KF_ + 4 * i + 2 * h2 + 1}, 0xffff0000, v{src}")
    for s_ in range(8):
        for dd in range(4):
            r = RS_ + 4 * s_ + dd
            a(f"v_mul_f32 v{r}, v{KF_ + 4 * (s_ + 3) + dd}, v{WF_ + 4 * dd}")
            for j in range(1, 4):
                a(f"v_fmac_f32 v{r}, v{KF_ + 4 * (s_ + 3 - j) + dd}, v{WF_ + 4 * dd + j}")
    for s_ in range(8):
        for dd in range(4):
            r = RS_ + 4 * s_ + dd
            src = VV + 2 * s_ + (dd >> 1)
            t = TT + (dd & 1)
            a(f"v_and_b32 v{t}, 0xffff0000, v{src}" if dd & 1 else f"v_lshlrev_b32 v{t}, 16, v{src}")
            a(f"v_mul_f32 v{r}, v{r}, v{t}")
    stores.append(f"s_mov_b32 s53, 0x{WS_UR:x}")
    for dd in range(4 * ("uc" in OPT)):
        o = PO + 4 * dd
        for j in range(4):
            comp.append(f"v_cvt_pk_bf16_f32 v{o + j}, v{RS_ + 4 * (7 - 2 * j) + dd}, v{RS_ + 4 * (6 - 2 * j) + dd}")
        for j in range(4):
            comp.append(f"ds_bpermute_b32 v{o + j}, v170, v{o + j}")
    for dd in range(4):
        o = PO + 4 * dd
        if "uc" in OPT:
            stores.append(f"s_waitcnt lgkmcnt({12 - 4 * dd})")
        for j in range(4 * ("uc" not in OPT)):
            stores.append(f"v_cvt_pk_bf16_f32 v{o + j}, v{RS_ + 4 * (7 - 2 * j) + dd}, v{RS_ + 4 * (6 - 2 * j) + dd}")
        stores.append(f"buffer_store_dwordx4 {vr(o, 4)}, v{AO}, {S(SWS)}, s53 offen{SC}")
        if dd < 3:
            stores.append("s_add_u32 s53, s53, 4096")
    return setup, loads, comp, stores


VZ = 252
VLF = 251
SRDS = [(SX, 48, 4 * MB), (SW, 56, 6 * MB), (SWS, 88, WS_SIZE), (SK, 8, 4 * MB), (SV, 16, 4 * MB),
        (SSH, 24, 8192), (SHK, 32, 4 * MB), (SWO, 64, 2 * MB), (SQ, 0, 4 * MB), (SOUT, 72, 8 * MB),
        (SDBG, 80, 256)]


def late_setup(a, ts, helper=True):
    if helper:
        a("s_lshl_b32 s84, s3, 5")
        a("s_add_u32 s84, s84, s35")
        a("s_lshl_b32 s80, s84, 3")
        a("s_load_dwordx2 s[76:77], s[36:37], s80")
    a("s_lshl_b32 s89, s2, 7")
    a("s_lshl_b32 s81, s32, 3")
    a("s_add_u32 s89, s89, s81")
    for (d, off, size) in SRDS[2:]:
        if not helper and d in (SK, SV, SSH, SHK):
            continue
        a(f"s_mov_b32 s{d + 2}, 0x{size:x}")
        a(f"s_mov_b32 s{d + 3}, 0x20000")
    a(f"v_mov_b32 v{VLF}, {L_FL}")
    ts.setup(a, SWS)


def g2_tile(a):
    a("s_and_b32 s86, s3, 1")
    a("s_lshl_b32 s86, s86, 1")
    a("s_bfe_u32 s80, s3, 0x10001")
    a("s_add_u32 s86, s86, s80")
    a("s_lshl_b32 s86, s86, 2")
    a("s_and_b32 s80, s35, 3")
    a("s_add_u32 s86, s86, s80")
    a("s_lshr_b32 s42, s3, 2")
    a("s_lshl_b32 s42, s42, 3")
    a("s_lshr_b32 s43, s35, 2")
    a("s_add_u32 s42, s42, s43")


def wo_addr(a0, t=4):
    a = lambda x: a0(re.sub(r"\bv([456])\b", lambda m: f"v{int(m.group(1)) - 4 + t}", x))
    a("v_lshrrev_b32 v4, 3, v0")
    a("v_and_b32 v5, 7, v0")
    a("v_bfe_u32 v6, v0, 4, 1")
    a("v_lshlrev_b32 v6, 2, v6")
    a("v_xor_b32 v6, v6, v5")
    a("v_lshlrev_b32 v250, 11, v4")
    a("v_lshl_add_u32 v250, v6, 4, v250")
    a("s_lshl_b32 s80, s42, 7")
    a("v_add_u32 v250, s80, v250")
    a("s_lshl_b32 s84, s32, 11")
    a("s_lshl_b32 s88, s32, 15")


NE = 3


def wo_part(p, dst, dw=0):
    return [f"s_add_u32 m0, s84, {dst + dw * 2048}",
            f"s_add_u32 s81, s43, {p}",
            "s_and_b32 s81, s81, 7",
            "s_lshl_b32 s81, s81, 18",
            "s_add_u32 s81, s81, s88"] + ([f"s_add_u32 s81, s81, {dw * 32768}"] if dw else []) + [
            f"buffer_load_dwordx4 v250, {S(SWO)}, s81 offen lds",
            f"s_add_u32 s81, s81, {16384 - 1024}",
            f"buffer_load_dwordx4 v250, {S(SWO)}, s81 offen offset:1024 lds"]


def wo_early():
    b0 = optval("we", 3)
    return {b0 + p: wo_part(p, L_R0 + p * 16384) for p in range(NE)}


P4 = [x * 4096 for x in list(range(0, 6)) + list(range(9, 18)) + list(range(21, 26))]
WLOC = [L_R0 + k * 2048 for k in range(8 * NE)] + [P4[k >> 1] + (k & 1) * 2048 for k in range(40)]
NLATE = 10


def nlate():
    return 2 * NLATE - optval("gm", 0) if "g2e" in OPT else NLATE


def blk7_flag():
    b = Asm()
    if "g2e" in OPT:
        b("s_waitcnt vmcnt(0)")
    lds_flag_set(b, 32, 16, 158)
    return [x.strip() for x in b.L]


def wo_late(a, ts, nyoung, helper):
    def stage():
        a("s_and_b32 s83, s32, 3")
        a("s_lshl_b32 s82, s83, 10")
        a("s_lshl_b32 s81, s43, 4")
        a("s_add_u32 s83, s83, s81")
        for i in range(NLATE if "g2e" not in OPT else nlate() if helper else optval("gm", 0)):
            p = 2 * i + int(helper) if "g2e" not in OPT else i if helper else nlate() + i
            a(f"s_add_u32 m0, s82, {P4[p]}")
            a(f"s_add_u32 s81, s83, {16 * NE + 4 * p}")
            a("s_and_b32 s81, s81, 127")
            a("s_lshl_b32 s81, s81, 14")
            if "nolate" not in OPT:
                a(f"buffer_load_dwordx4 v250, {S(SWO)}, s81 offen lds")

    if "g2e" in OPT:
        a(f"s_waitcnt vmcnt({nyoung})")
        emit_publish(a, FL_O, 220, VZ)
        emit_lds_wait(a, VLF, 64, 8)
        emit_lds_wait(a, VLF, 80, 8)
        ts.stamp(a, 7)
        stage()
        return
    ES = optval("es", 0)
    if ES == 1:
        emit_lds_wait(a, VLF, 64, 8)
        emit_lds_wait(a, VLF, 80, 8)
        stage()
        a(f"s_waitcnt vmcnt({nyoung + NLATE})")
    else:
        a(f"s_waitcnt vmcnt({nyoung})")
    emit_publish(a, FL_O, 220, VZ)
    lds_flag_set(a, 32, 8, 222)
    if ES == 2:
        emit_lds_wait(a, VLF, 64, 8)
        emit_lds_wait(a, VLF, 80, 8)
        stage()
    if ES == 0 or not helper:
        emit_lds_wait(a, VLF, 32, 8)
        emit_lds_wait(a, VLF, 48, 8)
    ts.stamp(a, 7)
    if ES == 0:
        stage()


def lds_flag_set(a, word_s, word_add, t):
    a(f"s_lshl_b32 s80, s{word_s}, 2")
    a(f"v_add_u32 v{t}, s80, v{VLF}")
    a(f"v_mov_b32 v{t + 1}, 1")
    a(f"ds_write_b32 v{t}, v{t + 1} offset:{4 * word_add}")


def m_path(a, ts, ool):
    ACC = 80
    PD = optval('pd', 2)
    FR = [16, 36, 56, 192, 212][:PD + 1]
    NB = PD + 1
    LZ = 'lz' in OPT
    XA, WB, XA2 = 2, 6, 8
    def code_touch():
        lcp = a.newlabel("nocp")
        a("s_cmp_lg_u32 s32, 1")
        a(f"s_cbranch_scc1 {lcp}")
        a("s_mov_b32 exec_hi, 0")
        a("buffer_load_dword v188, v189, s[52:55], s56 offen")
        a("s_mov_b32 exec_hi, -1")
        a.label(lcp)

    CQ = [int(o[2:]) for o in OPT if o.startswith("cq")]
    if "cp" in OPT or CQ:
        a("s_getpc_b64 s[52:53]")
        a.label("L_pc")
        a(f"s_sub_u32 s52, s52, L_pc-{NAME}_kernel")
        a("s_subb_u32 s53, s53, 0")
        a(f"s_mov_b32 s54, L_end-{NAME}_kernel")
        a("s_mov_b32 s55, 0x20000")
        a("s_lshl_b32 s56, s35, 11")
        a("v_lshlrev_b32 v189, 6, v0")
    if "cp" in OPT:
        code_touch()
    SW_ = {}
    for o in OPT:
        if o.startswith("sw"):
            m, n = o[2:].split("_")
            SW_[int(n)] = int(m)
    if SW_:
        a("s_lshl_b32 s80, s35, 2")
        a("s_add_u32 s80, s80, s32")
        a("s_mul_i32 s81, s80, 6")
        a("v_and_b32 v3, 7, v0")
        a("v_lshrrev_b32 v184, 3, v0")
        a("v_mul_u32_u24 v184, 768, v184")
        a("v_add3_u32 v184, v184, v3, s81")
        a("v_lshlrev_b32 v184, 11, v184")
        a("s_lshr_b32 s81, s3, 2")
        a("s_lshl_b32 s81, s81, 10")
        a("s_add_u32 s81, s81, 0x180")
        a("v_add_u32 v184, s81, v184")
        a("s_bitcmp1_b32 s3, 1")
        a("s_cselect_b32 s81, 0, 6")
        a("v_mov_b32 v2, 0x80000000")
        a("v_cmp_gt_u32 vcc, s81, v3")
        a("s_nop 1")
        a("v_cndmask_b32 v184, v2, v184, vcc")

    def slow_touch(n):
        if n in SW_:
            a(f"s_mov_b64 exec, 0x{sum(0xff << (8 * q) for q in range(4) if SW_[n] >> q & 1):x}")
            a(f"buffer_load_dword v177, v184, {S(SW)}, 0 offen")
            a("s_mov_b64 exec, -1")

    MS = [o[2:] for o in OPT if o.startswith("ms")]
    ltk = a.newlabel("notok")
    if MS:
        a("s_or_b32 s80, s2, s32")
        a(f"s_cbranch_scc1 {ltk}")
        a(f"s_mov_b32 s{SDBG + 2}, 256")
        a(f"s_mov_b32 s{SDBG + 3}, 0x20000")
    else:
        a("s_waitcnt lgkmcnt(0)")
        slow_touch(99)
        late_setup(a, ts, False)
        a("s_cmp_lg_u32 s89, 0")
        a(f"s_cbranch_scc1 {ltk}")
    a("s_memrealtime s[78:79]")
    a("s_waitcnt lgkmcnt(0)")
    a("s_or_b32 s78, s78, 1")
    a("v_mov_b32 v180, s78")
    a("v_mov_b32 v181, s79")
    a("s_mov_b64 exec, 1")
    a(f"buffer_store_dwordx2 v[180:181], v{VZ}, {S(SDBG)}, 0 offen{SC}")
    a("s_mov_b64 exec, -1")
    a.label(ltk)
    a("s_and_b32 s44, s32, 1")
    a("s_lshr_b32 s41, s32, 1")
    a("s_lshl_b32 s40, s44, 1")
    a("v_and_b32 v8, 31, v0")
    a("v_lshrrev_b32 v9, 5, v0")
    a("v_lshrrev_b32 v10, 1, v8")
    a("v_and_b32 v10, 7, v10")
    a("v_lshlrev_b32 v11, 7, v8")
    a("s_lshl_b32 s46, s44, 13")
    a("v_add_u32 v11, s46, v11")
    for ks in range(4):
        a(f"v_add_u32 v12, {2 * ks}, v9")
        a("v_xor_b32 v12, v12, v10")
        a(f"v_lshl_add_u32 v{XA + ks}, v12, 4, v11")
    a("v_and_b32 v10, 15, v0")
    a("v_lshrrev_b32 v11, 4, v0")
    a("v_lshrrev_b32 v12, 2, v10")
    a("v_lshl_add_u32 v12, v9, 3, v12")
    a(f"v_mul_u32_u24 v12, {128 if 'wl' in OPT else 384}, v12")
    a("v_lshrrev_b32 v13, 3, v10")
    a("v_xor_b32 v13, s41, v13")
    a("v_lshl_add_u32 v12, v13, 6, v12")
    a("v_and_b32 v13, 1, v11")
    a("v_lshl_add_u32 v12, v13, 5, v12")
    a("v_and_b32 v13, 3, v10")
    a("v_lshl_add_u32 v12, v13, 3, v12")
    a(f"v_add_u32 v{WB}, 16384, v12")
    a(f"v_add_u32 v{WB + 1}, {16384 + 81920}, v12")
    for ks in range(4):
        a(f"v_add_u32 v{XA2 + ks}, 81920, v{XA + ks}")

    def reads(t, ks, buf):
        st = slot(t)
        f = FR[buf]
        xa = (XA2 if st >= 2 else XA) + ks
        xo = (st & 1) * 40960
        wb = WB + (st >> 1)
        wo = (st & 1) * 40960 + 16 * ks * 384
        if "wl" in OPT:
            tr = lambda i: f"ds_read_b64_tr_b16 {vr(f + 8 + 2 * i, 2)}, v{wb} offset:{wo + (i >> 1) * 2048 + (i & 1) * 512}"
            return [f"ds_read_b128 {vr(f, 4)}, v{xa} offset:{xo}", tr(0), tr(1),
                    f"ds_read_b128 {vr(f + 4, 4)}, v{xa} offset:{xo + 4096}", tr(2), tr(3), tr(4), tr(5)]
        return [f"ds_read_b128 {vr(f, 4)}, v{xa} offset:{xo}",
                f"ds_read_b64_tr_b16 {vr(f + 8, 2)}, v{wb} offset:{wo}",
                f"ds_read_b64_tr_b16 {vr(f + 10, 2)}, v{wb} offset:{wo + 4 * 384}",
                f"ds_read_b128 {vr(f + 4, 4)}, v{xa} offset:{xo + 4096}",
                f"ds_read_b64_tr_b16 {vr(f + 12, 2)}, v{wb} offset:{wo + 128}",
                f"ds_read_b64_tr_b16 {vr(f + 14, 2)}, v{wb} offset:{wo + 128 + 4 * 384}",
                f"ds_read_b64_tr_b16 {vr(f + 16, 2)}, v{wb} offset:{wo + 256}",
                f"ds_read_b64_tr_b16 {vr(f + 18, 2)}, v{wb} offset:{wo + 256 + 4 * 384}"]

    def mfmas(buf, first, last):
        f = FR[buf]
        X = [vr(f, 4), vr(f + 4, 4)]
        W = [vr(f + 8, 4), vr(f + 12, 4), vr(f + 16, 4)]
        out = []
        for part in ((1, 2, 0) if last else (0, 1, 2)):
            for rt in range(2):
                d = vr(ACC + 16 * (2 * part + rt), 16)
                c = "0" if first else d
                if part < 2:
                    out.append(f"v_mfma_f32_32x32x16_bf16 {d}, {W[part]}, {X[rt]}, {c}")
                else:
                    out.append(f"v_mfma_f32_32x32x16_bf16 {d}, {X[rt]}, {W[part]}, {c}")
        return out

    main_a = a
    if MS:
        a = Asm()
        late_setup(a, ts, False)
    a("s_lshl_b32 s46, s34, 1")
    a("s_add_u32 s46, s46, s41")
    a("s_lshl_b32 s46, s46, 6")
    a("s_lshl_b32 s47, s33, 2")
    a("s_add_u32 s46, s46, s47")
    a("s_add_u32 s48, s46, s40")
    a("s_lshl_b32 s48, s48, 11")
    a(f"s_add_u32 s49, s48, 0x{WS_VF:x}")
    a(f"s_add_u32 s48, s48, 0x{WS_KF:x}")
    a(f"s_mul_i32 s80, s41, {L_HD}")
    a("s_lshl_b32 s81, s44, 12")
    a("s_add_u32 s80, s80, s81")
    a("v_add_u32 v182, s80, v1")
    a("s_lshl_b32 s80, s32, 11")
    a(f"s_add_u32 s80, s80, {L_QH}")
    a("v_add_u32 v183, s80, v1")

    def setup2():
        a("s_add_u32 s38, s33, s44")
        a("s_sub_u32 s80, s38, 2")
        a("s_max_i32 s80, s80, 0")
        a("v_mov_b32 v20, s80")
        a("v_mov_b32 v21, s34")
        emit_wg_of(a, 190, 20, 21, 22)
        a("v_and_b32 v20, 1, v0")
        a("v_lshl_add_u32 v190, v20, 3, v190")
        a("s_lshl_b32 s80, s41, 4")
        a(f"s_add_u32 s80, s80, 0x{WS_FL + FL_K * 32768:x}")
        a("v_add_u32 v190, s80, v190")
        a("s_lshl_b32 s80, s44, 2")
        a("s_add_u32 s36, s46, s80")
        a("s_lshl_b32 s36, s36, 11")
        a(f"s_add_u32 s36, s36, 0x{WS_KF - 8 * 2048:x}")
        a(f"s_mul_i32 s37, s41, {L_HD}")
        a("s_lshl_b32 s80, s44, 13")
        a("s_add_u32 s37, s37, s80")
        a("; attention")
        emit_attn_setup(a, MASKS_M, 20)
        a("; projection")
        g2_tile(a)
        wo_addr(a, 20)
        a("s_lshl_b32 s80, s35, 2")
        a("s_add_u32 s80, s80, s32")
        a("s_lshl_b32 s80, s80, 6")
        a("v_add_u32 v20, s80, v0")
        a("v_lshrrev_b32 v198, 3, v20")
        a("v_lshlrev_b32 v198, 11, v198")
        a("v_and_b32 v20, 7, v20")
        a("v_lshl_add_u32 v198, v20, 7, v198")
        a("s_lshr_b32 s80, s3, 2")
        a("s_lshl_b32 s80, s80, 10")
        a("v_add_u32 v198, s80, v198")
        a("s_lshl_b32 s80, s35, 6")
        a("s_lshl_b32 s81, s32, 4")
        a("s_add_u32 s80, s80, s81")
        a("v_bfe_u32 v20, v0, 1, 4")
        a("v_add_u32 v20, s80, v20")
        a("v_lshlrev_b32 v20, 11, v20")
        a("v_and_b32 v21, 1, v0")
        a("v_lshl_add_u32 v20, v21, 7, v20")
        a("s_lshl_b32 s80, s3, 8")
        a("v_add_u32 v199, s80, v20")
        if optval("at", 0):
            a("v_and_b32 v20, 0xfffff800, v199")
            a("v_add_u32 v198, v20, v199")

    if "ls" not in OPT:
        setup2()
    KT, FT = optval("kt", -1), optval("ft", -1)
    if KT >= 0:
        a("v_and_b32 v185, 31, v0")
        a("v_lshlrev_b32 v185, 7, v185")
        a("v_lshrrev_b32 v20, 5, v0")
        a("v_lshl_add_u32 v185, v20, 22, v185")
    if FT >= 0:
        a("v_lshlrev_b32 v194, 15, v0")
        a("s_lshl_b32 s80, s2, 7")
        a(f"s_add_u32 s80, s80, 0x{WS_FL:x}")
        a("v_add_u32 v194, s80, v194")
        if "fl" in OPT and "nft" not in OPT:
            a("s_lshl_b32 s80, s2, 11")
            a(f"s_add_u32 s80, s80, 0x{WS_FL + 0x80000 - 3 * 128:x}")
            a("v_lshlrev_b32 v193, 7, v0")
            a("v_add_u32 v193, s80, v193")
            a("v_cmp_gt_u32 vcc, 3, v0")
            a("s_nop 1")
            a("v_cndmask_b32 v194, v193, v194, vcc")
        a("s_cmp_eq_u32 s32, 2")
        a(f"s_cselect_b32 s80, {5 if 'kv2' in OPT else 4 if 'fl' not in OPT else 3 if 'nft' in OPT else 11}, 0")
        a("v_mov_b32 v193, 0x80000000")
        a("v_cmp_gt_u32 vcc, s80, v0")
        a("s_nop 1")
        a("v_cndmask_b32 v194, v193, v194, vcc")
    late = {}
    if MS:
        blk_ = 0
        for x in a.L:
            if x.strip().startswith(";"):
                blk_ += 1
                continue
            late.setdefault(int(MS[0][blk_]), []).append(re.sub(r"\bv2([012])\b", r"v1\g<1>", x.strip()).replace("v10", "v13").replace("v11", "v14"))
        a = main_a
        for x in late.get(0, []):
            a(x)
    a("s_waitcnt lgkmcnt(0)")
    slow_touch(98)
    if "tse" in OPT:
        ts.stamp(a, 0)
    a("s_barrier")
    ts.stamp(a, 11)
    for k in range(PD):
        for r in reads(0, k, k):
            a(r)
        if k == 1:
            a("s_waitcnt lgkmcnt(8)")
    TKN = optval("tkn", 41)
    BK = (4 - PD) % 4
    for n in range(64):
        t, ks = n >> 2, n & 3
        m = mfmas(n % NB, n == 0, n == 63)
        n2 = n + PD
        r = reads(n2 >> 2, n2 & 3, n2 % NB) if n2 < 64 else []
        tch = []
        if n == TKN:
            tch = [f"buffer_load_dwordx2 v[186:187], v{VZ}, {S(SDBG)}, 0 offen{SC}"]
        ahead = min(15, 8 * (min(63, n + PD - 1) - n))
        if ks == BK and t + 1 not in skipped():
            a(f"s_waitcnt lgkmcnt({ahead if (LZ and t < 15) else 0})")
            a(m[0])
            for x in late.get(t + 1, []):
                a(x)
            a("s_barrier")
        else:
            a(f"s_waitcnt lgkmcnt({ahead})")
            a(m[0])
        ri = 0
        for i, mm in enumerate(m[1:]):
            for _ in range(2):
                if ri < len(r):
                    a(r[ri]); ri += 1
            if i == 4:
                for x in tch:
                    a(x)
                if n in CQ:
                    code_touch()
                slow_touch(n)
                if n == KT:
                    a(f"buffer_load_dword v178, v185, {S(SWS)}, s48 offen")
                if n == FT:
                    if "fst" in OPT:
                        a(f"buffer_store_dword v{VZ}, v194, {S(SWS)}, 0 offen offset:64{SC}")
                    else:
                        a(f"buffer_load_dword v195, v194, {S(SWS)}, 0 offen")
            a(mm)
    ts.stamp(a, 1)
    if optval("pe", 0):
        a(f"s_setprio {optval('pe', 0)}")
    if "fk" in OPT:
        a("s_and_b32 s80, s33, 14")
        a("s_cmp_lg_u32 s80, 6")
        a("s_cselect_b32 s39, 1, 0")
        a("s_cselect_b64 s[50:51], -1, 0")
    for part in (1, 2):
        for rt in range(2):
            b = ACC + 16 * (2 * part + rt)
            for j in range(8):
                a(f"v_cvt_pk_bf16_f32 v{b + j}, v{b + 2 * j}, v{b + 2 * j + 1}")
            if "fk" in OPT:
                a("s_mov_b64 exec, s[50:51]")
                for step in range(2):
                    a(f"buffer_store_dwordx4 {vr(b + 4 * step, 4)}, v1, {S(SWS)}, s{47 + part} offen offset:{rt * 2048 + step * 1024}")
                a("s_not_b64 exec, exec")
            for step in range(2):
                a(f"buffer_store_dwordx4 {vr(b + 4 * step, 4)}, v1, {S(SWS)}, s{47 + part} offen offset:{rt * 2048 + step * 1024}{SC}")
            if "fk" in OPT:
                a("s_mov_b64 exec, -1")
    if "fp" in OPT:
        a("s_waitcnt vmcnt(0)")
        emit_token_take(a, 186, VZ)
        emit_publish(a, FL_K, 220, VZ, 39 if "fk" in OPT else None)
        ts.stamp(a, 2)
    if "pes" in OPT:
        a("s_setprio 0")
    for part in (1, 2):
        for rt in range(2):
            b = ACC + 16 * (2 * part + rt)
            for step in range(2):
                a(f"ds_write_b128 v182, {vr(b + 4 * step, 4)} offset:{8 * 2048 + (part - 1) * L_V + rt * 2048 + step * 1024}")
    for rt in (1, 0):
        b = ACC + 16 * rt
        d = QC if rt == 0 else b
        for r in range(16):
            a(f"v_mul_f32 v{b + r}, {f32hex(SCALE_LOG2E)}, v{b + r}")
        for j in range(8):
            a(f"v_cvt_pk_bf16_f32 v{d + j}, v{b + 2 * j}, v{b + 2 * j + 1}")
        if rt == 1:
            for step in range(2):
                a(f"ds_write_b128 v183, {vr(d + 4 * step, 4)} offset:{step * 1024}")
    lz = a.newlabel("nozero")
    a("s_cmp_lg_u32 s32, 0")
    a(f"s_cbranch_scc1 {lz}")
    a(f"v_lshl_add_u32 v20, v0, 2, v{VLF}")
    a(f"ds_write_b32 v20, v{VZ}")
    a.label(lz)
    if "ls" in OPT:
        setup2()
    tlq = f"buffer_load_dword v157, v199, {S(SQ)}, 0 offen"

    def prev_dma(isv):
        for g in range(2):
            a(f"s_add_u32 m0, s37, {isv * L_V + g * 4096}")
            a(f"s_add_u32 s80, s36, {isv * (WS_VF - WS_KF) + g * 4096}")
            for i in range(4):
                a(f"buffer_load_dwordx4 v1, {S(SWS)}, s80 offen offset:{1024 * i} {nt('k')} lds")

    if "pes" in OPT:
        a(f"s_setprio {optval('pe', 0)}")
    if "kv2" in OPT:
        a("s_waitcnt vmcnt(4)")
        emit_token_take(a, 186, VZ)
        emit_publish(a, FL_K, 220, VZ)
        a(f"v_add_u32 v189, {(FL_V - FL_K) * 32768}, v190")
        a("s_waitcnt vmcnt(1)")
        emit_publish(a, FL_V, 222, VZ)
        ts.stamp(a, 2)
    elif "fp" not in OPT:
        a("s_waitcnt vmcnt(0)")
        emit_token_take(a, 186, VZ)
        emit_publish(a, FL_K, 220, VZ, 39 if "fk" in OPT else None)
        ts.stamp(a, 2)
    lnp = a.newlabel("noprev")
    a(f"s_cmp_lt_u32 s38, {99 if 'nokv' in OPT else 2}")
    a(f"s_cbranch_scc1 {lnp}")
    emit_poll(a, 190, 2, 196, sleep=optval("ks", 1))
    ts.stamp(a, 3)
    if "kv2" in OPT:
        poll_issue(a, 189, 196)
    prev_dma(0)
    if "kv2" in OPT:
        lv = a.newlabel("vok")
        a("s_waitcnt vmcnt(8)")
        a("v_cmp_eq_u64 vcc, s[78:79], v[196:197]")
        a("s_nop 1")
        a("s_and_b32 s80, vcc_lo, 3")
        a("s_cmp_eq_u32 s80, 3")
        a(f"s_cbranch_scc1 {lv}")
        emit_poll(a, 189, 2, 196, sleep=optval("ks", 1))
        a.label(lv)
    prev_dma(1)
    a.label(lnp)
    a("s_setprio 0")
    BF = [16, 24, 32]
    AC2 = 40
    AF, PF = 72, optval('pf', 16)
    VPA, VOA = 191, 192
    a("v_and_b32 v8, 15, v0")
    a("v_lshrrev_b32 v9, 4, v0")
    a("v_lshrrev_b32 v10, 5, v0")
    a("v_lshrrev_b32 v11, 2, v8")
    a("v_lshl_add_u32 v11, v10, 2, v11")
    a("v_lshlrev_b32 v11, 7, v11")
    a("v_and_b32 v12, 1, v9")
    a("v_lshl_add_u32 v11, v12, 5, v11")
    a("v_and_b32 v12, 3, v8")
    a("v_lshl_add_u32 v11, v12, 3, v11")
    a("v_lshrrev_b32 v12, 3, v8")
    a("v_lshl_add_u32 v2, v12, 6, v11")
    a("v_xor_b32 v12, 1, v12")
    a("v_lshl_add_u32 v3, v12, 6, v11")
    a("v_add_u32 v4, 0x10000, v2")
    a("v_add_u32 v5, 0x10000, v3")
    a(f"v_add_u32 v6, {L_R0}, v2")
    a(f"v_add_u32 v7, {L_R0}, v3")
    a("v_mov_b32 v12, s86")
    a("v_bfe_u32 v13, v0, 1, 4")
    emit_wg_of(a, VPA, 12, 13, 15)
    a("v_and_b32 v12, 1, v0")
    a(f"v_lshl_add_u32 v{VPA}, v12, 4, v{VPA}")
    a("s_lshr_b32 s80, s32, 1")
    a("s_and_b32 s81, s32, 1")
    a("s_lshl_b32 s81, s81, 2")
    a("s_add_u32 s80, s80, s81")
    a("s_lshl_b32 s80, s80, 3")
    if "fl" in OPT:
        a(f"s_add_u32 s80, s80, 0x{(WS_FL + 0x80000) >> 4:x}")
        a(f"v_add_lshl_u32 v{VPA}, s80, v{VPA}, 4")
    else:
        a(f"s_add_u32 s80, s80, 0x{WS_FL + FL_O * 32768:x}")
        a(f"v_add_u32 v{VPA}, s80, v{VPA}")
    a("s_lshl_b32 s82, s86, 2")
    a("s_add_u32 s82, s82, s32")
    a("v_and_b32 v8, 31, v0")
    a("s_lshl_b32 s80, s82, 5")
    a("v_add_u32 v8, s80, v8")
    a("v_lshlrev_b32 v8, 12, v8")
    a(f"v_lshl_add_u32 v{VOA}, v10, 4, v8")
    if "bf" in OPT:
        a("s_lshl_b32 s81, s32, 12")
        a("s_add_u32 s81, s81, 24576")
        a("s_cmp_eq_u32 s32, 3")
        a("s_cselect_b32 s81, 73728, s81")
        a("v_and_b32 v8, 31, v0")
        a("v_and_b32 v9, 7, v0")
        a("v_xor_b32 v11, v9, v10")
        a("v_lshlrev_b32 v8, 7, v8")
        a("v_lshl_add_u32 v193, v11, 4, v8")
        a("v_add_u32 v193, s81, v193")
        a("v_lshrrev_b32 v8, 3, v0")
        a("v_xor_b32 v11, v9, v8")
        a("v_lshlrev_b32 v11, 4, v11")
        a("v_lshl_add_u32 v194, v8, 7, v11")
        a("v_add_u32 v194, s81, v194")
        a("v_add_u32 v8, s80, v8")
        a("v_lshlrev_b32 v8, 12, v8")
        a(f"v_lshl_add_u32 v{VOA}, v9, 4, v8")
    a("s_lshl_b32 s56, s42, 7")
    a("s_add_u32 s56, s56, 2048")
    a("s_lshl_b32 s82, s82, 16")
    a(f"s_add_u32 s82, s82, 0x{WS_OF:x}")
    for p in range(8):
        a(f"s_add_u32 s81, s43, {p}")
        a("s_and_b32 s81, s81, 7")
        a("s_lshl_b32 s81, s81, 13")
        a(f"s_add_u32 s{48 + p}, s82, s81")
    hk = {"blk": wo_early()}
    if optval("qk", 0):
        hk["blk"][optval("qk", 0)] = hk["blk"].get(optval("qk", 0), []) + [tlq]
    else:
        hk["mid"] = lambda: a(tlq)
    a("s_waitcnt vmcnt(0)")
    ts.stamp(a, 5)
    a("s_waitcnt lgkmcnt(0)")
    a("s_barrier")
    ts.stamp(a, 4)
    hk["blk"][7] = blk7_flag() + hk["blk"].get(7, [])
    if optval("wt", 0):
        hk["blk"][optval("wt", 0)] = hk["blk"].get(optval("wt", 0), []) + [f"buffer_load_dword v156, v198, {S(SWO)}, 0 offen"]
    if optval("at", 0):
        hk["blk"][optval("at", 0)] = hk["blk"].get(optval("at", 0), []) + [f"buffer_load_dword v156, v198, {S(SOUT)}, 0 offen"]
    if optval("bt", 0):
        hk["blk"][optval("bt", 0)] = hk["blk"].get(optval("bt", 0), []) + [f"buffer_load_dword v155, v{VOA}, {S(SOUT)}, s56 offen"]
    hk["prio"] = prio_plan("M")
    emit_attention(a, ool, hk, MASKS_M, "M")
    ts.stamp(a, 6)
    wo_late(a, ts, 0, False)
    if optval('od', 0):
        a(f"s_sleep {optval('od', 0)}")
    poll_issue(a, VPA, 12)
    a("s_waitcnt vmcnt(1)")
    lds_flag_set(a, 32, 0, 16)
    ts.stamp(a, 8)
    if "noo" not in OPT:
        emit_poll(a, VPA, 32, 12, pre=True, sleep=optval("os", 0))
    ts.stamp(a, 9)

    def aload(ks):
        out = []
        if ks % 8 == 4:
            out.append(f"s_add_u32 s{48 + (ks >> 3)}, s{48 + (ks >> 3)}, 4096")
        out.append(f"buffer_load_dwordx4 {vr(AF + 4 * (ks % PF), 4)}, v1, {S(SWS)}, s{48 + (ks >> 3)} offen offset:{(ks & 3) * 1024} {scl()}")
        return out

    def breads(ks, buf):
        f = BF[buf]
        o = WLOC[ks]
        base, o = (6, o - L_R0) if o >= L_R0 else (4, o - 65536) if o >= 65536 else (2, o)
        out = []
        for ct in range(2):
            out.append(f"ds_read_b64_tr_b16 {vr(f + 4 * ct, 2)}, v{base + ct} offset:{o}")
            out.append(f"ds_read_b64_tr_b16 {vr(f + 4 * ct + 2, 2)}, v{base + ct} offset:{o + 1024}")
        return out

    for ks in range(PF):
        for x in aload(ks):
            a(x)
    CHK = {}
    if "g2e" in OPT:
        CHK = {8 * NE - 2: (0, 16)}
    else:
        emit_lds_wait(a, VLF, 0, 16)
        emit_lds_wait(a, VLF, 16, 16)
    for x in breads(0, 0) + breads(1, 1):
        a(x)
    for ks in range(64):
        f = BF[ks % 3]
        issued = min(63, ks + PF - 1)
        a(f"s_waitcnt vmcnt({issued - ks}) lgkmcnt({4 if ks < 63 else 0})")
        af = vr(AF + 4 * (ks % PF), 4)
        nxt = breads(ks + 2, (ks + 2) % 3) if ks + 2 < 64 else []
        d0, d1 = vr(AC2, 16), vr(AC2 + 16, 16)
        a(f"v_mfma_f32_32x32x16_bf16 {d0}, {vr(f, 4)}, {af}, {'0' if ks == 0 else d0}")
        if ks + 1 in CHK:
            for i, o in enumerate(CHK[ks + 1]):
                a(f"ds_read_b128 {vr(8 + 4 * i, 4)}, v{VLF} offset:{o}")
        if ks in CHK:
            for i in range(4):
                a(f"v_and_b32 v{8 + i}, v{8 + i}, v{12 + i}")
            a("v_and_b32 v8, v8, v9")
            a("v_and_b32 v10, v10, v11")
            a("v_and_b32 v8, v8, v10")
            lf, lb = a.newlabel("wspin"), a.newlabel("wback")
            a("v_cmp_ne_u32 vcc, 0, v8")
            a(f"s_cbranch_vccz {lf}")
            a.label(lb)
            sub = Asm()
            sub.uid = a.uid + 2000
            for o in CHK[ks]:
                emit_lds_wait(sub, VLF, o, 8)
            a.uid = sub.uid
            ool.append((lf, [x.strip() for x in sub.L], lb))
        for x in nxt:
            a(x)
        a(f"v_mfma_f32_32x32x16_bf16 {d1}, {vr(f + 4, 4)}, {af}, {'0' if ks == 0 else d1}")
        if ks + PF < 64:
            for x in aload(ks + PF):
                a(x)
    ts.stamp(a, 28)
    a("s_nop 7")
    a("s_nop 7")
    for ct in range(2):
        b = AC2 + 16 * ct
        for j in range(8):
            a(f"v_cvt_pk_bf16_f32 v{b + j}, v{b + 2 * j}, v{b + 2 * j + 1}")
        a("s_nop 1")
        for jj in range(2):
            a(f"v_permlane32_swap_b32 v{b + 4 * jj}, v{b + 4 * jj + 2}")
            a(f"v_permlane32_swap_b32 v{b + 4 * jj + 1}, v{b + 4 * jj + 3}")
        if "bf" in OPT:
            for jj in range(2):
                a(f"v_xor_b32 v{8 + 2 * ct + jj}, {(4 * ct + 2 * jj) * 16}, v193")
                a(f"ds_write_b128 v{8 + 2 * ct + jj}, {vr(b + 4 * jj, 4)}")
            continue
        for jj in range(2 if "nob" not in OPT else 0):
            a(f"buffer_store_dwordx4 {vr(b + 4 * jj, 4)}, v{VOA}, {S(SOUT)}, s56 offen offset:{ct * 64 + jj * 32}{' sc1' if 'ob' in OPT else ''}{' nt' if 'nb' in OPT else ''}")
    if "bf" in OPT:
        for i in range(4):
            a(f"ds_read_b128 {vr(72 + 4 * i, 4)}, v194 offset:{1024 * i}")
        for i in range(4):
            a(f"s_waitcnt lgkmcnt({3 - i})")
            a(f"buffer_store_dwordx4 {vr(72 + 4 * i, 4)}, v{VOA}, {S(SOUT)}, s56 offen{' sc1' if 'ob' in OPT else ''}{' nt' if 'nb' in OPT else ''}")
            a("s_add_u32 s56, s56, 32768")
    ts.final(a, 10)
    a("s_endpgm")


def h_path(a, ts, ool):
    a(f"s_setprio {optval('hp', 3)}")
    XO, WO = 2, 6
    a("v_lshrrev_b32 v12, 3, v0")
    a("v_and_b32 v13, 7, v0")
    a("s_lshl_b32 s45, s33, 7")
    a("s_lshl_b32 s46, s44, 5")
    a("s_add_u32 s45, s45, s46")
    a("v_lshrrev_b32 v14, 4, v0")
    a("v_xor_b32 v14, v14, v13")
    a("v_add_u32 v15, s45, v12")
    a("v_lshlrev_b32 v15, 11, v15")
    a(f"v_lshl_add_u32 v{XO}, v14, 4, v15")
    a(f"v_xor_b32 v{XO + 1}, 64, v{XO}")
    a(f"v_add_u32 v{XO + 1}, {16384 - 1024}, v{XO + 1}")
    a(f"v_add_u32 v{XO + 2}, {2 * (16384 - 1024)}, v{XO}")
    a(f"v_add_u32 v{XO + 3}, {2 * (16384 - 1024)}, v{XO + 1}")
    a("s_lshl_b32 s45, s44, 12")
    main_a = a
    if "fs" in OPT:
        a = Asm()
    a("s_mul_i32 s48, s44, 98304")
    a("s_lshl_b32 s46, s34, 7")
    a("s_add_u32 s48, s48, s46")
    if "wl" in OPT:
        a("v_lshrrev_b32 v14, 2, v0")
        a("v_and_b32 v14, 4, v14")
        a("v_xor_b32 v14, v14, v13")
        a("v_mul_u32_u24 v15, 6144, v12")
        a("v_lshl_add_u32 v15, v14, 4, v15")
        a(f"v_add_u32 v{WO}, s48, v15")
        a(f"v_add_u32 v{WO + 1}, 48128, v{WO}")
    for i in range(3 if "wl" not in OPT else 0):
        if i:
            a(f"v_add_u32 v14, {64 * i}, v0")
        src = "v14" if i else "v0"
        a(f"v_mul_u32_u24 v15, 2731, {src}")
        a("v_lshrrev_b32 v15, 16, v15")
        a("v_mul_u32_u24 v16, 24, v15")
        a(f"v_sub_u32 v16, {src}, v16")
        a("v_bfe_u32 v18, v15, 1, 1")
        a("v_lshlrev_b32 v18, 2, v18")
        a("v_xor_b32 v16, v16, v18")
        a("v_lshrrev_b32 v18, 3, v16")
        a("v_and_b32 v16, 7, v16")
        a("v_mul_u32_u24 v15, 6144, v15")
        a("v_lshl_add_u32 v15, v18, 11, v15")
        a("v_lshl_add_u32 v15, v16, 4, v15")
        for ii in (i, i + 3):
            il = ii if ii < 4 else ii - 4
            a(f"s_add_u32 s49, s48, {(8 * 6144 if ii >= 3 else 0) - 1024 * il}")
            a(f"v_add_u32 v{WO + ii}, s49, v15")
    a("s_mul_i32 s43, s44, 6144")
    a("s_add_u32 s43, s43, 16384")
    wsetup = [x.strip() for x in a.L] if "fs" in OPT else []
    a = main_a
    order = []

    RG = optval("rg", 8)

    def pace(t):
        if t >= 6 and optval("pc", 0):
            a(f"s_nop {optval('pc', 0) - 1}")
            if optval("pc2", 0):
                a(f"s_nop {optval('pc2', 0) - 1}")

    def tile_index(t):
        if "hot" in OPT:
            a(f"s_mov_b32 s42, {t & 1}")
            return
        if RG <= 1:
            a(f"s_mov_b32 s42, {t}")
            return
        if SG:
            a(f"s_bfe_u32 s42, s{54 + (t >> 3)}, 0x{0x40000 + 4 * (t & 7):x}")
            return
        if "f0" in OPT:
            if t == 0:
                a("s_mov_b32 s42, 15")
            elif t <= 8:
                a(f"s_add_u32 s42, s56, {t - 1}")
                a("s_and_b32 s42, s42, 7")
            else:
                a("s_and_b32 s42, s56, 7")
                a("s_min_u32 s42, s42, 6")
                a(f"s_add_u32 s42, s42, {t - 9}")
                a("s_cmp_ge_u32 s42, 7")
                a("s_cselect_b32 s49, 1, 8")
                a("s_add_u32 s42, s42, s49")
            return
        GR = [o[2:] for o in OPT if o.startswith("gr")]
        if GR:
            g0 = 0
            for c in GR[0]:
                if t < g0 + int(c):
                    break
                g0 += int(c)
            a(f"s_add_u32 s42, s56, {t}")
            a(f"s_and_b32 s42, s42, {int(c) - 1}")
            if g0:
                a(f"s_add_u32 s42, s42, {g0}")
            return
        a(f"s_add_u32 s42, s56, {t}")
        a(f"s_and_b32 s42, s42, {RG - 1}")
        if t >= RG:
            a(f"s_add_u32 s42, s42, {t // RG * RG}")

    SG = optval("sg", 0)
    if SG:
        a("s_lshr_b32 s56, s35, 3")
        a("s_add_u32 s56, s56, s35")
        a("s_and_b32 s56, s56, 3")
        for c in range(4):
            seq = sorted(range(16), key=lambda x: (x - SG - 0.5) if (x & 3) == c else x)
            w = [sum(seq[8 * h + i] << (4 * i) for i in range(8)) for h in range(2)]
            if c == 0:
                a(f"s_mov_b32 s54, 0x{w[0]:x}")
                a(f"s_mov_b32 s55, 0x{w[1]:x}")
            else:
                a(f"s_cmp_eq_u32 s56, {c}")
                a(f"s_cselect_b32 s54, 0x{w[0]:x}, s54")
                a(f"s_cselect_b32 s55, 0x{w[1]:x}, s55")
    a("s_lshr_b32 s56, s35, 3")
    a(f"s_mul_i32 s56, s56, {optval('rb', 2)}")
    if optval("ra", 0):
        a(f"s_bfe_u32 s49, s35, 0x{((3 - optval('ra', 0)) << 16) + optval('ra', 0):x}")
        a("s_add_u32 s56, s56, s49")
    else:
        a("s_add_u32 s56, s56, s35")
    if optval("rx", 0):
        a(f"s_mul_i32 s49, s3, {optval('rx', 0)}")
        a("s_add_u32 s56, s56, s49")
    if optval("ry", 0):
        a("s_lshr_b32 s49, s3, 1")
        a(f"s_mul_i32 s49, s49, {optval('ry', 0)}")
        a("s_add_u32 s56, s56, s49")
    if RG == 16:
        a("s_lshl_b32 s56, s56, 1")

    def issue_x(t):
        if "nodma" in OPT and t >= 3:
            order.append(f"x{t}")
            return
        a(f"s_add_u32 m0, s45, {slot(t) * 40960}")
        tile_index(t)
        a("s_lshl_b32 s42, s42, 7")
        for i in range(4):
            a(f"buffer_load_dwordx4 v{XO + i}, {S(SX)}, s42 offen offset:{1024 * i} {nt('x') if t % RG == RG - 1 else ''} lds")
            pace(t)
        order.append(f"X{t}")

    def issue_w(t):
        if "nodma" in OPT and t >= 3:
            order.append(f"x{t}")
            return
        while wsetup:
            a(wsetup.pop(0))
        st = slot(t)
        a(f"s_add_u32 m0, s43, {st * 40960}")
        tile_index(t)
        a("s_mul_i32 s42, s42, 393216")
        if "wl" in OPT:
            for i in range(6):
                if i == 4:
                    a(f"s_add_u32 m0, s43, {st * 40960 + 4096}")
                    a("s_add_u32 s42, s42, 4096")
                a(f"buffer_load_dwordx4 v{WO + (i & 1)}, {S(SW)}, s42 offen offset:{1024 * (i & 3)} lds")
            order.append(f"W{t}")
            return
        for i in range(4):
            a(f"buffer_load_dwordx4 v{WO + i}, {S(SW)}, s42 offen offset:{1024 * i} {nt('x') if t % RG == RG - 1 else ''} lds")
            pace(t)
        a(f"s_add_u32 m0, s43, {st * 40960 + 4096}")
        a("s_nop 0")
        for i in range(4, 6):
            a(f"buffer_load_dwordx4 v{WO + i}, {S(SW)}, s42 offen offset:{1024 * (i - 4)} {nt('x') if t % RG == RG - 1 else ''} lds")
        order.append(f"W{t}")

    RQ = [list(range(28, 68, 4)), list(range(68, 108, 4)),
          list(range(108, 124, 4)) + list(range(200, 216, 4)) + [220, 224]]
    parked = {}

    def park(t, part):
        if t not in parked:
            parked[t] = next(b for b in range(3) if b not in parked.values())
        q = RQ[parked[t]]
        tile_index(t)
        if part == "X":
            a("s_lshl_b32 s42, s42, 7")
            for i in range(4):
                a(f"buffer_load_dwordx4 {vr(q[i], 4)}, v{XO + i}, {S(SX)}, s42 offen offset:{1024 * i}")
        else:
            a("s_mul_i32 s42, s42, 393216")
            for i in range(6):
                a(f"buffer_load_dwordx4 {vr(q[4 + i], 4)}, v{WO + i}, {S(SW)}, s42 offen offset:{1024 * (i & 3)}")
        order.append(f"{part}{t}")

    def unpark(t):
        wait_tile(t)
        q = RQ[parked[t]]
        a(f"s_add_u32 s42, s45, {slot(t) * 40960}")
        a("v_add_u32 v170, s42, v1")
        a(f"s_add_u32 s42, s43, {slot(t) * 40960}")
        a("v_add_u32 v171, s42, v1")
        for i in range(10):
            a(f"ds_write_b128 v{170 + (i >= 4)}, {vr(q[i], 4)} offset:{1024 * (i if i < 4 else i - 4)}")
        parked[t] = -1

    def vm(x):
        a(x)
        if x.startswith("buffer"):
            order.append("P")

    def cnt(lst):
        return sum({"X": 4, "W": 6, "P": 1, "L": 0, "U": 0, "x": 0, "R": 1, "E": 0, "a": 0}[x[0]] for x in lst)

    def wait_tile(b):
        if "nodma" in OPT and b >= 3:
            return
        last = max(i for i, x in enumerate(order) if x in (f"X{b}", f"W{b}"))
        assert f"X{b}" in order and f"W{b}" in order
        n = cnt(order[last + 1:])
        assert n < 64
        a(f"s_waitcnt vmcnt({n})")

    def later():
        a("s_lshl_b32 s80, s84, 2")
        a("s_add_u32 s80, s80, s44")
        a("s_lshl_b32 s80, s80, 11")
        a("v_lshlrev_b32 v179, 5, v0")
        a("v_add_u32 v179, s80, v179")
        a("s_lshl_b32 s87, s84, 2")
        a("s_add_u32 s87, s87, s44")
        a("s_lshl_b32 s87, s87, 12")
        a(f"s_buffer_load_dword s57, {S(SHK)}, s87")
        a(f"s_mul_i32 s88, s44, {URO}")
        a(f"s_add_u32 s88, s88, {L_R0 + 4 * (CW - URO)}")
        a(f"s_mul_i32 s86, s44, {CW - URO}")
        a(f"s_add_u32 s86, s86, {L_R0 - URO}")
        a("s_lshl_b32 s80, s35, 2")
        a("s_add_u32 s80, s80, s44")
        a("s_lshl_b32 s80, s80, 6")
        a("v_add_u32 v20, s80, v0")
        a("v_lshrrev_b32 v241, 3, v20")
        a("v_lshlrev_b32 v241, 11, v241")
        a("v_and_b32 v20, 7, v20")
        a("v_lshl_add_u32 v241, v20, 7, v241")
        a("s_lshr_b32 s80, s3, 2")
        a("s_lshl_b32 s80, s80, 10")
        a("v_add_u32 v241, s80, v241")
        a("s_lshl_b32 s80, s35, 6")
        a("s_lshl_b32 s81, s44, 4")
        a("s_add_u32 s80, s80, s81")
        a("v_lshrrev_b32 v20, 1, v0")
        a("v_add_u32 v20, s80, v20")
        a("v_lshlrev_b32 v20, 11, v20")
        a("v_and_b32 v21, 1, v0")
        a("v_lshl_add_u32 v20, v21, 7, v20")
        a("s_lshl_b32 s80, s3, 8")
        a("v_add_u32 v20, s80, v20")
        a("v_lshlrev_b32 v21, 7, v0")
        a("v_cmp_gt_u32 vcc, 32, v0")
        a("s_nop 1")
        a("v_cndmask_b32 v242, v240, v20, vcc")
        a("v_cndmask_b32 v243, v240, v21, vcc")
        AF_ = "af" in OPT
        a(f"v_lshrrev_b32 v20, {3 + AF_}, v0")
        a(f"v_and_b32 v21, {7 + 8 * AF_}, v0")
        a("s_lshl_b32 s80, s35, 6")
        if AF_:
            a("s_and_b32 s81, s44, 1")
            a("s_lshl_b32 s81, s81, 5")
            a("s_add_u32 s80, s80, s81")
        a("s_lshl_b32 s81, s3, 2")
        a("s_add_u32 s81, s81, s44")
        if AF_:
            a("s_andn2_b32 s81, s81, 1")
        a("s_lshl_b32 s81, s81, 5")
        a("v_lshlrev_b32 v22, 3, v20")
        a("v_add_u32 v22, s80, v22")
        a("v_lshlrev_b32 v23, 2, v21")
        a("v_add_u32 v23, s81, v23")
        a(f"v_lshlrev_b32 v{PA}, 12, v23")
        a(f"v_lshl_add_u32 v{PA}, v22, 1, v{PA}")
        if "yc" in OPT:
            assert AF_
            a("v_and_b32 v24, 3, v0")
            a("v_lshrrev_b32 v25, 2, v0")
            a("v_lshl_add_u32 v24, v24, 4, v25")
            a("v_lshlrev_b32 v24, 2, v24")
            a(f"ds_bpermute_b32 v{PA}, v24, v{PA}")
            a("v_lshl_add_u32 v247, v21, 2, v20")
            a("v_lshlrev_b32 v247, 2, v247")
        a(f"v_lshlrev_b32 v{PA + 1}, 11, v22")
        a(f"v_lshl_add_u32 v{PA + 1}, v23, 1, v{PA + 1}")
        a(f"v_lshlrev_b32 v{PA + 2}, 12, v22")
        a(f"v_lshl_add_u32 v{PA + 2}, v23, 1, v{PA + 2}")
        a(f"v_bfe_u32 v20, v0, 2, {3 + AF_}")
        a("s_lshl_b32 s80, s44, 3")
        if AF_:
            a("s_and_b32 s80, s80, 16")
        a("v_add_u32 v20, s80, v20")
        a("v_lshlrev_b32 v20, 3, v20")
        a("v_add_u32 v20, s3, v20")
        a("v_lshlrev_b32 v20, 7, v20")
        a("v_and_b32 v21, 3, v0")
        a("v_lshl_add_u32 v20, v21, 3, v20")
        a(f"v_add_u32 v{PA + 3}, 0x{WS_FL + FL_Y2 * 32768 + 32:x}, v20")
        a("s_and_b32 s40, s44, 1")
        a("s_lshr_b32 s41, s44, 1")
        a("s_waitcnt lgkmcnt(0)")
        a("s_lshl_b32 s80, s44, 4")
        a("s_lshr_b64 s[38:39], s[76:77], s80")
        a("s_lshl_b32 s39, s38, 16")
        a("s_lshl_b32 s57, s57, 16")
        a("s_lshl_b32 s40, s40, 1")
        a("s_add_u32 s40, s40, 1")
        a("v_and_b32 v192, 31, v0")
        a("v_lshlrev_b32 v192, 3, v192")
        a("v_add_u32 v192, s3, v192")
        a("v_lshlrev_b32 v192, 7, v192")
        a("s_lshr_b32 s80, s35, 3")
        a("s_lshl_b32 s80, s80, 3")
        a(f"s_add_u32 s80, s80, 0x{WS_FL + FL_UR * 32768 + 32:x}")
        a("v_add_u32 v192, s80, v192")
        a("s_lshl_b32 s80, s44, 11")
        a(f"s_add_u32 s80, s80, {L_QH}")
        a("v_add_u32 v193, s80, v1")
        a("v_lshlrev_b32 v180, 3, v0")
        a("v_add_u32 v180, s86, v180")
        a("v_and_b32 v181, 1, v0")
        a(f"v_mul_u32_u24 v181, {CPY}, v181")
        a("v_bfe_u32 v182, v0, 1, 1")
        a("v_lshl_add_u32 v181, v182, 4, v181")
        a("v_add_u32 v181, s88, v181")
        a("v_mov_b32 v182, s88")
        a("v_mov_b32 v183, s57")
        for i in range(4):
            a(f"v_mov_b32 v{184 + i}, 0")

    p_setup, p_loads, p_comp, p_stores = p1_lists()
    if "nop1" in OPT:
        p_loads, p_comp, p_stores = p_loads[:1], [], []

    main_a = a
    a = Asm()
    for y in p_setup:
        a(y)
    later()
    setup2 = [x.strip() for x in a.L]
    a = main_a

    gl = list(range(32))

    def act(x):
        k, arg = x[0], x[1:]
        if k == "X":
            issue_x(int(arg))
        elif k == "W":
            issue_w(int(arg))
        elif k == "T":
            issue_x(int(arg)); issue_w(int(arg))
        elif k == "Y":
            park(int(arg), "X"); park(int(arg), "W")
        elif k == "Z":
            unpark(int(arg))
        elif k == "F":
            t0, n = map(int, arg.split("_"))
            emit_touch_fine(a, 234, 235, 228, t0)
            for y in touch(t0, n, 234, 235, 246):
                vm(y)
        elif k == "C":
            t = int(arg)
            a(f"s_cmp_eq_u32 s58, {t & 3}")
            a("s_cselect_b64 vcc, -1, 0")
            a(f"s_mov_b32 s82, {t * 128}")
            a(f"s_mov_b32 s83, {t * 393216}")
            a("v_cndmask_b32 v238, v240, v245, vcc")
            a("v_cndmask_b32 v239, v240, v244, vcc")
            vm(f"buffer_load_dword v246, v238, {S(SW)}, s83 offen")
            vm(f"buffer_load_dword v247, v239, {S(SX)}, s82 offen")
        elif k == "K":
            r = 242
            if arg:
                a(f"s_cmp_eq_u32 s58, {arg}")
                a("s_cselect_b64 vcc, -1, 0")
                a("s_nop 0")
                a("v_cndmask_b32 v237, v240, v242, vcc"); r = 237
            vm(f"buffer_load_dword v248, v{r}, {S(SK)}, 0 offen")
            vm(f"buffer_load_dword v249, v{r}, {S(SV)}, 0 offen")
        elif k == "P":
            for _ in range(int(arg)):
                if p_loads:
                    vm(p_loads.pop(0))
            if not p_loads:
                order.append("L")
        elif k == "V":
            assert all(v < 0 for v in parked.values())
            if "L" in order:
                a(f"s_waitcnt vmcnt({cnt(order[order.index('L') + 1:])})")
                order.remove("L")
            for _ in range(int(arg)):
                if p_comp:
                    a(p_comp.pop(0))
        elif k == "S":
            assert not p_comp and not p_loads
            for y in p_stores:
                vm(y)
            order.append("U")
        elif k == "U":
            a(f"s_waitcnt vmcnt({cnt(order[order.index('U') + 1:])})")
            emit_token_take(a, 172, VZ)
            emit_publish(a, FL_UR, 194, VZ)
            order.append("P")
        elif k == "A":
            emit_attn_setup(a, MASKS_H)
        elif k == "R":
            poll_issue(a, 192, 198)
            order.append("R")
        elif k == "o":
            vm(f"buffer_load_dword v178, v179, {S(SWO)}, 0 offen")
        elif k == "Q":
            vm(f"buffer_load_dword v246, v242, {S(SQ)}, 0 offen")
        elif k == "G":
            vm(f"buffer_load_dword v246, v243, {S(SHK)}, s87 offen")
        elif k == "O":
            vm(f"buffer_load_dword v248, v241, {S(SWO)}, 0 offen")
        elif k == "t":
            vm(f"buffer_load_dwordx2 v[172:173], v{VZ}, {S(SDBG)}, 0 offen{SC}")
        elif k == "a":
            ptr_loads(a)
            order.append("a")
        elif k == "b":
            if "fs" in OPT:
                if "a" not in order:
                    ptr_loads(a)
                a("s_waitcnt lgkmcnt(0)")
            late_setup(a, ts)
            if ts.on:
                order.append("P")
            a("v_mov_b32 v240, 0x80000000")
            a("s_and_b32 s58, s35, 3")
        elif k == "c":
            for _ in range(int(arg)):
                if setup2:
                    a(setup2.pop(0))
        elif k == "H":
            a("ds_write_b128 v181, v[184:187]")
            a(f"ds_write_b32 v182, v183 offset:{CPY + 28}")
            for c in range(2):
                a(f"s_add_u32 m0, s88, {32 + c * CPY}")
                a(f"s_add_u32 s80, s87, {2 * c}")
                for kk in range(4):
                    vm(f"buffer_load_dwordx4 v1, {S(SHK)}, s80 offen offset:{1024 * kk} {nt('h') if c else ''} lds")
        elif k in "DE":
            ls = a.newlabel("urskip")
            if "E" not in order:
                a(f"ds_write_b64 v180, v[184:185] offset:{URO + 4096}")
            if k == "E":
                a(f"s_waitcnt vmcnt({cnt(order[order.index('R') + 1:])})")
                a("v_cmp_eq_u64 vcc, s[78:79], v[198:199]")
                a("s_mov_b32 s38, 0")
                a("s_nop 0")
                a("s_cmp_eq_u32 vcc_lo, -1")
                a(f"s_cbranch_scc0 {ls}")
                a("s_mov_b32 s38, 1")
                order.append("E")
            else:
                if "E" in order:
                    a("s_cmp_eq_u32 s38, 1")
                    a(f"s_cbranch_scc1 {ls}")
                emit_poll(a, 192, 32, 198, pre=True)
                ts.stamp(a, 2)
            a(f"s_add_u32 m0, s86, {URO}")
            a(f"s_add_u32 s80, s87, 0x{WS_UR:x}")
            for kk in range(4):
                a(f"buffer_load_dwordx4 v1, {S(SWS)}, s80 offen offset:{1024 * kk} {nt('u')} lds")
            a.label(ls)
        else:
            raise ValueError(x)

    sc = os.environ.get("SCHED") or SCHEDS[optval("sc", 0)]
    sched = sc.split("|")
    assert len(sched) == 18, len(sched)
    if "tse" in OPT and ts.enabled:
        a("s_memrealtime s[92:93]")
    if "wn" in OPT:
        while wsetup:
            a(wsetup.pop(0))
    a("s_waitcnt lgkmcnt(0)")
    if "tse" in OPT and ts.enabled:
        a("v_writelane_b32 v254, s92, 29")
        ts.stamp(a, 0)
    for x in sched[0].split():
        act(x)
        if "tse" in OPT and x == "X1":
            ts.stamp(a, 9)
        if "tse" in OPT and x[0] == "c":
            ts.stamp(a, 2)
    for b in range(0, 17):
        if b not in skipped():
            real, nb = b, b
            while nb + 1 in skipped():
                nb += 1
            if b in parked:
                assert parked[b] < 0
                a("s_waitcnt lgkmcnt(0)")
            elif b < 16:
                wait_tile(max(range(b, nb + 1), key=lambda t: max(order.index(f"X{t}"), order.index(f"W{t}"))))
            if "tse" in OPT and b == 0:
                ts.stamp(a, 28)
            a("s_barrier")
        if "tsb" in OPT:
            ts.stamp(a, 11 + b)
        for x in sched[b + 1].split():
            if x[0] in "XWTZ":
                assert int(x[1:]) <= real + 3
            act(x)
    ts.stamp(a, 1)
    assert not setup2
    a("s_mov_b32 s46, s88")
    a(f"s_add_u32 s36, s87, 0x{wsy2():x}")

    def c_start():
        if optval("pv", -1) >= 0:
            a(f"s_setprio {optval('pv', 0)}")
        a("s_waitcnt vmcnt(0)")
        ts.stamp(a, 3)

    b = Asm()
    emit_attn_setup(b, MASKS_H)
    g2_tile(b)
    wo_addr(b)
    ys = emit_conv(a, {"start": c_start, "extra": [x.strip() for x in b.L], "bar": lambda: a("s_barrier")})
    ts.stamp(a, 5)
    a("s_setprio 0")
    if "eb" not in OPT:
        a("s_barrier")
    ts.stamp(a, 4)
    a(f"ds_read_b128 {vr(QC, 4)}, v193")
    a(f"ds_read_b128 {vr(QC + 4, 4)}, v193 offset:1024")
    for x in ys:
        a(x)
    YY, OO = 168, 24
    if optval("ph", 0):
        a(f"s_setprio {optval('ph', 0)}")
    blk = wo_early()
    b = Asm()
    b("s_waitcnt vmcnt(0)")
    emit_publish(b, FL_Y2, 194, VZ)
    yb = optval("yb", 2)
    blk[yb] = [x.strip() for x in b.L] + blk.get(yb, [])
    hk = {"blk": blk}
    blk[7] = blk7_flag() + blk.get(7, [])
    hk["prio"] = prio_plan("H")
    YE = optval("ye", 0)
    b = Asm()
    for i in range(8):
        if i % 2 == 0:
            b(f"s_mov_b32 s80, {4096 * (i >> 1)}")
        b(f"buffer_load_dwordx2 {vr(QQ + 2 * i, 2)}, v{PA + 1}, {S(SQ)}, s80 offen offset:{(i & 1) * 2048}")
    ql = [x.strip() for x in b.L]
    b = Asm()
    poll_issue(b, PA + 3, 196)
    pl = [x.strip() for x in b.L]
    if YE:
        blk[optval("qe", YE)] = blk.get(optval("qe", YE), []) + ql
        blk[YE] = blk.get(YE, []) + pl
    emit_attention(a, ool, hk, MASKS_H, "H")
    ts.stamp(a, 6)
    if not YE:
        for x in ql + pl:
            a(x)

    def y_issue(va):
        a(f"s_mov_b32 s80, 0x{wsy2():x}")
        for dd in range(4):
            a(f"buffer_load_dwordx4 {vr(YY + 4 * dd, 4)}, v{va}, {S(SWS)}, s80 offen {scl()}")
            if dd < 3:
                a("s_add_u32 s80, s80, 4096")

    def y_loads():
        emit_poll(a, PA + 3, 64, 196, pre=True)
        y_issue(PA)

    p3 = Asm()
    a, main_a = p3, a
    for i in range(8):
        for dd in range(4):
            ys = YY + 4 * dd + (i >> 1)
            qs = QQ + 2 * i + (dd >> 1)
            a(f"v_and_b32 v4, 0xffff0000, v{ys}" if i & 1 else f"v_lshlrev_b32 v4, 16, v{ys}")
            a(f"v_and_b32 v5, 0xffff0000, v{qs}" if dd & 1 else f"v_lshlrev_b32 v5, 16, v{qs}")
            a(f"v_mul_f32 v{OO + 4 * i + dd}, v4, v5")
        o = OO + 4 * i
        a(f"v_cvt_pk_bf16_f32 v{o}, v{o}, v{o + 1}")
        a(f"v_cvt_pk_bf16_f32 v{o + 1}, v{o + 2}, v{o + 3}")
    a = main_a
    outs = []
    for i in range(8):
        outs += [f"s_mov_b32 s80, {4096 * i}", f"buffer_store_dwordx2 {vr(OO + 4 * i, 2)}, v{PA + 2}, {S(SOUT)}, s80 offen{' sc1' if 'oa' in OPT else ''}{' nt' if 'na' in OPT else ''}"]

    def gate():
        if "yc" in OPT:
            for r in range(4):
                for dd in range(4):
                    a(f"ds_bpermute_b32 v{YY + 4 * dd + r}, v247, v{YY + 4 * dd + r}")
            a("s_waitcnt lgkmcnt(0)")
        for x in p3.L:
            a(x.strip())

    if YE:
        ll, lr = a.newlabel("ylate"), a.newlabel("yback")
        a("s_waitcnt vmcnt(2)")
        a("v_cmp_eq_u64 vcc, s[78:79], v[196:197]")
        a("v_mov_b32 v4, 0x80000000")
        a("s_nop 0")
        a("s_cmp_eq_u64 vcc, -1")
        a("s_cselect_b32 s38, 1, 0")
        a("s_cselect_b64 vcc, -1, 0")
        a("s_nop 0")
        a(f"v_cndmask_b32 v4, v4, v{PA}, vcc")
        y_issue(4)
        wo_late(a, ts, 4, True)
        a("s_cmp_eq_u32 s38, 0")
        a(f"s_cbranch_scc1 {ll}")
        a(f"s_waitcnt vmcnt({0 if 'nolate' in OPT else nlate() + (1 if optval('es', 0) == 1 else 0)})")
        a.label(lr)
        main_a, sub = a, Asm()
        sub.uid = main_a.uid + 1000
        a = sub
        a("s_waitcnt vmcnt(0)")
        lds_flag_set(a, 32, 0, 4)
        for x in pl:
            a(x)
        y_loads()
        a("s_waitcnt vmcnt(0)")
        main_a.uid = sub.uid
        a = main_a
        ool.append((ll, [x.strip() for x in sub.L], lr))
        gate()
        a("s_waitcnt vmcnt(0)")
        lds_flag_set(a, 32, 0, 4)
        ts.stamp(a, 8)
        if optval("ad", 0):
            a(f"s_sleep {optval('ad', 0)}")
        for x in outs:
            if "noa" not in OPT:
                a(x)
    else:
        raise ValueError("ye required")
    if optval("wb", 0):
        lw = a.newlabel("nowb")
        a(f"s_and_b32 s80, s35, {optval('wb', 0) - 1}")
        a("s_or_b32 s80, s80, s44")
        a("s_cmp_lg_u32 s80, 0")
        a(f"s_cbranch_scc1 {lw}")
        a("s_waitcnt vmcnt(0)")
        a(f"s_sleep {optval('wd', 16)}")
        a("buffer_wbl2 sc1")
        a("s_waitcnt vmcnt(0)")
        a.label(lw)
    ts.final(a, 10)
    a("s_endpgm")


def ptr_loads(a, helper=True):
    for (d, off, size) in SRDS[2:]:
        if helper or d not in (SK, SV, SSH, SHK):
            a(f"s_load_dwordx2 s[{d}:{d + 1}], s[0:1], {off}")
    if helper:
        a("s_load_dwordx2 s[36:37], s[0:1], 40")


def gen_fused(a, ts):
    name = NAME + "_kernel"
    kernel_begin(a, name)
    ts.entry(a)
    a("s_cmp_ge_u32 s2, 256")
    a("s_cbranch_scc1 L_end")
    if optval("xj", 0):
        a(f"s_xor_b32 s2, s2, {optval('xj', 0)}")
    for (d, off, size) in SRDS[:2]:
        a(f"s_load_dwordx2 s[{d}:{d + 1}], s[0:1], {off}")
    if "fs" not in OPT:
        ptr_loads(a)
    for o in OPT:
        if o.startswith("xp"):
            c = sum((int(d) ^ p) << (2 * p + 1) for p, d in enumerate(o[2:]))
            a("s_and_b32 s80, s2, 6")
            a(f"s_lshr_b32 s80, 0x{c:x}, s80")
            a("s_and_b32 s80, s80, 6")
            a("s_xor_b32 s2, s2, s80")
    a("v_lshrrev_b32 v1, 6, v0")
    if "hf" in OPT:
        a("v_xor_b32 v1, 4, v1")
    a("v_and_b32 v0, 63, v0")
    a("s_and_b32 s3, s2, 7")
    a("v_readfirstlane_b32 s32, v1")
    a("s_lshr_b32 s35, s2, 3")
    a("s_and_b32 s33, s3, 1")
    a("s_lshl_b32 s33, s33, 3")
    a("s_and_b32 s80, s35, 7")
    a("s_add_u32 s33, s33, s80")
    a("s_lshr_b32 s34, s3, 1")
    a("s_lshl_b32 s34, s34, 2")
    a("s_lshr_b32 s80, s35, 3")
    a("s_add_u32 s34, s34, s80")
    if optval("hx", 0):
        a(f"s_xor_b32 s34, s34, {optval('hx', 0)}")
    a("v_lshlrev_b32 v1, 4, v0")
    a(f"v_mov_b32 v{VZ}, 0")
    for (d, off, size) in SRDS[:2]:
        a(f"s_mov_b32 s{d + 2}, 0x{size:x}")
        a(f"s_mov_b32 s{d + 3}, 0x20000")
    a("s_and_b32 s44, s32, 3")
    a("s_mov_b32 s59, 0")
    a("s_cmp_lt_u32 s32, 4")
    a("s_cbranch_scc1 L_M")
    ool = []
    h_path(a, ts, ool)
    a.label("L_M")
    if "fs" in OPT:
        ptr_loads(a, False)
    m_path(a, ts, ool)
    for (lf, body, lb) in ool:
        a.label(lf)
        for x in body:
            a(x)
        a(f"s_branch {lb}")
    a.label("L_end")
    a("s_endpgm")
    emit_exact(a)
    return name, 256, 102


def build(instrument=False):
    if "best" in OPT:
        have = {o.rstrip("0123456789") for o in OPT}
        OPT.update(o for o in BEST.split(",") if o.rstrip("0123456789") not in have and "no" + o not in OPT)
    ts = TS(instrument)
    a = Asm()
    a.raw("; fused H3 long-conv | sliding-window attention kernel (generated)")
    a.raw("; @launch grid=(256,1,1) block=(512,1,1) lds=163840")
    a.raw('.amdgcn_target "amdgcn-amd-amdhsa--gfx950"')
    a.raw(".text")
    n, v, s = gen_fused(a, ts)
    a.raw('.section .rodata,"a"')
    kernel_desc(a, n, v, s)
    return a.text()


if __name__ == "__main__":
    out = sys.argv[1] if len(sys.argv) > 1 else f"cdna_kernels/{NAME}.s"
    if len(sys.argv) > 2:
        OPT.update(sys.argv[2].split(","))
    open(out, "w").write(build())
```

```python
import sys, struct, os, re
from gen import Asm, vr, srd, kernel_begin, kernel_desc, MB, NAME
from gf import f32hex
import gf

OPT = set()
WS_KF, WS_VF, WS_UR, WS_OF, WS_Y2, WS_FL = 4 * MB, 8 * MB, 12 * MB, 16 * MB, 20 * MB, 24 * MB
WS_SIZE = 26 * MB
FL_UR, FL_K, FL_Y2, FL_O, FL_V = 0, 1, 2, 3, 4

CPY, URO, CW = 4160, 8320, 12928
L_HD, L_V = 49152, 24576
L_QH = 98304
L_R0 = 106496
L_FL = L_R0 + 4 * CW
SC = " sc1"
SPIN_LIMIT = 1 << 18
SCALE_LOG2E = (32 ** -0.5) * 1.4426950408889634
SX, SW, SWS, SK, SV, SSH, SHK, SWO, SQ, SOUT, SDBG = 4, 8, 12, 16, 20, 24, 28, 60, 64, 68, 72
MASKS_H = [4, 6, 8, 10, 16, 18, 20, 22, 24, 26, 48, 50, 52, 54, 56, 58]
MASKS_M = [4, 6, 16, 18, 20, 22, 24, 26, 28, 30, 58, 76, 92, 94, 96, 98]


WS_TS = 32 * MB


class TS:
    def __init__(self, on):
        self.enabled = on
        self.on = False

    def entry(self, a):
        if self.enabled:
            a("s_memrealtime s[98:99]")
            a("s_memtime s[100:101]")
            a("v_mov_b32 v254, 0")

    def setup(self, a, ws_pair):
        if self.enabled:
            a("v_writelane_b32 v254, s98, 30")

    def stamp(self, a, slot):
        if self.enabled and ("tsmin" not in OPT or slot == 10):
            a("s_memrealtime s[90:91]")
            a("s_waitcnt lgkmcnt(0)")
            a(f"v_writelane_b32 v254, s90, {slot}")
            if "cya" in OPT and slot < 11:
                a("s_memtime s[90:91]")
                a("s_waitcnt lgkmcnt(0)")
                a(f"v_writelane_b32 v254, s90, {slot + 12}")

    def final(self, a, slot):
        if not self.enabled:
            return
        a("s_waitcnt vmcnt(0)")
        self.stamp(a, slot)
        a("s_memtime s[90:91]")
        srd(a, 92, SWS, 4 * MB, WS_TS)
        a("s_lshl_b32 s96, s2, 4")
        a("s_add_u32 s96, s96, s32")
        a("s_lshl_b32 s96, s96, 8")
        a("s_waitcnt lgkmcnt(0)")
        a("s_sub_u32 s90, s90, s100")
        a("v_writelane_b32 v254, s90, 31")
        a("v_mov_b32 v255, 0")
        a("v_lshlrev_b32 v253, 3, v0")
        a("s_mov_b32 exec_hi, 0")
        a("buffer_store_dwordx2 v[254:255], v253, s[92:95], s96 offen")


def emit_wg_of(a, vdst, vrb, vhp, t):
    if optval("hx", 0):
        a(f"v_xor_b32 v{vhp}, {optval('hx', 0)}, v{vhp}")
    gf.emit_wg_of(a, vdst, vrb, vhp, t)


def S(n):
    return f"s[{n}:{n + 3}]"


SCHEDS = {
    0: "X0 a W0 X1 b c30 W1 | X2 P7 W2 c36 | T3 P7 X4 | W4 T5 P7 c44 | T6 c44 G | T7 c50 t | T8 V95 | T9 V95 | T10 V95 S | T11"
       " | T12 U | T13 | T14 | T15 O | R | H | E | D",
}
BEST = "we3,yb3,cp,cq50,rg4,ry1,ya,ft30,sw14_2,ye7,prM322110000,prH333221101,pe3,pv1,od8,fs,ms233,bf,ob,af,oa,aw46"


def skipped():
    return {int(c, 16) for o in OPT if o.startswith("sk") for c in o[2:]}


def wide(kind):
    return optval("fw", 0) >> kind & 1


def fbase(kind):
    if wide(kind):
        return (WS_FL + 0x100000 + (kind >> 1) * 0x80000 + (kind & 1) * 1024) >> 4
    return WS_FL + kind * 32768


def fshift(a, kind, v):
    if wide(kind):
        a(f"v_lshlrev_b32 v{v}, 4, v{v}")


def slot(t):
    return (3, 2, 0, 1)[t & 3]


def wsy2():
    return WS_UR if "ya" in OPT else WS_Y2


def nt(k):
    return "nt" if "nt" + k in OPT else ""


def scl():
    return "sc1" if "ldsc1" in OPT else ""


def optval(prefix, default):
    for o in OPT:
        if o.startswith(prefix) and o[len(prefix):].lstrip("-").isdigit():
            return int(o[len(prefix):])
    return default


def poll_issue(a, voff, tmp):
    ps = optval("ps", 0) if (voff == 191 or "psa" in OPT) else 0
    if ps == 4:
        a(f"v_mov_b32 v{tmp}, 0")
        a(f"v_mov_b32 v{tmp + 1}, 0")
        a(f"buffer_atomic_or_x2 {vr(tmp, 2)}, v{voff}, {S(SWS)}, 0 offen sc0 sc1")
        return
    a(f"buffer_load_dwordx2 {vr(tmp, 2)}, v{voff}, {S(SWS)}, 0 offen{[SC, ' sc0 sc1', ' sc1 nt', ' sc0 sc1 nt'][ps]}")


def emit_poll(a, voff, nlanes, tmp, pre=False, sleep=0):
    lp, ck, dn = a.newlabel("poll"), a.newlabel("pollc"), a.newlabel("polld")
    mask = (1 << nlanes) - 1
    a(f"s_mov_b32 s80, 0x{mask & 0xffffffff:x}")
    a(f"s_mov_b32 s81, 0x{mask >> 32:x}")
    a("s_mov_b32 s85, 0")
    if not pre:
        a.label(lp)
        poll_issue(a, voff, tmp)
        a("s_waitcnt vmcnt(0)")
        a(f"v_cmp_eq_u64 vcc, s[78:79], {vr(tmp, 2)}")
        a("s_add_u32 s85, s85, 1")
        a("s_and_b64 s[82:83], vcc, s[80:81]")
        a("s_cmp_eq_u64 s[82:83], s[80:81]")
        a(f"s_cbranch_scc1 {dn}")
        if sleep:
            a(f"s_sleep {sleep}")
        a(f"s_cmp_lt_u32 s85, 0x{SPIN_LIMIT:x}")
        a(f"s_cbranch_scc1 {lp}")
        a.label(dn)
    else:
        a.label(ck)
        a("s_waitcnt vmcnt(0)")
        a(f"v_cmp_eq_u64 vcc, s[78:79], {vr(tmp, 2)}")
        a("s_add_u32 s85, s85, 1")
        a("s_and_b64 s[82:83], vcc, s[80:81]")
        a("s_cmp_eq_u64 s[82:83], s[80:81]")
        a(f"s_cbranch_scc1 {dn}")
        if sleep:
            a(f"s_sleep {sleep}")
        poll_issue(a, voff, tmp)
        a(f"s_cmp_lt_u32 s85, 0x{SPIN_LIMIT:x}")
        a(f"s_cbranch_scc1 {ck}")
        a("s_waitcnt vmcnt(0)")
        a.label(dn)


def emit_publish(a, kind, t0, vz, smode=None, lo=78):
    if wide(kind):
        a(f"s_add_u32 s80, s89, 0x{fbase(kind):x}")
        a("s_lshl_b32 s80, s80, 4")
        for i in range(4):
            a(f"v_mov_b32 v{t0 + i}, s{78 + (i & 1)}")
        a(f"s_mov_b64 exec, {optval('fx', 255)}")
        a(f"buffer_store_dwordx4 {vr(t0, 4)}, v1, {S(SWS)}, s80 offen{SC}")
        a("s_mov_b64 exec, -1")
        a("s_nop 0")
        return
    if kind == FL_O and "fl" in OPT:
        a("s_lshl_b32 s80, s89, 4")
        a(f"s_add_u32 s80, s80, 0x{WS_FL + 0x80000:x}")
    else:
        a(f"s_add_u32 s80, s89, 0x{WS_FL + kind * 32768:x}")
    a(f"v_mov_b32 v{t0}, s{lo}")
    a(f"v_mov_b32 v{t0 + 1}, s79")
    if smode is None:
        a("s_mov_b64 exec, 1")
    else:
        a("s_mov_b32 exec_hi, 0")
        a(f"s_mov_b32 exec_lo, s{smode}")
        a(f"buffer_store_dwordx2 {vr(t0, 2)}, v{vz}, {S(SWS)}, s80 offen")
        a(f"s_xor_b32 exec_lo, s{smode}, 1")
    a(f"buffer_store_dwordx2 {vr(t0, 2)}, v{vz}, {S(SWS)}, s80 offen{SC}")
    a("s_mov_b64 exec, -1")


def emit_token_take(a, t0, vz):
    lp, dn = a.newlabel("tok"), a.newlabel("tokd")
    a("s_mov_b32 s85, 0")
    a.label(lp)
    a(f"v_readfirstlane_b32 s78, v{t0}")
    a(f"v_readfirstlane_b32 s79, v{t0 + 1}")
    a("s_add_u32 s85, s85, 1")
    a("s_cmp_lg_u64 s[78:79], 0")
    a(f"s_cbranch_scc1 {dn}")
    a(f"buffer_load_dwordx2 {vr(t0, 2)}, v{vz}, {S(SDBG)}, 0 offen{SC}")
    a("s_waitcnt vmcnt(0)")
    a(f"s_cmp_lt_u32 s85, 0x{SPIN_LIMIT:x}")
    a(f"s_cbranch_scc1 {lp}")
    a.label(dn)


def emit_wline(a, dst, idx, hi, t):
    a(f"v_mul_u32_u24 v{dst}, 5462, v{idx}")
    a(f"v_lshrrev_b32 v{dst}, 16, v{dst}")
    a(f"v_mul_u32_u24 v{t}, 12, v{dst}")
    a(f"v_sub_u32 v{t}, v{idx}, v{t}")
    if hi is not None:
        a(f"v_lshl_add_u32 v{dst}, v{hi}, 6, v{dst}")
    a(f"v_mul_u32_u24 v{dst}, 6144, v{dst}")
    a(f"v_lshrrev_b32 v{t + 1}, 2, v{t}")
    a(f"v_lshl_add_u32 v{dst}, v{t + 1}, 11, v{dst}")
    a(f"v_and_b32 v{t}, 3, v{t}")
    a(f"v_lshl_add_u32 v{dst}, v{t}, 7, v{dst}")
    a("s_lshr_b32 s83, s3, 1")
    a("s_lshl_b32 s83, s83, 9")
    a(f"v_add_u32 v{dst}, s83, v{dst}")


def emit_touch_fine(a, VTX, VTW, t, t0):
    a(f"v_and_b32 v{t}, 7, v0")
    a(f"v_lshrrev_b32 v{t + 1}, 3, v0")
    a(f"s_add_u32 s82, s59, {t0}")
    a(f"v_add_u32 v{t + 1}, s82, v{t + 1}")
    a(f"v_and_b32 v{t + 1}, 15, v{t + 1}")
    a("s_lshl_b32 s82, s35, 2")
    a("s_add_u32 s82, s82, s44")
    a("s_lshl_b32 s81, s82, 3")
    a("s_and_b32 s83, s3, 1")
    a("s_lshl_b32 s83, s83, 10")
    a("s_add_u32 s81, s81, s83")
    a(f"v_add_u32 v{t + 2}, s81, v{t}")
    a(f"v_lshlrev_b32 v{t + 2}, 11, v{t + 2}")
    a(f"v_lshl_add_u32 v{VTX}, v{t + 1}, 7, v{t + 2}")
    a("s_mul_i32 s82, s82, 6")
    a(f"v_add_u32 v{t + 2}, s82, v{t}")
    emit_wline(a, VTW, t + 2, t + 1, t + 3)
    a(f"v_mov_b32 v{t + 4}, 0x80000000")
    a(f"v_cmp_gt_u32 vcc, 6, v{t}")
    a("s_nop 1")
    a(f"v_cndmask_b32 v{VTW}, v{t + 4}, v{VTW}, vcc")


def emit_touch_coarse(a, VTX, VTW, t):
    a("s_lshr_b32 s82, s35, 2")
    a("s_lshl_b32 s82, s82, 2")
    a("s_add_u32 s82, s82, s44")
    a("s_lshl_b32 s81, s82, 5")
    a("s_and_b32 s83, s3, 1")
    a("s_lshl_b32 s83, s83, 10")
    a("s_add_u32 s81, s81, s83")
    a(f"v_add_u32 v{t + 2}, s81, v0")
    a(f"v_lshlrev_b32 v{VTX}, 11, v{t + 2}")
    a("s_mul_i32 s82, s82, 24")
    a(f"v_add_u32 v{t + 2}, s82, v0")
    emit_wline(a, VTW, t + 2, None, t + 3)
    a(f"v_mov_b32 v{t + 4}, 0x80000000")
    a("v_cmp_gt_u32 vcc, 32, v0")
    a("s_nop 1")
    a(f"v_cndmask_b32 v{VTX}, v{t + 4}, v{VTX}, vcc")
    a("v_cmp_gt_u32 vcc, 24, v0")
    a("s_nop 1")
    a(f"v_cndmask_b32 v{VTW}, v{t + 4}, v{VTW}, vcc")


def touch(t0, nt, VTX, VTW, dst):
    m = (1 << (8 * nt)) - 1
    out = []
    if nt < 8:
        out += [f"s_mov_b32 exec_lo, 0x{m & 0xffffffff:x}", f"s_mov_b32 exec_hi, 0x{m >> 32:x}"]
    out += [f"buffer_load_dword v{dst}, v{VTW}, {S(SW)}, 0 offen",
            f"buffer_load_dword v{dst + 1}, v{VTX}, {S(SX)}, 0 offen"]
    if nt < 8:
        out.append("s_mov_b64 exec, -1")
    return out


QC = 224
SBUF = [8, 24, 40]
KB = [56, 64, 72]
VB = [80, 88, 160]
OA = 96
CM = 200
LS = 128
ONE = 240
PM = 232
P0 = 144
VM, VM2, VT, VNEG, VK, VK0 = 152, 153, 154, 244, 245, 246
YP = 176
QQ, PA = 112, 216


def emit_attn_setup(a0, MASKS, t=4):
    a = lambda x: a0(re.sub(r"\bv([456])\b", lambda m: f"v{int(m.group(1)) - 4 + t}", x))
    a("v_and_b32 v4, 31, v0")
    a("v_lshrrev_b32 v5, 5, v0")
    a("v_lshlrev_b32 v5, 2, v5")
    a("v_sub_u32 v4, v4, v5")
    for r in range(16):
        a(f"v_cmp_le_i32 s[{MASKS[r]}:{MASKS[r] + 1}], {8 * (r >> 2) + (r & 3)}, v4")
    a(f"v_mov_b32 v{VNEG}, 0xf149f2ca")
    a("v_mov_b32 v4, 0xffff")
    a("v_mov_b32 v5, 0xffff0000")
    for j in range(8):
        a(f"v_cndmask_b32 v{PM + j}, 0, v4, s[{MASKS[2 * j]}:{MASKS[2 * j] + 1}]")
        a(f"v_cndmask_b32 v6, 0, v5, s[{MASKS[2 * j + 1]}:{MASKS[2 * j + 1] + 1}]")
        a(f"v_or_b32 v{PM + j}, v{PM + j}, v6")
    a("v_lshrrev_b32 v4, 4, v0")
    a("v_lshrrev_b32 v5, 2, v0")
    a("v_xor_b32 v4, v4, v5")
    a("v_and_b32 v4, 1, v4")
    a("v_cmp_eq_u32 vcc, 0, v4")
    a("v_mov_b32 v5, 0x3f803f80")
    for i in range(4):
        a(f"v_cndmask_b32 v{ONE + i}, 0, v5, vcc")
    a(f"s_mul_i32 s42, s41, {L_HD}")
    a("s_lshl_b32 s43, s40, 11")
    a("s_add_u32 s42, s42, s43")
    a(f"v_add_u32 v{VK}, s42, v1")
    a("s_lshl_b32 s45, s33, 2")
    a("s_add_u32 s45, s45, s40")
    a("s_sub_u32 s46, 8, s45")
    a("s_cmp_lt_u32 s45, 8")
    a("s_cselect_b32 s46, s46, 0")
    a("s_cselect_b32 s43, 0x4000, 0")
    a(f"v_add_u32 v{VK0}, s43, v{VK}")
    a("s_lshl_b32 s47, s45, 5")
    a("s_lshl_b32 s42, s34, 1")
    a("s_add_u32 s47, s47, s42")
    a("s_add_u32 s47, s47, s41")
    a("s_lshl_b32 s47, s47, 11")
    a(f"s_add_u32 s47, s47, 0x{WS_OF:x}")


def prio_plan(role):
    for o in OPT:
        if o.startswith("pr" + role):
            d = o[3:]
            out, last = {}, None
            for k, c in zip([0, 2, 3, 4, 5, 6, 7, 8, 9], d):
                if c != last or k == 9:
                    out[k] = int(c)
                last = c
            return out
    return {}


def emit_attention(a, ool, hooks, MASKS, role):
    order = [8, 0, 7, 6, 5, 4, 3, 2, 1]

    def hook(k):
        if k in hooks:
            hooks[k]()

    def kread(i):
        rel, b = order[i % 9], KB[i % 3]
        return [f"ds_read_b128 {vr(b, 4)}, v{VK} offset:{rel * 2048}",
                f"ds_read_b128 {vr(b + 4, 4)}, v{VK} offset:{rel * 2048 + 1024}"]

    def vread(i):
        rel, b = order[i], VB[i % 3]
        ad = VK0 if rel == 0 else VK
        return [f"ds_read_b128 {vr(b, 4)}, v{ad} offset:{L_V + rel * 2048}",
                f"ds_read_b128 {vr(b + 4, 4)}, v{ad} offset:{L_V + rel * 2048 + 1024}"]

    def smf(i, c):
        s, k = vr(SBUF[i % 3], 16), KB[i % 3]
        return [f"v_mfma_f32_32x32x16_bf16 {s}, {vr(k, 4)}, {vr(QC, 4)}, {c}",
                f"v_mfma_f32_32x32x16_bf16 {s}, {vr(k + 4, 4)}, {vr(QC + 4, 4)}, {s}"]

    def merge():
        lf, lb = a.newlabel("mneg"), a.newlabel("mback")
        a("s_cmp_gt_u32 s46, 0")
        a(f"s_cbranch_scc1 {lf}")
        for r in range(16):
            a(f"v_cndmask_b32 v{SBUF[1] + r}, v{SBUF[1] + r}, v{SBUF[0] + r}, s[{MASKS[r]}:{MASKS[r] + 1}]")
        a.label(lb)
        ool.append((lf, [f"v_cndmask_b32 v{SBUF[1] + r}, v{VNEG}, v{SBUF[0] + r}, s[{MASKS[r]}:{MASKS[r] + 1}]"
                         for r in range(16)], lb))

    def maxblk(i):
        s = SBUF[i % 3]
        ta, tb = (VM, VM2) if i == 1 else (VT, VM2)
        if i >= 2:
            a(f"s_cmp_le_u32 s46, {order[i]}")
            a("s_cselect_b64 vcc, -1, 0")
        a(f"v_max3_f32 v{ta}, v{s}, v{s + 1}, v{s + 2}")
        a(f"v_max3_f32 v{tb}, v{s + 3}, v{s + 4}, v{s + 5}")
        for x in range(5):
            t = (ta, tb)[x & 1]
            a(f"v_max3_f32 v{t}, v{s + 6 + 2 * x}, v{s + 7 + 2 * x}, v{t}")
        a(f"v_max_f32 v{ta}, v{ta}, v{tb}")
        if i >= 2:
            a(f"v_cndmask_b32 v{ta}, v{VNEG}, v{ta}, vcc")
            a(f"v_max_f32 v{VM}, v{VM}, v{ta}")

    if 0 in hooks.get("prio", {}):
        a(f"s_setprio {hooks['prio'][0]}")
    SZ = "sz" in OPT
    for x in kread(0) + kread(1) + kread(2) + vread(0) + vread(1):
        a(x)
    if not SZ:
        a("s_waitcnt lgkmcnt(8)")
        for x in smf(0, "0"):
            a(x)
        a("s_waitcnt lgkmcnt(6)")
        for x in smf(1, "0") + kread(3):
            a(x)
        a("s_nop 7")
        a("s_nop 7")
        merge()
        maxblk(1)
        a(f"v_mov_b32 v{VT}, v{VM}")
        a("s_nop 1")
        a(f"v_permlane32_swap_b32 v{VM}, v{VT}")
        a("s_nop 1")
        a(f"v_max_f32 v{VM}, v{VM}, v{VT}")
        for r in range(16):
            a(f"v_sub_f32 v{CM + r}, 0, v{VM}")
    hook("mid")
    cm, o, ls = ("0" if SZ else vr(CM, 16)), vr(OA, 16), vr(LS, 4)

    def pv(i):
        s = SBUF[i % 3]
        if i == 1:
            return [f"v_mfma_f32_32x32x16_bf16 {o}, {vr(VB[0], 4)}, {vr(s + 8, 4)}, 0",
                    f"v_mfma_f32_16x16x32_bf16 {ls}, {vr(ONE, 4)}, {vr(s, 4)}, 0",
                    f"v_mfma_f32_32x32x16_bf16 {o}, {vr(VB[0] + 4, 4)}, {vr(s + 12, 4)}, {o}",
                    f"v_mfma_f32_16x16x32_bf16 {ls}, {vr(ONE, 4)}, {vr(s + 4, 4)}, {ls}",
                    f"v_mfma_f32_32x32x16_bf16 {o}, {vr(VB[1], 4)}, {vr(P0, 4)}, {o}",
                    f"v_mfma_f32_32x32x16_bf16 {o}, {vr(VB[1] + 4, 4)}, {vr(P0 + 4, 4)}, {o}"]
        v = VB[i % 3]
        return [f"v_mfma_f32_32x32x16_bf16 {o}, {vr(v, 4)}, {vr(s, 4)}, {o}",
                f"v_mfma_f32_16x16x32_bf16 {ls}, {vr(ONE, 4)}, {vr(s, 4)}, {ls}",
                f"v_mfma_f32_32x32x16_bf16 {o}, {vr(v + 4, 4)}, {vr(s + 4, 4)}, {o}",
                f"v_mfma_f32_16x16x32_bf16 {ls}, {vr(ONE, 4)}, {vr(s + 4, 4)}, {ls}"]

    def valu(i):
        s = SBUF[i % 3]
        return [(f"v_exp_f32 v{s + r}, v{s + r}", 8) for r in range(16)] + \
               [(f"v_cvt_pk_bf16_f32 v{s + j}, v{s + 2 * j}, v{s + 2 * j + 1}", 4) for j in range(8)]

    def weave(ms, vs):
        vs = list(vs)
        for m in ms:
            a(m)
            need = (32 if "32x32" in m else 16) - 8
            while vs and need > 0:
                x, c = vs.pop(0)
                a(x)
                need -= c
        for x, c in vs:
            a(x)

    fin = a.newlabel("afin")
    if SZ:
        for i in range(3):
            a(f"s_waitcnt lgkmcnt({8 - 2 * i})")
            for x in smf(i, cm):
                a(x)
        for x in kread(3):
            a(x)
        merge()
    else:
        a("s_waitcnt lgkmcnt(6)")
        for x in smf(2, cm):
            a(x)
        for r in range(16):
            a(f"v_sub_f32 v{SBUF[1] + r}, v{SBUF[1] + r}, v{VM}")
    s = SBUF[1]
    for x, c in valu(1):
        a(x)
    for j in range(8):
        a(f"v_and_b32 v{s + 8 + j}, v{s + j}, v{PM + j}")
    for j in range(8):
        a(f"v_xor_b32 v{P0 + j}, v{s + j}, v{s + 8 + j}")
    blk = hooks.get("blk", {})
    for i in range(2, 9):
        ex = a.newlabel("aexit")
        a("s_waitcnt lgkmcnt(0)")
        a(f"s_cmp_gt_u32 s46, {order[i]}")
        a(f"s_cbranch_scc1 {ex}")
        ool.append((ex, pv(i - 1) + [x for k in range(i, 9) for x in blk.get(k, [])], fin))
        if i in hooks.get("prio", {}):
            a(f"s_setprio {hooks['prio'][i]}")
        for x in blk.get(i, []):
            a(x)
        for x in vread(i) + (kread(i + 2) if i + 2 < 9 else []):
            a(x)
        weave((smf(i + 1, cm) if i + 1 < 9 else []) + pv(i - 1), valu(i))
    a("s_waitcnt lgkmcnt(0)")
    for x in pv(8):
        a(x)
    a.label(fin)
    if 9 in hooks.get("prio", {}):
        a(f"s_setprio {hooks['prio'][9]}")
    hook("end")
    a("s_nop 7")
    a("s_nop 3")
    a(f"v_rcp_f32 v{VT}, v{LS}")
    a(f"v_mul_f32 v{VM2}, 0, v{OA}")
    for r in range(1, 16):
        a(f"v_fmac_f32 v{LS if r & 1 else VM2}, 0, v{OA + r}")
    a(f"v_add_f32 v{VM2}, v{VM2}, v{LS}")
    a(f"v_add_f32 v{VM2}, v{VM2}, v{VT}")
    a(f"v_cmp_gt_f32 vcc, 0x{0x3f800000 + (optval('thr', 30) << 23):x}, v{VM2}")
    a(f"s_mov_b32 s101, {int(role == 'M')}")
    a("s_nop 0")
    a("s_cmp_eq_u64 vcc, -1")
    a("s_cbranch_scc0 L_exact")
    a.label(f"L_norm{role}")
    for r in range(16):
        a(f"v_mul_f32 v{OA + r}, v{OA + r}, v{VT}")
    for j in range(8):
        a(f"v_cvt_pk_bf16_f32 v{OA + j}, v{OA + 2 * j}, v{OA + 2 * j + 1}")
    a(f"buffer_store_dwordx4 {vr(OA, 4)}, v1, {S(SWS)}, s47 offen{SC}")
    a(f"buffer_store_dwordx4 {vr(OA + 4, 4)}, v1, {S(SWS)}, s47 offen offset:1024{SC}")


def emit_exact(a):
    s, k, v, cm = SBUF[0], KB[0], VB[0], CM
    VD, VN = SBUF[1], SBUF[1] + 1
    a.label("L_exact")
    a("s_waitcnt vmcnt(0) lgkmcnt(0)")
    a(f"v_and_b32 v{VD}, 31, v0")
    a(f"v_lshrrev_b32 v{VN}, 5, v0")
    a(f"v_lshlrev_b32 v{VN}, 2, v{VN}")
    a(f"v_sub_u32 v{VD}, v{VD}, v{VN}")
    a(f"v_mov_b32 v{VN}, 0xf149f2ca")
    a(f"v_mov_b32 v{VM}, v{VN}")
    a("s_lshl_b32 s4, s34, 1")
    a("s_add_u32 s4, s4, s41")
    a("s_lshl_b32 s4, s4, 6")
    a("s_add_u32 s4, s4, s45")
    a("s_lshl_b32 s4, s4, 11")
    a(f"s_add_u32 s4, s4, 0x{WS_KF - 8 * 2048:x}")
    a("s_sub_u32 s5, 8, s45")
    a("s_cmp_lt_u32 s45, 8")
    a("s_cselect_b32 s5, s5, 0")
    for r in range(16):
        a(f"v_mov_b32 v{cm + r}, 0")
        a(f"v_mov_b32 v{OA + r}, 0")
    for r in range(4):
        a(f"v_mov_b32 v{LS + r}, 0")
    a("s_mov_b32 s9, 0")
    a.label("L_expass")
    a("s_mov_b32 s6, s5")
    a.label("L_extile")
    a("s_lshl_b32 s7, s6, 11")
    a("s_add_u32 s7, s7, s4")
    a(f"s_add_u32 s8, s7, 0x{WS_VF - WS_KF:x}")
    for st in range(2):
        a(f"buffer_load_dwordx4 {vr(k + 4 * st, 4)}, v1, {S(SWS)}, s7 offen offset:{1024 * st}")
        a(f"buffer_load_dwordx4 {vr(v + 4 * st, 4)}, v1, {S(SWS)}, s8 offen offset:{1024 * st}")
    a("s_waitcnt vmcnt(0)")
    a(f"v_mfma_f32_32x32x16_bf16 {vr(s, 16)}, {vr(k, 4)}, {vr(QC, 4)}, {vr(cm, 16)}")
    a(f"v_mfma_f32_32x32x16_bf16 {vr(s, 16)}, {vr(k + 4, 4)}, {vr(QC + 4, 4)}, {vr(s, 16)}")
    a("s_nop 7")
    a("s_nop 7")
    for rel, op in ((8, "le"), (0, "gt")):
        a(f"s_cmp_lg_u32 s6, {rel}")
        a(f"s_cbranch_scc1 L_exm{rel}")
        for r in range(16):
            a(f"v_cmp_{op}_i32 vcc, {8 * (r >> 2) + (r & 3)}, v{VD}")
            a(f"v_cndmask_b32 v{s + r}, v{VN}, v{s + r}, vcc")
        a.label(f"L_exm{rel}")
    a("s_cmp_lg_u32 s9, 0")
    a("s_cbranch_scc1 L_exp2")
    for r in range(16):
        a(f"v_max_f32 v{VM}, v{VM}, v{s + r}")
    a("s_branch L_exnext")
    a.label("L_exp2")
    for r in range(16):
        a(f"v_exp_f32 v{s + r}, v{s + r}")
    a("s_nop 0")
    for j in range(8):
        a(f"v_cvt_pk_bf16_f32 v{s + j}, v{s + 2 * j}, v{s + 2 * j + 1}")
    a("s_nop 1")
    for st in range(2):
        a(f"v_mfma_f32_32x32x16_bf16 {vr(OA, 16)}, {vr(v + 4 * st, 4)}, {vr(s + 4 * st, 4)}, {vr(OA, 16)}")
        a(f"v_mfma_f32_16x16x32_bf16 {vr(LS, 4)}, {vr(ONE, 4)}, {vr(s + 4 * st, 4)}, {vr(LS, 4)}")
    a("s_nop 7")
    a("s_nop 7")
    a.label("L_exnext")
    a("s_add_u32 s6, s6, 1")
    a("s_cmp_le_u32 s6, 8")
    a("s_cbranch_scc1 L_extile")
    a("s_cmp_lg_u32 s9, 0")
    a("s_cbranch_scc1 L_exdone")
    a(f"v_mov_b32 v{VT}, v{VM}")
    a("s_nop 1")
    a(f"v_permlane32_swap_b32 v{VM}, v{VT}")
    a("s_nop 1")
    a(f"v_max_f32 v{VM}, v{VM}, v{VT}")
    for r in range(16):
        a(f"v_sub_f32 v{cm + r}, 0, v{VM}")
    a("s_mov_b32 s9, 1")
    a("s_branch L_expass")
    a.label("L_exdone")
    a(f"v_rcp_f32 v{VT}, v{LS}")
    a("s_cmp_eq_u32 s101, 1")
    a("s_cbranch_scc1 L_normM")
    a("s_branch L_normH")


def emit_conv(a, hooks):
    ACC, FB = 8, [40, 104]
    VA, VBB, VEB, VSO = 168, 172, 173, 174
    a("v_and_b32 v2, 15, v0")
    a("v_lshrrev_b32 v3, 4, v0")
    a("v_add_u32 v4, 1, v2")
    a("v_and_b32 v5, 1, v4")
    a("v_sub_u32 v4, v4, v5")
    a("v_lshl_add_u32 v4, v3, 3, v4")
    a("v_lshlrev_b32 v4, 1, v4")
    a(f"v_mul_u32_u24 v5, {CPY}, v5")
    a(f"v_add3_u32 v{VA}, v4, v5, s46")
    for i in range(1, 4):
        a(f"v_add_u32 v{VA + i}, {1024 * i}, v{VA}")
    a("v_lshlrev_b32 v4, 5, v2")
    a("v_lshlrev_b32 v5, 4, v3")
    a(f"v_sub_u32 v{VBB}, v5, v4")
    a(f"v_add_u32 v{VBB}, {URO + 480}, v{VBB}")
    a(f"v_add_u32 v{VBB}, s86, v{VBB}")
    a("v_lshlrev_b32 v5, 3, v3")
    a(f"v_add_u32 v{VSO}, v4, v5")
    a(f"v_sub_u32 v{VEB}, {URO + 504}, v{VSO}")
    a(f"v_add_u32 v{VEB}, s86, v{VEB}")

    def creads(j, buf):
        f = FB[buf]
        out = []
        for q in range(8):
            o = (q & 1) * 128 + 16 * j
            va = VA + (q >> 1)
            out.append(f"ds_read2_b32 {vr(f + 4 * q, 2)}, v{va} offset0:{o} offset1:{o + 1}")
            out.append(f"ds_read2_b32 {vr(f + 4 * q + 2, 2)}, v{va} offset0:{o + 2} offset1:{o + 3}")
            out.append(f"ds_read_b128 {vr(f + 32 + 4 * q, 4)}, v{VBB} offset:{512 * (7 - q) + 64 * j}")
        return out

    pairs = [(q, dl) for q in range(8) for dl in range(8 - q)]
    pairs.sort(key=lambda x: (max(x[0], x[1]), x[0] + x[1], x[0]))
    seq, rest = [], list(pairs)
    while rest:
        pick = next((p for p in rest if all(p[0] + p[1] != s[0] + s[1] for s in seq[-2:])), rest[0])
        rest.remove(pick)
        seq.append(pick)

    def cmfmas(j, buf):
        f = FB[buf]
        seen, out = set(), []
        for (q, dl) in seq:
            nt = q + dl
            d = vr(ACC + 4 * nt, 4)
            c = "0" if (j == 0 and nt not in seen) else d
            seen.add(nt)
            out.append(f"v_mfma_f32_16x16x32_bf16 {d}, {vr(f + 4 * q, 4)}, {vr(f + 32 + 4 * dl, 4)}, {c}")
        return out

    extra = list(hooks.get("extra", []))
    if "start" in hooks:
        hooks["start"]()
    for i, r in enumerate(creads(0, 0)):
        a(r)
        if i % 12 == 11:
            a("s_waitcnt lgkmcnt(4)")
    def epi(nt):
        k0, k1 = FB[0] + 2 * nt, FB[0] + 2 * nt + 1
        t = FB[0] + 16 + 4 * nt
        ac = ACC + 4 * nt
        pre = [f"v_and_b32 v{t}, 0xffff0000, v{k1}", f"v_lshlrev_b32 v{t + 1}, 16, v{k1}",
               f"v_and_b32 v{t + 2}, 0xffff0000, v{k0}", f"v_lshlrev_b32 v{t + 3}, 16, v{k0}"]
        post = [f"v_fmac_f32 v{ac + e}, s39, v{t + e}" for e in range(4)] + \
               [f"v_cvt_pk_bf16_f32 v{YP + 2 * nt}, v{ac}, v{ac + 1}",
                f"v_cvt_pk_bf16_f32 v{YP + 2 * nt + 1}, v{ac + 2}, v{ac + 3}"]
        return pre, post

    def last_step():
        f = FB[1]
        left = {nt: [(q, nt - q) for q in range(nt + 1)] for nt in range(8)}
        a("s_waitcnt lgkmcnt(0)")
        for nt in range(8):
            a(f"ds_read_b64 {vr(FB[0] + 2 * nt, 2)}, v{VEB} offset:{512 * (7 - nt)}")
        hist, n, ready, pre = [], 0, [], [x for nt in range(8) for x in epi(nt)[0]]
        done = {}
        for i in range(36):
            rem = 36 - i
            cand = [nt for nt in range(8) if left[nt] and nt not in hist[-2:]]
            urgent = [nt for nt in cand if 3 * len(left[nt]) - 2 >= rem - 2]
            nt = max(urgent, key=lambda x: len(left[x])) if urgent else cand[0] if cand else \
                max((x for x in range(8) if left[x] and x != hist[-1]), key=lambda x: len(left[x]))
            q, dl = left[nt].pop()
            d = vr(ACC + 4 * nt, 4)
            a(f"v_mfma_f32_16x16x32_bf16 {d}, {vr(f + 4 * q, 4)}, {vr(f + 32 + 4 * dl, 4)}, {d}")
            n += 1
            hist.append(nt)
            if not left[nt]:
                done[nt] = n
            if i == 5:
                a("s_waitcnt lgkmcnt(0)")
                if "eb" in OPT:
                    hooks["bar"]()
            if i < 5:
                continue
            for _ in range(2):
                for x in sorted(done):
                    if n - done[x] >= 10 and len(pre) <= 4 * (7 - x):
                        ready += epi(x)[1]
                        del done[x]
                if ready:
                    a(ready.pop(0)); n += 1
                elif pre:
                    a(pre.pop(0)); n += 1
        for x in pre + ready:
            a(x); n += 1
        for x in sorted(done, key=done.get):
            if n - done[x] < 10:
                a(f"s_nop {min(7, 9 - (n - done[x]))}")
                a("s_nop 1")
                n += 10
            for y in epi(x)[1]:
                a(y); n += 1
        return [f"buffer_store_dwordx2 {vr(YP + 2 * nt, 2)}, v{VSO}, {S(SWS)}, s36 offen offset:{512 * nt}{SC}" for nt in range(8)]

    for j in range(8):
        if j == 7 and "ce" in OPT:
            assert not extra
            return last_step()
        m = cmfmas(j, j & 1)
        r = creads(j + 1, (j + 1) & 1) if j < 7 else \
            [f"ds_read_b64 {vr(FB[0] + 2 * nt, 2)}, v{VEB} offset:{512 * (7 - nt)}" for nt in range(8)]
        a("s_waitcnt lgkmcnt(0)")
        ri = 0
        if "cnolds" in OPT and j < 7:
            r = []
        for i, mm in enumerate(m):
            if j < optval("cj", 8) or i < 4:
                a(mm if "cnomfma" not in OPT else "s_nop 3")
            if ri < len(r):
                a(r[ri]); ri += 1
            if j >= 1 and extra:
                a(extra.pop(0))
        assert ri == len(r)
    a("s_nop 7")
    a("s_waitcnt lgkmcnt(0)")
    stores = []
    for nt in range(8):
        k0, k1 = FB[0] + 2 * nt, FB[0] + 2 * nt + 1
        t = FB[0] + 16 + 4 * (nt & 1)
        ac = ACC + 4 * nt
        a(f"v_and_b32 v{t}, 0xffff0000, v{k1}")
        a(f"v_lshlrev_b32 v{t + 1}, 16, v{k1}")
        a(f"v_and_b32 v{t + 2}, 0xffff0000, v{k0}")
        a(f"v_lshlrev_b32 v{t + 3}, 16, v{k0}")
        for e in range(4):
            a(f"v_fmac_f32 v{ac + e}, s39, v{t + e}")
        a(f"v_cvt_pk_bf16_f32 v{YP + 2 * nt}, v{ac}, v{ac + 1}")
        a(f"v_cvt_pk_bf16_f32 v{YP + 2 * nt + 1}, v{ac + 2}, v{ac + 3}")
        st = f"buffer_store_dwordx2 {vr(YP + 2 * nt, 2)}, v{VSO}, {S(SWS)}, s36 offen offset:{512 * nt}{SC}"
        if "yearly" in OPT:
            a(st)
        else:
            stores.append(st)
    return stores


def emit_lds_wait(a, vaddr, off, t):
    lp, dn = a.newlabel("lw"), a.newlabel("lwd")
    a("s_mov_b32 s85, 0")
    a.label(lp)
    a(f"ds_read_b128 {vr(t, 4)}, v{vaddr} offset:{off}")
    a("s_waitcnt lgkmcnt(0)")
    a(f"v_and_b32 v{t}, v{t}, v{t + 1}")
    a(f"v_and_b32 v{t + 2}, v{t + 2}, v{t + 3}")
    a(f"v_and_b32 v{t}, v{t}, v{t + 2}")
    a("s_add_u32 s85, s85, 1")
    a(f"v_readfirstlane_b32 s80, v{t}")
    a("s_nop 1")
    a("s_cmp_lg_u32 s80, 0")
    a(f"s_cbranch_scc1 {dn}")
    a(f"s_cmp_lt_u32 s85, 0x{SPIN_LIMIT:x}")
    a(f"s_cbranch_scc1 {lp}")
    a.label(dn)


def p1_lists():
    KK, VV, WR = 124, 146, 162
    AK, AH, AS, AO = 174, 175, 176, 177
    KF_, WF_, RS_, TT, PO = 12, 56, 72, 104, 108
    soffs = ["0", "s50", "s51", "s52"]
    setup, loads, comp, stores = [], [], [], []
    a = setup.append
    a("v_lshrrev_b32 v24, 3, v0")
    a("v_and_b32 v25, 7, v0")
    a("s_lshl_b32 s80, s35, 6")
    a("s_lshl_b32 s81, s3, 2")
    a("s_add_u32 s81, s81, s44")
    a("s_lshl_b32 s81, s81, 5")
    a("v_lshlrev_b32 v24, 3, v24")
    a("v_add_u32 v24, s80, v24")
    a("v_lshlrev_b32 v25, 2, v25")
    a("v_add_u32 v25, s81, v25")
    a(f"v_lshlrev_b32 v{AK}, 11, v24")
    a(f"v_lshl_add_u32 v{AK}, v25, 1, v{AK}")
    a("s_mov_b32 s50, 4096")
    a("s_mov_b32 s51, 8192")
    a("s_mov_b32 s52, 12288")
    a(f"v_subrev_u32 v{AH}, 6144, v{AK}")
    a("v_mov_b32 v26, 0x80000000")
    a("v_cmp_gt_u32 vcc, 3, v24")
    a(f"v_lshlrev_b32 v{AO}, 12, v25")
    a("v_sub_u32 v24, 2040, v24")
    a(f"v_cndmask_b32 v{AH}, v{AH}, v26, vcc")
    a(f"v_lshlrev_b32 v{AS}, 3, v25")
    a(f"v_lshl_add_u32 v{AO}, v24, 1, v{AO}")
    if "uc" in OPT:
        a("v_and_b32 v24, 7, v0")
        a("v_lshrrev_b32 v25, 3, v0")
        a("v_sub_u32 v24, 7, v24")
        a("v_lshl_add_u32 v24, v24, 3, v25")
        a("v_lshlrev_b32 v170, 2, v24")
        a(f"ds_bpermute_b32 v{AO}, v170, v{AO}")
    loads.append(f"buffer_load_dwordx4 {vr(WR, 4)}, v{AS}, {S(SSH)}, 0 offen")
    loads.append(f"buffer_load_dwordx4 {vr(WR + 4, 4)}, v{AS}, {S(SSH)}, 0 offen offset:16")
    for i in range(3):
        loads.append(f"buffer_load_dwordx2 {vr(KK + 2 * i, 2)}, v{AH}, {S(SK)}, {soffs[i >> 1]} offen offset:{(i & 1) * 2048} {nt('p')}")
    for i in range(8):
        loads.append(f"buffer_load_dwordx2 {vr(KK + 6 + 2 * i, 2)}, v{AK}, {S(SK)}, {soffs[i >> 1]} offen offset:{(i & 1) * 2048} {nt('p')}")
    for i in range(8):
        loads.append(f"buffer_load_dwordx2 {vr(VV + 2 * i, 2)}, v{AK}, {S(SV)}, {soffs[i >> 1]} offen offset:{(i & 1) * 2048} {nt('p')}")
    a = comp.append
    if "pk" in OPT:
        for dd in range(4):
            for h2 in range(2):
                src = WR + 2 * dd + h2
                a(f"v_lshlrev_b32 v{WF_ + 8 * h2 + dd}, 16, v{src}")
                a(f"v_and_b32 v{WF_ + 8 * h2 + 4 + dd}, 0xffff0000, v{src}")

        def kun(i):
            for h2 in range(2):
                src = KK + 2 * i + h2
                a(f"v_lshlrev_b32 v{KF_ + 4 * i + 2 * h2}, 16, v{src}")
                a(f"v_and_b32 v{KF_ + 4 * i + 2 * h2 + 1}, 0xffff0000, v{src}")
        for i in range(3):
            kun(i)
        for s_ in range(8):
            kun(s_ + 3)
            for h2 in range(2):
                src = VV + 2 * s_ + h2
                a(f"v_lshlrev_b32 v{TT + 2 * h2}, 16, v{src}")
                a(f"v_and_b32 v{TT + 2 * h2 + 1}, 0xffff0000, v{src}")
            for j in range(4):
                for dd in (0, 2):
                    r, k_, w_ = vr(RS_ + 4 * s_ + dd, 2), vr(KF_ + 4 * (s_ + 3 - j) + dd, 2), vr(WF_ + 4 * j + dd, 2)
                    a(f"v_pk_fma_f32 {r}, {k_}, {w_}, {r}" if j else f"v_pk_mul_f32 {r}, {k_}, {w_}")
            for dd in (0, 2):
                r = vr(RS_ + 4 * s_ + dd, 2)
                a(f"v_pk_mul_f32 {r}, {r}, {vr(TT + dd, 2)}")
        a = lambda x: None
    for dd in range(4):
        for h2 in range(2):
            src = WR + 2 * dd + h2
            a(f"v_lshlrev_b32 v{WF_ + 4 * dd + 2 * h2}, 16, v{src}")
            a(f"v_and_b32 v{WF_ + 4 * dd + 2 * h2 + 1}, 0xffff0000, v{src}")
    for i in range(11):
        for h2 in range(2):
            src = KK + 2 * i + h2
            a(f"v_lshlrev_b32 v{KF_ + 4 * i + 2 * h2}, 16, v{src}")
            a(f"v_and_b32 v{KF_ + 4 * i + 2 * h2 + 1}, 0xffff0000, v{src}")
    for s_ in range(8):
        for dd in range(4):
            r = RS_ + 4 * s_ + dd
            a(f"v_mul_f32 v{r}, v{KF_ + 4 * (s_ + 3) + dd}, v{WF_ + 4 * dd}")
            for j in range(1, 4):
                a(f"v_fmac_f32 v{r}, v{KF_ + 4 * (s_ + 3 - j) + dd}, v{WF_ + 4 * dd + j}")
    for s_ in range(8):
        for dd in range(4):
            r = RS_ + 4 * s_ + dd
            src = VV + 2 * s_ + (dd >> 1)
            t = TT + (dd & 1)
            a(f"v_and_b32 v{t}, 0xffff0000, v{src}" if dd & 1 else f"v_lshlrev_b32 v{t}, 16, v{src}")
            a(f"v_mul_f32 v{r}, v{r}, v{t}")
    stores.append(f"s_mov_b32 s53, 0x{WS_UR:x}")
    for dd in range(4 * ("uc" in OPT)):
        o = PO + 4 * dd
        for j in range(4):
            comp.append(f"v_cvt_pk_bf16_f32 v{o + j}, v{RS_ + 4 * (7 - 2 * j) + dd}, v{RS_ + 4 * (6 - 2 * j) + dd}")
        for j in range(4):
            comp.append(f"ds_bpermute_b32 v{o + j}, v170, v{o + j}")
    for dd in range(4):
        o = PO + 4 * dd
        if "uc" in OPT:
            stores.append(f"s_waitcnt lgkmcnt({12 - 4 * dd})")
        for j in range(4 * ("uc" not in OPT)):
            stores.append(f"v_cvt_pk_bf16_f32 v{o + j}, v{RS_ + 4 * (7 - 2 * j) + dd}, v{RS_ + 4 * (6 - 2 * j) + dd}")
        stores.append(f"buffer_store_dwordx4 {vr(o, 4)}, v{AO}, {S(SWS)}, s53 offen{SC}")
        if dd < 3:
            stores.append("s_add_u32 s53, s53, 4096")
    return setup, loads, comp, stores


VZ = 252
VLF = 251
SRDS = [(SX, 48, 4 * MB), (SW, 56, 6 * MB), (SWS, 88, WS_SIZE), (SK, 8, 4 * MB), (SV, 16, 4 * MB),
        (SSH, 24, 8192), (SHK, 32, 4 * MB), (SWO, 64, 2 * MB), (SQ, 0, 4 * MB), (SOUT, 72, 8 * MB),
        (SDBG, 80, 256)]


def late_setup(a, ts, helper=True):
    if helper:
        a("s_lshl_b32 s84, s3, 5")
        a("s_add_u32 s84, s84, s35")
        a("s_lshl_b32 s80, s84, 3")
        a("s_load_dwordx2 s[76:77], s[36:37], s80")
    a("s_lshl_b32 s89, s2, 7")
    a("s_lshl_b32 s81, s32, 3")
    a("s_add_u32 s89, s89, s81")
    for (d, off, size) in SRDS[2:]:
        if not helper and d in (SK, SV, SSH, SHK):
            continue
        a(f"s_mov_b32 s{d + 2}, 0x{size:x}")
        a(f"s_mov_b32 s{d + 3}, 0x20000")
    a(f"v_mov_b32 v{VLF}, {L_FL}")
    ts.setup(a, SWS)


def g2_tile(a):
    a("s_and_b32 s86, s3, 1")
    a("s_lshl_b32 s86, s86, 1")
    a("s_bfe_u32 s80, s3, 0x10001")
    a("s_add_u32 s86, s86, s80")
    a("s_lshl_b32 s86, s86, 2")
    a("s_and_b32 s80, s35, 3")
    a("s_add_u32 s86, s86, s80")
    a("s_lshr_b32 s42, s3, 2")
    a("s_lshl_b32 s42, s42, 3")
    a("s_lshr_b32 s43, s35, 2")
    a("s_add_u32 s42, s42, s43")


def wo_addr(a0, t=4):
    a = lambda x: a0(re.sub(r"\bv([456])\b", lambda m: f"v{int(m.group(1)) - 4 + t}", x))
    a("v_lshrrev_b32 v4, 3, v0")
    a("v_and_b32 v5, 7, v0")
    a("v_bfe_u32 v6, v0, 4, 1")
    a("v_lshlrev_b32 v6, 2, v6")
    a("v_xor_b32 v6, v6, v5")
    a("v_lshlrev_b32 v250, 11, v4")
    a("v_lshl_add_u32 v250, v6, 4, v250")
    a("s_lshl_b32 s80, s42, 7")
    a("v_add_u32 v250, s80, v250")
    a("s_lshl_b32 s84, s32, 11")
    a("s_lshl_b32 s88, s32, 15")


NE = 3


def wo_part(p, dst, dw=0):
    return [f"s_add_u32 m0, s84, {dst + dw * 2048}",
            f"s_add_u32 s81, s43, {p}",
            "s_and_b32 s81, s81, 7",
            "s_lshl_b32 s81, s81, 18",
            "s_add_u32 s81, s81, s88"] + ([f"s_add_u32 s81, s81, {dw * 32768}"] if dw else []) + [
            f"buffer_load_dwordx4 v250, {S(SWO)}, s81 offen lds",
            f"s_add_u32 s81, s81, {16384 - 1024}",
            f"buffer_load_dwordx4 v250, {S(SWO)}, s81 offen offset:1024 lds"]


def wo_early():
    b0 = optval("we", 3)
    return {b0 + p: wo_part(p, L_R0 + p * 16384) for p in range(NE)}


P4 = [x * 4096 for x in list(range(0, 6)) + list(range(9, 18)) + list(range(21, 26))]
WLOC = [L_R0 + k * 2048 for k in range(8 * NE)] + [P4[k >> 1] + (k & 1) * 2048 for k in range(40)]
NLATE = 10


def nlate():
    return 2 * NLATE - optval("gm", 0) if "g2e" in OPT else NLATE


def blk7_flag():
    b = Asm()
    if "g2e" in OPT:
        b("s_waitcnt vmcnt(0)")
    lds_flag_set(b, 32, 16, 158)
    return [x.strip() for x in b.L]


def wo_late(a, ts, nyoung, helper, mid=None):
    def stage():
        a("s_and_b32 s83, s32, 3")
        a("s_lshl_b32 s82, s83, 10")
        a("s_lshl_b32 s81, s43, 4")
        a("s_add_u32 s83, s83, s81")
        for i in range(NLATE if "g2e" not in OPT else nlate() if helper else optval("gm", 0)):
            p = 2 * i + int(helper) if "g2e" not in OPT else i if helper else nlate() + i
            a(f"s_add_u32 m0, s82, {P4[p]}")
            a(f"s_add_u32 s81, s83, {16 * NE + 4 * p}")
            a("s_and_b32 s81, s81, 127")
            a("s_lshl_b32 s81, s81, 14")
            if "nolate" not in OPT:
                a(f"buffer_load_dwordx4 v250, {S(SWO)}, s81 offen lds")

    if "g2e" in OPT:
        a(f"s_waitcnt vmcnt({nyoung})")
        emit_publish(a, FL_O, 220, VZ)
        emit_lds_wait(a, VLF, 64, 8)
        emit_lds_wait(a, VLF, 80, 8)
        ts.stamp(a, 7)
        stage()
        return
    ES = optval("es", 0)
    if ES == 1:
        emit_lds_wait(a, VLF, 64, 8)
        emit_lds_wait(a, VLF, 80, 8)
        stage()
        a(f"s_waitcnt vmcnt({nyoung + NLATE})")
    else:
        a(f"s_waitcnt vmcnt({nyoung})")
    emit_publish(a, FL_O, 220, VZ)
    lds_flag_set(a, 32, 8, 222)
    if mid:
        mid()
    if ES == 2:
        emit_lds_wait(a, VLF, 64, 8)
        emit_lds_wait(a, VLF, 80, 8)
        stage()
    if ES == 0 or not helper:
        emit_lds_wait(a, VLF, 32, 8)
        emit_lds_wait(a, VLF, 48, 8)
    ts.stamp(a, 7)
    if ES == 0:
        stage()


def lds_flag_set(a, word_s, word_add, t):
    a(f"s_lshl_b32 s80, s{word_s}, 2")
    a(f"v_add_u32 v{t}, s80, v{VLF}")
    a(f"v_mov_b32 v{t + 1}, 1")
    a(f"ds_write_b32 v{t}, v{t + 1} offset:{4 * word_add}")


def m_path(a, ts, ool):
    ACC = 80
    PD = optval('pd', 2)
    FR = [16, 36, 56, 192, 212][:PD + 1]
    NB = PD + 1
    LZ = 'lz' in OPT
    XA, WB, XA2 = 2, 6, 8
    def code_touch():
        lcp = a.newlabel("nocp")
        a("s_cmp_lg_u32 s32, 1")
        a(f"s_cbranch_scc1 {lcp}")
        a("s_mov_b32 exec_hi, 0")
        a("buffer_load_dword v188, v189, s[52:55], s56 offen")
        a("s_mov_b32 exec_hi, -1")
        a.label(lcp)

    CQ = [int(o[2:]) for o in OPT if o.startswith("cq")]
    if "cp" in OPT or CQ:
        a("s_getpc_b64 s[52:53]")
        a.label("L_pc")
        a(f"s_sub_u32 s52, s52, L_pc-{NAME}_kernel")
        a("s_subb_u32 s53, s53, 0")
        a(f"s_mov_b32 s54, L_end-{NAME}_kernel")
        a("s_mov_b32 s55, 0x20000")
        a("s_lshl_b32 s56, s35, 11")
        a("v_lshlrev_b32 v189, 6, v0")
    if "cp" in OPT:
        code_touch()
    SW_ = {}
    for o in OPT:
        if o.startswith("sw"):
            m, n = o[2:].split("_")
            SW_[int(n)] = int(m)
    if SW_:
        a("s_lshl_b32 s80, s35, 2")
        a("s_add_u32 s80, s80, s32")
        a("s_mul_i32 s81, s80, 6")
        a("v_and_b32 v3, 7, v0")
        a("v_lshrrev_b32 v184, 3, v0")
        a("v_mul_u32_u24 v184, 768, v184")
        a("v_add3_u32 v184, v184, v3, s81")
        a("v_lshlrev_b32 v184, 11, v184")
        a("s_lshr_b32 s81, s3, 2")
        a("s_lshl_b32 s81, s81, 10")
        a("s_add_u32 s81, s81, 0x180")
        a("v_add_u32 v184, s81, v184")
        a("s_bitcmp1_b32 s3, 1")
        a("s_cselect_b32 s81, 0, 6")
        a("v_mov_b32 v2, 0x80000000")
        a("v_cmp_gt_u32 vcc, s81, v3")
        a("s_nop 1")
        a("v_cndmask_b32 v184, v2, v184, vcc")

    def slow_touch(n):
        if n in SW_:
            a(f"s_mov_b64 exec, 0x{sum(0xff << (8 * q) for q in range(4) if SW_[n] >> q & 1):x}")
            a(f"buffer_load_dword v177, v184, {S(SW)}, 0 offen")
            a("s_mov_b64 exec, -1")

    MS = [o[2:] for o in OPT if o.startswith("ms")]
    ltk = a.newlabel("notok")
    if MS:
        a("s_or_b32 s80, s2, s32")
        a(f"s_cbranch_scc1 {ltk}")
        a(f"s_mov_b32 s{SDBG + 2}, 256")
        a(f"s_mov_b32 s{SDBG + 3}, 0x20000")
    else:
        a("s_waitcnt lgkmcnt(0)")
        slow_touch(99)
        late_setup(a, ts, False)
        a("s_cmp_lg_u32 s89, 0")
        a(f"s_cbranch_scc1 {ltk}")
    a("s_memrealtime s[78:79]")
    a("s_waitcnt lgkmcnt(0)")
    a("s_or_b32 s78, s78, 1")
    a("v_mov_b32 v180, s78")
    a("v_mov_b32 v181, s79")
    a("s_mov_b64 exec, 1")
    a(f"buffer_store_dwordx2 v[180:181], v{VZ}, {S(SDBG)}, 0 offen{SC}")
    a("s_mov_b64 exec, -1")
    a.label(ltk)
    a("s_and_b32 s44, s32, 1")
    a("s_lshr_b32 s41, s32, 1")
    a("s_lshl_b32 s40, s44, 1")
    a("v_and_b32 v8, 31, v0")
    a("v_lshrrev_b32 v9, 5, v0")
    a("v_lshrrev_b32 v10, 1, v8")
    a("v_and_b32 v10, 7, v10")
    a("v_lshlrev_b32 v11, 7, v8")
    a("s_lshl_b32 s46, s44, 13")
    a("v_add_u32 v11, s46, v11")
    for ks in range(4):
        a(f"v_add_u32 v12, {2 * ks}, v9")
        a("v_xor_b32 v12, v12, v10")
        a(f"v_lshl_add_u32 v{XA + ks}, v12, 4, v11")
    a("v_and_b32 v10, 15, v0")
    a("v_lshrrev_b32 v11, 4, v0")
    a("v_lshrrev_b32 v12, 2, v10")
    a("v_lshl_add_u32 v12, v9, 3, v12")
    a(f"v_mul_u32_u24 v12, {128 if 'wl' in OPT else 384}, v12")
    a("v_lshrrev_b32 v13, 3, v10")
    a("v_xor_b32 v13, s41, v13")
    a("v_lshl_add_u32 v12, v13, 6, v12")
    a("v_and_b32 v13, 1, v11")
    a("v_lshl_add_u32 v12, v13, 5, v12")
    a("v_and_b32 v13, 3, v10")
    a("v_lshl_add_u32 v12, v13, 3, v12")
    a(f"v_add_u32 v{WB}, 16384, v12")
    a(f"v_add_u32 v{WB + 1}, {16384 + 81920}, v12")
    for ks in range(4):
        a(f"v_add_u32 v{XA2 + ks}, 81920, v{XA + ks}")

    def reads(t, ks, buf):
        st = slot(t)
        f = FR[buf]
        xa = (XA2 if st >= 2 else XA) + ks
        xo = (st & 1) * 40960
        wb = WB + (st >> 1)
        wo = (st & 1) * 40960 + 16 * ks * 384
        if "wl" in OPT:
            tr = lambda i: f"ds_read_b64_tr_b16 {vr(f + 8 + 2 * i, 2)}, v{wb} offset:{wo + (i >> 1) * 2048 + (i & 1) * 512}"
            return [f"ds_read_b128 {vr(f, 4)}, v{xa} offset:{xo}", tr(0), tr(1),
                    f"ds_read_b128 {vr(f + 4, 4)}, v{xa} offset:{xo + 4096}", tr(2), tr(3), tr(4), tr(5)]
        return [f"ds_read_b128 {vr(f, 4)}, v{xa} offset:{xo}",
                f"ds_read_b64_tr_b16 {vr(f + 8, 2)}, v{wb} offset:{wo}",
                f"ds_read_b64_tr_b16 {vr(f + 10, 2)}, v{wb} offset:{wo + 4 * 384}",
                f"ds_read_b128 {vr(f + 4, 4)}, v{xa} offset:{xo + 4096}",
                f"ds_read_b64_tr_b16 {vr(f + 12, 2)}, v{wb} offset:{wo + 128}",
                f"ds_read_b64_tr_b16 {vr(f + 14, 2)}, v{wb} offset:{wo + 128 + 4 * 384}",
                f"ds_read_b64_tr_b16 {vr(f + 16, 2)}, v{wb} offset:{wo + 256}",
                f"ds_read_b64_tr_b16 {vr(f + 18, 2)}, v{wb} offset:{wo + 256 + 4 * 384}"]

    def mfmas(buf, first, last):
        f = FR[buf]
        X = [vr(f, 4), vr(f + 4, 4)]
        W = [vr(f + 8, 4), vr(f + 12, 4), vr(f + 16, 4)]
        out = []
        for part in ((1, 2, 0) if last else (0, 1, 2)):
            for rt in range(2):
                d = vr(ACC + 16 * (2 * part + rt), 16)
                c = "0" if first else d
                if part < 2:
                    out.append(f"v_mfma_f32_32x32x16_bf16 {d}, {W[part]}, {X[rt]}, {c}")
                else:
                    out.append(f"v_mfma_f32_32x32x16_bf16 {d}, {X[rt]}, {W[part]}, {c}")
        return out

    main_a = a
    if MS:
        a = Asm()
        late_setup(a, ts, False)
    a("s_lshl_b32 s46, s34, 1")
    a("s_add_u32 s46, s46, s41")
    a("s_lshl_b32 s46, s46, 6")
    a("s_lshl_b32 s47, s33, 2")
    a("s_add_u32 s46, s46, s47")
    a("s_add_u32 s48, s46, s40")
    a("s_lshl_b32 s48, s48, 11")
    a(f"s_add_u32 s49, s48, 0x{WS_VF:x}")
    a(f"s_add_u32 s48, s48, 0x{WS_KF:x}")
    a(f"s_mul_i32 s80, s41, {L_HD}")
    a("s_lshl_b32 s81, s44, 12")
    a("s_add_u32 s80, s80, s81")
    a("v_add_u32 v182, s80, v1")
    a("s_lshl_b32 s80, s32, 11")
    a(f"s_add_u32 s80, s80, {L_QH}")
    a("v_add_u32 v183, s80, v1")

    def setup2():
        a("s_add_u32 s38, s33, s44")
        a("s_sub_u32 s80, s38, 2")
        a("s_max_i32 s80, s80, 0")
        a("v_mov_b32 v20, s80")
        a("v_mov_b32 v21, s34")
        emit_wg_of(a, 190, 20, 21, 22)
        a("v_and_b32 v20, 1, v0")
        a("v_lshl_add_u32 v190, v20, 3, v190")
        a("s_lshl_b32 s80, s41, 4")
        a(f"s_add_u32 s80, s80, 0x{fbase(FL_K):x}")
        a("v_add_u32 v190, s80, v190")
        fshift(a, FL_K, 190)
        a("s_lshl_b32 s80, s44, 2")
        a("s_add_u32 s36, s46, s80")
        a("s_lshl_b32 s36, s36, 11")
        a(f"s_add_u32 s36, s36, 0x{WS_KF - 8 * 2048:x}")
        a(f"s_mul_i32 s37, s41, {L_HD}")
        a("s_lshl_b32 s80, s44, 13")
        a("s_add_u32 s37, s37, s80")
        a("; attention")
        emit_attn_setup(a, MASKS_M, 20)
        a("; projection")
        g2_tile(a)
        wo_addr(a, 20)
        a("s_lshl_b32 s80, s35, 2")
        a("s_add_u32 s80, s80, s32")
        a("s_lshl_b32 s80, s80, 6")
        a("v_add_u32 v20, s80, v0")
        a("v_lshrrev_b32 v198, 3, v20")
        a("v_lshlrev_b32 v198, 11, v198")
        a("v_and_b32 v20, 7, v20")
        a("v_lshl_add_u32 v198, v20, 7, v198")
        a("s_lshr_b32 s80, s3, 2")
        a("s_lshl_b32 s80, s80, 10")
        a("v_add_u32 v198, s80, v198")
        a("s_lshl_b32 s80, s35, 6")
        a("s_lshl_b32 s81, s32, 4")
        a("s_add_u32 s80, s80, s81")
        a("v_bfe_u32 v20, v0, 1, 4")
        a("v_add_u32 v20, s80, v20")
        a("v_lshlrev_b32 v20, 11, v20")
        a("v_and_b32 v21, 1, v0")
        a("v_lshl_add_u32 v20, v21, 7, v20")
        a("s_lshl_b32 s80, s3, 8")
        a("v_add_u32 v199, s80, v20")
        if optval("at", 0):
            a("v_and_b32 v20, 0xfffff800, v199")
            a("v_add_u32 v198, v20, v199")

    if "ls" not in OPT:
        setup2()
    KT, FT = optval("kt", -1), optval("ft", -1)
    if KT >= 0:
        a("v_and_b32 v185, 31, v0")
        a("v_lshlrev_b32 v185, 7, v185")
        a("v_lshrrev_b32 v20, 5, v0")
        a("v_lshl_add_u32 v185, v20, 22, v185")
    if FT >= 0:
        a("v_lshlrev_b32 v194, 15, v0")
        a("s_lshl_b32 s80, s2, 7")
        a(f"s_add_u32 s80, s80, 0x{WS_FL:x}")
        a("v_add_u32 v194, s80, v194")
        if "fl" in OPT and "nft" not in OPT:
            a("s_lshl_b32 s80, s2, 11")
            a(f"s_add_u32 s80, s80, 0x{WS_FL + 0x80000 - 3 * 128:x}")
            a("v_lshlrev_b32 v193, 7, v0")
            a("v_add_u32 v193, s80, v193")
            a("v_cmp_gt_u32 vcc, 3, v0")
            a("s_nop 1")
            a("v_cndmask_b32 v194, v193, v194, vcc")
        a("s_cmp_eq_u32 s32, 2")
        a(f"s_cselect_b32 s80, {5 if 'kv2' in OPT else 4 if 'fl' not in OPT else 3 if 'nft' in OPT else 11}, 0")
        a("v_mov_b32 v193, 0x80000000")
        a("v_cmp_gt_u32 vcc, s80, v0")
        a("s_nop 1")
        a("v_cndmask_b32 v194, v193, v194, vcc")
    late = {}
    if MS:
        blk_ = 0
        for x in a.L:
            if x.strip().startswith(";"):
                blk_ += 1
                continue
            late.setdefault(int(MS[0][blk_]), []).append(re.sub(r"\bv2([012])\b", r"v1\g<1>", x.strip()).replace("v10", "v13").replace("v11", "v14"))
        a = main_a
        for x in late.get(0, []):
            a(x)
    a("s_waitcnt lgkmcnt(0)")
    slow_touch(98)
    if "tse" in OPT:
        ts.stamp(a, 0)
    a("s_barrier")
    ts.stamp(a, 11)
    for k in range(PD):
        for r in reads(0, k, k):
            a(r)
        if k == 1:
            a("s_waitcnt lgkmcnt(8)")
    TKN = optval("tkn", 41)
    BK = (4 - PD) % 4
    for n in range(64):
        t, ks = n >> 2, n & 3
        m = mfmas(n % NB, n == 0, n == 63)
        n2 = n + PD
        r = reads(n2 >> 2, n2 & 3, n2 % NB) if n2 < 64 else []
        tch = []
        if n == TKN:
            tch = [f"buffer_load_dwordx2 v[186:187], v{VZ}, {S(SDBG)}, 0 offen{SC}"]
        ahead = min(15, 8 * (min(63, n + PD - 1) - n))
        if ks == BK and t + 1 not in skipped():
            a(f"s_waitcnt lgkmcnt({ahead if (LZ and t < 15) else 0})")
            a(m[0])
            for x in late.get(t + 1, []):
                a(x)
            a("s_barrier")
        else:
            a(f"s_waitcnt lgkmcnt({ahead})")
            a(m[0])
        ri = 0
        for i, mm in enumerate(m[1:]):
            for _ in range(2):
                if ri < len(r):
                    a(r[ri]); ri += 1
            if i == 4:
                for x in tch:
                    a(x)
                if n in CQ:
                    code_touch()
                slow_touch(n)
                if n == KT:
                    a(f"buffer_load_dword v178, v185, {S(SWS)}, s48 offen")
                if n == FT:
                    if "fst" in OPT:
                        a(f"buffer_store_dword v{VZ}, v194, {S(SWS)}, 0 offen offset:64{SC}")
                    else:
                        a(f"buffer_load_dword v195, v194, {S(SWS)}, 0 offen")
            a(mm)
    ts.stamp(a, 1)
    if optval("pe", 0):
        a(f"s_setprio {optval('pe', 0)}")
    if "fk" in OPT:
        a("s_and_b32 s80, s33, 14")
        a("s_cmp_lg_u32 s80, 6")
        a("s_cselect_b32 s39, 1, 0")
        a("s_cselect_b64 s[50:51], -1, 0")
    for part in (1, 2):
        for rt in range(2):
            b = ACC + 16 * (2 * part + rt)
            for j in range(8):
                a(f"v_cvt_pk_bf16_f32 v{b + j}, v{b + 2 * j}, v{b + 2 * j + 1}")
            if "fk" in OPT:
                a("s_mov_b64 exec, s[50:51]")
                for step in range(2):
                    a(f"buffer_store_dwordx4 {vr(b + 4 * step, 4)}, v1, {S(SWS)}, s{47 + part} offen offset:{rt * 2048 + step * 1024}")
                a("s_not_b64 exec, exec")
            for step in range(2):
                a(f"buffer_store_dwordx4 {vr(b + 4 * step, 4)}, v1, {S(SWS)}, s{47 + part} offen offset:{rt * 2048 + step * 1024}{SC}")
            if "fk" in OPT:
                a("s_mov_b64 exec, -1")
    if "fp" in OPT:
        a("s_waitcnt vmcnt(0)")
        emit_token_take(a, 186, VZ)
        emit_publish(a, FL_K, 220, VZ, 39 if "fk" in OPT else None)
        ts.stamp(a, 2)
    if "pes" in OPT:
        a("s_setprio 0")
    for part in (1, 2):
        for rt in range(2):
            b = ACC + 16 * (2 * part + rt)
            for step in range(2):
                a(f"ds_write_b128 v182, {vr(b + 4 * step, 4)} offset:{8 * 2048 + (part - 1) * L_V + rt * 2048 + step * 1024}")
    for rt in (1, 0):
        b = ACC + 16 * rt
        d = QC if rt == 0 else b
        for r in range(16):
            a(f"v_mul_f32 v{b + r}, {f32hex(SCALE_LOG2E)}, v{b + r}")
        for j in range(8):
            a(f"v_cvt_pk_bf16_f32 v{d + j}, v{b + 2 * j}, v{b + 2 * j + 1}")
        if rt == 1:
            for step in range(2):
                a(f"ds_write_b128 v183, {vr(d + 4 * step, 4)} offset:{step * 1024}")
    lz = a.newlabel("nozero")
    a("s_cmp_lg_u32 s32, 0")
    a(f"s_cbranch_scc1 {lz}")
    a(f"v_lshl_add_u32 v20, v0, 2, v{VLF}")
    a(f"ds_write_b32 v20, v{VZ}")
    a.label(lz)
    if "ls" in OPT:
        setup2()
    tlq = f"buffer_load_dword v157, v199, {S(SQ)}, 0 offen"

    def prev_dma(isv):
        for g in range(2):
            a(f"s_add_u32 m0, s37, {isv * L_V + g * 4096}")
            a(f"s_add_u32 s80, s36, {isv * (WS_VF - WS_KF) + g * 4096}")
            for i in range(4):
                a(f"buffer_load_dwordx4 v1, {S(SWS)}, s80 offen offset:{1024 * i} {nt('k')} lds")

    if "pes" in OPT:
        a(f"s_setprio {optval('pe', 0)}")
    if "kv2" in OPT:
        a("s_waitcnt vmcnt(4)")
        emit_token_take(a, 186, VZ)
        emit_publish(a, FL_K, 220, VZ)
        a(f"v_add_u32 v189, {(FL_V - FL_K) * 32768}, v190")
        a("s_waitcnt vmcnt(1)")
        emit_publish(a, FL_V, 222, VZ)
        ts.stamp(a, 2)
    elif "fp" not in OPT:
        a("s_waitcnt vmcnt(0)")
        emit_token_take(a, 186, VZ)
        emit_publish(a, FL_K, 220, VZ, 39 if "fk" in OPT else None)
        ts.stamp(a, 2)
    lnp = a.newlabel("noprev")
    a(f"s_cmp_lt_u32 s38, {99 if 'nokv' in OPT else 2}")
    a(f"s_cbranch_scc1 {lnp}")
    emit_poll(a, 190, 2, 196, sleep=optval("ks", 1))
    ts.stamp(a, 3)
    if "kv2" in OPT:
        poll_issue(a, 189, 196)
    prev_dma(0)
    if "kv2" in OPT:
        lv = a.newlabel("vok")
        a("s_waitcnt vmcnt(8)")
        a("v_cmp_eq_u64 vcc, s[78:79], v[196:197]")
        a("s_nop 1")
        a("s_and_b32 s80, vcc_lo, 3")
        a("s_cmp_eq_u32 s80, 3")
        a(f"s_cbranch_scc1 {lv}")
        emit_poll(a, 189, 2, 196, sleep=optval("ks", 1))
        a.label(lv)
    prev_dma(1)
    a.label(lnp)
    a("s_setprio 0")
    BF = [16, 24, 32]
    AC2 = 40
    AF, PF = 72, optval('pf', 16)
    VPA, VOA = 191, 192
    a("v_and_b32 v8, 15, v0")
    a("v_lshrrev_b32 v9, 4, v0")
    a("v_lshrrev_b32 v10, 5, v0")
    a("v_lshrrev_b32 v11, 2, v8")
    a("v_lshl_add_u32 v11, v10, 2, v11")
    a("v_lshlrev_b32 v11, 7, v11")
    a("v_and_b32 v12, 1, v9")
    a("v_lshl_add_u32 v11, v12, 5, v11")
    a("v_and_b32 v12, 3, v8")
    a("v_lshl_add_u32 v11, v12, 3, v11")
    a("v_lshrrev_b32 v12, 3, v8")
    a("v_lshl_add_u32 v2, v12, 6, v11")
    a("v_xor_b32 v12, 1, v12")
    a("v_lshl_add_u32 v3, v12, 6, v11")
    a("v_add_u32 v4, 0x10000, v2")
    a("v_add_u32 v5, 0x10000, v3")
    a(f"v_add_u32 v6, {L_R0}, v2")
    a(f"v_add_u32 v7, {L_R0}, v3")
    a("v_mov_b32 v12, s86")
    a("v_bfe_u32 v13, v0, 1, 4")
    emit_wg_of(a, VPA, 12, 13, 15)
    a("v_and_b32 v12, 1, v0")
    a(f"v_lshl_add_u32 v{VPA}, v12, 4, v{VPA}")
    a("s_lshr_b32 s80, s32, 1")
    a("s_and_b32 s81, s32, 1")
    a("s_lshl_b32 s81, s81, 2")
    a("s_add_u32 s80, s80, s81")
    a("s_lshl_b32 s80, s80, 3")
    if "fl" in OPT:
        a(f"s_add_u32 s80, s80, 0x{(WS_FL + 0x80000) >> 4:x}")
        a(f"v_add_lshl_u32 v{VPA}, s80, v{VPA}, 4")
    else:
        a(f"s_add_u32 s80, s80, 0x{fbase(FL_O):x}")
        a(f"v_add_u32 v{VPA}, s80, v{VPA}")
        fshift(a, FL_O, VPA)
    a("s_lshl_b32 s82, s86, 2")
    a("s_add_u32 s82, s82, s32")
    a("v_and_b32 v8, 31, v0")
    a("s_lshl_b32 s80, s82, 5")
    a("v_add_u32 v8, s80, v8")
    a("v_lshlrev_b32 v8, 12, v8")
    a(f"v_lshl_add_u32 v{VOA}, v10, 4, v8")
    if "bf" in OPT:
        a("s_lshl_b32 s81, s32, 12")
        a("s_add_u32 s81, s81, 24576")
        a("s_cmp_eq_u32 s32, 3")
        a("s_cselect_b32 s81, 73728, s81")
        a("v_and_b32 v8, 31, v0")
        a("v_and_b32 v9, 7, v0")
        a("v_xor_b32 v11, v9, v10")
        a("v_lshlrev_b32 v8, 7, v8")
        a("v_lshl_add_u32 v193, v11, 4, v8")
        a("v_add_u32 v193, s81, v193")
        a("v_lshrrev_b32 v8, 3, v0")
        a("v_xor_b32 v11, v9, v8")
        a("v_lshlrev_b32 v11, 4, v11")
        a("v_lshl_add_u32 v194, v8, 7, v11")
        a("v_add_u32 v194, s81, v194")
        a("v_add_u32 v8, s80, v8")
        a("v_lshlrev_b32 v8, 12, v8")
        a(f"v_lshl_add_u32 v{VOA}, v9, 4, v8")
    a("s_lshl_b32 s56, s42, 7")
    a("s_add_u32 s56, s56, 2048")
    a("s_lshl_b32 s82, s82, 16")
    a(f"s_add_u32 s82, s82, 0x{WS_OF:x}")
    for p in range(8):
        a(f"s_add_u32 s81, s43, {p}")
        a("s_and_b32 s81, s81, 7")
        a("s_lshl_b32 s81, s81, 13")
        a(f"s_add_u32 s{48 + p}, s82, s81")
    hk = {"blk": wo_early()}
    if optval("qk", 0):
        hk["blk"][optval("qk", 0)] = hk["blk"].get(optval("qk", 0), []) + [tlq]
    else:
        hk["mid"] = lambda: a(tlq)
    a("s_waitcnt vmcnt(0)")
    ts.stamp(a, 5)
    a("s_waitcnt lgkmcnt(0)")
    a("s_barrier")
    ts.stamp(a, 4)
    hk["blk"][7] = blk7_flag() + hk["blk"].get(7, [])
    if optval("wt", 0):
        hk["blk"][optval("wt", 0)] = hk["blk"].get(optval("wt", 0), []) + [f"buffer_load_dword v156, v198, {S(SWO)}, 0 offen"]
    if optval("at", 0):
        hk["blk"][optval("at", 0)] = hk["blk"].get(optval("at", 0), []) + [f"buffer_load_dword v156, v198, {S(SOUT)}, 0 offen"]
    if optval("bt", 0):
        hk["blk"][optval("bt", 0)] = hk["blk"].get(optval("bt", 0), []) + [f"buffer_load_dword v155, v{VOA}, {S(SOUT)}, s56 offen"]
    hk["prio"] = prio_plan("M")
    emit_attention(a, ool, hk, MASKS_M, "M")
    ts.stamp(a, 6)
    wo_late(a, ts, 0, False)
    if optval('od', 0):
        a(f"s_sleep {optval('od', 0)}")
    poll_issue(a, VPA, 12)
    a("s_waitcnt vmcnt(1)")
    lds_flag_set(a, 32, 0, 16)
    ts.stamp(a, 8)
    if "noo" not in OPT:
        emit_poll(a, VPA, 32, 12, pre=True, sleep=optval("os", 0))
    ts.stamp(a, 9)

    def aload(ks):
        out = []
        if ks % 8 == 4:
            out.append(f"s_add_u32 s{48 + (ks >> 3)}, s{48 + (ks >> 3)}, 4096")
        out.append(f"buffer_load_dwordx4 {vr(AF + 4 * (ks % PF), 4)}, v1, {S(SWS)}, s{48 + (ks >> 3)} offen offset:{(ks & 3) * 1024} {scl()}")
        return out

    def breads(ks, buf):
        f = BF[buf]
        o = WLOC[ks]
        base, o = (6, o - L_R0) if o >= L_R0 else (4, o - 65536) if o >= 65536 else (2, o)
        out = []
        for ct in range(2):
            out.append(f"ds_read_b64_tr_b16 {vr(f + 4 * ct, 2)}, v{base + ct} offset:{o}")
            out.append(f"ds_read_b64_tr_b16 {vr(f + 4 * ct + 2, 2)}, v{base + ct} offset:{o + 1024}")
        return out

    for ks in range(PF):
        for x in aload(ks):
            a(x)
    CHK = {}
    if "g2e" in OPT or "ck" in OPT:
        CHK = {8 * NE - 2: (0, 16)}
    else:
        emit_lds_wait(a, VLF, 0, 16)
        emit_lds_wait(a, VLF, 16, 16)
    for x in breads(0, 0) + breads(1, 1):
        a(x)
    for ks in range(64):
        f = BF[ks % 3]
        issued = min(63, ks + PF - 1)
        a(f"s_waitcnt vmcnt({issued - ks}) lgkmcnt({4 if ks < 63 else 0})")
        af = vr(AF + 4 * (ks % PF), 4)
        nxt = breads(ks + 2, (ks + 2) % 3) if ks + 2 < 64 else []
        d0, d1 = vr(AC2, 16), vr(AC2 + 16, 16)
        a(f"v_mfma_f32_32x32x16_bf16 {d0}, {vr(f, 4)}, {af}, {'0' if ks == 0 else d0}")
        if ks == optval("aw", -1):
            lds_flag_set(a, 32, 24, 196)
        if ks + 1 in CHK:
            for i, o in enumerate(CHK[ks + 1]):
                a(f"ds_read_b128 {vr(8 + 4 * i, 4)}, v{VLF} offset:{o}")
        if ks in CHK:
            for i in range(4):
                a(f"v_and_b32 v{8 + i}, v{8 + i}, v{12 + i}")
            a("v_and_b32 v8, v8, v9")
            a("v_and_b32 v10, v10, v11")
            a("v_and_b32 v8, v8, v10")
            lf, lb = a.newlabel("wspin"), a.newlabel("wback")
            a("v_cmp_ne_u32 vcc, 0, v8")
            a(f"s_cbranch_vccz {lf}")
            a.label(lb)
            sub = Asm()
            sub.uid = a.uid + 2000
            for o in CHK[ks]:
                emit_lds_wait(sub, VLF, o, 8)
            a.uid = sub.uid
            ool.append((lf, [x.strip() for x in sub.L], lb))
        for x in nxt:
            a(x)
        a(f"v_mfma_f32_32x32x16_bf16 {d1}, {vr(f + 4, 4)}, {af}, {'0' if ks == 0 else d1}")
        if ks + PF < 64:
            for x in aload(ks + PF):
                a(x)
    ts.stamp(a, 28)
    a("s_nop 7")
    a("s_nop 7")
    for ct in range(2):
        b = AC2 + 16 * ct
        for j in range(8):
            a(f"v_cvt_pk_bf16_f32 v{b + j}, v{b + 2 * j}, v{b + 2 * j + 1}")
        a("s_nop 1")
        for jj in range(2):
            a(f"v_permlane32_swap_b32 v{b + 4 * jj}, v{b + 4 * jj + 2}")
            a(f"v_permlane32_swap_b32 v{b + 4 * jj + 1}, v{b + 4 * jj + 3}")
        if "bf" in OPT:
            for jj in range(2):
                a(f"v_xor_b32 v{8 + 2 * ct + jj}, {(4 * ct + 2 * jj) * 16}, v193")
                a(f"ds_write_b128 v{8 + 2 * ct + jj}, {vr(b + 4 * jj, 4)}")
            continue
        for jj in range(2 if "nob" not in OPT else 0):
            a(f"buffer_store_dwordx4 {vr(b + 4 * jj, 4)}, v{VOA}, {S(SOUT)}, s56 offen offset:{ct * 64 + jj * 32}{' sc1' if 'ob' in OPT else ''}{' nt' if 'nb' in OPT else ''}")
    if "bf" in OPT:
        for i in range(4):
            a(f"ds_read_b128 {vr(72 + 4 * i, 4)}, v194 offset:{1024 * i}")
        for i in range(4):
            a(f"s_waitcnt lgkmcnt({3 - i})")
            a(f"buffer_store_dwordx4 {vr(72 + 4 * i, 4)}, v{VOA}, {S(SOUT)}, s56 offen{' sc1' if 'ob' in OPT else ''}{' nt' if 'nb' in OPT else ''}")
            a("s_add_u32 s56, s56, 32768")
    ts.final(a, 10)
    a("s_endpgm")


def h_path(a, ts, ool):
    a(f"s_setprio {optval('hp', 3)}")
    XO, WO = 2, 6
    a("v_lshrrev_b32 v12, 3, v0")
    a("v_and_b32 v13, 7, v0")
    a("s_lshl_b32 s45, s33, 7")
    a("s_lshl_b32 s46, s44, 5")
    a("s_add_u32 s45, s45, s46")
    a("v_lshrrev_b32 v14, 4, v0")
    a("v_xor_b32 v14, v14, v13")
    a("v_add_u32 v15, s45, v12")
    a("v_lshlrev_b32 v15, 11, v15")
    a(f"v_lshl_add_u32 v{XO}, v14, 4, v15")
    a(f"v_xor_b32 v{XO + 1}, 64, v{XO}")
    a(f"v_add_u32 v{XO + 1}, {16384 - 1024}, v{XO + 1}")
    a(f"v_add_u32 v{XO + 2}, {2 * (16384 - 1024)}, v{XO}")
    a(f"v_add_u32 v{XO + 3}, {2 * (16384 - 1024)}, v{XO + 1}")
    a("s_lshl_b32 s45, s44, 12")
    main_a = a
    if "fs" in OPT:
        a = Asm()
    a("s_mul_i32 s48, s44, 98304")
    a("s_lshl_b32 s46, s34, 7")
    a("s_add_u32 s48, s48, s46")
    if "wl" in OPT:
        a("v_lshrrev_b32 v14, 2, v0")
        a("v_and_b32 v14, 4, v14")
        a("v_xor_b32 v14, v14, v13")
        a("v_mul_u32_u24 v15, 6144, v12")
        a("v_lshl_add_u32 v15, v14, 4, v15")
        a(f"v_add_u32 v{WO}, s48, v15")
        a(f"v_add_u32 v{WO + 1}, 48128, v{WO}")
    for i in range(3 if "wl" not in OPT else 0):
        if i:
            a(f"v_add_u32 v14, {64 * i}, v0")
        src = "v14" if i else "v0"
        a(f"v_mul_u32_u24 v15, 2731, {src}")
        a("v_lshrrev_b32 v15, 16, v15")
        a("v_mul_u32_u24 v16, 24, v15")
        a(f"v_sub_u32 v16, {src}, v16")
        a("v_bfe_u32 v18, v15, 1, 1")
        a("v_lshlrev_b32 v18, 2, v18")
        a("v_xor_b32 v16, v16, v18")
        a("v_lshrrev_b32 v18, 3, v16")
        a("v_and_b32 v16, 7, v16")
        a("v_mul_u32_u24 v15, 6144, v15")
        a("v_lshl_add_u32 v15, v18, 11, v15")
        a("v_lshl_add_u32 v15, v16, 4, v15")
        for ii in (i, i + 3):
            il = ii if ii < 4 else ii - 4
            a(f"s_add_u32 s49, s48, {(8 * 6144 if ii >= 3 else 0) - 1024 * il}")
            a(f"v_add_u32 v{WO + ii}, s49, v15")
    a("s_mul_i32 s43, s44, 6144")
    a("s_add_u32 s43, s43, 16384")
    wsetup = [x.strip() for x in a.L] if "fs" in OPT else []
    a = main_a
    order = []

    RG = optval("rg", 8)

    def pace(t):
        if t >= 6 and optval("pc", 0):
            a(f"s_nop {optval('pc', 0) - 1}")
            if optval("pc2", 0):
                a(f"s_nop {optval('pc2', 0) - 1}")

    def tile_index(t):
        if "hot" in OPT:
            a(f"s_mov_b32 s42, {t & 1}")
            return
        if RG <= 1:
            a(f"s_mov_b32 s42, {t}")
            return
        if SG:
            a(f"s_bfe_u32 s42, s{54 + (t >> 3)}, 0x{0x40000 + 4 * (t & 7):x}")
            return
        if "f0" in OPT:
            if t == 0:
                a("s_mov_b32 s42, 15")
            elif t <= 8:
                a(f"s_add_u32 s42, s56, {t - 1}")
                a("s_and_b32 s42, s42, 7")
            else:
                a("s_and_b32 s42, s56, 7")
                a("s_min_u32 s42, s42, 6")
                a(f"s_add_u32 s42, s42, {t - 9}")
                a("s_cmp_ge_u32 s42, 7")
                a("s_cselect_b32 s49, 1, 8")
                a("s_add_u32 s42, s42, s49")
            return
        GR = [o[2:] for o in OPT if o.startswith("gr")]
        if GR:
            g0 = 0
            for c in GR[0]:
                if t < g0 + int(c):
                    break
                g0 += int(c)
            a(f"s_add_u32 s42, s56, {t}")
            a(f"s_and_b32 s42, s42, {int(c) - 1}")
            if g0:
                a(f"s_add_u32 s42, s42, {g0}")
            return
        a(f"s_add_u32 s42, s56, {t}")
        a(f"s_and_b32 s42, s42, {RG - 1}")
        if t >= RG:
            a(f"s_add_u32 s42, s42, {t // RG * RG}")

    SG = optval("sg", 0)
    if SG:
        a("s_lshr_b32 s56, s35, 3")
        a("s_add_u32 s56, s56, s35")
        a("s_and_b32 s56, s56, 3")
        for c in range(4):
            seq = sorted(range(16), key=lambda x: (x - SG - 0.5) if (x & 3) == c else x)
            w = [sum(seq[8 * h + i] << (4 * i) for i in range(8)) for h in range(2)]
            if c == 0:
                a(f"s_mov_b32 s54, 0x{w[0]:x}")
                a(f"s_mov_b32 s55, 0x{w[1]:x}")
            else:
                a(f"s_cmp_eq_u32 s56, {c}")
                a(f"s_cselect_b32 s54, 0x{w[0]:x}, s54")
                a(f"s_cselect_b32 s55, 0x{w[1]:x}, s55")
    a("s_lshr_b32 s56, s35, 3")
    a(f"s_mul_i32 s56, s56, {optval('rb', 2)}")
    if optval("ra", 0):
        a(f"s_bfe_u32 s49, s35, 0x{((3 - optval('ra', 0)) << 16) + optval('ra', 0):x}")
        a("s_add_u32 s56, s56, s49")
    else:
        a("s_add_u32 s56, s56, s35")
    if optval("rx", 0):
        a(f"s_mul_i32 s49, s3, {optval('rx', 0)}")
        a("s_add_u32 s56, s56, s49")
    if optval("ry", 0):
        a("s_lshr_b32 s49, s3, 1")
        a(f"s_mul_i32 s49, s49, {optval('ry', 0)}")
        a("s_add_u32 s56, s56, s49")
    if RG == 16:
        a("s_lshl_b32 s56, s56, 1")

    def issue_x(t):
        if "nodma" in OPT and t >= 3:
            order.append(f"x{t}")
            return
        a(f"s_add_u32 m0, s45, {slot(t) * 40960}")
        tile_index(t)
        a("s_lshl_b32 s42, s42, 7")
        for i in range(4):
            a(f"buffer_load_dwordx4 v{XO + i}, {S(SX)}, s42 offen offset:{1024 * i} {nt('x') if t % RG == RG - 1 else ''} lds")
            pace(t)
        order.append(f"X{t}")

    def issue_w(t):
        if "nodma" in OPT and t >= 3:
            order.append(f"x{t}")
            return
        while wsetup:
            a(wsetup.pop(0))
        st = slot(t)
        a(f"s_add_u32 m0, s43, {st * 40960}")
        tile_index(t)
        a("s_mul_i32 s42, s42, 393216")
        if "wl" in OPT:
            for i in range(6):
                if i == 4:
                    a(f"s_add_u32 m0, s43, {st * 40960 + 4096}")
                    a("s_add_u32 s42, s42, 4096")
                a(f"buffer_load_dwordx4 v{WO + (i & 1)}, {S(SW)}, s42 offen offset:{1024 * (i & 3)} lds")
            order.append(f"W{t}")
            return
        for i in range(4):
            a(f"buffer_load_dwordx4 v{WO + i}, {S(SW)}, s42 offen offset:{1024 * i} {nt('x') if t % RG == RG - 1 else ''} lds")
            pace(t)
        a(f"s_add_u32 m0, s43, {st * 40960 + 4096}")
        a("s_nop 0")
        for i in range(4, 6):
            a(f"buffer_load_dwordx4 v{WO + i}, {S(SW)}, s42 offen offset:{1024 * (i - 4)} {nt('x') if t % RG == RG - 1 else ''} lds")
        order.append(f"W{t}")

    RQ = [list(range(28, 68, 4)), list(range(68, 108, 4)),
          list(range(108, 124, 4)) + list(range(200, 216, 4)) + [220, 224]]
    parked = {}

    def park(t, part):
        if t not in parked:
            parked[t] = next(b for b in range(3) if b not in parked.values())
        q = RQ[parked[t]]
        tile_index(t)
        if part == "X":
            a("s_lshl_b32 s42, s42, 7")
            for i in range(4):
                a(f"buffer_load_dwordx4 {vr(q[i], 4)}, v{XO + i}, {S(SX)}, s42 offen offset:{1024 * i}")
        else:
            a("s_mul_i32 s42, s42, 393216")
            for i in range(6):
                a(f"buffer_load_dwordx4 {vr(q[4 + i], 4)}, v{WO + i}, {S(SW)}, s42 offen offset:{1024 * (i & 3)}")
        order.append(f"{part}{t}")

    def unpark(t):
        wait_tile(t)
        q = RQ[parked[t]]
        a(f"s_add_u32 s42, s45, {slot(t) * 40960}")
        a("v_add_u32 v170, s42, v1")
        a(f"s_add_u32 s42, s43, {slot(t) * 40960}")
        a("v_add_u32 v171, s42, v1")
        for i in range(10):
            a(f"ds_write_b128 v{170 + (i >= 4)}, {vr(q[i], 4)} offset:{1024 * (i if i < 4 else i - 4)}")
        parked[t] = -1

    def vm(x):
        a(x)
        if x.startswith("buffer"):
            order.append("P")

    def cnt(lst):
        return sum({"X": 4, "W": 6, "P": 1, "L": 0, "U": 0, "x": 0, "R": 1, "E": 0, "a": 0}[x[0]] for x in lst)

    def wait_tile(b):
        if "nodma" in OPT and b >= 3:
            return
        last = max(i for i, x in enumerate(order) if x in (f"X{b}", f"W{b}"))
        assert f"X{b}" in order and f"W{b}" in order
        n = cnt(order[last + 1:])
        assert n < 64
        a(f"s_waitcnt vmcnt({n})")

    def later():
        a("s_lshl_b32 s80, s84, 2")
        a("s_add_u32 s80, s80, s44")
        a("s_lshl_b32 s80, s80, 11")
        a("v_lshlrev_b32 v179, 5, v0")
        a("v_add_u32 v179, s80, v179")
        a("s_lshl_b32 s87, s84, 2")
        a("s_add_u32 s87, s87, s44")
        a("s_lshl_b32 s87, s87, 12")
        a(f"s_buffer_load_dword s57, {S(SHK)}, s87")
        a(f"s_mul_i32 s88, s44, {URO}")
        a(f"s_add_u32 s88, s88, {L_R0 + 4 * (CW - URO)}")
        a(f"s_mul_i32 s86, s44, {CW - URO}")
        a(f"s_add_u32 s86, s86, {L_R0 - URO}")
        a("s_lshl_b32 s80, s35, 2")
        a("s_add_u32 s80, s80, s44")
        a("s_lshl_b32 s80, s80, 6")
        a("v_add_u32 v20, s80, v0")
        a("v_lshrrev_b32 v241, 3, v20")
        a("v_lshlrev_b32 v241, 11, v241")
        a("v_and_b32 v20, 7, v20")
        a("v_lshl_add_u32 v241, v20, 7, v241")
        a("s_lshr_b32 s80, s3, 2")
        a("s_lshl_b32 s80, s80, 10")
        a("v_add_u32 v241, s80, v241")
        a("s_lshl_b32 s80, s35, 6")
        a("s_lshl_b32 s81, s44, 4")
        a("s_add_u32 s80, s80, s81")
        a("v_lshrrev_b32 v20, 1, v0")
        a("v_add_u32 v20, s80, v20")
        a("v_lshlrev_b32 v20, 11, v20")
        a("v_and_b32 v21, 1, v0")
        a("v_lshl_add_u32 v20, v21, 7, v20")
        a("s_lshl_b32 s80, s3, 8")
        a("v_add_u32 v20, s80, v20")
        a("v_lshlrev_b32 v21, 7, v0")
        a("v_cmp_gt_u32 vcc, 32, v0")
        a("s_nop 1")
        a("v_cndmask_b32 v242, v240, v20, vcc")
        a("v_cndmask_b32 v243, v240, v21, vcc")
        AF_ = "af" in OPT
        a(f"v_lshrrev_b32 v20, {3 + AF_}, v0")
        a(f"v_and_b32 v21, {7 + 8 * AF_}, v0")
        a("s_lshl_b32 s80, s35, 6")
        if AF_:
            a("s_and_b32 s81, s44, 1")
            a("s_lshl_b32 s81, s81, 5")
            a("s_add_u32 s80, s80, s81")
        a("s_lshl_b32 s81, s3, 2")
        a("s_add_u32 s81, s81, s44")
        if AF_:
            a("s_andn2_b32 s81, s81, 1")
        a("s_lshl_b32 s81, s81, 5")
        a("v_lshlrev_b32 v22, 3, v20")
        a("v_add_u32 v22, s80, v22")
        a("v_lshlrev_b32 v23, 2, v21")
        a("v_add_u32 v23, s81, v23")
        a(f"v_lshlrev_b32 v{PA}, 12, v23")
        a(f"v_lshl_add_u32 v{PA}, v22, 1, v{PA}")
        if "yc" in OPT:
            assert AF_
            a("v_and_b32 v24, 3, v0")
            a("v_lshrrev_b32 v25, 2, v0")
            a("v_lshl_add_u32 v24, v24, 4, v25")
            a("v_lshlrev_b32 v24, 2, v24")
            a(f"ds_bpermute_b32 v{PA}, v24, v{PA}")
            a("v_lshl_add_u32 v247, v21, 2, v20")
            a("v_lshlrev_b32 v247, 2, v247")
        a(f"v_lshlrev_b32 v{PA + 1}, 11, v22")
        a(f"v_lshl_add_u32 v{PA + 1}, v23, 1, v{PA + 1}")
        a(f"v_lshlrev_b32 v{PA + 2}, 12, v22")
        a(f"v_lshl_add_u32 v{PA + 2}, v23, 1, v{PA + 2}")
        a(f"v_bfe_u32 v20, v0, 2, {3 + AF_}")
        a("s_lshl_b32 s80, s44, 3")
        if AF_:
            a("s_and_b32 s80, s80, 16")
        a("v_add_u32 v20, s80, v20")
        a("v_lshlrev_b32 v20, 3, v20")
        a("v_add_u32 v20, s3, v20")
        a("v_lshlrev_b32 v20, 7, v20")
        a("v_and_b32 v21, 3, v0")
        a("v_lshl_add_u32 v20, v21, 3, v20")
        a(f"v_add_u32 v{PA + 3}, 0x{fbase(FL_Y2) + 32:x}, v20")
        fshift(a, FL_Y2, PA + 3)
        a("s_and_b32 s40, s44, 1")
        a("s_lshr_b32 s41, s44, 1")
        a("s_waitcnt lgkmcnt(0)")
        a("s_lshl_b32 s80, s44, 4")
        a("s_lshr_b64 s[38:39], s[76:77], s80")
        a("s_lshl_b32 s39, s38, 16")
        a("s_lshl_b32 s57, s57, 16")
        a("s_lshl_b32 s40, s40, 1")
        a("s_add_u32 s40, s40, 1")
        a("v_and_b32 v192, 31, v0")
        a("v_lshlrev_b32 v192, 3, v192")
        a("v_add_u32 v192, s3, v192")
        a("v_lshlrev_b32 v192, 7, v192")
        a("s_lshr_b32 s80, s35, 3")
        a("s_lshl_b32 s80, s80, 3")
        a(f"s_add_u32 s80, s80, 0x{fbase(FL_UR) + 32:x}")
        a("v_add_u32 v192, s80, v192")
        fshift(a, FL_UR, 192)
        a("s_lshl_b32 s80, s44, 11")
        a(f"s_add_u32 s80, s80, {L_QH}")
        a("v_add_u32 v193, s80, v1")
        a("v_lshlrev_b32 v180, 3, v0")
        a("v_add_u32 v180, s86, v180")
        a("v_and_b32 v181, 1, v0")
        a(f"v_mul_u32_u24 v181, {CPY}, v181")
        a("v_bfe_u32 v182, v0, 1, 1")
        a("v_lshl_add_u32 v181, v182, 4, v181")
        a("v_add_u32 v181, s88, v181")
        a("v_mov_b32 v182, s88")
        a("v_mov_b32 v183, s57")
        for i in range(4):
            a(f"v_mov_b32 v{184 + i}, 0")

    p_setup, p_loads, p_comp, p_stores = p1_lists()
    if "nop1" in OPT:
        p_loads, p_comp, p_stores = p_loads[:1], [], []

    main_a = a
    a = Asm()
    for y in p_setup:
        a(y)
    later()
    setup2 = [x.strip() for x in a.L]
    a = main_a

    gl = list(range(32))

    def act(x):
        k, arg = x[0], x[1:]
        if k == "X":
            issue_x(int(arg))
        elif k == "W":
            issue_w(int(arg))
        elif k == "T":
            issue_x(int(arg)); issue_w(int(arg))
        elif k == "Y":
            park(int(arg), "X"); park(int(arg), "W")
        elif k == "Z":
            unpark(int(arg))
        elif k == "F":
            t0, n = map(int, arg.split("_"))
            emit_touch_fine(a, 234, 235, 228, t0)
            for y in touch(t0, n, 234, 235, 246):
                vm(y)
        elif k == "C":
            t = int(arg)
            a(f"s_cmp_eq_u32 s58, {t & 3}")
            a("s_cselect_b64 vcc, -1, 0")
            a(f"s_mov_b32 s82, {t * 128}")
            a(f"s_mov_b32 s83, {t * 393216}")
            a("v_cndmask_b32 v238, v240, v245, vcc")
            a("v_cndmask_b32 v239, v240, v244, vcc")
            vm(f"buffer_load_dword v246, v238, {S(SW)}, s83 offen")
            vm(f"buffer_load_dword v247, v239, {S(SX)}, s82 offen")
        elif k == "K":
            r = 242
            if arg:
                a(f"s_cmp_eq_u32 s58, {arg}")
                a("s_cselect_b64 vcc, -1, 0")
                a("s_nop 0")
                a("v_cndmask_b32 v237, v240, v242, vcc"); r = 237
            vm(f"buffer_load_dword v248, v{r}, {S(SK)}, 0 offen")
            vm(f"buffer_load_dword v249, v{r}, {S(SV)}, 0 offen")
        elif k == "P":
            for _ in range(int(arg)):
                if p_loads:
                    vm(p_loads.pop(0))
            if not p_loads:
                order.append("L")
        elif k == "V":
            assert all(v < 0 for v in parked.values())
            if "L" in order:
                a(f"s_waitcnt vmcnt({cnt(order[order.index('L') + 1:])})")
                order.remove("L")
            for _ in range(int(arg)):
                if p_comp:
                    a(p_comp.pop(0))
        elif k == "S":
            assert not p_comp and not p_loads
            for y in p_stores:
                vm(y)
            order.append("U")
        elif k == "U":
            a(f"s_waitcnt vmcnt({cnt(order[order.index('U') + 1:])})")
            emit_token_take(a, 172, VZ)
            emit_publish(a, FL_UR, 194, VZ)
            order.append("P")
        elif k == "A":
            emit_attn_setup(a, MASKS_H)
        elif k == "R":
            poll_issue(a, 192, 198)
            order.append("R")
        elif k == "o":
            vm(f"buffer_load_dword v178, v179, {S(SWO)}, 0 offen")
        elif k == "Q":
            vm(f"buffer_load_dword v246, v242, {S(SQ)}, 0 offen")
        elif k == "G":
            vm(f"buffer_load_dword v246, v243, {S(SHK)}, s87 offen")
        elif k == "O":
            vm(f"buffer_load_dword v248, v241, {S(SWO)}, 0 offen")
        elif k == "t":
            vm(f"buffer_load_dwordx2 v[172:173], v{VZ}, {S(SDBG)}, 0 offen{SC}")
        elif k == "a":
            ptr_loads(a)
            order.append("a")
        elif k == "b":
            if "fs" in OPT:
                if "a" not in order:
                    ptr_loads(a)
                a("s_waitcnt lgkmcnt(0)")
            late_setup(a, ts)
            if ts.on:
                order.append("P")
            a("v_mov_b32 v240, 0x80000000")
            a("s_and_b32 s58, s35, 3")
        elif k == "c":
            for _ in range(int(arg)):
                if setup2:
                    a(setup2.pop(0))
        elif k == "H":
            a("ds_write_b128 v181, v[184:187]")
            a(f"ds_write_b32 v182, v183 offset:{CPY + 28}")
            for c in range(2):
                a(f"s_add_u32 m0, s88, {32 + c * CPY}")
                a(f"s_add_u32 s80, s87, {2 * c}")
                for kk in range(4):
                    vm(f"buffer_load_dwordx4 v1, {S(SHK)}, s80 offen offset:{1024 * kk} {nt('h') if c else ''} lds")
        elif k in "DE":
            ls = a.newlabel("urskip")
            if "E" not in order:
                a(f"ds_write_b64 v180, v[184:185] offset:{URO + 4096}")
            if k == "E":
                a(f"s_waitcnt vmcnt({cnt(order[order.index('R') + 1:])})")
                a("v_cmp_eq_u64 vcc, s[78:79], v[198:199]")
                a("s_mov_b32 s38, 0")
                a("s_nop 0")
                a("s_cmp_eq_u32 vcc_lo, -1")
                a(f"s_cbranch_scc0 {ls}")
                a("s_mov_b32 s38, 1")
                order.append("E")
            else:
                if "E" in order:
                    a("s_cmp_eq_u32 s38, 1")
                    a(f"s_cbranch_scc1 {ls}")
                emit_poll(a, 192, 32, 198, pre=True)
                ts.stamp(a, 2)
            a(f"s_add_u32 m0, s86, {URO}")
            a(f"s_add_u32 s80, s87, 0x{WS_UR:x}")
            for kk in range(4):
                a(f"buffer_load_dwordx4 v1, {S(SWS)}, s80 offen offset:{1024 * kk} {nt('u')} lds")
            a.label(ls)
        else:
            raise ValueError(x)

    sc = os.environ.get("SCHED") or SCHEDS[optval("sc", 0)]
    sched = sc.split("|")
    assert len(sched) == 18, len(sched)
    if "tse" in OPT and ts.enabled:
        a("s_memrealtime s[92:93]")
    if "wn" in OPT:
        while wsetup:
            a(wsetup.pop(0))
    a("s_waitcnt lgkmcnt(0)")
    if "tse" in OPT and ts.enabled:
        a("v_writelane_b32 v254, s92, 29")
        ts.stamp(a, 0)
    for x in sched[0].split():
        act(x)
        if "tse" in OPT and x == "X1":
            ts.stamp(a, 9)
        if "tse" in OPT and x[0] == "c":
            ts.stamp(a, 2)
    for b in range(0, 17):
        if b not in skipped():
            real, nb = b, b
            while nb + 1 in skipped():
                nb += 1
            if b in parked:
                assert parked[b] < 0
                a("s_waitcnt lgkmcnt(0)")
            elif b < 16:
                wait_tile(max(range(b, nb + 1), key=lambda t: max(order.index(f"X{t}"), order.index(f"W{t}"))))
            if "tse" in OPT and b == 0:
                ts.stamp(a, 28)
            a("s_barrier")
        if "tsb" in OPT:
            ts.stamp(a, 11 + b)
        for x in sched[b + 1].split():
            if x[0] in "XWTZ":
                assert int(x[1:]) <= real + 3
            act(x)
    ts.stamp(a, 1)
    assert not setup2
    a("s_mov_b32 s46, s88")
    a(f"s_add_u32 s36, s87, 0x{wsy2():x}")

    def c_start():
        if optval("pv", -1) >= 0:
            a(f"s_setprio {optval('pv', 0)}")
        a("s_waitcnt vmcnt(0)")
        ts.stamp(a, 3)

    b = Asm()
    emit_attn_setup(b, MASKS_H)
    g2_tile(b)
    wo_addr(b)
    ys = emit_conv(a, {"start": c_start, "extra": [x.strip() for x in b.L], "bar": lambda: a("s_barrier")})
    ts.stamp(a, 5)
    a("s_setprio 0")
    if "eb" not in OPT:
        a("s_barrier")
    ts.stamp(a, 4)
    a(f"ds_read_b128 {vr(QC, 4)}, v193")
    a(f"ds_read_b128 {vr(QC + 4, 4)}, v193 offset:1024")
    if not optval("ys", 0):
        for x in ys:
            a(x)
    YY, OO = 168, 24
    if optval("ph", 0):
        a(f"s_setprio {optval('ph', 0)}")
    blk = wo_early()
    b = Asm()
    b("s_waitcnt vmcnt(0)")
    emit_publish(b, FL_Y2, 194, VZ)
    yb = optval("yb", 2)
    if optval("ys", 0):
        assert optval("ys", 0) < yb
        blk[optval("ys", 0)] = ys + blk.get(optval("ys", 0), [])
    blk[yb] = [x.strip() for x in b.L] + blk.get(yb, [])
    hk = {"blk": blk}
    blk[7] = blk7_flag() + blk.get(7, [])
    hk["prio"] = prio_plan("H")
    YE = optval("ye", 0)
    b = Asm()
    for i in range(8):
        if i % 2 == 0:
            b(f"s_mov_b32 s80, {4096 * (i >> 1)}")
        b(f"buffer_load_dwordx2 {vr(QQ + 2 * i, 2)}, v{PA + 1}, {S(SQ)}, s80 offen offset:{(i & 1) * 2048}")
    ql = [x.strip() for x in b.L]
    b = Asm()
    poll_issue(b, PA + 3, 196)
    pl = [x.strip() for x in b.L]
    if YE:
        blk[optval("qe", YE)] = blk.get(optval("qe", YE), []) + ql
        blk[YE] = blk.get(YE, []) + pl
    emit_attention(a, ool, hk, MASKS_H, "H")
    ts.stamp(a, 6)
    if not YE:
        for x in ql + pl:
            a(x)

    def y_issue(va):
        a(f"s_mov_b32 s80, 0x{wsy2():x}")
        for dd in range(4):
            a(f"buffer_load_dwordx4 {vr(YY + 4 * dd, 4)}, v{va}, {S(SWS)}, s80 offen {scl()}")
            if dd < 3:
                a("s_add_u32 s80, s80, 4096")

    def y_loads():
        emit_poll(a, PA + 3, 64, 196, pre=True)
        y_issue(PA)

    p3 = Asm()
    a, main_a = p3, a
    for i in range(8):
        for dd in range(4):
            ys = YY + 4 * dd + (i >> 1)
            qs = QQ + 2 * i + (dd >> 1)
            a(f"v_and_b32 v4, 0xffff0000, v{ys}" if i & 1 else f"v_lshlrev_b32 v4, 16, v{ys}")
            a(f"v_and_b32 v5, 0xffff0000, v{qs}" if dd & 1 else f"v_lshlrev_b32 v5, 16, v{qs}")
            a(f"v_mul_f32 v{OO + 4 * i + dd}, v4, v5")
        o = OO + 4 * i
        a(f"v_cvt_pk_bf16_f32 v{o}, v{o}, v{o + 1}")
        a(f"v_cvt_pk_bf16_f32 v{o + 1}, v{o + 2}, v{o + 3}")
    a = main_a
    outs = []
    for i in range(8):
        outs += [f"s_mov_b32 s80, {4096 * i}", f"buffer_store_dwordx2 {vr(OO + 4 * i, 2)}, v{PA + 2}, {S(SOUT)}, s80 offen{' sc1' if 'oa' in OPT else ''}{' nt' if 'na' in OPT else ''}"]

    def gate():
        if "yc" in OPT:
            for r in range(4):
                for dd in range(4):
                    a(f"ds_bpermute_b32 v{YY + 4 * dd + r}, v247, v{YY + 4 * dd + r}")
            a("s_waitcnt lgkmcnt(0)")
        for x in p3.L:
            a(x.strip())

    if YE:
        ll, lr = a.newlabel("ylate"), a.newlabel("yback")
        a("s_waitcnt vmcnt(2)")
        a("v_cmp_eq_u64 vcc, s[78:79], v[196:197]")
        a("v_mov_b32 v4, 0x80000000")
        a("s_nop 0")
        a("s_cmp_eq_u64 vcc, -1")
        a("s_cselect_b32 s38, 1, 0")
        a("s_cselect_b64 vcc, -1, 0")
        a("s_nop 0")
        a(f"v_cndmask_b32 v4, v4, v{PA}, vcc")
        if "yl" not in OPT:
            y_issue(4)
    if "ag" in OPT:
        lfin = a.newlabel("afin")

        def mid():
            a("s_cmp_eq_u32 s38, 0")
            a(f"s_cbranch_scc1 {ll}")
            a("s_waitcnt vmcnt(1)")
            a.label(lr)
            gate()
            for x in outs:
                a(x)
            a("s_cmp_eq_u32 s38, 0")
            a(f"s_cbranch_scc1 {lfin}")
            a.label(ll)
        wo_late(a, ts, 4, True, mid)
        a("s_waitcnt vmcnt(0)")
        lds_flag_set(a, 32, 0, 4)
        ts.stamp(a, 8)
        a("s_cmp_eq_u32 s38, 1")
        a(f"s_cbranch_scc1 {lfin}")
        for x in pl:
            a(x)
        y_loads()
        a("s_waitcnt vmcnt(0)")
        a(f"s_branch {lr}")
        a.label(lfin)
    elif YE:
        wo_late(a, ts, 0 if "yl" in OPT else 4, True)
        a("s_cmp_eq_u32 s38, 0")
        a(f"s_cbranch_scc1 {ll}")
        if "yl" in OPT:
            if optval("yd", 0):
                a("s_waitcnt vmcnt(0)")
                lds_flag_set(a, 32, 0, 6)
                a(f"s_sleep {optval('yd', 0)}")
            y_issue(4)
            a("s_waitcnt vmcnt(4)")
            lds_flag_set(a, 32, 0, 6)
            a("s_waitcnt vmcnt(0)")
        a(f"s_waitcnt vmcnt({0 if 'nolate' in OPT else nlate() + (1 if optval('es', 0) == 1 or 'a1' in OPT else 0)})")
        a.label(lr)
        main_a, sub = a, Asm()
        sub.uid = main_a.uid + 1000
        a = sub
        a("s_waitcnt vmcnt(0)")
        lds_flag_set(a, 32, 0, 4)
        for x in pl:
            a(x)
        y_loads()
        a("s_waitcnt vmcnt(0)")
        main_a.uid = sub.uid
        a = main_a
        ool.append((ll, [x.strip() for x in sub.L], lr))
        gate()
        if "ae" in OPT:
            for x in outs:
                a(x)
            outs = []
        a(f"s_waitcnt vmcnt({8 if 'ae' in OPT else 0})")
        lds_flag_set(a, 32, 0, 4)
        ts.stamp(a, 8)
        if optval("ad", 0):
            a(f"s_sleep {optval('ad', 0)}")
        if optval("aw", 0):
            lp, dn = a.newlabel("aw"), a.newlabel("awd")
            a("s_setprio 0")
            a("s_mov_b32 s85, 0")
            a.label(lp)
            a("ds_read_b32 v5, v4 offset:80")
            a("s_add_u32 s85, s85, 1")
            a("s_waitcnt lgkmcnt(0)")
            a("v_cmp_ne_u32 vcc, 0, v5")
            a(f"s_cbranch_vccnz {dn}")
            a("s_sleep 4")
            a("s_cmp_lt_u32 s85, 64")
            a(f"s_cbranch_scc1 {lp}")
            a.label(dn)
        for x in outs:
            if "noa" not in OPT:
                a(x)
    else:
        raise ValueError("ye required")
    if optval("wb", 0):
        lw = a.newlabel("nowb")
        a(f"s_and_b32 s80, s35, {optval('wb', 0) - 1}")
        a("s_or_b32 s80, s80, s44")
        a("s_cmp_lg_u32 s80, 0")
        a(f"s_cbranch_scc1 {lw}")
        a("s_waitcnt vmcnt(0)")
        a(f"s_sleep {optval('wd', 16)}")
        a("buffer_wbl2 sc1")
        a("s_waitcnt vmcnt(0)")
        a.label(lw)
    ts.final(a, 10)
    a("s_endpgm")


def ptr_loads(a, helper=True):
    for (d, off, size) in SRDS[2:]:
        if helper or d not in (SK, SV, SSH, SHK):
            a(f"s_load_dwordx2 s[{d}:{d + 1}], s[0:1], {off}")
    if helper:
        a("s_load_dwordx2 s[36:37], s[0:1], 40")


def gen_fused(a, ts):
    name = NAME + "_kernel"
    kernel_begin(a, name)
    ts.entry(a)
    a("s_cmp_ge_u32 s2, 256")
    a("s_cbranch_scc1 L_end")
    if optval("xj", 0):
        a(f"s_xor_b32 s2, s2, {optval('xj', 0)}")
    for (d, off, size) in SRDS[:2]:
        a(f"s_load_dwordx2 s[{d}:{d + 1}], s[0:1], {off}")
    if "fs" not in OPT:
        ptr_loads(a)
    for o in OPT:
        if o.startswith("xp"):
            c = sum((int(d) ^ p) << (2 * p + 1) for p, d in enumerate(o[2:]))
            a("s_and_b32 s80, s2, 6")
            a(f"s_lshr_b32 s80, 0x{c:x}, s80")
            a("s_and_b32 s80, s80, 6")
            a("s_xor_b32 s2, s2, s80")
    a("v_lshrrev_b32 v1, 6, v0")
    if "hf" in OPT:
        a("v_xor_b32 v1, 4, v1")
    a("v_and_b32 v0, 63, v0")
    a("s_and_b32 s3, s2, 7")
    a("v_readfirstlane_b32 s32, v1")
    a("s_lshr_b32 s35, s2, 3")
    a("s_and_b32 s33, s3, 1")
    a("s_lshl_b32 s33, s33, 3")
    a("s_and_b32 s80, s35, 7")
    a("s_add_u32 s33, s33, s80")
    a("s_lshr_b32 s34, s3, 1")
    a("s_lshl_b32 s34, s34, 2")
    a("s_lshr_b32 s80, s35, 3")
    a("s_add_u32 s34, s34, s80")
    if optval("hx", 0):
        a(f"s_xor_b32 s34, s34, {optval('hx', 0)}")
    a("v_lshlrev_b32 v1, 4, v0")
    a(f"v_mov_b32 v{VZ}, 0")
    for (d, off, size) in SRDS[:2]:
        a(f"s_mov_b32 s{d + 2}, 0x{size:x}")
        a(f"s_mov_b32 s{d + 3}, 0x20000")
    a("s_and_b32 s44, s32, 3")
    a("s_mov_b32 s59, 0")
    a("s_cmp_lt_u32 s32, 4")
    a("s_cbranch_scc1 L_M")
    ool = []
    h_path(a, ts, ool)
    a.label("L_M")
    if "fs" in OPT:
        ptr_loads(a, False)
    m_path(a, ts, ool)
    for (lf, body, lb) in ool:
        a.label(lf)
        for x in body:
            a(x)
        a(f"s_branch {lb}")
    a.label("L_end")
    a("s_endpgm")
    emit_exact(a)
    return name, 256, 102


def build(instrument=False):
    if "best" in OPT:
        have = {o.rstrip("0123456789") for o in OPT}
        OPT.update(o for o in BEST.split(",") if o.rstrip("0123456789") not in have and "no" + o not in OPT)
    ts = TS(instrument)
    a = Asm()
    a.raw("; fused H3 long-conv | sliding-window attention kernel (generated)")
    a.raw("; @launch grid=(256,1,1) block=(512,1,1) lds=163840")
    a.raw('.amdgcn_target "amdgcn-amd-amdhsa--gfx950"')
    a.raw(".text")
    n, v, s = gen_fused(a, ts)
    a.raw('.section .rodata,"a"')
    kernel_desc(a, n, v, s)
    return a.text()


if __name__ == "__main__":
    out = sys.argv[1] if len(sys.argv) > 1 else f"cdna_kernels/{NAME}.s"
    if len(sys.argv) > 2:
        OPT.update(sys.argv[2].split(","))
    open(out, "w").write(build())
```

```python
import sys, struct, os, re
from gen import Asm, vr, srd, kernel_begin, kernel_desc, MB, NAME
from gf import f32hex
import gf

OPT = set()
WS_KF, WS_VF, WS_UR, WS_OF, WS_Y2, WS_FL = 4 * MB, 8 * MB, 12 * MB, 16 * MB, 20 * MB, 24 * MB
WS_SIZE = 26 * MB
FL_UR, FL_K, FL_Y2, FL_O, FL_V = 0, 1, 2, 3, 4

CPY, URO, CW = 4160, 8320, 12928
L_HD, L_V = 49152, 24576
L_QH = 98304
L_R0 = 106496
L_FL = L_R0 + 4 * CW
SC = " sc1"
SPIN_LIMIT = 1 << 18
SCALE_LOG2E = (32 ** -0.5) * 1.4426950408889634
SX, SW, SWS, SK, SV, SSH, SHK, SWO, SQ, SOUT, SDBG = 4, 8, 12, 16, 20, 24, 28, 60, 64, 68, 72
MASKS_H = [4, 6, 8, 10, 16, 18, 20, 22, 24, 26, 48, 50, 52, 54, 56, 58]
MASKS_M = [4, 6, 16, 18, 20, 22, 24, 26, 28, 30, 58, 76, 92, 94, 96, 98]


WS_TS = 32 * MB


class TS:
    def __init__(self, on):
        self.enabled = on
        self.on = False

    def entry(self, a):
        if self.enabled:
            a("s_memrealtime s[98:99]")
            a("s_memtime s[100:101]")
            a("v_mov_b32 v254, 0")

    def setup(self, a, ws_pair):
        if self.enabled:
            a("v_writelane_b32 v254, s98, 30")

    def stamp(self, a, slot):
        if self.enabled and ("tsmin" not in OPT or slot == 10):
            a("s_memrealtime s[90:91]")
            a("s_waitcnt lgkmcnt(0)")
            a(f"v_writelane_b32 v254, s90, {slot}")
            if "cya" in OPT and slot < 11:
                a("s_memtime s[90:91]")
                a("s_waitcnt lgkmcnt(0)")
                a(f"v_writelane_b32 v254, s90, {slot + 12}")

    def final(self, a, slot):
        if not self.enabled:
            return
        a("s_waitcnt vmcnt(0)")
        self.stamp(a, slot)
        a("s_memtime s[90:91]")
        srd(a, 92, SWS, 4 * MB, WS_TS)
        a("s_lshl_b32 s96, s2, 4")
        a("s_add_u32 s96, s96, s32")
        a("s_lshl_b32 s96, s96, 8")
        a("s_waitcnt lgkmcnt(0)")
        a("s_sub_u32 s90, s90, s100")
        a("v_writelane_b32 v254, s90, 31")
        a("v_mov_b32 v255, 0")
        a("v_lshlrev_b32 v253, 3, v0")
        a("s_mov_b32 exec_hi, 0")
        a("buffer_store_dwordx2 v[254:255], v253, s[92:95], s96 offen")


def emit_wg_of(a, vdst, vrb, vhp, t):
    if optval("hx", 0):
        a(f"v_xor_b32 v{vhp}, {optval('hx', 0)}, v{vhp}")
    gf.emit_wg_of(a, vdst, vrb, vhp, t)


def S(n):
    return f"s[{n}:{n + 3}]"


SCHEDS = {
    0: "X0 a W0 X1 b c30 W1 | X2 P7 W2 c36 | T3 P7 X4 | W4 T5 P7 c44 | T6 c44 G | T7 c50 t | T8 V95 | T9 V95 | T10 V95 S | T11"
       " | T12 U | T13 | T14 | T15 O | R | H | E | D",
}
BEST = "we3,yb3,cp,cq50,rg4,ry1,ya,ft30,sw14_2,ye7,prM322110000,prH333221101,pe3,pv1,od8,fs,ms233,bf,ob,af,oa,aw46,g16,m16"


def skipped():
    return {int(c, 16) for o in OPT if o.startswith("sk") for c in o[2:]}


def wide(kind):
    return optval("fw", 0) >> kind & 1


def fbase(kind):
    if wide(kind):
        return (WS_FL + 0x100000 + (kind >> 1) * 0x80000 + (kind & 1) * 1024) >> 4
    return WS_FL + kind * 32768


def fshift(a, kind, v):
    if wide(kind):
        a(f"v_lshlrev_b32 v{v}, 4, v{v}")


def slot(t):
    return (3, 2, 0, 1)[t & 3]


def wsy2():
    return WS_UR if "ya" in OPT else WS_Y2


def nt(k):
    return "nt" if "nt" + k in OPT else ""


def scl():
    return "sc1" if "ldsc1" in OPT else ""


def optval(prefix, default):
    for o in OPT:
        if o.startswith(prefix) and o[len(prefix):].lstrip("-").isdigit():
            return int(o[len(prefix):])
    return default


def poll_issue(a, voff, tmp):
    ps = optval("ps", 0) if (voff == 191 or "psa" in OPT) else 0
    if ps == 4:
        a(f"v_mov_b32 v{tmp}, 0")
        a(f"v_mov_b32 v{tmp + 1}, 0")
        a(f"buffer_atomic_or_x2 {vr(tmp, 2)}, v{voff}, {S(SWS)}, 0 offen sc0 sc1")
        return
    a(f"buffer_load_dwordx2 {vr(tmp, 2)}, v{voff}, {S(SWS)}, 0 offen{[SC, ' sc0 sc1', ' sc1 nt', ' sc0 sc1 nt'][ps]}")


def emit_poll(a, voff, nlanes, tmp, pre=False, sleep=0):
    lp, ck, dn = a.newlabel("poll"), a.newlabel("pollc"), a.newlabel("polld")
    mask = (1 << nlanes) - 1
    a(f"s_mov_b32 s80, 0x{mask & 0xffffffff:x}")
    a(f"s_mov_b32 s81, 0x{mask >> 32:x}")
    a("s_mov_b32 s85, 0")
    if not pre:
        a.label(lp)
        poll_issue(a, voff, tmp)
        a("s_waitcnt vmcnt(0)")
        a(f"v_cmp_eq_u64 vcc, s[78:79], {vr(tmp, 2)}")
        a("s_add_u32 s85, s85, 1")
        a("s_and_b64 s[82:83], vcc, s[80:81]")
        a("s_cmp_eq_u64 s[82:83], s[80:81]")
        a(f"s_cbranch_scc1 {dn}")
        if sleep:
            a(f"s_sleep {sleep}")
        a(f"s_cmp_lt_u32 s85, 0x{SPIN_LIMIT:x}")
        a(f"s_cbranch_scc1 {lp}")
        a.label(dn)
    else:
        a.label(ck)
        a("s_waitcnt vmcnt(0)")
        a(f"v_cmp_eq_u64 vcc, s[78:79], {vr(tmp, 2)}")
        a("s_add_u32 s85, s85, 1")
        a("s_and_b64 s[82:83], vcc, s[80:81]")
        a("s_cmp_eq_u64 s[82:83], s[80:81]")
        a(f"s_cbranch_scc1 {dn}")
        if sleep:
            a(f"s_sleep {sleep}")
        poll_issue(a, voff, tmp)
        a(f"s_cmp_lt_u32 s85, 0x{SPIN_LIMIT:x}")
        a(f"s_cbranch_scc1 {ck}")
        a("s_waitcnt vmcnt(0)")
        a.label(dn)


def emit_publish(a, kind, t0, vz, smode=None, lo=78):
    if wide(kind):
        a(f"s_add_u32 s80, s89, 0x{fbase(kind):x}")
        a("s_lshl_b32 s80, s80, 4")
        for i in range(4):
            a(f"v_mov_b32 v{t0 + i}, s{78 + (i & 1)}")
        a(f"s_mov_b64 exec, {optval('fx', 255)}")
        a(f"buffer_store_dwordx4 {vr(t0, 4)}, v1, {S(SWS)}, s80 offen{SC}")
        a("s_mov_b64 exec, -1")
        a("s_nop 0")
        return
    if kind == FL_O and "fl" in OPT:
        a("s_lshl_b32 s80, s89, 4")
        a(f"s_add_u32 s80, s80, 0x{WS_FL + 0x80000:x}")
    else:
        a(f"s_add_u32 s80, s89, 0x{WS_FL + kind * 32768:x}")
    a(f"v_mov_b32 v{t0}, s{lo}")
    a(f"v_mov_b32 v{t0 + 1}, s79")
    if smode is None:
        a("s_mov_b64 exec, 1")
    else:
        a("s_mov_b32 exec_hi, 0")
        a(f"s_mov_b32 exec_lo, s{smode}")
        a(f"buffer_store_dwordx2 {vr(t0, 2)}, v{vz}, {S(SWS)}, s80 offen")
        a(f"s_xor_b32 exec_lo, s{smode}, 1")
    a(f"buffer_store_dwordx2 {vr(t0, 2)}, v{vz}, {S(SWS)}, s80 offen{SC}")
    a("s_mov_b64 exec, -1")


def emit_token_take(a, t0, vz):
    lp, dn = a.newlabel("tok"), a.newlabel("tokd")
    a("s_mov_b32 s85, 0")
    a.label(lp)
    a(f"v_readfirstlane_b32 s78, v{t0}")
    a(f"v_readfirstlane_b32 s79, v{t0 + 1}")
    a("s_add_u32 s85, s85, 1")
    a("s_cmp_lg_u64 s[78:79], 0")
    a(f"s_cbranch_scc1 {dn}")
    a(f"buffer_load_dwordx2 {vr(t0, 2)}, v{vz}, {S(SDBG)}, 0 offen{SC}")
    a("s_waitcnt vmcnt(0)")
    a(f"s_cmp_lt_u32 s85, 0x{SPIN_LIMIT:x}")
    a(f"s_cbranch_scc1 {lp}")
    a.label(dn)


def emit_wline(a, dst, idx, hi, t):
    a(f"v_mul_u32_u24 v{dst}, 5462, v{idx}")
    a(f"v_lshrrev_b32 v{dst}, 16, v{dst}")
    a(f"v_mul_u32_u24 v{t}, 12, v{dst}")
    a(f"v_sub_u32 v{t}, v{idx}, v{t}")
    if hi is not None:
        a(f"v_lshl_add_u32 v{dst}, v{hi}, 6, v{dst}")
    a(f"v_mul_u32_u24 v{dst}, 6144, v{dst}")
    a(f"v_lshrrev_b32 v{t + 1}, 2, v{t}")
    a(f"v_lshl_add_u32 v{dst}, v{t + 1}, 11, v{dst}")
    a(f"v_and_b32 v{t}, 3, v{t}")
    a(f"v_lshl_add_u32 v{dst}, v{t}, 7, v{dst}")
    a("s_lshr_b32 s83, s3, 1")
    a("s_lshl_b32 s83, s83, 9")
    a(f"v_add_u32 v{dst}, s83, v{dst}")


def emit_touch_fine(a, VTX, VTW, t, t0):
    a(f"v_and_b32 v{t}, 7, v0")
    a(f"v_lshrrev_b32 v{t + 1}, 3, v0")
    a(f"s_add_u32 s82, s59, {t0}")
    a(f"v_add_u32 v{t + 1}, s82, v{t + 1}")
    a(f"v_and_b32 v{t + 1}, 15, v{t + 1}")
    a("s_lshl_b32 s82, s35, 2")
    a("s_add_u32 s82, s82, s44")
    a("s_lshl_b32 s81, s82, 3")
    a("s_and_b32 s83, s3, 1")
    a("s_lshl_b32 s83, s83, 10")
    a("s_add_u32 s81, s81, s83")
    a(f"v_add_u32 v{t + 2}, s81, v{t}")
    a(f"v_lshlrev_b32 v{t + 2}, 11, v{t + 2}")
    a(f"v_lshl_add_u32 v{VTX}, v{t + 1}, 7, v{t + 2}")
    a("s_mul_i32 s82, s82, 6")
    a(f"v_add_u32 v{t + 2}, s82, v{t}")
    emit_wline(a, VTW, t + 2, t + 1, t + 3)
    a(f"v_mov_b32 v{t + 4}, 0x80000000")
    a(f"v_cmp_gt_u32 vcc, 6, v{t}")
    a("s_nop 1")
    a(f"v_cndmask_b32 v{VTW}, v{t + 4}, v{VTW}, vcc")


def emit_touch_coarse(a, VTX, VTW, t):
    a("s_lshr_b32 s82, s35, 2")
    a("s_lshl_b32 s82, s82, 2")
    a("s_add_u32 s82, s82, s44")
    a("s_lshl_b32 s81, s82, 5")
    a("s_and_b32 s83, s3, 1")
    a("s_lshl_b32 s83, s83, 10")
    a("s_add_u32 s81, s81, s83")
    a(f"v_add_u32 v{t + 2}, s81, v0")
    a(f"v_lshlrev_b32 v{VTX}, 11, v{t + 2}")
    a("s_mul_i32 s82, s82, 24")
    a(f"v_add_u32 v{t + 2}, s82, v0")
    emit_wline(a, VTW, t + 2, None, t + 3)
    a(f"v_mov_b32 v{t + 4}, 0x80000000")
    a("v_cmp_gt_u32 vcc, 32, v0")
    a("s_nop 1")
    a(f"v_cndmask_b32 v{VTX}, v{t + 4}, v{VTX}, vcc")
    a("v_cmp_gt_u32 vcc, 24, v0")
    a("s_nop 1")
    a(f"v_cndmask_b32 v{VTW}, v{t + 4}, v{VTW}, vcc")


def touch(t0, nt, VTX, VTW, dst):
    m = (1 << (8 * nt)) - 1
    out = []
    if nt < 8:
        out += [f"s_mov_b32 exec_lo, 0x{m & 0xffffffff:x}", f"s_mov_b32 exec_hi, 0x{m >> 32:x}"]
    out += [f"buffer_load_dword v{dst}, v{VTW}, {S(SW)}, 0 offen",
            f"buffer_load_dword v{dst + 1}, v{VTX}, {S(SX)}, 0 offen"]
    if nt < 8:
        out.append("s_mov_b64 exec, -1")
    return out


QC = 224
SBUF = [8, 24, 40]
KB = [56, 64, 72]
VB = [80, 88, 160]
OA = 96
CM = 200
LS = 128
ONE = 240
PM = 232
P0 = 144
VM, VM2, VT, VNEG, VK, VK0 = 152, 153, 154, 244, 245, 246
YP = 176
QQ, PA = 112, 216


def emit_attn_setup(a0, MASKS, t=4):
    a = lambda x: a0(re.sub(r"\bv([456])\b", lambda m: f"v{int(m.group(1)) - 4 + t}", x))
    a("v_and_b32 v4, 31, v0")
    a("v_lshrrev_b32 v5, 5, v0")
    a("v_lshlrev_b32 v5, 2, v5")
    a("v_sub_u32 v4, v4, v5")
    for r in range(16):
        a(f"v_cmp_le_i32 s[{MASKS[r]}:{MASKS[r] + 1}], {8 * (r >> 2) + (r & 3)}, v4")
    a(f"v_mov_b32 v{VNEG}, 0xf149f2ca")
    a("v_mov_b32 v4, 0xffff")
    a("v_mov_b32 v5, 0xffff0000")
    for j in range(8):
        a(f"v_cndmask_b32 v{PM + j}, 0, v4, s[{MASKS[2 * j]}:{MASKS[2 * j] + 1}]")
        a(f"v_cndmask_b32 v6, 0, v5, s[{MASKS[2 * j + 1]}:{MASKS[2 * j + 1] + 1}]")
        a(f"v_or_b32 v{PM + j}, v{PM + j}, v6")
    a("v_lshrrev_b32 v4, 4, v0")
    a("v_lshrrev_b32 v5, 2, v0")
    a("v_xor_b32 v4, v4, v5")
    a("v_and_b32 v4, 1, v4")
    a("v_cmp_eq_u32 vcc, 0, v4")
    a("v_mov_b32 v5, 0x3f803f80")
    for i in range(4):
        a(f"v_cndmask_b32 v{ONE + i}, 0, v5, vcc")
    a(f"s_mul_i32 s42, s41, {L_HD}")
    a("s_lshl_b32 s43, s40, 11")
    a("s_add_u32 s42, s42, s43")
    a(f"v_add_u32 v{VK}, s42, v1")
    a("s_lshl_b32 s45, s33, 2")
    a("s_add_u32 s45, s45, s40")
    a("s_sub_u32 s46, 8, s45")
    a("s_cmp_lt_u32 s45, 8")
    a("s_cselect_b32 s46, s46, 0")
    a("s_cselect_b32 s43, 0x4000, 0")
    a(f"v_add_u32 v{VK0}, s43, v{VK}")
    a("s_lshl_b32 s47, s45, 5")
    a("s_lshl_b32 s42, s34, 1")
    a("s_add_u32 s47, s47, s42")
    a("s_add_u32 s47, s47, s41")
    a("s_lshl_b32 s47, s47, 11")
    a(f"s_add_u32 s47, s47, 0x{WS_OF:x}")


def prio_plan(role):
    for o in OPT:
        if o.startswith("pr" + role):
            d = o[3:]
            out, last = {}, None
            for k, c in zip([0, 2, 3, 4, 5, 6, 7, 8, 9], d):
                if c != last or k == 9:
                    out[k] = int(c)
                last = c
            return out
    return {}


def emit_attention(a, ool, hooks, MASKS, role):
    order = [8, 0, 7, 6, 5, 4, 3, 2, 1]

    def hook(k):
        if k in hooks:
            hooks[k]()

    def kread(i):
        rel, b = order[i % 9], KB[i % 3]
        return [f"ds_read_b128 {vr(b, 4)}, v{VK} offset:{rel * 2048}",
                f"ds_read_b128 {vr(b + 4, 4)}, v{VK} offset:{rel * 2048 + 1024}"]

    def vread(i):
        rel, b = order[i], VB[i % 3]
        ad = VK0 if rel == 0 else VK
        return [f"ds_read_b128 {vr(b, 4)}, v{ad} offset:{L_V + rel * 2048}",
                f"ds_read_b128 {vr(b + 4, 4)}, v{ad} offset:{L_V + rel * 2048 + 1024}"]

    def smf(i, c):
        s, k = vr(SBUF[i % 3], 16), KB[i % 3]
        return [f"v_mfma_f32_32x32x16_bf16 {s}, {vr(k, 4)}, {vr(QC, 4)}, {c}",
                f"v_mfma_f32_32x32x16_bf16 {s}, {vr(k + 4, 4)}, {vr(QC + 4, 4)}, {s}"]

    def merge():
        lf, lb = a.newlabel("mneg"), a.newlabel("mback")
        a("s_cmp_gt_u32 s46, 0")
        a(f"s_cbranch_scc1 {lf}")
        for r in range(16):
            a(f"v_cndmask_b32 v{SBUF[1] + r}, v{SBUF[1] + r}, v{SBUF[0] + r}, s[{MASKS[r]}:{MASKS[r] + 1}]")
        a.label(lb)
        ool.append((lf, [f"v_cndmask_b32 v{SBUF[1] + r}, v{VNEG}, v{SBUF[0] + r}, s[{MASKS[r]}:{MASKS[r] + 1}]"
                         for r in range(16)], lb))

    def maxblk(i):
        s = SBUF[i % 3]
        ta, tb = (VM, VM2) if i == 1 else (VT, VM2)
        if i >= 2:
            a(f"s_cmp_le_u32 s46, {order[i]}")
            a("s_cselect_b64 vcc, -1, 0")
        a(f"v_max3_f32 v{ta}, v{s}, v{s + 1}, v{s + 2}")
        a(f"v_max3_f32 v{tb}, v{s + 3}, v{s + 4}, v{s + 5}")
        for x in range(5):
            t = (ta, tb)[x & 1]
            a(f"v_max3_f32 v{t}, v{s + 6 + 2 * x}, v{s + 7 + 2 * x}, v{t}")
        a(f"v_max_f32 v{ta}, v{ta}, v{tb}")
        if i >= 2:
            a(f"v_cndmask_b32 v{ta}, v{VNEG}, v{ta}, vcc")
            a(f"v_max_f32 v{VM}, v{VM}, v{ta}")

    if 0 in hooks.get("prio", {}):
        a(f"s_setprio {hooks['prio'][0]}")
    SZ = "sz" in OPT
    for x in kread(0) + kread(1) + kread(2) + vread(0) + vread(1):
        a(x)
    if not SZ:
        a("s_waitcnt lgkmcnt(8)")
        for x in smf(0, "0"):
            a(x)
        a("s_waitcnt lgkmcnt(6)")
        for x in smf(1, "0") + kread(3):
            a(x)
        a("s_nop 7")
        a("s_nop 7")
        merge()
        maxblk(1)
        a(f"v_mov_b32 v{VT}, v{VM}")
        a("s_nop 1")
        a(f"v_permlane32_swap_b32 v{VM}, v{VT}")
        a("s_nop 1")
        a(f"v_max_f32 v{VM}, v{VM}, v{VT}")
        for r in range(16):
            a(f"v_sub_f32 v{CM + r}, 0, v{VM}")
    hook("mid")
    cm, o, ls = ("0" if SZ else vr(CM, 16)), vr(OA, 16), vr(LS, 4)

    def pv(i):
        s = SBUF[i % 3]
        if i == 1:
            return [f"v_mfma_f32_32x32x16_bf16 {o}, {vr(VB[0], 4)}, {vr(s + 8, 4)}, 0",
                    f"v_mfma_f32_16x16x32_bf16 {ls}, {vr(ONE, 4)}, {vr(s, 4)}, 0",
                    f"v_mfma_f32_32x32x16_bf16 {o}, {vr(VB[0] + 4, 4)}, {vr(s + 12, 4)}, {o}",
                    f"v_mfma_f32_16x16x32_bf16 {ls}, {vr(ONE, 4)}, {vr(s + 4, 4)}, {ls}",
                    f"v_mfma_f32_32x32x16_bf16 {o}, {vr(VB[1], 4)}, {vr(P0, 4)}, {o}",
                    f"v_mfma_f32_32x32x16_bf16 {o}, {vr(VB[1] + 4, 4)}, {vr(P0 + 4, 4)}, {o}"]
        v = VB[i % 3]
        return [f"v_mfma_f32_32x32x16_bf16 {o}, {vr(v, 4)}, {vr(s, 4)}, {o}",
                f"v_mfma_f32_16x16x32_bf16 {ls}, {vr(ONE, 4)}, {vr(s, 4)}, {ls}",
                f"v_mfma_f32_32x32x16_bf16 {o}, {vr(v + 4, 4)}, {vr(s + 4, 4)}, {o}",
                f"v_mfma_f32_16x16x32_bf16 {ls}, {vr(ONE, 4)}, {vr(s + 4, 4)}, {ls}"]

    def valu(i):
        s = SBUF[i % 3]
        return [(f"v_exp_f32 v{s + r}, v{s + r}", 8) for r in range(16)] + \
               [(f"v_cvt_pk_bf16_f32 v{s + j}, v{s + 2 * j}, v{s + 2 * j + 1}", 4) for j in range(8)]

    def weave(ms, vs):
        vs = list(vs)
        for m in ms:
            a(m)
            need = (32 if "32x32" in m else 16) - 8
            while vs and need > 0:
                x, c = vs.pop(0)
                a(x)
                need -= c
        for x, c in vs:
            a(x)

    fin = a.newlabel("afin")
    if SZ:
        for i in range(3):
            a(f"s_waitcnt lgkmcnt({8 - 2 * i})")
            for x in smf(i, cm):
                a(x)
        for x in kread(3):
            a(x)
        merge()
    else:
        a("s_waitcnt lgkmcnt(6)")
        for x in smf(2, cm):
            a(x)
        for r in range(16):
            a(f"v_sub_f32 v{SBUF[1] + r}, v{SBUF[1] + r}, v{VM}")
    s = SBUF[1]
    for x, c in valu(1):
        a(x)
    for j in range(8):
        a(f"v_and_b32 v{s + 8 + j}, v{s + j}, v{PM + j}")
    for j in range(8):
        a(f"v_xor_b32 v{P0 + j}, v{s + j}, v{s + 8 + j}")
    blk = hooks.get("blk", {})
    for i in range(2, 9):
        ex = a.newlabel("aexit")
        a("s_waitcnt lgkmcnt(0)")
        a(f"s_cmp_gt_u32 s46, {order[i]}")
        a(f"s_cbranch_scc1 {ex}")
        ool.append((ex, pv(i - 1) + [x for k in range(i, 9) for x in blk.get(k, [])], fin))
        if i in hooks.get("prio", {}):
            a(f"s_setprio {hooks['prio'][i]}")
        for x in blk.get(i, []):
            a(x)
        for x in vread(i) + (kread(i + 2) if i + 2 < 9 else []):
            a(x)
        weave((smf(i + 1, cm) if i + 1 < 9 else []) + pv(i - 1), valu(i))
    a("s_waitcnt lgkmcnt(0)")
    for x in pv(8):
        a(x)
    a.label(fin)
    if 9 in hooks.get("prio", {}):
        a(f"s_setprio {hooks['prio'][9]}")
    hook("end")
    a("s_nop 7")
    a("s_nop 3")
    a(f"v_rcp_f32 v{VT}, v{LS}")
    a(f"v_mul_f32 v{VM2}, 0, v{OA}")
    for r in range(1, 16):
        a(f"v_fmac_f32 v{LS if r & 1 else VM2}, 0, v{OA + r}")
    a(f"v_add_f32 v{VM2}, v{VM2}, v{LS}")
    a(f"v_add_f32 v{VM2}, v{VM2}, v{VT}")
    a(f"v_cmp_gt_f32 vcc, 0x{0x3f800000 + (optval('thr', 30) << 23):x}, v{VM2}")
    a(f"s_mov_b32 s101, {int(role == 'M')}")
    a("s_nop 0")
    a("s_cmp_eq_u64 vcc, -1")
    a("s_cbranch_scc0 L_exact")
    a.label(f"L_norm{role}")
    for r in range(16):
        a(f"v_mul_f32 v{OA + r}, v{OA + r}, v{VT}")
    for j in range(8):
        a(f"v_cvt_pk_bf16_f32 v{OA + j}, v{OA + 2 * j}, v{OA + 2 * j + 1}")
    a(f"buffer_store_dwordx4 {vr(OA, 4)}, v1, {S(SWS)}, s47 offen{SC}")
    a(f"buffer_store_dwordx4 {vr(OA + 4, 4)}, v1, {S(SWS)}, s47 offen offset:1024{SC}")


def emit_exact(a):
    s, k, v, cm = SBUF[0], KB[0], VB[0], CM
    VD, VN = SBUF[1], SBUF[1] + 1
    a.label("L_exact")
    a("s_waitcnt vmcnt(0) lgkmcnt(0)")
    a(f"v_and_b32 v{VD}, 31, v0")
    a(f"v_lshrrev_b32 v{VN}, 5, v0")
    a(f"v_lshlrev_b32 v{VN}, 2, v{VN}")
    a(f"v_sub_u32 v{VD}, v{VD}, v{VN}")
    a(f"v_mov_b32 v{VN}, 0xf149f2ca")
    a(f"v_mov_b32 v{VM}, v{VN}")
    a("s_lshl_b32 s4, s34, 1")
    a("s_add_u32 s4, s4, s41")
    a("s_lshl_b32 s4, s4, 6")
    a("s_add_u32 s4, s4, s45")
    a("s_lshl_b32 s4, s4, 11")
    a(f"s_add_u32 s4, s4, 0x{WS_KF - 8 * 2048:x}")
    a("s_sub_u32 s5, 8, s45")
    a("s_cmp_lt_u32 s45, 8")
    a("s_cselect_b32 s5, s5, 0")
    for r in range(16):
        a(f"v_mov_b32 v{cm + r}, 0")
        a(f"v_mov_b32 v{OA + r}, 0")
    for r in range(4):
        a(f"v_mov_b32 v{LS + r}, 0")
    a("s_mov_b32 s9, 0")
    a.label("L_expass")
    a("s_mov_b32 s6, s5")
    a.label("L_extile")
    a("s_lshl_b32 s7, s6, 11")
    a("s_add_u32 s7, s7, s4")
    a(f"s_add_u32 s8, s7, 0x{WS_VF - WS_KF:x}")
    for st in range(2):
        a(f"buffer_load_dwordx4 {vr(k + 4 * st, 4)}, v1, {S(SWS)}, s7 offen offset:{1024 * st}")
        a(f"buffer_load_dwordx4 {vr(v + 4 * st, 4)}, v1, {S(SWS)}, s8 offen offset:{1024 * st}")
    a("s_waitcnt vmcnt(0)")
    a(f"v_mfma_f32_32x32x16_bf16 {vr(s, 16)}, {vr(k, 4)}, {vr(QC, 4)}, {vr(cm, 16)}")
    a(f"v_mfma_f32_32x32x16_bf16 {vr(s, 16)}, {vr(k + 4, 4)}, {vr(QC + 4, 4)}, {vr(s, 16)}")
    a("s_nop 7")
    a("s_nop 7")
    for rel, op in ((8, "le"), (0, "gt")):
        a(f"s_cmp_lg_u32 s6, {rel}")
        a(f"s_cbranch_scc1 L_exm{rel}")
        for r in range(16):
            a(f"v_cmp_{op}_i32 vcc, {8 * (r >> 2) + (r & 3)}, v{VD}")
            a(f"v_cndmask_b32 v{s + r}, v{VN}, v{s + r}, vcc")
        a.label(f"L_exm{rel}")
    a("s_cmp_lg_u32 s9, 0")
    a("s_cbranch_scc1 L_exp2")
    for r in range(16):
        a(f"v_max_f32 v{VM}, v{VM}, v{s + r}")
    a("s_branch L_exnext")
    a.label("L_exp2")
    for r in range(16):
        a(f"v_exp_f32 v{s + r}, v{s + r}")
    a("s_nop 0")
    for j in range(8):
        a(f"v_cvt_pk_bf16_f32 v{s + j}, v{s + 2 * j}, v{s + 2 * j + 1}")
    a("s_nop 1")
    for st in range(2):
        a(f"v_mfma_f32_32x32x16_bf16 {vr(OA, 16)}, {vr(v + 4 * st, 4)}, {vr(s + 4 * st, 4)}, {vr(OA, 16)}")
        a(f"v_mfma_f32_16x16x32_bf16 {vr(LS, 4)}, {vr(ONE, 4)}, {vr(s + 4 * st, 4)}, {vr(LS, 4)}")
    a("s_nop 7")
    a("s_nop 7")
    a.label("L_exnext")
    a("s_add_u32 s6, s6, 1")
    a("s_cmp_le_u32 s6, 8")
    a("s_cbranch_scc1 L_extile")
    a("s_cmp_lg_u32 s9, 0")
    a("s_cbranch_scc1 L_exdone")
    a(f"v_mov_b32 v{VT}, v{VM}")
    a("s_nop 1")
    a(f"v_permlane32_swap_b32 v{VM}, v{VT}")
    a("s_nop 1")
    a(f"v_max_f32 v{VM}, v{VM}, v{VT}")
    for r in range(16):
        a(f"v_sub_f32 v{cm + r}, 0, v{VM}")
    a("s_mov_b32 s9, 1")
    a("s_branch L_expass")
    a.label("L_exdone")
    a(f"v_rcp_f32 v{VT}, v{LS}")
    a("s_cmp_eq_u32 s101, 1")
    a("s_cbranch_scc1 L_normM")
    a("s_branch L_normH")


def emit_conv(a, hooks):
    ACC, FB = 8, [40, 104]
    VA, VBB, VEB, VSO = 168, 172, 173, 174
    a("v_and_b32 v2, 15, v0")
    a("v_lshrrev_b32 v3, 4, v0")
    a("v_add_u32 v4, 1, v2")
    a("v_and_b32 v5, 1, v4")
    a("v_sub_u32 v4, v4, v5")
    a("v_lshl_add_u32 v4, v3, 3, v4")
    a("v_lshlrev_b32 v4, 1, v4")
    a(f"v_mul_u32_u24 v5, {CPY}, v5")
    a(f"v_add3_u32 v{VA}, v4, v5, s46")
    for i in range(1, 4):
        a(f"v_add_u32 v{VA + i}, {1024 * i}, v{VA}")
    a("v_lshlrev_b32 v4, 5, v2")
    a("v_lshlrev_b32 v5, 4, v3")
    a(f"v_sub_u32 v{VBB}, v5, v4")
    a(f"v_add_u32 v{VBB}, {URO + 480}, v{VBB}")
    a(f"v_add_u32 v{VBB}, s86, v{VBB}")
    a("v_lshlrev_b32 v5, 3, v3")
    a(f"v_add_u32 v{VSO}, v4, v5")
    a(f"v_sub_u32 v{VEB}, {URO + 504}, v{VSO}")
    a(f"v_add_u32 v{VEB}, s86, v{VEB}")

    def creads(j, buf):
        f = FB[buf]
        out = []
        for q in range(8):
            o = (q & 1) * 128 + 16 * j
            va = VA + (q >> 1)
            out.append(f"ds_read2_b32 {vr(f + 4 * q, 2)}, v{va} offset0:{o} offset1:{o + 1}")
            out.append(f"ds_read2_b32 {vr(f + 4 * q + 2, 2)}, v{va} offset0:{o + 2} offset1:{o + 3}")
            out.append(f"ds_read_b128 {vr(f + 32 + 4 * q, 4)}, v{VBB} offset:{512 * (7 - q) + 64 * j}")
        return out

    pairs = [(q, dl) for q in range(8) for dl in range(8 - q)]
    pairs.sort(key=lambda x: (max(x[0], x[1]), x[0] + x[1], x[0]))
    seq, rest = [], list(pairs)
    while rest:
        pick = next((p for p in rest if all(p[0] + p[1] != s[0] + s[1] for s in seq[-2:])), rest[0])
        rest.remove(pick)
        seq.append(pick)

    def cmfmas(j, buf):
        f = FB[buf]
        seen, out = set(), []
        for (q, dl) in seq:
            nt = q + dl
            d = vr(ACC + 4 * nt, 4)
            c = "0" if (j == 0 and nt not in seen) else d
            seen.add(nt)
            out.append(f"v_mfma_f32_16x16x32_bf16 {d}, {vr(f + 4 * q, 4)}, {vr(f + 32 + 4 * dl, 4)}, {c}")
        return out

    extra = list(hooks.get("extra", []))
    if "start" in hooks:
        hooks["start"]()
    for i, r in enumerate(creads(0, 0)):
        a(r)
        if i % 12 == 11:
            a("s_waitcnt lgkmcnt(4)")
    def epi(nt):
        k0, k1 = FB[0] + 2 * nt, FB[0] + 2 * nt + 1
        t = FB[0] + 16 + 4 * nt
        ac = ACC + 4 * nt
        pre = [f"v_and_b32 v{t}, 0xffff0000, v{k1}", f"v_lshlrev_b32 v{t + 1}, 16, v{k1}",
               f"v_and_b32 v{t + 2}, 0xffff0000, v{k0}", f"v_lshlrev_b32 v{t + 3}, 16, v{k0}"]
        post = [f"v_fmac_f32 v{ac + e}, s39, v{t + e}" for e in range(4)] + \
               [f"v_cvt_pk_bf16_f32 v{YP + 2 * nt}, v{ac}, v{ac + 1}",
                f"v_cvt_pk_bf16_f32 v{YP + 2 * nt + 1}, v{ac + 2}, v{ac + 3}"]
        return pre, post

    def last_step():
        f = FB[1]
        left = {nt: [(q, nt - q) for q in range(nt + 1)] for nt in range(8)}
        a("s_waitcnt lgkmcnt(0)")
        for nt in range(8):
            a(f"ds_read_b64 {vr(FB[0] + 2 * nt, 2)}, v{VEB} offset:{512 * (7 - nt)}")
        hist, n, ready, pre = [], 0, [], [x for nt in range(8) for x in epi(nt)[0]]
        done = {}
        for i in range(36):
            rem = 36 - i
            cand = [nt for nt in range(8) if left[nt] and nt not in hist[-2:]]
            urgent = [nt for nt in cand if 3 * len(left[nt]) - 2 >= rem - 2]
            nt = max(urgent, key=lambda x: len(left[x])) if urgent else cand[0] if cand else \
                max((x for x in range(8) if left[x] and x != hist[-1]), key=lambda x: len(left[x]))
            q, dl = left[nt].pop()
            d = vr(ACC + 4 * nt, 4)
            a(f"v_mfma_f32_16x16x32_bf16 {d}, {vr(f + 4 * q, 4)}, {vr(f + 32 + 4 * dl, 4)}, {d}")
            n += 1
            hist.append(nt)
            if not left[nt]:
                done[nt] = n
            if i == 5:
                a("s_waitcnt lgkmcnt(0)")
                if "eb" in OPT:
                    hooks["bar"]()
            if i < 5:
                continue
            for _ in range(2):
                for x in sorted(done):
                    if n - done[x] >= 10 and len(pre) <= 4 * (7 - x):
                        ready += epi(x)[1]
                        del done[x]
                if ready:
                    a(ready.pop(0)); n += 1
                elif pre:
                    a(pre.pop(0)); n += 1
        for x in pre + ready:
            a(x); n += 1
        for x in sorted(done, key=done.get):
            if n - done[x] < 10:
                a(f"s_nop {min(7, 9 - (n - done[x]))}")
                a("s_nop 1")
                n += 10
            for y in epi(x)[1]:
                a(y); n += 1
        return [f"buffer_store_dwordx2 {vr(YP + 2 * nt, 2)}, v{VSO}, {S(SWS)}, s36 offen offset:{512 * nt}{SC}" for nt in range(8)]

    for j in range(8):
        if j == 7 and "ce" in OPT:
            assert not extra
            return last_step()
        m = cmfmas(j, j & 1)
        r = creads(j + 1, (j + 1) & 1) if j < 7 else \
            [f"ds_read_b64 {vr(FB[0] + 2 * nt, 2)}, v{VEB} offset:{512 * (7 - nt)}" for nt in range(8)]
        a("s_waitcnt lgkmcnt(0)")
        ri = 0
        if "cnolds" in OPT and j < 7:
            r = []
        for i, mm in enumerate(m):
            if j < optval("cj", 8) or i < 4:
                a(mm if "cnomfma" not in OPT else "s_nop 3")
            if ri < len(r):
                a(r[ri]); ri += 1
            if j >= 1 and extra:
                a(extra.pop(0))
        assert ri == len(r)
    a("s_nop 7")
    a("s_waitcnt lgkmcnt(0)")
    stores = []
    for nt in range(8):
        k0, k1 = FB[0] + 2 * nt, FB[0] + 2 * nt + 1
        t = FB[0] + 16 + 4 * (nt & 1)
        ac = ACC + 4 * nt
        a(f"v_and_b32 v{t}, 0xffff0000, v{k1}")
        a(f"v_lshlrev_b32 v{t + 1}, 16, v{k1}")
        a(f"v_and_b32 v{t + 2}, 0xffff0000, v{k0}")
        a(f"v_lshlrev_b32 v{t + 3}, 16, v{k0}")
        for e in range(4):
            a(f"v_fmac_f32 v{ac + e}, s39, v{t + e}")
        a(f"v_cvt_pk_bf16_f32 v{YP + 2 * nt}, v{ac}, v{ac + 1}")
        a(f"v_cvt_pk_bf16_f32 v{YP + 2 * nt + 1}, v{ac + 2}, v{ac + 3}")
        st = f"buffer_store_dwordx2 {vr(YP + 2 * nt, 2)}, v{VSO}, {S(SWS)}, s36 offen offset:{512 * nt}{SC}"
        if "yearly" in OPT:
            a(st)
        else:
            stores.append(st)
    return stores


def emit_lds_wait(a, vaddr, off, t):
    lp, dn = a.newlabel("lw"), a.newlabel("lwd")
    a("s_mov_b32 s85, 0")
    a.label(lp)
    a(f"ds_read_b128 {vr(t, 4)}, v{vaddr} offset:{off}")
    a("s_waitcnt lgkmcnt(0)")
    a(f"v_and_b32 v{t}, v{t}, v{t + 1}")
    a(f"v_and_b32 v{t + 2}, v{t + 2}, v{t + 3}")
    a(f"v_and_b32 v{t}, v{t}, v{t + 2}")
    a("s_add_u32 s85, s85, 1")
    a(f"v_readfirstlane_b32 s80, v{t}")
    a("s_nop 1")
    a("s_cmp_lg_u32 s80, 0")
    a(f"s_cbranch_scc1 {dn}")
    a(f"s_cmp_lt_u32 s85, 0x{SPIN_LIMIT:x}")
    a(f"s_cbranch_scc1 {lp}")
    a.label(dn)


def p1_lists():
    KK, VV, WR = 124, 146, 162
    AK, AH, AS, AO = 174, 175, 176, 177
    KF_, WF_, RS_, TT, PO = 12, 56, 72, 104, 108
    soffs = ["0", "s50", "s51", "s52"]
    setup, loads, comp, stores = [], [], [], []
    a = setup.append
    a("v_lshrrev_b32 v24, 3, v0")
    a("v_and_b32 v25, 7, v0")
    a("s_lshl_b32 s80, s35, 6")
    a("s_lshl_b32 s81, s3, 2")
    a("s_add_u32 s81, s81, s44")
    a("s_lshl_b32 s81, s81, 5")
    a("v_lshlrev_b32 v24, 3, v24")
    a("v_add_u32 v24, s80, v24")
    a("v_lshlrev_b32 v25, 2, v25")
    a("v_add_u32 v25, s81, v25")
    a(f"v_lshlrev_b32 v{AK}, 11, v24")
    a(f"v_lshl_add_u32 v{AK}, v25, 1, v{AK}")
    a("s_mov_b32 s50, 4096")
    a("s_mov_b32 s51, 8192")
    a("s_mov_b32 s52, 12288")
    a(f"v_subrev_u32 v{AH}, 6144, v{AK}")
    a("v_mov_b32 v26, 0x80000000")
    a("v_cmp_gt_u32 vcc, 3, v24")
    a(f"v_lshlrev_b32 v{AO}, 12, v25")
    a("v_sub_u32 v24, 2040, v24")
    a(f"v_cndmask_b32 v{AH}, v{AH}, v26, vcc")
    a(f"v_lshlrev_b32 v{AS}, 3, v25")
    a(f"v_lshl_add_u32 v{AO}, v24, 1, v{AO}")
    if "uc" in OPT:
        a("v_and_b32 v24, 7, v0")
        a("v_lshrrev_b32 v25, 3, v0")
        a("v_sub_u32 v24, 7, v24")
        a("v_lshl_add_u32 v24, v24, 3, v25")
        a("v_lshlrev_b32 v170, 2, v24")
        a(f"ds_bpermute_b32 v{AO}, v170, v{AO}")
    loads.append(f"buffer_load_dwordx4 {vr(WR, 4)}, v{AS}, {S(SSH)}, 0 offen")
    loads.append(f"buffer_load_dwordx4 {vr(WR + 4, 4)}, v{AS}, {S(SSH)}, 0 offen offset:16")
    for i in range(3):
        loads.append(f"buffer_load_dwordx2 {vr(KK + 2 * i, 2)}, v{AH}, {S(SK)}, {soffs[i >> 1]} offen offset:{(i & 1) * 2048} {nt('p')}")
    for i in range(8):
        loads.append(f"buffer_load_dwordx2 {vr(KK + 6 + 2 * i, 2)}, v{AK}, {S(SK)}, {soffs[i >> 1]} offen offset:{(i & 1) * 2048} {nt('p')}")
    for i in range(8):
        loads.append(f"buffer_load_dwordx2 {vr(VV + 2 * i, 2)}, v{AK}, {S(SV)}, {soffs[i >> 1]} offen offset:{(i & 1) * 2048} {nt('p')}")
    a = comp.append
    if "pk" in OPT:
        for dd in range(4):
            for h2 in range(2):
                src = WR + 2 * dd + h2
                a(f"v_lshlrev_b32 v{WF_ + 8 * h2 + dd}, 16, v{src}")
                a(f"v_and_b32 v{WF_ + 8 * h2 + 4 + dd}, 0xffff0000, v{src}")

        def kun(i):
            for h2 in range(2):
                src = KK + 2 * i + h2
                a(f"v_lshlrev_b32 v{KF_ + 4 * i + 2 * h2}, 16, v{src}")
                a(f"v_and_b32 v{KF_ + 4 * i + 2 * h2 + 1}, 0xffff0000, v{src}")
        for i in range(3):
            kun(i)
        for s_ in range(8):
            kun(s_ + 3)
            for h2 in range(2):
                src = VV + 2 * s_ + h2
                a(f"v_lshlrev_b32 v{TT + 2 * h2}, 16, v{src}")
                a(f"v_and_b32 v{TT + 2 * h2 + 1}, 0xffff0000, v{src}")
            for j in range(4):
                for dd in (0, 2):
                    r, k_, w_ = vr(RS_ + 4 * s_ + dd, 2), vr(KF_ + 4 * (s_ + 3 - j) + dd, 2), vr(WF_ + 4 * j + dd, 2)
                    a(f"v_pk_fma_f32 {r}, {k_}, {w_}, {r}" if j else f"v_pk_mul_f32 {r}, {k_}, {w_}")
            for dd in (0, 2):
                r = vr(RS_ + 4 * s_ + dd, 2)
                a(f"v_pk_mul_f32 {r}, {r}, {vr(TT + dd, 2)}")
        a = lambda x: None
    for dd in range(4):
        for h2 in range(2):
            src = WR + 2 * dd + h2
            a(f"v_lshlrev_b32 v{WF_ + 4 * dd + 2 * h2}, 16, v{src}")
            a(f"v_and_b32 v{WF_ + 4 * dd + 2 * h2 + 1}, 0xffff0000, v{src}")
    for i in range(11):
        for h2 in range(2):
            src = KK + 2 * i + h2
            a(f"v_lshlrev_b32 v{KF_ + 4 * i + 2 * h2}, 16, v{src}")
            a(f"v_and_b32 v{KF_ + 4 * i + 2 * h2 + 1}, 0xffff0000, v{src}")
    for s_ in range(8):
        for dd in range(4):
            r = RS_ + 4 * s_ + dd
            a(f"v_mul_f32 v{r}, v{KF_ + 4 * (s_ + 3) + dd}, v{WF_ + 4 * dd}")
            for j in range(1, 4):
                a(f"v_fmac_f32 v{r}, v{KF_ + 4 * (s_ + 3 - j) + dd}, v{WF_ + 4 * dd + j}")
    for s_ in range(8):
        for dd in range(4):
            r = RS_ + 4 * s_ + dd
            src = VV + 2 * s_ + (dd >> 1)
            t = TT + (dd & 1)
            a(f"v_and_b32 v{t}, 0xffff0000, v{src}" if dd & 1 else f"v_lshlrev_b32 v{t}, 16, v{src}")
            a(f"v_mul_f32 v{r}, v{r}, v{t}")
    stores.append(f"s_mov_b32 s53, 0x{WS_UR:x}")
    for dd in range(4 * ("uc" in OPT)):
        o = PO + 4 * dd
        for j in range(4):
            comp.append(f"v_cvt_pk_bf16_f32 v{o + j}, v{RS_ + 4 * (7 - 2 * j) + dd}, v{RS_ + 4 * (6 - 2 * j) + dd}")
        for j in range(4):
            comp.append(f"ds_bpermute_b32 v{o + j}, v170, v{o + j}")
    for dd in range(4):
        o = PO + 4 * dd
        if "uc" in OPT:
            stores.append(f"s_waitcnt lgkmcnt({12 - 4 * dd})")
        for j in range(4 * ("uc" not in OPT)):
            stores.append(f"v_cvt_pk_bf16_f32 v{o + j}, v{RS_ + 4 * (7 - 2 * j) + dd}, v{RS_ + 4 * (6 - 2 * j) + dd}")
        stores.append(f"buffer_store_dwordx4 {vr(o, 4)}, v{AO}, {S(SWS)}, s53 offen{SC}")
        if dd < 3:
            stores.append("s_add_u32 s53, s53, 4096")
    return setup, loads, comp, stores


VZ = 252
VLF = 251
SRDS = [(SX, 48, 4 * MB), (SW, 56, 6 * MB), (SWS, 88, WS_SIZE), (SK, 8, 4 * MB), (SV, 16, 4 * MB),
        (SSH, 24, 8192), (SHK, 32, 4 * MB), (SWO, 64, 2 * MB), (SQ, 0, 4 * MB), (SOUT, 72, 8 * MB),
        (SDBG, 80, 256)]


def late_setup(a, ts, helper=True):
    if helper:
        a("s_lshl_b32 s84, s3, 5")
        a("s_add_u32 s84, s84, s35")
        a("s_lshl_b32 s80, s84, 3")
        a("s_load_dwordx2 s[76:77], s[36:37], s80")
    a("s_lshl_b32 s89, s2, 7")
    a("s_lshl_b32 s81, s32, 3")
    a("s_add_u32 s89, s89, s81")
    for (d, off, size) in SRDS[2:]:
        if not helper and d in (SK, SV, SSH, SHK):
            continue
        a(f"s_mov_b32 s{d + 2}, 0x{size:x}")
        a(f"s_mov_b32 s{d + 3}, 0x20000")
    a(f"v_mov_b32 v{VLF}, {L_FL}")
    ts.setup(a, SWS)


def g2_tile(a):
    a("s_and_b32 s86, s3, 1")
    a("s_lshl_b32 s86, s86, 1")
    a("s_bfe_u32 s80, s3, 0x10001")
    a("s_add_u32 s86, s86, s80")
    a("s_lshl_b32 s86, s86, 2")
    a("s_and_b32 s80, s35, 3")
    a("s_add_u32 s86, s86, s80")
    a("s_lshr_b32 s42, s3, 2")
    a("s_lshl_b32 s42, s42, 3")
    a("s_lshr_b32 s43, s35, 2")
    a("s_add_u32 s42, s42, s43")


def wo_addr(a0, t=4):
    a = lambda x: a0(re.sub(r"\bv([456])\b", lambda m: f"v{int(m.group(1)) - 4 + t}", x))
    a("v_lshrrev_b32 v4, 3, v0")
    a("v_and_b32 v5, 7, v0")
    a("v_bfe_u32 v6, v0, 4, 1")
    a("v_lshlrev_b32 v6, 2, v6")
    a("v_xor_b32 v6, v6, v5")
    if "g16" in OPT:
        a("v_bfe_u32 v5, v0, 5, 1")
        a("v_lshlrev_b32 v5, 1, v5")
        a("v_xor_b32 v6, v6, v5")
    a("v_lshlrev_b32 v250, 11, v4")
    a("v_lshl_add_u32 v250, v6, 4, v250")
    a("s_lshl_b32 s80, s42, 7")
    a("v_add_u32 v250, s80, v250")
    a("s_lshl_b32 s84, s32, 11")
    a("s_lshl_b32 s88, s32, 15")


NE = 3


def wo_part(p, dst, dw=0):
    return [f"s_add_u32 m0, s84, {dst + dw * 2048}",
            f"s_add_u32 s81, s43, {p}",
            "s_and_b32 s81, s81, 7",
            "s_lshl_b32 s81, s81, 18",
            "s_add_u32 s81, s81, s88"] + ([f"s_add_u32 s81, s81, {dw * 32768}"] if dw else []) + [
            f"buffer_load_dwordx4 v250, {S(SWO)}, s81 offen lds",
            f"s_add_u32 s81, s81, {16384 - 1024}",
            f"buffer_load_dwordx4 v250, {S(SWO)}, s81 offen offset:1024 lds"]


def wo_early():
    b0 = optval("we", 3)
    return {b0 + p: wo_part(p, L_R0 + p * 16384) for p in range(NE)}


P4 = [x * 4096 for x in list(range(0, 6)) + list(range(9, 18)) + list(range(21, 26))]
WLOC = [L_R0 + k * 2048 for k in range(8 * NE)] + [P4[k >> 1] + (k & 1) * 2048 for k in range(40)]
NLATE = 10


def nlate():
    return 2 * NLATE - optval("gm", 0) if "g2e" in OPT else NLATE


def blk7_flag():
    b = Asm()
    if "g2e" in OPT:
        b("s_waitcnt vmcnt(0)")
    lds_flag_set(b, 32, 16, 158)
    return [x.strip() for x in b.L]


def wo_late(a, ts, nyoung, helper, mid=None):
    def stage():
        a("s_and_b32 s83, s32, 3")
        a("s_lshl_b32 s82, s83, 10")
        a("s_lshl_b32 s81, s43, 4")
        a("s_add_u32 s83, s83, s81")
        for i in range(NLATE if "g2e" not in OPT else nlate() if helper else optval("gm", 0)):
            p = 2 * i + int(helper) if "g2e" not in OPT else i if helper else nlate() + i
            a(f"s_add_u32 m0, s82, {P4[p]}")
            a(f"s_add_u32 s81, s83, {16 * NE + 4 * p}")
            a("s_and_b32 s81, s81, 127")
            a("s_lshl_b32 s81, s81, 14")
            if "nolate" not in OPT:
                a(f"buffer_load_dwordx4 v250, {S(SWO)}, s81 offen lds")

    if "g2e" in OPT:
        a(f"s_waitcnt vmcnt({nyoung})")
        emit_publish(a, FL_O, 220, VZ)
        emit_lds_wait(a, VLF, 64, 8)
        emit_lds_wait(a, VLF, 80, 8)
        ts.stamp(a, 7)
        stage()
        return
    ES = optval("es", 0)
    if ES == 1:
        emit_lds_wait(a, VLF, 64, 8)
        emit_lds_wait(a, VLF, 80, 8)
        stage()
        a(f"s_waitcnt vmcnt({nyoung + NLATE})")
    else:
        a(f"s_waitcnt vmcnt({nyoung})")
    emit_publish(a, FL_O, 220, VZ)
    lds_flag_set(a, 32, 8, 222)
    if mid:
        mid()
    if ES == 2:
        emit_lds_wait(a, VLF, 64, 8)
        emit_lds_wait(a, VLF, 80, 8)
        stage()
    if ES == 0 or not helper:
        emit_lds_wait(a, VLF, 32, 8)
        emit_lds_wait(a, VLF, 48, 8)
    ts.stamp(a, 7)
    if ES == 0:
        stage()


def lds_flag_set(a, word_s, word_add, t):
    a(f"s_lshl_b32 s80, s{word_s}, 2")
    a(f"v_add_u32 v{t}, s80, v{VLF}")
    a(f"v_mov_b32 v{t + 1}, 1")
    a(f"ds_write_b32 v{t}, v{t + 1} offset:{4 * word_add}")


def m_path(a, ts, ool):
    ACC = 80
    PD = optval('pd', 2)
    FR = [16, 36, 56, 192, 212][:PD + 1]
    NB = PD + 1
    LZ = 'lz' in OPT
    XA, WB, XA2 = 2, 6, 8
    def code_touch():
        lcp = a.newlabel("nocp")
        a("s_cmp_lg_u32 s32, 1")
        a(f"s_cbranch_scc1 {lcp}")
        a("s_mov_b32 exec_hi, 0")
        a("buffer_load_dword v188, v189, s[52:55], s56 offen")
        a("s_mov_b32 exec_hi, -1")
        a.label(lcp)

    CQ = [int(o[2:]) for o in OPT if o.startswith("cq")]
    if "cp" in OPT or CQ:
        a("s_getpc_b64 s[52:53]")
        a.label("L_pc")
        a(f"s_sub_u32 s52, s52, L_pc-{NAME}_kernel")
        a("s_subb_u32 s53, s53, 0")
        a(f"s_mov_b32 s54, L_end-{NAME}_kernel")
        a("s_mov_b32 s55, 0x20000")
        a("s_lshl_b32 s56, s35, 11")
        a("v_lshlrev_b32 v189, 6, v0")
    if "cp" in OPT:
        code_touch()
    SW_ = {}
    for o in OPT:
        if o.startswith("sw"):
            m, n = o[2:].split("_")
            SW_[int(n)] = int(m)
    if SW_:
        a("s_lshl_b32 s80, s35, 2")
        a("s_add_u32 s80, s80, s32")
        a("s_mul_i32 s81, s80, 6")
        a("v_and_b32 v3, 7, v0")
        a("v_lshrrev_b32 v184, 3, v0")
        a("v_mul_u32_u24 v184, 768, v184")
        a("v_add3_u32 v184, v184, v3, s81")
        a("v_lshlrev_b32 v184, 11, v184")
        a("s_lshr_b32 s81, s3, 2")
        a("s_lshl_b32 s81, s81, 10")
        a("s_add_u32 s81, s81, 0x180")
        a("v_add_u32 v184, s81, v184")
        a("s_bitcmp1_b32 s3, 1")
        a("s_cselect_b32 s81, 0, 6")
        a("v_mov_b32 v2, 0x80000000")
        a("v_cmp_gt_u32 vcc, s81, v3")
        a("s_nop 1")
        a("v_cndmask_b32 v184, v2, v184, vcc")

    def slow_touch(n):
        if n in SW_:
            a(f"s_mov_b64 exec, 0x{sum(0xff << (8 * q) for q in range(4) if SW_[n] >> q & 1):x}")
            a(f"buffer_load_dword v177, v184, {S(SW)}, 0 offen")
            a("s_mov_b64 exec, -1")

    MS = [o[2:] for o in OPT if o.startswith("ms")]
    ltk = a.newlabel("notok")
    if MS:
        a("s_or_b32 s80, s2, s32")
        a(f"s_cbranch_scc1 {ltk}")
        a(f"s_mov_b32 s{SDBG + 2}, 256")
        a(f"s_mov_b32 s{SDBG + 3}, 0x20000")
    else:
        a("s_waitcnt lgkmcnt(0)")
        slow_touch(99)
        late_setup(a, ts, False)
        a("s_cmp_lg_u32 s89, 0")
        a(f"s_cbranch_scc1 {ltk}")
    a("s_memrealtime s[78:79]")
    a("s_waitcnt lgkmcnt(0)")
    a("s_or_b32 s78, s78, 1")
    a("v_mov_b32 v180, s78")
    a("v_mov_b32 v181, s79")
    a("s_mov_b64 exec, 1")
    a(f"buffer_store_dwordx2 v[180:181], v{VZ}, {S(SDBG)}, 0 offen{SC}")
    a("s_mov_b64 exec, -1")
    a.label(ltk)
    a("s_and_b32 s44, s32, 1")
    a("s_lshr_b32 s41, s32, 1")
    a("s_lshl_b32 s40, s44, 1")
    M16 = "m16" in OPT
    fa = a
    if M16:
        a("v_and_b32 v10, 15, v0")
        a("v_lshrrev_b32 v11, 4, v0")
        a("v_lshrrev_b32 v12, 1, v10")
        a("v_xor_b32 v12, v12, v11")
        a("s_lshl_b32 s46, s44, 13")
        a("v_lshl_add_u32 v13, v10, 7, s46")
        a("v_lshl_add_u32 v2, v12, 4, v13")
        a("v_xor_b32 v3, 64, v2")
        a("v_add_u32 v4, 81920, v2")
        a("v_add_u32 v5, 81920, v3")
        a("v_lshrrev_b32 v12, 2, v10")
        a("v_lshl_add_u32 v12, v11, 3, v12")
        a("v_mul_u32_u24 v12, 384, v12")
        a("v_lshrrev_b32 v13, 3, v10")
        a("v_xor_b32 v13, s41, v13")
        a("v_lshl_add_u32 v12, v13, 6, v12")
        a("v_and_b32 v13, 1, v11")
        a("v_lshl_add_u32 v12, v13, 5, v12")
        a("v_and_b32 v13, 3, v10")
        a("v_lshl_add_u32 v12, v13, 3, v12")
        a("v_add_u32 v6, 16384, v12")
        a("v_xor_b32 v7, 32, v6")
        a("v_add_u32 v8, 81920, v6")
        a("v_add_u32 v9, 81920, v7")
        a = lambda x: None
    a("v_and_b32 v8, 31, v0")
    a("v_lshrrev_b32 v9, 5, v0")
    a("v_lshrrev_b32 v10, 1, v8")
    a("v_and_b32 v10, 7, v10")
    a("v_lshlrev_b32 v11, 7, v8")
    a("s_lshl_b32 s46, s44, 13")
    a("v_add_u32 v11, s46, v11")
    for ks in range(4):
        a(f"v_add_u32 v12, {2 * ks}, v9")
        a("v_xor_b32 v12, v12, v10")
        a(f"v_lshl_add_u32 v{XA + ks}, v12, 4, v11")
    a("v_and_b32 v10, 15, v0")
    a("v_lshrrev_b32 v11, 4, v0")
    a("v_lshrrev_b32 v12, 2, v10")
    a("v_lshl_add_u32 v12, v9, 3, v12")
    a(f"v_mul_u32_u24 v12, {128 if 'wl' in OPT else 384}, v12")
    a("v_lshrrev_b32 v13, 3, v10")
    a("v_xor_b32 v13, s41, v13")
    a("v_lshl_add_u32 v12, v13, 6, v12")
    a("v_and_b32 v13, 1, v11")
    a("v_lshl_add_u32 v12, v13, 5, v12")
    a("v_and_b32 v13, 3, v10")
    a("v_lshl_add_u32 v12, v13, 3, v12")
    a(f"v_add_u32 v{WB}, 16384, v12")
    a(f"v_add_u32 v{WB + 1}, {16384 + 81920}, v12")
    for ks in range(4):
        a(f"v_add_u32 v{XA2 + ks}, 81920, v{XA + ks}")
    a = fa

    def reads(t, ks, buf):
        st = slot(t)
        f = FR[buf]
        xa = (XA2 if st >= 2 else XA) + ks
        xo = (st & 1) * 40960
        wb = WB + (st >> 1)
        wo = (st & 1) * 40960 + 16 * ks * 384
        if "wl" in OPT:
            tr = lambda i: f"ds_read_b64_tr_b16 {vr(f + 8 + 2 * i, 2)}, v{wb} offset:{wo + (i >> 1) * 2048 + (i & 1) * 512}"
            return [f"ds_read_b128 {vr(f, 4)}, v{xa} offset:{xo}", tr(0), tr(1),
                    f"ds_read_b128 {vr(f + 4, 4)}, v{xa} offset:{xo + 4096}", tr(2), tr(3), tr(4), tr(5)]
        return [f"ds_read_b128 {vr(f, 4)}, v{xa} offset:{xo}",
                f"ds_read_b64_tr_b16 {vr(f + 8, 2)}, v{wb} offset:{wo}",
                f"ds_read_b64_tr_b16 {vr(f + 10, 2)}, v{wb} offset:{wo + 4 * 384}",
                f"ds_read_b128 {vr(f + 4, 4)}, v{xa} offset:{xo + 4096}",
                f"ds_read_b64_tr_b16 {vr(f + 12, 2)}, v{wb} offset:{wo + 128}",
                f"ds_read_b64_tr_b16 {vr(f + 14, 2)}, v{wb} offset:{wo + 128 + 4 * 384}",
                f"ds_read_b64_tr_b16 {vr(f + 16, 2)}, v{wb} offset:{wo + 256}",
                f"ds_read_b64_tr_b16 {vr(f + 18, 2)}, v{wb} offset:{wo + 256 + 4 * 384}"]

    mfc = [0]

    def mfmas(buf, first, last):
        mfc[0] += 1
        f = FR[buf]
        X = [vr(f, 4), vr(f + 4, 4)]
        W = [vr(f + 8, 4), vr(f + 12, 4), vr(f + 16, 4)]
        out = []
        for part in ((1, 2, 0) if last else (0, 1, 2)):
            for rt in range(2):
                d = vr(ACC + 16 * (2 * part + rt), 16)
                c = "0" if first else d
                if "h16" in OPT:
                    b_ = ACC + 16 * (2 * part + rt) + 8 * (mfc[0] & 1)
                    w2 = W[(part + 1) % 3]
                    out.append(f"v_mfma_f32_16x16x32_bf16 {vr(b_, 4)}, {W[part]}, {X[rt]}, {vr(b_, 4)}\n    "
                               f"v_mfma_f32_16x16x32_bf16 {vr(b_ + 4, 4)}, {w2}, {X[rt]}, {vr(b_ + 4, 4)}")
                elif part < 2:
                    out.append(f"v_mfma_f32_32x32x16_bf16 {d}, {W[part]}, {X[rt]}, {c}")
                else:
                    out.append(f"v_mfma_f32_32x32x16_bf16 {d}, {X[rt]}, {W[part]}, {c}")
        return out

    main_a = a
    if MS:
        a = Asm()
        late_setup(a, ts, False)
    a("s_lshl_b32 s46, s34, 1")
    a("s_add_u32 s46, s46, s41")
    a("s_lshl_b32 s46, s46, 6")
    a("s_lshl_b32 s47, s33, 2")
    a("s_add_u32 s46, s46, s47")
    a("s_add_u32 s48, s46, s40")
    a("s_lshl_b32 s48, s48, 11")
    a(f"s_add_u32 s49, s48, 0x{WS_VF:x}")
    a(f"s_add_u32 s48, s48, 0x{WS_KF:x}")
    a(f"s_mul_i32 s80, s41, {L_HD}")
    a("s_lshl_b32 s81, s44, 12")
    a("s_add_u32 s80, s80, s81")
    a("v_add_u32 v182, s80, v1")
    a("s_lshl_b32 s80, s32, 11")
    a(f"s_add_u32 s80, s80, {L_QH}")
    a("v_add_u32 v183, s80, v1")

    def setup2():
        a("s_add_u32 s38, s33, s44")
        a("s_sub_u32 s80, s38, 2")
        a("s_max_i32 s80, s80, 0")
        a("v_mov_b32 v20, s80")
        a("v_mov_b32 v21, s34")
        emit_wg_of(a, 190, 20, 21, 22)
        a("v_and_b32 v20, 1, v0")
        a("v_lshl_add_u32 v190, v20, 3, v190")
        a("s_lshl_b32 s80, s41, 4")
        a(f"s_add_u32 s80, s80, 0x{fbase(FL_K):x}")
        a("v_add_u32 v190, s80, v190")
        fshift(a, FL_K, 190)
        a("s_lshl_b32 s80, s44, 2")
        a("s_add_u32 s36, s46, s80")
        a("s_lshl_b32 s36, s36, 11")
        a(f"s_add_u32 s36, s36, 0x{WS_KF - 8 * 2048:x}")
        a(f"s_mul_i32 s37, s41, {L_HD}")
        a("s_lshl_b32 s80, s44, 13")
        a("s_add_u32 s37, s37, s80")
        a("; attention")
        emit_attn_setup(a, MASKS_M, 20)
        a("; projection")
        g2_tile(a)
        wo_addr(a, 20)
        a("s_lshl_b32 s80, s35, 2")
        a("s_add_u32 s80, s80, s32")
        a("s_lshl_b32 s80, s80, 6")
        a("v_add_u32 v20, s80, v0")
        a("v_lshrrev_b32 v198, 3, v20")
        a("v_lshlrev_b32 v198, 11, v198")
        a("v_and_b32 v20, 7, v20")
        a("v_lshl_add_u32 v198, v20, 7, v198")
        a("s_lshr_b32 s80, s3, 2")
        a("s_lshl_b32 s80, s80, 10")
        a("v_add_u32 v198, s80, v198")
        a("s_lshl_b32 s80, s35, 6")
        a("s_lshl_b32 s81, s32, 4")
        a("s_add_u32 s80, s80, s81")
        a("v_bfe_u32 v20, v0, 1, 4")
        a("v_add_u32 v20, s80, v20")
        a("v_lshlrev_b32 v20, 11, v20")
        a("v_and_b32 v21, 1, v0")
        a("v_lshl_add_u32 v20, v21, 7, v20")
        a("s_lshl_b32 s80, s3, 8")
        a("v_add_u32 v199, s80, v20")
        if optval("at", 0):
            a("v_and_b32 v20, 0xfffff800, v199")
            a("v_add_u32 v198, v20, v199")

    if "ls" not in OPT:
        setup2()
    KT, FT = optval("kt", -1), optval("ft", -1)
    if KT >= 0:
        a("v_and_b32 v185, 31, v0")
        a("v_lshlrev_b32 v185, 7, v185")
        a("v_lshrrev_b32 v20, 5, v0")
        a("v_lshl_add_u32 v185, v20, 22, v185")
    if FT >= 0:
        a("v_lshlrev_b32 v194, 15, v0")
        a("s_lshl_b32 s80, s2, 7")
        a(f"s_add_u32 s80, s80, 0x{WS_FL:x}")
        a("v_add_u32 v194, s80, v194")
        if "fl" in OPT and "nft" not in OPT:
            a("s_lshl_b32 s80, s2, 11")
            a(f"s_add_u32 s80, s80, 0x{WS_FL + 0x80000 - 3 * 128:x}")
            a("v_lshlrev_b32 v193, 7, v0")
            a("v_add_u32 v193, s80, v193")
            a("v_cmp_gt_u32 vcc, 3, v0")
            a("s_nop 1")
            a("v_cndmask_b32 v194, v193, v194, vcc")
        a("s_cmp_eq_u32 s32, 2")
        a(f"s_cselect_b32 s80, {5 if 'kv2' in OPT else 4 if 'fl' not in OPT else 3 if 'nft' in OPT else 11}, 0")
        a("v_mov_b32 v193, 0x80000000")
        a("v_cmp_gt_u32 vcc, s80, v0")
        a("s_nop 1")
        a("v_cndmask_b32 v194, v193, v194, vcc")
    late = {}
    if MS:
        blk_ = 0
        for x in a.L:
            if x.strip().startswith(";"):
                blk_ += 1
                continue
            late.setdefault(int(MS[0][blk_]), []).append(re.sub(r"\bv2([012])\b", r"v1\g<1>", x.strip()).replace("v10", "v13").replace("v11", "v14"))
        a = main_a
        for x in late.get(0, []):
            a(x)
    a("s_waitcnt lgkmcnt(0)")
    slow_touch(98)
    if "tse" in OPT:
        ts.stamp(a, 0)
    a("s_barrier")
    ts.stamp(a, 11)
    TKN = optval("tkn", 41)

    def extras(n):
        if n == TKN:
            a(f"buffer_load_dwordx2 v[186:187], v{VZ}, {S(SDBG)}, 0 offen{SC}")
        if n in CQ:
            code_touch()
        slow_touch(n)
        if n == FT:
            a(f"buffer_load_dword v195, v194, {S(SWS)}, 0 offen")

    if M16:
        XB, WF = [16, 200], [32, 56]

        def corder(N):
            return (2, 3, 4, 5, 0, 1) if N == 31 else (0, 1, 2, 3, 4, 5)

        def reads16(N):
            st, h2 = slot(N >> 1), N & 1
            xr = lambda tt: f"ds_read_b128 {vr(XB[h2] + 4 * tt, 4)}, v{2 + h2 + 2 * (st >> 1)} offset:{(st & 1) * 40960 + 2048 * tt}"
            wr = lambda c: [f"ds_read_b64_tr_b16 {vr(WF[h2] + 4 * c + 2 * h, 2)}, v{6 + (c & 1) + 2 * (st >> 1)} "
                            f"offset:{(st & 1) * 40960 + h2 * 12288 + (c >> 1) * 128 + h * 1536}" for h in range(2)]
            co = corder(N)
            return [xr(0)] + wr(co[0]) + [xr(1), xr(2), xr(3)] + [x for c in co[1:] for x in wr(c)]

        for i, r in enumerate(reads16(0)):
            a(r)
        RQ = optval("rq", 1)
        for N in range(32):
            h2 = N & 1
            r = reads16(N + 1) if N < 31 else []
            bar = h2 == 1 and (N >> 1) + 1 not in skipped()
            a(f"s_waitcnt lgkmcnt({0 if (bar or RQ > 1) else 6})")
            i = 0
            for c in corder(N):
                for tt in range(4):
                    d = vr(ACC + 16 * (2 * (c >> 1) + (tt >> 1)) + 4 * (2 * (tt & 1) + (c & 1)), 4)
                    x_, w_ = vr(XB[h2] + 4 * tt, 4), vr(WF[h2] + 4 * c, 4)
                    if i == 12 and not (bar or RQ > 1):
                        a("s_waitcnt lgkmcnt(12)")
                    a(f"v_mfma_f32_16x16x32_bf16 {d}, {x_ if c >= 4 else w_}, {w_ if c >= 4 else x_}, {'0' if N == 0 else d}")
                    if i == optval("bi", 1) and bar:
                        for x in late.get((N >> 1) + 1, []):
                            a(x)
                        a("s_barrier")
                    if i >= optval("bi", 1) or not bar:
                        for _ in range(RQ):
                            if r:
                                a(r.pop(0))
                    if i % 12 == 10:
                        extras(2 * N + i // 12)
                    i += 1
            assert not r
    for k in range(PD if not M16 else 0):
        for r in reads(0, k, k):
            a(r)
        if k == 1:
            a("s_waitcnt lgkmcnt(8)")
    BK = (4 - PD) % 4
    for n in range(64 if not M16 else 0):
        t, ks = n >> 2, n & 3
        m = mfmas(n % NB, n == 0, n == 63)
        n2 = n + PD
        r = reads(n2 >> 2, n2 & 3, n2 % NB) if n2 < 64 else []
        tch = []
        if n == TKN:
            tch = [f"buffer_load_dwordx2 v[186:187], v{VZ}, {S(SDBG)}, 0 offen{SC}"]
        ahead = min(15, 8 * (min(63, n + PD - 1) - n))
        if ks == BK and t + 1 not in skipped():
            a(f"s_waitcnt lgkmcnt({ahead if (LZ and t < 15) else 0})")
            a(m[0])
            for x in late.get(t + 1, []):
                a(x)
            a("s_barrier")
        else:
            a(f"s_waitcnt lgkmcnt({ahead})")
            a(m[0])
        ri = 0
        for i, mm in enumerate(m[1:]):
            for _ in range(2):
                if ri < len(r):
                    a(r[ri]); ri += 1
            if i == 4:
                for x in tch:
                    a(x)
                if n in CQ:
                    code_touch()
                slow_touch(n)
                if n == KT:
                    a(f"buffer_load_dword v178, v185, {S(SWS)}, s48 offen")
                if n == optval("tw", -1):
                    tm = optval("tm", 7)
                    a("s_cmp_eq_u32 s32, 3")
                    a("s_cselect_b64 exec, 1, 0")
                    if tm & 1:
                        for r in (48, 49, 47):
                            a(f"buffer_load_dword v196, v{VZ}, {S(SWS)}, s{r} offen")
                    if tm & 2:
                        a("s_lshl_b32 s80, s86, 19")
                        a("s_lshl_b32 s81, s42, 7")
                        a("s_add_u32 s80, s80, s81")
                        a(f"buffer_load_dword v196, v{VZ}, {S(SOUT)}, s80 offen offset:2048")
                        a("s_lshl_b32 s80, s35, 18")
                        a("s_lshl_b32 s81, s3, 8")
                        a("s_add_u32 s80, s80, s81")
                        a(f"buffer_load_dword v196, v{VZ}, {S(SOUT)}, s80 offen")
                    if tm & 4:
                        a(f"buffer_load_dword v196, v199, {S(SQ)}, 0 offen")
                    a("s_mov_b64 exec, -1")
                if n == FT:
                    if "fst" in OPT:
                        a(f"buffer_store_dword v{VZ}, v194, {S(SWS)}, 0 offen offset:64{SC}")
                    else:
                        a(f"buffer_load_dword v195, v194, {S(SWS)}, 0 offen")
            a(mm)
    ts.stamp(a, 1)
    if optval("pe", 0):
        a(f"s_setprio {optval('pe', 0)}")
    def swaps(b, part):
        if not M16:
            return
        a("s_nop 1")
        if part < 2:
            for i in range(4):
                a(f"v_permlane16_swap_b32 v{b + i}, v{b + 4 + i}")
        else:
            for op in ("16", "32"):
                for i in (0, 1, 4, 5):
                    a(f"v_permlane{op}_swap_b32 v{b + i}, v{b + 2 + i}")

    if "fk" in OPT:
        a("s_and_b32 s80, s33, 14")
        a("s_cmp_lg_u32 s80, 6")
        a("s_cselect_b32 s39, 1, 0")
        a("s_cselect_b64 s[50:51], -1, 0")
    for part in (1, 2):
        for rt in range(2):
            b = ACC + 16 * (2 * part + rt)
            for j in range(8):
                a(f"v_cvt_pk_bf16_f32 v{b + j}, v{b + 2 * j}, v{b + 2 * j + 1}")
            swaps(b, part)
            if "fk" in OPT:
                a("s_mov_b64 exec, s[50:51]")
                for step in range(2):
                    a(f"buffer_store_dwordx4 {vr(b + 4 * step, 4)}, v1, {S(SWS)}, s{47 + part} offen offset:{rt * 2048 + step * 1024}")
                a("s_not_b64 exec, exec")
            for step in range(2):
                a(f"buffer_store_dwordx4 {vr(b + 4 * step, 4)}, v1, {S(SWS)}, s{47 + part} offen offset:{rt * 2048 + step * 1024}{SC}")
            if "fk" in OPT:
                a("s_mov_b64 exec, -1")
    if "fp" in OPT:
        a("s_waitcnt vmcnt(0)")
        emit_token_take(a, 186, VZ)
        emit_publish(a, FL_K, 220, VZ, 39 if "fk" in OPT else None)
        ts.stamp(a, 2)
    if "pes" in OPT:
        a("s_setprio 0")
    for part in (1, 2):
        for rt in range(2):
            b = ACC + 16 * (2 * part + rt)
            for step in range(2):
                a(f"ds_write_b128 v182, {vr(b + 4 * step, 4)} offset:{8 * 2048 + (part - 1) * L_V + rt * 2048 + step * 1024}")
    for rt in (1, 0):
        b = ACC + 16 * rt
        d = QC if rt == 0 else b
        for r in range(16):
            a(f"v_mul_f32 v{b + r}, {f32hex(SCALE_LOG2E)}, v{b + r}")
        for j in range(8):
            a(f"v_cvt_pk_bf16_f32 v{d + j}, v{b + 2 * j}, v{b + 2 * j + 1}")
        swaps(d, 0)
        if rt == 1:
            for step in range(2):
                a(f"ds_write_b128 v183, {vr(d + 4 * step, 4)} offset:{step * 1024}")
    lz = a.newlabel("nozero")
    a("s_cmp_lg_u32 s32, 0")
    a(f"s_cbranch_scc1 {lz}")
    a(f"v_lshl_add_u32 v20, v0, 2, v{VLF}")
    a(f"ds_write_b32 v20, v{VZ}")
    a.label(lz)
    if "ls" in OPT:
        setup2()
    tlq = f"buffer_load_dword v157, v199, {S(SQ)}, 0 offen"

    def prev_dma(isv):
        for g in range(2):
            a(f"s_add_u32 m0, s37, {isv * L_V + g * 4096}")
            a(f"s_add_u32 s80, s36, {isv * (WS_VF - WS_KF) + g * 4096}")
            for i in range(4):
                a(f"buffer_load_dwordx4 v1, {S(SWS)}, s80 offen offset:{1024 * i} {nt('k')} lds")

    if "pes" in OPT:
        a(f"s_setprio {optval('pe', 0)}")
    if "kv2" in OPT:
        a("s_waitcnt vmcnt(4)")
        emit_token_take(a, 186, VZ)
        emit_publish(a, FL_K, 220, VZ)
        a(f"v_add_u32 v189, {(FL_V - FL_K) * 32768}, v190")
        a("s_waitcnt vmcnt(1)")
        emit_publish(a, FL_V, 222, VZ)
        ts.stamp(a, 2)
    elif "fp" not in OPT:
        a("s_waitcnt vmcnt(0)")
        emit_token_take(a, 186, VZ)
        emit_publish(a, FL_K, 220, VZ, 39 if "fk" in OPT else None)
        ts.stamp(a, 2)
    lnp = a.newlabel("noprev")
    a(f"s_cmp_lt_u32 s38, {99 if 'nokv' in OPT else 2}")
    a(f"s_cbranch_scc1 {lnp}")
    emit_poll(a, 190, 2, 196, sleep=optval("ks", 1))
    ts.stamp(a, 3)
    if "kv2" in OPT:
        poll_issue(a, 189, 196)
    prev_dma(0)
    if "kv2" in OPT:
        lv = a.newlabel("vok")
        a("s_waitcnt vmcnt(8)")
        a("v_cmp_eq_u64 vcc, s[78:79], v[196:197]")
        a("s_nop 1")
        a("s_and_b32 s80, vcc_lo, 3")
        a("s_cmp_eq_u32 s80, 3")
        a(f"s_cbranch_scc1 {lv}")
        emit_poll(a, 189, 2, 196, sleep=optval("ks", 1))
        a.label(lv)
    prev_dma(1)
    a.label(lnp)
    a("s_setprio 0")
    BF = [16, 24, 32]
    AC2 = 40
    AF, PF = 72, optval('pf', 16)
    VPA, VOA = 191, 192
    a("v_and_b32 v8, 15, v0")
    a("v_lshrrev_b32 v9, 4, v0")
    a("v_lshrrev_b32 v10, 5, v0")
    a("v_lshrrev_b32 v11, 2, v8")
    a("v_lshl_add_u32 v11, v10, 2, v11")
    a("v_lshlrev_b32 v11, 7, v11")
    a("v_and_b32 v12, 1, v9")
    a("v_lshl_add_u32 v11, v12, 5, v11")
    a("v_and_b32 v12, 3, v8")
    a("v_lshl_add_u32 v11, v12, 3, v11")
    a("v_lshrrev_b32 v12, 3, v8")
    a("v_lshl_add_u32 v2, v12, 6, v11")
    a("v_xor_b32 v12, 1, v12")
    a("v_lshl_add_u32 v3, v12, 6, v11")
    a("v_add_u32 v4, 0x10000, v2")
    a("v_add_u32 v5, 0x10000, v3")
    a(f"v_add_u32 v6, {L_R0}, v2")
    a(f"v_add_u32 v7, {L_R0}, v3")
    if "g16" in OPT:
        a("v_lshrrev_b32 v11, 2, v8")
        a("v_and_b32 v12, 1, v9")
        a("v_lshl_add_u32 v11, v12, 2, v11")
        a("v_lshl_add_u32 v11, v10, 4, v11")
        a("v_lshlrev_b32 v11, 7, v11")
        a("v_lshl_add_u32 v11, v12, 5, v11")
        a("v_and_b32 v13, 3, v8")
        a("v_lshl_add_u32 v11, v13, 3, v11")
        a("v_lshrrev_b32 v13, 3, v8")
        a("v_lshl_add_u32 v2, v13, 6, v11")
        a("v_lshlrev_b32 v3, 4, v8")
        a("v_lshl_add_u32 v3, v9, 9, v3")
    a("v_mov_b32 v12, s86")
    a("v_bfe_u32 v13, v0, 1, 4")
    emit_wg_of(a, VPA, 12, 13, 15)
    a("v_and_b32 v12, 1, v0")
    a(f"v_lshl_add_u32 v{VPA}, v12, 4, v{VPA}")
    a("s_lshr_b32 s80, s32, 1")
    a("s_and_b32 s81, s32, 1")
    a("s_lshl_b32 s81, s81, 2")
    a("s_add_u32 s80, s80, s81")
    a("s_lshl_b32 s80, s80, 3")
    if "fl" in OPT:
        a(f"s_add_u32 s80, s80, 0x{(WS_FL + 0x80000) >> 4:x}")
        a(f"v_add_lshl_u32 v{VPA}, s80, v{VPA}, 4")
    else:
        a(f"s_add_u32 s80, s80, 0x{fbase(FL_O):x}")
        a(f"v_add_u32 v{VPA}, s80, v{VPA}")
        fshift(a, FL_O, VPA)
    a("s_lshl_b32 s82, s86, 2")
    a("s_add_u32 s82, s82, s32")
    a("v_and_b32 v8, 31, v0")
    a("s_lshl_b32 s80, s82, 5")
    a("v_add_u32 v8, s80, v8")
    a("v_lshlrev_b32 v8, 12, v8")
    a(f"v_lshl_add_u32 v{VOA}, v10, 4, v8")
    if "bf" in OPT:
        a("s_lshl_b32 s81, s32, 12")
        a("s_add_u32 s81, s81, 24576")
        a("s_cmp_eq_u32 s32, 3")
        a("s_cselect_b32 s81, 73728, s81")
        a("v_and_b32 v8, 31, v0")
        a("v_and_b32 v9, 7, v0")
        a("v_xor_b32 v11, v9, v10")
        a("v_lshlrev_b32 v8, 7, v8")
        a("v_lshl_add_u32 v193, v11, 4, v8")
        if "g16" in OPT:
            a("v_and_b32 v193, 0x7ff, v193")
            a("v_bfe_u32 v11, v0, 4, 1")
            a("v_lshl_add_u32 v193, v11, 3, v193")
        a("v_add_u32 v193, s81, v193")
        a("v_lshrrev_b32 v8, 3, v0")
        a("v_xor_b32 v11, v9, v8")
        a("v_lshlrev_b32 v11, 4, v11")
        a("v_lshl_add_u32 v194, v8, 7, v11")
        a("v_add_u32 v194, s81, v194")
        a("v_add_u32 v8, s80, v8")
        a("v_lshlrev_b32 v8, 12, v8")
        a(f"v_lshl_add_u32 v{VOA}, v9, 4, v8")
    a("s_lshl_b32 s56, s42, 7")
    a("s_add_u32 s56, s56, 2048")
    a("s_lshl_b32 s82, s82, 16")
    a(f"s_add_u32 s82, s82, 0x{WS_OF:x}")
    for p in range(8):
        a(f"s_add_u32 s81, s43, {p}")
        a("s_and_b32 s81, s81, 7")
        a("s_lshl_b32 s81, s81, 13")
        a(f"s_add_u32 s{48 + p}, s82, s81")
    hk = {"blk": wo_early()}
    if optval("qk", 0):
        hk["blk"][optval("qk", 0)] = hk["blk"].get(optval("qk", 0), []) + [tlq]
    else:
        hk["mid"] = lambda: a(tlq)
    a("s_waitcnt vmcnt(0)")
    ts.stamp(a, 5)
    a("s_waitcnt lgkmcnt(0)")
    a("s_barrier")
    ts.stamp(a, 4)
    hk["blk"][7] = blk7_flag() + hk["blk"].get(7, [])
    if optval("wt", 0):
        hk["blk"][optval("wt", 0)] = hk["blk"].get(optval("wt", 0), []) + [f"buffer_load_dword v156, v198, {S(SWO)}, 0 offen"]
    if optval("at", 0):
        hk["blk"][optval("at", 0)] = hk["blk"].get(optval("at", 0), []) + [f"buffer_load_dword v156, v198, {S(SOUT)}, 0 offen"]
    if optval("bt", 0):
        hk["blk"][optval("bt", 0)] = hk["blk"].get(optval("bt", 0), []) + [f"buffer_load_dword v155, v{VOA}, {S(SOUT)}, s56 offen"]
    hk["prio"] = prio_plan("M")
    emit_attention(a, ool, hk, MASKS_M, "M")
    ts.stamp(a, 6)
    wo_late(a, ts, 0, False)
    if optval('od', 0):
        a(f"s_sleep {optval('od', 0)}")
    poll_issue(a, VPA, 12)
    a("s_waitcnt vmcnt(1)")
    lds_flag_set(a, 32, 0, 16)
    ts.stamp(a, 8)
    if "noo" not in OPT:
        emit_poll(a, VPA, 32, 12, pre=True, sleep=optval("os", 0))
    ts.stamp(a, 9)

    def aload(ks):
        out = []
        if ks % 8 == 4:
            out.append(f"s_add_u32 s{48 + (ks >> 3)}, s{48 + (ks >> 3)}, 4096")
        out.append(f"buffer_load_dwordx4 {vr(AF + 4 * (ks % PF), 4)}, v1, {S(SWS)}, s{48 + (ks >> 3)} offen offset:{(ks & 3) * 1024} {scl()}")
        return out

    def breads(ks, buf):
        f = BF[buf]
        o = WLOC[ks]
        base, o = (6, o - L_R0) if o >= L_R0 else (4, o - 65536) if o >= 65536 else (2, o)
        out = []
        for ct in range(2):
            out.append(f"ds_read_b64_tr_b16 {vr(f + 4 * ct, 2)}, v{base + ct} offset:{o}")
            out.append(f"ds_read_b64_tr_b16 {vr(f + 4 * ct + 2, 2)}, v{base + ct} offset:{o + 1024}")
        return out

    if "g16" in OPT:
        assert "bf" in OPT
        B16, WBS = [16, 212, 228], 200

        def aload(ks):
            return ([f"s_add_u32 s{48 + (ks >> 3)}, s{48 + (ks >> 3)}, 4096"] if ks % 8 == 4 else []) + \
                [f"buffer_load_dwordx4 {vr(AF + 4 * (ks % PF), 4)}, v3, {S(SWS)}, s{48 + (ks >> 3)} offen offset:{(ks & 2) * 1024 + (ks & 1) * 256}"]

        def wreads(hs):
            o = WLOC[2 * hs]
            reg, o = (2, o - L_R0) if o >= L_R0 else (1, o - 65536) if o >= 65536 else (0, o)
            return [f"ds_read_b64_tr_b16 {vr(B16[hs % 3] + 4 * ct + 2 * h, 2)}, v{WBS + 4 * reg + ct} offset:{o + 1024 * h}"
                    for ct in range(4) for h in range(2)]

        nis = optval("pi", PF)
        for ks in range(nis):
            for x in aload(ks):
                a(x)
        for reg, o in enumerate((0, 65536, L_R0)):
            for ct in range(4):
                a(f"v_xor_b32 v{WBS + 4 * reg + ct}, {32 * ct}, v2")
                if o:
                    a(f"v_add_u32 v{WBS + 4 * reg + ct}, {o}, v{WBS + 4 * reg + ct}")
        emit_lds_wait(a, VLF, 0, 16)
        emit_lds_wait(a, VLF, 16, 16)
        for x in wreads(0) + wreads(1):
            a(x)
        for hs in range(32):
            nxt = wreads(hs + 2) if hs + 2 < 32 else []
            for rh in range(2):
                ks = 2 * hs + rh
                a(f"s_waitcnt vmcnt({nis - 1 - ks})" + ("" if rh else f" lgkmcnt({8 if hs < 31 else 0})"))
                for ct in range(4):
                    d = vr(AC2 + 4 * (2 * ct + rh), 4)
                    a(f"v_mfma_f32_16x16x32_bf16 {d}, {vr(B16[hs % 3] + 4 * ct, 4)}, {vr(AF + 4 * (ks % PF), 4)}, {'0' if hs == 0 else d}")
                    if ct == 0 and "tsg" in OPT and ks % 8 == 0 and ts.enabled:
                        a(f"s_memrealtime s[{4 + ks // 4}:{5 + ks // 4}]" if ks < 8 else f"s_memrealtime s[{14 + ks // 4}:{15 + ks // 4}]")
                    if ct == 0 and ks == optval("aw", -1):
                        lds_flag_set(a, 32, 24, 196)
                    if nxt:
                        a(nxt.pop(0))
                    if (ct == 1 and nis < min(64, ks + PF)) or (ct == 3 and nis < min(64, ks + PF + 1)):
                        for x in aload(nis):
                            a(x)
                        nis += 1
        ts.stamp(a, 28)
        if "tsg" in OPT and ts.enabled:
            for i in range(8):
                a(f"v_writelane_b32 v254, s{4 if i == 0 else 14 + 2 * i}, {12 + i}")
        for ct in range(4):
            a(f"v_xor_b32 v{8 + ct}, {32 * ct}, v193")
        a("s_nop 3")
        for rh in range(2):
            for ct in range(4):
                b = AC2 + 4 * (2 * ct + rh)
                a(f"v_cvt_pk_bf16_f32 v{b}, v{b}, v{b + 1}")
                a(f"v_cvt_pk_bf16_f32 v{b + 1}, v{b + 2}, v{b + 3}")
                a(f"ds_write_b64 v{8 + ct}, {vr(b, 2)} offset:{2048 * rh}")
            for i in (2 * rh, 2 * rh + 1):
                a(f"ds_read_b128 {vr(72 + 4 * i, 4)}, v194 offset:{1024 * i}")
        for i in range(4):
            a(f"s_waitcnt lgkmcnt({(7, 6, 1, 0)[i]})")
            a(f"buffer_store_dwordx4 {vr(72 + 4 * i, 4)}, v{VOA}, {S(SOUT)}, s56 offen{' sc1' if 'ob' in OPT else ''}")
            a("s_add_u32 s56, s56, 32768")
        ts.final(a, 10)
        a("s_endpgm")
        return
    for ks in range(PF):
        for x in aload(ks):
            a(x)
    CHK = {}
    if "g2e" in OPT or "ck" in OPT:
        CHK = {8 * NE - 2: (0, 16)}
    else:
        emit_lds_wait(a, VLF, 0, 16)
        emit_lds_wait(a, VLF, 16, 16)
    for x in breads(0, 0) + breads(1, 1):
        a(x)
    for ks in range(64):
        f = BF[ks % 3]
        issued = min(63, ks + PF - 1)
        a(f"s_waitcnt vmcnt({issued - ks}) lgkmcnt({4 if ks < 63 else 0})")
        af = vr(AF + 4 * (ks % PF), 4)
        nxt = breads(ks + 2, (ks + 2) % 3) if ks + 2 < 64 else []
        d0, d1 = vr(AC2, 16), vr(AC2 + 16, 16)
        a(f"v_mfma_f32_32x32x16_bf16 {d0}, {vr(f, 4)}, {af}, {'0' if ks == 0 else d0}")
        if "tsg" in OPT and ks % 8 == 0 and ts.enabled:
            a(f"s_memrealtime s[{4 + ks // 4}:{5 + ks // 4}]" if ks < 8 else f"s_memrealtime s[{14 + ks // 4}:{15 + ks // 4}]")
        if ks == optval("aw", -1):
            lds_flag_set(a, 32, 24, 196)
        if ks + 1 in CHK:
            for i, o in enumerate(CHK[ks + 1]):
                a(f"ds_read_b128 {vr(8 + 4 * i, 4)}, v{VLF} offset:{o}")
        if ks in CHK:
            for i in range(4):
                a(f"v_and_b32 v{8 + i}, v{8 + i}, v{12 + i}")
            a("v_and_b32 v8, v8, v9")
            a("v_and_b32 v10, v10, v11")
            a("v_and_b32 v8, v8, v10")
            lf, lb = a.newlabel("wspin"), a.newlabel("wback")
            a("v_cmp_ne_u32 vcc, 0, v8")
            a(f"s_cbranch_vccz {lf}")
            a.label(lb)
            sub = Asm()
            sub.uid = a.uid + 2000
            for o in CHK[ks]:
                emit_lds_wait(sub, VLF, o, 8)
            a.uid = sub.uid
            ool.append((lf, [x.strip() for x in sub.L], lb))
        for x in nxt:
            a(x)
        a(f"v_mfma_f32_32x32x16_bf16 {d1}, {vr(f + 4, 4)}, {af}, {'0' if ks == 0 else d1}")
        if ks + PF < 64:
            for x in aload(ks + PF):
                a(x)
    ts.stamp(a, 28)
    if "tsg" in OPT and ts.enabled:
        for i in range(8):
            a(f"v_writelane_b32 v254, s{4 if i == 0 else 14 + 2 * i}, {12 + i}")
    a("s_nop 7")
    a("s_nop 7")
    for ct in range(2):
        b = AC2 + 16 * ct
        for j in range(8):
            a(f"v_cvt_pk_bf16_f32 v{b + j}, v{b + 2 * j}, v{b + 2 * j + 1}")
        a("s_nop 1")
        for jj in range(2):
            a(f"v_permlane32_swap_b32 v{b + 4 * jj}, v{b + 4 * jj + 2}")
            a(f"v_permlane32_swap_b32 v{b + 4 * jj + 1}, v{b + 4 * jj + 3}")
        if "bf" in OPT:
            for jj in range(2):
                a(f"v_xor_b32 v{8 + 2 * ct + jj}, {(4 * ct + 2 * jj) * 16}, v193")
                a(f"ds_write_b128 v{8 + 2 * ct + jj}, {vr(b + 4 * jj, 4)}")
            continue
        for jj in range(2 if "nob" not in OPT else 0):
            a(f"buffer_store_dwordx4 {vr(b + 4 * jj, 4)}, v{VOA}, {S(SOUT)}, s56 offen offset:{ct * 64 + jj * 32}{' sc1' if 'ob' in OPT else ''}{' nt' if 'nb' in OPT else ''}")
    if "bf" in OPT:
        for i in range(4):
            a(f"ds_read_b128 {vr(72 + 4 * i, 4)}, v194 offset:{1024 * i}")
        for i in range(4):
            a(f"s_waitcnt lgkmcnt({3 - i})")
            a(f"buffer_store_dwordx4 {vr(72 + 4 * i, 4)}, v{VOA}, {S(SOUT)}, s56 offen{' sc1' if 'ob' in OPT else ''}{' nt' if 'nb' in OPT else ''}")
            a("s_add_u32 s56, s56, 32768")
    ts.final(a, 10)
    a("s_endpgm")


def h_path(a, ts, ool):
    a(f"s_setprio {optval('hp', 3)}")
    XO, WO = 2, 6
    a("v_lshrrev_b32 v12, 3, v0")
    a("v_and_b32 v13, 7, v0")
    a("s_lshl_b32 s45, s33, 7")
    a("s_lshl_b32 s46, s44, 5")
    a("s_add_u32 s45, s45, s46")
    a("v_lshrrev_b32 v14, 4, v0")
    a("v_xor_b32 v14, v14, v13")
    a("v_add_u32 v15, s45, v12")
    a("v_lshlrev_b32 v15, 11, v15")
    a(f"v_lshl_add_u32 v{XO}, v14, 4, v15")
    a(f"v_xor_b32 v{XO + 1}, 64, v{XO}")
    a(f"v_add_u32 v{XO + 1}, {16384 - 1024}, v{XO + 1}")
    a(f"v_add_u32 v{XO + 2}, {2 * (16384 - 1024)}, v{XO}")
    a(f"v_add_u32 v{XO + 3}, {2 * (16384 - 1024)}, v{XO + 1}")
    a("s_lshl_b32 s45, s44, 12")
    main_a = a
    if "fs" in OPT:
        a = Asm()
    a("s_mul_i32 s48, s44, 98304")
    a("s_lshl_b32 s46, s34, 7")
    a("s_add_u32 s48, s48, s46")
    if "wl" in OPT:
        a("v_lshrrev_b32 v14, 2, v0")
        a("v_and_b32 v14, 4, v14")
        a("v_xor_b32 v14, v14, v13")
        a("v_mul_u32_u24 v15, 6144, v12")
        a("v_lshl_add_u32 v15, v14, 4, v15")
        a(f"v_add_u32 v{WO}, s48, v15")
        a(f"v_add_u32 v{WO + 1}, 48128, v{WO}")
    for i in range(3 if "wl" not in OPT else 0):
        if i:
            a(f"v_add_u32 v14, {64 * i}, v0")
        src = "v14" if i else "v0"
        a(f"v_mul_u32_u24 v15, 2731, {src}")
        a("v_lshrrev_b32 v15, 16, v15")
        a("v_mul_u32_u24 v16, 24, v15")
        a(f"v_sub_u32 v16, {src}, v16")
        a("v_bfe_u32 v18, v15, 1, 1")
        a("v_lshlrev_b32 v18, 2, v18")
        a("v_xor_b32 v16, v16, v18")
        a("v_lshrrev_b32 v18, 3, v16")
        a("v_and_b32 v16, 7, v16")
        a("v_mul_u32_u24 v15, 6144, v15")
        a("v_lshl_add_u32 v15, v18, 11, v15")
        a("v_lshl_add_u32 v15, v16, 4, v15")
        for ii in (i, i + 3):
            il = ii if ii < 4 else ii - 4
            a(f"s_add_u32 s49, s48, {(8 * 6144 if ii >= 3 else 0) - 1024 * il}")
            a(f"v_add_u32 v{WO + ii}, s49, v15")
            if "m16" in OPT and ii >= 3:
                a(f"v_xor_b32 v{WO + ii}, 32, v{WO + ii}")
    a("s_mul_i32 s43, s44, 6144")
    a("s_add_u32 s43, s43, 16384")
    wsetup = [x.strip() for x in a.L] if "fs" in OPT else []
    a = main_a
    order = []

    RG = optval("rg", 8)

    def pace(t):
        if t >= 6 and optval("pc", 0):
            a(f"s_nop {optval('pc', 0) - 1}")
            if optval("pc2", 0):
                a(f"s_nop {optval('pc2', 0) - 1}")

    def tile_index(t):
        if "hot" in OPT:
            a(f"s_mov_b32 s42, {t & 1}")
            return
        if RG <= 1:
            a(f"s_mov_b32 s42, {t}")
            return
        if SG:
            a(f"s_bfe_u32 s42, s{54 + (t >> 3)}, 0x{0x40000 + 4 * (t & 7):x}")
            return
        if "f0" in OPT:
            if t == 0:
                a("s_mov_b32 s42, 15")
            elif t <= 8:
                a(f"s_add_u32 s42, s56, {t - 1}")
                a("s_and_b32 s42, s42, 7")
            else:
                a("s_and_b32 s42, s56, 7")
                a("s_min_u32 s42, s42, 6")
                a(f"s_add_u32 s42, s42, {t - 9}")
                a("s_cmp_ge_u32 s42, 7")
                a("s_cselect_b32 s49, 1, 8")
                a("s_add_u32 s42, s42, s49")
            return
        GR = [o[2:] for o in OPT if o.startswith("gr")]
        if GR:
            g0 = 0
            for c in GR[0]:
                if t < g0 + int(c):
                    break
                g0 += int(c)
            a(f"s_add_u32 s42, s56, {t}")
            a(f"s_and_b32 s42, s42, {int(c) - 1}")
            if g0:
                a(f"s_add_u32 s42, s42, {g0}")
            return
        a(f"s_add_u32 s42, s56, {t}")
        a(f"s_and_b32 s42, s42, {RG - 1}")
        if t >= RG:
            a(f"s_add_u32 s42, s42, {t // RG * RG}")

    SG = optval("sg", 0)
    if SG:
        a("s_lshr_b32 s56, s35, 3")
        a("s_add_u32 s56, s56, s35")
        a("s_and_b32 s56, s56, 3")
        for c in range(4):
            seq = sorted(range(16), key=lambda x: (x - SG - 0.5) if (x & 3) == c else x)
            w = [sum(seq[8 * h + i] << (4 * i) for i in range(8)) for h in range(2)]
            if c == 0:
                a(f"s_mov_b32 s54, 0x{w[0]:x}")
                a(f"s_mov_b32 s55, 0x{w[1]:x}")
            else:
                a(f"s_cmp_eq_u32 s56, {c}")
                a(f"s_cselect_b32 s54, 0x{w[0]:x}, s54")
                a(f"s_cselect_b32 s55, 0x{w[1]:x}, s55")
    a("s_lshr_b32 s56, s35, 3")
    a(f"s_mul_i32 s56, s56, {optval('rb', 2)}")
    if optval("ra", 0):
        a(f"s_bfe_u32 s49, s35, 0x{((3 - optval('ra', 0)) << 16) + optval('ra', 0):x}")
        a("s_add_u32 s56, s56, s49")
    else:
        a("s_add_u32 s56, s56, s35")
    if optval("rx", 0):
        a(f"s_mul_i32 s49, s3, {optval('rx', 0)}")
        a("s_add_u32 s56, s56, s49")
    if optval("ry", 0):
        a("s_lshr_b32 s49, s3, 1")
        a(f"s_mul_i32 s49, s49, {optval('ry', 0)}")
        a("s_add_u32 s56, s56, s49")
    if RG == 16:
        a("s_lshl_b32 s56, s56, 1")

    def issue_x(t):
        if "nodma" in OPT and t >= 3:
            order.append(f"x{t}")
            return
        a(f"s_add_u32 m0, s45, {slot(t) * 40960}")
        tile_index(t)
        a("s_lshl_b32 s42, s42, 7")
        for i in range(4):
            a(f"buffer_load_dwordx4 v{XO + i}, {S(SX)}, s42 offen offset:{1024 * i} {nt('x') if t % RG == RG - 1 else ''} lds")
            pace(t)
        order.append(f"X{t}")

    def issue_w(t):
        if "nodma" in OPT and t >= 3:
            order.append(f"x{t}")
            return
        while wsetup:
            a(wsetup.pop(0))
        st = slot(t)
        a(f"s_add_u32 m0, s43, {st * 40960}")
        tile_index(t)
        a("s_mul_i32 s42, s42, 393216")
        if "wl" in OPT:
            for i in range(6):
                if i == 4:
                    a(f"s_add_u32 m0, s43, {st * 40960 + 4096}")
                    a("s_add_u32 s42, s42, 4096")
                a(f"buffer_load_dwordx4 v{WO + (i & 1)}, {S(SW)}, s42 offen offset:{1024 * (i & 3)} lds")
            order.append(f"W{t}")
            return
        for i in range(4):
            a(f"buffer_load_dwordx4 v{WO + i}, {S(SW)}, s42 offen offset:{1024 * i} {nt('x') if t % RG == RG - 1 else ''} lds")
            pace(t)
        a(f"s_add_u32 m0, s43, {st * 40960 + 4096}")
        a("s_nop 0")
        for i in range(4, 6):
            a(f"buffer_load_dwordx4 v{WO + i}, {S(SW)}, s42 offen offset:{1024 * (i - 4)} {nt('x') if t % RG == RG - 1 else ''} lds")
        order.append(f"W{t}")

    RQ = [list(range(28, 68, 4)), list(range(68, 108, 4)),
          list(range(108, 124, 4)) + list(range(200, 216, 4)) + [220, 224]]
    parked = {}

    def park(t, part):
        if t not in parked:
            parked[t] = next(b for b in range(3) if b not in parked.values())
        q = RQ[parked[t]]
        tile_index(t)
        if part == "X":
            a("s_lshl_b32 s42, s42, 7")
            for i in range(4):
                a(f"buffer_load_dwordx4 {vr(q[i], 4)}, v{XO + i}, {S(SX)}, s42 offen offset:{1024 * i}")
        else:
            a("s_mul_i32 s42, s42, 393216")
            for i in range(6):
                a(f"buffer_load_dwordx4 {vr(q[4 + i], 4)}, v{WO + i}, {S(SW)}, s42 offen offset:{1024 * (i & 3)}")
        order.append(f"{part}{t}")

    def unpark(t):
        wait_tile(t)
        q = RQ[parked[t]]
        a(f"s_add_u32 s42, s45, {slot(t) * 40960}")
        a("v_add_u32 v170, s42, v1")
        a(f"s_add_u32 s42, s43, {slot(t) * 40960}")
        a("v_add_u32 v171, s42, v1")
        for i in range(10):
            a(f"ds_write_b128 v{170 + (i >= 4)}, {vr(q[i], 4)} offset:{1024 * (i if i < 4 else i - 4)}")
        parked[t] = -1

    def vm(x):
        a(x)
        if x.startswith("buffer"):
            order.append("P")

    def cnt(lst):
        return sum({"X": 4, "W": 6, "P": 1, "L": 0, "U": 0, "x": 0, "R": 1, "E": 0, "a": 0}[x[0]] for x in lst)

    def wait_tile(b):
        if "nodma" in OPT and b >= 3:
            return
        last = max(i for i, x in enumerate(order) if x in (f"X{b}", f"W{b}"))
        assert f"X{b}" in order and f"W{b}" in order
        n = cnt(order[last + 1:])
        assert n < 64
        a(f"s_waitcnt vmcnt({n})")

    def later():
        a("s_lshl_b32 s80, s84, 2")
        a("s_add_u32 s80, s80, s44")
        a("s_lshl_b32 s80, s80, 11")
        a("v_lshlrev_b32 v179, 5, v0")
        a("v_add_u32 v179, s80, v179")
        a("s_lshl_b32 s87, s84, 2")
        a("s_add_u32 s87, s87, s44")
        a("s_lshl_b32 s87, s87, 12")
        a(f"s_buffer_load_dword s57, {S(SHK)}, s87")
        a(f"s_mul_i32 s88, s44, {URO}")
        a(f"s_add_u32 s88, s88, {L_R0 + 4 * (CW - URO)}")
        a(f"s_mul_i32 s86, s44, {CW - URO}")
        a(f"s_add_u32 s86, s86, {L_R0 - URO}")
        a("s_lshl_b32 s80, s35, 2")
        a("s_add_u32 s80, s80, s44")
        a("s_lshl_b32 s80, s80, 6")
        a("v_add_u32 v20, s80, v0")
        a("v_lshrrev_b32 v241, 3, v20")
        a("v_lshlrev_b32 v241, 11, v241")
        a("v_and_b32 v20, 7, v20")
        a("v_lshl_add_u32 v241, v20, 7, v241")
        a("s_lshr_b32 s80, s3, 2")
        a("s_lshl_b32 s80, s80, 10")
        a("v_add_u32 v241, s80, v241")
        a("s_lshl_b32 s80, s35, 6")
        a("s_lshl_b32 s81, s44, 4")
        a("s_add_u32 s80, s80, s81")
        a("v_lshrrev_b32 v20, 1, v0")
        a("v_add_u32 v20, s80, v20")
        a("v_lshlrev_b32 v20, 11, v20")
        a("v_and_b32 v21, 1, v0")
        a("v_lshl_add_u32 v20, v21, 7, v20")
        a("s_lshl_b32 s80, s3, 8")
        a("v_add_u32 v20, s80, v20")
        a("v_lshlrev_b32 v21, 7, v0")
        a("v_cmp_gt_u32 vcc, 32, v0")
        a("s_nop 1")
        a("v_cndmask_b32 v242, v240, v20, vcc")
        a("v_cndmask_b32 v243, v240, v21, vcc")
        AF_ = "af" in OPT
        a(f"v_lshrrev_b32 v20, {3 + AF_}, v0")
        a(f"v_and_b32 v21, {7 + 8 * AF_}, v0")
        a("s_lshl_b32 s80, s35, 6")
        if AF_:
            a("s_and_b32 s81, s44, 1")
            a("s_lshl_b32 s81, s81, 5")
            a("s_add_u32 s80, s80, s81")
        a("s_lshl_b32 s81, s3, 2")
        a("s_add_u32 s81, s81, s44")
        if AF_:
            a("s_andn2_b32 s81, s81, 1")
        a("s_lshl_b32 s81, s81, 5")
        a("v_lshlrev_b32 v22, 3, v20")
        a("v_add_u32 v22, s80, v22")
        a("v_lshlrev_b32 v23, 2, v21")
        a("v_add_u32 v23, s81, v23")
        a(f"v_lshlrev_b32 v{PA}, 12, v23")
        a(f"v_lshl_add_u32 v{PA}, v22, 1, v{PA}")
        if "yc" in OPT:
            assert AF_
            a("v_and_b32 v24, 3, v0")
            a("v_lshrrev_b32 v25, 2, v0")
            a("v_lshl_add_u32 v24, v24, 4, v25")
            a("v_lshlrev_b32 v24, 2, v24")
            a(f"ds_bpermute_b32 v{PA}, v24, v{PA}")
            a("v_lshl_add_u32 v247, v21, 2, v20")
            a("v_lshlrev_b32 v247, 2, v247")
        a(f"v_lshlrev_b32 v{PA + 1}, 11, v22")
        a(f"v_lshl_add_u32 v{PA + 1}, v23, 1, v{PA + 1}")
        a(f"v_lshlrev_b32 v{PA + 2}, 12, v22")
        a(f"v_lshl_add_u32 v{PA + 2}, v23, 1, v{PA + 2}")
        a(f"v_bfe_u32 v20, v0, 2, {3 + AF_}")
        a("s_lshl_b32 s80, s44, 3")
        if AF_:
            a("s_and_b32 s80, s80, 16")
        a("v_add_u32 v20, s80, v20")
        a("v_lshlrev_b32 v20, 3, v20")
        a("v_add_u32 v20, s3, v20")
        a("v_lshlrev_b32 v20, 7, v20")
        a("v_and_b32 v21, 3, v0")
        a("v_lshl_add_u32 v20, v21, 3, v20")
        a(f"v_add_u32 v{PA + 3}, 0x{fbase(FL_Y2) + 32:x}, v20")
        fshift(a, FL_Y2, PA + 3)
        a("s_and_b32 s40, s44, 1")
        a("s_lshr_b32 s41, s44, 1")
        a("s_waitcnt lgkmcnt(0)")
        a("s_lshl_b32 s80, s44, 4")
        a("s_lshr_b64 s[38:39], s[76:77], s80")
        a("s_lshl_b32 s39, s38, 16")
        a("s_lshl_b32 s57, s57, 16")
        a("s_lshl_b32 s40, s40, 1")
        a("s_add_u32 s40, s40, 1")
        a("v_and_b32 v192, 31, v0")
        a("v_lshlrev_b32 v192, 3, v192")
        a("v_add_u32 v192, s3, v192")
        a("v_lshlrev_b32 v192, 7, v192")
        a("s_lshr_b32 s80, s35, 3")
        a("s_lshl_b32 s80, s80, 3")
        a(f"s_add_u32 s80, s80, 0x{fbase(FL_UR) + 32:x}")
        a("v_add_u32 v192, s80, v192")
        fshift(a, FL_UR, 192)
        a("s_lshl_b32 s80, s44, 11")
        a(f"s_add_u32 s80, s80, {L_QH}")
        a("v_add_u32 v193, s80, v1")
        a("v_lshlrev_b32 v180, 3, v0")
        a("v_add_u32 v180, s86, v180")
        a("v_and_b32 v181, 1, v0")
        a(f"v_mul_u32_u24 v181, {CPY}, v181")
        a("v_bfe_u32 v182, v0, 1, 1")
        a("v_lshl_add_u32 v181, v182, 4, v181")
        a("v_add_u32 v181, s88, v181")
        a("v_mov_b32 v182, s88")
        a("v_mov_b32 v183, s57")
        for i in range(4):
            a(f"v_mov_b32 v{184 + i}, 0")

    p_setup, p_loads, p_comp, p_stores = p1_lists()
    if "nop1" in OPT:
        p_loads, p_comp, p_stores = p_loads[:1], [], []

    main_a = a
    a = Asm()
    for y in p_setup:
        a(y)
    later()
    setup2 = [x.strip() for x in a.L]
    a = main_a

    gl = list(range(32))

    def act(x):
        k, arg = x[0], x[1:]
        if k == "X":
            issue_x(int(arg))
        elif k == "W":
            issue_w(int(arg))
        elif k == "T":
            issue_x(int(arg)); issue_w(int(arg))
        elif k == "Y":
            park(int(arg), "X"); park(int(arg), "W")
        elif k == "Z":
            unpark(int(arg))
        elif k == "F":
            t0, n = map(int, arg.split("_"))
            emit_touch_fine(a, 234, 235, 228, t0)
            for y in touch(t0, n, 234, 235, 246):
                vm(y)
        elif k == "C":
            t = int(arg)
            a(f"s_cmp_eq_u32 s58, {t & 3}")
            a("s_cselect_b64 vcc, -1, 0")
            a(f"s_mov_b32 s82, {t * 128}")
            a(f"s_mov_b32 s83, {t * 393216}")
            a("v_cndmask_b32 v238, v240, v245, vcc")
            a("v_cndmask_b32 v239, v240, v244, vcc")
            vm(f"buffer_load_dword v246, v238, {S(SW)}, s83 offen")
            vm(f"buffer_load_dword v247, v239, {S(SX)}, s82 offen")
        elif k == "K":
            r = 242
            if arg:
                a(f"s_cmp_eq_u32 s58, {arg}")
                a("s_cselect_b64 vcc, -1, 0")
                a("s_nop 0")
                a("v_cndmask_b32 v237, v240, v242, vcc"); r = 237
            vm(f"buffer_load_dword v248, v{r}, {S(SK)}, 0 offen")
            vm(f"buffer_load_dword v249, v{r}, {S(SV)}, 0 offen")
        elif k == "P":
            for _ in range(int(arg)):
                if p_loads:
                    vm(p_loads.pop(0))
            if not p_loads:
                order.append("L")
        elif k == "V":
            assert all(v < 0 for v in parked.values())
            if "L" in order:
                a(f"s_waitcnt vmcnt({cnt(order[order.index('L') + 1:])})")
                order.remove("L")
            for _ in range(int(arg)):
                if p_comp:
                    a(p_comp.pop(0))
        elif k == "S":
            assert not p_comp and not p_loads
            for y in p_stores:
                vm(y)
            order.append("U")
        elif k == "U":
            a(f"s_waitcnt vmcnt({cnt(order[order.index('U') + 1:])})")
            emit_token_take(a, 172, VZ)
            emit_publish(a, FL_UR, 194, VZ)
            order.append("P")
        elif k == "A":
            emit_attn_setup(a, MASKS_H)
        elif k == "R":
            poll_issue(a, 192, 198)
            order.append("R")
        elif k == "o":
            vm(f"buffer_load_dword v178, v179, {S(SWO)}, 0 offen")
        elif k == "Q":
            vm(f"buffer_load_dword v246, v242, {S(SQ)}, 0 offen")
        elif k == "G":
            vm(f"buffer_load_dword v246, v243, {S(SHK)}, s87 offen")
        elif k == "O":
            vm(f"buffer_load_dword v248, v241, {S(SWO)}, 0 offen")
        elif k == "t":
            vm(f"buffer_load_dwordx2 v[172:173], v{VZ}, {S(SDBG)}, 0 offen{SC}")
        elif k == "a":
            ptr_loads(a)
            order.append("a")
        elif k == "b":
            if "fs" in OPT:
                if "a" not in order:
                    ptr_loads(a)
                a("s_waitcnt lgkmcnt(0)")
            late_setup(a, ts)
            if ts.on:
                order.append("P")
            a("v_mov_b32 v240, 0x80000000")
            a("s_and_b32 s58, s35, 3")
        elif k == "c":
            for _ in range(int(arg)):
                if setup2:
                    a(setup2.pop(0))
        elif k == "H":
            a("ds_write_b128 v181, v[184:187]")
            a(f"ds_write_b32 v182, v183 offset:{CPY + 28}")
            for c in range(2):
                a(f"s_add_u32 m0, s88, {32 + c * CPY}")
                a(f"s_add_u32 s80, s87, {2 * c}")
                for kk in range(4):
                    vm(f"buffer_load_dwordx4 v1, {S(SHK)}, s80 offen offset:{1024 * kk} {nt('h') if c else ''} lds")
        elif k in "DE":
            ls = a.newlabel("urskip")
            if "E" not in order:
                a(f"ds_write_b64 v180, v[184:185] offset:{URO + 4096}")
            if k == "E":
                a(f"s_waitcnt vmcnt({cnt(order[order.index('R') + 1:])})")
                a("v_cmp_eq_u64 vcc, s[78:79], v[198:199]")
                a("s_mov_b32 s38, 0")
                a("s_nop 0")
                a("s_cmp_eq_u32 vcc_lo, -1")
                a(f"s_cbranch_scc0 {ls}")
                a("s_mov_b32 s38, 1")
                order.append("E")
            else:
                if "E" in order:
                    a("s_cmp_eq_u32 s38, 1")
                    a(f"s_cbranch_scc1 {ls}")
                emit_poll(a, 192, 32, 198, pre=True)
                ts.stamp(a, 2)
            a(f"s_add_u32 m0, s86, {URO}")
            a(f"s_add_u32 s80, s87, 0x{WS_UR:x}")
            for kk in range(4):
                a(f"buffer_load_dwordx4 v1, {S(SWS)}, s80 offen offset:{1024 * kk} {nt('u')} lds")
            a.label(ls)
        else:
            raise ValueError(x)

    sc = os.environ.get("SCHED") or SCHEDS[optval("sc", 0)]
    sched = sc.split("|")
    assert len(sched) == 18, len(sched)
    if "tse" in OPT and ts.enabled:
        a("s_memrealtime s[92:93]")
    if "wn" in OPT:
        while wsetup:
            a(wsetup.pop(0))
    a("s_waitcnt lgkmcnt(0)")
    if "tse" in OPT and ts.enabled:
        a("v_writelane_b32 v254, s92, 29")
        ts.stamp(a, 0)
    for x in sched[0].split():
        act(x)
        if "tse" in OPT and x == "X1":
            ts.stamp(a, 9)
        if "tse" in OPT and x[0] == "c":
            ts.stamp(a, 2)
    for b in range(0, 17):
        if b not in skipped():
            real, nb = b, b
            while nb + 1 in skipped():
                nb += 1
            if b in parked:
                assert parked[b] < 0
                a("s_waitcnt lgkmcnt(0)")
            elif b < 16:
                wait_tile(max(range(b, nb + 1), key=lambda t: max(order.index(f"X{t}"), order.index(f"W{t}"))))
            if "tse" in OPT and b == 0:
                ts.stamp(a, 28)
            a("s_barrier")
        if "tsb" in OPT:
            ts.stamp(a, 11 + b)
        for x in sched[b + 1].split():
            if x[0] in "XWTZ":
                assert int(x[1:]) <= real + 3
            act(x)
    ts.stamp(a, 1)
    assert not setup2
    a("s_mov_b32 s46, s88")
    a(f"s_add_u32 s36, s87, 0x{wsy2():x}")

    def c_start():
        if optval("pv", -1) >= 0:
            a(f"s_setprio {optval('pv', 0)}")
        a("s_waitcnt vmcnt(0)")
        ts.stamp(a, 3)

    b = Asm()
    emit_attn_setup(b, MASKS_H)
    g2_tile(b)
    wo_addr(b)
    ys = emit_conv(a, {"start": c_start, "extra": [x.strip() for x in b.L], "bar": lambda: a("s_barrier")})
    ts.stamp(a, 5)
    a("s_setprio 0")
    if "eb" not in OPT:
        a("s_barrier")
    ts.stamp(a, 4)
    a(f"ds_read_b128 {vr(QC, 4)}, v193")
    a(f"ds_read_b128 {vr(QC + 4, 4)}, v193 offset:1024")
    if not optval("ys", 0):
        for x in ys:
            a(x)
    YY, OO = 168, 24
    if optval("ph", 0):
        a(f"s_setprio {optval('ph', 0)}")
    blk = wo_early()
    b = Asm()
    b("s_waitcnt vmcnt(0)")
    emit_publish(b, FL_Y2, 194, VZ)
    yb = optval("yb", 2)
    if optval("ys", 0):
        assert optval("ys", 0) < yb
        blk[optval("ys", 0)] = ys + blk.get(optval("ys", 0), [])
    blk[yb] = [x.strip() for x in b.L] + blk.get(yb, [])
    hk = {"blk": blk}
    blk[7] = blk7_flag() + blk.get(7, [])
    hk["prio"] = prio_plan("H")
    YE = optval("ye", 0)
    b = Asm()
    for i in range(8):
        if i % 2 == 0:
            b(f"s_mov_b32 s80, {4096 * (i >> 1)}")
        b(f"buffer_load_dwordx2 {vr(QQ + 2 * i, 2)}, v{PA + 1}, {S(SQ)}, s80 offen offset:{(i & 1) * 2048}")
    ql = [x.strip() for x in b.L]
    b = Asm()
    poll_issue(b, PA + 3, 196)
    pl = [x.strip() for x in b.L]
    if YE:
        blk[optval("qe", YE)] = blk.get(optval("qe", YE), []) + ql
        blk[YE] = blk.get(YE, []) + pl
    emit_attention(a, ool, hk, MASKS_H, "H")
    ts.stamp(a, 6)
    if not YE:
        for x in ql + pl:
            a(x)

    def y_issue(va):
        a(f"s_mov_b32 s80, 0x{wsy2():x}")
        for dd in range(4):
            a(f"buffer_load_dwordx4 {vr(YY + 4 * dd, 4)}, v{va}, {S(SWS)}, s80 offen {scl()}")
            if dd < 3:
                a("s_add_u32 s80, s80, 4096")

    def y_loads():
        emit_poll(a, PA + 3, 64, 196, pre=True)
        y_issue(PA)

    p3 = Asm()
    a, main_a = p3, a
    for i in range(8):
        for dd in range(4):
            ys = YY + 4 * dd + (i >> 1)
            qs = QQ + 2 * i + (dd >> 1)
            a(f"v_and_b32 v4, 0xffff0000, v{ys}" if i & 1 else f"v_lshlrev_b32 v4, 16, v{ys}")
            a(f"v_and_b32 v5, 0xffff0000, v{qs}" if dd & 1 else f"v_lshlrev_b32 v5, 16, v{qs}")
            a(f"v_mul_f32 v{OO + 4 * i + dd}, v4, v5")
        o = OO + 4 * i
        a(f"v_cvt_pk_bf16_f32 v{o}, v{o}, v{o + 1}")
        a(f"v_cvt_pk_bf16_f32 v{o + 1}, v{o + 2}, v{o + 3}")
    a = main_a
    outs = []
    for i in range(8):
        outs += [f"s_mov_b32 s80, {4096 * i}", f"buffer_store_dwordx2 {vr(OO + 4 * i, 2)}, v{PA + 2}, {S(SOUT)}, s80 offen{' sc1' if 'oa' in OPT else ''}{' nt' if 'na' in OPT else ''}"]

    def gate():
        if "yc" in OPT:
            for r in range(4):
                for dd in range(4):
                    a(f"ds_bpermute_b32 v{YY + 4 * dd + r}, v247, v{YY + 4 * dd + r}")
            a("s_waitcnt lgkmcnt(0)")
        for x in p3.L:
            a(x.strip())

    if YE:
        ll, lr = a.newlabel("ylate"), a.newlabel("yback")
        a("s_waitcnt vmcnt(2)")
        a("v_cmp_eq_u64 vcc, s[78:79], v[196:197]")
        a("v_mov_b32 v4, 0x80000000")
        a("s_nop 0")
        a("s_cmp_eq_u64 vcc, -1")
        a("s_cselect_b32 s38, 1, 0")
        a("s_cselect_b64 vcc, -1, 0")
        a("s_nop 0")
        a(f"v_cndmask_b32 v4, v4, v{PA}, vcc")
        if "yl" not in OPT:
            y_issue(4)
    if "ag" in OPT:
        lfin = a.newlabel("afin")

        def mid():
            a("s_cmp_eq_u32 s38, 0")
            a(f"s_cbranch_scc1 {ll}")
            a("s_waitcnt vmcnt(1)")
            a.label(lr)
            gate()
            for x in outs:
                a(x)
            a("s_cmp_eq_u32 s38, 0")
            a(f"s_cbranch_scc1 {lfin}")
            a.label(ll)
        wo_late(a, ts, 4, True, mid)
        a("s_waitcnt vmcnt(0)")
        lds_flag_set(a, 32, 0, 4)
        ts.stamp(a, 8)
        a("s_cmp_eq_u32 s38, 1")
        a(f"s_cbranch_scc1 {lfin}")
        for x in pl:
            a(x)
        y_loads()
        a("s_waitcnt vmcnt(0)")
        a(f"s_branch {lr}")
        a.label(lfin)
    elif YE:
        wo_late(a, ts, 0 if "yl" in OPT else 4, True)
        a("s_cmp_eq_u32 s38, 0")
        a(f"s_cbranch_scc1 {ll}")
        if "yl" in OPT:
            if optval("yd", 0):
                a("s_waitcnt vmcnt(0)")
                lds_flag_set(a, 32, 0, 6)
                a(f"s_sleep {optval('yd', 0)}")
            y_issue(4)
            a("s_waitcnt vmcnt(4)")
            lds_flag_set(a, 32, 0, 6)
            a("s_waitcnt vmcnt(0)")
        a(f"s_waitcnt vmcnt({0 if 'nolate' in OPT else nlate() + (1 if optval('es', 0) == 1 or 'a1' in OPT else 0)})")
        a.label(lr)
        main_a, sub = a, Asm()
        sub.uid = main_a.uid + 1000
        a = sub
        a("s_waitcnt vmcnt(0)")
        lds_flag_set(a, 32, 0, 4)
        for x in pl:
            a(x)
        y_loads()
        a("s_waitcnt vmcnt(0)")
        main_a.uid = sub.uid
        a = main_a
        ool.append((ll, [x.strip() for x in sub.L], lr))
        gate()
        if "ae" in OPT:
            for x in outs:
                a(x)
            outs = []
        a(f"s_waitcnt vmcnt({8 if 'ae' in OPT else 0})")
        lds_flag_set(a, 32, 0, 4)
        ts.stamp(a, 8)
        if optval("ad", 0):
            a(f"s_sleep {optval('ad', 0)}")
        if optval("aw", 0):
            lp, dn = a.newlabel("aw"), a.newlabel("awd")
            a("s_setprio 0")
            a("s_mov_b32 s85, 0")
            a.label(lp)
            a("ds_read_b32 v5, v4 offset:80")
            a("s_add_u32 s85, s85, 1")
            a("s_waitcnt lgkmcnt(0)")
            a("v_cmp_ne_u32 vcc, 0, v5")
            a(f"s_cbranch_vccnz {dn}")
            a("s_sleep 4")
            a("s_cmp_lt_u32 s85, 64")
            a(f"s_cbranch_scc1 {lp}")
            a.label(dn)
        for x in outs:
            if "noa" not in OPT:
                a(x)
    else:
        raise ValueError("ye required")
    if optval("wb", 0):
        lw = a.newlabel("nowb")
        a(f"s_and_b32 s80, s35, {optval('wb', 0) - 1}")
        a("s_or_b32 s80, s80, s44")
        a("s_cmp_lg_u32 s80, 0")
        a(f"s_cbranch_scc1 {lw}")
        a("s_waitcnt vmcnt(0)")
        a(f"s_sleep {optval('wd', 16)}")
        a("buffer_wbl2 sc1")
        a("s_waitcnt vmcnt(0)")
        a.label(lw)
    ts.final(a, 10)
    a("s_endpgm")


def ptr_loads(a, helper=True):
    for (d, off, size) in SRDS[2:]:
        if helper or d not in (SK, SV, SSH, SHK):
            a(f"s_load_dwordx2 s[{d}:{d + 1}], s[0:1], {off}")
    if helper:
        a("s_load_dwordx2 s[36:37], s[0:1], 40")


def gen_fused(a, ts):
    name = NAME + "_kernel"
    kernel_begin(a, name)
    ts.entry(a)
    a("s_cmp_ge_u32 s2, 256")
    a("s_cbranch_scc1 L_end")
    if optval("xj", 0):
        a(f"s_xor_b32 s2, s2, {optval('xj', 0)}")
    for (d, off, size) in SRDS[:2]:
        a(f"s_load_dwordx2 s[{d}:{d + 1}], s[0:1], {off}")
    if "fs" not in OPT:
        ptr_loads(a)
    for o in OPT:
        if o.startswith("xp"):
            c = sum((int(d) ^ p) << (2 * p + 1) for p, d in enumerate(o[2:]))
            a("s_and_b32 s80, s2, 6")
            a(f"s_lshr_b32 s80, 0x{c:x}, s80")
            a("s_and_b32 s80, s80, 6")
            a("s_xor_b32 s2, s2, s80")
    a("v_lshrrev_b32 v1, 6, v0")
    if "hf" in OPT:
        a("v_xor_b32 v1, 4, v1")
    a("v_and_b32 v0, 63, v0")
    a("s_and_b32 s3, s2, 7")
    a("v_readfirstlane_b32 s32, v1")
    a("s_lshr_b32 s35, s2, 3")
    a("s_and_b32 s33, s3, 1")
    a("s_lshl_b32 s33, s33, 3")
    a("s_and_b32 s80, s35, 7")
    a("s_add_u32 s33, s33, s80")
    a("s_lshr_b32 s34, s3, 1")
    a("s_lshl_b32 s34, s34, 2")
    a("s_lshr_b32 s80, s35, 3")
    a("s_add_u32 s34, s34, s80")
    if optval("hx", 0):
        a(f"s_xor_b32 s34, s34, {optval('hx', 0)}")
    a("v_lshlrev_b32 v1, 4, v0")
    a(f"v_mov_b32 v{VZ}, 0")
    for (d, off, size) in SRDS[:2]:
        a(f"s_mov_b32 s{d + 2}, 0x{size:x}")
        a(f"s_mov_b32 s{d + 3}, 0x20000")
    a("s_and_b32 s44, s32, 3")
    a("s_mov_b32 s59, 0")
    a("s_cmp_lt_u32 s32, 4")
    a("s_cbranch_scc1 L_M")
    ool = []
    h_path(a, ts, ool)
    a.label("L_M")
    if "fs" in OPT:
        ptr_loads(a, False)
    m_path(a, ts, ool)
    for (lf, body, lb) in ool:
        a.label(lf)
        for x in body:
            a(x)
        a(f"s_branch {lb}")
    a.label("L_end")
    a("s_endpgm")
    emit_exact(a)
    return name, 256, 102


def build(instrument=False):
    if "best" in OPT:
        have = {o.rstrip("0123456789") for o in OPT}
        OPT.update(o for o in BEST.split(",") if o.rstrip("0123456789") not in have and "no" + o not in OPT)
    ts = TS(instrument)
    a = Asm()
    a.raw("; fused H3 long-conv | sliding-window attention kernel (generated)")
    a.raw("; @launch grid=(256,1,1) block=(512,1,1) lds=163840")
    a.raw('.amdgcn_target "amdgcn-amd-amdhsa--gfx950"')
    a.raw(".text")
    n, v, s = gen_fused(a, ts)
    a.raw('.section .rodata,"a"')
    kernel_desc(a, n, v, s)
    return a.text()


if __name__ == "__main__":
    out = sys.argv[1] if len(sys.argv) > 1 else f"cdna_kernels/{NAME}.s"
    if len(sys.argv) > 2:
        OPT.update(sys.argv[2].split(","))
    open(out, "w").write(build())
```

```python
import sys, struct, os, re
from gen import Asm, vr, srd, kernel_begin, kernel_desc, MB, NAME
from gf import f32hex
import gf

OPT = set()
WS_KF, WS_VF, WS_UR, WS_OF, WS_Y2, WS_FL = 4 * MB, 8 * MB, 12 * MB, 16 * MB, 20 * MB, 24 * MB
WS_SIZE = 26 * MB
FL_UR, FL_K, FL_Y2, FL_O, FL_V = 0, 1, 2, 3, 4

CPY, URO, CW = 4160, 8320, 12928
L_HD, L_V = 49152, 24576
L_QH = 98304
L_R0 = 106496
L_FL = L_R0 + 4 * CW
SC = " sc1"
SPIN_LIMIT = 1 << 18
SCALE_LOG2E = (32 ** -0.5) * 1.4426950408889634
SX, SW, SWS, SK, SV, SSH, SHK, SWO, SQ, SOUT, SDBG = 4, 8, 12, 16, 20, 24, 28, 60, 64, 68, 72
MASKS_H = [4, 6, 8, 10, 16, 18, 20, 22, 24, 26, 48, 50, 52, 54, 56, 58]
MASKS_M = [4, 6, 16, 18, 20, 22, 24, 26, 28, 30, 58, 76, 92, 94, 96, 98]


WS_TS = 32 * MB


class TS:
    def __init__(self, on):
        self.enabled = on
        self.on = False

    def entry(self, a):
        if self.enabled:
            a("s_memrealtime s[98:99]")
            a("s_memtime s[100:101]")
            a("v_mov_b32 v254, 0")

    def setup(self, a, ws_pair):
        if self.enabled:
            a("v_writelane_b32 v254, s98, 30")

    def stamp(self, a, slot):
        if self.enabled and ("tsmin" not in OPT or slot == 10):
            a("s_memrealtime s[90:91]")
            a("s_waitcnt lgkmcnt(0)")
            a(f"v_writelane_b32 v254, s90, {slot}")
            if "cya" in OPT and slot < 11:
                a("s_memtime s[90:91]")
                a("s_waitcnt lgkmcnt(0)")
                a(f"v_writelane_b32 v254, s90, {slot + 12}")

    def final(self, a, slot):
        if not self.enabled:
            return
        a("s_waitcnt vmcnt(0)")
        self.stamp(a, slot)
        a("s_memtime s[90:91]")
        srd(a, 92, SWS, 4 * MB, WS_TS)
        a("s_lshl_b32 s96, s2, 4")
        a("s_add_u32 s96, s96, s32")
        a("s_lshl_b32 s96, s96, 8")
        a("s_waitcnt lgkmcnt(0)")
        a("s_sub_u32 s90, s90, s100")
        a("v_writelane_b32 v254, s90, 31")
        a("v_mov_b32 v255, 0")
        a("v_lshlrev_b32 v253, 3, v0")
        a("s_mov_b32 exec_hi, 0")
        a("buffer_store_dwordx2 v[254:255], v253, s[92:95], s96 offen")


def emit_wg_of(a, vdst, vrb, vhp, t):
    if optval("hx", 0):
        a(f"v_xor_b32 v{vhp}, {optval('hx', 0)}, v{vhp}")
    gf.emit_wg_of(a, vdst, vrb, vhp, t)


def S(n):
    return f"s[{n}:{n + 3}]"


SCHEDS = {
    0: "X0 a W0 X1 b c31 W1 | X2 P7 W2 c38 | T3 P7 X4 | W4 T5 P7 c44 | T6 c44 | T7 c50 t | T8 G V95 | T9 V95 | T10 V95 S | T11"
       " | T12 o U | T13 | T14 | T15 R | H O | | E | D",
}
BEST = "we3,yb3,cp,cq54,rg4,ry1,ya,ft30,sw14_2,ye7,prM322110000,prH333221101,pe3,pv1,od8,fs,ms233,bf,ob,af,oa,aw46,g16,m16,ki4,cf,ce,sz,qk2,ske,se,xp0132"


def skipped():
    return {int(c, 16) for o in OPT if o.startswith("sk") for c in o[2:]}


def wide(kind):
    return optval("fw", 0) >> kind & 1


def fbase(kind):
    if wide(kind):
        return (WS_FL + 0x100000 + (kind >> 1) * 0x80000 + (kind & 1) * 1024) >> 4
    return WS_FL + kind * 32768


def fshift(a, kind, v):
    if wide(kind):
        a(f"v_lshlrev_b32 v{v}, 4, v{v}")


def slot(t):
    return (3, 2, 0, 1)[t & 3]


def wsy2():
    return WS_UR if "ya" in OPT else WS_Y2


def nt(k):
    return "nt" if "nt" + k in OPT else ""


def scl():
    return "sc1" if "ldsc1" in OPT else ""


def optval(prefix, default):
    for o in OPT:
        if o.startswith(prefix) and o[len(prefix):].lstrip("-").isdigit():
            return int(o[len(prefix):])
    return default


def tok_cmp(a, t):
    if "c32" not in OPT:
        a(f"v_cmp_eq_u64 vcc, s[78:79], {vr(t, 2)}")
        return
    a(f"v_xor_b32 v{t}, s78, v{t}")
    a(f"v_xor_b32 v{t + 1}, s79, v{t + 1}")
    a(f"v_or_b32 v{t + 1}, v{t}, v{t + 1}")
    a(f"v_xor_b32 v{t}, s78, v{t}")
    a(f"v_cmp_eq_u32 vcc, 0, v{t + 1}")
    a(f"v_xor_b32 v{t + 1}, s79, v{t + 1}")


def poll_issue(a, voff, tmp):
    ps = optval("ps", 0) if (voff == 191 or "psa" in OPT) else 0
    if ps == 4:
        a(f"v_mov_b32 v{tmp}, 0")
        a(f"v_mov_b32 v{tmp + 1}, 0")
        a(f"buffer_atomic_or_x2 {vr(tmp, 2)}, v{voff}, {S(SWS)}, 0 offen sc0 sc1")
        return
    a(f"buffer_load_dwordx2 {vr(tmp, 2)}, v{voff}, {S(SWS)}, 0 offen{[SC, ' sc0 sc1', ' sc1 nt', ' sc0 sc1 nt'][ps]}")


def emit_poll(a, voff, nlanes, tmp, pre=False, sleep=0):
    lp, ck, dn = a.newlabel("poll"), a.newlabel("pollc"), a.newlabel("polld")
    mask = (1 << nlanes) - 1
    a(f"s_mov_b32 s80, 0x{mask & 0xffffffff:x}")
    a(f"s_mov_b32 s81, 0x{mask >> 32:x}")
    a("s_mov_b32 s85, 0")
    if not pre:
        a.label(lp)
        poll_issue(a, voff, tmp)
        a("s_waitcnt vmcnt(0)")
        tok_cmp(a, tmp)
        a("s_add_u32 s85, s85, 1")
        a("s_and_b64 s[82:83], vcc, s[80:81]")
        a("s_cmp_eq_u64 s[82:83], s[80:81]")
        a(f"s_cbranch_scc1 {dn}")
        if sleep:
            a(f"s_sleep {sleep}")
        a(f"s_cmp_lt_u32 s85, 0x{SPIN_LIMIT:x}")
        a(f"s_cbranch_scc1 {lp}")
        a.label(dn)
    else:
        a.label(ck)
        a("s_waitcnt vmcnt(0)")
        tok_cmp(a, tmp)
        a("s_add_u32 s85, s85, 1")
        a("s_and_b64 s[82:83], vcc, s[80:81]")
        a("s_cmp_eq_u64 s[82:83], s[80:81]")
        a(f"s_cbranch_scc1 {dn}")
        if sleep:
            a(f"s_sleep {sleep}")
        poll_issue(a, voff, tmp)
        a(f"s_cmp_lt_u32 s85, 0x{SPIN_LIMIT:x}")
        a(f"s_cbranch_scc1 {ck}")
        a("s_waitcnt vmcnt(0)")
        a.label(dn)


def emit_publish(a, kind, t0, vz, smode=None, lo=78):
    if wide(kind):
        a(f"s_add_u32 s80, s89, 0x{fbase(kind):x}")
        a("s_lshl_b32 s80, s80, 4")
        for i in range(4):
            a(f"v_mov_b32 v{t0 + i}, s{78 + (i & 1)}")
        a(f"s_mov_b64 exec, {optval('fx', 255)}")
        a(f"buffer_store_dwordx4 {vr(t0, 4)}, v1, {S(SWS)}, s80 offen{SC}")
        a("s_mov_b64 exec, -1")
        a("s_nop 0")
        return
    if kind == FL_O and "fl" in OPT:
        a("s_lshl_b32 s80, s89, 4")
        a(f"s_add_u32 s80, s80, 0x{WS_FL + 0x80000:x}")
    else:
        a(f"s_add_u32 s80, s89, 0x{WS_FL + kind * 32768:x}")
    a(f"v_mov_b32 v{t0}, s{lo}")
    a(f"v_mov_b32 v{t0 + 1}, s79")
    if smode is None:
        a("s_mov_b64 exec, 1")
    else:
        a("s_mov_b32 exec_hi, 0")
        a(f"s_mov_b32 exec_lo, s{smode}")
        a(f"buffer_store_dwordx2 {vr(t0, 2)}, v{vz}, {S(SWS)}, s80 offen")
        a(f"s_xor_b32 exec_lo, s{smode}, 1")
    a(f"buffer_store_dwordx2 {vr(t0, 2)}, v{vz}, {S(SWS)}, s80 offen{SC}")
    a("s_mov_b64 exec, -1")


def emit_token_take(a, t0, vz):
    lp, dn = a.newlabel("tok"), a.newlabel("tokd")
    a("s_mov_b32 s85, 0")
    a.label(lp)
    a(f"v_readfirstlane_b32 s78, v{t0}")
    a(f"v_readfirstlane_b32 s79, v{t0 + 1}")
    a("s_add_u32 s85, s85, 1")
    a("s_cmp_lg_u64 s[78:79], 0")
    a(f"s_cbranch_scc1 {dn}")
    a(f"buffer_load_dwordx2 {vr(t0, 2)}, v{vz}, {S(SDBG)}, 0 offen{SC}")
    a("s_waitcnt vmcnt(0)")
    a(f"s_cmp_lt_u32 s85, 0x{SPIN_LIMIT:x}")
    a(f"s_cbranch_scc1 {lp}")
    a.label(dn)


def emit_wline(a, dst, idx, hi, t):
    a(f"v_mul_u32_u24 v{dst}, 5462, v{idx}")
    a(f"v_lshrrev_b32 v{dst}, 16, v{dst}")
    a(f"v_mul_u32_u24 v{t}, 12, v{dst}")
    a(f"v_sub_u32 v{t}, v{idx}, v{t}")
    if hi is not None:
        a(f"v_lshl_add_u32 v{dst}, v{hi}, 6, v{dst}")
    a(f"v_mul_u32_u24 v{dst}, 6144, v{dst}")
    a(f"v_lshrrev_b32 v{t + 1}, 2, v{t}")
    a(f"v_lshl_add_u32 v{dst}, v{t + 1}, 11, v{dst}")
    a(f"v_and_b32 v{t}, 3, v{t}")
    a(f"v_lshl_add_u32 v{dst}, v{t}, 7, v{dst}")
    a("s_lshr_b32 s83, s3, 1")
    a("s_lshl_b32 s83, s83, 9")
    a(f"v_add_u32 v{dst}, s83, v{dst}")


def emit_touch_fine(a, VTX, VTW, t, t0):
    a(f"v_and_b32 v{t}, 7, v0")
    a(f"v_lshrrev_b32 v{t + 1}, 3, v0")
    a(f"s_add_u32 s82, s59, {t0}")
    a(f"v_add_u32 v{t + 1}, s82, v{t + 1}")
    a(f"v_and_b32 v{t + 1}, 15, v{t + 1}")
    a("s_lshl_b32 s82, s35, 2")
    a("s_add_u32 s82, s82, s44")
    a("s_lshl_b32 s81, s82, 3")
    a("s_and_b32 s83, s3, 1")
    a("s_lshl_b32 s83, s83, 10")
    a("s_add_u32 s81, s81, s83")
    a(f"v_add_u32 v{t + 2}, s81, v{t}")
    a(f"v_lshlrev_b32 v{t + 2}, 11, v{t + 2}")
    a(f"v_lshl_add_u32 v{VTX}, v{t + 1}, 7, v{t + 2}")
    a("s_mul_i32 s82, s82, 6")
    a(f"v_add_u32 v{t + 2}, s82, v{t}")
    emit_wline(a, VTW, t + 2, t + 1, t + 3)
    a(f"v_mov_b32 v{t + 4}, 0x80000000")
    a(f"v_cmp_gt_u32 vcc, 6, v{t}")
    a("s_nop 1")
    a(f"v_cndmask_b32 v{VTW}, v{t + 4}, v{VTW}, vcc")


def emit_touch_coarse(a, VTX, VTW, t):
    a("s_lshr_b32 s82, s35, 2")
    a("s_lshl_b32 s82, s82, 2")
    a("s_add_u32 s82, s82, s44")
    a("s_lshl_b32 s81, s82, 5")
    a("s_and_b32 s83, s3, 1")
    a("s_lshl_b32 s83, s83, 10")
    a("s_add_u32 s81, s81, s83")
    a(f"v_add_u32 v{t + 2}, s81, v0")
    a(f"v_lshlrev_b32 v{VTX}, 11, v{t + 2}")
    a("s_mul_i32 s82, s82, 24")
    a(f"v_add_u32 v{t + 2}, s82, v0")
    emit_wline(a, VTW, t + 2, None, t + 3)
    a(f"v_mov_b32 v{t + 4}, 0x80000000")
    a("v_cmp_gt_u32 vcc, 32, v0")
    a("s_nop 1")
    a(f"v_cndmask_b32 v{VTX}, v{t + 4}, v{VTX}, vcc")
    a("v_cmp_gt_u32 vcc, 24, v0")
    a("s_nop 1")
    a(f"v_cndmask_b32 v{VTW}, v{t + 4}, v{VTW}, vcc")


def touch(t0, nt, VTX, VTW, dst):
    m = (1 << (8 * nt)) - 1
    out = []
    if nt < 8:
        out += [f"s_mov_b32 exec_lo, 0x{m & 0xffffffff:x}", f"s_mov_b32 exec_hi, 0x{m >> 32:x}"]
    out += [f"buffer_load_dword v{dst}, v{VTW}, {S(SW)}, 0 offen",
            f"buffer_load_dword v{dst + 1}, v{VTX}, {S(SX)}, 0 offen"]
    if nt < 8:
        out.append("s_mov_b64 exec, -1")
    return out


QC = 224
SBUF = [8, 24, 40]
KB = [56, 64, 72]
VB = [80, 88, 160]
OA = 96
CM = 200
LS = 128
ONE = 240
PM = 232
P0 = 144
VM, VM2, VT, VNEG, VK, VK0 = 152, 153, 154, 244, 245, 246
YP = 176
QQ, PA = 112, 216


def emit_attn_setup(a0, MASKS, t=4):
    a = lambda x: a0(re.sub(r"\bv([456])\b", lambda m: f"v{int(m.group(1)) - 4 + t}", x))
    a("v_and_b32 v4, 31, v0")
    a("v_lshrrev_b32 v5, 5, v0")
    a("v_lshlrev_b32 v5, 2, v5")
    a("v_sub_u32 v4, v4, v5")
    for r in range(16):
        a(f"v_cmp_le_i32 s[{MASKS[r]}:{MASKS[r] + 1}], {8 * (r >> 2) + (r & 3)}, v4")
    a(f"v_mov_b32 v{VNEG}, 0xf149f2ca")
    a("v_mov_b32 v4, 0xffff")
    a("v_mov_b32 v5, 0xffff0000")
    for j in range(8):
        a(f"v_cndmask_b32 v{PM + j}, 0, v4, s[{MASKS[2 * j]}:{MASKS[2 * j] + 1}]")
        a(f"v_cndmask_b32 v6, 0, v5, s[{MASKS[2 * j + 1]}:{MASKS[2 * j + 1] + 1}]")
        a(f"v_or_b32 v{PM + j}, v{PM + j}, v6")
    a("v_lshrrev_b32 v4, 4, v0")
    a("v_lshrrev_b32 v5, 2, v0")
    a("v_xor_b32 v4, v4, v5")
    a("v_and_b32 v4, 1, v4")
    a("v_cmp_eq_u32 vcc, 0, v4")
    a("v_mov_b32 v5, 0x3f803f80")
    for i in range(4):
        a(f"v_cndmask_b32 v{ONE + i}, 0, v5, vcc")
    a(f"s_mul_i32 s42, s41, {L_HD}")
    a("s_lshl_b32 s43, s40, 11")
    a("s_add_u32 s42, s42, s43")
    a(f"v_add_u32 v{VK}, s42, v1")
    a("s_lshl_b32 s45, s33, 2")
    a("s_add_u32 s45, s45, s40")
    a("s_sub_u32 s46, 8, s45")
    a("s_cmp_lt_u32 s45, 8")
    a("s_cselect_b32 s46, s46, 0")
    a("s_cselect_b32 s43, 0x4000, 0")
    a(f"v_add_u32 v{VK0}, s43, v{VK}")
    a("s_lshl_b32 s47, s45, 5")
    a("s_lshl_b32 s42, s34, 1")
    a("s_add_u32 s47, s47, s42")
    a("s_add_u32 s47, s47, s41")
    a("s_lshl_b32 s47, s47, 11")
    a(f"s_add_u32 s47, s47, 0x{WS_OF:x}")


def prio_plan(role):
    for o in OPT:
        if o.startswith("pr" + role):
            d = o[3:]
            out, last = {}, None
            for k, c in zip([0, 2, 3, 4, 5, 6, 7, 8, 9], d):
                if c != last or k == 9:
                    out[k] = int(c)
                last = c
            return out
    return {}


def emit_attention(a, ool, hooks, MASKS, role):
    order = [8, 0, 7, 6, 5, 4, 3, 2, 1]

    def hook(k):
        if k in hooks:
            hooks[k]()

    def kread(i):
        rel, b = order[i % 9], KB[i % 3]
        return [f"ds_read_b128 {vr(b, 4)}, v{VK} offset:{rel * 2048}",
                f"ds_read_b128 {vr(b + 4, 4)}, v{VK} offset:{rel * 2048 + 1024}"]

    def vread(i):
        rel, b = order[i], VB[i % 3]
        ad = VK0 if rel == 0 else VK
        return [f"ds_read_b128 {vr(b, 4)}, v{ad} offset:{L_V + rel * 2048}",
                f"ds_read_b128 {vr(b + 4, 4)}, v{ad} offset:{L_V + rel * 2048 + 1024}"]

    def smf(i, c):
        s, k = vr(SBUF[i % 3], 16), KB[i % 3]
        return [f"v_mfma_f32_32x32x16_bf16 {s}, {vr(k, 4)}, {vr(QC, 4)}, {c}",
                f"v_mfma_f32_32x32x16_bf16 {s}, {vr(k + 4, 4)}, {vr(QC + 4, 4)}, {s}"]

    def merge():
        lf, lb = a.newlabel("mneg"), a.newlabel("mback")
        a("s_cmp_gt_u32 s46, 0")
        a(f"s_cbranch_scc1 {lf}")
        for r in range(16):
            a(f"v_cndmask_b32 v{SBUF[1] + r}, v{SBUF[1] + r}, v{SBUF[0] + r}, s[{MASKS[r]}:{MASKS[r] + 1}]")
        a.label(lb)
        ool.append((lf, [f"v_cndmask_b32 v{SBUF[1] + r}, v{VNEG}, v{SBUF[0] + r}, s[{MASKS[r]}:{MASKS[r] + 1}]"
                         for r in range(16)], lb))

    def maxblk(i):
        s = SBUF[i % 3]
        ta, tb = (VM, VM2) if i == 1 else (VT, VM2)
        if i >= 2:
            a(f"s_cmp_le_u32 s46, {order[i]}")
            a("s_cselect_b64 vcc, -1, 0")
        a(f"v_max3_f32 v{ta}, v{s}, v{s + 1}, v{s + 2}")
        a(f"v_max3_f32 v{tb}, v{s + 3}, v{s + 4}, v{s + 5}")
        for x in range(5):
            t = (ta, tb)[x & 1]
            a(f"v_max3_f32 v{t}, v{s + 6 + 2 * x}, v{s + 7 + 2 * x}, v{t}")
        a(f"v_max_f32 v{ta}, v{ta}, v{tb}")
        if i >= 2:
            a(f"v_cndmask_b32 v{ta}, v{VNEG}, v{ta}, vcc")
            a(f"v_max_f32 v{VM}, v{VM}, v{ta}")

    if 0 in hooks.get("prio", {}):
        a(f"s_setprio {hooks['prio'][0]}")
    SZ = "sz" in OPT
    for x in kread(0) + kread(1) + kread(2) + vread(0) + vread(1):
        a(x)
    if not SZ:
        a("s_waitcnt lgkmcnt(8)")
        for x in smf(0, "0"):
            a(x)
        a("s_waitcnt lgkmcnt(6)")
        for x in smf(1, "0") + kread(3):
            a(x)
        a("s_nop 7")
        a("s_nop 7")
        merge()
        maxblk(1)
        a(f"v_mov_b32 v{VT}, v{VM}")
        a("s_nop 1")
        a(f"v_permlane32_swap_b32 v{VM}, v{VT}")
        a("s_nop 1")
        a(f"v_max_f32 v{VM}, v{VM}, v{VT}")
        if "np" in OPT:
            for r in range(0, 16, 2):
                a(f"v_pk_mul_f32 {vr(CM + r, 2)}, {vr(VM, 2)}, -1.0 op_sel_hi:[0,0]")
        for r in range(16 * ("np" not in OPT)):
            a(f"v_sub_f32 v{CM + r}, 0, v{VM}")
    hook("mid")
    cm, o, ls = ("0" if SZ else vr(CM, 16)), vr(OA, 16), vr(LS, 4)

    def pv(i):
        s = SBUF[i % 3]
        if i == 1:
            return [f"v_mfma_f32_32x32x16_bf16 {o}, {vr(VB[0], 4)}, {vr(s + 8, 4)}, 0",
                    f"v_mfma_f32_16x16x32_bf16 {ls}, {vr(ONE, 4)}, {vr(s, 4)}, 0",
                    f"v_mfma_f32_32x32x16_bf16 {o}, {vr(VB[0] + 4, 4)}, {vr(s + 12, 4)}, {o}",
                    f"v_mfma_f32_16x16x32_bf16 {ls}, {vr(ONE, 4)}, {vr(s + 4, 4)}, {ls}",
                    f"v_mfma_f32_32x32x16_bf16 {o}, {vr(VB[1], 4)}, {vr(P0, 4)}, {o}",
                    f"v_mfma_f32_32x32x16_bf16 {o}, {vr(VB[1] + 4, 4)}, {vr(P0 + 4, 4)}, {o}"]
        v = VB[i % 3]
        return [f"v_mfma_f32_32x32x16_bf16 {o}, {vr(v, 4)}, {vr(s, 4)}, {o}",
                f"v_mfma_f32_16x16x32_bf16 {ls}, {vr(ONE, 4)}, {vr(s, 4)}, {ls}",
                f"v_mfma_f32_32x32x16_bf16 {o}, {vr(v + 4, 4)}, {vr(s + 4, 4)}, {o}",
                f"v_mfma_f32_16x16x32_bf16 {ls}, {vr(ONE, 4)}, {vr(s + 4, 4)}, {ls}"]

    def valu(i):
        s = SBUF[i % 3]
        return [(f"v_exp_f32 v{s + r}, v{s + r}", 8) for r in range(16)] + \
               [(f"v_cvt_pk_bf16_f32 v{s + j}, v{s + 2 * j}, v{s + 2 * j + 1}", 4) for j in range(8)]

    def weave(ms, vs):
        vs = list(vs)
        for m in ms:
            a(m)
            need = (32 if "32x32" in m else 16) - 8
            while vs and need > 0:
                x, c = vs.pop(0)
                a(x)
                need -= c
        for x, c in vs:
            a(x)

    fin = a.newlabel("afin")
    if SZ:
        for i in range(3):
            a(f"s_waitcnt lgkmcnt({8 - 2 * i})")
            for x in smf(i, cm):
                a(x)
        for x in kread(3):
            a(x)
        merge()
    else:
        a("s_waitcnt lgkmcnt(6)")
        for x in smf(2, cm):
            a(x)
        if "np" in OPT:
            for r in range(0, 16, 2):
                a(f"v_pk_add_f32 {vr(SBUF[1] + r, 2)}, {vr(SBUF[1] + r, 2)}, {vr(CM, 2)}")
        for r in range(16 * ("np" not in OPT)):
            a(f"v_sub_f32 v{SBUF[1] + r}, v{SBUF[1] + r}, v{VM}")
    s = SBUF[1]
    for x, c in valu(1):
        a(x)
    for j in range(8):
        a(f"v_and_b32 v{s + 8 + j}, v{s + j}, v{PM + j}")
    for j in range(8):
        a(f"v_xor_b32 v{P0 + j}, v{s + j}, v{s + 8 + j}")
    blk = hooks.get("blk", {})
    for i in range(2, 9):
        ex = a.newlabel("aexit")
        a("s_waitcnt lgkmcnt(0)")
        a(f"s_cmp_gt_u32 s46, {order[i]}")
        a(f"s_cbranch_scc1 {ex}")
        ool.append((ex, pv(i - 1) + [x for k in range(i, 9) for x in blk.get(k, [])], fin))
        if i in hooks.get("prio", {}):
            a(f"s_setprio {hooks['prio'][i]}")
        for x in blk.get(i, []):
            a(x)
        for x in vread(i) + (kread(i + 2) if i + 2 < 9 else []):
            a(x)
        weave((smf(i + 1, cm) if i + 1 < 9 else []) + pv(i - 1), valu(i))
    a("s_waitcnt lgkmcnt(0)")
    for x in pv(8):
        a(x)
    a.label(fin)
    if 9 in hooks.get("prio", {}):
        a(f"s_setprio {hooks['prio'][9]}")
    hook("end")
    a("s_nop 7")
    a("s_nop 3")
    a(f"v_rcp_f32 v{VT}, v{LS}")
    if "np" in OPT:
        a(f"v_pk_add_f32 {vr(P0, 2)}, {vr(OA, 2)}, {vr(OA + 2, 2)}")
        a(f"v_pk_add_f32 {vr(P0 + 2, 2)}, {vr(OA + 4, 2)}, {vr(OA + 6, 2)}")
        for r in range(8, 16, 2):
            t_ = P0 + (r & 2)
            a(f"v_pk_add_f32 {vr(t_, 2)}, {vr(t_, 2)}, {vr(OA + r, 2)}")
        a(f"v_pk_add_f32 {vr(P0, 2)}, {vr(P0, 2)}, {vr(P0 + 2, 2)}")
        a(f"v_add_f32 v{VM2}, v{P0}, v{P0 + 1}")
        a(f"v_fma_f32 v{VM2}, 0, v{VM2}, v{LS}")
    else:
        a(f"v_mul_f32 v{VM2}, 0, v{OA}")
        for r in range(1, 16):
            a(f"v_fmac_f32 v{LS if r & 1 else VM2}, 0, v{OA + r}")
        a(f"v_add_f32 v{VM2}, v{VM2}, v{LS}")
    a(f"v_add_f32 v{VM2}, v{VM2}, v{VT}")
    a(f"v_cmp_gt_f32 vcc, 0x{0x3f800000 + (optval('thr', 30) << 23):x}, v{VM2}")
    a(f"s_mov_b32 s101, {int(role == 'M')}")
    a("s_nop 0")
    a("s_cmp_eq_u64 vcc, -1")
    a("s_cbranch_scc0 L_exact")
    a.label(f"L_norm{role}")
    if "np" in OPT:
        for r in range(0, 16, 2):
            a(f"v_pk_mul_f32 {vr(OA + r, 2)}, {vr(OA + r, 2)}, {vr(VT, 2)} op_sel_hi:[1,0]")
    for r in range(16 * ("np" not in OPT)):
        a(f"v_mul_f32 v{OA + r}, v{OA + r}, v{VT}")
    for j in range(8):
        a(f"v_cvt_pk_bf16_f32 v{OA + j}, v{OA + 2 * j}, v{OA + 2 * j + 1}")
    a(f"buffer_store_dwordx4 {vr(OA, 4)}, v1, {S(SWS)}, s47 offen{SC}")
    a(f"buffer_store_dwordx4 {vr(OA + 4, 4)}, v1, {S(SWS)}, s47 offen offset:1024{SC}")


def emit_exact(a):
    s, k, v, cm = SBUF[0], KB[0], VB[0], CM
    VD, VN = SBUF[1], SBUF[1] + 1
    a.label("L_exact")
    a("s_waitcnt vmcnt(0) lgkmcnt(0)")
    a(f"v_and_b32 v{VD}, 31, v0")
    a(f"v_lshrrev_b32 v{VN}, 5, v0")
    a(f"v_lshlrev_b32 v{VN}, 2, v{VN}")
    a(f"v_sub_u32 v{VD}, v{VD}, v{VN}")
    a(f"v_mov_b32 v{VN}, 0xf149f2ca")
    a(f"v_mov_b32 v{VM}, v{VN}")
    a("s_lshl_b32 s4, s34, 1")
    a("s_add_u32 s4, s4, s41")
    a("s_lshl_b32 s4, s4, 6")
    a("s_add_u32 s4, s4, s45")
    a("s_lshl_b32 s4, s4, 11")
    a(f"s_add_u32 s4, s4, 0x{WS_KF - 8 * 2048:x}")
    a("s_sub_u32 s5, 8, s45")
    a("s_cmp_lt_u32 s45, 8")
    a("s_cselect_b32 s5, s5, 0")
    for r in range(16):
        a(f"v_mov_b32 v{cm + r}, 0")
        a(f"v_mov_b32 v{OA + r}, 0")
    for r in range(4):
        a(f"v_mov_b32 v{LS + r}, 0")
    a("s_mov_b32 s9, 0")
    a.label("L_expass")
    a("s_mov_b32 s6, s5")
    a.label("L_extile")
    a("s_lshl_b32 s7, s6, 11")
    a("s_add_u32 s7, s7, s4")
    a(f"s_add_u32 s8, s7, 0x{WS_VF - WS_KF:x}")
    for st in range(2):
        a(f"buffer_load_dwordx4 {vr(k + 4 * st, 4)}, v1, {S(SWS)}, s7 offen offset:{1024 * st}")
        a(f"buffer_load_dwordx4 {vr(v + 4 * st, 4)}, v1, {S(SWS)}, s8 offen offset:{1024 * st}")
    a("s_waitcnt vmcnt(0)")
    a(f"v_mfma_f32_32x32x16_bf16 {vr(s, 16)}, {vr(k, 4)}, {vr(QC, 4)}, {vr(cm, 16)}")
    a(f"v_mfma_f32_32x32x16_bf16 {vr(s, 16)}, {vr(k + 4, 4)}, {vr(QC + 4, 4)}, {vr(s, 16)}")
    a("s_nop 7")
    a("s_nop 7")
    for rel, op in ((8, "le"), (0, "gt")):
        a(f"s_cmp_lg_u32 s6, {rel}")
        a(f"s_cbranch_scc1 L_exm{rel}")
        for r in range(16):
            a(f"v_cmp_{op}_i32 vcc, {8 * (r >> 2) + (r & 3)}, v{VD}")
            a(f"v_cndmask_b32 v{s + r}, v{VN}, v{s + r}, vcc")
        a.label(f"L_exm{rel}")
    a("s_cmp_lg_u32 s9, 0")
    a("s_cbranch_scc1 L_exp2")
    for r in range(16):
        a(f"v_max_f32 v{VM}, v{VM}, v{s + r}")
    a("s_branch L_exnext")
    a.label("L_exp2")
    for r in range(16):
        a(f"v_exp_f32 v{s + r}, v{s + r}")
    a("s_nop 0")
    for j in range(8):
        a(f"v_cvt_pk_bf16_f32 v{s + j}, v{s + 2 * j}, v{s + 2 * j + 1}")
    a("s_nop 1")
    for st in range(2):
        a(f"v_mfma_f32_32x32x16_bf16 {vr(OA, 16)}, {vr(v + 4 * st, 4)}, {vr(s + 4 * st, 4)}, {vr(OA, 16)}")
        a(f"v_mfma_f32_16x16x32_bf16 {vr(LS, 4)}, {vr(ONE, 4)}, {vr(s + 4 * st, 4)}, {vr(LS, 4)}")
    a("s_nop 7")
    a("s_nop 7")
    a.label("L_exnext")
    a("s_add_u32 s6, s6, 1")
    a("s_cmp_le_u32 s6, 8")
    a("s_cbranch_scc1 L_extile")
    a("s_cmp_lg_u32 s9, 0")
    a("s_cbranch_scc1 L_exdone")
    a(f"v_mov_b32 v{VT}, v{VM}")
    a("s_nop 1")
    a(f"v_permlane32_swap_b32 v{VM}, v{VT}")
    a("s_nop 1")
    a(f"v_max_f32 v{VM}, v{VM}, v{VT}")
    for r in range(16):
        a(f"v_sub_f32 v{cm + r}, 0, v{VM}")
    a("s_mov_b32 s9, 1")
    a("s_branch L_expass")
    a.label("L_exdone")
    a(f"v_rcp_f32 v{VT}, v{LS}")
    a("s_cmp_eq_u32 s101, 1")
    a("s_cbranch_scc1 L_normM")
    a("s_branch L_normH")


def emit_conv(a, hooks):
    ACC, FB = 8, [40, 104]
    VA, VBB, VEB, VSO = 168, 172, 173, 174
    a("v_and_b32 v2, 15, v0")
    a("v_lshrrev_b32 v3, 4, v0")
    a("v_add_u32 v4, 1, v2")
    a("v_and_b32 v5, 1, v4")
    a("v_sub_u32 v4, v4, v5")
    a("v_lshl_add_u32 v4, v3, 3, v4")
    a("v_lshlrev_b32 v4, 1, v4")
    a(f"v_mul_u32_u24 v5, {CPY}, v5")
    a(f"v_add3_u32 v{VA}, v4, v5, s46")
    for i in range(1, 4):
        a(f"v_add_u32 v{VA + i}, {1024 * i}, v{VA}")
    a("v_lshlrev_b32 v4, 5, v2")
    a("v_lshlrev_b32 v5, 4, v3")
    a(f"v_sub_u32 v{VBB}, v5, v4")
    a(f"v_add_u32 v{VBB}, {URO + 480}, v{VBB}")
    a(f"v_add_u32 v{VBB}, s86, v{VBB}")
    a("v_lshlrev_b32 v5, 3, v3")
    a(f"v_add_u32 v{VSO}, v4, v5")
    a(f"v_sub_u32 v{VEB}, {URO + 504}, v{VSO}")
    a(f"v_add_u32 v{VEB}, s86, v{VEB}")

    def creads(j, buf):
        f = FB[buf]
        out = []
        for q in range(8):
            o = (q & 1) * 128 + 16 * j
            va = VA + (q >> 1)
            out.append(f"ds_read2_b32 {vr(f + 4 * q, 2)}, v{va} offset0:{o} offset1:{o + 1}")
            out.append(f"ds_read2_b32 {vr(f + 4 * q + 2, 2)}, v{va} offset0:{o + 2} offset1:{o + 3}")
            out.append(f"ds_read_b128 {vr(f + 32 + 4 * q, 4)}, v{VBB} offset:{512 * (7 - q) + 64 * j}")
        return out

    pairs = [(q, dl) for q in range(8) for dl in range(8 - q)]
    pairs.sort(key=lambda x: (max(x[0], x[1]), x[0] + x[1], x[0]))
    seq, rest = [], list(pairs)
    while rest:
        pick = next((p for p in rest if all(p[0] + p[1] != s[0] + s[1] for s in seq[-2:])), rest[0])
        rest.remove(pick)
        seq.append(pick)

    if optval("co", 0):
        import random
        rnd, bestc = random.Random(1), None
        k0 = optval("co", 0) - 1
        for _ in range(4000):
            rest = list(pairs)
            cur = [rest.pop(rnd.randrange(36))]
            cost = 0
            while rest:
                ok = [p for p in rest if all(sum(p) != sum(x) for x in cur[-2:])]
                if not ok:
                    cost = 999
                    break
                w = lambda p: 3 * (p[k0] != cur[-1][k0]) + (p[1 - k0] != cur[-1][1 - k0])
                m = min(w(p) for p in ok)
                pick = rnd.choice([p for p in ok if w(p) == m])
                cost += m
                rest.remove(pick)
                cur.append(pick)
            if cost < 999 and len({sum(p) for p in cur[-2:] + cur[:1]}) == 3 and len({sum(p) for p in cur[-1:] + cur[:2]}) == 3 \
                    and (bestc is None or cost < bestc):
                bestc, seq = cost, cur

    def cmfmas(j, buf):
        f = FB[buf]
        seen, out = set(), []
        for (q, dl) in seq:
            nt = q + dl
            d = vr(ACC + 4 * nt, 4)
            c = "0" if (j == 0 and nt not in seen) else d
            seen.add(nt)
            out.append(f"v_mfma_f32_16x16x32_bf16 {d}, {vr(f + 4 * q, 4)}, {vr(f + 32 + 4 * dl, 4)}, {c}")
        return out

    extra = list(hooks.get("extra", []))
    if "cf" in OPT:
        r0 = creads(0, 0)
        a("s_waitcnt vmcnt(4) lgkmcnt(0)")
        for i, r in enumerate(x for x in r0 if "read2" in x):
            a(r)
            if i == 11:
                a("s_waitcnt lgkmcnt(6)")
        a("s_waitcnt vmcnt(0) lgkmcnt(6)")
        hooks["stamp"]()
        if "tsc" in OPT:
            a("s_memtime s[92:93]")
        for r in r0:
            if "read2" not in r:
                a(r)
        if "cg" not in OPT:
            a("s_waitcnt lgkmcnt(0)")
        a(f"s_setprio {optval('pv', 0)}")
    elif "start" in hooks:
        hooks["start"]()
    if "tsc" in OPT and "cf" not in OPT:
        a("s_memtime s[92:93]")
    for i, r in enumerate(creads(0, 0) if "cf" not in OPT else []):
        a(r)
        if i % 12 == 11:
            a("s_waitcnt lgkmcnt(4)")
    def epi(nt):
        k0, k1 = FB[0] + 2 * nt, FB[0] + 2 * nt + 1
        t = FB[0] + 16 + 4 * nt
        ac = ACC + 4 * nt
        pre = [f"v_and_b32 v{t}, 0xffff0000, v{k1}", f"v_lshlrev_b32 v{t + 1}, 16, v{k1}",
               f"v_and_b32 v{t + 2}, 0xffff0000, v{k0}", f"v_lshlrev_b32 v{t + 3}, 16, v{k0}"]
        post = [f"v_fmac_f32 v{ac + e}, s39, v{t + e}" for e in range(4)] + \
               [f"v_cvt_pk_bf16_f32 v{YP + 2 * nt}, v{ac}, v{ac + 1}",
                f"v_cvt_pk_bf16_f32 v{YP + 2 * nt + 1}, v{ac + 2}, v{ac + 3}"]
        return pre, post

    def last_step():
        f = FB[1]
        left = {nt: [(q, nt - q) for q in range(nt + 1)] for nt in range(8)}
        a("s_waitcnt lgkmcnt(0)")
        for nt in range(8):
            a(f"ds_read_b64 {vr(FB[0] + 2 * nt, 2)}, v{VEB} offset:{512 * (7 - nt)}")
        hist, n, ready, pre = [], 0, [], [x for nt in range(8) for x in epi(nt)[0]]
        done = {}
        for i in range(36):
            rem = 36 - i
            cand = [nt for nt in range(8) if left[nt] and nt not in hist[-2:]]
            urgent = [nt for nt in cand if 3 * len(left[nt]) - 2 >= rem - 2]
            nt = max(urgent, key=lambda x: len(left[x])) if urgent else cand[0] if cand else \
                max((x for x in range(8) if left[x] and x != hist[-1]), key=lambda x: len(left[x]))
            q, dl = left[nt].pop()
            d = vr(ACC + 4 * nt, 4)
            a(f"v_mfma_f32_16x16x32_bf16 {d}, {vr(f + 4 * q, 4)}, {vr(f + 32 + 4 * dl, 4)}, {d}")
            n += 1
            hist.append(nt)
            if not left[nt]:
                done[nt] = n
            if i == 5:
                a("s_waitcnt lgkmcnt(0)")
                if "eb" in OPT:
                    hooks["bar"]()
            if i < 5:
                continue
            for _ in range(2):
                for x in sorted(done):
                    if n - done[x] >= 10 and len(pre) <= 4 * (7 - x):
                        ready += epi(x)[1]
                        del done[x]
                if ready:
                    a(ready.pop(0)); n += 1
                elif pre:
                    a(pre.pop(0)); n += 1
        for x in pre + ready:
            a(x); n += 1
        for x in sorted(done, key=done.get):
            if n - done[x] < 10:
                a(f"s_nop {min(7, 9 - (n - done[x]))}")
                a("s_nop 1")
                n += 10
            for y in epi(x)[1]:
                a(y); n += 1
        return [f"buffer_store_dwordx2 {vr(YP + 2 * nt, 2)}, v{VSO}, {S(SWS)}, s36 offen offset:{512 * nt}{SC}" for nt in range(8)]

    for j in range(8):
        if j == 7 and "ce" in OPT:
            assert not extra
            return last_step()
        m = cmfmas(j, j & 1)
        r = creads(j + 1, (j + 1) & 1) if j < 7 else \
            [f"ds_read_b64 {vr(FB[0] + 2 * nt, 2)}, v{VEB} offset:{512 * (7 - nt)}" for nt in range(8)]
        a("s_waitcnt lgkmcnt(0)")
        if "tsc" in OPT:
            a(f"v_writelane_b32 v254, s92, {12 + j}")
            a("s_memtime s[92:93]")
        ri = 0
        if "cnolds" in OPT and j < 7:
            r = []
        for i, mm in enumerate(m):
            if j < optval("cj", 8) or i < 4:
                a(mm if "cnomfma" not in OPT else "s_nop 3")
            if ri < len(r):
                a(r[ri]); ri += 1
            if j >= 1 and extra:
                a(extra.pop(0))
        assert ri == len(r)
    a("s_nop 7")
    a("s_waitcnt lgkmcnt(0)")
    if "tsc" in OPT:
        a("v_writelane_b32 v254, s92, 20")
        a("s_memtime s[92:93]")
    stores = []
    for nt in range(8):
        k0, k1 = FB[0] + 2 * nt, FB[0] + 2 * nt + 1
        t = FB[0] + 16 + 4 * (nt & 1)
        ac = ACC + 4 * nt
        a(f"v_and_b32 v{t}, 0xffff0000, v{k1}")
        a(f"v_lshlrev_b32 v{t + 1}, 16, v{k1}")
        a(f"v_and_b32 v{t + 2}, 0xffff0000, v{k0}")
        a(f"v_lshlrev_b32 v{t + 3}, 16, v{k0}")
        for e in range(4):
            a(f"v_fmac_f32 v{ac + e}, s39, v{t + e}")
        a(f"v_cvt_pk_bf16_f32 v{YP + 2 * nt}, v{ac}, v{ac + 1}")
        a(f"v_cvt_pk_bf16_f32 v{YP + 2 * nt + 1}, v{ac + 2}, v{ac + 3}")
        st = f"buffer_store_dwordx2 {vr(YP + 2 * nt, 2)}, v{VSO}, {S(SWS)}, s36 offen offset:{512 * nt}{SC}"
        if "yearly" in OPT:
            a(st)
        else:
            stores.append(st)
    if "tsc" in OPT:
        a("s_waitcnt lgkmcnt(0)")
        a("v_writelane_b32 v254, s92, 21")
        a("s_memtime s[92:93]")
        a("s_waitcnt lgkmcnt(0)")
        a("v_writelane_b32 v254, s92, 22")
    return stores


def emit_lds_wait(a, vaddr, off, t):
    lp, dn = a.newlabel("lw"), a.newlabel("lwd")
    a("s_mov_b32 s85, 0")
    a.label(lp)
    a(f"ds_read_b128 {vr(t, 4)}, v{vaddr} offset:{off}")
    a("s_waitcnt lgkmcnt(0)")
    a(f"v_and_b32 v{t}, v{t}, v{t + 1}")
    a(f"v_and_b32 v{t + 2}, v{t + 2}, v{t + 3}")
    a(f"v_and_b32 v{t}, v{t}, v{t + 2}")
    a("s_add_u32 s85, s85, 1")
    a(f"v_readfirstlane_b32 s80, v{t}")
    a("s_nop 1")
    a("s_cmp_lg_u32 s80, 0")
    a(f"s_cbranch_scc1 {dn}")
    a(f"s_cmp_lt_u32 s85, 0x{SPIN_LIMIT:x}")
    a(f"s_cbranch_scc1 {lp}")
    a.label(dn)


def p1_lists():
    KK, VV, WR = 124, 146, 162
    AK, AH, AS, AO = 174, 175, 176, 177
    KF_, WF_, RS_, TT, PO = 12, 56, 72, 104, 108
    soffs = ["0", "s50", "s51", "s52"]
    setup, loads, comp, stores = [], [], [], []
    a = setup.append
    a("v_lshrrev_b32 v24, 3, v0")
    a("v_and_b32 v25, 7, v0")
    a("s_lshl_b32 s80, s35, 6")
    a("s_lshl_b32 s81, s3, 2")
    if optval("cx", 0):
        a(f"s_xor_b32 s81, s81, {optval('cx', 0) << 2}")
    a("s_add_u32 s81, s81, s44")
    a("s_lshl_b32 s81, s81, 5")
    a("v_lshlrev_b32 v24, 3, v24")
    a("v_add_u32 v24, s80, v24")
    a("v_lshlrev_b32 v25, 2, v25")
    a("v_add_u32 v25, s81, v25")
    a(f"v_lshlrev_b32 v{AK}, 11, v24")
    a(f"v_lshl_add_u32 v{AK}, v25, 1, v{AK}")
    a("s_mov_b32 s50, 4096")
    a("s_mov_b32 s51, 8192")
    a("s_mov_b32 s52, 12288")
    a(f"v_subrev_u32 v{AH}, 6144, v{AK}")
    a("v_mov_b32 v26, 0x80000000")
    a("v_cmp_gt_u32 vcc, 3, v24")
    a(f"v_lshlrev_b32 v{AO}, 12, v25")
    a("v_sub_u32 v24, 2040, v24")
    a(f"v_cndmask_b32 v{AH}, v{AH}, v26, vcc")
    a(f"v_lshlrev_b32 v{AS}, 3, v25")
    a(f"v_lshl_add_u32 v{AO}, v24, 1, v{AO}")
    if "uc" in OPT:
        a("v_and_b32 v24, 7, v0")
        a("v_lshrrev_b32 v25, 3, v0")
        a("v_sub_u32 v24, 7, v24")
        a("v_lshl_add_u32 v24, v24, 3, v25")
        a("v_lshlrev_b32 v170, 2, v24")
        a(f"ds_bpermute_b32 v{AO}, v170, v{AO}")
    loads.append(f"buffer_load_dwordx4 {vr(WR, 4)}, v{AS}, {S(SSH)}, 0 offen")
    loads.append(f"buffer_load_dwordx4 {vr(WR + 4, 4)}, v{AS}, {S(SSH)}, 0 offen offset:16")
    for i in range(3):
        loads.append(f"buffer_load_dwordx2 {vr(KK + 2 * i, 2)}, v{AH}, {S(SK)}, {soffs[i >> 1]} offen offset:{(i & 1) * 2048} {nt('p')}")
    for i in range(8):
        loads.append(f"buffer_load_dwordx2 {vr(KK + 6 + 2 * i, 2)}, v{AK}, {S(SK)}, {soffs[i >> 1]} offen offset:{(i & 1) * 2048} {nt('p')}")
    for i in range(8):
        loads.append(f"buffer_load_dwordx2 {vr(VV + 2 * i, 2)}, v{AK}, {S(SV)}, {soffs[i >> 1]} offen offset:{(i & 1) * 2048} {nt('p')}")
    a = comp.append
    if "pk" in OPT:
        for dd in range(4):
            for h2 in range(2):
                src = WR + 2 * dd + h2
                a(f"v_lshlrev_b32 v{WF_ + 8 * h2 + dd}, 16, v{src}")
                a(f"v_and_b32 v{WF_ + 8 * h2 + 4 + dd}, 0xffff0000, v{src}")

        def kun(i):
            for h2 in range(2):
                src = KK + 2 * i + h2
                a(f"v_lshlrev_b32 v{KF_ + 4 * i + 2 * h2}, 16, v{src}")
                a(f"v_and_b32 v{KF_ + 4 * i + 2 * h2 + 1}, 0xffff0000, v{src}")
        for i in range(3):
            kun(i)
        for s_ in range(8):
            kun(s_ + 3)
            for h2 in range(2):
                src = VV + 2 * s_ + h2
                a(f"v_lshlrev_b32 v{TT + 2 * h2}, 16, v{src}")
                a(f"v_and_b32 v{TT + 2 * h2 + 1}, 0xffff0000, v{src}")
            for j in range(4):
                for dd in (0, 2):
                    r, k_, w_ = vr(RS_ + 4 * s_ + dd, 2), vr(KF_ + 4 * (s_ + 3 - j) + dd, 2), vr(WF_ + 4 * j + dd, 2)
                    a(f"v_pk_fma_f32 {r}, {k_}, {w_}, {r}" if j else f"v_pk_mul_f32 {r}, {k_}, {w_}")
            for dd in (0, 2):
                r = vr(RS_ + 4 * s_ + dd, 2)
                a(f"v_pk_mul_f32 {r}, {r}, {vr(TT + dd, 2)}")
        a = lambda x: None
    for dd in range(4):
        for h2 in range(2):
            src = WR + 2 * dd + h2
            a(f"v_lshlrev_b32 v{WF_ + 4 * dd + 2 * h2}, 16, v{src}")
            a(f"v_and_b32 v{WF_ + 4 * dd + 2 * h2 + 1}, 0xffff0000, v{src}")
    for i in range(11):
        for h2 in range(2):
            src = KK + 2 * i + h2
            a(f"v_lshlrev_b32 v{KF_ + 4 * i + 2 * h2}, 16, v{src}")
            a(f"v_and_b32 v{KF_ + 4 * i + 2 * h2 + 1}, 0xffff0000, v{src}")
    for s_ in range(8):
        for dd in range(4):
            r = RS_ + 4 * s_ + dd
            a(f"v_mul_f32 v{r}, v{KF_ + 4 * (s_ + 3) + dd}, v{WF_ + 4 * dd}")
            for j in range(1, 4):
                a(f"v_fmac_f32 v{r}, v{KF_ + 4 * (s_ + 3 - j) + dd}, v{WF_ + 4 * dd + j}")
    for s_ in range(8):
        for dd in range(4):
            r = RS_ + 4 * s_ + dd
            src = VV + 2 * s_ + (dd >> 1)
            t = TT + (dd & 1)
            a(f"v_and_b32 v{t}, 0xffff0000, v{src}" if dd & 1 else f"v_lshlrev_b32 v{t}, 16, v{src}")
            a(f"v_mul_f32 v{r}, v{r}, v{t}")
    stores.append(f"s_mov_b32 s53, 0x{WS_UR:x}")
    for dd in range(4 * ("uc" in OPT)):
        o = PO + 4 * dd
        for j in range(4):
            comp.append(f"v_cvt_pk_bf16_f32 v{o + j}, v{RS_ + 4 * (7 - 2 * j) + dd}, v{RS_ + 4 * (6 - 2 * j) + dd}")
        for j in range(4):
            comp.append(f"ds_bpermute_b32 v{o + j}, v170, v{o + j}")
    for dd in range(4):
        o = PO + 4 * dd
        if "uc" in OPT:
            stores.append(f"s_waitcnt lgkmcnt({12 - 4 * dd})")
        for j in range(4 * ("uc" not in OPT)):
            stores.append(f"v_cvt_pk_bf16_f32 v{o + j}, v{RS_ + 4 * (7 - 2 * j) + dd}, v{RS_ + 4 * (6 - 2 * j) + dd}")
        stores.append(f"buffer_store_dwordx4 {vr(o, 4)}, v{AO}, {S(SWS)}, s53 offen{SC}")
        if dd < 3:
            stores.append("s_add_u32 s53, s53, 4096")
    return setup, loads, comp, stores


VZ = 252
VLF = 251
SRDS = [(SX, 48, 4 * MB), (SW, 56, 6 * MB), (SWS, 88, WS_SIZE), (SK, 8, 4 * MB), (SV, 16, 4 * MB),
        (SSH, 24, 8192), (SHK, 32, 4 * MB), (SWO, 64, 2 * MB), (SQ, 0, 4 * MB), (SOUT, 72, 8 * MB),
        (SDBG, 80, 256)]


def late_setup(a, ts, helper=True):
    if helper:
        a("s_lshl_b32 s84, s3, 5")
        if optval("cx", 0):
            a(f"s_xor_b32 s84, s84, {optval('cx', 0) << 5}")
        a("s_add_u32 s84, s84, s35")
        a("s_lshl_b32 s80, s84, 3")
        a("s_load_dwordx2 s[76:77], s[36:37], s80")
    a("s_lshl_b32 s89, s2, 7")
    a("s_lshl_b32 s81, s32, 3")
    a("s_add_u32 s89, s89, s81")
    for (d, off, size) in SRDS[2:]:
        if not helper and d in (SK, SV, SSH, SHK):
            continue
        a(f"s_mov_b32 s{d + 2}, 0x{size:x}")
        a(f"s_mov_b32 s{d + 3}, 0x20000")
    a(f"v_mov_b32 v{VLF}, {L_FL}")
    ts.setup(a, SWS)


def g2_tile(a):
    a("s_and_b32 s86, s3, 1")
    a("s_lshl_b32 s86, s86, 1")
    a("s_bfe_u32 s80, s3, 0x10001")
    a("s_add_u32 s86, s86, s80")
    a("s_lshl_b32 s86, s86, 2")
    a("s_and_b32 s80, s35, 3")
    a("s_add_u32 s86, s86, s80")
    a("s_lshr_b32 s42, s3, 2")
    a("s_lshl_b32 s42, s42, 3")
    a("s_lshr_b32 s43, s35, 2")
    a("s_add_u32 s42, s42, s43")


def wo_addr(a0, t=4):
    a = lambda x: a0(re.sub(r"\bv([456])\b", lambda m: f"v{int(m.group(1)) - 4 + t}", x))
    a("v_lshrrev_b32 v4, 3, v0")
    a("v_and_b32 v5, 7, v0")
    a("v_bfe_u32 v6, v0, 4, 1")
    a("v_lshlrev_b32 v6, 2, v6")
    a("v_xor_b32 v6, v6, v5")
    if "g16" in OPT:
        a("v_bfe_u32 v5, v0, 5, 1")
        a("v_lshlrev_b32 v5, 1, v5")
        a("v_xor_b32 v6, v6, v5")
    a("v_lshlrev_b32 v250, 11, v4")
    a("v_lshl_add_u32 v250, v6, 4, v250")
    a("s_lshl_b32 s80, s42, 7")
    a("v_add_u32 v250, s80, v250")
    a("s_lshl_b32 s84, s32, 11")
    a("s_lshl_b32 s88, s32, 15")


NE = 3


def wo_part(p, dst, dw=0):
    return [f"s_add_u32 m0, s84, {dst + dw * 2048}",
            f"s_add_u32 s81, s43, {p}",
            "s_and_b32 s81, s81, 7",
            "s_lshl_b32 s81, s81, 18",
            "s_add_u32 s81, s81, s88"] + ([f"s_add_u32 s81, s81, {dw * 32768}"] if dw else []) + [
            f"buffer_load_dwordx4 v250, {S(SWO)}, s81 offen lds",
            f"s_add_u32 s81, s81, {16384 - 1024}",
            f"buffer_load_dwordx4 v250, {S(SWO)}, s81 offen offset:1024 lds"]


def wo_early():
    b0 = optval("we", 3)
    return {b0 + p: wo_part(p, L_R0 + p * 16384) for p in range(NE)}


P4 = [x * 4096 for x in list(range(0, 6)) + list(range(9, 18)) + list(range(21, 26))]
WLOC = [L_R0 + k * 2048 for k in range(8 * NE)] + [P4[k >> 1] + (k & 1) * 2048 for k in range(40)]
NLATE = 10


def nlate():
    return 2 * NLATE - optval("gm", 0) if "g2e" in OPT else NLATE - bool(optval("qs", 0))


def blk7_flag():
    b = Asm()
    if "g2e" in OPT:
        b("s_waitcnt vmcnt(0)")
    lds_flag_set(b, 32, 16, 158)
    return [x.strip() for x in b.L]


def wo_late(a, ts, nyoung, helper, mid=None):
    def stage():
        a("s_and_b32 s83, s32, 3")
        a("s_lshl_b32 s82, s83, 10")
        a("s_lshl_b32 s81, s43, 4")
        a("s_add_u32 s83, s83, s81")
        for i in range(nlate() if "g2e" not in OPT else nlate() if helper else optval("gm", 0)):
            p = 2 * i + int(helper) if "g2e" not in OPT else i if helper else nlate() + i
            a(f"s_add_u32 m0, s82, {P4[p]}")
            a(f"s_add_u32 s81, s83, {16 * NE + 4 * p}")
            a("s_and_b32 s81, s81, 127")
            a("s_lshl_b32 s81, s81, 14")
            if "nolate" not in OPT:
                a(f"buffer_load_dwordx4 v250, {S(SWO)}, s81 offen lds")

    if "g2e" in OPT:
        a(f"s_waitcnt vmcnt({nyoung})")
        emit_publish(a, FL_O, 220, VZ)
        emit_lds_wait(a, VLF, 64, 8)
        emit_lds_wait(a, VLF, 80, 8)
        ts.stamp(a, 7)
        stage()
        return
    ES = optval("es", 0)
    if ES == 1:
        emit_lds_wait(a, VLF, 64, 8)
        emit_lds_wait(a, VLF, 80, 8)
        stage()
        a(f"s_waitcnt vmcnt({nyoung + NLATE})")
    else:
        a(f"s_waitcnt vmcnt({nyoung})")
    emit_publish(a, FL_O, 220, VZ)
    lds_flag_set(a, 32, 8, 222)
    if mid:
        mid()
    if ES == 2:
        emit_lds_wait(a, VLF, 64, 8)
        emit_lds_wait(a, VLF, 80, 8)
        stage()
    if ES == 0 or not helper:
        emit_lds_wait(a, VLF, 32, 8)
        emit_lds_wait(a, VLF, 48, 8)
    ts.stamp(a, 7)
    if ES == 0:
        stage()


def lds_flag_set(a, word_s, word_add, t):
    a(f"s_lshl_b32 s80, s{word_s}, 2")
    a(f"v_add_u32 v{t}, s80, v{VLF}")
    a(f"v_mov_b32 v{t + 1}, 1")
    a(f"ds_write_b32 v{t}, v{t + 1} offset:{4 * word_add}")


def m_path(a, ts, ool):
    ACC = 80
    PD = optval('pd', 2)
    FR = [16, 36, 56, 192, 212][:PD + 1]
    NB = PD + 1
    LZ = 'lz' in OPT
    XA, WB, XA2 = 2, 6, 8
    def code_touch():
        lcp = a.newlabel("nocp")
        a("s_cmp_lg_u32 s32, 1")
        a(f"s_cbranch_scc1 {lcp}")
        a("s_mov_b32 exec_hi, 0")
        a("buffer_load_dword v188, v189, s[52:55], s56 offen")
        a("s_mov_b32 exec_hi, -1")
        a.label(lcp)

    CQ = [int(o[2:]) for o in OPT if o.startswith("cq")]
    if "cp" in OPT or CQ:
        a("s_getpc_b64 s[52:53]")
        a.label("L_pc")
        a(f"s_sub_u32 s52, s52, L_pc-{NAME}_kernel")
        a("s_subb_u32 s53, s53, 0")
        a(f"s_mov_b32 s54, L_end-{NAME}_kernel")
        a("s_mov_b32 s55, 0x20000")
        a("s_lshl_b32 s56, s35, 11")
        a("v_lshlrev_b32 v189, 6, v0")
    if "cp" in OPT:
        code_touch()
    SW_ = {}
    for o in OPT:
        if o.startswith("sw"):
            m, n = o[2:].split("_")
            SW_[int(n)] = int(m)
    if SW_:
        a("s_lshl_b32 s80, s35, 2")
        a("s_add_u32 s80, s80, s32")
        a(f"s_mul_i32 s81, s80, {8 if 'se' in OPT else 6}")
        a("v_and_b32 v3, 7, v0")
        a("v_lshrrev_b32 v184, 3, v0")
        a("v_mul_u32_u24 v184, 768, v184")
        a("v_add3_u32 v184, v184, v3, s81")
        a("v_lshlrev_b32 v184, 11, v184")
        a("s_lshr_b32 s81, s3, 2")
        a("s_lshl_b32 s81, s81, 10")
        a("s_add_u32 s81, s81, 0x180")
        a("v_add_u32 v184, s81, v184")
        a("s_bitcmp1_b32 s3, 1")
        a(f"s_cselect_b32 s81, 0, {8 if 'se' in OPT else 6}")
        if "se" in OPT:
            a("s_cmp_lt_u32 s35, 24")
            a("s_cselect_b32 s81, s81, 0")
        a("v_mov_b32 v2, 0x80000000")
        a("v_cmp_gt_u32 vcc, s81, v3")
        a("s_nop 1")
        a("v_cndmask_b32 v184, v2, v184, vcc")

    XT = optval("xt", -1)
    if XT >= 0:
        a("s_lshl_b32 s81, s80, 3")
        a("s_and_b32 s82, s3, 1")
        a("s_lshl_b32 s82, s82, 10")
        a("s_add_u32 s81, s81, s82")
        a("v_add_u32 v185, s81, v3")
        a("v_lshlrev_b32 v185, 11, v185")
        a("v_bfe_u32 v2, v0, 3, 1")
        a("v_lshl_add_u32 v185, v2, 10, v185")
        a("s_cmp_ge_u32 s35, 24")
        a("s_cselect_b32 s57, 0xff, 0")

    def slow_touch(n):
        if n == XT:
            a("s_mov_b64 exec, 0xffff")
            a(f"buffer_load_dword v178, v185, {S(SX)}, 0 offen offset:384")
            a("s_mov_b64 exec, -1")
        if n in SW_ and XT >= 0:
            a("s_mov_b32 exec_hi, 0")
            a(f"s_or_b32 exec_lo, s57, 0x{sum(0xff << (8 * q) for q in range(4) if SW_[n] >> q & 1):x}")
            a(f"buffer_load_dword v177, v184, {S(SW)}, 0 offen")
            a("s_mov_b64 exec, -1")
        elif n in SW_:
            a(f"s_mov_b64 exec, 0x{sum(0xff << (8 * q) for q in range(4) if SW_[n] >> q & 1):x}")
            a(f"buffer_load_dword v177, v184, {S(SW)}, 0 offen")
            a("s_mov_b64 exec, -1")

    MS = [o[2:] for o in OPT if o.startswith("ms")]
    ltk = a.newlabel("notok")
    if MS:
        if 99 in SW_:
            a("s_waitcnt lgkmcnt(0)")
            slow_touch(99)
        a("s_or_b32 s80, s2, s32")
        a(f"s_cbranch_scc1 {ltk}")
        a(f"s_mov_b32 s{SDBG + 2}, 256")
        a(f"s_mov_b32 s{SDBG + 3}, 0x20000")
    else:
        a("s_waitcnt lgkmcnt(0)")
        slow_touch(99)
        late_setup(a, ts, False)
        a("s_cmp_lg_u32 s89, 0")
        a(f"s_cbranch_scc1 {ltk}")
    a("s_memrealtime s[78:79]")
    a("s_waitcnt lgkmcnt(0)")
    a("s_or_b32 s78, s78, 1")
    a("v_mov_b32 v180, s78")
    a("v_mov_b32 v181, s79")
    a("s_mov_b64 exec, 1")
    a(f"buffer_store_dwordx2 v[180:181], v{VZ}, {S(SDBG)}, 0 offen{SC}")
    a("s_mov_b64 exec, -1")
    a.label(ltk)
    a("s_and_b32 s44, s32, 1")
    a("s_lshr_b32 s41, s32, 1")
    a("s_lshl_b32 s40, s44, 1")
    M16 = "m16" in OPT
    fa = a
    if M16:
        a("v_and_b32 v10, 15, v0")
        a("v_lshrrev_b32 v11, 4, v0")
        a("v_lshrrev_b32 v12, 1, v10")
        a("v_xor_b32 v12, v12, v11")
        a("s_lshl_b32 s46, s44, 13")
        a("v_lshl_add_u32 v13, v10, 7, s46")
        a("v_lshl_add_u32 v2, v12, 4, v13")
        a("v_xor_b32 v3, 64, v2")
        a("v_add_u32 v4, 81920, v2")
        a("v_add_u32 v5, 81920, v3")
        a("v_lshrrev_b32 v12, 2, v10")
        a("v_lshl_add_u32 v12, v11, 3, v12")
        a("v_mul_u32_u24 v12, 384, v12")
        a("v_lshrrev_b32 v13, 3, v10")
        a("v_xor_b32 v13, s41, v13")
        a("v_lshl_add_u32 v12, v13, 6, v12")
        a("v_and_b32 v13, 1, v11")
        a("v_lshl_add_u32 v12, v13, 5, v12")
        a("v_and_b32 v13, 3, v10")
        a("v_lshl_add_u32 v12, v13, 3, v12")
        a("v_add_u32 v6, 16384, v12")
        a("v_xor_b32 v7, 32, v6")
        a("v_add_u32 v8, 81920, v6")
        a("v_add_u32 v9, 81920, v7")
        a = lambda x: None
    a("v_and_b32 v8, 31, v0")
    a("v_lshrrev_b32 v9, 5, v0")
    a("v_lshrrev_b32 v10, 1, v8")
    a("v_and_b32 v10, 7, v10")
    a("v_lshlrev_b32 v11, 7, v8")
    a("s_lshl_b32 s46, s44, 13")
    a("v_add_u32 v11, s46, v11")
    for ks in range(4):
        a(f"v_add_u32 v12, {2 * ks}, v9")
        a("v_xor_b32 v12, v12, v10")
        a(f"v_lshl_add_u32 v{XA + ks}, v12, 4, v11")
    a("v_and_b32 v10, 15, v0")
    a("v_lshrrev_b32 v11, 4, v0")
    a("v_lshrrev_b32 v12, 2, v10")
    a("v_lshl_add_u32 v12, v9, 3, v12")
    a(f"v_mul_u32_u24 v12, {128 if 'wl' in OPT else 384}, v12")
    a("v_lshrrev_b32 v13, 3, v10")
    a("v_xor_b32 v13, s41, v13")
    a("v_lshl_add_u32 v12, v13, 6, v12")
    a("v_and_b32 v13, 1, v11")
    a("v_lshl_add_u32 v12, v13, 5, v12")
    a("v_and_b32 v13, 3, v10")
    a("v_lshl_add_u32 v12, v13, 3, v12")
    a(f"v_add_u32 v{WB}, 16384, v12")
    a(f"v_add_u32 v{WB + 1}, {16384 + 81920}, v12")
    for ks in range(4):
        a(f"v_add_u32 v{XA2 + ks}, 81920, v{XA + ks}")
    a = fa

    def reads(t, ks, buf):
        st = slot(t)
        f = FR[buf]
        xa = (XA2 if st >= 2 else XA) + ks
        xo = (st & 1) * 40960
        wb = WB + (st >> 1)
        wo = (st & 1) * 40960 + 16 * ks * 384
        if "wl" in OPT:
            tr = lambda i: f"ds_read_b64_tr_b16 {vr(f + 8 + 2 * i, 2)}, v{wb} offset:{wo + (i >> 1) * 2048 + (i & 1) * 512}"
            return [f"ds_read_b128 {vr(f, 4)}, v{xa} offset:{xo}", tr(0), tr(1),
                    f"ds_read_b128 {vr(f + 4, 4)}, v{xa} offset:{xo + 4096}", tr(2), tr(3), tr(4), tr(5)]
        return [f"ds_read_b128 {vr(f, 4)}, v{xa} offset:{xo}",
                f"ds_read_b64_tr_b16 {vr(f + 8, 2)}, v{wb} offset:{wo}",
                f"ds_read_b64_tr_b16 {vr(f + 10, 2)}, v{wb} offset:{wo + 4 * 384}",
                f"ds_read_b128 {vr(f + 4, 4)}, v{xa} offset:{xo + 4096}",
                f"ds_read_b64_tr_b16 {vr(f + 12, 2)}, v{wb} offset:{wo + 128}",
                f"ds_read_b64_tr_b16 {vr(f + 14, 2)}, v{wb} offset:{wo + 128 + 4 * 384}",
                f"ds_read_b64_tr_b16 {vr(f + 16, 2)}, v{wb} offset:{wo + 256}",
                f"ds_read_b64_tr_b16 {vr(f + 18, 2)}, v{wb} offset:{wo + 256 + 4 * 384}"]

    mfc = [0]

    def mfmas(buf, first, last):
        mfc[0] += 1
        f = FR[buf]
        X = [vr(f, 4), vr(f + 4, 4)]
        W = [vr(f + 8, 4), vr(f + 12, 4), vr(f + 16, 4)]
        out = []
        for part in ((1, 2, 0) if last else (0, 1, 2)):
            for rt in range(2):
                d = vr(ACC + 16 * (2 * part + rt), 16)
                c = "0" if first else d
                if "h16" in OPT:
                    b_ = ACC + 16 * (2 * part + rt) + 8 * (mfc[0] & 1)
                    w2 = W[(part + 1) % 3]
                    out.append(f"v_mfma_f32_16x16x32_bf16 {vr(b_, 4)}, {W[part]}, {X[rt]}, {vr(b_, 4)}\n    "
                               f"v_mfma_f32_16x16x32_bf16 {vr(b_ + 4, 4)}, {w2}, {X[rt]}, {vr(b_ + 4, 4)}")
                elif part < 2:
                    out.append(f"v_mfma_f32_32x32x16_bf16 {d}, {W[part]}, {X[rt]}, {c}")
                else:
                    out.append(f"v_mfma_f32_32x32x16_bf16 {d}, {X[rt]}, {W[part]}, {c}")
        return out

    main_a = a
    if MS:
        a = Asm()
        late_setup(a, ts, False)
    a("s_lshl_b32 s46, s34, 1")
    a("s_add_u32 s46, s46, s41")
    a("s_lshl_b32 s46, s46, 6")
    a("s_lshl_b32 s47, s33, 2")
    a("s_add_u32 s46, s46, s47")
    a("s_add_u32 s48, s46, s40")
    a("s_lshl_b32 s48, s48, 11")
    a(f"s_add_u32 s49, s48, 0x{WS_VF:x}")
    a(f"s_add_u32 s48, s48, 0x{WS_KF:x}")
    a(f"s_mul_i32 s80, s41, {L_HD}")
    a("s_lshl_b32 s81, s44, 12")
    a("s_add_u32 s80, s80, s81")
    a("v_add_u32 v182, s80, v1")
    a("s_lshl_b32 s80, s32, 11")
    a(f"s_add_u32 s80, s80, {L_QH}")
    a("v_add_u32 v183, s80, v1")

    def setup2():
        a("s_add_u32 s38, s33, s44")
        a("s_sub_u32 s80, s38, 2")
        a("s_max_i32 s80, s80, 0")
        a("v_mov_b32 v20, s80")
        a("v_mov_b32 v21, s34")
        emit_wg_of(a, 190, 20, 21, 22)
        a("v_and_b32 v20, 1, v0")
        a("v_lshl_add_u32 v190, v20, 3, v190")
        a("s_lshl_b32 s80, s41, 4")
        a(f"s_add_u32 s80, s80, 0x{fbase(FL_K):x}")
        a("v_add_u32 v190, s80, v190")
        fshift(a, FL_K, 190)
        a("s_lshl_b32 s80, s44, 2")
        a("s_add_u32 s36, s46, s80")
        a("s_lshl_b32 s36, s36, 11")
        a(f"s_add_u32 s36, s36, 0x{WS_KF - 8 * 2048:x}")
        a(f"s_mul_i32 s37, s41, {L_HD}")
        a("s_lshl_b32 s80, s44, 13")
        a("s_add_u32 s37, s37, s80")
        a("; attention")
        emit_attn_setup(a, MASKS_M, 20)
        a("; projection")
        g2_tile(a)
        wo_addr(a, 20)
        a("s_lshl_b32 s80, s35, 2")
        a("s_add_u32 s80, s80, s32")
        a("s_lshl_b32 s80, s80, 6")
        a("v_add_u32 v20, s80, v0")
        a("v_lshrrev_b32 v198, 3, v20")
        a("v_lshlrev_b32 v198, 11, v198")
        a("v_and_b32 v20, 7, v20")
        a("v_lshl_add_u32 v198, v20, 7, v198")
        a("s_lshr_b32 s80, s3, 2")
        a("s_lshl_b32 s80, s80, 10")
        a("v_add_u32 v198, s80, v198")
        a("s_lshl_b32 s80, s35, 6")
        a("s_lshl_b32 s81, s32, 4")
        a("s_add_u32 s80, s80, s81")
        a("v_bfe_u32 v20, v0, 1, 4")
        a("v_add_u32 v20, s80, v20")
        a("v_lshlrev_b32 v20, 11, v20")
        a("v_and_b32 v21, 1, v0")
        a("v_lshl_add_u32 v20, v21, 7, v20")
        a("s_lshl_b32 s80, s3, 8")
        if optval("cx", 0):
            a(f"s_xor_b32 s80, s80, {optval('cx', 0) << 8}")
        a("v_add_u32 v199, s80, v20")
        if optval("at", 0):
            a("v_and_b32 v20, 0xfffff800, v199")
            a("v_add_u32 v198, v20, v199")

    if "ls" not in OPT:
        setup2()
    KT, FT = optval("kt", -1), optval("ft", -1)
    if KT >= 0:
        a("v_and_b32 v185, 31, v0")
        a("v_lshlrev_b32 v185, 7, v185")
        a("v_lshrrev_b32 v20, 5, v0")
        a("v_lshl_add_u32 v185, v20, 22, v185")
    if FT >= 0:
        a("v_lshlrev_b32 v194, 15, v0")
        a("s_lshl_b32 s80, s2, 7")
        a(f"s_add_u32 s80, s80, 0x{WS_FL:x}")
        a("v_add_u32 v194, s80, v194")
        if "fl" in OPT and "nft" not in OPT:
            a("s_lshl_b32 s80, s2, 11")
            a(f"s_add_u32 s80, s80, 0x{WS_FL + 0x80000 - 3 * 128:x}")
            a("v_lshlrev_b32 v193, 7, v0")
            a("v_add_u32 v193, s80, v193")
            a("v_cmp_gt_u32 vcc, 3, v0")
            a("s_nop 1")
            a("v_cndmask_b32 v194, v193, v194, vcc")
        a("s_cmp_eq_u32 s32, 2")
        a(f"s_cselect_b32 s80, {5 if 'kv2' in OPT else 4 if 'fl' not in OPT else 3 if 'nft' in OPT else 11}, 0")
        a("v_mov_b32 v193, 0x80000000")
        a("v_cmp_gt_u32 vcc, s80, v0")
        a("s_nop 1")
        a("v_cndmask_b32 v194, v193, v194, vcc")
    late = {}
    if MS:
        blk_ = 0
        for x in a.L:
            if x.strip().startswith(";"):
                blk_ += 1
                continue
            late.setdefault(int(MS[0][blk_]), []).append(re.sub(r"\bv2([012])\b", r"v1\g<1>", x.strip()).replace("v10", "v13").replace("v11", "v14"))
        a = main_a
        for x in late.get(0, []):
            a(x)
    a("s_waitcnt lgkmcnt(0)")
    slow_touch(98)
    if "tse" in OPT:
        ts.stamp(a, 0)
    a("s_barrier")
    ts.stamp(a, 11)
    TKN = optval("tkn", 41)

    def extras(n):
        if n == TKN:
            a(f"buffer_load_dwordx2 v[186:187], v{VZ}, {S(SDBG)}, 0 offen{SC}")
        if n in CQ:
            code_touch()
        slow_touch(n)
        if n == FT:
            a(f"buffer_load_dword v195, v194, {S(SWS)}, 0 offen")

    if M16:
        XB, WF = [16, 200], [32, 56]
        KI = optval("ki", 0)

        def kv_epi(part, rt):
            b = ACC + 16 * (2 * part + rt)
            out = [(f"v_cvt_pk_bf16_f32 v{b + j}, v{b + 2 * j}, v{b + 2 * j + 1}", 4) for j in range(8)] + [("s_nop 1", 0)]
            if part == 1:
                out += [(f"v_permlane16_swap_b32 v{b + i}, v{b + 4 + i}", 8) for i in range(4)]
            else:
                out += [(f"v_permlane{op}_swap_b32 v{b + i}, v{b + 2 + i}", 8) for op in ("16", "32") for i in (0, 1, 4, 5)]
            return out + [(f"buffer_store_dwordx4 {vr(b + 4 * st, 4)}, v1, {S(SWS)}, s{47 + part} offen offset:{rt * 2048 + st * 1024}{SC}", 0)
                          for st in range(2)]

        def corder(N):
            return (2, 3, 4, 5, 0, 1) if N >= 31 - bool(KI) else (0, 1, 2, 3, 4, 5)

        def reads16(N):
            st, h2 = slot(N >> 1), N & 1
            xr = lambda tt: f"ds_read_b128 {vr(XB[h2] + 4 * tt, 4)}, v{2 + h2 + 2 * (st >> 1)} offset:{(st & 1) * 40960 + 2048 * tt}"
            wr = lambda c: [f"ds_read_b64_tr_b16 {vr(WF[h2] + 4 * c + 2 * h, 2)}, v{6 + (c & 1) + 2 * (st >> 1)} "
                            f"offset:{(st & 1) * 40960 + h2 * 12288 + (c >> 1) * 128 + h * 1536}" for h in range(2)]
            co = corder(N)
            return [xr(0)] + wr(co[0]) + [xr(1), xr(2), xr(3)] + [x for c in co[1:] for x in wr(c)]

        for i, r in enumerate(reads16(0)):
            a(r)
        RQ = optval("rq", 1)
        for N in range(32):
            h2 = N & 1
            r = reads16(N + 1) if N < 31 else []
            bar = h2 == 1 and (N >> 1) + 1 not in skipped()
            a(f"s_waitcnt lgkmcnt({0 if (bar or RQ > 1) else 6})")
            i = 0
            co = corder(N)
            MO = optval("mo", 0)
            if MO == 0:
                mseq = [(c, tt) for c in co for tt in range(4)]
            elif MO == 1:
                mseq = [(c, tt if k & 1 == 0 else 3 - tt) for k, c in enumerate(co) for tt in range(4)]
            else:
                mseq = [(co[3 * hf + (k if tt & 1 == 0 else 2 - k)], tt if hf == 0 else 3 - tt) for hf in range(2) for tt in range(4) for k in range(3)]
            if KI and N == 30:
                mseq, deferred = mseq[:24 - KI], mseq[24 - KI:]
            if KI and N == 31:
                seq2 = [(2 * p + dt, 2 * rt + t_, 1) for p in (1, 2) for rt in range(2) for dt in range(2) for t_ in range(2)]
                seq2 += [(c, tt, 0) for c, tt in deferred] + [(c, tt, 1) for c in (0, 1) for tt in range(4)]
                E, n0 = [], len(a.L)
                for i, (c, tt, hb) in enumerate(seq2):
                    d = vr(ACC + 16 * (2 * (c >> 1) + (tt >> 1)) + 4 * (2 * (tt & 1) + (c & 1)), 4)
                    x_, w_ = vr(XB[hb] + 4 * tt, 4), vr(WF[hb] + 4 * c, 4)
                    a(f"v_mfma_f32_16x16x32_bf16 {d}, {x_ if c >= 4 else w_}, {w_ if c >= 4 else x_}, {d}")
                    if i == 1:
                        a("s_barrier")
                        a(f"s_setprio {optval('pe', 0)}")
                    if i < 16 and i % 4 == 3:
                        E += [(x, cst, i + 4, len(a.L) + 9) for x, cst in kv_epi(1 + (i >> 3), (i >> 2) & 1)]
                    if i == 6:
                        a("s_nop 5")
                        E = [(x, cst, mi, li - 5) for x, cst, mi, li in E]
                    room = 8
                    while E and E[0][1] <= room and i >= E[0][2] and len(a.L) >= E[0][3]:
                        x, cst, _, _ = E.pop(0)
                        a(x)
                        room -= cst
                for x, _, _, _ in E:
                    a(x)
                mseq = []
            for c, tt in mseq:
                if True:
                    d = vr(ACC + 16 * (2 * (c >> 1) + (tt >> 1)) + 4 * (2 * (tt & 1) + (c & 1)), 4)
                    x_, w_ = vr(XB[h2] + 4 * tt, 4), vr(WF[h2] + 4 * c, 4)
                    if i == 12 and not (bar or RQ > 1):
                        a("s_waitcnt lgkmcnt(12)")
                    a(f"v_mfma_f32_16x16x32_bf16 {d}, {x_ if c >= 4 else w_}, {w_ if c >= 4 else x_}, {'0' if N == 0 else d}")
                    if i == optval("bi", 1) and bar:
                        for x in late.get((N >> 1) + 1, []):
                            a(x)
                        a("s_barrier")
                    if i >= optval("bi", 1) or not bar:
                        for _ in range(RQ):
                            if r:
                                a(r.pop(0))
                    if i % 12 == 10:
                        extras(2 * N + i // 12)
                    i += 1
            assert not r
    for k in range(PD if not M16 else 0):
        for r in reads(0, k, k):
            a(r)
        if k == 1:
            a("s_waitcnt lgkmcnt(8)")
    BK = (4 - PD) % 4
    for n in range(64 if not M16 else 0):
        t, ks = n >> 2, n & 3
        m = mfmas(n % NB, n == 0, n == 63)
        n2 = n + PD
        r = reads(n2 >> 2, n2 & 3, n2 % NB) if n2 < 64 else []
        tch = []
        if n == TKN:
            tch = [f"buffer_load_dwordx2 v[186:187], v{VZ}, {S(SDBG)}, 0 offen{SC}"]
        ahead = min(15, 8 * (min(63, n + PD - 1) - n))
        if ks == BK and t + 1 not in skipped():
            a(f"s_waitcnt lgkmcnt({ahead if (LZ and t < 15) else 0})")
            a(m[0])
            for x in late.get(t + 1, []):
                a(x)
            a("s_barrier")
        else:
            a(f"s_waitcnt lgkmcnt({ahead})")
            a(m[0])
        ri = 0
        for i, mm in enumerate(m[1:]):
            for _ in range(2):
                if ri < len(r):
                    a(r[ri]); ri += 1
            if i == 4:
                for x in tch:
                    a(x)
                if n in CQ:
                    code_touch()
                slow_touch(n)
                if n == KT:
                    a(f"buffer_load_dword v178, v185, {S(SWS)}, s48 offen")
                if n == optval("tw", -1):
                    tm = optval("tm", 7)
                    a("s_cmp_eq_u32 s32, 3")
                    a("s_cselect_b64 exec, 1, 0")
                    if tm & 1:
                        for r in (48, 49, 47):
                            a(f"buffer_load_dword v196, v{VZ}, {S(SWS)}, s{r} offen")
                    if tm & 2:
                        a("s_lshl_b32 s80, s86, 19")
                        a("s_lshl_b32 s81, s42, 7")
                        a("s_add_u32 s80, s80, s81")
                        a(f"buffer_load_dword v196, v{VZ}, {S(SOUT)}, s80 offen offset:2048")
                        a("s_lshl_b32 s80, s35, 18")
                        a("s_lshl_b32 s81, s3, 8")
                        a("s_add_u32 s80, s80, s81")
                        a(f"buffer_load_dword v196, v{VZ}, {S(SOUT)}, s80 offen")
                    if tm & 4:
                        a(f"buffer_load_dword v196, v199, {S(SQ)}, 0 offen")
                    a("s_mov_b64 exec, -1")
                if n == FT:
                    if "fst" in OPT:
                        a(f"buffer_store_dword v{VZ}, v194, {S(SWS)}, 0 offen offset:64{SC}")
                    else:
                        a(f"buffer_load_dword v195, v194, {S(SWS)}, 0 offen")
            a(mm)
    ts.stamp(a, 1)
    if optval("pe", 0):
        a(f"s_setprio {optval('pe', 0)}")
    def swaps(b, part):
        if not M16:
            return
        a("s_nop 1")
        if part < 2:
            for i in range(4):
                a(f"v_permlane16_swap_b32 v{b + i}, v{b + 4 + i}")
        else:
            for op in ("16", "32"):
                for i in (0, 1, 4, 5):
                    a(f"v_permlane{op}_swap_b32 v{b + i}, v{b + 2 + i}")

    if "fk" in OPT:
        a("s_and_b32 s80, s33, 14")
        a("s_cmp_lg_u32 s80, 6")
        a("s_cselect_b32 s39, 1, 0")
        a("s_cselect_b64 s[50:51], -1, 0")
    for part in (1, 2) if not optval("ki", 0) else ():
        for rt in range(2):
            b = ACC + 16 * (2 * part + rt)
            for j in range(8):
                a(f"v_cvt_pk_bf16_f32 v{b + j}, v{b + 2 * j}, v{b + 2 * j + 1}")
            swaps(b, part)
            if "fk" in OPT:
                a("s_mov_b64 exec, s[50:51]")
                for step in range(2):
                    a(f"buffer_store_dwordx4 {vr(b + 4 * step, 4)}, v1, {S(SWS)}, s{47 + part} offen offset:{rt * 2048 + step * 1024}")
                a("s_not_b64 exec, exec")
            for step in range(2):
                a(f"buffer_store_dwordx4 {vr(b + 4 * step, 4)}, v1, {S(SWS)}, s{47 + part} offen offset:{rt * 2048 + step * 1024}{SC}")
            if "fk" in OPT:
                a("s_mov_b64 exec, -1")
    if "fp" in OPT:
        a("s_waitcnt vmcnt(0)")
        emit_token_take(a, 186, VZ)
        emit_publish(a, FL_K, 220, VZ, 39 if "fk" in OPT else None)
        ts.stamp(a, 2)
    if "pes" in OPT:
        a("s_setprio 0")
    for part in (1, 2):
        for rt in range(2):
            b = ACC + 16 * (2 * part + rt)
            for step in range(2):
                a(f"ds_write_b128 v182, {vr(b + 4 * step, 4)} offset:{8 * 2048 + (part - 1) * L_V + rt * 2048 + step * 1024}")
    for rt in (1, 0):
        b = ACC + 16 * rt
        d = QC if rt == 0 else b
        if "qp" in OPT:
            a(f"s_mov_b32 s80, {f32hex(SCALE_LOG2E)}")
            a("s_mov_b32 s81, s80")
            for r in range(0, 16, 2):
                a(f"v_pk_mul_f32 {vr(b + r, 2)}, {vr(b + r, 2)}, s[80:81]")
        for r in range(16 * ("qp" not in OPT)):
            a(f"v_mul_f32 v{b + r}, {f32hex(SCALE_LOG2E)}, v{b + r}")
        for j in range(8):
            a(f"v_cvt_pk_bf16_f32 v{d + j}, v{b + 2 * j}, v{b + 2 * j + 1}")
        swaps(d, 0)
        if rt == 1:
            for step in range(2):
                a(f"ds_write_b128 v183, {vr(d + 4 * step, 4)} offset:{step * 1024}")
    lz = a.newlabel("nozero")
    a("s_cmp_lg_u32 s32, 0")
    a(f"s_cbranch_scc1 {lz}")
    a(f"v_lshl_add_u32 v20, v0, 2, v{VLF}")
    a(f"ds_write_b32 v20, v{VZ}")
    a.label(lz)
    if "ls" in OPT:
        setup2()
    tlq = f"buffer_load_dword v157, v199, {S(SQ)}, 0 offen"

    def prev_dma(isv):
        for g in range(2):
            a(f"s_add_u32 m0, s37, {isv * L_V + g * 4096}")
            a(f"s_add_u32 s80, s36, {isv * (WS_VF - WS_KF) + g * 4096}")
            for i in range(4):
                a(f"buffer_load_dwordx4 v1, {S(SWS)}, s80 offen offset:{1024 * i} {nt('k')} lds")

    if "pes" in OPT:
        a(f"s_setprio {optval('pe', 0)}")
    if "kv2" in OPT:
        a("s_waitcnt vmcnt(4)")
        emit_token_take(a, 186, VZ)
        emit_publish(a, FL_K, 220, VZ)
        a(f"v_add_u32 v189, {(FL_V - FL_K) * 32768}, v190")
        a("s_waitcnt vmcnt(1)")
        emit_publish(a, FL_V, 222, VZ)
        ts.stamp(a, 2)
    elif "fp" not in OPT:
        a("s_waitcnt vmcnt(0)")
        emit_token_take(a, 186, VZ)
        emit_publish(a, FL_K, 220, VZ, 39 if "fk" in OPT else None)
        ts.stamp(a, 2)
    lnp = a.newlabel("noprev")
    a(f"s_cmp_lt_u32 s38, {99 if 'nokv' in OPT else 2}")
    a(f"s_cbranch_scc1 {lnp}")
    emit_poll(a, 190, 2, 196, sleep=optval("ks", 1))
    ts.stamp(a, 3)
    if "kv2" in OPT:
        poll_issue(a, 189, 196)
    prev_dma(0)
    if "kv2" in OPT:
        lv = a.newlabel("vok")
        a("s_waitcnt vmcnt(8)")
        tok_cmp(a, 196)
        a("s_nop 1")
        a("s_and_b32 s80, vcc_lo, 3")
        a("s_cmp_eq_u32 s80, 3")
        a(f"s_cbranch_scc1 {lv}")
        emit_poll(a, 189, 2, 196, sleep=optval("ks", 1))
        a.label(lv)
    prev_dma(1)
    a.label(lnp)
    a("s_setprio 0")
    BF = [16, 24, 32]
    AC2 = 40
    AF, PF = 72, optval('pf', 16)
    VPA, VOA = 191, 192
    a("v_and_b32 v8, 15, v0")
    a("v_lshrrev_b32 v9, 4, v0")
    a("v_lshrrev_b32 v10, 5, v0")
    a("v_lshrrev_b32 v11, 2, v8")
    a("v_lshl_add_u32 v11, v10, 2, v11")
    a("v_lshlrev_b32 v11, 7, v11")
    a("v_and_b32 v12, 1, v9")
    a("v_lshl_add_u32 v11, v12, 5, v11")
    a("v_and_b32 v12, 3, v8")
    a("v_lshl_add_u32 v11, v12, 3, v11")
    a("v_lshrrev_b32 v12, 3, v8")
    a("v_lshl_add_u32 v2, v12, 6, v11")
    a("v_xor_b32 v12, 1, v12")
    a("v_lshl_add_u32 v3, v12, 6, v11")
    a("v_add_u32 v4, 0x10000, v2")
    a("v_add_u32 v5, 0x10000, v3")
    a(f"v_add_u32 v6, {L_R0}, v2")
    a(f"v_add_u32 v7, {L_R0}, v3")
    if "g16" in OPT:
        a("v_lshrrev_b32 v11, 2, v8")
        a("v_and_b32 v12, 1, v9")
        a("v_lshl_add_u32 v11, v12, 2, v11")
        a("v_lshl_add_u32 v11, v10, 4, v11")
        a("v_lshlrev_b32 v11, 7, v11")
        a("v_lshl_add_u32 v11, v12, 5, v11")
        a("v_and_b32 v13, 3, v8")
        a("v_lshl_add_u32 v11, v13, 3, v11")
        a("v_lshrrev_b32 v13, 3, v8")
        a("v_lshl_add_u32 v2, v13, 6, v11")
        a("v_lshlrev_b32 v3, 4, v8")
        a("v_lshl_add_u32 v3, v9, 9, v3")
    a("v_mov_b32 v12, s86")
    a("v_bfe_u32 v13, v0, 1, 4")
    emit_wg_of(a, VPA, 12, 13, 15)
    a("v_and_b32 v12, 1, v0")
    a(f"v_lshl_add_u32 v{VPA}, v12, 4, v{VPA}")
    a("s_lshr_b32 s80, s32, 1")
    a("s_and_b32 s81, s32, 1")
    a("s_lshl_b32 s81, s81, 2")
    a("s_add_u32 s80, s80, s81")
    a("s_lshl_b32 s80, s80, 3")
    if "fl" in OPT:
        a(f"s_add_u32 s80, s80, 0x{(WS_FL + 0x80000) >> 4:x}")
        a(f"v_add_lshl_u32 v{VPA}, s80, v{VPA}, 4")
    else:
        a(f"s_add_u32 s80, s80, 0x{fbase(FL_O):x}")
        a(f"v_add_u32 v{VPA}, s80, v{VPA}")
        fshift(a, FL_O, VPA)
    a("s_lshl_b32 s82, s86, 2")
    a("s_add_u32 s82, s82, s32")
    a("v_and_b32 v8, 31, v0")
    a("s_lshl_b32 s80, s82, 5")
    a("v_add_u32 v8, s80, v8")
    a("v_lshlrev_b32 v8, 12, v8")
    a(f"v_lshl_add_u32 v{VOA}, v10, 4, v8")
    if "bf" in OPT:
        a("s_lshl_b32 s81, s32, 12")
        a("s_add_u32 s81, s81, 24576")
        a("s_cmp_eq_u32 s32, 3")
        a("s_cselect_b32 s81, 73728, s81")
        a("v_and_b32 v8, 31, v0")
        a("v_and_b32 v9, 7, v0")
        a("v_xor_b32 v11, v9, v10")
        a("v_lshlrev_b32 v8, 7, v8")
        a("v_lshl_add_u32 v193, v11, 4, v8")
        if "g16" in OPT:
            a("v_and_b32 v193, 0x7ff, v193")
            a("v_bfe_u32 v11, v0, 4, 1")
            a("v_lshl_add_u32 v193, v11, 3, v193")
        a("v_add_u32 v193, s81, v193")
        a("v_lshrrev_b32 v8, 3, v0")
        a("v_xor_b32 v11, v9, v8")
        a("v_lshlrev_b32 v11, 4, v11")
        a("v_lshl_add_u32 v194, v8, 7, v11")
        a("v_add_u32 v194, s81, v194")
        a("v_add_u32 v8, s80, v8")
        a("v_lshlrev_b32 v8, 12, v8")
        a(f"v_lshl_add_u32 v{VOA}, v9, 4, v8")
    a("s_lshl_b32 s56, s42, 7")
    a("s_add_u32 s56, s56, 2048")
    a("s_lshl_b32 s82, s82, 16")
    a(f"s_add_u32 s82, s82, 0x{WS_OF:x}")
    for p in range(8):
        a(f"s_add_u32 s81, s43, {p}")
        a("s_and_b32 s81, s81, 7")
        a("s_lshl_b32 s81, s81, 13")
        a(f"s_add_u32 s{48 + p}, s82, s81")
    hk = {"blk": wo_early()}
    if optval("qk", 0):
        hk["blk"][optval("qk", 0)] = hk["blk"].get(optval("qk", 0), []) + [tlq]
    else:
        hk["mid"] = lambda: a(tlq)
    a("s_waitcnt vmcnt(0)")
    ts.stamp(a, 5)
    a("s_waitcnt lgkmcnt(0)")
    a("s_barrier")
    ts.stamp(a, 4)
    hk["blk"][7] = blk7_flag() + hk["blk"].get(7, [])
    if optval("wt", 0):
        hk["blk"][optval("wt", 0)] = hk["blk"].get(optval("wt", 0), []) + [f"buffer_load_dword v156, v198, {S(SWO)}, 0 offen"]
    if optval("at", 0):
        hk["blk"][optval("at", 0)] = hk["blk"].get(optval("at", 0), []) + [f"buffer_load_dword v156, v198, {S(SOUT)}, 0 offen"]
    if optval("bt", 0):
        hk["blk"][optval("bt", 0)] = hk["blk"].get(optval("bt", 0), []) + [f"buffer_load_dword v155, v{VOA}, {S(SOUT)}, s56 offen"]
    hk["prio"] = prio_plan("M")
    emit_attention(a, ool, hk, MASKS_M, "M")
    ts.stamp(a, 6)
    wo_late(a, ts, 0, False)
    if optval('od', 0):
        a(f"s_sleep {optval('od', 0)}")
    poll_issue(a, VPA, 12)
    a("s_waitcnt vmcnt(1)")
    lds_flag_set(a, 32, 0, 16)
    ts.stamp(a, 8)
    if "noo" not in OPT:
        emit_poll(a, VPA, 32, 12, pre=True, sleep=optval("os", 0))
    ts.stamp(a, 9)

    def aload(ks):
        out = []
        if ks % 8 == 4:
            out.append(f"s_add_u32 s{48 + (ks >> 3)}, s{48 + (ks >> 3)}, 4096")
        out.append(f"buffer_load_dwordx4 {vr(AF + 4 * (ks % PF), 4)}, v1, {S(SWS)}, s{48 + (ks >> 3)} offen offset:{(ks & 3) * 1024} {scl()}")
        return out

    def breads(ks, buf):
        f = BF[buf]
        o = WLOC[ks]
        base, o = (6, o - L_R0) if o >= L_R0 else (4, o - 65536) if o >= 65536 else (2, o)
        out = []
        for ct in range(2):
            out.append(f"ds_read_b64_tr_b16 {vr(f + 4 * ct, 2)}, v{base + ct} offset:{o}")
            out.append(f"ds_read_b64_tr_b16 {vr(f + 4 * ct + 2, 2)}, v{base + ct} offset:{o + 1024}")
        return out

    if "g16" in OPT:
        assert "bf" in OPT
        B16, WBS = [16, 212, 228], 200

        def aload(ks):
            return ([f"s_add_u32 s{48 + (ks >> 3)}, s{48 + (ks >> 3)}, 4096"] if ks % 8 == 4 else []) + \
                [f"buffer_load_dwordx4 {vr(AF + 4 * (ks % PF), 4)}, v3, {S(SWS)}, s{48 + (ks >> 3)} offen offset:{(ks & 2) * 1024 + (ks & 1) * 256}"]

        def wreads(hs):
            o = WLOC[2 * hs]
            reg, o = (2, o - L_R0) if o >= L_R0 else (1, o - 65536) if o >= 65536 else (0, o)
            return [f"ds_read_b64_tr_b16 {vr(B16[hs % 3] + 4 * ct + 2 * h, 2)}, v{WBS + 4 * reg + ct} offset:{o + 1024 * h}"
                    for ct in range(4) for h in range(2)]

        nis = optval("pi", PF)
        for ks in range(nis):
            for x in aload(ks):
                a(x)
        for reg, o in enumerate((0, 65536, L_R0)):
            for ct in range(4):
                a(f"v_xor_b32 v{WBS + 4 * reg + ct}, {32 * ct}, v2")
                if o:
                    a(f"v_add_u32 v{WBS + 4 * reg + ct}, {o}, v{WBS + 4 * reg + ct}")
        emit_lds_wait(a, VLF, 0, 16)
        emit_lds_wait(a, VLF, 16, 16)
        for x in wreads(0) + wreads(1):
            a(x)
        for hs in range(32):
            nxt = wreads(hs + 2) if hs + 2 < 32 else []
            for rh in range(2):
                ks = 2 * hs + rh
                a(f"s_waitcnt vmcnt({nis - 1 - ks})" + ("" if rh else f" lgkmcnt({8 if hs < 31 else 0})"))
                for ct in range(4):
                    c_ = 3 - ct if ("go1" in OPT and rh) else ct
                    d = vr(AC2 + 4 * (2 * c_ + rh), 4)
                    a(f"v_mfma_f32_16x16x32_bf16 {d}, {vr(B16[hs % 3] + 4 * c_, 4)}, {vr(AF + 4 * (ks % PF), 4)}, {'0' if hs == 0 else d}")
                    if ct == 0 and "tsg" in OPT and ks % 8 == 0 and ts.enabled:
                        a(f"s_memrealtime s[{4 + ks // 4}:{5 + ks // 4}]" if ks < 8 else f"s_memrealtime s[{14 + ks // 4}:{15 + ks // 4}]")
                    if ct == 0 and ks == optval("aw", -1):
                        lds_flag_set(a, 32, 24, 196)
                    if nxt:
                        a(nxt.pop(0))
                    if (ct == 1 and nis < min(64, ks + PF)) or (ct == 3 and nis < min(64, ks + PF + 1)):
                        for x in aload(nis):
                            a(x)
                        nis += 1
        ts.stamp(a, 28)
        if "tsg" in OPT and ts.enabled:
            for i in range(8):
                a(f"v_writelane_b32 v254, s{4 if i == 0 else 14 + 2 * i}, {12 + i}")
        for ct in range(4):
            a(f"v_xor_b32 v{8 + ct}, {32 * ct}, v193")
        a("s_nop 3")
        for rh in range(2):
            for ct in range(4):
                b = AC2 + 4 * (2 * ct + rh)
                a(f"v_cvt_pk_bf16_f32 v{b}, v{b}, v{b + 1}")
                a(f"v_cvt_pk_bf16_f32 v{b + 1}, v{b + 2}, v{b + 3}")
                a(f"ds_write_b64 v{8 + ct}, {vr(b, 2)} offset:{2048 * rh}")
            for i in (2 * rh, 2 * rh + 1):
                a(f"ds_read_b128 {vr(72 + 4 * i, 4)}, v194 offset:{1024 * i}")
        for i in range(4):
            a(f"s_waitcnt lgkmcnt({(7, 6, 1, 0)[i]})")
            a(f"buffer_store_dwordx4 {vr(72 + 4 * i, 4)}, v{VOA}, {S(SOUT)}, s56 offen{' sc1' if 'ob' in OPT else ''}")
            a("s_add_u32 s56, s56, 32768")
        ts.final(a, 10)
        a("s_endpgm")
        return
    for ks in range(PF):
        for x in aload(ks):
            a(x)
    CHK = {}
    if "g2e" in OPT or "ck" in OPT:
        CHK = {8 * NE - 2: (0, 16)}
    else:
        emit_lds_wait(a, VLF, 0, 16)
        emit_lds_wait(a, VLF, 16, 16)
    for x in breads(0, 0) + breads(1, 1):
        a(x)
    for ks in range(64):
        f = BF[ks % 3]
        issued = min(63, ks + PF - 1)
        a(f"s_waitcnt vmcnt({issued - ks}) lgkmcnt({4 if ks < 63 else 0})")
        af = vr(AF + 4 * (ks % PF), 4)
        nxt = breads(ks + 2, (ks + 2) % 3) if ks + 2 < 64 else []
        d0, d1 = vr(AC2, 16), vr(AC2 + 16, 16)
        a(f"v_mfma_f32_32x32x16_bf16 {d0}, {vr(f, 4)}, {af}, {'0' if ks == 0 else d0}")
        if "tsg" in OPT and ks % 8 == 0 and ts.enabled:
            a(f"s_memrealtime s[{4 + ks // 4}:{5 + ks // 4}]" if ks < 8 else f"s_memrealtime s[{14 + ks // 4}:{15 + ks // 4}]")
        if ks == optval("aw", -1):
            lds_flag_set(a, 32, 24, 196)
        if ks + 1 in CHK:
            for i, o in enumerate(CHK[ks + 1]):
                a(f"ds_read_b128 {vr(8 + 4 * i, 4)}, v{VLF} offset:{o}")
        if ks in CHK:
            for i in range(4):
                a(f"v_and_b32 v{8 + i}, v{8 + i}, v{12 + i}")
            a("v_and_b32 v8, v8, v9")
            a("v_and_b32 v10, v10, v11")
            a("v_and_b32 v8, v8, v10")
            lf, lb = a.newlabel("wspin"), a.newlabel("wback")
            a("v_cmp_ne_u32 vcc, 0, v8")
            a(f"s_cbranch_vccz {lf}")
            a.label(lb)
            sub = Asm()
            sub.uid = a.uid + 2000
            for o in CHK[ks]:
                emit_lds_wait(sub, VLF, o, 8)
            a.uid = sub.uid
            ool.append((lf, [x.strip() for x in sub.L], lb))
        for x in nxt:
            a(x)
        a(f"v_mfma_f32_32x32x16_bf16 {d1}, {vr(f + 4, 4)}, {af}, {'0' if ks == 0 else d1}")
        if ks + PF < 64:
            for x in aload(ks + PF):
                a(x)
    ts.stamp(a, 28)
    if "tsg" in OPT and ts.enabled:
        for i in range(8):
            a(f"v_writelane_b32 v254, s{4 if i == 0 else 14 + 2 * i}, {12 + i}")
    a("s_nop 7")
    a("s_nop 7")
    for ct in range(2):
        b = AC2 + 16 * ct
        for j in range(8):
            a(f"v_cvt_pk_bf16_f32 v{b + j}, v{b + 2 * j}, v{b + 2 * j + 1}")
        a("s_nop 1")
        for jj in range(2):
            a(f"v_permlane32_swap_b32 v{b + 4 * jj}, v{b + 4 * jj + 2}")
            a(f"v_permlane32_swap_b32 v{b + 4 * jj + 1}, v{b + 4 * jj + 3}")
        if "bf" in OPT:
            for jj in range(2):
                a(f"v_xor_b32 v{8 + 2 * ct + jj}, {(4 * ct + 2 * jj) * 16}, v193")
                a(f"ds_write_b128 v{8 + 2 * ct + jj}, {vr(b + 4 * jj, 4)}")
            continue
        for jj in range(2 if "nob" not in OPT else 0):
            a(f"buffer_store_dwordx4 {vr(b + 4 * jj, 4)}, v{VOA}, {S(SOUT)}, s56 offen offset:{ct * 64 + jj * 32}{' sc1' if 'ob' in OPT else ''}{' nt' if 'nb' in OPT else ''}")
    if "bf" in OPT:
        for i in range(4):
            a(f"ds_read_b128 {vr(72 + 4 * i, 4)}, v194 offset:{1024 * i}")
        for i in range(4):
            a(f"s_waitcnt lgkmcnt({3 - i})")
            a(f"buffer_store_dwordx4 {vr(72 + 4 * i, 4)}, v{VOA}, {S(SOUT)}, s56 offen{' sc1' if 'ob' in OPT else ''}{' nt' if 'nb' in OPT else ''}")
            a("s_add_u32 s56, s56, 32768")
    ts.final(a, 10)
    a("s_endpgm")


def h_path(a, ts, ool):
    a(f"s_setprio {optval('hp', 3)}")
    XO, WO = 2, 6
    a("v_lshrrev_b32 v12, 3, v0")
    a("v_and_b32 v13, 7, v0")
    a("s_lshl_b32 s45, s33, 7")
    a("s_lshl_b32 s46, s44, 5")
    a("s_add_u32 s45, s45, s46")
    a("v_lshrrev_b32 v14, 4, v0")
    a("v_xor_b32 v14, v14, v13")
    a("v_add_u32 v15, s45, v12")
    a("v_lshlrev_b32 v15, 11, v15")
    a(f"v_lshl_add_u32 v{XO}, v14, 4, v15")
    a(f"v_xor_b32 v{XO + 1}, 64, v{XO}")
    a(f"v_add_u32 v{XO + 1}, {16384 - 1024}, v{XO + 1}")
    a(f"v_add_u32 v{XO + 2}, {2 * (16384 - 1024)}, v{XO}")
    a(f"v_add_u32 v{XO + 3}, {2 * (16384 - 1024)}, v{XO + 1}")
    a("s_lshl_b32 s45, s44, 12")
    main_a = a
    if "fs" in OPT:
        a = Asm()
    a("s_mul_i32 s48, s44, 98304")
    a("s_lshl_b32 s46, s34, 7")
    a("s_add_u32 s48, s48, s46")
    if "wl" in OPT:
        a("v_lshrrev_b32 v14, 2, v0")
        a("v_and_b32 v14, 4, v14")
        a("v_xor_b32 v14, v14, v13")
        a("v_mul_u32_u24 v15, 6144, v12")
        a("v_lshl_add_u32 v15, v14, 4, v15")
        a(f"v_add_u32 v{WO}, s48, v15")
        a(f"v_add_u32 v{WO + 1}, 48128, v{WO}")
    for i in range(3 if "wl" not in OPT else 0):
        if i:
            a(f"v_add_u32 v14, {64 * i}, v0")
        src = "v14" if i else "v0"
        a(f"v_mul_u32_u24 v15, 2731, {src}")
        a("v_lshrrev_b32 v15, 16, v15")
        a("v_mul_u32_u24 v16, 24, v15")
        a(f"v_sub_u32 v16, {src}, v16")
        a("v_bfe_u32 v18, v15, 1, 1")
        a("v_lshlrev_b32 v18, 2, v18")
        a("v_xor_b32 v16, v16, v18")
        a("v_lshrrev_b32 v18, 3, v16")
        a("v_and_b32 v16, 7, v16")
        a("v_mul_u32_u24 v15, 6144, v15")
        a("v_lshl_add_u32 v15, v18, 11, v15")
        a("v_lshl_add_u32 v15, v16, 4, v15")
        for ii in (i, i + 3):
            il = ii if ii < 4 else ii - 4
            a(f"s_add_u32 s49, s48, {(8 * 6144 if ii >= 3 else 0) - 1024 * il}")
            a(f"v_add_u32 v{WO + ii}, s49, v15")
            if "m16" in OPT and ii >= 3:
                a(f"v_xor_b32 v{WO + ii}, 32, v{WO + ii}")
    a("s_mul_i32 s43, s44, 6144")
    a("s_add_u32 s43, s43, 16384")
    wsetup = [x.strip() for x in a.L] if "fs" in OPT else []
    a = main_a
    order = []

    RG = optval("rg", 8)

    def pace(t):
        if t >= 6 and optval("pc", 0):
            a(f"s_nop {optval('pc', 0) - 1}")
            if optval("pc2", 0):
                a(f"s_nop {optval('pc2', 0) - 1}")

    def tile_index(t):
        if "hot" in OPT:
            a(f"s_mov_b32 s42, {t & 1}")
            return
        if RG <= 1:
            a(f"s_mov_b32 s42, {t}")
            return
        if SG:
            a(f"s_bfe_u32 s42, s{54 + (t >> 3)}, 0x{0x40000 + 4 * (t & 7):x}")
            return
        if "f0" in OPT:
            if t == 0:
                a("s_mov_b32 s42, 15")
            elif t <= 8:
                a(f"s_add_u32 s42, s56, {t - 1}")
                a("s_and_b32 s42, s42, 7")
            else:
                a("s_and_b32 s42, s56, 7")
                a("s_min_u32 s42, s42, 6")
                a(f"s_add_u32 s42, s42, {t - 9}")
                a("s_cmp_ge_u32 s42, 7")
                a("s_cselect_b32 s49, 1, 8")
                a("s_add_u32 s42, s42, s49")
            return
        GR = [o[2:] for o in OPT if o.startswith("gr")]
        if GR:
            g0 = 0
            for c in GR[0]:
                if t < g0 + int(c):
                    break
                g0 += int(c)
            a(f"s_add_u32 s42, s56, {t}")
            a(f"s_and_b32 s42, s42, {int(c) - 1}")
            if g0:
                a(f"s_add_u32 s42, s42, {g0}")
            return
        TP = [o[2:] for o in OPT if o.startswith("tp")]
        if TP:
            c = sum(int(d, 16) << (4 * i) for i, d in enumerate(TP[0][t & 12:(t & 12) + 4]))
            a(f"s_add_u32 s42, s56, {t}")
            a("s_and_b32 s42, s42, 3")
            a("s_lshl_b32 s42, s42, 2")
            a(f"s_lshr_b32 s42, 0x{c:x}, s42")
            a("s_and_b32 s42, s42, 15")
            return
        a(f"s_add_u32 s42, s56, {t}")
        a(f"s_and_b32 s42, s42, {RG - 1}")
        if t >= RG:
            a(f"s_add_u32 s42, s42, {t // RG * RG}")

    SG = optval("sg", 0)
    if SG:
        a("s_lshr_b32 s56, s35, 3")
        a("s_add_u32 s56, s56, s35")
        a("s_and_b32 s56, s56, 3")
        for c in range(4):
            seq = sorted(range(16), key=lambda x: (x - SG - 0.5) if (x & 3) == c else x)
            w = [sum(seq[8 * h + i] << (4 * i) for i in range(8)) for h in range(2)]
            if c == 0:
                a(f"s_mov_b32 s54, 0x{w[0]:x}")
                a(f"s_mov_b32 s55, 0x{w[1]:x}")
            else:
                a(f"s_cmp_eq_u32 s56, {c}")
                a(f"s_cselect_b32 s54, 0x{w[0]:x}, s54")
                a(f"s_cselect_b32 s55, 0x{w[1]:x}, s55")
    a("s_lshr_b32 s56, s35, 3")
    a(f"s_mul_i32 s56, s56, {optval('rb', 2)}")
    if optval("ra", 0):
        a(f"s_bfe_u32 s49, s35, 0x{((3 - optval('ra', 0)) << 16) + optval('ra', 0):x}")
        a("s_add_u32 s56, s56, s49")
    else:
        a("s_add_u32 s56, s56, s35")
    if optval("rx", 0):
        a(f"s_mul_i32 s49, s3, {optval('rx', 0)}")
        a("s_add_u32 s56, s56, s49")
    if optval("ry", 0):
        a("s_lshr_b32 s49, s3, 1")
        a(f"s_mul_i32 s49, s49, {optval('ry', 0)}")
        a("s_add_u32 s56, s56, s49")
    if RG == 16:
        a("s_lshl_b32 s56, s56, 1")

    def issue_x(t):
        if "nodma" in OPT and t >= 3:
            order.append(f"x{t}")
            return
        a(f"s_add_u32 m0, s45, {slot(t) * 40960}")
        tile_index(t)
        a("s_lshl_b32 s42, s42, 7")
        for i in range(4):
            a(f"buffer_load_dwordx4 v{XO + i}, {S(SX)}, s42 offen offset:{1024 * i} {nt('x') if t % RG == RG - 1 else ''} lds")
            pace(t)
        order.append(f"X{t}")

    def issue_w(t):
        if "nodma" in OPT and t >= 3:
            order.append(f"x{t}")
            return
        while wsetup:
            a(wsetup.pop(0))
        st = slot(t)
        a(f"s_add_u32 m0, s43, {st * 40960}")
        tile_index(t)
        a("s_mul_i32 s42, s42, 393216")
        if "wl" in OPT:
            for i in range(6):
                if i == 4:
                    a(f"s_add_u32 m0, s43, {st * 40960 + 4096}")
                    a("s_add_u32 s42, s42, 4096")
                a(f"buffer_load_dwordx4 v{WO + (i & 1)}, {S(SW)}, s42 offen offset:{1024 * (i & 3)} lds")
            order.append(f"W{t}")
            return
        for i in range(4):
            a(f"buffer_load_dwordx4 v{WO + i}, {S(SW)}, s42 offen offset:{1024 * i} {nt('x') if t % RG == RG - 1 else ''} lds")
            pace(t)
        a(f"s_add_u32 m0, s43, {st * 40960 + 4096}")
        a("s_nop 0")
        for i in range(4, 6):
            a(f"buffer_load_dwordx4 v{WO + i}, {S(SW)}, s42 offen offset:{1024 * (i - 4)} {nt('x') if t % RG == RG - 1 else ''} lds")
        order.append(f"W{t}")

    RQ = [list(range(28, 68, 4)), list(range(68, 108, 4)),
          list(range(108, 124, 4)) + list(range(200, 216, 4)) + [220, 224]]
    parked = {}

    def park(t, part):
        if t not in parked:
            parked[t] = next(b for b in range(3) if b not in parked.values())
        q = RQ[parked[t]]
        tile_index(t)
        if part == "X":
            a("s_lshl_b32 s42, s42, 7")
            for i in range(4):
                a(f"buffer_load_dwordx4 {vr(q[i], 4)}, v{XO + i}, {S(SX)}, s42 offen offset:{1024 * i}")
        else:
            a("s_mul_i32 s42, s42, 393216")
            for i in range(6):
                a(f"buffer_load_dwordx4 {vr(q[4 + i], 4)}, v{WO + i}, {S(SW)}, s42 offen offset:{1024 * (i & 3)}")
        order.append(f"{part}{t}")

    def unpark(t):
        wait_tile(t)
        q = RQ[parked[t]]
        a(f"s_add_u32 s42, s45, {slot(t) * 40960}")
        a("v_add_u32 v170, s42, v1")
        a(f"s_add_u32 s42, s43, {slot(t) * 40960}")
        a("v_add_u32 v171, s42, v1")
        for i in range(10):
            a(f"ds_write_b128 v{170 + (i >= 4)}, {vr(q[i], 4)} offset:{1024 * (i if i < 4 else i - 4)}")
        parked[t] = -1

    def vm(x):
        a(x)
        if x.startswith("buffer"):
            order.append("P")

    def cnt(lst):
        return sum({"X": 4, "W": 6, "P": 1, "L": 0, "U": 0, "x": 0, "R": 1, "E": 0, "a": 0}[x[0]] for x in lst)

    def wait_tile(b):
        if "nodma" in OPT and b >= 3:
            return
        last = max(i for i, x in enumerate(order) if x in (f"X{b}", f"W{b}"))
        assert f"X{b}" in order and f"W{b}" in order
        n = cnt(order[last + 1:])
        assert n < 64
        a(f"s_waitcnt vmcnt({n})")

    def later():
        a("s_lshl_b32 s80, s84, 2")
        a("s_add_u32 s80, s80, s44")
        a("s_lshl_b32 s80, s80, 11")
        a("v_lshlrev_b32 v179, 5, v0")
        a("v_add_u32 v179, s80, v179")
        a("s_lshl_b32 s87, s84, 2")
        a("s_add_u32 s87, s87, s44")
        a("s_lshl_b32 s87, s87, 12")
        a(f"s_buffer_load_dword s57, {S(SHK)}, s87")
        a(f"s_mul_i32 s88, s44, {URO}")
        a(f"s_add_u32 s88, s88, {L_R0 + 4 * (CW - URO)}")
        a(f"s_mul_i32 s86, s44, {CW - URO}")
        a(f"s_add_u32 s86, s86, {L_R0 - URO}")
        a("s_lshl_b32 s80, s35, 2")
        a("s_add_u32 s80, s80, s44")
        a("s_lshl_b32 s80, s80, 6")
        a("v_add_u32 v20, s80, v0")
        a("v_lshrrev_b32 v241, 3, v20")
        a("v_lshlrev_b32 v241, 11, v241")
        a("v_and_b32 v20, 7, v20")
        a("v_lshl_add_u32 v241, v20, 7, v241")
        a("s_lshr_b32 s80, s3, 2")
        a("s_lshl_b32 s80, s80, 10")
        a("v_add_u32 v241, s80, v241")
        a("s_lshl_b32 s80, s35, 6")
        a("s_lshl_b32 s81, s44, 4")
        a("s_add_u32 s80, s80, s81")
        a("v_lshrrev_b32 v20, 1, v0")
        a("v_add_u32 v20, s80, v20")
        a("v_lshlrev_b32 v20, 11, v20")
        a("v_and_b32 v21, 1, v0")
        a("v_lshl_add_u32 v20, v21, 7, v20")
        a("s_lshl_b32 s80, s3, 8")
        if optval("cx", 0):
            a(f"s_xor_b32 s80, s80, {optval('cx', 0) << 8}")
        a("v_add_u32 v20, s80, v20")
        a("v_lshlrev_b32 v21, 7, v0")
        a("v_cmp_gt_u32 vcc, 32, v0")
        a("s_nop 1")
        a("v_cndmask_b32 v242, v240, v20, vcc")
        a("v_cndmask_b32 v243, v240, v21, vcc")
        AF_ = "af" in OPT
        a(f"v_lshrrev_b32 v20, {3 + AF_}, v0")
        a(f"v_and_b32 v21, {7 + 8 * AF_}, v0")
        a("s_lshl_b32 s80, s35, 6")
        if AF_:
            a("s_and_b32 s81, s44, 1")
            a("s_lshl_b32 s81, s81, 5")
            a("s_add_u32 s80, s80, s81")
        a("s_lshl_b32 s81, s3, 2")
        if optval("cx", 0):
            a(f"s_xor_b32 s81, s81, {optval('cx', 0) << 2}")
        a("s_add_u32 s81, s81, s44")
        if AF_:
            a("s_andn2_b32 s81, s81, 1")
        a("s_lshl_b32 s81, s81, 5")
        a("v_lshlrev_b32 v22, 3, v20")
        a("v_add_u32 v22, s80, v22")
        a("v_lshlrev_b32 v23, 2, v21")
        a("v_add_u32 v23, s81, v23")
        a(f"v_lshlrev_b32 v{PA}, 12, v23")
        a(f"v_lshl_add_u32 v{PA}, v22, 1, v{PA}")
        if "yc" in OPT:
            assert AF_
            a("v_and_b32 v24, 3, v0")
            a("v_lshrrev_b32 v25, 2, v0")
            a("v_lshl_add_u32 v24, v24, 4, v25")
            a("v_lshlrev_b32 v24, 2, v24")
            a(f"ds_bpermute_b32 v{PA}, v24, v{PA}")
            a("v_lshl_add_u32 v247, v21, 2, v20")
            a("v_lshlrev_b32 v247, 2, v247")
        a(f"v_lshlrev_b32 v{PA + 1}, 11, v22")
        a(f"v_lshl_add_u32 v{PA + 1}, v23, 1, v{PA + 1}")
        a(f"v_lshlrev_b32 v{PA + 2}, 12, v22")
        a(f"v_lshl_add_u32 v{PA + 2}, v23, 1, v{PA + 2}")
        a(f"v_bfe_u32 v20, v0, 2, {3 + AF_}")
        a("s_lshl_b32 s80, s44, 3")
        if AF_:
            a("s_and_b32 s80, s80, 16")
        a("v_add_u32 v20, s80, v20")
        a("v_lshlrev_b32 v20, 3, v20")
        a("v_add_u32 v20, s3, v20")
        a("v_lshlrev_b32 v20, 7, v20")
        a("v_and_b32 v21, 3, v0")
        a("v_lshl_add_u32 v20, v21, 3, v20")
        a(f"v_add_u32 v{PA + 3}, 0x{fbase(FL_Y2) + 32:x}, v20")
        fshift(a, FL_Y2, PA + 3)
        a("s_and_b32 s40, s44, 1")
        a("s_lshr_b32 s41, s44, 1")
        a("s_waitcnt lgkmcnt(0)")
        a("s_lshl_b32 s80, s44, 4")
        a("s_lshr_b64 s[38:39], s[76:77], s80")
        a("s_lshl_b32 s39, s38, 16")
        a("s_lshl_b32 s57, s57, 16")
        a("s_lshl_b32 s40, s40, 1")
        a("s_add_u32 s40, s40, 1")
        a("v_and_b32 v192, 31, v0")
        a("v_lshlrev_b32 v192, 3, v192")
        a("v_add_u32 v192, s3, v192")
        a("v_lshlrev_b32 v192, 7, v192")
        a("s_lshr_b32 s80, s35, 3")
        a("s_lshl_b32 s80, s80, 3")
        a(f"s_add_u32 s80, s80, 0x{fbase(FL_UR) + 32:x}")
        a("v_add_u32 v192, s80, v192")
        fshift(a, FL_UR, 192)
        a("s_lshl_b32 s80, s44, 11")
        a(f"s_add_u32 s80, s80, {L_QH}")
        a("v_add_u32 v193, s80, v1")
        a("v_lshlrev_b32 v180, 3, v0")
        a("v_add_u32 v180, s86, v180")
        a("v_and_b32 v181, 1, v0")
        a(f"v_mul_u32_u24 v181, {CPY}, v181")
        a("v_bfe_u32 v182, v0, 1, 1")
        a("v_lshl_add_u32 v181, v182, 4, v181")
        a("v_add_u32 v181, s88, v181")
        a("v_mov_b32 v182, s88")
        a("v_mov_b32 v183, s57")
        for i in range(4):
            a(f"v_mov_b32 v{184 + i}, 0")

    p_setup, p_loads, p_comp, p_stores = p1_lists()
    if "nop1" in OPT:
        p_loads, p_comp, p_stores = p_loads[:1], [], []

    main_a = a
    a = Asm()
    for y in p_setup:
        a(y)
    later()
    setup2 = [x.strip() for x in a.L]
    a = main_a

    gl = list(range(32))

    def act(x):
        k, arg = x[0], x[1:]
        if k == "X":
            issue_x(int(arg))
        elif k == "W":
            issue_w(int(arg))
        elif k == "T":
            issue_x(int(arg)); issue_w(int(arg))
        elif k == "Y":
            park(int(arg), "X"); park(int(arg), "W")
        elif k == "Z":
            unpark(int(arg))
        elif k == "F":
            t0, n = map(int, arg.split("_"))
            emit_touch_fine(a, 234, 235, 228, t0)
            for y in touch(t0, n, 234, 235, 246):
                vm(y)
        elif k == "C":
            t = int(arg)
            a(f"s_cmp_eq_u32 s58, {t & 3}")
            a("s_cselect_b64 vcc, -1, 0")
            a(f"s_mov_b32 s82, {t * 128}")
            a(f"s_mov_b32 s83, {t * 393216}")
            a("v_cndmask_b32 v238, v240, v245, vcc")
            a("v_cndmask_b32 v239, v240, v244, vcc")
            vm(f"buffer_load_dword v246, v238, {S(SW)}, s83 offen")
            vm(f"buffer_load_dword v247, v239, {S(SX)}, s82 offen")
        elif k == "K":
            r = 242
            if arg:
                a(f"s_cmp_eq_u32 s58, {arg}")
                a("s_cselect_b64 vcc, -1, 0")
                a("s_nop 0")
                a("v_cndmask_b32 v237, v240, v242, vcc"); r = 237
            vm(f"buffer_load_dword v248, v{r}, {S(SK)}, 0 offen")
            vm(f"buffer_load_dword v249, v{r}, {S(SV)}, 0 offen")
        elif k == "P":
            for _ in range(int(arg)):
                if p_loads:
                    vm(p_loads.pop(0))
            if not p_loads:
                order.append("L")
        elif k == "V":
            assert all(v < 0 for v in parked.values())
            if "L" in order:
                a(f"s_waitcnt vmcnt({cnt(order[order.index('L') + 1:])})")
                order.remove("L")
            for _ in range(int(arg)):
                if p_comp:
                    a(p_comp.pop(0))
        elif k == "S":
            assert not p_comp and not p_loads
            for y in p_stores:
                vm(y)
            order.append("U")
        elif k == "U":
            a(f"s_waitcnt vmcnt({cnt(order[order.index('U') + 1:])})")
            emit_token_take(a, 172, VZ)
            emit_publish(a, FL_UR, 194, VZ)
            order.append("P")
        elif k == "A":
            emit_attn_setup(a, MASKS_H)
        elif k == "R":
            poll_issue(a, 192, 198)
            order.append("R")
        elif k == "o":
            vm(f"buffer_load_dword v178, v179, {S(SWO)}, 0 offen")
        elif k == "Q":
            vm(f"buffer_load_dword v246, v242, {S(SQ)}, 0 offen")
        elif k == "G":
            vm(f"buffer_load_dword v246, v243, {S(SHK)}, s87 offen")
        elif k == "O":
            vm(f"buffer_load_dword v248, v241, {S(SWO)}, 0 offen")
        elif k == "t":
            vm(f"buffer_load_dwordx2 v[172:173], v{VZ}, {S(SDBG)}, 0 offen{SC}")
        elif k == "a":
            ptr_loads(a)
            order.append("a")
        elif k == "b":
            if "fs" in OPT:
                if "a" not in order:
                    ptr_loads(a)
                a("s_waitcnt lgkmcnt(0)")
            late_setup(a, ts)
            if ts.on:
                order.append("P")
            a("v_mov_b32 v240, 0x80000000")
            a("s_and_b32 s58, s35, 3")
        elif k == "c":
            for _ in range(int(arg)):
                if setup2:
                    a(setup2.pop(0))
        elif k == "H":
            a("ds_write_b128 v181, v[184:187]")
            a(f"ds_write_b32 v182, v183 offset:{CPY + 28}")
            for c in range(2):
                a(f"s_add_u32 m0, s88, {32 + c * CPY}")
                a(f"s_add_u32 s80, s87, {2 * c}")
                for kk in range(4):
                    vm(f"buffer_load_dwordx4 v1, {S(SHK)}, s80 offen offset:{1024 * kk} {nt('h') if c else ''} lds")
        elif k in "DE":
            ls = a.newlabel("urskip")
            if "E" not in order:
                a(f"ds_write_b64 v180, v[184:185] offset:{URO + 4096}")
            if k == "E":
                a(f"s_waitcnt vmcnt({cnt(order[order.index('R') + 1:])})")
                tok_cmp(a, 198)
                a("s_mov_b32 s38, 0")
                a("s_nop 0")
                a("s_cmp_eq_u32 vcc_lo, -1")
                a(f"s_cbranch_scc0 {ls}")
                a("s_mov_b32 s38, 1")
                order.append("E")
            else:
                if "E" in order:
                    a("s_cmp_eq_u32 s38, 1")
                    a(f"s_cbranch_scc1 {ls}")
                emit_poll(a, 192, 32, 198, pre=True)
                ts.stamp(a, 2)
            a(f"s_add_u32 m0, s86, {URO}")
            a(f"s_add_u32 s80, s87, 0x{WS_UR:x}")
            for kk in range(4):
                a(f"buffer_load_dwordx4 v1, {S(SWS)}, s80 offen offset:{1024 * kk} {nt('u')} lds")
            a.label(ls)
        else:
            raise ValueError(x)

    sc = os.environ.get("SCHED") or SCHEDS[optval("sc", 0)]
    sched = sc.split("|")
    assert len(sched) == 18, len(sched)
    if "tse" in OPT and ts.enabled:
        a("s_memrealtime s[92:93]")
    if "wn" in OPT:
        while wsetup:
            a(wsetup.pop(0))
    a("s_waitcnt lgkmcnt(0)")
    if "tse" in OPT and ts.enabled:
        a("v_writelane_b32 v254, s92, 29")
        ts.stamp(a, 0)
    for x in sched[0].split():
        act(x)
        if "tse" in OPT and x == "X1":
            ts.stamp(a, 9)
        if "tse" in OPT and x[0] == "c":
            ts.stamp(a, 2)
    for b in range(0, 17):
        if b not in skipped():
            real, nb = b, b
            while nb + 1 in skipped():
                nb += 1
            if b in parked:
                assert parked[b] < 0
                a("s_waitcnt lgkmcnt(0)")
            elif b < 16:
                wait_tile(max(range(b, nb + 1), key=lambda t: max(order.index(f"X{t}"), order.index(f"W{t}"))))
            if "tse" in OPT and b == 0:
                ts.stamp(a, 28)
            a("s_barrier")
        if "tsb" in OPT:
            ts.stamp(a, 11 + b)
        for x in sched[b + 1].split():
            if x[0] in "XWTZ":
                assert int(x[1:]) <= real + 3
            act(x)
    ts.stamp(a, 1)
    assert not setup2
    a("s_mov_b32 s46, s88")
    a(f"s_add_u32 s36, s87, 0x{wsy2():x}")

    def c_start():
        if optval("pv", -1) >= 0:
            a(f"s_setprio {optval('pv', 0)}")
        a("s_waitcnt vmcnt(0)")
        ts.stamp(a, 3)

    b = Asm()
    emit_attn_setup(b, MASKS_H)
    g2_tile(b)
    wo_addr(b)
    ys = emit_conv(a, {"start": c_start, "extra": [x.strip() for x in b.L], "bar": lambda: a("s_barrier"),
                       "stamp": lambda: ts.stamp(a, 3)})
    ts.stamp(a, 5)
    a("s_setprio 0")
    if "eb" not in OPT:
        a("s_barrier")
    ts.stamp(a, 4)
    a(f"ds_read_b128 {vr(QC, 4)}, v193")
    a(f"ds_read_b128 {vr(QC + 4, 4)}, v193 offset:1024")
    if not optval("ys", 0):
        for x in ys:
            a(x)
    YY, OO = 168, 24
    if optval("ph", 0):
        a(f"s_setprio {optval('ph', 0)}")
    blk = wo_early()
    if optval("qs", 0):
        blk[optval("qs", 0)] = blk.get(optval("qs", 0), []) + wo_part(7, L_QH - 8192)
    b = Asm()
    b("s_waitcnt vmcnt(0)")
    emit_publish(b, FL_Y2, 194, VZ)
    yb = optval("yb", 2)
    if optval("ys", 0):
        assert optval("ys", 0) < yb
        blk[optval("ys", 0)] = ys + blk.get(optval("ys", 0), [])
    blk[yb] = [x.strip() for x in b.L] + blk.get(yb, [])
    hk = {"blk": blk}
    blk[7] = blk7_flag() + blk.get(7, [])
    hk["prio"] = prio_plan("H")
    YE = optval("ye", 0)
    b = Asm()
    for i in range(8):
        if i % 2 == 0:
            b(f"s_mov_b32 s80, {4096 * (i >> 1)}")
        b(f"buffer_load_dwordx2 {vr(QQ + 2 * i, 2)}, v{PA + 1}, {S(SQ)}, s80 offen offset:{(i & 1) * 2048}")
    ql = [x.strip() for x in b.L]
    b = Asm()
    poll_issue(b, PA + 3, 196)
    pl = [x.strip() for x in b.L]
    if YE:
        blk[optval("qe", YE)] = blk.get(optval("qe", YE), []) + ql
        blk[YE] = blk.get(YE, []) + pl
    emit_attention(a, ool, hk, MASKS_H, "H")
    ts.stamp(a, 6)
    if not YE:
        for x in ql + pl:
            a(x)

    def y_issue(va):
        a(f"s_mov_b32 s80, 0x{wsy2():x}")
        for dd in range(4):
            a(f"buffer_load_dwordx4 {vr(YY + 4 * dd, 4)}, v{va}, {S(SWS)}, s80 offen {scl()}")
            if dd < 3:
                a("s_add_u32 s80, s80, 4096")

    def y_loads():
        emit_poll(a, PA + 3, 64, 196, pre=True)
        y_issue(PA)

    p3 = Asm()
    a, main_a = p3, a
    for i in range(8):
        for dd in range(4):
            ys = YY + 4 * dd + (i >> 1)
            qs = QQ + 2 * i + (dd >> 1)
            a(f"v_and_b32 v4, 0xffff0000, v{ys}" if i & 1 else f"v_lshlrev_b32 v4, 16, v{ys}")
            a(f"v_and_b32 v5, 0xffff0000, v{qs}" if dd & 1 else f"v_lshlrev_b32 v5, 16, v{qs}")
            a(f"v_mul_f32 v{OO + 4 * i + dd}, v4, v5")
        o = OO + 4 * i
        a(f"v_cvt_pk_bf16_f32 v{o}, v{o}, v{o + 1}")
        a(f"v_cvt_pk_bf16_f32 v{o + 1}, v{o + 2}, v{o + 3}")
    a = main_a
    outs = []
    for i in range(8):
        outs += [f"s_mov_b32 s80, {4096 * i}", f"buffer_store_dwordx2 {vr(OO + 4 * i, 2)}, v{PA + 2}, {S(SOUT)}, s80 offen{' sc1' if 'oa' in OPT else ''}{' nt' if 'na' in OPT else ''}"]

    def gate():
        if "yc" in OPT:
            for r in range(4):
                for dd in range(4):
                    a(f"ds_bpermute_b32 v{YY + 4 * dd + r}, v247, v{YY + 4 * dd + r}")
            a("s_waitcnt lgkmcnt(0)")
        for x in p3.L:
            a(x.strip())

    if YE:
        ll, lr = a.newlabel("ylate"), a.newlabel("yback")
        a("s_waitcnt vmcnt(2)")
        tok_cmp(a, 196)
        a("v_mov_b32 v4, 0x80000000")
        a("s_nop 0")
        a("s_cmp_eq_u64 vcc, -1")
        a("s_cselect_b32 s38, 1, 0")
        a("s_cselect_b64 vcc, -1, 0")
        a("s_nop 0")
        a(f"v_cndmask_b32 v4, v4, v{PA}, vcc")
        if "yl" not in OPT:
            y_issue(4)
    if "ag" in OPT:
        lfin = a.newlabel("afin")

        def mid():
            a("s_cmp_eq_u32 s38, 0")
            a(f"s_cbranch_scc1 {ll}")
            a("s_waitcnt vmcnt(1)")
            a.label(lr)
            gate()
            for x in outs:
                a(x)
            a("s_cmp_eq_u32 s38, 0")
            a(f"s_cbranch_scc1 {lfin}")
            a.label(ll)
        wo_late(a, ts, 4, True, mid)
        a("s_waitcnt vmcnt(0)")
        lds_flag_set(a, 32, 0, 4)
        ts.stamp(a, 8)
        a("s_cmp_eq_u32 s38, 1")
        a(f"s_cbranch_scc1 {lfin}")
        for x in pl:
            a(x)
        y_loads()
        a("s_waitcnt vmcnt(0)")
        a(f"s_branch {lr}")
        a.label(lfin)
    elif YE:
        wo_late(a, ts, 0 if "yl" in OPT else 4, True)
        a("s_cmp_eq_u32 s38, 0")
        a(f"s_cbranch_scc1 {ll}")
        if "yl" in OPT:
            if optval("yd", 0):
                a("s_waitcnt vmcnt(0)")
                lds_flag_set(a, 32, 0, 6)
                a(f"s_sleep {optval('yd', 0)}")
            y_issue(4)
            a("s_waitcnt vmcnt(4)")
            lds_flag_set(a, 32, 0, 6)
            a("s_waitcnt vmcnt(0)")
        a(f"s_waitcnt vmcnt({0 if 'nolate' in OPT else nlate() + (1 if optval('es', 0) == 1 or 'a1' in OPT else 0)})")
        a.label(lr)
        main_a, sub = a, Asm()
        sub.uid = main_a.uid + 1000
        a = sub
        a("s_waitcnt vmcnt(0)")
        lds_flag_set(a, 32, 0, 4)
        for x in pl:
            a(x)
        y_loads()
        a("s_waitcnt vmcnt(0)")
        main_a.uid = sub.uid
        a = main_a
        ool.append((ll, [x.strip() for x in sub.L], lr))
        gate()
        if "ae" in OPT:
            for x in outs:
                a(x)
            outs = []
        a(f"s_waitcnt vmcnt({8 if 'ae' in OPT else 0})")
        lds_flag_set(a, 32, 0, 4)
        ts.stamp(a, 8)
        if optval("ad", 0):
            a(f"s_sleep {optval('ad', 0)}")
        if optval("aw", 0):
            lp, dn = a.newlabel("aw"), a.newlabel("awd")
            a("s_setprio 0")
            a("s_mov_b32 s85, 0")
            a.label(lp)
            a("ds_read_b32 v5, v4 offset:80")
            a("s_add_u32 s85, s85, 1")
            a("s_waitcnt lgkmcnt(0)")
            a("v_cmp_ne_u32 vcc, 0, v5")
            a(f"s_cbranch_vccnz {dn}")
            a("s_sleep 4")
            a("s_cmp_lt_u32 s85, 64")
            a(f"s_cbranch_scc1 {lp}")
            a.label(dn)
        for x in outs:
            if "noa" not in OPT:
                a(x)
    else:
        raise ValueError("ye required")
    if optval("wb", 0):
        lw = a.newlabel("nowb")
        a(f"s_and_b32 s80, s35, {optval('wb', 0) - 1}")
        a("s_or_b32 s80, s80, s44")
        a("s_cmp_lg_u32 s80, 0")
        a(f"s_cbranch_scc1 {lw}")
        a("s_waitcnt vmcnt(0)")
        a(f"s_sleep {optval('wd', 16)}")
        a("buffer_wbl2 sc1")
        a("s_waitcnt vmcnt(0)")
        a.label(lw)
    ts.final(a, 10)
    a("s_endpgm")


def ptr_loads(a, helper=True):
    for (d, off, size) in SRDS[2:]:
        if helper or d not in (SK, SV, SSH, SHK):
            a(f"s_load_dwordx2 s[{d}:{d + 1}], s[0:1], {off}")
    if helper:
        a("s_load_dwordx2 s[36:37], s[0:1], 40")


def gen_fused(a, ts):
    name = NAME + "_kernel"
    kernel_begin(a, name)
    ts.entry(a)
    a("s_cmp_ge_u32 s2, 256")
    a("s_cbranch_scc1 L_end")
    if optval("xj", 0):
        a(f"s_xor_b32 s2, s2, {optval('xj', 0)}")
    for (d, off, size) in SRDS[:2]:
        a(f"s_load_dwordx2 s[{d}:{d + 1}], s[0:1], {off}")
    if "fs" not in OPT:
        ptr_loads(a)
    for o in OPT:
        if o.startswith("xp"):
            c = sum((int(d) ^ p) << (2 * p + 1) for p, d in enumerate(o[2:]))
            a("s_and_b32 s80, s2, 6")
            a(f"s_lshr_b32 s80, 0x{c:x}, s80")
            a("s_and_b32 s80, s80, 6")
            a("s_xor_b32 s2, s2, s80")
    a("v_lshrrev_b32 v1, 6, v0")
    if "hf" in OPT:
        a("v_xor_b32 v1, 4, v1")
    a("v_and_b32 v0, 63, v0")
    a("s_and_b32 s3, s2, 7")
    a("v_readfirstlane_b32 s32, v1")
    a("s_lshr_b32 s35, s2, 3")
    a("s_and_b32 s33, s3, 1")
    a("s_lshl_b32 s33, s33, 3")
    a("s_and_b32 s80, s35, 7")
    a("s_add_u32 s33, s33, s80")
    a("s_lshr_b32 s34, s3, 1")
    a("s_lshl_b32 s34, s34, 2")
    a("s_lshr_b32 s80, s35, 3")
    a("s_add_u32 s34, s34, s80")
    if optval("hx", 0):
        a(f"s_xor_b32 s34, s34, {optval('hx', 0)}")
    a("v_lshlrev_b32 v1, 4, v0")
    a(f"v_mov_b32 v{VZ}, 0")
    for (d, off, size) in SRDS[:2]:
        a(f"s_mov_b32 s{d + 2}, 0x{size:x}")
        a(f"s_mov_b32 s{d + 3}, 0x20000")
    a("s_and_b32 s44, s32, 3")
    a("s_mov_b32 s59, 0")
    a("s_cmp_lt_u32 s32, 4")
    a("s_cbranch_scc1 L_M")
    ool = []
    h_path(a, ts, ool)
    a.label("L_M")
    if "fs" in OPT:
        ptr_loads(a, False)
    m_path(a, ts, ool)
    for (lf, body, lb) in ool:
        a.label(lf)
        for x in body:
            a(x)
        a(f"s_branch {lb}")
    a.label("L_end")
    a("s_endpgm")
    emit_exact(a)
    return name, 256, 102


def build(instrument=False):
    if "best" in OPT:
        have = {o.rstrip("0123456789") for o in OPT}
        OPT.update(o for o in BEST.split(",") if o.rstrip("0123456789") not in have and "no" + o not in OPT)
    ts = TS(instrument)
    a = Asm()
    a.raw("; fused H3 long-conv | sliding-window attention kernel (generated)")
    a.raw("; @launch grid=(256,1,1) block=(512,1,1) lds=163840")
    a.raw('.amdgcn_target "amdgcn-amd-amdhsa--gfx950"')
    a.raw(".text")
    n, v, s = gen_fused(a, ts)
    a.raw('.section .rodata,"a"')
    kernel_desc(a, n, v, s)
    return a.text()


if __name__ == "__main__":
    out = sys.argv[1] if len(sys.argv) > 1 else f"cdna_kernels/{NAME}.s"
    if len(sys.argv) > 2:
        OPT.update(sys.argv[2].split(","))
    open(out, "w").write(build())
```
